```python
import torch

def _softmax(x, axis=-1):
    return torch.softmax(x, dim=axis)
def _gelu(x):
    return torch.nn.functional.gelu(x, approximate="tanh")
def _silu(x):
    return torch.nn.functional.silu(x)
def _sigmoid(x):
    return torch.sigmoid(x)
def _layernorm(x, axis=-1, eps=1e-5):
    m = x.mean(dim=axis, keepdim=True)
    v = x.var(dim=axis, keepdim=True, unbiased=False)
    return (x - m) / torch.sqrt(v + eps)
def _scatter_add(tgt, idx, src, axis=0):
    return tgt.clone().index_add_(axis, idx, src)
def _segment_sum(src, seg, n):
    out = torch.zeros((n,) + src.shape[1:], dtype=src.dtype)
    return out.index_add_(0, seg, src)
def _pad(x, pw):
    flat = tuple(v for pair in reversed(pw) for v in pair)
    return torch.nn.functional.pad(x, flat)

kernel_name = 'recurrent_scan__ssm_conv_h3__glu_gated_geglu__prompt'

def setup_inputs():

    _w = (lambda a: (lambda t: t.to(torch.bfloat16) if t.is_floating_point() else t)(torch.as_tensor(a)))
    def _A_setup():
        B, S, D = 1, 2048, 512
        ks = 4
        return {
            "q": _w((lambda *s: torch.randn(*s, dtype=torch.bfloat16) * 0.05)(B, S, D)),
            "k": _w((lambda *s: torch.randn(*s, dtype=torch.bfloat16) * 0.8)(B, S, D)),
            "v": _w((lambda *s: torch.randn(*s, dtype=torch.bfloat16) * 0.8)(B, S, D)),
            "shift_k": _w((lambda *s: torch.randn(*s, dtype=torch.bfloat16) * 0.8)(D, ks) * 0.5),
            "ssm_k": _w((lambda *s: torch.randn(*s, dtype=torch.bfloat16) * 1.6)(D, S) * (1.0 / S ** 0.5)),
            "ssm_D": _w((lambda *s: torch.randn(*s, dtype=torch.bfloat16) * 0.8)(D)),
        }
    _A_in = _A_setup()

    def _B_setup():
        B, S, Dm, Df = 1, 2048, 512, 1376
        return {
            "x": _w((lambda *s: torch.randn(*s, dtype=torch.bfloat16) * 0.05)(B, S, Dm)),
            "w_gate": _w((lambda *s: torch.randn(*s, dtype=torch.bfloat16) * 0.2)(Dm, Df) * (Dm ** -0.5)),
            "w_up": _w((lambda *s: torch.randn(*s, dtype=torch.bfloat16) * 0.2)(Dm, Df) * (Dm ** -0.5)),
            "w_down": _w((lambda *s: torch.randn(*s, dtype=torch.bfloat16) * 0.2)(Df, Dm) * (Df ** -0.5)),
        }
    _B_in = _B_setup()

    return {
        "A_q": _A_in["q"],
        "A_k": _A_in["k"],
        "A_v": _A_in["v"],
        "A_shift_k": _A_in["shift_k"],
        "A_ssm_k": _A_in["ssm_k"],
        "A_ssm_D": _A_in["ssm_D"],
        "B_x": _B_in["x"],
        "B_w_gate": _B_in["w_gate"],
        "B_w_up": _B_in["w_up"],
        "B_w_down": _B_in["w_down"],
    }

def reference(A_q, A_k, A_v, A_shift_k, A_ssm_k, A_ssm_D, B_x, B_w_gate, B_w_up, B_w_down):
    def _A_ref(q, k, v, shift_k, ssm_k, ssm_D):
        B, S, D = q.shape
        ks = shift_k.shape[-1]
        k_pad = _pad(k, ((0, 0), (ks - 1, 0), (0, 0)))
        k_shift = torch.zeros_like(k)
        for t in range(ks):
            k_shift = k_shift + k_pad[:, t:t + S, :] * shift_k[:, ks - 1 - t][None, None, :]
        kv = k_shift * v
        L = 2 * S
        kv_pad = _pad(kv, ((0, 0), (0, S), (0, 0)))
        kf_pad = _pad(ssm_k, ((0, 0), (0, S)))
        kv_f = (lambda x, axes=(-2,-1): torch.fft.rfft2(x.float(), dim=axes))(kv_pad[:, None, :, :], axes=(1, 2))
        kf_f = (lambda x, axes=(-2,-1): torch.fft.rfft2(x.float(), dim=axes))(kf_pad[:, None, :], axes=(1, 2))
        kf_f = (lambda x, *d: x.permute(*d))(kf_f, 1, 2, 0)
        y_f = kv_f * kf_f[None, :, :, :]
        y = (lambda x, s, axes=(-2,-1): torch.fft.irfft2(x, s=s, dim=axes).to(torch.bfloat16))(y_f, (1, L), axes=(1, 2))[:, 0, :S, :]
        y = y + kv * ssm_D[None, None, :]
        return q * y

    def _B_ref(x, w_gate, w_up, w_down):
        g = torch.einsum("bsd,df->bsf", x, w_gate)
        u = torch.einsum("bsd,df->bsf", x, w_up)
        h = _gelu(g) * u
        return torch.einsum("bsf,fd->bsd", h, w_down)

    x = A_q
    xn = _layernorm(x, axis=-1)
    s = _A_ref(xn, A_k, A_v, A_shift_k, A_ssm_k, A_ssm_D)
    g = _silu(_B_ref(xn, B_w_gate, B_w_up, B_w_down))
    return x + s * g
```

```python
import sys, struct

NAME = "recurrent_scan__ssm_conv_h3__glu_gated_geglu__prompt"
f2u = lambda x: struct.unpack("<I", struct.pack("<f", x))[0]

class Asm:
    def __init__(self):
        self.lines = []; self.nlabel = 0
        self.vm = []
    def e(self, s): self.lines.append("  " + s)
    def label(self, l): self.lines.append(l + ":")
    def newlabel(self, p="L"):
        self.nlabel += 1; return f"{p}_{self.nlabel}"
    def text(self): return "\n".join(self.lines) + "\n"
    def vmem(self, s, tag):
        self.e(s); self.vm.append(tag)
    def wait_vm(self, *tags):
        last = -1
        for i, t in enumerate(self.vm):
            if t in tags: last = i
        assert last >= 0, tags
        n = len(self.vm) - 1 - last
        assert n <= 63, n
        self.e(f"s_waitcnt vmcnt({n})")
        return n

def vr(a, n=1): return f"v{a}" if n == 1 else f"v[{a}:{a+n-1}]"
def sr(a, n=1): return f"s{a}" if n == 1 else f"s[{a}:{a+n-1}]"

S, D, F = 2048, 512, 1376
WROW = F * 2
WBYTES = 512 * WROW
WS_KVT, WS_YYT, WS_HF, WS_ST, WS_FL, WS_TS = 0, 2 << 20, 4 << 20, 12 << 20, 13 << 20, 16 << 20
FL_KV, FL_ST, FL_H, FL_Y = 0, 4096, 8192, 12288
STAGE = 40960
L_HANK = 122880
HCOPY = 4160
HCH = 4 * HCOPY
L_MISC = L_HANK + 2 * HCH
L_CS = L_MISC
L_STAT = L_MISC + 1024
L_FLAG = L_MISC + 2048
LDS_TOTAL = 163840
NR = 11
RING2 = NR * 2048
L_UB = 4 * RING2
UBSZ = 4608
L_YT = L_UB + 4 * UBSZ
YTROW = 144
L_PT = L_HANK

SRD_Q, SRD_K, SRD_V, SRD_W, SRD_WD, SRD_WS, SRD_DBG, SRD_OUT, SRD_SK, SRD_AUX = 4, 8, 12, 16, 20, 24, 28, 32, 36, 40
P = 48
S_WG = 2
S_WAVE, S_RB, S_CP, S_I2, S_J, S_F0, S_N32, S_A, S_B = 76, 77, 78, 79, 80, 81, 82, 83, 84
S_NONCE = 85
S_T0, S_T1, S_T2, S_T3, S_T4, S_T5 = 86, 87, 88, 89, 90, 91
S_G0, S_G1, S_G2, S_G3, S_G4, S_G5 = 92, 93, 94, 95, 96, 97
S_C0, S_C1 = 98, 99
S_EX = 100
S_TSP = 74

def gen(opts):
    A = Asm(); e = A.e
    TS = opts.get("ts", False)
    t0, t1, t2, t3, t4, t5 = 8, 9, 10, 11, 12, 13
    V_LANE = 3; L = vr(V_LANE)

    def stamp(idx, dyn=None):
        if not TS: return
        e(f"s_memrealtime {sr(S_TSP,2)}")
        e("s_waitcnt lgkmcnt(0)")
        e(f"v_mov_b32 v14, {sr(S_TSP)}")
        e(f"s_lshl_b32 {sr(S_TSP+1)}, {sr(S_WG)}, 3")
        e(f"s_add_u32 {sr(S_TSP+1)}, {sr(S_TSP+1)}, {sr(S_WAVE)}")
        e(f"s_lshl_b32 {sr(S_TSP+1)}, {sr(S_TSP+1)}, 5")
        if dyn is not None: e(f"s_add_u32 {sr(S_TSP+1)}, {sr(S_TSP+1)}, {sr(dyn)}")
        e(f"s_lshl_b32 {sr(S_TSP+1)}, {sr(S_TSP+1)}, 2")
        e(f"s_add_u32 {sr(S_TSP+1)}, {sr(S_TSP+1)}, {WS_TS + idx*4}")
        e(f"v_mov_b32 v15, {sr(S_TSP+1)}")
        e(f"s_mov_b64 {sr(S_EX,2)}, exec")
        e("s_mov_b64 exec, 1")
        A.vmem(f"buffer_store_dword v14, v15, {sr(SRD_WS,4)}, 0 offen", "ts")
        e(f"s_mov_b64 exec, {sr(S_EX,2)}")

    def srd(dst, pidx, nbytes):
        e(f"s_mov_b32 {sr(dst)}, {sr(P+2*pidx)}")
        e(f"s_mov_b32 {sr(dst+1)}, {sr(P+2*pidx+1)}")
        e(f"s_mov_b32 {sr(dst+2)}, {nbytes}")
        e(f"s_mov_b32 {sr(dst+3)}, 0x20000")

    def flag_issue(vdst, nwords_per_lane, nlanes, soff_sgpr, tag):
        e(f"v_lshlrev_b32 {vr(t5)}, {2 + (nwords_per_lane-1)}, {L}")
        if nlanes < 64:
            e(f"s_mov_b64 {sr(S_EX,2)}, exec")
            e(f"s_mov_b64 exec, {hex((1<<nlanes)-1)}")
        op = "buffer_load_dword" if nwords_per_lane == 1 else "buffer_load_dwordx2"
        A.vmem(f"{op} {vr(vdst,nwords_per_lane)}, {vr(t5)}, {sr(SRD_WS,4)}, {sr(soff_sgpr)} offen sc1", tag)
        if nlanes < 64:
            e(f"s_mov_b64 exec, {sr(S_EX,2)}")

    def flag_check_scc(vdst, nw, nlanes):
        e(f"v_cmp_eq_u32 vcc, {sr(S_NONCE)}, {vr(vdst)}")
        if nw == 2:
            e(f"v_cmp_eq_u32 {sr(S_T4,2)}, {sr(S_NONCE)}, {vr(vdst+1)}")
            e("s_nop 1")
            e(f"s_and_b64 vcc, vcc, {sr(S_T4,2)}")
        else:
            e("s_nop 1")
        mask = (1 << nlanes) - 1
        if nlanes < 64:
            e(f"s_and_b32 vcc_lo, vcc_lo, {hex(mask & 0xffffffff)}")
            e(f"s_cmp_eq_u32 vcc_lo, {hex(mask & 0xffffffff)}")
        else:
            e("s_cmp_eq_u64 vcc, -1")

    def flag_wait_blocking(vdst, nw, nlanes, soff_sgpr):
        l = A.newlabel("POLL"); d = A.newlabel("POLLD")
        e(f"s_mov_b32 {sr(S_T3)}, 0x20000")
        A.label(l)
        flag_issue(vdst, nw, nlanes, soff_sgpr, "poll")
        e("s_waitcnt vmcnt(0)")
        flag_check_scc(vdst, nw, nlanes)
        e(f"s_cbranch_scc1 {d}")
        e(f"s_sub_u32 {sr(S_T3)}, {sr(S_T3)}, 1")
        e(f"s_cmp_eq_u32 {sr(S_T3)}, 0")
        e(f"s_cbranch_scc1 {d}")
        e("s_sleep 8")
        e(f"s_branch {l}")
        A.label(d)

    def flag_set(soff_sgpr, vtmp):
        e(f"v_mov_b32 {vr(vtmp)}, {sr(S_NONCE)}")
        e(f"s_mov_b64 {sr(S_EX,2)}, exec")
        e("s_mov_b64 exec, 1")
        A.vmem(f"buffer_store_dword {vr(vtmp)}, off, {sr(SRD_WS,4)}, {sr(soff_sgpr)} sc0 sc1", "flag")
        e(f"s_mov_b64 exec, {sr(S_EX,2)}")

    def lds_spin(addr_const, vt, va):
        l = A.newlabel("LS"); d = A.newlabel("LSD")
        e(f"v_mov_b32 {vr(va)}, {addr_const}") if isinstance(addr_const, int) else e(f"v_mov_b32 {vr(va)}, {sr(addr_const[0])}")
        e(f"s_mov_b32 {sr(S_T3)}, 0x200000")
        A.label(l)
        e(f"ds_read_b32 {vr(vt)}, {vr(va)}")
        e("s_waitcnt lgkmcnt(0)")
        e(f"v_readfirstlane_b32 {sr(S_T2)}, {vr(vt)}")
        e("s_nop 3")
        e(f"s_cmp_eq_u32 {sr(S_T2)}, 1")
        e(f"s_cbranch_scc1 {d}")
        e(f"s_sub_u32 {sr(S_T3)}, {sr(S_T3)}, 1")
        e(f"s_cmp_eq_u32 {sr(S_T3)}, 0")
        e(f"s_cbranch_scc1 {d}")
        e("s_sleep 1")
        e(f"s_branch {l}")
        A.label(d)

    e(f"s_cmp_ge_u32 {sr(S_WG)}, 256")
    e("s_cbranch_scc1 L_END")
    e(f"s_load_dwordx16 {sr(P,16)}, s[0:1], 0")
    e(f"s_load_dwordx8 {sr(P+16,8)}, s[0:1], 64")
    e(f"s_load_dwordx2 {sr(P+24,2)}, s[0:1], 96")
    e(f"s_getpc_b64 {sr(S_T0,2)}")
    e("v_lshlrev_b32 v1, 6, v0")
    e(f"v_cmp_gt_u32 vcc, L_CODE_END-{NAME}_kernel, v1")
    e(f"s_and_saveexec_b64 {sr(S_EX,2)}, vcc")
    e(f"global_load_dword v2, v1, {sr(S_T0,2)}")
    e(f"s_mov_b64 exec, {sr(S_EX,2)}")
    e(f"v_and_b32 {L}, 63, v0")
    e("v_lshrrev_b32 v4, 6, v0")
    e(f"s_and_b32 {sr(S_T0)}, {sr(S_WG)}, 7")
    e(f"v_readfirstlane_b32 {sr(S_WAVE)}, v4")
    e(f"s_lshr_b32 {sr(S_T1)}, {sr(S_WG)}, 3")
    e(f"s_and_b32 {sr(S_T2)}, {sr(S_T0)}, 1")
    e(f"s_lshl_b32 {sr(S_T2)}, {sr(S_T2)}, 3")
    e(f"s_and_b32 {sr(S_T3)}, {sr(S_T1)}, 7")
    e(f"s_add_u32 {sr(S_RB)}, {sr(S_T2)}, {sr(S_T3)}")
    e(f"s_lshr_b32 {sr(S_T2)}, {sr(S_T0)}, 1")
    e(f"s_lshl_b32 {sr(S_T2)}, {sr(S_T2)}, 2")
    e(f"s_lshr_b32 {sr(S_T3)}, {sr(S_T1)}, 3")
    e(f"s_add_u32 {sr(S_CP)}, {sr(S_T2)}, {sr(S_T3)}")
    e(f"s_lshl_b32 {sr(S_T2)}, {sr(S_T0)}, 2")
    e(f"s_and_b32 {sr(S_T3)}, {sr(S_T1)}, 3")
    e(f"s_add_u32 {sr(S_I2)}, {sr(S_T2)}, {sr(S_T3)}")
    e(f"s_lshr_b32 {sr(S_J)}, {sr(S_T1)}, 2")
    e(f"s_mul_i32 {sr(S_T2)}, {sr(S_CP)}, 96")
    e(f"s_lshl_b32 {sr(S_T3)}, {sr(S_CP)}, 6")
    e(f"s_add_u32 {sr(S_T3)}, {sr(S_T3)}, 352")
    e(f"s_cmp_lt_u32 {sr(S_CP)}, 11")
    e(f"s_cselect_b32 {sr(S_F0)}, {sr(S_T2)}, {sr(S_T3)}")
    e(f"s_cselect_b32 {sr(S_N32)}, 3, 2")
    e(f"s_cmp_ge_u32 {sr(S_WAVE)}, 4")
    e("s_cbranch_scc1 L_HELPER")

    A.vm = ["code"]
    e(f"s_and_b32 {sr(S_A)}, {sr(S_WAVE)}, 1")
    e(f"s_lshr_b32 {sr(S_B)}, {sr(S_WAVE)}, 1")
    FS = [16, 36]
    V_XR, V_WR, V_XRC, V_WRC = 56, 60, 66, 70
    V_CS = 76
    ACC = 160
    e(f"v_and_b32 {vr(t0)}, 31, {L}")
    e(f"v_lshrrev_b32 {vr(t1)}, 5, {L}")
    e(f"v_bfe_u32 {vr(t2)}, {vr(t0)}, 1, 3")
    e(f"v_xor_b32 {vr(t2)}, {vr(t2)}, {vr(t1)}")
    e(f"s_lshl_b32 {sr(S_T0)}, {sr(S_A)}, 1")
    e(f"v_xor_b32 {vr(t2)}, {sr(S_T0)}, {vr(t2)}")
    e(f"s_lshl_b32 {sr(S_T0)}, {sr(S_A)}, 6")
    e(f"v_add_u32 {vr(t0)}, {sr(S_T0)}, {vr(t0)}")
    e(f"v_lshlrev_b32 {vr(t0)}, 7, {vr(t0)}")
    for ks in range(4):
        e(f"v_xor_b32 {vr(t3)}, {2*ks}, {vr(t2)}")
        e(f"v_lshl_add_u32 {vr(V_XR+ks)}, {vr(t3)}, 4, {vr(t0)}")
    e(f"v_bfe_u32 {vr(t0)}, {L}, 4, 1")
    e(f"v_lshrrev_b32 {vr(t1)}, 5, {L}")
    e(f"v_bfe_u32 {vr(t2)}, {L}, 2, 2")
    e(f"v_bfe_u32 {vr(t3)}, {L}, 1, 1")
    e(f"v_and_b32 {vr(t4)}, 1, {L}")
    e(f"s_lshl_b32 {sr(S_T0)}, {sr(S_B)}, 1")
    e(f"v_add_u32 {vr(t3)}, {sr(S_T0)}, {vr(t3)}")
    e(f"v_lshlrev_b32 {vr(t5)}, 1, {vr(t0)}")
    e(f"v_xor_b32 {vr(t3)}, {vr(t3)}, {vr(t5)}")
    e(f"v_lshlrev_b32 {vr(t3)}, 4, {vr(t3)}")
    e(f"v_lshl_add_u32 {vr(t3)}, {vr(t4)}, 3, {vr(t3)}")
    e(f"v_lshl_add_u32 {vr(t3)}, {vr(t2)}, 6, {vr(t3)}")
    e(f"v_mul_u32_u24 {vr(t1)}, 1536, {vr(t1)}")
    e(f"v_mul_u32_u24 {vr(t0)}, 12288, {vr(t0)}")
    e(f"v_add3_u32 {vr(t3)}, {vr(t3)}, {vr(t1)}, {vr(t0)}")
    e(f"v_add_u32 {vr(t3)}, 16384, {vr(t3)}")
    e(f"s_mul_i32 {sr(S_T1)}, {sr(S_A)}, 3072")
    for i in range(3):
        e(f"s_cmp_eq_u32 {sr(S_A)}, 0")
        e(f"s_cselect_b32 {sr(S_T0)}, {i*256}, {(2-i)*256}")
        e(f"s_add_u32 {sr(S_T2)}, {sr(S_T0)}, {sr(S_T1)}")
        e(f"v_add_u32 {vr(V_WR+i)}, {sr(S_T2)}, {vr(t3)}")
        e(f"s_sub_u32 {sr(S_T2)}, {sr(S_T0)}, {sr(S_T1)}")
        e(f"v_add_u32 {vr(V_WR+3+i)}, {sr(S_T2)}, {vr(t3)}")
    for r in range(96): e(f"v_mov_b32 {vr(ACC+r)}, 0")
    for r in range(4): e(f"v_mov_b32 {vr(V_CS+r)}, 0")
    e("s_waitcnt lgkmcnt(0)")
    srd(SRD_Q, 0, 2 << 20); srd(SRD_WD, 9, WBYTES); srd(SRD_OUT, 10, 2 << 20); srd(SRD_WS, 12, 0x10000000)
    stamp(0)
    S_IT, S_SLOT = S_G0, S_G1
    def set_addrs():
        for ks in range(4): e(f"v_add_u32 {vr(V_XRC+ks)}, {sr(S_SLOT)}, {vr(V_XR+ks)}")
        for i in range(6): e(f"v_add_u32 {vr(V_WRC+i)}, {sr(S_SLOT)}, {vr(V_WR+i)}")
    def reads(ks, st):
        b = FS[st]; out = []
        out.append(f"ds_read_b128 {vr(b,4)}, {vr(V_XRC+ks)}")
        wa = V_WRC + (3 if ks & 1 else 0)
        for h in range(2): out.append(f"ds_read_b64_tr_b16 {vr(b+8+2*h,2)}, {vr(wa)} offset:{ks*3072+h*768}")
        out.append(f"ds_read_b128 {vr(b+4,4)}, {vr(V_XRC+ks)} offset:4096")
        for i in range(1, 3):
            for h in range(2): out.append(f"ds_read_b64_tr_b16 {vr(b+8+4*i+2*h,2)}, {vr(wa+i)} offset:{ks*3072+h*768}")
        return out
    CT = [80, 81, 82, 83]
    def colsum(src, acc):
        out = []
        for d in range(4):
            ta, tb = CT[(2*d) & 3], CT[(2*d+1) & 3]
            out.append(f"v_lshlrev_b32 {vr(ta)}, 16, {vr(src+d)}")
            out.append(f"v_and_b32 {vr(tb)}, 0xffff0000, {vr(src+d)}")
            out.append(f"v_add_f32 {vr(acc)}, {vr(acc)}, {vr(ta)}")
            out.append(f"v_add_f32 {vr(acc+1)}, {vr(acc+1)}, {vr(tb)}")
        return out
    def kstep(ks, st, nxt_reads, pre=None):
        b = FS[st]
        mf = []
        if opts.get("nocompute"): return
        for i in range(3):
            for tt in range(2):
                a = ACC + 16*(2*i+tt)
                mf.append(f"v_mfma_f32_32x32x16_bf16 {vr(a,16)}, {vr(b+8+4*i,4)}, {vr(b+4*tt,4)}, {vr(a,16)}")
        fill = list(nxt_reads)
        if not opts.get("nocs"):
            cs = colsum(b+8, V_CS)
            if ks % 2 == 0: cs = cs + colsum(b+12, V_CS+2)
            fill = fill + cs
        if opts.get("noreads"): fill = [x for x in fill if not x.startswith("ds_read")]
        n = len(fill); per = (n + 5) // 6
        k = 0
        for m in mf:
            e(m)
            for x in fill[k:k+per]: e(x)
            k += per
    e("s_barrier")
    stamp(1)
    e(f"s_mov_b32 {sr(S_SLOT)}, 0")
    set_addrs()
    for x in reads(0, 0): e(x)
    e(f"s_mov_b32 {sr(S_IT)}, 0")
    A.label("L_G1")
    e("s_waitcnt lgkmcnt(0)")
    kstep(0, 0, reads(1, 1))
    e("s_waitcnt lgkmcnt(0)")
    kstep(1, 1, reads(2, 0))
    e("s_waitcnt lgkmcnt(0)")
    kstep(2, 0, reads(3, 1))
    e("s_waitcnt lgkmcnt(0)")
    lnb = A.newlabel("NB"); lc = A.newlabel("NBC")
    e(f"s_cmp_eq_u32 {sr(S_IT)}, 7")
    e(f"s_cbranch_scc1 {lnb}")
    e("s_barrier")
    e(f"s_add_u32 {sr(S_SLOT)}, {sr(S_SLOT)}, {STAGE}")
    e(f"s_cmp_ge_u32 {sr(S_SLOT)}, {3*STAGE}")
    e(f"s_cselect_b32 {sr(S_SLOT)}, 0, {sr(S_SLOT)}")
    set_addrs()
    kstep(3, 1, reads(0, 0))
    if opts.get("itstamp"): stamp(16, S_IT)
    e(f"s_add_u32 {sr(S_IT)}, {sr(S_IT)}, 1")
    e("s_branch L_G1")
    A.label(lnb)
    kstep(3, 1, [])
    stamp(2)
    e("s_nop 1")
    e(f"v_add_f32 {vr(V_CS)}, {vr(V_CS)}, {vr(V_CS+1)}")
    e(f"v_add_f32 {vr(V_CS+2)}, {vr(V_CS+2)}, {vr(V_CS+3)}")
    e(f"v_mov_b32 {vr(t0)}, {vr(V_CS)}")
    e(f"v_mov_b32 {vr(t1)}, {vr(V_CS+2)}")
    e("s_nop 1")
    e(f"v_permlane32_swap_b32 {vr(t0)}, {vr(V_CS)}")
    e(f"v_permlane32_swap_b32 {vr(t1)}, {vr(V_CS+2)}")
    e("s_nop 1")
    e(f"v_add_f32 {vr(V_CS)}, {vr(V_CS)}, {vr(t0)}")
    e(f"v_add_f32 {vr(V_CS+2)}, {vr(V_CS+2)}, {vr(t1)}")
    e(f"s_lshl_b32 {sr(S_T0)}, {sr(S_B)}, 9")
    e(f"s_add_u32 {sr(S_T0)}, {sr(S_T0)}, {L_CS}")
    e(f"v_and_b32 {vr(t0)}, 31, {L}")
    e(f"v_lshlrev_b32 {vr(t0)}, 2, {vr(t0)}")
    e(f"v_add_u32 {vr(t0)}, {sr(S_T0)}, {vr(t0)}")
    e(f"s_lshl_b32 {sr(S_T1)}, {sr(S_A)}, 8")
    e(f"v_add_u32 {vr(t1)}, {sr(S_T1)}, {vr(t0)}")
    e(f"ds_write_b32 {vr(t1)}, {vr(V_CS)}")
    e(f"ds_write_b32 {vr(t1)}, {vr(V_CS+2)} offset:128")
    e("s_waitcnt lgkmcnt(0)")
    e("s_barrier")
    stamp(3)
    e(f"v_mov_b32 {vr(t0)}, {L_FLAG+32}")
    e(f"ds_read_b32 {vr(t1)}, {vr(t0)}")
    ST = 84
    e(f"v_and_b32 {vr(t2)}, 31, {L}")
    e(f"v_lshlrev_b32 {vr(t2)}, 3, {vr(t2)}")
    e(f"s_lshl_b32 {sr(S_T0)}, {sr(S_A)}, 9")
    e(f"s_add_u32 {sr(S_T0)}, {sr(S_T0)}, {L_STAT}")
    e(f"v_add_u32 {vr(t2)}, {sr(S_T0)}, {vr(t2)}")
    e(f"ds_read_b64 {vr(ST,2)}, {vr(t2)}")
    e(f"ds_read_b64 {vr(ST+2,2)}, {vr(t2)} offset:256")
    e("s_waitcnt lgkmcnt(0)")
    e(f"v_readfirstlane_b32 {sr(S_NONCE)}, {vr(t1)}")
    C1 = -2.0 * 0.7978845608028654 * 0.044715 * 1.4426950408889634
    C0 = -2.0 * 0.7978845608028654 * 1.4426950408889634
    NMp, K1p, K0p, IRp = [144, 146], [148, 150], [152, 154], [156, 158]
    e(f"s_mov_b32 {sr(S_T4)}, {f2u(C1):#x}")
    e(f"s_mov_b32 {sr(S_T5)}, {f2u(C0):#x}")
    for tt in range(2):
        m, r = ST + 2*tt, ST + 2*tt + 1
        e(f"v_sub_f32 {vr(NMp[tt])}, 0, {vr(m)}")
        e(f"v_mul_f32 {vr(K0p[tt])}, {sr(S_T5)}, {vr(r)}")
        e(f"v_mul_f32 {vr(t3)}, {vr(r)}, {vr(r)}")
        e(f"v_mul_f32 {vr(t4)}, {vr(t3)}, {vr(r)}")
        e(f"v_mul_f32 {vr(K1p[tt])}, {sr(S_T4)}, {vr(t4)}")
        e(f"v_rcp_f32 {vr(IRp[tt])}, {vr(t3)}")
        e("s_nop 1")
        for rr in (NMp, K0p, K1p, IRp):
            e(f"v_mov_b32 {vr(rr[tt]+1)}, {vr(rr[tt])}")
    CG = 96
    TT = 128
    HP = 136
    e(f"v_lshrrev_b32 {vr(t5)}, 5, {L}")
    e(f"v_lshlrev_b32 {vr(t5)}, 4, {vr(t5)}")
    e(f"s_lshl_b32 {sr(S_T0)}, {sr(S_B)}, 9")
    e(f"s_add_u32 {sr(S_T0)}, {sr(S_T0)}, {L_CS}")
    e(f"v_add_u32 {vr(t5)}, {sr(S_T0)}, {vr(t5)}")
    e(f"v_lshlrev_b32 {vr(t4)}, 4, {L}")
    def sel(tt, n):
        return tt
    for i in range(3):
        lsk = A.newlabel("EP")
        if i == 1:
            e(f"s_mov_b32 {sr(S_T0)}, 1")
        else:
            e(f"s_cmp_eq_u32 {sr(S_A)}, 0")
            e(f"s_cselect_b32 {sr(S_T0)}, {i}, {2-i}")
        e(f"s_cmp_ge_u32 {sr(S_T0)}, {sr(S_N32)}")
        e(f"s_cbranch_scc1 {lsk}")
        e(f"s_lshl_b32 {sr(S_T1)}, {sr(S_T0)}, 7")
        e(f"v_add_u32 {vr(t0)}, {sr(S_T1)}, {vr(t5)}")
        for rp in range(4): e(f"ds_read_b128 {vr(CG+4*rp,4)}, {vr(t0)} offset:{32*rp}")
        if i == 1:
            for rp in range(4): e(f"ds_read_b128 {vr(CG+16+4*rp,4)}, {vr(t0)} offset:{256+32*rp}")
        e(f"s_lshl_b32 {sr(S_T1)}, {sr(S_RB)}, 2")
        e(f"s_lshl_b32 {sr(S_T2)}, {sr(S_A)}, 1")
        e(f"s_add_u32 {sr(S_T1)}, {sr(S_T1)}, {sr(S_T2)}")
        e(f"s_mul_i32 {sr(S_T1)}, {sr(S_T1)}, 86")
        e(f"s_lshr_b32 {sr(S_T2)}, {sr(S_F0)}, 4")
        e(f"s_add_u32 {sr(S_T1)}, {sr(S_T1)}, {sr(S_T2)}")
        e(f"s_add_u32 {sr(S_T1)}, {sr(S_T1)}, {sr(S_B)}")
        e(f"s_lshl_b32 {sr(S_T0)}, {sr(S_T0)}, 1")
        e(f"s_add_u32 {sr(S_T1)}, {sr(S_T1)}, {sr(S_T0)}")
        e(f"s_lshl_b32 {sr(S_T1)}, {sr(S_T1)}, 10")
        e(f"s_add_u32 {sr(S_T1)}, {sr(S_T1)}, {WS_HF}")
        e(f"s_add_u32 {sr(S_T2)}, {sr(S_T1)}, {86*1024}")
        e("s_waitcnt lgkmcnt(0)")
        if i == 1:
            for k in range(0, 16, 2):
                e(f"v_pk_add_f32 {vr(CG+k,2)}, {vr(CG+k,2)}, {vr(CG+16+k,2)}")
        for tt in range(2):
            a = ACC + 16*(2*i+tt)
            NM, K1, K0, IR = NMp[tt], K1p[tt], K0p[tt], IRp[tt]
            s1 = ""
            for half in range(2):
                gp = [a+4*half, a+4*half+2]; up = [a+8+4*half, a+8+4*half+2]
                cgp = [CG+4*half, CG+4*half+2]; cup = [CG+8+4*half, CG+8+4*half+2]
                T = [TT, TT+2]
                for k in range(2): e(f"v_pk_fma_f32 {vr(gp[k],2)}, {vr(NM,2)}, {vr(cgp[k],2)}, {vr(gp[k],2)} {s1}")
                for k in range(2): e(f"v_pk_fma_f32 {vr(up[k],2)}, {vr(NM,2)}, {vr(cup[k],2)}, {vr(up[k],2)} {s1}")
                for k in range(2): e(f"v_pk_mul_f32 {vr(T[k],2)}, {vr(gp[k],2)}, {vr(gp[k],2)}")
                for k in range(2): e(f"v_pk_fma_f32 {vr(T[k],2)}, {vr(T[k],2)}, {vr(K1,2)}, {vr(K0,2)}")
                for k in range(2): e(f"v_pk_mul_f32 {vr(T[k],2)}, {vr(T[k],2)}, {vr(gp[k],2)}")
                if opts.get("hz1"): e("s_nop 3")
                for k in range(4): e(f"v_exp_f32 {vr(TT+k)}, {vr(TT+k)}")
                if opts.get("hz2"): e("s_nop 3")
                for k in range(2): e(f"v_pk_mul_f32 {vr(gp[k],2)}, {vr(gp[k],2)}, {vr(up[k],2)}")
                for k in range(2): e(f"v_pk_fma_f32 {vr(T[k],2)}, {vr(T[k],2)}, {vr(IR,2)}, {vr(IR,2)}")
                if opts.get("hz3"): e("s_nop 3")
                for k in range(4): e(f"v_rcp_f32 {vr(TT+k)}, {vr(TT+k)}")
                e("s_nop 0")
                if opts.get("hz4"): e("s_nop 3")
                for k in range(2): e(f"v_pk_mul_f32 {vr(gp[k],2)}, {vr(gp[k],2)}, {vr(T[k],2)}")
                hp = HP + 4*(tt & 1)
                e(f"v_cvt_pk_bf16_f32 {vr(hp+2*half)}, {vr(gp[0])}, {vr(gp[0]+1)}")
                e(f"v_cvt_pk_bf16_f32 {vr(hp+2*half+1)}, {vr(gp[1])}, {vr(gp[1]+1)}")
            A.vmem(f"buffer_store_dwordx4 {vr(HP+4*tt,4)}, {vr(t4)}, {sr(SRD_WS,4)}, {sr(S_T1 if tt == 0 else S_T2)} offen sc0 sc1", "hst")
        A.label(lsk)
    stamp(4)
    e("s_waitcnt vmcnt(0)")
    e(f"s_lshl_b32 {sr(S_T0)}, {sr(S_RB)}, 8")
    e(f"s_lshl_b32 {sr(S_T1)}, {sr(S_CP)}, 4")
    e(f"s_lshl_b32 {sr(S_T2)}, {sr(S_WAVE)}, 2")
    e(f"s_add_u32 {sr(S_T0)}, {sr(S_T0)}, {sr(S_T1)}")
    e(f"s_add_u32 {sr(S_T0)}, {sr(S_T0)}, {sr(S_T2)}")
    e(f"s_add_u32 {sr(S_T0)}, {sr(S_T0)}, {WS_FL+FL_H}")
    flag_set(S_T0, t0)
    stamp(5)
    if opts.get("stop") == "g1":
        e("s_barrier"); e("s_endpgm")

    GACC = 160; PH = 8; GH = 16; GA = [80, 88]; V_AR = 96; V_HL = 98; V_ARC = 99; V_DO = 101
    S_KU0, S_KUN, S_RB2, S_DSO, S_H0, S_H1 = S_G0, S_G1, S_G2, S_G3, S_G4, S_G5
    S_N, S_RS, S_OOB = S_A, S_B, S_C0
    e(f"s_mul_i32 {sr(S_KU0)}, {sr(S_WAVE)}, 22")
    e(f"s_cmp_eq_u32 {sr(S_WAVE)}, 3")
    e(f"s_cselect_b32 {sr(S_T1)}, 1, 0")
    e(f"s_sub_u32 {sr(S_KU0)}, {sr(S_KU0)}, {sr(S_T1)}")
    e(f"s_cmp_lt_u32 {sr(S_WAVE)}, 2")
    e(f"s_cselect_b32 {sr(S_KUN)}, 22, 21")
    e(f"s_mul_i32 {sr(S_RB2)}, {sr(S_WAVE)}, {RING2}")
    def wd_voffset(dst):
        e(f"v_lshrrev_b32 {vr(t0)}, 3, {L}")
        e(f"v_and_b32 {vr(t1)}, 7, {L}")
        e(f"v_bfe_u32 {vr(t2)}, {L}, 4, 1")
        e(f"v_lshlrev_b32 {vr(t2)}, 2, {vr(t2)}")
        e(f"v_xor_b32 {vr(t1)}, {vr(t1)}, {vr(t2)}")
        e(f"v_lshlrev_b32 {vr(t1)}, 4, {vr(t1)}")
        e(f"v_lshl_add_u32 {vr(t1)}, {vr(t0)}, 10, {vr(t1)}")
        e(f"s_lshl_b32 {sr(S_T1)}, {sr(S_J)}, 7")
        e(f"v_add_u32 {vr(dst)}, {sr(S_T1)}, {vr(t1)}")
    wd_voffset(V_DO)
    e(f"s_add_u32 {sr(S_DSO)}, {sr(S_KU0)}, {NR}")
    e(f"s_lshl_b32 {sr(S_DSO)}, {sr(S_DSO)}, 14")
    for r in range(64): e(f"v_mov_b32 {vr(GACC+r)}, 0")
    e(f"v_lshrrev_b32 {vr(t0)}, 5, {L}")
    e(f"v_bfe_u32 {vr(t1)}, {L}, 2, 2")
    e(f"v_lshl_add_u32 {vr(t0)}, {vr(t0)}, 2, {vr(t1)}")
    e(f"v_lshlrev_b32 {vr(t0)}, 7, {vr(t0)}")
    e(f"v_bfe_u32 {vr(t2)}, {L}, 4, 1")
    e(f"v_bfe_u32 {vr(t3)}, {L}, 1, 1")
    e(f"v_lshl_add_u32 {vr(t2)}, {vr(t2)}, 1, {vr(t3)}")
    e(f"v_lshlrev_b32 {vr(t2)}, 4, {vr(t2)}")
    e(f"v_and_b32 {vr(t3)}, 1, {L}")
    e(f"v_lshl_add_u32 {vr(t2)}, {vr(t3)}, 3, {vr(t2)}")
    e(f"v_add_u32 {vr(t0)}, {vr(t0)}, {vr(t2)}")
    e(f"v_add_u32 {vr(t0)}, {sr(S_RB2)}, {vr(t0)}")
    e(f"v_bfe_u32 {vr(t1)}, {L}, 3, 1")
    e(f"v_lshlrev_b32 {vr(t1)}, 6, {vr(t1)}")
    e(f"v_add_u32 {vr(V_AR)}, {vr(t0)}, {vr(t1)}")
    e(f"v_xor_b32 {vr(t1)}, 64, {vr(t1)}")
    e(f"v_add_u32 {vr(V_AR+1)}, {vr(t0)}, {vr(t1)}")
    e(f"v_lshlrev_b32 {vr(V_HL)}, 4, {L}")
    e(f"s_mov_b32 {sr(S_OOB)}, 0x20000000")
    e(f"s_lshr_b32 {sr(S_T0)}, {sr(S_I2)}, 1")
    e(f"s_lshl_b32 {sr(S_T0)}, {sr(S_T0)}, 8")
    e(f"s_add_u32 {sr(S_T0)}, {sr(S_T0)}, {WS_FL+FL_H}")
    flag_wait_blocking(t1, 1, 64, S_T0)
    stamp(6)
    e(f"s_lshl_b32 {sr(S_T0)}, {sr(S_I2)}, 1")
    e(f"s_mul_i32 {sr(S_T0)}, {sr(S_T0)}, 86")
    e(f"s_add_u32 {sr(S_T0)}, {sr(S_T0)}, {sr(S_KU0)}")
    e(f"s_lshl_b32 {sr(S_T0)}, {sr(S_T0)}, 10")
    e(f"s_add_u32 {sr(S_H0)}, {sr(S_T0)}, {WS_HF}")
    e(f"s_add_u32 {sr(S_H1)}, {sr(S_H0)}, {86*1024}")
    for n in range(PH):
        e(f"buffer_load_dwordx4 {vr(GH+8*n,4)}, {vr(V_HL)}, {sr(SRD_WS,4)}, {sr(S_H0)} offen sc1")
        e(f"buffer_load_dwordx4 {vr(GH+8*n+4,4)}, {vr(V_HL)}, {sr(SRD_WS,4)}, {sr(S_H1)} offen sc1")
        e(f"s_add_u32 {sr(S_H0)}, {sr(S_H0)}, 1024")
        e(f"s_add_u32 {sr(S_H1)}, {sr(S_H1)}, 1024")
        e(f"buffer_load_dword {vr(t5)}, off, {sr(SRD_WS,4)}, {sr(S_OOB)}")
        e(f"buffer_load_dword {vr(t5)}, off, {sr(SRD_WS,4)}, {sr(S_OOB)}")
    e(f"s_lshl_b32 {sr(S_T0)}, {sr(S_WAVE)}, 2")
    e(f"s_add_u32 {sr(S_T0)}, {sr(S_T0)}, {L_FLAG+16}")
    lds_spin((S_T0,), t0, t1)
    stamp(7)
    e(f"s_mov_b32 {sr(S_N)}, 0")
    e(f"s_mov_b32 {sr(S_RS)}, 0")
    A.label("L_G2LOOP")
    for n in range(PH):
        e(f"s_cmp_ge_u32 {sr(S_N)}, {sr(S_KUN)}")
        e("s_cbranch_scc1 L_G2DONE")
        st = n & 1
        e(f"v_add_u32 {vr(V_ARC)}, {sr(S_RS)}, {vr(V_AR)}")
        e(f"v_add_u32 {vr(V_ARC+1)}, {sr(S_RS)}, {vr(V_AR+1)}")
        e("s_waitcnt vmcnt(30)")
        for dt in range(2):
            for h in range(2):
                e(f"ds_read_b64_tr_b16 {vr(GA[st]+4*dt+2*h,2)}, {vr(V_ARC+dt)} offset:{1024*h}")
        e("s_waitcnt lgkmcnt(2)")
        hb = GH + 8*n
        e(f"v_mfma_f32_32x32x16_bf16 {vr(GACC,16)}, {vr(GA[st],4)}, {vr(hb,4)}, {vr(GACC,16)}")
        e(f"v_mfma_f32_32x32x16_bf16 {vr(GACC+16,16)}, {vr(GA[st],4)}, {vr(hb+4,4)}, {vr(GACC+16,16)}")
        e("s_waitcnt lgkmcnt(0)")
        e(f"v_mfma_f32_32x32x16_bf16 {vr(GACC+32,16)}, {vr(GA[st]+4,4)}, {vr(hb,4)}, {vr(GACC+32,16)}")
        e(f"v_mfma_f32_32x32x16_bf16 {vr(GACC+48,16)}, {vr(GA[st]+4,4)}, {vr(hb+4,4)}, {vr(GACC+48,16)}")
        e(f"s_add_u32 {sr(S_T0)}, {sr(S_N)}, {PH}")
        e(f"s_cmp_lt_u32 {sr(S_T0)}, {sr(S_KUN)}")
        e(f"s_cselect_b32 {sr(S_T1)}, {sr(S_H0)}, {sr(S_OOB)}")
        e(f"s_cselect_b32 {sr(S_T2)}, {sr(S_H1)}, {sr(S_OOB)}")
        e(f"buffer_load_dwordx4 {vr(hb,4)}, {vr(V_HL)}, {sr(SRD_WS,4)}, {sr(S_T1)} offen sc1")
        e(f"buffer_load_dwordx4 {vr(hb+4,4)}, {vr(V_HL)}, {sr(SRD_WS,4)}, {sr(S_T2)} offen sc1")
        e(f"s_add_u32 {sr(S_H0)}, {sr(S_H0)}, 1024")
        e(f"s_add_u32 {sr(S_H1)}, {sr(S_H1)}, 1024")
        e(f"s_add_u32 {sr(S_T0)}, {sr(S_N)}, {NR}")
        e(f"s_cmp_lt_u32 {sr(S_T0)}, {sr(S_KUN)}")
        e(f"s_cselect_b32 {sr(S_T1)}, {sr(S_DSO)}, {sr(S_OOB)}")
        e(f"s_add_u32 m0, {sr(S_RB2)}, {sr(S_RS)}")
        e("s_nop 0")
        e(f"buffer_load_dwordx4 {vr(V_DO)}, {sr(SRD_WD,4)}, {sr(S_T1)} offen lds")
        e(f"s_add_u32 {sr(S_T1)}, {sr(S_T1)}, 8192")
        e(f"s_add_u32 m0, m0, 1024")
        e("s_nop 0")
        e(f"buffer_load_dwordx4 {vr(V_DO)}, {sr(SRD_WD,4)}, {sr(S_T1)} offen lds")
        e(f"s_add_u32 {sr(S_DSO)}, {sr(S_DSO)}, 16384")
        e(f"s_add_u32 {sr(S_RS)}, {sr(S_RS)}, 2048")
        e(f"s_cmp_ge_u32 {sr(S_RS)}, {RING2}")
        e(f"s_cselect_b32 {sr(S_RS)}, 0, {sr(S_RS)}")
        e(f"s_add_u32 {sr(S_N)}, {sr(S_N)}, 1")
    e("s_branch L_G2LOOP")
    A.label("L_G2DONE")
    stamp(8)
    e("s_waitcnt vmcnt(0)")
    e("s_nop 7")
    e(f"v_and_b32 {vr(t0)}, 31, {L}")
    e(f"v_lshrrev_b32 {vr(t1)}, 5, {L}")
    e(f"v_mul_u32_u24 {vr(t0)}, 272, {vr(t0)}")
    e(f"v_lshl_add_u32 {vr(t0)}, {vr(t1)}, 4, {vr(t0)}")
    e(f"v_add_u32 {vr(t0)}, {sr(S_RB2)}, {vr(t0)}")
    for dt in range(2):
        for tt in range(2):
            for rp in range(4):
                a = GACC + 16*(2*dt+tt) + 4*rp
                e(f"ds_write_b128 {vr(t0)}, {vr(a,4)} offset:{tt*32*272 + dt*128 + rp*32}")
    e("s_branch L_FINAL")

    A.label("L_HELPER")
    A.vm = ["code"]
    S_LW = S_A
    e(f"s_sub_u32 {sr(S_LW)}, {sr(S_WAVE)}, 4")
    V_XO, V_WO = 16, 18
    SX = 24
    PI = [32, 52]
    PS = 72
    HK = [88, 100]
    HPB = 112
    V_FL = 114
    V_SL = 116
    V_NL = 118
    S_XSO, S_WSO, S_SLOT, S_M0X, S_M0W = S_G0, S_G1, S_G2, S_G3, S_G4
    e(f"v_lshrrev_b32 {vr(t0)}, 3, {L}")
    e(f"v_lshrrev_b32 {vr(t1)}, 4, {L}")
    e(f"v_and_b32 {vr(t2)}, 7, {L}")
    e(f"s_lshl_b32 {sr(S_T2)}, {sr(S_RB)}, 7")
    e(f"s_lshl_b32 {sr(S_T3)}, {sr(S_LW)}, 5")
    e(f"s_add_u32 {sr(S_T2)}, {sr(S_T2)}, {sr(S_T3)}")
    for a in range(2):
        e(f"v_add_u32 {vr(t3)}, {4*a}, {vr(t1)}")
        e(f"v_xor_b32 {vr(t3)}, {vr(t3)}, {vr(t2)}")
        e(f"v_lshlrev_b32 {vr(t3)}, 4, {vr(t3)}")
        e(f"v_add_u32 {vr(t4)}, {sr(S_T2)}, {vr(t0)}")
        e(f"v_add_u32 {vr(t4)}, {8*a}, {vr(t4)}")
        e(f"v_lshl_add_u32 {vr(V_XO+a)}, {vr(t4)}, 10, {vr(t3)}")
    S_MAT = S_B
    e(f"s_and_b32 {sr(S_MAT)}, {sr(S_LW)}, 1")
    e(f"s_lshl_b32 {sr(S_T3)}, {sr(S_MAT)}, 1")
    e(f"s_lshr_b32 {sr(S_T4)}, {sr(S_LW)}, 1")
    e(f"s_lshl_b32 {sr(S_T4)}, {sr(S_T4)}, 5")
    e(f"s_lshl_b32 {sr(S_T5)}, {sr(S_F0)}, 1")
    e(f"s_movk_i32 {sr(S_T0)}, {WROW}")
    for i in range(3):
        e(f"v_add_u32 {vr(t0)}, {64*i}, {L}")
        e(f"v_lshrrev_b32 {vr(t1)}, 4, {vr(t0)}")
        e(f"v_mul_u32_u24 {vr(t1)}, 43, {vr(t1)}")
        e(f"v_lshrrev_b32 {vr(t1)}, 7, {vr(t1)}")
        e(f"v_mul_u32_u24 {vr(t2)}, 48, {vr(t1)}")
        e(f"v_sub_u32 {vr(t2)}, {vr(t0)}, {vr(t2)}")
        e(f"v_lshrrev_b32 {vr(t3)}, 4, {vr(t2)}")
        e(f"v_bfe_u32 {vr(t4)}, {vr(t2)}, 2, 2")
        e(f"v_and_b32 {vr(t2)}, 3, {vr(t2)}")
        e(f"v_xor_b32 {vr(t2)}, {sr(S_T3)}, {vr(t2)}")
        e(f"v_lshl_add_u32 {vr(t2)}, {vr(t3)}, 2, {vr(t2)}")
        e(f"v_lshl_add_u32 {vr(t1)}, {vr(t1)}, 2, {vr(t4)}")
        e(f"v_add_u32 {vr(t1)}, {sr(S_T4)}, {vr(t1)}")
        e(f"v_mul_u32_u24 {vr(t1)}, {sr(S_T0)}, {vr(t1)}")
        e(f"v_lshl_add_u32 {vr(t2)}, {vr(t2)}, 4, {vr(t1)}")
        e(f"v_add_u32 {vr(V_WO+i)}, {sr(S_T5)}, {vr(t2)}")
    e(f"s_lshl_b32 {sr(S_M0X)}, {sr(S_LW)}, 12")
    e(f"s_mul_i32 {sr(S_M0W)}, {sr(S_MAT)}, 12288")
    e(f"s_lshr_b32 {sr(S_T4)}, {sr(S_LW)}, 1")
    e(f"s_mul_i32 {sr(S_T4)}, {sr(S_T4)}, 6144")
    e(f"s_add_u32 {sr(S_M0W)}, {sr(S_M0W)}, {sr(S_T4)}")
    e(f"s_add_u32 {sr(S_M0W)}, {sr(S_M0W)}, 16384")
    e(f"v_lshlrev_b32 {vr(20+1)}, 4, {L}")
    V_L16 = 21
    e("s_waitcnt lgkmcnt(0)")
    srd(SRD_Q, 0, 2 << 20)
    e(f"s_cmp_eq_u32 {sr(S_MAT)}, 0")
    e(f"s_cselect_b32 {sr(SRD_W)}, {sr(P+14)}, {sr(P+16)}")
    e(f"s_cselect_b32 {sr(SRD_W+1)}, {sr(P+15)}, {sr(P+17)}")
    e(f"s_mov_b32 {sr(SRD_W+2)}, {WBYTES}")
    e(f"s_mov_b32 {sr(SRD_W+3)}, 0x20000")
    srd(SRD_WS, 12, 0x10000000)
    stamp(0)
    def dma_stage(s):
        if opts.get("nodma") and s >= 3:
            A.vmem(f"buffer_load_dword {vr(15)}, off, {sr(SRD_WS,4)}, 0", f"S{s}")
            return
        slot = (s % 3) * STAGE
        e(f"s_mov_b32 {sr(S_XSO)}, {s*128}")
        e(f"s_add_u32 m0, {sr(S_M0X)}, {slot}")
        for a in range(4):
            if a == 2: e(f"s_mov_b32 {sr(S_XSO)}, {s*128+16384}")
            else: e("s_nop 0")
            A.vmem(f"buffer_load_dwordx4 {vr(V_XO+(a&1))}, {sr(SRD_Q,4)}, {sr(S_XSO)} offen lds", f"S{s}")
            if a < 3: e("s_add_u32 m0, m0, 1024")
        e(f"s_mov_b32 {sr(S_WSO)}, {s*64*WROW}")
        e(f"s_add_u32 m0, {sr(S_M0W)}, {slot}")
        for blk in range(2):
            for i in range(3):
                if blk == 1 and i == 0: e(f"s_mov_b32 {sr(S_WSO)}, {s*64*WROW+16*WROW}")
                else: e("s_nop 0")
                A.vmem(f"buffer_load_dwordx4 {vr(V_WO+i)}, {sr(SRD_W,4)}, {sr(S_WSO)} offen lds", f"S{s}")
                if not (blk == 1 and i == 2): e("s_add_u32 m0, m0, 1024")
    S_ROW = S_G5
    e(f"s_lshl_b32 {sr(S_ROW)}, {sr(S_I2)}, 6")
    e(f"s_lshl_b32 {sr(S_T0)}, {sr(S_J)}, 3")
    e(f"s_add_u32 {sr(S_ROW)}, {sr(S_ROW)}, {sr(S_T0)}")
    e(f"s_lshl_b32 {sr(S_T0)}, {sr(S_LW)}, 1")
    e(f"s_add_u32 {sr(S_ROW)}, {sr(S_ROW)}, {sr(S_T0)}")
    e(f"s_lshl_b32 {sr(S_T0)}, {sr(S_ROW)}, 10")
    A.vmem(f"buffer_load_dwordx4 {vr(SX,4)}, {vr(V_L16)}, {sr(SRD_Q,4)}, {sr(S_T0)} offen", "SX")
    A.vmem(f"buffer_load_dwordx4 {vr(SX+4,4)}, {vr(V_L16)}, {sr(SRD_Q,4)}, {sr(S_T0)} offen offset:1024", "SX")
    dma_stage(0)
    srd(SRD_DBG, 11, 256)
    lnn = A.newlabel("NN")
    e(f"s_cmp_lg_u32 {sr(S_WG)}, 0")
    e(f"s_cbranch_scc1 {lnn}")
    e(f"s_cmp_lg_u32 {sr(S_WAVE)}, 4")
    e(f"s_cbranch_scc1 {lnn}")
    e(f"s_memrealtime {sr(S_T0,2)}")
    e("s_waitcnt lgkmcnt(0)")
    e(f"s_or_b32 {sr(S_T0)}, {sr(S_T0)}, 1")
    e(f"v_mov_b32 {vr(t0)}, {sr(S_T0)}")
    e(f"buffer_store_dword {vr(t0)}, off, {sr(SRD_DBG,4)}, 0 sc0 sc1")
    A.label(lnn)
    dma_stage(1)
    dma_stage(2)
    A.vmem(f"buffer_load_dword {vr(V_NL)}, off, {sr(SRD_DBG,4)}, 0 sc1", "NL")
    srd(SRD_K, 1, 2 << 20); srd(SRD_V, 2, 2 << 20); srd(SRD_AUX, 3, 4096)
    e(f"v_lshrrev_b32 {vr(t0)}, 3, {L}")
    e(f"s_lshl_b32 {sr(S_T0)}, {sr(S_I2)}, 6")
    e(f"s_lshl_b32 {sr(S_T1)}, {sr(S_LW)}, 4")
    e(f"s_add_u32 {sr(S_T0)}, {sr(S_T0)}, {sr(S_T1)}")
    e(f"v_add_u32 {vr(t0)}, {sr(S_T0)}, {vr(t0)}")
    e(f"v_and_b32 {vr(t1)}, 7, {L}")
    e(f"v_lshlrev_b32 {vr(t1)}, 4, {vr(t1)}")
    e(f"s_lshl_b32 {sr(S_T1)}, {sr(S_J)}, 7")
    e(f"v_add_u32 {vr(t2)}, {sr(S_T1)}, {vr(t1)}")
    e(f"v_lshl_add_u32 {vr(t3)}, {vr(t0)}, 10, {vr(t2)}")
    for x in range(2):
        e(f"s_movk_i32 {sr(S_T2)}, {8192*x}")
        A.vmem(f"buffer_load_dwordx4 {vr(PI[x],4)}, {vr(t3)}, {sr(SRD_V,4)}, {sr(S_T2)} offen", "P")
        A.vmem(f"buffer_load_dwordx4 {vr(PI[x]+4,4)}, {vr(t3)}, {sr(SRD_K,4)}, {sr(S_T2)} offen", "P")
    for d in range(1, 4):
        e(f"v_subrev_u32 {vr(t4)}, {1024*d}, {vr(t3)}")
        e(f"v_cmp_gt_u32 vcc, {d}, {vr(t0)}")
        e(f"v_mov_b32 {vr(t5)}, 0x7fffff00")
        e(f"v_add_u32 {vr(14 if not TS else 22)}, 8192, {vr(t4)}")
        e(f"v_cndmask_b32 {vr(t4)}, {vr(t4)}, {vr(t5)}, vcc")
        A.vmem(f"buffer_load_dwordx4 {vr(PI[0]+4+4*d,4)}, {vr(t4)}, {sr(SRD_K,4)}, 0 offen", "P")
        A.vmem(f"buffer_load_dwordx4 {vr(PI[1]+4+4*d,4)}, {vr(14 if not TS else 22)}, {sr(SRD_K,4)}, 0 offen", "P")
    e(f"v_lshlrev_b32 {vr(t4)}, 2, {vr(t2)}")
    for i in range(4):
        A.vmem(f"buffer_load_dwordx4 {vr(PS+4*i,4)}, {vr(t4)}, {sr(SRD_AUX,4)}, 0 offen offset:{16*i}", "P")
    S_CIDX = S_C1
    e(f"s_lshr_b32 {sr(S_CIDX)}, {sr(S_LW)}, 1")
    e(f"s_lshl_b32 {sr(S_T0)}, {sr(S_WG)}, 1")
    e(f"s_add_u32 {sr(S_T0)}, {sr(S_T0)}, {sr(S_CIDX)}")
    e(f"s_lshl_b32 {sr(S_T0)}, {sr(S_T0)}, 12")
    e(f"s_add_u32 {sr(SRD_SK)}, {sr(P+8)}, {sr(S_T0)}")
    e(f"s_addc_u32 {sr(SRD_SK+1)}, {sr(P+9)}, 0")
    e(f"s_mov_b32 {sr(SRD_SK+2)}, 4096")
    e(f"s_mov_b32 {sr(SRD_SK+3)}, 0x20000")
    e(f"s_and_b32 {sr(S_T1)}, {sr(S_LW)}, 1")
    e(f"s_lshl_b32 {sr(S_T1)}, {sr(S_T1)}, 11")
    for y in range(2):
        e(f"v_add_u32 {vr(t4)}, {sr(S_T1)}, {vr(V_L16)}")
        if y: e(f"v_add_u32 {vr(t4)}, 1024, {vr(t4)}")
        for q in range(3):
            A.vmem(f"buffer_load_dwordx4 {vr(HK[y]+4*q,4)}, {vr(t4)}, {sr(SRD_SK,4)}, 0 offen offset:{4*q}", "HK")
    e(f"v_cmp_eq_u32 vcc, 1, {L}")
    e(f"v_mov_b32 {vr(t5)}, 0x10000")
    e("s_nop 0")
    e(f"v_cndmask_b32 {vr(t5)}, {vr(t5)}, 0, vcc")
    A.vmem(f"buffer_load_dwordx2 {vr(HPB,2)}, {vr(t5)}, {sr(SRD_SK,4)}, 0 offen", "HK")
    srd(SRD_WD, 9, WBYTES)
    e(f"s_mul_i32 {sr(S_T0)}, {sr(S_WG)}, {43*128}")
    e(f"s_mul_i32 {sr(S_T1)}, {sr(S_LW)}, 11")
    e(f"v_add_u32 {vr(t4)}, {sr(S_T1)}, {L}")
    e(f"v_cmp_gt_u32 vcc, 11, {L}")
    e(f"v_lshlrev_b32 {vr(t4)}, 7, {vr(t4)}")
    e(f"v_add_u32 {vr(t4)}, {sr(S_T0)}, {vr(t4)}")
    e(f"v_mov_b32 {vr(t5)}, 0x7fffff00")
    e(f"v_cndmask_b32 {vr(t4)}, {vr(t5)}, {vr(t4)}, vcc")
    A.vmem(f"buffer_load_dword {vr(22 if not TS else 23)}, {vr(t4)}, {sr(SRD_WD,4)}, 0 offen", "T")
    e(f"v_lshlrev_b32 {vr(t0)}, 2, {L}")
    e(f"v_add_u32 {vr(t0)}, {L_FLAG}, {vr(t0)}")
    e(f"v_mov_b32 {vr(t1)}, 0")
    e(f"s_mov_b64 {sr(S_EX,2)}, exec")
    e("s_mov_b64 exec, 0xff")
    e(f"ds_write_b32 {vr(t0)}, {vr(t1)}")
    e(f"s_mov_b64 exec, {sr(S_EX,2)}")
    A.wait_vm("SX")
    XU = 120
    for rr in range(2):
        for k in range(4):
            e(f"v_lshlrev_b32 {vr(XU+8*rr+2*k)}, 16, {vr(SX+4*rr+k)}")
            e(f"v_and_b32 {vr(XU+8*rr+2*k+1)}, 0xffff0000, {vr(SX+4*rr+k)}")
    SA = 136
    def wave_reduce(regs):
        for sh in ("row_shr:1", "row_shr:2", "row_shr:4", "row_shr:8"):
            for r in regs: e(f"v_add_f32_dpp {vr(r)}, {vr(r)}, {vr(r)} {sh} row_mask:0xf bank_mask:0xf bound_ctrl:0" )
            e("s_nop 1")
        for r in regs: e(f"v_add_f32_dpp {vr(r)}, {vr(r)}, {vr(r)} row_bcast:15 row_mask:0xa bank_mask:0xf")
        e("s_nop 1")
        for r in regs: e(f"v_add_f32_dpp {vr(r)}, {vr(r)}, {vr(r)} row_bcast:31 row_mask:0xc bank_mask:0xf")
        e("s_nop 1")
    for rr in range(2):
        b = XU + 8*rr
        e(f"v_add_f32 {vr(SA+rr)}, {vr(b)}, {vr(b+1)}")
        for k in range(2, 8): e(f"v_add_f32 {vr(SA+rr)}, {vr(SA+rr)}, {vr(b+k)}")
    e("s_nop 1")
    wave_reduce([SA, SA+1])
    e(f"v_readlane_b32 {sr(S_T0)}, {vr(SA)}, 63")
    e(f"v_readlane_b32 {sr(S_T1)}, {vr(SA+1)}, 63")
    e("s_nop 1")
    e(f"v_mov_b32 {vr(SA+2)}, 0x3b000000")
    e(f"v_mul_f32 {vr(SA+4)}, {sr(S_T0)}, {vr(SA+2)}")
    e(f"v_mul_f32 {vr(SA+5)}, {sr(S_T1)}, {vr(SA+2)}")
    for rr in range(2):
        b = XU + 8*rr
        for k in range(8): e(f"v_sub_f32 {vr(b+k)}, {vr(b+k)}, {vr(SA+4+rr)}")
        e(f"v_mul_f32 {vr(SA+rr)}, {vr(b)}, {vr(b)}")
        for k in range(1, 8): e(f"v_fma_f32 {vr(SA+rr)}, {vr(b+k)}, {vr(b+k)}, {vr(SA+rr)}")
    e("s_nop 1")
    wave_reduce([SA, SA+1])
    e(f"v_readlane_b32 {sr(S_T0)}, {vr(SA)}, 63")
    e(f"v_readlane_b32 {sr(S_T1)}, {vr(SA+1)}, 63")
    e("s_nop 1")
    e(f"v_cmp_eq_u32 vcc, 1, {L}")
    e(f"v_mov_b32 {vr(SA)}, {sr(S_T0)}")
    e(f"v_mov_b32 {vr(SA+1)}, {sr(S_T1)}")
    e(f"v_cndmask_b32 {vr(SA)}, {vr(SA)}, {vr(SA+1)}, vcc")
    e(f"v_cndmask_b32 {vr(SA+4)}, {vr(SA+4)}, {vr(SA+5)}, vcc")
    e(f"v_mul_f32 {vr(SA)}, {vr(SA)}, {vr(SA+2)}")
    def rbf(r):
        e(f"v_cvt_pk_bf16_f32 {vr(r)}, {vr(r)}, {vr(r)}")
        e(f"v_lshlrev_b32 {vr(r)}, 16, {vr(r)}")
    rbf(SA+4); rbf(SA)
    e(f"v_add_f32 {vr(SA)}, 0x3727c5ac, {vr(SA)}")
    rbf(SA)
    e(f"v_sqrt_f32 {vr(SA)}, {vr(SA)}")
    e("s_nop 0")
    rbf(SA)
    e(f"v_rcp_f32 {vr(SA+5)}, {vr(SA)}")
    e(f"s_lshl_b32 {sr(S_T0)}, {sr(S_ROW)}, 3")
    e(f"s_add_u32 {sr(S_T0)}, {sr(S_T0)}, {WS_ST}")
    e(f"v_lshlrev_b32 {vr(t0)}, 3, {L}")
    e(f"s_mov_b64 {sr(S_EX,2)}, exec")
    e("s_mov_b64 exec, 3")
    A.vmem(f"buffer_store_dwordx2 {vr(SA+4,2)}, {vr(t0)}, {sr(SRD_WS,4)}, {sr(S_T0)} offen sc0 sc1", "STS")
    e(f"s_mov_b64 exec, {sr(S_EX,2)}")
    A.wait_vm("S0")
    e("s_waitcnt lgkmcnt(0)")
    e("s_barrier")
    stamp(1)

    def it_end(it):
        A.wait_vm(f"S{it+1}")
        e("s_waitcnt lgkmcnt(0)")
        e("s_barrier")
        if it + 3 <= 7: dma_stage(it + 3)
        if opts.get("itstamp"): stamp(16 + it)
    it_end(0)
    A.wait_vm("NL", "STS")
    lok = A.newlabel("NOK"); lre = A.newlabel("NRE")
    e(f"s_mov_b32 {sr(S_T3)}, 0x20000")
    A.label(lre)
    e(f"v_readfirstlane_b32 {sr(S_NONCE)}, {vr(V_NL)}")
    e("s_nop 3")
    e(f"s_cmp_lg_u32 {sr(S_NONCE)}, 0")
    e(f"s_cbranch_scc1 {lok}")
    e(f"s_sub_u32 {sr(S_T3)}, {sr(S_T3)}, 1")
    e(f"s_cmp_eq_u32 {sr(S_T3)}, 0")
    e(f"s_cbranch_scc1 {lok}")
    e("s_sleep 4")
    e(f"buffer_load_dword {vr(V_NL)}, off, {sr(SRD_DBG,4)}, 0 sc1")
    e("s_waitcnt vmcnt(0)")
    e(f"s_branch {lre}")
    A.label(lok)
    e(f"v_mov_b32 {vr(t0)}, {L_FLAG+32}")
    e(f"v_mov_b32 {vr(t1)}, {sr(S_NONCE)}")
    e(f"ds_write_b32 {vr(t0)}, {vr(t1)}")
    e(f"s_lshr_b32 {sr(S_T0)}, {sr(S_I2)}, 1")
    e(f"s_lshl_b32 {sr(S_T0)}, {sr(S_T0)}, 8")
    e(f"s_and_b32 {sr(S_T1)}, {sr(S_I2)}, 1")
    e(f"s_lshl_b32 {sr(S_T1)}, {sr(S_T1)}, 3")
    e(f"s_add_u32 {sr(S_T1)}, {sr(S_T1)}, {sr(S_J)}")
    e(f"s_lshl_b32 {sr(S_T1)}, {sr(S_T1)}, 2")
    e(f"s_add_u32 {sr(S_T1)}, {sr(S_T1)}, {sr(S_LW)}")
    e(f"s_lshl_b32 {sr(S_T1)}, {sr(S_T1)}, 2")
    e(f"s_add_u32 {sr(S_T0)}, {sr(S_T0)}, {sr(S_T1)}")
    e(f"s_add_u32 {sr(S_T0)}, {sr(S_T0)}, {WS_FL+FL_ST}")
    flag_set(S_T0, t0)
    it_end(1)
    A.wait_vm("P")
    KV = 120; T = 128
    for x in range(2):
        pv, pk = PI[x], PI[x] + 4
        for c in range(8):
            dw = c >> 1; hi = c & 1
            def unp(dst, src):
                if hi: e(f"v_and_b32 {vr(dst)}, 0xffff0000, {vr(src)}")
                else:  e(f"v_lshlrev_b32 {vr(dst)}, 16, {vr(src)}")
            sw = PS + 4*(c >> 1) + 2*(c & 1)
            e(f"v_lshlrev_b32 {vr(T+4)}, 16, {vr(sw)}")
            e(f"v_and_b32 {vr(T+5)}, 0xffff0000, {vr(sw)}")
            e(f"v_lshlrev_b32 {vr(T+6)}, 16, {vr(sw+1)}")
            e(f"v_and_b32 {vr(T+7)}, 0xffff0000, {vr(sw+1)}")
            for d in range(4): unp(T+d, pk + 4*d + dw)
            unp(T+8, pv + dw)
            e(f"v_mul_f32 {vr(KV+c)}, {vr(T+3)}, {vr(T+7)}")
            e(f"v_fma_f32 {vr(KV+c)}, {vr(T+2)}, {vr(T+6)}, {vr(KV+c)}")
            e(f"v_fma_f32 {vr(KV+c)}, {vr(T+1)}, {vr(T+5)}, {vr(KV+c)}")
            e(f"v_fma_f32 {vr(KV+c)}, {vr(T+0)}, {vr(T+4)}, {vr(KV+c)}")
            e(f"v_mul_f32 {vr(KV+c)}, {vr(KV+c)}, {vr(T+8)}")
        for k in range(4): e(f"v_cvt_pk_bf16_f32 {vr(T+12+k)}, {vr(KV+2*k)}, {vr(KV+2*k+1)}")
        e(f"v_lshrrev_b32 {vr(t0)}, 3, {L}")
        e(f"s_lshl_b32 {sr(S_T0)}, {sr(S_LW)}, 4")
        e(f"s_add_u32 {sr(S_T0)}, {sr(S_T0)}, {8*x}")
        e(f"v_add_u32 {vr(t0)}, {sr(S_T0)}, {vr(t0)}")
        e(f"v_mul_u32_u24 {vr(t0)}, 144, {vr(t0)}")
        e(f"v_and_b32 {vr(t1)}, 7, {L}")
        e(f"v_lshl_add_u32 {vr(t0)}, {vr(t1)}, 4, {vr(t0)}")
        e(f"v_add_u32 {vr(t0)}, {L_PT}, {vr(t0)}")
        e(f"ds_write_b128 {vr(t0)}, {vr(T+12,4)}")
    it_end(2)
    e(f"s_lshl_b32 {sr(S_T0)}, {sr(S_RB)}, 8")
    e(f"s_add_u32 {sr(S_T0)}, {sr(S_T0)}, {WS_FL+FL_ST}")
    flag_issue(V_FL, 1, 64, S_T0, "PST")
    for x in range(2):
        e(f"v_and_b32 {vr(t0)}, 3, {L}")
        e(f"v_bfe_u32 {vr(t1)}, {L}, 4, 1")
        e(f"v_lshl_add_u32 {vr(t0)}, {vr(t1)}, 2, {vr(t0)}")
        e(f"v_lshlrev_b32 {vr(t0)}, 3, {vr(t0)}")
        e(f"v_bfe_u32 {vr(t1)}, {L}, 2, 2")
        e(f"v_sub_u32 {vr(t0)}, {vr(t0)}, {vr(t1)}")
        e(f"v_add_u32 {vr(t0)}, 3, {vr(t0)}")
        e(f"v_mul_u32_u24 {vr(t0)}, 144, {vr(t0)}")
        e(f"v_lshrrev_b32 {vr(t1)}, 5, {L}")
        e(f"v_lshlrev_b32 {vr(t1)}, 3, {vr(t1)}")
        e(f"s_lshl_b32 {sr(S_T0)}, {sr(S_LW)}, 5")
        e(f"s_add_u32 {sr(S_T0)}, {sr(S_T0)}, {L_PT + 16*x}")
        e(f"v_add3_u32 {vr(t0)}, {vr(t0)}, {vr(t1)}, {sr(S_T0)}")
        e(f"ds_read_b64_tr_b16 {vr(T+4*x,2)}, {vr(t0)} offset:{4*144}")
        e(f"ds_read_b64_tr_b16 {vr(T+4*x+2,2)}, {vr(t0)}")
    e(f"v_and_b32 {vr(t1)}, 3, {L}")
    e(f"v_lshrrev_b32 {vr(t2)}, 5, {L}")
    e(f"v_lshl_add_u32 {vr(t1)}, {vr(t2)}, 2, {vr(t1)}")
    e(f"v_lshlrev_b32 {vr(t1)}, 12, {vr(t1)}")
    e(f"v_bfe_u32 {vr(t2)}, {L}, 2, 3")
    e(f"v_lshlrev_b32 {vr(t2)}, 4, {vr(t2)}")
    e(f"v_sub_u32 {vr(t1)}, {vr(t1)}, {vr(t2)}")
    e(f"v_add_u32 {vr(t1)}, 4080, {vr(t1)}")
    e(f"s_lshl_b32 {sr(S_T0)}, {sr(S_J)}, 6")
    e(f"s_lshl_b32 {sr(S_T1)}, {sr(S_LW)}, 4")
    e(f"s_add_u32 {sr(S_T0)}, {sr(S_T0)}, {sr(S_T1)}")
    e(f"s_lshl_b32 {sr(S_T0)}, {sr(S_T0)}, 12")
    e(f"s_lshl_b32 {sr(S_T1)}, {sr(S_I2)}, 7")
    e(f"s_sub_u32 {sr(S_T0)}, {sr(S_T0)}, {sr(S_T1)}")
    e(f"v_add_u32 {vr(t1)}, {sr(S_T0)}, {vr(t1)}")
    e(f"v_add_u32 {vr(t2)}, {8*4096}, {vr(t1)}")
    e("s_waitcnt lgkmcnt(0)")
    A.vmem(f"buffer_store_dwordx4 {vr(T,4)}, {vr(t1)}, {sr(SRD_WS,4)}, 0 offen sc0 sc1", "KVS")
    A.vmem(f"buffer_store_dwordx4 {vr(T+4,4)}, {vr(t2)}, {sr(SRD_WS,4)}, 0 offen sc0 sc1", "KVS")
    it_end(3)
    e(f"s_mul_i32 {sr(S_T0)}, {sr(S_CIDX)}, {HCH}")
    e(f"s_add_u32 {sr(S_T0)}, {sr(S_T0)}, {L_HANK}")
    e(f"s_and_b32 {sr(S_T1)}, {sr(S_LW)}, 1")
    e(f"s_lshl_b32 {sr(S_T1)}, {sr(S_T1)}, 11")
    e(f"s_add_u32 {sr(S_T1)}, {sr(S_T1)}, {sr(S_T0)}")
    e(f"v_add_u32 {vr(t1)}, {sr(S_T0)}, {vr(V_L16)}")
    e(f"v_add_u32 {vr(t0)}, {sr(S_T1)}, {vr(V_L16)}")
    def hk(la, lb, lc, addr, extra):
        O1, O3 = 124, 128
        for j in range(4):
            e(f"v_alignbit_b32 {vr(O1+j)}, {vr(lb+j)}, {vr(la+j)}, 16")
            e(f"v_alignbit_b32 {vr(O3+j)}, {vr(lc+j)}, {vr(lb+j)}, 16")
        e(f"ds_write_b128 {vr(addr)}, {vr(la,4)} offset:{extra}")
        e(f"ds_write_b128 {vr(addr)}, {vr(O1,4)} offset:{extra+HCOPY}")
        e(f"ds_write_b128 {vr(addr)}, {vr(lb,4)} offset:{extra+2*HCOPY}")
        e(f"ds_write_b128 {vr(addr)}, {vr(O3,4)} offset:{extra+3*HCOPY}")
        e("s_nop 1")
    for y in range(2): hk(HK[y], HK[y]+4, HK[y]+8, t0, 32 + 1024*y)
    lpb = A.newlabel("PB")
    e(f"s_and_b32 {sr(S_T1)}, {sr(S_LW)}, 1")
    e(f"s_cmp_lg_u32 {sr(S_T1)}, 0")
    e(f"s_cbranch_scc1 {lpb}")
    e(f"s_mov_b64 {sr(S_EX,2)}, exec")
    e("s_mov_b64 exec, 3")
    ha, hb_, hc = HK[0], HK[0]+4, HK[0]+8
    for r in range(4): e(f"v_mov_b32 {vr(ha+r)}, 0")
    for r in range(3): e(f"v_mov_b32 {vr(hb_+r)}, 0")
    e(f"v_mov_b32 {vr(hb_+3)}, {vr(HPB)}")
    e(f"v_mov_b32 {vr(hc)}, 0"); e(f"v_mov_b32 {vr(hc+1)}, 0")
    e(f"v_mov_b32 {vr(hc+2)}, {vr(HPB)}"); e(f"v_mov_b32 {vr(hc+3)}, {vr(HPB+1)}")
    hk(ha, hb_, hc, t1, 0)
    e(f"s_mov_b64 exec, {sr(S_EX,2)}")
    A.label(lpb)
    A.wait_vm("PST")
    lsok = A.newlabel("SOK")
    flag_check_scc(V_FL, 1, 64)
    e(f"s_cbranch_scc1 {lsok}")
    e(f"s_lshl_b32 {sr(S_T0)}, {sr(S_RB)}, 8")
    e(f"s_add_u32 {sr(S_T0)}, {sr(S_T0)}, {WS_FL+FL_ST}")
    n_before = len(A.vm)
    flag_wait_blocking(V_FL, 1, 64, S_T0)
    del A.vm[n_before:]
    A.label(lsok)
    e(f"s_lshl_b32 {sr(S_T0)}, {sr(S_RB)}, 7")
    e(f"s_lshl_b32 {sr(S_T1)}, {sr(S_LW)}, 5")
    e(f"s_add_u32 {sr(S_T0)}, {sr(S_T0)}, {sr(S_T1)}")
    e(f"s_lshl_b32 {sr(S_T0)}, {sr(S_T0)}, 3")
    e(f"s_add_u32 {sr(S_T0)}, {sr(S_T0)}, {WS_ST}")
    e(f"v_and_b32 {vr(t0)}, 31, {L}")
    e(f"v_lshlrev_b32 {vr(t0)}, 3, {vr(t0)}")
    A.vmem(f"buffer_load_dwordx2 {vr(V_SL,2)}, {vr(t0)}, {sr(SRD_WS,4)}, {sr(S_T0)} offen sc1", "SL")
    it_end(4)
    A.wait_vm("KVS")
    e(f"s_lshl_b32 {sr(S_T0)}, {sr(S_J)}, 9")
    e(f"s_lshl_b32 {sr(S_T1)}, {sr(S_I2)}, 4")
    e(f"s_lshl_b32 {sr(S_T2)}, {sr(S_LW)}, 2")
    e(f"s_add_u32 {sr(S_T0)}, {sr(S_T0)}, {sr(S_T1)}")
    e(f"s_add_u32 {sr(S_T0)}, {sr(S_T0)}, {sr(S_T2)}")
    e(f"s_add_u32 {sr(S_T0)}, {sr(S_T0)}, {WS_FL+FL_KV}")
    flag_set(S_T0, t0)
    it_end(5)
    A.wait_vm("SL")
    e(f"v_and_b32 {vr(t0)}, 31, {L}")
    e(f"v_lshlrev_b32 {vr(t0)}, 3, {vr(t0)}")
    e(f"s_lshl_b32 {sr(S_T0)}, {sr(S_LW)}, 8")
    e(f"s_add_u32 {sr(S_T0)}, {sr(S_T0)}, {L_STAT}")
    e(f"v_add_u32 {vr(t0)}, {sr(S_T0)}, {vr(t0)}")
    e(f"ds_write_b64 {vr(t0)}, {vr(V_SL,2)}")
    it_end(6)
    S_C, S_RH, S_UB = S_G0, S_G1, S_G2
    e(f"s_lshl_b32 {sr(S_C)}, {sr(S_WG)}, 1")
    e(f"s_add_u32 {sr(S_C)}, {sr(S_C)}, {sr(S_CIDX)}")
    e(f"s_and_b32 {sr(S_RH)}, {sr(S_LW)}, 1")
    e(f"s_mul_i32 {sr(S_UB)}, {sr(S_LW)}, {UBSZ}")
    e(f"s_add_u32 {sr(S_UB)}, {sr(S_UB)}, {L_UB}")
    S_KVO = S_G3
    e(f"s_lshr_b32 {sr(S_KVO)}, {sr(S_C)}, 6")
    e(f"s_lshl_b32 {sr(S_KVO)}, {sr(S_KVO)}, 9")
    e(f"s_add_u32 {sr(S_KVO)}, {sr(S_KVO)}, {WS_FL+FL_KV}")
    flag_issue(V_FL, 2, 64, S_KVO, "PKV")
    srd(SRD_AUX, 5, 1024)
    e(f"s_lshl_b32 {sr(S_T0)}, {sr(S_C)}, 1")
    V_DD = 32; V_CA = 33; V_CB = 34
    A.vmem(f"buffer_load_ushort {vr(V_DD)}, off, {sr(SRD_AUX,4)}, {sr(S_T0)}", "DD")
    e(f"v_and_b32 {vr(t0)}, 15, {L}")
    e(f"v_lshrrev_b32 {vr(t1)}, 4, {L}")
    e(f"v_lshl_add_u32 {vr(t2)}, {vr(t1)}, 3, {vr(t0)}")
    e(f"v_add_u32 {vr(t2)}, 1, {vr(t2)}")
    e(f"v_and_b32 {vr(t3)}, 3, {vr(t2)}")
    e(f"v_sub_u32 {vr(t2)}, {vr(t2)}, {vr(t3)}")
    e(f"v_lshlrev_b32 {vr(t2)}, 1, {vr(t2)}")
    e(f"v_mul_u32_u24 {vr(t3)}, {HCOPY}, {vr(t3)}")
    e(f"v_add_u32 {vr(t2)}, {vr(t2)}, {vr(t3)}")
    e(f"s_mul_i32 {sr(S_T0)}, {sr(S_CIDX)}, {HCH}")
    e(f"s_lshl_b32 {sr(S_T1)}, {sr(S_RH)}, 8")
    e(f"s_add_u32 {sr(S_T0)}, {sr(S_T0)}, {sr(S_T1)}")
    e(f"s_add_u32 {sr(S_T0)}, {sr(S_T0)}, {L_HANK}")
    e(f"v_add_u32 {vr(V_CA)}, {sr(S_T0)}, {vr(t2)}")
    e(f"v_lshlrev_b32 {vr(t2)}, 1, {vr(t0)}")
    e(f"v_sub_u32 {vr(t2)}, {vr(t1)}, {vr(t2)}")
    e(f"v_add_u32 {vr(t2)}, 254, {vr(t2)}")
    e(f"v_lshlrev_b32 {vr(t2)}, 4, {vr(t2)}")
    e(f"s_add_u32 {sr(S_T0)}, {sr(S_UB)}, {sr(S_T1)}")
    e(f"s_sub_u32 {sr(S_T0)}, {sr(S_T0)}, 3584")
    e(f"v_add_u32 {vr(V_CB)}, {sr(S_T0)}, {vr(t2)}")
    CACC = 192; CSET = [64, 128]
    for r in range(32): e(f"v_mov_b32 {vr(CACC+r)}, 0")
    wd_voffset(35)
    V_DO2 = 35
    e("s_barrier")
    stamp(3)
    A.wait_vm("PKV", "DD")
    lkok = A.newlabel("KOK")
    flag_check_scc(V_FL, 2, 64)
    e(f"s_cbranch_scc1 {lkok}")
    n_before = len(A.vm)
    flag_wait_blocking(V_FL, 2, 64, S_KVO)
    del A.vm[n_before:]
    A.label(lkok)
    stamp(4)
    e(f"s_lshl_b32 {sr(S_T0)}, {sr(S_C)}, 12")
    for q in range(4):
        e(f"v_add_u32 {vr(t2)}, {1024*q}, {vr(V_L16)}")
        A.vmem(f"buffer_load_dwordx4 {vr(36+4*q,4)}, {vr(t2)}, {sr(SRD_WS,4)}, {sr(S_T0)} offen sc1", f"U{q}")
    for r in range(4): e(f"v_mov_b32 {vr(52+r)}, 0")
    e(f"v_and_b32 {vr(t0)}, 31, {L}")
    e(f"v_lshlrev_b32 {vr(t0)}, 4, {vr(t0)}")
    e(f"v_add_u32 {vr(t0)}, {sr(S_UB)}, {vr(t0)}")
    e(f"ds_write_b128 {vr(t0)}, {vr(52,4)} offset:4096")
    e(f"v_lshlrev_b32 {vr(V_DD)}, 16, {vr(V_DD)}")
    S_DSO2, S_M02 = S_G4, S_G5
    e(f"s_mul_i32 {sr(S_DSO2)}, {sr(S_LW)}, 22")
    e(f"s_cmp_eq_u32 {sr(S_LW)}, 3")
    e(f"s_cselect_b32 {sr(S_T1)}, 1, 0")
    e(f"s_sub_u32 {sr(S_DSO2)}, {sr(S_DSO2)}, {sr(S_T1)}")
    e(f"s_lshl_b32 {sr(S_DSO2)}, {sr(S_DSO2)}, 14")
    e(f"s_mul_i32 {sr(S_M02)}, {sr(S_LW)}, {RING2}")
    def wd_dma():
        return [f"s_mov_b32 m0, {sr(S_M02)}", f"s_add_u32 {sr(S_M02)}, {sr(S_M02)}, 1024",
                f"buffer_load_dwordx4 {vr(V_DO2)}, {sr(SRD_WD,4)}, {sr(S_DSO2)} offen lds",
                f"s_add_u32 {sr(S_DSO2)}, {sr(S_DSO2)}, 8192"]
    e(f"v_add_u32 {vr(t1)}, {sr(S_UB)}, {vr(V_L16)}")
    for q in range(4):
        A.wait_vm(f"U{q}")
        e(f"ds_write_b128 {vr(t1)}, {vr(36+4*q,4)} offset:{1024*q}")
    e("s_waitcnt lgkmcnt(0)")
    def creads(r, st):
        out = []; b = CSET[st]
        for sp in range(8):
            out.append(f"ds_read_b64 {vr(b+4*sp,2)}, {vr(V_CA)} offset:{512*sp+64*r}")
            out.append(f"ds_read_b64 {vr(b+4*sp+2,2)}, {vr(V_CA)} offset:{512*sp+64*r+8}")
            out.append(f"ds_read_b128 {vr(b+32+4*sp,4)}, {vr(V_CB)} offset:{512*(7-sp)+64*r}")
        return out
    def cmfmas(st):
        out = []; b = CSET[st]
        for t in range(8):
            for sp in range(t + 1):
                out.append(f"v_mfma_f32_16x16x32_bf16 {vr(CACC+4*t,4)}, {vr(b+4*sp,4)}, {vr(b+32+4*(t-sp),4)}, {vr(CACC+4*t,4)}")
        return out
    for x in creads(0, 0): e(x)
    ndma = 0
    for r in range(4):
        e("s_waitcnt lgkmcnt(0)")
        mf = cmfmas(r & 1)
        rd = creads(r + 1, (r + 1) & 1) if r < 3 else []
        for idx, m in enumerate(mf):
            e(m)
            if idx < len(rd): e(rd[idx])
            if idx % 6 == 5 and ndma < 2*NR:
                for x in wd_dma(): e(x)
                A.vm.append("WDP"); ndma += 1
    assert ndma == 2*NR, ndma
    stamp(5)
    V_UU = 64
    e("s_nop 7")
    e(f"v_and_b32 {vr(t0)}, 15, {L}")
    e(f"v_lshrrev_b32 {vr(t1)}, 4, {L}")
    e(f"v_lshlrev_b32 {vr(t2)}, 2, {vr(t0)}")
    e(f"v_add_u32 {vr(t2)}, {vr(t2)}, {vr(t1)}")
    e(f"v_lshlrev_b32 {vr(t2)}, 3, {vr(t2)}")
    e(f"s_lshl_b32 {sr(S_T1)}, {sr(S_RH)}, 11")
    e(f"s_sub_u32 {sr(S_T0)}, {sr(S_UB)}, {sr(S_T1)}")
    e(f"s_add_u32 {sr(S_T0)}, {sr(S_T0)}, {4088 - 1536}")
    e(f"v_sub_u32 {vr(t3)}, {sr(S_T0)}, {vr(t2)}")
    for tt in range(4): e(f"ds_read_b64 {vr(V_UU+2*tt,2)}, {vr(t3)} offset:{512*(3-tt)}")
    e("s_waitcnt lgkmcnt(0)")
    e(f"v_add_u32 {vr(t3)}, {sr(S_UB)}, {vr(V_L16)}")
    l1 = A.newlabel("PR"); l2 = A.newlabel("PR")
    e(f"s_cmp_eq_u32 {sr(S_RH)}, 0")
    e(f"s_cbranch_scc1 {l1}")
    for tt in range(4): e(f"ds_write_b128 {vr(t3)}, {vr(CACC+4*tt,4)} offset:{1024*tt}")
    e("s_nop 1")
    for r in range(16): e(f"v_mov_b32 {vr(CACC+r)}, {vr(CACC+16+r)}")
    e(f"s_branch {l2}")
    A.label(l1)
    for tt in range(4): e(f"ds_write_b128 {vr(t3)}, {vr(CACC+16+4*tt,4)} offset:{1024*tt}")
    A.label(l2)
    e("s_waitcnt lgkmcnt(0)")
    e(f"s_lshl_b32 {sr(S_T0)}, {sr(S_LW)}, 2")
    e(f"s_add_u32 {sr(S_T0)}, {sr(S_T0)}, {L_FLAG}")
    e(f"v_mov_b32 {vr(t0)}, {sr(S_T0)}")
    e(f"v_mov_b32 {vr(t1)}, 1")
    e(f"ds_write_b32 {vr(t0)}, {vr(t1)}")
    A.wait_vm("WDP")
    e(f"ds_write_b32 {vr(t0)}, {vr(t1)} offset:16")
    e(f"s_xor_b32 {sr(S_T0)}, {sr(S_T0)}, 4")
    lds_spin((S_T0,), t1, t0)
    e(f"s_xor_b32 {sr(S_T0)}, {sr(S_LW)}, 1")
    e(f"s_mul_i32 {sr(S_T0)}, {sr(S_T0)}, {UBSZ}")
    e(f"s_add_u32 {sr(S_T0)}, {sr(S_T0)}, {L_UB}")
    e(f"v_add_u32 {vr(t3)}, {sr(S_T0)}, {vr(V_L16)}")
    V_PP = 80
    for tt in range(4): e(f"ds_read_b128 {vr(V_PP+4*tt,4)}, {vr(t3)} offset:{1024*tt}")
    e("s_waitcnt lgkmcnt(0)")
    for r in range(16): e(f"v_add_f32 {vr(CACC+r)}, {vr(CACC+r)}, {vr(V_PP+r)}")
    V_YP = 96
    for tt in range(4):
        y = CACC + 4*tt; u0, u1 = V_UU + 2*tt, V_UU + 2*tt + 1; U = 112
        e(f"v_and_b32 {vr(U+0)}, 0xffff0000, {vr(u1)}")
        e(f"v_lshlrev_b32 {vr(U+1)}, 16, {vr(u1)}")
        e(f"v_and_b32 {vr(U+2)}, 0xffff0000, {vr(u0)}")
        e(f"v_lshlrev_b32 {vr(U+3)}, 16, {vr(u0)}")
        for k in range(4): e(f"v_mul_f32 {vr(U+k)}, {vr(U+k)}, {vr(V_DD)}")
        e(f"v_cvt_pk_bf16_f32 {vr(U+4)}, {vr(U+0)}, {vr(U+1)}")
        e(f"v_cvt_pk_bf16_f32 {vr(U+5)}, {vr(U+2)}, {vr(U+3)}")
        e(f"v_cvt_pk_bf16_f32 {vr(U+6)}, {vr(y+0)}, {vr(y+1)}")
        e(f"v_cvt_pk_bf16_f32 {vr(U+7)}, {vr(y+2)}, {vr(y+3)}")
        for h in range(2):
            e(f"v_lshlrev_b32 {vr(U+2*h)}, 16, {vr(U+4+h)}")
            e(f"v_and_b32 {vr(U+2*h+1)}, 0xffff0000, {vr(U+4+h)}")
            e(f"v_lshlrev_b32 {vr(y+2*h)}, 16, {vr(U+6+h)}")
            e(f"v_and_b32 {vr(y+2*h+1)}, 0xffff0000, {vr(U+6+h)}")
        for k in range(4): e(f"v_add_f32 {vr(y+k)}, {vr(y+k)}, {vr(U+k)}")
        e(f"v_cvt_pk_bf16_f32 {vr(V_YP+2*tt)}, {vr(y+0)}, {vr(y+1)}")
        e(f"v_cvt_pk_bf16_f32 {vr(V_YP+2*tt+1)}, {vr(y+2)}, {vr(y+3)}")
    e("s_nop 1")
    for p in range(2):
        e(f"v_permlane16_swap_b32 {vr(V_YP+4*p)}, {vr(V_YP+4*p+2)}")
        e(f"v_permlane16_swap_b32 {vr(V_YP+4*p+1)}, {vr(V_YP+4*p+3)}")
    e(f"v_and_b32 {vr(t0)}, 15, {L}")
    e(f"v_lshrrev_b32 {vr(t1)}, 4, {L}")
    e(f"v_and_b32 {vr(t2)}, 1, {vr(t1)}")
    e(f"v_lshlrev_b32 {vr(t2)}, 9, {vr(t2)}")
    e(f"v_and_b32 {vr(t1)}, 2, {vr(t1)}")
    e(f"v_lshlrev_b32 {vr(t1)}, 3, {vr(t1)}")
    e(f"v_lshlrev_b32 {vr(t0)}, 5, {vr(t0)}")
    e(f"v_add3_u32 {vr(t0)}, {vr(t0)}, {vr(t1)}, {vr(t2)}")
    e(f"s_lshl_b32 {sr(S_T0)}, {sr(S_C)}, 12")
    e(f"s_lshl_b32 {sr(S_T1)}, {sr(S_RH)}, 11")
    e(f"s_add_u32 {sr(S_T0)}, {sr(S_T0)}, {sr(S_T1)}")
    e(f"s_add_u32 {sr(S_T0)}, {sr(S_T0)}, {WS_YYT}")
    for p in range(2):
        e(f"buffer_store_dwordx4 {vr(V_YP+4*p,4)}, {vr(t0)}, {sr(SRD_WS,4)}, {sr(S_T0)} offen offset:{1024*p} sc0 sc1")
    e("s_waitcnt vmcnt(0)")
    e(f"s_lshr_b32 {sr(S_T0)}, {sr(S_C)}, 6")
    e(f"s_lshl_b32 {sr(S_T0)}, {sr(S_T0)}, 9")
    e(f"s_and_b32 {sr(S_T1)}, {sr(S_WG)}, 31")
    e(f"s_lshl_b32 {sr(S_T1)}, {sr(S_T1)}, 4")
    e(f"s_lshl_b32 {sr(S_T2)}, {sr(S_LW)}, 2")
    e(f"s_add_u32 {sr(S_T0)}, {sr(S_T0)}, {sr(S_T1)}")
    e(f"s_add_u32 {sr(S_T0)}, {sr(S_T0)}, {sr(S_T2)}")
    e(f"s_add_u32 {sr(S_T0)}, {sr(S_T0)}, {WS_FL+FL_Y}")
    flag_set(S_T0, t0)
    stamp(6)
    e(f"s_lshl_b32 {sr(S_T0)}, {sr(S_J)}, 9")
    e(f"s_add_u32 {sr(S_T0)}, {sr(S_T0)}, {WS_FL+FL_Y}")
    flag_wait_blocking(V_FL, 2, 64, S_T0)
    stamp(7)
    e(f"v_lshrrev_b32 {vr(t0)}, 3, {L}")
    e(f"v_and_b32 {vr(t1)}, 7, {L}")
    e(f"s_lshl_b32 {sr(S_T0)}, {sr(S_LW)}, 4")
    e(f"v_add_u32 {vr(t0)}, {sr(S_T0)}, {vr(t0)}")
    e(f"v_lshlrev_b32 {vr(t2)}, 12, {vr(t0)}")
    e(f"v_lshl_add_u32 {vr(t2)}, {vr(t1)}, 4, {vr(t2)}")
    e(f"s_lshl_b32 {sr(S_T0)}, {sr(S_J)}, 18")
    e(f"s_lshl_b32 {sr(S_T1)}, {sr(S_I2)}, 7")
    e(f"s_add_u32 {sr(S_T0)}, {sr(S_T0)}, {sr(S_T1)}")
    e(f"s_add_u32 {sr(S_T0)}, {sr(S_T0)}, {WS_YYT}")
    e(f"buffer_load_dwordx4 {vr(64,4)}, {vr(t2)}, {sr(SRD_WS,4)}, {sr(S_T0)} offen sc1")
    e(f"v_add_u32 {vr(t2)}, {8*4096}, {vr(t2)}")
    e(f"buffer_load_dwordx4 {vr(68,4)}, {vr(t2)}, {sr(SRD_WS,4)}, {sr(S_T0)} offen sc1")
    e(f"v_mul_u32_u24 {vr(t3)}, {YTROW}, {vr(t0)}")
    e(f"v_lshl_add_u32 {vr(t3)}, {vr(t1)}, 4, {vr(t3)}")
    e(f"v_add_u32 {vr(t3)}, {L_YT}, {vr(t3)}")
    e("s_waitcnt vmcnt(1)")
    e(f"ds_write_b128 {vr(t3)}, {vr(64,4)}")
    e("s_waitcnt vmcnt(0)")
    e(f"ds_write_b128 {vr(t3)}, {vr(68,4)} offset:{8*YTROW}")
    srd(SRD_OUT, 10, 2 << 20)

    A.label("L_FINAL")
    FT, FD, FO = 28, 29, 30
    e(f"v_lshrrev_b32 {vr(t0)}, 5, {L}")
    e(f"v_and_b32 {vr(t1)}, 3, {L}")
    e(f"v_lshl_add_u32 {vr(FT)}, {vr(t0)}, 2, {vr(t1)}")
    e(f"s_lshl_b32 {sr(S_T0)}, {sr(S_WAVE)}, 3")
    e(f"v_add_u32 {vr(FT)}, {sr(S_T0)}, {vr(FT)}")
    e(f"v_bfe_u32 {vr(FD)}, {L}, 2, 3")
    e(f"s_lshl_b32 {sr(S_T0)}, {sr(S_I2)}, 16")
    e(f"s_lshl_b32 {sr(S_T1)}, {sr(S_J)}, 7")
    e(f"s_add_u32 {sr(S_T0)}, {sr(S_T0)}, {sr(S_T1)}")
    e(f"v_lshlrev_b32 {vr(FO)}, 10, {vr(FT)}")
    e(f"v_lshl_add_u32 {vr(FO)}, {vr(FD)}, 4, {vr(FO)}")
    e(f"v_add_u32 {vr(FO)}, {sr(S_T0)}, {vr(FO)}")
    FX_, FS_ = 32, 36
    e(f"buffer_load_dwordx4 {vr(FX_,4)}, {vr(FO)}, {sr(SRD_Q,4)}, 0 offen")
    e("s_waitcnt lgkmcnt(0)")
    e("s_barrier")
    stamp(9)
    e(f"s_lshl_b32 {sr(S_T0)}, {sr(S_I2)}, 9")
    e(f"s_add_u32 {sr(S_T0)}, {sr(S_T0)}, {WS_ST}")
    e(f"v_lshlrev_b32 {vr(t1)}, 3, {vr(FT)}")
    e(f"buffer_load_dwordx2 {vr(FS_,2)}, {vr(t1)}, {sr(SRD_WS,4)}, {sr(S_T0)} offen sc1")
    FP = 40
    e(f"v_mul_u32_u24 {vr(t0)}, 272, {vr(FT)}")
    e(f"v_lshl_add_u32 {vr(t0)}, {vr(FD)}, 5, {vr(t0)}")
    e(f"v_add_u32 {vr(t1)}, {2*RING2}, {vr(t0)}")
    for kg in range(4):
        base = t0 if kg < 2 else t1
        off = (kg & 1) * RING2
        e(f"ds_read_b128 {vr(FP+8*kg,4)}, {vr(base)} offset:{off}")
        e(f"ds_read_b128 {vr(FP+8*kg+4,4)}, {vr(base)} offset:{off+16}")
    FY = 72
    e(f"v_bfe_u32 {vr(t2)}, {L}, 2, 2")
    e(f"v_and_b32 {vr(t3)}, 3, {L}")
    e(f"v_bfe_u32 {vr(t4)}, {L}, 4, 1")
    e(f"v_lshl_add_u32 {vr(t3)}, {vr(t4)}, 2, {vr(t3)}")
    e(f"v_lshl_add_u32 {vr(t2)}, {vr(t3)}, 3, {vr(t2)}")
    e(f"v_mul_u32_u24 {vr(t2)}, {YTROW}, {vr(t2)}")
    e(f"v_lshrrev_b32 {vr(t3)}, 5, {L}")
    e(f"v_lshlrev_b32 {vr(t3)}, 3, {vr(t3)}")
    e(f"s_lshl_b32 {sr(S_T0)}, {sr(S_WAVE)}, 4")
    e(f"s_add_u32 {sr(S_T0)}, {sr(S_T0)}, {L_YT}")
    e(f"v_add3_u32 {vr(t2)}, {vr(t2)}, {vr(t3)}, {sr(S_T0)}")
    e(f"ds_read_b64_tr_b16 {vr(FY,2)}, {vr(t2)}")
    e(f"ds_read_b64_tr_b16 {vr(FY+2,2)}, {vr(t2)} offset:{4*YTROW}")
    e("s_waitcnt lgkmcnt(2)")
    for kg in range(1, 4):
        for k in range(8): e(f"v_add_f32 {vr(FP+k)}, {vr(FP+k)}, {vr(FP+8*kg+k)}")
    O = FP; T = 48; XV = 56; YV = 64
    for k in range(0, 8, 2): e(f"v_cvt_pk_bf16_f32 {vr(T+k)}, {vr(O+k)}, {vr(O+k+1)}")
    for k in range(0, 8, 2):
        e(f"v_and_b32 {vr(O+k+1)}, 0xffff0000, {vr(T+k)}")
        e(f"v_lshlrev_b32 {vr(O+k)}, 16, {vr(T+k)}")
    e(f"s_mov_b32 {sr(S_T0)}, 0xbfb8aa3b")
    for k in range(8): e(f"v_mul_f32 {vr(T+k)}, {sr(S_T0)}, {vr(O+k)}")
    for k in range(8): e(f"v_exp_f32 {vr(T+k)}, {vr(T+k)}")
    for k in range(8): e(f"v_add_f32 {vr(T+k)}, 1.0, {vr(T+k)}")
    for k in range(8): e(f"v_rcp_f32 {vr(T+k)}, {vr(T+k)}")
    e("s_nop 0")
    for k in range(8): e(f"v_mul_f32 {vr(O+k)}, {vr(O+k)}, {vr(T+k)}")
    e("s_waitcnt vmcnt(0) lgkmcnt(0)")
    for k in range(4):
        e(f"v_lshlrev_b32 {vr(XV+2*k)}, 16, {vr(FX_+k)}")
        e(f"v_and_b32 {vr(XV+2*k+1)}, 0xffff0000, {vr(FX_+k)}")
        e(f"v_lshlrev_b32 {vr(YV+2*k)}, 16, {vr(FY+k)}")
        e(f"v_and_b32 {vr(YV+2*k+1)}, 0xffff0000, {vr(FY+k)}")
    for k in range(8): e(f"v_sub_f32 {vr(T+k)}, {vr(XV+k)}, {vr(FS_)}")
    def round8(b):
        for k in range(0, 8, 2): e(f"v_cvt_pk_bf16_f32 {vr(b+k)}, {vr(b+k)}, {vr(b+k+1)}")
        for k in range(0, 8, 2):
            e(f"v_and_b32 {vr(b+k+1)}, 0xffff0000, {vr(b+k)}")
            e(f"v_lshlrev_b32 {vr(b+k)}, 16, {vr(b+k)}")
    round8(T)
    for k in range(8): e(f"v_mul_f32 {vr(T+k)}, {vr(T+k)}, {vr(FS_+1)}")
    round8(T)
    for k in range(8): e(f"v_mul_f32 {vr(T+k)}, {vr(T+k)}, {vr(YV+k)}")
    round8(T); round8(O)
    for k in range(8): e(f"v_mul_f32 {vr(T+k)}, {vr(T+k)}, {vr(O+k)}")
    round8(T)
    for k in range(8): e(f"v_add_f32 {vr(T+k)}, {vr(T+k)}, {vr(XV+k)}")
    for k in range(4): e(f"v_cvt_pk_bf16_f32 {vr(FY+k)}, {vr(T+2*k)}, {vr(T+2*k+1)}")
    e(f"buffer_store_dwordx4 {vr(FY,4)}, {vr(FO)}, {sr(SRD_OUT,4)}, 0 offen")
    stamp(10)
    A.label("L_END")
    e("s_endpgm")
    A.label("L_CODE_END")

    body = A.text()
    hdr = open("cdna_kernels/" + NAME + ".s.ref").read().split("; Override launch geometry")[0]
    out = hdr + "; Override launch geometry by editing the next line.\n"
    out += f"; @launch grid=(256,1,1) block=(512,1,1) lds={LDS_TOTAL}\n"
    out += f""".amdgcn_target "amdgcn-amd-amdhsa--gfx950"
.text
.globl {NAME}_kernel
.p2align 8
.type {NAME}_kernel,@function
{NAME}_kernel:
"""
    out += body
    out += f""".section .rodata,"a"
.p2align 6
.amdhsa_kernel {NAME}_kernel
  .amdhsa_next_free_vgpr 256
  .amdhsa_next_free_sgpr 102
  .amdhsa_accum_offset 256
  .amdhsa_group_segment_fixed_size 0
  .amdhsa_kernarg_size 104
  .amdhsa_user_sgpr_count 2
  .amdhsa_user_sgpr_kernarg_segment_ptr 1
  .amdhsa_system_sgpr_workgroup_id_x 1
.end_amdhsa_kernel
"""
    return out

if __name__ == "__main__":
    opts = {}
    outp = sys.argv[1]
    for a in sys.argv[2:]:
        k, _, v = a.partition("=")
        opts[k] = (int(v) if v.lstrip("-").isdigit() else (v or True))
    open(outp, "w").write(gen(opts))
```

```python
import sys, struct

NAME = "recurrent_scan__ssm_conv_h3__glu_gated_geglu__prompt"
f2u = lambda x: struct.unpack("<I", struct.pack("<f", x))[0]

class Asm:
    def __init__(self):
        self.lines = []; self.nlabel = 0; self.vm = []; self.cap = None
    def e(self, s):
        if self.cap is not None: self.cap.append(("  " + s, None))
        else: self.lines.append("  " + s)
    def label(self, l):
        assert self.cap is None, l
        self.lines.append(l + ":")
    def newlabel(self, p="L"):
        self.nlabel += 1; return f"{p}_{self.nlabel}"
    def text(self): return "\n".join(self.lines) + "\n"
    def vmem(self, s, tag):
        if self.cap is not None:
            self.cap.append(("  " + s, tag)); return
        self.e(s); self.vm.append(tag)
    def capture(self, fn):
        assert self.cap is None
        self.cap = []
        fn()
        out = self.cap; self.cap = None
        return out
    def emit_list(self, lst):
        for line, tag in lst:
            self.lines.append(line)
            if tag is not None: self.vm.append(tag)
    def merge(self, a, b):
        groups = []; cur = []
        for it in a:
            cur.append(it)
            if it[1] is not None: groups.append(cur); cur = []
        if cur: groups.append(cur)
        n = len(groups); out = []; k = 0
        for gi, g in enumerate(groups):
            out += g
            upto = (len(b) * (gi + 1)) // n
            out += b[k:upto]; k = upto
        out += b[k:]
        return out
    def wait_vm(self, *tags):
        assert self.cap is None
        last = -1
        for i, t in enumerate(self.vm):
            if t in tags: last = i
        assert last >= 0, tags
        n = len(self.vm) - 1 - last
        n = min(n, 63)
        self.e(f"s_waitcnt vmcnt({n})")
        return n

def vr(a, n=1): return f"v{a}" if n == 1 else f"v[{a}:{a+n-1}]"
def sr(a, n=1): return f"s{a}" if n == 1 else f"s[{a}:{a+n-1}]"

S, D, F = 2048, 512, 1376
WROW = F * 2
WBYTES = 512 * WROW
WS_KVT, WS_YYT, WS_HF, WS_ST, WS_FL, WS_TS = 0, 2 << 20, 4 << 20, 12 << 20, 13 << 20, 16 << 20
FL_KV, FL_ST, FL_H, FL_Y = 0, 4096, 8192, 12288
STAGE = 40960
L_HANK = 122880
HCOPY = 4160
HCH = 4 * HCOPY
L_MISC = L_HANK + 2 * HCH
L_CS = L_MISC
L_STAT = L_MISC + 1536
L_FLAG = L_MISC + 2560
LDS_TOTAL = 163840
L_KT, L_VT, L_SH, L_PT = L_HANK, L_HANK + 9216, L_HANK + 17408, L_HANK + 18432
RA, RB_ = 2 * STAGE, 0
L_UB = STAGE
UBSZ = 4608
L_YT = L_UB + 4 * UBSZ
YTROW = 144
RC = L_YT + 64 * YTROW
NR = 11
def ring_off(n):
    if n < 5: return (0, n * 2048)
    if n < 10: return (1, (n - 5) * 2048)
    return (2, 0)

SRD_Q, SRD_K, SRD_V, SRD_W, SRD_WD, SRD_WS, SRD_DBG, SRD_OUT, SRD_SK, SRD_AUX = 4, 8, 12, 16, 20, 24, 28, 32, 36, 40
P = 48
S_WG = 2
S_WAVE, S_RB, S_CP, S_I2, S_J, S_F0, S_N32, S_A, S_B = 76, 77, 78, 79, 80, 81, 82, 83, 84
S_NONCE = 85
S_T0, S_T1, S_T2, S_T3, S_T4, S_T5 = 86, 87, 88, 89, 90, 91
S_G0, S_G1, S_G2, S_G3, S_G4, S_G5 = 92, 93, 94, 95, 96, 97
S_C0, S_C1 = 98, 99
S_EX = 100
S_TSP = 74
S_X0, S_X1, S_X2, S_X3 = 44, 45, 46, 47

def gen(opts):
    A = Asm(); e = A.e
    TS = opts.get("ts", False)
    HSC = "" if opts.get("hplain", 1) else " sc1"
    t0, t1, t2, t3, t4, t5 = 8, 9, 10, 11, 12, 13
    V_LANE = 3; L = vr(V_LANE)
    V_TS = 15

    def stamp(idx, dyn=None):
        if not TS: return
        e(f"{'s_memtime' if opts.get('cyc') else 's_memrealtime'} {sr(S_TSP,2)}")
        e("s_waitcnt lgkmcnt(0)")
        if dyn is None:
            e(f"v_writelane_b32 {vr(V_TS)}, {sr(S_TSP)}, {idx}")
        else:
            e(f"s_add_u32 m0, {sr(dyn)}, {idx}")
            e("s_nop 0")
            e(f"v_writelane_b32 {vr(V_TS)}, {sr(S_TSP)}, m0")
    def stamp_flush():
        if not TS: return
        e(f"s_lshl_b32 {sr(S_TSP+1)}, {sr(S_WG)}, 3")
        e(f"s_add_u32 {sr(S_TSP+1)}, {sr(S_TSP+1)}, {sr(S_WAVE)}")
        e(f"s_lshl_b32 {sr(S_TSP+1)}, {sr(S_TSP+1)}, 8")
        e(f"s_add_u32 {sr(S_TSP+1)}, {sr(S_TSP+1)}, {WS_TS}")
        e(f"v_lshlrev_b32 v14, 2, {L}")
        e(f"buffer_store_dword {vr(V_TS)}, v14, {sr(SRD_WS,4)}, {sr(S_TSP+1)} offen")

    def srd(dst, pidx, nbytes):
        e(f"s_mov_b32 {sr(dst)}, {sr(P+2*pidx)}")
        e(f"s_mov_b32 {sr(dst+1)}, {sr(P+2*pidx+1)}")
        e(f"s_mov_b32 {sr(dst+2)}, {nbytes}")
        e(f"s_mov_b32 {sr(dst+3)}, 0x20000")

    def flag_issue(vdst, nw, soff_sgpr, tag):
        e(f"v_lshlrev_b32 {vr(t5)}, {1 + nw}, {L}")
        op = "buffer_load_dword" if nw == 1 else "buffer_load_dwordx2"
        A.vmem(f"{op} {vr(vdst,nw)}, {vr(t5)}, {sr(SRD_WS,4)}, {sr(soff_sgpr)} offen sc1", tag)
    def flag_check_scc(vdst, nw):
        e(f"v_cmp_eq_u32 vcc, {sr(S_NONCE)}, {vr(vdst)}")
        if nw == 2:
            e(f"v_cmp_eq_u32 {sr(S_T4,2)}, {sr(S_NONCE)}, {vr(vdst+1)}")
            e("s_nop 1")
            e(f"s_and_b64 vcc, vcc, {sr(S_T4,2)}")
        else:
            e("s_nop 1")
        e("s_cmp_eq_u64 vcc, -1")
    def flag_wait_blocking(vdst, nw, soff_sgpr, sleep=4):
        l = A.newlabel("POLL"); d = A.newlabel("POLLD")
        n0 = len(A.vm)
        e(f"s_mov_b32 {sr(S_T3)}, 0x40000")
        A.label(l)
        flag_issue(vdst, nw, soff_sgpr, "poll")
        e("s_waitcnt vmcnt(0)")
        flag_check_scc(vdst, nw)
        e(f"s_cbranch_scc1 {d}")
        e(f"s_sub_u32 {sr(S_T3)}, {sr(S_T3)}, 1")
        e(f"s_cmp_eq_u32 {sr(S_T3)}, 0")
        e(f"s_cbranch_scc1 {d}")
        e(f"s_sleep {sleep}")
        e(f"s_branch {l}")
        A.label(d)
        del A.vm[n0:]
    def flag_set(soff_sgpr, vtmp):
        e(f"v_mov_b32 {vr(vtmp)}, {sr(S_NONCE)}")
        e(f"s_mov_b64 {sr(S_EX,2)}, exec")
        e("s_mov_b64 exec, 1")
        A.vmem(f"buffer_store_dword {vr(vtmp)}, off, {sr(SRD_WS,4)}, {sr(soff_sgpr)} sc0 sc1", "flag")
        e(f"s_mov_b64 exec, {sr(S_EX,2)}")
    def lds_spin(addr_sgpr, vt, va, sleep=1):
        l = A.newlabel("LS"); d = A.newlabel("LSD")
        e(f"v_mov_b32 {vr(va)}, {sr(addr_sgpr)}")
        e(f"s_mov_b32 {sr(S_T3)}, 0x200000")
        A.label(l)
        e(f"ds_read_b32 {vr(vt)}, {vr(va)}")
        e("s_waitcnt lgkmcnt(0)")
        e(f"v_readfirstlane_b32 {sr(S_T2)}, {vr(vt)}")
        e("s_nop 3")
        e(f"s_cmp_eq_u32 {sr(S_T2)}, 1")
        e(f"s_cbranch_scc1 {d}")
        e(f"s_sub_u32 {sr(S_T3)}, {sr(S_T3)}, 1")
        e(f"s_cmp_eq_u32 {sr(S_T3)}, 0")
        e(f"s_cbranch_scc1 {d}")
        e(f"s_sleep {sleep}")
        e(f"s_branch {l}")
        A.label(d)
    def wd_voffset(dst):
        e(f"v_lshrrev_b32 {vr(t0)}, 3, {L}")
        e(f"v_and_b32 {vr(t1)}, 7, {L}")
        e(f"v_bfe_u32 {vr(t2)}, {L}, 4, 1")
        e(f"v_lshlrev_b32 {vr(t2)}, 2, {vr(t2)}")
        e(f"v_xor_b32 {vr(t1)}, {vr(t1)}, {vr(t2)}")
        e(f"v_lshlrev_b32 {vr(t1)}, 4, {vr(t1)}")
        e(f"v_lshl_add_u32 {vr(t1)}, {vr(t0)}, 10, {vr(t1)}")
        e(f"s_lshl_b32 {sr(S_T1)}, {sr(S_J)}, 7")
        e(f"v_add_u32 {vr(dst)}, {sr(S_T1)}, {vr(t1)}")
    def ku_start(dst, kg):
        e(f"s_mul_i32 {sr(dst)}, {sr(kg)}, 22")
        e(f"s_cmp_eq_u32 {sr(kg)}, 3")
        e(f"s_cselect_b32 {sr(S_T1)}, 1, 0")
        e(f"s_sub_u32 {sr(dst)}, {sr(dst)}, {sr(S_T1)}")
    def unit_at(n, dst, rot, kun):
        e(f"s_add_u32 {sr(dst)}, {sr(rot)}, {n}")
        e(f"s_cmp_ge_u32 {sr(dst)}, 22")
        e(f"s_cselect_b32 {sr(S_T5)}, 22, 0")
        e(f"s_sub_u32 {sr(dst)}, {sr(dst)}, {sr(S_T5)}")
        e(f"s_cmp_lt_u32 {sr(dst)}, {sr(kun)}")
    def wd_soff(n, dst, rot, kun, ku0, oob):
        unit_at(n, dst, rot, kun)
        e(f"s_cselect_b32 {sr(S_T5)}, 1, 0")
        e(f"s_add_u32 {sr(dst)}, {sr(dst)}, {sr(ku0)}")
        e(f"s_lshl_b32 {sr(dst)}, {sr(dst)}, 14")
        e(f"s_cmp_eq_u32 {sr(S_T5)}, 1")
        e(f"s_cselect_b32 {sr(dst)}, {sr(dst)}, {sr(oob)}")
    def ring_bases(kg, ra, rb, rc):
        e(f"s_mul_i32 {sr(ra)}, {sr(kg)}, 10240")
        e(f"s_add_u32 {sr(rb)}, {sr(ra)}, {RB_}")
        e(f"s_add_u32 {sr(ra)}, {sr(ra)}, {RA}")
        e(f"s_lshl_b32 {sr(rc)}, {sr(kg)}, 11")
        e(f"s_add_u32 {sr(rc)}, {sr(rc)}, {RC}")

    def loader_setup(lw, V_XO, V_WO, S_M0X, S_M0W):
        e(f"v_lshrrev_b32 {vr(t0)}, 3, {L}")
        e(f"v_lshrrev_b32 {vr(t1)}, 4, {L}")
        e(f"v_and_b32 {vr(t2)}, 7, {L}")
        e(f"s_lshl_b32 {sr(S_T2)}, {sr(S_RB)}, 7")
        e(f"s_lshl_b32 {sr(S_T3)}, {sr(lw)}, 5")
        e(f"s_add_u32 {sr(S_T2)}, {sr(S_T2)}, {sr(S_T3)}")
        for a in range(2):
            e(f"v_add_u32 {vr(t3)}, {4*a}, {vr(t1)}")
            e(f"v_xor_b32 {vr(t3)}, {vr(t3)}, {vr(t2)}")
            e(f"v_lshlrev_b32 {vr(t3)}, 4, {vr(t3)}")
            e(f"v_add_u32 {vr(t4)}, {sr(S_T2)}, {vr(t0)}")
            e(f"v_add_u32 {vr(t4)}, {8*a}, {vr(t4)}")
            e(f"v_lshl_add_u32 {vr(V_XO+a)}, {vr(t4)}, 10, {vr(t3)}")
        e(f"s_and_b32 {sr(S_T1)}, {sr(lw)}, 1")
        e(f"s_lshl_b32 {sr(S_T3)}, {sr(S_T1)}, 1")
        e(f"s_lshr_b32 {sr(S_T4)}, {sr(lw)}, 1")
        e(f"s_lshl_b32 {sr(S_T4)}, {sr(S_T4)}, 5")
        e(f"s_lshl_b32 {sr(S_T5)}, {sr(S_F0)}, 1")
        e(f"s_movk_i32 {sr(S_T0)}, {WROW}")
        for i in range(3):
            e(f"v_add_u32 {vr(t0)}, {64*i}, {L}")
            e(f"v_lshrrev_b32 {vr(t1)}, 4, {vr(t0)}")
            e(f"v_mul_u32_u24 {vr(t1)}, 43, {vr(t1)}")
            e(f"v_lshrrev_b32 {vr(t1)}, 7, {vr(t1)}")
            e(f"v_mul_u32_u24 {vr(t2)}, 48, {vr(t1)}")
            e(f"v_sub_u32 {vr(t2)}, {vr(t0)}, {vr(t2)}")
            e(f"v_lshrrev_b32 {vr(t3)}, 4, {vr(t2)}")
            e(f"v_bfe_u32 {vr(t4)}, {vr(t2)}, 2, 2")
            e(f"v_and_b32 {vr(t2)}, 3, {vr(t2)}")
            e(f"v_xor_b32 {vr(t2)}, {sr(S_T3)}, {vr(t2)}")
            e(f"v_lshl_add_u32 {vr(t2)}, {vr(t3)}, 2, {vr(t2)}")
            e(f"v_lshl_add_u32 {vr(t1)}, {vr(t1)}, 2, {vr(t4)}")
            e(f"v_add_u32 {vr(t1)}, {sr(S_T4)}, {vr(t1)}")
            e(f"v_mul_u32_u24 {vr(t1)}, {sr(S_T0)}, {vr(t1)}")
            e(f"v_lshl_add_u32 {vr(t2)}, {vr(t2)}, 4, {vr(t1)}")
            e(f"v_add_u32 {vr(V_WO+i)}, {sr(S_T5)}, {vr(t2)}")
        e(f"s_lshl_b32 {sr(S_M0X)}, {sr(lw)}, 12")
        e(f"s_mul_i32 {sr(S_M0W)}, {sr(S_T1)}, 12288")
        e(f"s_lshr_b32 {sr(S_T4)}, {sr(lw)}, 1")
        e(f"s_mul_i32 {sr(S_T4)}, {sr(S_T4)}, 6144")
        e(f"s_add_u32 {sr(S_M0W)}, {sr(S_M0W)}, {sr(S_T4)}")
        e(f"s_add_u32 {sr(S_M0W)}, {sr(S_M0W)}, 16384")
    def srd_w_select(lw):
        e(f"s_and_b32 {sr(S_T0)}, {sr(lw)}, 1")
        e(f"s_cmp_eq_u32 {sr(S_T0)}, 0")
        e(f"s_cselect_b32 {sr(SRD_W)}, {sr(P+14)}, {sr(P+16)}")
        e(f"s_cselect_b32 {sr(SRD_W+1)}, {sr(P+15)}, {sr(P+17)}")
        e(f"s_mov_b32 {sr(SRD_W+2)}, {WBYTES}")
        e(f"s_mov_b32 {sr(SRD_W+3)}, 0x20000")
    def dma_stage_g(s, V_XO, V_WO, S_M0X, S_M0W, S_XSO, S_WSO):
        slot = (s % 3) * STAGE
        e(f"s_mov_b32 {sr(S_XSO)}, {s*128}")
        e(f"s_add_u32 m0, {sr(S_M0X)}, {slot}")
        for a in range(4):
            if a == 2: e(f"s_mov_b32 {sr(S_XSO)}, {s*128+16384}")
            else: e("s_nop 0")
            A.vmem(f"buffer_load_dwordx4 {vr(V_XO+(a&1))}, {sr(SRD_Q,4)}, {sr(S_XSO)} offen lds", f"S{s}")
            if a < 3: e("s_add_u32 m0, m0, 1024")
        e(f"s_mov_b32 {sr(S_WSO)}, {s*64*WROW}")
        e(f"s_add_u32 m0, {sr(S_M0W)}, {slot}")
        for blk in range(2):
            for i in range(3):
                if blk == 1 and i == 0: e(f"s_mov_b32 {sr(S_WSO)}, {s*64*WROW+16*WROW}")
                else: e("s_nop 0")
                A.vmem(f"buffer_load_dwordx4 {vr(V_WO+i)}, {sr(SRD_W,4)}, {sr(S_WSO)} offen lds", f"S{s}")
                if not (blk == 1 and i == 2): e("s_add_u32 m0, m0, 1024")

    e(f"s_cmp_ge_u32 {sr(S_WG)}, 256")
    e("s_cbranch_scc1 L_END")
    e(f"s_load_dwordx16 {sr(P,16)}, s[0:1], 0")
    e(f"s_load_dwordx8 {sr(P+16,8)}, s[0:1], 64")
    e(f"s_load_dwordx2 {sr(P+24,2)}, s[0:1], 96")
    e(f"s_getpc_b64 {sr(S_T0,2)}")
    e("v_lshlrev_b32 v1, 6, v0")
    e(f"v_cmp_gt_u32 vcc, L_CODE_END-{NAME}_kernel, v1")
    e(f"s_and_saveexec_b64 {sr(S_EX,2)}, vcc")
    e(f"global_load_dword v2, v1, {sr(S_T0,2)}")
    e(f"s_mov_b64 exec, {sr(S_EX,2)}")
    e(f"v_and_b32 {L}, 63, v0")
    e("v_lshrrev_b32 v4, 6, v0")
    e(f"s_and_b32 {sr(S_T0)}, {sr(S_WG)}, 7")
    e(f"v_readfirstlane_b32 {sr(S_WAVE)}, v4")
    e(f"s_lshr_b32 {sr(S_T1)}, {sr(S_WG)}, 3")
    e(f"s_and_b32 {sr(S_T2)}, {sr(S_T0)}, 1")
    e(f"s_lshl_b32 {sr(S_T2)}, {sr(S_T2)}, 3")
    e(f"s_and_b32 {sr(S_T3)}, {sr(S_T1)}, 7")
    e(f"s_add_u32 {sr(S_RB)}, {sr(S_T2)}, {sr(S_T3)}")
    e(f"s_lshr_b32 {sr(S_T2)}, {sr(S_T0)}, 1")
    e(f"s_lshl_b32 {sr(S_T2)}, {sr(S_T2)}, 2")
    e(f"s_lshr_b32 {sr(S_T3)}, {sr(S_T1)}, 3")
    e(f"s_add_u32 {sr(S_CP)}, {sr(S_T2)}, {sr(S_T3)}")
    e(f"s_lshl_b32 {sr(S_T2)}, {sr(S_T0)}, 2")
    e(f"s_and_b32 {sr(S_T3)}, {sr(S_T1)}, 3")
    e(f"s_add_u32 {sr(S_I2)}, {sr(S_T2)}, {sr(S_T3)}")
    e(f"s_lshr_b32 {sr(S_J)}, {sr(S_T1)}, 2")
    e(f"s_mul_i32 {sr(S_T2)}, {sr(S_CP)}, 96")
    e(f"s_lshl_b32 {sr(S_T3)}, {sr(S_CP)}, 6")
    e(f"s_add_u32 {sr(S_T3)}, {sr(S_T3)}, 352")
    e(f"s_cmp_lt_u32 {sr(S_CP)}, 11")
    e(f"s_cselect_b32 {sr(S_F0)}, {sr(S_T2)}, {sr(S_T3)}")
    e(f"s_cselect_b32 {sr(S_N32)}, 3, 2")
    if TS: e(f"v_mov_b32 {vr(V_TS)}, 0")
    e(f"s_cmp_ge_u32 {sr(S_WAVE)}, 4")
    e("s_cbranch_scc1 L_HELPER")

    A.vm = ["code"]
    e(f"s_setprio {opts.get('cprio', 2)}")
    e(f"s_and_b32 {sr(S_A)}, {sr(S_WAVE)}, 1")
    e(f"s_lshr_b32 {sr(S_B)}, {sr(S_WAVE)}, 1")
    FS = [16, 36]
    V_XR, V_WR, V_XRC, V_WRC = 56, 60, 66, 70
    ACC = 160
    e(f"v_and_b32 {vr(t0)}, 31, {L}")
    e(f"v_lshrrev_b32 {vr(t1)}, 5, {L}")
    e(f"v_bfe_u32 {vr(t2)}, {vr(t0)}, 1, 3")
    e(f"v_xor_b32 {vr(t2)}, {vr(t2)}, {vr(t1)}")
    e(f"s_lshl_b32 {sr(S_T0)}, {sr(S_A)}, 1")
    e(f"v_xor_b32 {vr(t2)}, {sr(S_T0)}, {vr(t2)}")
    e(f"s_lshl_b32 {sr(S_T0)}, {sr(S_A)}, 6")
    e(f"v_add_u32 {vr(t0)}, {sr(S_T0)}, {vr(t0)}")
    e(f"v_lshlrev_b32 {vr(t0)}, 7, {vr(t0)}")
    for ks in range(4):
        e(f"v_xor_b32 {vr(t3)}, {2*ks}, {vr(t2)}")
        e(f"v_lshl_add_u32 {vr(V_XR+ks)}, {vr(t3)}, 4, {vr(t0)}")
    e(f"v_bfe_u32 {vr(t0)}, {L}, 4, 1")
    e(f"v_lshrrev_b32 {vr(t1)}, 5, {L}")
    e(f"v_bfe_u32 {vr(t2)}, {L}, 2, 2")
    e(f"v_bfe_u32 {vr(t3)}, {L}, 1, 1")
    e(f"v_and_b32 {vr(t4)}, 1, {L}")
    e(f"s_lshl_b32 {sr(S_T0)}, {sr(S_B)}, 1")
    e(f"v_add_u32 {vr(t3)}, {sr(S_T0)}, {vr(t3)}")
    e(f"v_lshlrev_b32 {vr(t5)}, 1, {vr(t0)}")
    e(f"v_xor_b32 {vr(t3)}, {vr(t3)}, {vr(t5)}")
    e(f"v_lshlrev_b32 {vr(t3)}, 4, {vr(t3)}")
    e(f"v_lshl_add_u32 {vr(t3)}, {vr(t4)}, 3, {vr(t3)}")
    e(f"v_lshl_add_u32 {vr(t3)}, {vr(t2)}, 6, {vr(t3)}")
    e(f"v_mul_u32_u24 {vr(t1)}, 1536, {vr(t1)}")
    e(f"v_mul_u32_u24 {vr(t0)}, 12288, {vr(t0)}")
    e(f"v_add3_u32 {vr(t3)}, {vr(t3)}, {vr(t1)}, {vr(t0)}")
    e(f"v_add_u32 {vr(t3)}, 16384, {vr(t3)}")
    e(f"s_mul_i32 {sr(S_T1)}, {sr(S_A)}, 3072")
    for i in range(3):
        e(f"s_cmp_eq_u32 {sr(S_A)}, 0")
        e(f"s_cselect_b32 {sr(S_T0)}, {i*256}, {(2-i)*256}")
        e(f"s_add_u32 {sr(S_T2)}, {sr(S_T0)}, {sr(S_T1)}")
        e(f"v_add_u32 {vr(V_WR+i)}, {sr(S_T2)}, {vr(t3)}")
        e(f"s_sub_u32 {sr(S_T2)}, {sr(S_T0)}, {sr(S_T1)}")
        e(f"v_add_u32 {vr(V_WR+3+i)}, {sr(S_T2)}, {vr(t3)}")
    loader_setup(S_WAVE, 94, 96, S_X0, S_X1)
    for r in range(96): e(f"v_mov_b32 {vr(ACC+r)}, 0")
    for r in range(12): e(f"v_mov_b32 {vr(80+r)}, 0")
    e(f"v_and_b32 {vr(t0)}, 15, {L}")
    e(f"v_bfe_u32 {vr(t1)}, {L}, 4, 1")
    e(f"v_cmp_eq_u32 vcc, {vr(t0)}, {vr(t1)}")
    e(f"v_mov_b32 {vr(t2)}, 0x3f803f80")
    e("s_nop 0")
    e(f"v_cndmask_b32 {vr(76)}, 0, {vr(t2)}, vcc")
    for r in range(1, 4): e(f"v_mov_b32 {vr(76+r)}, {vr(76)}")
    e("s_waitcnt lgkmcnt(0)")
    srd(SRD_Q, 0, 2 << 20); srd(SRD_WD, 9, WBYTES); srd(SRD_OUT, 10, 2 << 20); srd(SRD_WS, 12, 0x10000000)
    if not opts.get("notouch"):
        BAD = 0x7fffff00; V_DUM = 92
        lW = A.newlabel("TW"); lD = A.newlabel("TD")
        e(f"s_cmp_eq_u32 {sr(S_WAVE)}, 1"); e(f"s_cbranch_scc1 {lW}")
        e(f"s_cmp_eq_u32 {sr(S_WAVE)}, 2"); e(f"s_cbranch_scc1 {lW}")
        e(f"s_and_b32 {sr(S_T0)}, {sr(S_CP)}, 3")
        e(f"s_lshl_b32 {sr(S_T0)}, {sr(S_T0)}, 5")
        e(f"s_lshl_b32 {sr(S_T1)}, {sr(S_RB)}, 7")
        e(f"s_add_u32 {sr(S_T0)}, {sr(S_T0)}, {sr(S_T1)}")
        e(f"v_and_b32 {vr(t1)}, 31, {L}")
        e(f"v_add_u32 {vr(t1)}, {sr(S_T0)}, {vr(t1)}")
        e(f"v_lshlrev_b32 {vr(t1)}, 10, {vr(t1)}")
        e(f"v_lshrrev_b32 {vr(t0)}, 5, {L}")
        e(f"v_lshl_add_u32 {vr(t1)}, {vr(t0)}, 7, {vr(t1)}")
        e(f"s_cmp_eq_u32 {sr(S_WAVE)}, 3")
        e(f"s_cselect_b32 {sr(S_T0)}, 256, 0")
        e(f"buffer_load_dword {vr(V_DUM)}, {vr(t1)}, {sr(SRD_Q,4)}, {sr(S_T0)} offen")
        e(f"buffer_load_dword {vr(V_DUM)}, {vr(t1)}, {sr(SRD_Q,4)}, {sr(S_T0)} offen offset:512")
        e(f"s_branch {lD}")
        A.label(lW)
        e(f"s_cmp_eq_u32 {sr(S_WAVE)}, 1")
        e(f"s_cselect_b32 {sr(SRD_W)}, {sr(P+14)}, {sr(P+16)}")
        e(f"s_cselect_b32 {sr(SRD_W+1)}, {sr(P+15)}, {sr(P+17)}")
        e(f"s_mov_b32 {sr(SRD_W+2)}, {WBYTES}")
        e(f"s_mov_b32 {sr(SRD_W+3)}, 0x20000")
        e(f"s_and_b32 {sr(S_T0)}, {sr(S_RB)}, 7")
        e(f"s_lshl_b32 {sr(S_T0)}, {sr(S_T0)}, 3")
        e(f"v_lshrrev_b32 {vr(t0)}, 4, {L}")
        e(f"v_lshlrev_b32 {vr(t0)}, 6, {vr(t0)}")
        e(f"v_bfe_u32 {vr(t1)}, {L}, 1, 3")
        e(f"v_add3_u32 {vr(t0)}, {vr(t0)}, {vr(t1)}, {sr(S_T0)}")
        e(f"s_movk_i32 {sr(S_T1)}, {WROW}")
        e(f"v_mul_lo_u32 {vr(t1)}, {vr(t0)}, {sr(S_T1)}")
        e(f"v_and_b32 {vr(t2)}, 1, {L}")
        e(f"v_lshl_add_u32 {vr(t1)}, {vr(t2)}, 7, {vr(t1)}")
        e(f"s_lshl_b32 {sr(S_T1)}, {sr(S_F0)}, 1")
        e(f"v_add_u32 {vr(t1)}, {sr(S_T1)}, {vr(t1)}")
        e(f"s_mov_b32 {sr(S_T2)}, {256*WROW}")
        e(f"buffer_load_dword {vr(V_DUM)}, {vr(t1)}, {sr(SRD_W,4)}, 0 offen")
        e(f"buffer_load_dword {vr(V_DUM)}, {vr(t1)}, {sr(SRD_W,4)}, {sr(S_T2)} offen")
        A.label(lD)
    e("s_barrier")
    srd_w_select(S_WAVE)
    dma_stage_g(1, 94, 96, S_X0, S_X1, S_X2, S_X3)
    TOUCH2 = []
    stamp(0)
    S_IT, S_SLOT = S_G0, S_G1
    def set_addrs():
        out = []
        for ks in range(4): out.append(f"v_add_u32 {vr(V_XRC+ks)}, {sr(S_SLOT)}, {vr(V_XR+ks)}")
        for i in range(6): out.append(f"v_add_u32 {vr(V_WRC+i)}, {sr(S_SLOT)}, {vr(V_WR+i)}")
        return out
    def reads(ks, st):
        b = FS[st]; out = []
        out.append(f"ds_read_b128 {vr(b,4)}, {vr(V_XRC+ks)}")
        wa = V_WRC + (3 if ks & 1 else 0)
        for h in range(2): out.append(f"ds_read_b64_tr_b16 {vr(b+8+2*h,2)}, {vr(wa)} offset:{ks*3072+h*768}")
        out.append(f"ds_read_b128 {vr(b+4,4)}, {vr(V_XRC+ks)} offset:4096")
        for i in range(1, 3):
            for h in range(2): out.append(f"ds_read_b64_tr_b16 {vr(b+8+4*i+2*h,2)}, {vr(wa+i)} offset:{ks*3072+h*768}")
        return out
    V_SEL = 76
    V_CSA = 80
    def kstep(ks, st, nxt, tail=None):
        b = FS[st]; mf = []
        for i in range(3):
            for tt in range(2):
                a = ACC + 16*(2*i+tt)
                mf.append(f"v_mfma_f32_32x32x16_bf16 {vr(a,16)}, {vr(b+8+4*i,4)}, {vr(b+4*tt,4)}, {vr(a,16)}")
            if ks % 2 == 0 and not opts.get("nocs"):
                mf.append(f"v_mfma_f32_16x16x32_bf16 {vr(V_CSA+4*i,4)}, {vr(V_SEL,4)}, {vr(b+8+4*i,4)}, {vr(V_CSA+4*i,4)}")
        fill = list(nxt) + list(tail or [])
        if opts.get("noreads"): fill = []
        per = 2; k = 0
        for m in mf:
            e(m)
            for x in fill[k:k+per]: e(x)
            k += per
        for x in fill[k:]: e(x)
    e("s_barrier")
    stamp(1)
    e(f"s_mov_b32 {sr(S_SLOT)}, 0")
    for x in set_addrs(): e(x)
    for x in reads(0, 0): e(x)
    e(f"s_mov_b32 {sr(S_IT)}, 0")
    A.label("L_G1")
    e("s_waitcnt lgkmcnt(0)")
    kstep(0, 0, reads(1, 1))
    e("s_waitcnt lgkmcnt(0)")
    kstep(1, 1, reads(2, 0))
    e(f"s_add_u32 {sr(S_SLOT)}, {sr(S_SLOT)}, {STAGE}")
    e(f"s_cmp_ge_u32 {sr(S_SLOT)}, {3*STAGE}")
    e(f"s_cselect_b32 {sr(S_SLOT)}, 0, {sr(S_SLOT)}")
    e("s_waitcnt lgkmcnt(0)")
    kstep(2, 0, reads(3, 1), tail=set_addrs())
    lnb = A.newlabel("NB")
    e(f"s_cmp_eq_u32 {sr(S_IT)}, 7")
    e(f"s_cbranch_scc1 {lnb}")
    e("s_waitcnt vmcnt(0) lgkmcnt(0)")
    if opts.get("barstamp"): stamp(24, S_IT)
    e("s_barrier")
    if opts.get("barstamp"): stamp(32, S_IT)
    kstep(3, 1, reads(0, 0))
    if opts.get("itstamp"): stamp(16, S_IT)
    e(f"s_add_u32 {sr(S_IT)}, {sr(S_IT)}, 1")
    e("s_branch L_G1")
    A.label(lnb)
    e("s_waitcnt lgkmcnt(0)")
    kstep(3, 1, [])
    stamp(2)
    e("s_nop 7")
    e(f"s_lshl_b32 {sr(S_T0)}, {sr(S_B)}, 1")
    e(f"s_add_u32 {sr(S_T0)}, {sr(S_T0)}, {sr(S_A)}")
    e(f"s_mul_i32 {sr(S_T0)}, {sr(S_T0)}, 384")
    e(f"s_add_u32 {sr(S_T0)}, {sr(S_T0)}, {L_CS}")
    e(f"v_lshlrev_b32 {vr(t0)}, 2, {L}")
    e(f"v_add_u32 {vr(t0)}, {sr(S_T0)}, {vr(t0)}")
    e(f"s_mov_b64 {sr(S_EX,2)}, exec")
    e("s_mov_b64 exec, 0xffff")
    for i in range(3):
        e(f"s_cmp_eq_u32 {sr(S_A)}, 0")
        e(f"s_cselect_b32 {sr(S_T1)}, {i*128}, {(2-i)*128}")
        e(f"v_add_u32 {vr(t1)}, {sr(S_T1)}, {vr(t0)}")
        e(f"ds_write_b32 {vr(t1)}, {vr(80+4*i)}")
        e(f"ds_write_b32 {vr(t1)}, {vr(80+4*i+1)} offset:64")
    e(f"s_mov_b64 exec, {sr(S_EX,2)}")
    e("s_waitcnt lgkmcnt(0)")
    e("s_barrier")
    stamp(3)
    if opts.get("g1only"):
        stamp_flush()
        e("s_endpgm")
    e("s_setprio 2")
    e(f"v_mov_b32 {vr(t0)}, {L_FLAG+32}")
    e(f"ds_read_b32 {vr(t1)}, {vr(t0)}")
    ST = 84
    e(f"v_and_b32 {vr(t2)}, 31, {L}")
    e(f"v_lshlrev_b32 {vr(t2)}, 3, {vr(t2)}")
    e(f"s_lshl_b32 {sr(S_T0)}, {sr(S_A)}, 9")
    e(f"s_add_u32 {sr(S_T0)}, {sr(S_T0)}, {L_STAT}")
    e(f"v_add_u32 {vr(t2)}, {sr(S_T0)}, {vr(t2)}")
    e(f"ds_read_b64 {vr(ST,2)}, {vr(t2)}")
    e(f"ds_read_b64 {vr(ST+2,2)}, {vr(t2)} offset:256")
    CGS = [16, 32, 48]; CG2 = [64, 96, 112]
    e(f"v_lshrrev_b32 {vr(t5)}, 5, {L}")
    e(f"v_lshlrev_b32 {vr(t5)}, 4, {vr(t5)}")
    e(f"s_mul_i32 {sr(S_T0)}, {sr(S_B)}, 768")
    e(f"s_add_u32 {sr(S_T0)}, {sr(S_T0)}, {L_CS}")
    e(f"v_add_u32 {vr(t5)}, {sr(S_T0)}, {vr(t5)}")
    for i in range(3):
        e(f"s_cmp_eq_u32 {sr(S_A)}, 0")
        e(f"s_cselect_b32 {sr(S_T1)}, {i*128}, {(2-i)*128}")
        e(f"v_add_u32 {vr(t0)}, {sr(S_T1)}, {vr(t5)}")
        for rp in range(4): e(f"ds_read_b128 {vr(CGS[i]+4*rp,4)}, {vr(t0)} offset:{32*rp}")
        for rp in range(4): e(f"ds_read_b128 {vr(CG2[i]+4*rp,4)}, {vr(t0)} offset:{384+32*rp}")
    e("s_waitcnt lgkmcnt(0)")
    e(f"v_readfirstlane_b32 {sr(S_NONCE)}, {vr(t1)}")
    C1 = -2.0 * 0.7978845608028654 * 0.044715 * 1.4426950408889634
    C0 = -2.0 * 0.7978845608028654 * 1.4426950408889634
    NMp, K1p, K0p, IRp = [144, 146], [148, 150], [152, 154], [156, 158]
    e(f"s_mov_b32 {sr(S_T4)}, {f2u(C1):#x}")
    e(f"s_mov_b32 {sr(S_T5)}, {f2u(C0):#x}")
    for tt in range(2):
        m, r = ST + 2*tt, ST + 2*tt + 1
        e(f"v_sub_f32 {vr(NMp[tt])}, 0, {vr(m)}")
        e(f"v_mul_f32 {vr(K0p[tt])}, {sr(S_T5)}, {vr(r)}")
        e(f"v_mul_f32 {vr(t3)}, {vr(r)}, {vr(r)}")
        e(f"v_mul_f32 {vr(t4)}, {vr(t3)}, {vr(r)}")
        e(f"v_mul_f32 {vr(K1p[tt])}, {sr(S_T4)}, {vr(t4)}")
        e(f"v_rcp_f32 {vr(IRp[tt])}, {vr(t3)}")
        e("s_nop 1")
        for rr in (NMp, K0p, K1p, IRp): e(f"v_mov_b32 {vr(rr[tt]+1)}, {vr(rr[tt])}")
    for i in range(3):
        for k in range(0, 16, 2): e(f"v_pk_add_f32 {vr(CGS[i]+k,2)}, {vr(CGS[i]+k,2)}, {vr(CG2[i]+k,2)}")
    TT = 128; HP = [136, 140]
    e(f"v_lshlrev_b32 {vr(t4)}, 4, {L}")
    e(f"s_lshl_b32 {sr(S_T1)}, {sr(S_RB)}, 2")
    e(f"s_lshl_b32 {sr(S_T2)}, {sr(S_A)}, 1")
    e(f"s_add_u32 {sr(S_T1)}, {sr(S_T1)}, {sr(S_T2)}")
    e(f"s_mul_i32 {sr(S_T1)}, {sr(S_T1)}, 86")
    e(f"s_lshr_b32 {sr(S_T2)}, {sr(S_F0)}, 4")
    e(f"s_add_u32 {sr(S_T1)}, {sr(S_T1)}, {sr(S_T2)}")
    e(f"s_add_u32 {sr(S_T1)}, {sr(S_T1)}, {sr(S_B)}")
    e(f"s_lshl_b32 {sr(S_T1)}, {sr(S_T1)}, 10")
    e(f"s_add_u32 {sr(S_G2)}, {sr(S_T1)}, {WS_HF}")
    for i in range(3):
        lsk = A.newlabel("EP")
        if i == 1: e(f"s_mov_b32 {sr(S_T0)}, 1")
        else:
            e(f"s_cmp_eq_u32 {sr(S_A)}, 0")
            e(f"s_cselect_b32 {sr(S_T0)}, {i}, {2-i}")
        e(f"s_cmp_ge_u32 {sr(S_T0)}, {sr(S_N32)}")
        e(f"s_cbranch_scc1 {lsk}")
        e(f"s_lshl_b32 {sr(S_T0)}, {sr(S_T0)}, 11")
        e(f"s_add_u32 {sr(S_T1)}, {sr(S_G2)}, {sr(S_T0)}")
        e(f"s_add_u32 {sr(S_T2)}, {sr(S_T1)}, {86*1024}")
        CG = CGS[i]
        for tt in range(2):
            a = ACC + 16*(2*i+tt)
            NM, K1, K0, IR = NMp[tt], K1p[tt], K0p[tt], IRp[tt]
            G = [a+2*k for k in range(4)]; U = [a+8+2*k for k in range(4)]
            cg = [CG+2*k for k in range(4)]; cu = [CG+8+2*k for k in range(4)]
            T = [TT+2*k for k in range(4)]
            for k in range(4): e(f"v_pk_fma_f32 {vr(G[k],2)}, {vr(NM,2)}, {vr(cg[k],2)}, {vr(G[k],2)}")
            for k in range(4): e(f"v_pk_mul_f32 {vr(T[k],2)}, {vr(G[k],2)}, {vr(G[k],2)}")
            for k in range(4): e(f"v_pk_fma_f32 {vr(T[k],2)}, {vr(T[k],2)}, {vr(K1,2)}, {vr(K0,2)}")
            for k in range(4): e(f"v_pk_mul_f32 {vr(T[k],2)}, {vr(T[k],2)}, {vr(G[k],2)}")
            for k in range(4):
                e(f"v_exp_f32 {vr(TT+2*k)}, {vr(TT+2*k)}")
                e(f"v_exp_f32 {vr(TT+2*k+1)}, {vr(TT+2*k+1)}")
                e(f"v_pk_fma_f32 {vr(U[k],2)}, {vr(NM,2)}, {vr(cu[k],2)}, {vr(U[k],2)}")
            for k in range(4): e(f"v_pk_fma_f32 {vr(T[k],2)}, {vr(T[k],2)}, {vr(IR,2)}, {vr(IR,2)}")
            for k in range(4):
                e(f"v_rcp_f32 {vr(TT+2*k)}, {vr(TT+2*k)}")
                e(f"v_rcp_f32 {vr(TT+2*k+1)}, {vr(TT+2*k+1)}")
                e(f"v_pk_mul_f32 {vr(G[k],2)}, {vr(G[k],2)}, {vr(U[k],2)}")
            for k in range(4): e(f"v_pk_mul_f32 {vr(G[k],2)}, {vr(G[k],2)}, {vr(T[k],2)}")
            for k in range(4): e(f"v_cvt_pk_bf16_f32 {vr(HP[tt]+k)}, {vr(G[k])}, {vr(G[k]+1)}")
            A.vmem(f"buffer_store_dwordx4 {vr(HP[tt],4)}, {vr(t4)}, {sr(SRD_WS,4)}, {sr(S_T1 if tt == 0 else S_T2)} offen sc0 sc1", "hst")
        A.label(lsk)
    stamp(4)
    e(f"s_lshl_b32 {sr(S_T0)}, {sr(S_WAVE)}, 2")
    e(f"s_add_u32 {sr(S_T0)}, {sr(S_T0)}, {L_FLAG+48}")
    e(f"v_mov_b32 {vr(t0)}, {sr(S_T0)}")
    e(f"v_mov_b32 {vr(t1)}, 1")
    e(f"ds_write_b32 {vr(t0)}, {vr(t1)}")
    GACC = 160; PH = 8; GH = 16; GW = 80
    GACC = 176
    GW = 80
    GA = [168, 240]
    V_AR = 248
    V_HL, V_DO = 254, 255
    S_KU0, S_KUN, S_RA, S_RBB, S_RC, S_H0 = S_G0, S_G1, S_G2, S_G3, S_G4, S_G5
    S_H1, S_OOB, S_DSO, S_ROT, S_HB = S_C0, S_C1, S_X0, S_X1, S_X2
    e(f"s_mul_i32 {sr(S_ROT)}, {sr(S_J)}, {opts.get('rot', 3)}")
    ku_start(S_KU0, S_WAVE)
    e(f"s_cmp_lt_u32 {sr(S_WAVE)}, 2")
    e(f"s_cselect_b32 {sr(S_KUN)}, 22, 21")
    ring_bases(S_WAVE, S_RA, S_RBB, S_RC)
    wd_voffset(V_DO)
    e(f"v_lshrrev_b32 {vr(t0)}, 5, {L}")
    e(f"v_bfe_u32 {vr(t1)}, {L}, 2, 2")
    e(f"v_lshl_add_u32 {vr(t0)}, {vr(t0)}, 2, {vr(t1)}")
    e(f"v_lshlrev_b32 {vr(t0)}, 7, {vr(t0)}")
    e(f"v_bfe_u32 {vr(t2)}, {L}, 4, 1")
    e(f"v_bfe_u32 {vr(t3)}, {L}, 1, 1")
    e(f"v_lshl_add_u32 {vr(t2)}, {vr(t2)}, 1, {vr(t3)}")
    e(f"v_lshlrev_b32 {vr(t2)}, 4, {vr(t2)}")
    e(f"v_and_b32 {vr(t3)}, 1, {L}")
    e(f"v_lshl_add_u32 {vr(t2)}, {vr(t3)}, 3, {vr(t2)}")
    e(f"v_add_u32 {vr(t0)}, {vr(t0)}, {vr(t2)}")
    e(f"v_bfe_u32 {vr(t1)}, {L}, 3, 1")
    e(f"v_lshlrev_b32 {vr(t1)}, 6, {vr(t1)}")
    e(f"v_add_u32 {vr(t2)}, {vr(t0)}, {vr(t1)}")
    e(f"v_xor_b32 {vr(t1)}, 64, {vr(t1)}")
    e(f"v_add_u32 {vr(t3)}, {vr(t0)}, {vr(t1)}")
    for bi, sb in enumerate((S_RA, S_RBB, S_RC)):
        e(f"v_add_u32 {vr(V_AR+2*bi)}, {sr(sb)}, {vr(t2)}")
        e(f"v_add_u32 {vr(V_AR+2*bi+1)}, {sr(sb)}, {vr(t3)}")
    e(f"v_lshlrev_b32 {vr(V_HL)}, 4, {L}")
    e(f"s_mov_b32 {sr(S_OOB)}, 0x20000000")
    e("s_waitcnt vmcnt(0)")
    e(f"s_lshl_b32 {sr(S_T0)}, {sr(S_RB)}, 8")
    e(f"s_lshl_b32 {sr(S_T1)}, {sr(S_CP)}, 4")
    e(f"s_lshl_b32 {sr(S_T2)}, {sr(S_WAVE)}, 2")
    e(f"s_add_u32 {sr(S_T0)}, {sr(S_T0)}, {sr(S_T1)}")
    e(f"s_add_u32 {sr(S_T0)}, {sr(S_T0)}, {sr(S_T2)}")
    e(f"s_add_u32 {sr(S_T0)}, {sr(S_T0)}, {WS_FL+FL_H}")
    flag_set(S_T0, t0)
    stamp(5)
    e(f"s_lshl_b32 {sr(S_T0)}, {sr(S_WAVE)}, 2")
    e(f"s_add_u32 {sr(S_T0)}, {sr(S_T0)}, {L_FLAG+16}")
    lds_spin(S_T0, t0, t1)
    def afrag_reads(n, dst):
        bi, off = ring_off(n); out = []
        for dt in range(2):
            for h in range(2):
                out.append(f"ds_read_b64_tr_b16 {vr(dst+4*dt+2*h,2)}, {vr(V_AR+2*bi+dt)} offset:{off+1024*h}")
        return out
    for n in range(NR):
        for x in afrag_reads(n, GW+8*n): e(x)
        if n % 3 == 2: e("s_waitcnt lgkmcnt(4)")
    e("s_waitcnt lgkmcnt(0)")
    for n in range(NR):
        bi, off = ring_off(n)
        sb = (S_RA, S_RBB, S_RC)[bi]
        wd_soff(NR + n, S_DSO, S_ROT, S_KUN, S_KU0, S_OOB)
        for a in range(2):
            e(f"s_add_u32 m0, {sr(sb)}, {off + 1024*a}")
            if a == 1: e(f"s_add_u32 {sr(S_DSO)}, {sr(S_DSO)}, 8192")
            else: e("s_nop 0")
            A.vmem(f"buffer_load_dwordx4 {vr(V_DO)}, {sr(SRD_WD,4)}, {sr(S_DSO)} offen lds", "WR2")
    for r in range(64): e(f"v_mov_b32 {vr(GACC+r)}, 0")
    stamp(6)
    e(f"s_lshr_b32 {sr(S_T0)}, {sr(S_I2)}, 1")
    e(f"s_lshl_b32 {sr(S_T0)}, {sr(S_T0)}, 8")
    e(f"s_add_u32 {sr(S_T0)}, {sr(S_T0)}, {WS_FL+FL_H}")
    lh1 = A.newlabel("HP"); lh2 = A.newlabel("HP")
    e(f"s_cmp_lg_u32 {sr(S_WAVE)}, 0")
    e(f"s_cbranch_scc1 {lh1}")
    flag_wait_blocking(t1, 1, S_T0, sleep=2)
    e(f"v_mov_b32 {vr(t0)}, {L_FLAG+72}")
    e(f"v_mov_b32 {vr(t1)}, 1")
    e(f"ds_write_b32 {vr(t0)}, {vr(t1)}")
    e(f"s_branch {lh2}")
    A.label(lh1)
    e(f"s_mov_b32 {sr(S_T0)}, {L_FLAG+72}")
    lds_spin(S_T0, t1, t0, sleep=1)
    e("s_waitcnt vmcnt(0)")
    A.label(lh2)
    stamp(7)
    e(f"s_lshl_b32 {sr(S_T0)}, {sr(S_I2)}, 1")
    e(f"s_mul_i32 {sr(S_T0)}, {sr(S_T0)}, 86")
    e(f"s_add_u32 {sr(S_T0)}, {sr(S_T0)}, {sr(S_KU0)}")
    e(f"s_lshl_b32 {sr(S_T0)}, {sr(S_T0)}, 10")
    e(f"s_add_u32 {sr(S_HB)}, {sr(S_T0)}, {WS_HF}")
    A.vm = []
    def hload(n):
        hb = GH + 8*(n % PH)
        unit_at(n, S_H0, S_ROT, S_KUN)
        e(f"s_cselect_b32 {sr(S_T5)}, 1, 0")
        e(f"s_lshl_b32 {sr(S_H0)}, {sr(S_H0)}, 10")
        e(f"s_add_u32 {sr(S_H0)}, {sr(S_H0)}, {sr(S_HB)}")
        e(f"s_cmp_eq_u32 {sr(S_T5)}, 1")
        e(f"s_cselect_b32 {sr(S_H0)}, {sr(S_H0)}, {sr(S_OOB)}")
        e(f"s_add_u32 {sr(S_H1)}, {sr(S_H0)}, {86*1024}")
        A.vmem(f"buffer_load_dwordx4 {vr(hb,4)}, {vr(V_HL)}, {sr(SRD_WS,4)}, {sr(S_H0)} offen{HSC}", f"H{n}")
        A.vmem(f"buffer_load_dwordx4 {vr(hb+4,4)}, {vr(V_HL)}, {sr(SRD_WS,4)}, {sr(S_H1)} offen{HSC}", f"H{n}")
    for n in range(PH): hload(n)
    for n in range(22):
        hb = GH + 8*(n % PH)
        if n < NR: aw = GW + 8*n
        else: aw = GA[n & 1]
        if n + 1 >= NR and n + 1 < 22:
            for x in afrag_reads(n + 1 - NR, GA[(n+1) & 1]): e(x)
        A.wait_vm(f"H{n}")
        if n >= NR: e("s_waitcnt lgkmcnt(4)" if n + 1 < 22 else "s_waitcnt lgkmcnt(0)")
        e(f"v_mfma_f32_32x32x16_bf16 {vr(GACC,16)}, {vr(aw,4)}, {vr(hb,4)}, {vr(GACC,16)}")
        e(f"v_mfma_f32_32x32x16_bf16 {vr(GACC+16,16)}, {vr(aw,4)}, {vr(hb+4,4)}, {vr(GACC+16,16)}")
        e(f"v_mfma_f32_32x32x16_bf16 {vr(GACC+32,16)}, {vr(aw+4,4)}, {vr(hb,4)}, {vr(GACC+32,16)}")
        e(f"v_mfma_f32_32x32x16_bf16 {vr(GACC+48,16)}, {vr(aw+4,4)}, {vr(hb+4,4)}, {vr(GACC+48,16)}")
        if n + PH < 22: hload(n + PH)
        if n == opts.get("yun", 12):
            e(f"v_mov_b32 {vr(t0)}, {L_FLAG+64}")
            e(f"v_mov_b32 {vr(t1)}, 1")
            e(f"ds_write_b32 {vr(t0)}, {vr(t1)}")
        if opts.get("g2stamp") and n % 2 == 1: stamp(32 + n // 2)
    stamp(8)
    e("s_nop 7")
    e(f"v_and_b32 {vr(t0)}, 31, {L}")
    e(f"v_lshrrev_b32 {vr(t1)}, 5, {L}")
    e(f"v_mul_u32_u24 {vr(t0)}, 272, {vr(t0)}")
    e(f"v_lshl_add_u32 {vr(t0)}, {vr(t1)}, 4, {vr(t0)}")
    e(f"v_add_u32 {vr(t1)}, {sr(S_RBB)}, {vr(t0)}")
    e(f"v_add_u32 {vr(t0)}, {sr(S_RA)}, {vr(t0)}")
    for dt in range(2):
        for tt in range(2):
            for rp in range(4):
                a = GACC + 16*(2*dt+tt) + 4*rp
                e(f"ds_write_b128 {vr(t0 if tt == 0 else t1)}, {vr(a,4)} offset:{dt*128 + rp*32}")
    e("s_branch L_FINAL")

    A.label("L_HELPER")
    A.vm = ["code"]
    if opts.get("g1only"):
        for _ in range(10): e("s_barrier")
        e("s_endpgm")
    S_LW = S_A
    e(f"s_setprio {opts.get('hprio', 0)}")
    e(f"s_sub_u32 {sr(S_LW)}, {sr(S_WAVE)}, 4")
    V_XO, V_WO, V_L16, V_TO, V_DO2 = 16, 18, 21, 22, 23
    S_XSO, S_WSO, S_M0X, S_M0W = S_G0, S_G1, S_G3, S_G4
    BAD = 0x7fffff00
    e(f"v_lshlrev_b32 {vr(V_L16)}, 4, {L}")
    loader_setup(S_LW, V_XO, V_WO, S_M0X, S_M0W)
    S_ROW = S_G5
    e(f"s_lshl_b32 {sr(S_ROW)}, {sr(S_I2)}, 6")
    e(f"s_lshl_b32 {sr(S_T0)}, {sr(S_J)}, 3")
    e(f"s_add_u32 {sr(S_ROW)}, {sr(S_ROW)}, {sr(S_T0)}")
    e(f"s_lshl_b32 {sr(S_T0)}, {sr(S_LW)}, 1")
    e(f"s_add_u32 {sr(S_ROW)}, {sr(S_ROW)}, {sr(S_T0)}")
    e(f"v_lshrrev_b32 {vr(t0)}, 3, {L}")
    e(f"v_and_b32 {vr(t1)}, 7, {L}")
    e(f"v_lshlrev_b32 {vr(t1)}, 4, {vr(t1)}")
    e(f"v_lshl_add_u32 {vr(t1)}, {vr(t0)}, 10, {vr(t1)}")
    e(f"s_lshl_b32 {sr(S_T1)}, {sr(S_J)}, 7")
    e(f"v_add_u32 {vr(V_TO)}, {sr(S_T1)}, {vr(t1)}")
    wd_voffset(V_DO2)
    e("s_waitcnt lgkmcnt(0)")
    srd(SRD_Q, 0, 2 << 20)
    srd_w_select(S_LW)
    stamp(0)
    def dma_stage(s): dma_stage_g(s, V_XO, V_WO, S_M0X, S_M0W, S_XSO, S_WSO)
    SX = 24; V_NL = 33; V_SL = 116; V_SLA = 34; V_FL = 114; V_DUM = 32
    e(f"s_lshl_b32 {sr(S_T0)}, {sr(S_ROW)}, 10")
    A.vmem(f"buffer_load_dwordx4 {vr(SX,4)}, {vr(V_L16)}, {sr(SRD_Q,4)}, {sr(S_T0)} offen", "SX")
    A.vmem(f"buffer_load_dwordx4 {vr(SX+4,4)}, {vr(V_L16)}, {sr(SRD_Q,4)}, {sr(S_T0)} offen offset:1024", "SX")
    srd(SRD_DBG, 11, 256)
    lnn = A.newlabel("NN")
    e(f"s_cmp_lg_u32 {sr(S_WG)}, 0")
    e(f"s_cbranch_scc1 {lnn}")
    e(f"s_cmp_lg_u32 {sr(S_WAVE)}, 4")
    e(f"s_cbranch_scc1 {lnn}")
    e(f"s_memrealtime {sr(S_T0,2)}")
    e("s_waitcnt lgkmcnt(0)")
    e(f"s_or_b32 {sr(S_T0)}, {sr(S_T0)}, 1")
    e(f"v_mov_b32 {vr(t0)}, {sr(S_T0)}")
    e(f"buffer_store_dword {vr(t0)}, off, {sr(SRD_DBG,4)}, 0 sc0 sc1")
    A.label(lnn)
    e("s_barrier")
    dma_stage(0)
    srd(SRD_K, 1, 2 << 20); srd(SRD_V, 2, 2 << 20); srd(SRD_AUX, 3, 4096)
    srd(SRD_WS, 12, 0x10000000); srd(SRD_WD, 9, WBYTES)
    def tiles():
        e(f"s_lshl_b32 {sr(S_T0)}, {sr(S_I2)}, 16")
        for gi in range(3):
            lsk = None
            if gi == 2:
                lsk = A.newlabel("KT")
                e(f"s_cmp_lg_u32 {sr(S_LW)}, 0")
                e(f"s_cbranch_scc1 {lsk}")
            e(f"s_add_u32 {sr(S_T1)}, {sr(S_LW)}, {4*gi}")
            e(f"s_lshl_b32 {sr(S_T2)}, {sr(S_T1)}, 13")
            e(f"s_add_u32 {sr(S_T2)}, {sr(S_T2)}, {sr(S_T0)}")
            e(f"s_cmp_lt_u32 {sr(S_T2)}, 8192")
            e(f"s_cselect_b32 {sr(S_T3)}, 0x40002000, {sr(S_T2)}")
            e(f"s_sub_u32 {sr(S_T3)}, {sr(S_T3)}, 8192")
            e(f"s_lshl_b32 {sr(S_T1)}, {sr(S_T1)}, 10")
            e(f"s_add_u32 m0, {sr(S_T1)}, {L_KT}")
            e("s_nop 0")
            e(f"buffer_load_dwordx4 {vr(V_TO)}, {sr(SRD_K,4)}, {sr(S_T3)} offen lds")
            if gi == 2: A.label(lsk)
        lsk = A.newlabel("SH")
        e(f"s_cmp_lg_u32 {sr(S_LW)}, 1")
        e(f"s_cbranch_scc1 {lsk}")
        e(f"s_lshl_b32 {sr(S_T1)}, {sr(S_J)}, 9")
        e(f"s_mov_b32 m0, {L_SH}")
        e(f"v_cmp_gt_u32 vcc, 32, {L}")
        e(f"v_mov_b32 {vr(t1)}, {BAD}")
        e("s_nop 0")
        e(f"v_cndmask_b32 {vr(t1)}, {vr(t1)}, {vr(V_L16)}, vcc")
        e(f"buffer_load_dwordx4 {vr(t1)}, {sr(SRD_AUX,4)}, {sr(S_T1)} offen lds")
        A.label(lsk)
        A.vm += ["P", "P"]
        for gi in range(2):
            e(f"s_add_u32 {sr(S_T1)}, {sr(S_LW)}, {4*gi}")
            e(f"s_lshl_b32 {sr(S_T2)}, {sr(S_T1)}, 13")
            e(f"s_add_u32 {sr(S_T2)}, {sr(S_T2)}, {sr(S_T0)}")
            e(f"s_lshl_b32 {sr(S_T1)}, {sr(S_T1)}, 10")
            e(f"s_add_u32 m0, {sr(S_T1)}, {L_VT}")
            e("s_nop 0")
            A.vmem(f"buffer_load_dwordx4 {vr(V_TO)}, {sr(SRD_V,4)}, {sr(S_T2)} offen lds", "P")
    S_CIDX = S_C1
    HK = [88, 96]; HPB = 112
    def hk_loads():
        e(f"s_lshr_b32 {sr(S_CIDX)}, {sr(S_LW)}, 1")
        e(f"s_lshl_b32 {sr(S_T0)}, {sr(S_WG)}, 1")
        e(f"s_add_u32 {sr(S_T0)}, {sr(S_T0)}, {sr(S_CIDX)}")
        e(f"s_lshl_b32 {sr(S_T0)}, {sr(S_T0)}, 12")
        e(f"s_add_u32 {sr(SRD_SK)}, {sr(P+8)}, {sr(S_T0)}")
        e(f"s_addc_u32 {sr(SRD_SK+1)}, {sr(P+9)}, 0")
        e(f"s_mov_b32 {sr(SRD_SK+2)}, 4096")
        e(f"s_mov_b32 {sr(SRD_SK+3)}, 0x20000")
        e(f"s_and_b32 {sr(S_T1)}, {sr(S_LW)}, 1")
        e(f"s_lshl_b32 {sr(S_T1)}, {sr(S_T1)}, 11")
        for y in range(2):
            e(f"s_add_u32 {sr(S_T2)}, {sr(S_T1)}, {1024*y}")
            A.vmem(f"buffer_load_dwordx4 {vr(HK[y],4)}, {vr(V_L16)}, {sr(SRD_SK,4)}, {sr(S_T2)} offen", "HK")
            A.vmem(f"buffer_load_dwordx2 {vr(HK[y]+4,2)}, {vr(V_L16)}, {sr(SRD_SK,4)}, {sr(S_T2)} offen offset:16", "HK")
        e(f"v_cmp_eq_u32 vcc, 1, {L}")
        e(f"v_mov_b32 {vr(t5)}, 0x10000")
        e("s_nop 0")
        e(f"v_cndmask_b32 {vr(t5)}, {vr(t5)}, 0, vcc")
        A.vmem(f"buffer_load_dwordx2 {vr(HPB,2)}, {vr(t5)}, {sr(SRD_SK,4)}, 0 offen", "HK")
    def wd_touch():
        e(f"s_mul_i32 {sr(S_T0)}, {sr(S_WG)}, {43*128}")
        e(f"s_mul_i32 {sr(S_T1)}, {sr(S_LW)}, 11")
        e(f"v_add_u32 {vr(t4)}, {sr(S_T1)}, {L}")
        e(f"v_cmp_gt_u32 vcc, 11, {L}")
        e(f"v_lshlrev_b32 {vr(t4)}, 7, {vr(t4)}")
        e(f"v_add_u32 {vr(t4)}, {sr(S_T0)}, {vr(t4)}")
        e(f"v_mov_b32 {vr(t5)}, {BAD}")
        e(f"v_cndmask_b32 {vr(t4)}, {vr(t5)}, {vr(t4)}, vcc")
        A.vmem(f"buffer_load_dword {vr(V_DUM)}, {vr(t4)}, {sr(SRD_WD,4)}, 0 offen", "T2")
    tiles()
    A.vmem(f"buffer_load_dword {vr(V_NL)}, off, {sr(SRD_DBG,4)}, 0 sc1", "NL")
    e(f"v_lshlrev_b32 {vr(t0)}, 2, {L}")
    e(f"v_add_u32 {vr(t0)}, {L_FLAG}, {vr(t0)}")
    e(f"v_mov_b32 {vr(t1)}, 0")
    e(f"s_mov_b64 {sr(S_EX,2)}, exec")
    e("s_mov_b64 exec, 0x3fffff")
    e(f"ds_write_b32 {vr(t0)}, {vr(t1)}")
    e(f"s_mov_b64 exec, {sr(S_EX,2)}")
    A.wait_vm("SX")
    XU = 120; SA = 136
    for rr in range(2):
        for k in range(4):
            e(f"v_lshlrev_b32 {vr(XU+8*rr+2*k)}, 16, {vr(SX+4*rr+k)}")
            e(f"v_and_b32 {vr(XU+8*rr+2*k+1)}, 0xffff0000, {vr(SX+4*rr+k)}")
    def wave_reduce(regs):
        for sh in ("row_shr:1", "row_shr:2", "row_shr:4", "row_shr:8"):
            for r in regs: e(f"v_add_f32_dpp {vr(r)}, {vr(r)}, {vr(r)} {sh} row_mask:0xf bank_mask:0xf bound_ctrl:0")
            e("s_nop 0")
        for r in regs: e(f"v_add_f32_dpp {vr(r)}, {vr(r)}, {vr(r)} row_bcast:15 row_mask:0xa bank_mask:0xf")
        e("s_nop 0")
        for r in regs: e(f"v_add_f32_dpp {vr(r)}, {vr(r)}, {vr(r)} row_bcast:31 row_mask:0xc bank_mask:0xf")
        e("s_nop 1")
    for k in range(1, 8):
        for rr in range(2):
            b = XU + 8*rr
            if k == 1: e(f"v_add_f32 {vr(SA+rr)}, {vr(b)}, {vr(b+1)}")
            else: e(f"v_add_f32 {vr(SA+rr)}, {vr(SA+rr)}, {vr(b+k)}")
    e("s_nop 1")
    wave_reduce([SA, SA+1])
    e(f"v_readlane_b32 {sr(S_T0)}, {vr(SA)}, 63")
    e(f"v_readlane_b32 {sr(S_T1)}, {vr(SA+1)}, 63")
    e(f"v_mov_b32 {vr(SA+2)}, 0x3b000000")
    e("s_nop 0")
    e(f"v_mul_f32 {vr(SA+4)}, {sr(S_T0)}, {vr(SA+2)}")
    e(f"v_mul_f32 {vr(SA+5)}, {sr(S_T1)}, {vr(SA+2)}")
    for k in range(8):
        for rr in range(2): e(f"v_sub_f32 {vr(XU+8*rr+k)}, {vr(XU+8*rr+k)}, {vr(SA+4+rr)}")
    for k in range(8):
        for rr in range(2):
            b = XU + 8*rr
            if k == 0: e(f"v_mul_f32 {vr(SA+rr)}, {vr(b)}, {vr(b)}")
            else: e(f"v_fma_f32 {vr(SA+rr)}, {vr(b+k)}, {vr(b+k)}, {vr(SA+rr)}")
    e("s_nop 1")
    wave_reduce([SA, SA+1])
    e(f"v_readlane_b32 {sr(S_T0)}, {vr(SA)}, 63")
    e(f"v_readlane_b32 {sr(S_T1)}, {vr(SA+1)}, 63")
    e(f"v_cmp_eq_u32 vcc, 1, {L}")
    e("s_nop 0")
    e(f"v_mov_b32 {vr(SA)}, {sr(S_T0)}")
    e(f"v_mov_b32 {vr(SA+1)}, {sr(S_T1)}")
    e(f"v_cndmask_b32 {vr(SA)}, {vr(SA)}, {vr(SA+1)}, vcc")
    e(f"v_cndmask_b32 {vr(SA+4)}, {vr(SA+4)}, {vr(SA+5)}, vcc")
    e(f"v_mul_f32 {vr(SA)}, {vr(SA)}, {vr(SA+2)}")
    e(f"v_cvt_pk_bf16_f32 {vr(SA)}, {vr(SA)}, {vr(SA)}")
    e(f"v_lshlrev_b32 {vr(SA)}, 16, {vr(SA)}")
    e(f"v_add_f32 {vr(SA)}, 0x3727c5ac, {vr(SA)}")
    e(f"v_cvt_pk_bf16_f32 {vr(SA)}, {vr(SA)}, {vr(SA)}")
    e(f"v_lshlrev_b32 {vr(SA)}, 16, {vr(SA)}")
    e(f"v_sqrt_f32 {vr(SA)}, {vr(SA)}")
    e("s_nop 0")
    V_STP = 110
    e(f"v_cvt_pk_bf16_f32 {vr(V_STP)}, {vr(SA+4)}, {vr(SA)}")
    A.wait_vm("S0")
    e("s_waitcnt lgkmcnt(0)")
    e("s_barrier")
    stamp(1)
    def it_end(it, stages, waits=(), job=None, post=()):
        if opts.get("barstamp"): stamp(24 + it)
        if waits: A.wait_vm(*waits)
        e("s_waitcnt lgkmcnt(0)")
        if opts.get("barstamp"): stamp(32 + it)
        e("s_barrier")
        if opts.get("barstamp"): stamp(40 + it)
        for st_ in stages: st_()
        if job is not None: job()
        for p_ in post: p_()
        if opts.get("barstamp"): stamp(48 + it)
    dma_stage(2)
    hk_loads()
    it_end(0, [lambda: dma_stage(3)], waits=("P", "NL"))
    lok = A.newlabel("NOK"); lre = A.newlabel("NRE")
    e(f"s_mov_b32 {sr(S_T3)}, 0x40000")
    A.label(lre)
    e(f"v_readfirstlane_b32 {sr(S_NONCE)}, {vr(V_NL)}")
    e("s_nop 3")
    e(f"s_cmp_lg_u32 {sr(S_NONCE)}, 0")
    e(f"s_cbranch_scc1 {lok}")
    e(f"s_sub_u32 {sr(S_T3)}, {sr(S_T3)}, 1")
    e(f"s_cmp_eq_u32 {sr(S_T3)}, 0")
    e(f"s_cbranch_scc1 {lok}")
    e("s_sleep 2")
    e(f"buffer_load_dword {vr(V_NL)}, off, {sr(SRD_DBG,4)}, 0 sc1")
    e("s_waitcnt vmcnt(0)")
    e(f"s_branch {lre}")
    A.label(lok)
    e(f"v_mov_b32 {vr(t0)}, {L_FLAG+32}")
    e(f"v_mov_b32 {vr(V_STP+1)}, {sr(S_NONCE)}")
    e(f"ds_write_b32 {vr(t0)}, {vr(V_STP+1)}")
    e(f"s_lshl_b32 {sr(S_T0)}, {sr(S_ROW)}, 3")
    e(f"s_add_u32 {sr(S_T0)}, {sr(S_T0)}, {WS_ST}")
    e(f"v_lshlrev_b32 {vr(t0)}, 3, {L}")
    e(f"s_mov_b64 {sr(S_EX,2)}, exec")
    e("s_mov_b64 exec, 3")
    A.vmem(f"buffer_store_dwordx2 {vr(V_STP,2)}, {vr(t0)}, {sr(SRD_WS,4)}, {sr(S_T0)} offen sc0 sc1", "STS")
    e(f"s_mov_b64 exec, {sr(S_EX,2)}")
    KV = 120; T = 128; PS = 40; PKB = 56; PVB = 72; PW = 144
    e(f"v_and_b32 {vr(t1)}, 7, {L}")
    e(f"v_lshlrev_b32 {vr(t2)}, 6, {vr(t1)}")
    e(f"v_add_u32 {vr(t2)}, {L_SH}, {vr(t2)}")
    for i in range(4): e(f"ds_read_b128 {vr(PS+4*i,4)}, {vr(t2)} offset:{16*i}")
    e(f"v_lshrrev_b32 {vr(24)}, 3, {L}")
    e(f"s_lshl_b32 {sr(S_T0)}, {sr(S_LW)}, 4")
    e(f"v_add_u32 {vr(24)}, {sr(S_T0)}, {vr(24)}")
    e(f"v_lshlrev_b32 {vr(25)}, 7, {vr(24)}")
    e(f"v_lshl_add_u32 {vr(25)}, {vr(t1)}, 4, {vr(25)}")
    e(f"v_add_u32 {vr(26)}, {L_KT + 5*128}, {vr(25)}")
    e(f"v_add_u32 {vr(25)}, {L_VT}, {vr(25)}")
    e(f"v_mul_u32_u24 {vr(24)}, 144, {vr(24)}")
    e(f"v_lshl_add_u32 {vr(24)}, {vr(t1)}, 4, {vr(24)}")
    e(f"v_add_u32 {vr(24)}, {L_PT}, {vr(24)}")
    e("s_waitcnt lgkmcnt(0)")
    for c in range(8):
        sw = PS + 4*(c >> 1) + 2*(c & 1)
        e(f"v_lshlrev_b32 {vr(PW+4*c)}, 16, {vr(sw)}")
        e(f"v_and_b32 {vr(PW+4*c+1)}, 0xffff0000, {vr(sw)}")
        e(f"v_lshlrev_b32 {vr(PW+4*c+2)}, 16, {vr(sw+1)}")
        e(f"v_and_b32 {vr(PW+4*c+3)}, 0xffff0000, {vr(sw+1)}")
    def prep_half(x, hf):
        if hf == 0:
            for d in range(4): e(f"ds_read_b128 {vr(PKB+4*d,4)}, {vr(26)} offset:{(3-d)*128 + 1024*x}")
            e(f"ds_read_b128 {vr(PVB,4)}, {vr(25)} offset:{1024*x}")
            e("s_waitcnt lgkmcnt(0)")
        for c in range(4*hf, 4*hf+4):
            dw = c >> 1; hi = c & 1
            def unp(dst, src):
                if hi: e(f"v_and_b32 {vr(dst)}, 0xffff0000, {vr(src)}")
                else:  e(f"v_lshlrev_b32 {vr(dst)}, 16, {vr(src)}")
            for d in range(4): unp(T+d, PKB + 4*d + dw)
            unp(T+8, PVB + dw)
            e(f"v_mul_f32 {vr(KV+c)}, {vr(T+3)}, {vr(PW+4*c+3)}")
            e(f"v_fma_f32 {vr(KV+c)}, {vr(T+2)}, {vr(PW+4*c+2)}, {vr(KV+c)}")
            e(f"v_fma_f32 {vr(KV+c)}, {vr(T+1)}, {vr(PW+4*c+1)}, {vr(KV+c)}")
            e(f"v_fma_f32 {vr(KV+c)}, {vr(T+0)}, {vr(PW+4*c+0)}, {vr(KV+c)}")
            e(f"v_mul_f32 {vr(KV+c)}, {vr(KV+c)}, {vr(T+8)}")
        if hf == 1:
            for k in range(4): e(f"v_cvt_pk_bf16_f32 {vr(T+12+k)}, {vr(KV+2*k)}, {vr(KV+2*k+1)}")
            e(f"ds_write_b128 {vr(24)}, {vr(T+12,4)} offset:{8*144*x}")
    it_end(1, [lambda: dma_stage(4)], waits=("S2",), job=lambda: prep_half(0, 0))
    it_end(2, [lambda: dma_stage(5)], waits=("S3",), job=lambda: prep_half(0, 1), post=(wd_touch,))
    it_end(3, [lambda: dma_stage(6)], waits=("S4",), job=lambda: prep_half(1, 0))
    S_STO = S_X3
    e(f"s_lshl_b32 {sr(S_STO)}, {sr(S_RB)}, 7")
    e(f"s_lshl_b32 {sr(S_T1)}, {sr(S_LW)}, 5")
    e(f"s_add_u32 {sr(S_STO)}, {sr(S_STO)}, {sr(S_T1)}")
    e(f"s_lshl_b32 {sr(S_STO)}, {sr(S_STO)}, 3")
    e(f"s_add_u32 {sr(S_STO)}, {sr(S_STO)}, {WS_ST}")
    e(f"v_and_b32 {vr(V_SLA)}, 31, {L}")
    e(f"v_lshlrev_b32 {vr(V_SLA)}, 3, {vr(V_SLA)}")
    A.vmem(f"buffer_load_dwordx2 {vr(V_SL,2)}, {vr(V_SLA)}, {sr(SRD_WS,4)}, {sr(S_STO)} offen sc1", "SL")
    it_end(4, [lambda: dma_stage(7)], waits=("S5",), job=lambda: prep_half(1, 1))
    it_end(5, [], waits=("S6",))
    for x in range(2):
        e(f"v_and_b32 {vr(t0)}, 3, {L}")
        e(f"v_bfe_u32 {vr(t1)}, {L}, 4, 1")
        e(f"v_lshl_add_u32 {vr(t0)}, {vr(t1)}, 2, {vr(t0)}")
        e(f"v_lshlrev_b32 {vr(t0)}, 3, {vr(t0)}")
        e(f"v_bfe_u32 {vr(t1)}, {L}, 2, 2")
        e(f"v_sub_u32 {vr(t0)}, {vr(t0)}, {vr(t1)}")
        e(f"v_add_u32 {vr(t0)}, 3, {vr(t0)}")
        e(f"v_mul_u32_u24 {vr(t0)}, 144, {vr(t0)}")
        e(f"v_lshrrev_b32 {vr(t1)}, 5, {L}")
        e(f"v_lshlrev_b32 {vr(t1)}, 3, {vr(t1)}")
        e(f"s_lshl_b32 {sr(S_T0)}, {sr(S_LW)}, 5")
        e(f"s_add_u32 {sr(S_T0)}, {sr(S_T0)}, {L_PT + 16*x}")
        e(f"v_add3_u32 {vr(t0)}, {vr(t0)}, {vr(t1)}, {sr(S_T0)}")
        e(f"ds_read_b64_tr_b16 {vr(T+4*x,2)}, {vr(t0)} offset:{4*144}")
        e(f"ds_read_b64_tr_b16 {vr(T+4*x+2,2)}, {vr(t0)}")
    e(f"v_and_b32 {vr(t1)}, 3, {L}")
    e(f"v_lshrrev_b32 {vr(t2)}, 5, {L}")
    e(f"v_lshl_add_u32 {vr(t1)}, {vr(t2)}, 2, {vr(t1)}")
    e(f"v_lshlrev_b32 {vr(t1)}, 12, {vr(t1)}")
    e(f"v_bfe_u32 {vr(t2)}, {L}, 2, 3")
    e(f"v_lshlrev_b32 {vr(t2)}, 4, {vr(t2)}")
    e(f"v_sub_u32 {vr(t1)}, {vr(t1)}, {vr(t2)}")
    e(f"v_add_u32 {vr(t1)}, 4080, {vr(t1)}")
    e(f"s_lshl_b32 {sr(S_T0)}, {sr(S_J)}, 6")
    e(f"s_lshl_b32 {sr(S_T1)}, {sr(S_LW)}, 4")
    e(f"s_add_u32 {sr(S_T0)}, {sr(S_T0)}, {sr(S_T1)}")
    e(f"s_lshl_b32 {sr(S_T0)}, {sr(S_T0)}, 12")
    e(f"s_lshl_b32 {sr(S_T1)}, {sr(S_I2)}, 7")
    e(f"s_sub_u32 {sr(S_T0)}, {sr(S_T0)}, {sr(S_T1)}")
    e(f"v_add_u32 {vr(t1)}, {sr(S_T0)}, {vr(t1)}")
    e(f"v_add_u32 {vr(t2)}, {8*4096}, {vr(t1)}")
    e("s_waitcnt lgkmcnt(0)")
    A.vmem(f"buffer_store_dwordx4 {vr(T,4)}, {vr(t1)}, {sr(SRD_WS,4)}, 0 offen sc0 sc1", "KVS")
    A.vmem(f"buffer_store_dwordx4 {vr(T+4,4)}, {vr(t2)}, {sr(SRD_WS,4)}, 0 offen sc0 sc1", "KVS")
    A.wait_vm("SL")
    lsr = A.newlabel("SR"); lso = A.newlabel("SO")
    e(f"s_mov_b32 {sr(S_T3)}, 0x40000")
    A.label(lsr)
    e(f"v_cmp_eq_u32 vcc, {sr(S_NONCE)}, {vr(V_SL+1)}")
    e("s_nop 1")
    e("s_cmp_eq_u64 vcc, -1")
    e(f"s_cbranch_scc1 {lso}")
    e(f"s_sub_u32 {sr(S_T3)}, {sr(S_T3)}, 1")
    e(f"s_cmp_eq_u32 {sr(S_T3)}, 0")
    e(f"s_cbranch_scc1 {lso}")
    e("s_sleep 2")
    e(f"buffer_load_dwordx2 {vr(V_SL,2)}, {vr(V_SLA)}, {sr(SRD_WS,4)}, {sr(S_STO)} offen sc1")
    e("s_waitcnt vmcnt(0)")
    e(f"s_branch {lsr}")
    A.label(lso)
    e(f"v_and_b32 {vr(t1)}, 0xffff0000, {vr(V_SL)}")
    e(f"v_lshlrev_b32 {vr(V_SL)}, 16, {vr(V_SL)}")
    e(f"v_rcp_f32 {vr(V_SL+1)}, {vr(t1)}")
    e(f"s_lshl_b32 {sr(S_T0)}, {sr(S_LW)}, 8")
    e(f"s_add_u32 {sr(S_T0)}, {sr(S_T0)}, {L_STAT}")
    e(f"v_add_u32 {vr(t0)}, {sr(S_T0)}, {vr(V_SLA)}")
    e("s_nop 0")
    e(f"ds_write_b64 {vr(t0)}, {vr(V_SL,2)}")
    it_end(6, [], waits=("S7",))
    e(f"s_mul_i32 {sr(S_T0)}, {sr(S_CIDX)}, {HCH}")
    e(f"s_add_u32 {sr(S_T0)}, {sr(S_T0)}, {L_HANK}")
    e(f"s_and_b32 {sr(S_T1)}, {sr(S_LW)}, 1")
    e(f"s_lshl_b32 {sr(S_T1)}, {sr(S_T1)}, 11")
    e(f"s_add_u32 {sr(S_T1)}, {sr(S_T1)}, {sr(S_T0)}")
    e(f"v_add_u32 {vr(27)}, {sr(S_T0)}, {vr(V_L16)}")
    e(f"v_add_u32 {vr(28)}, {sr(S_T1)}, {vr(V_L16)}")
    def hk(w, addr, extra):
        O1, O2, O3 = 124, 128, 132
        for j in range(4):
            e(f"v_alignbit_b32 {vr(O1+j)}, {vr(w+j+1)}, {vr(w+j)}, 16")
            e(f"v_mov_b32 {vr(O2+j)}, {vr(w+j+1)}")
            e(f"v_alignbit_b32 {vr(O3+j)}, {vr(w+j+2)}, {vr(w+j+1)}, 16")
        e(f"ds_write_b128 {vr(addr)}, {vr(w,4)} offset:{extra}")
        e(f"ds_write_b128 {vr(addr)}, {vr(O1,4)} offset:{extra+HCOPY}")
        e(f"ds_write_b128 {vr(addr)}, {vr(O2,4)} offset:{extra+2*HCOPY}")
        e(f"ds_write_b128 {vr(addr)}, {vr(O3,4)} offset:{extra+3*HCOPY}")
        e("s_nop 1")
    for y in range(2): hk(HK[y], 28, 32 + 1024*y)
    lpb = A.newlabel("PB")
    e(f"s_and_b32 {sr(S_T1)}, {sr(S_LW)}, 1")
    e(f"s_cmp_lg_u32 {sr(S_T1)}, 0")
    e(f"s_cbranch_scc1 {lpb}")
    e(f"s_mov_b64 {sr(S_EX,2)}, exec")
    e("s_mov_b64 exec, 3")
    w = HK[0]
    for r in range(4): e(f"v_mov_b32 {vr(w+r)}, 0")
    e(f"v_mov_b32 {vr(w+4)}, {vr(HPB)}"); e(f"v_mov_b32 {vr(w+5)}, {vr(HPB+1)}")
    hk(w, 27, 0)
    e(f"s_mov_b64 exec, {sr(S_EX,2)}")
    A.label(lpb)
    S_DSO2, S_RA, S_RBB, S_RC = S_G4, S_X0, S_X1, S_X2
    S_KU2, S_KUN2, S_ROT2, S_OOB2 = 61, S_C0, S_G5, 60
    ku_start(S_KU2, S_LW)
    e(f"s_cmp_lt_u32 {sr(S_LW)}, 2")
    e(f"s_cselect_b32 {sr(S_KUN2)}, 22, 21")
    e(f"s_mul_i32 {sr(S_ROT2)}, {sr(S_J)}, {opts.get('rot', 3)}")
    e(f"s_mov_b32 {sr(S_OOB2)}, 0x20000000")
    ring_bases(S_LW, S_RA, S_RBB, S_RC)
    def wd_dma(n):
        bi, off = ring_off(n); sb = (S_RA, S_RBB, S_RC)[bi]
        wd_soff(n, S_DSO2, S_ROT2, S_KUN2, S_KU2, S_OOB2)
        for a in range(2):
            e(f"s_add_u32 m0, {sr(sb)}, {off + 1024*a}")
            if a == 1: e(f"s_add_u32 {sr(S_DSO2)}, {sr(S_DSO2)}, 8192")
            else: e("s_nop 0")
            A.vmem(f"buffer_load_dwordx4 {vr(V_DO2)}, {sr(SRD_WD,4)}, {sr(S_DSO2)} offen lds", "WDP")
    A.wait_vm("KVS")
    e(f"s_lshl_b32 {sr(S_T0)}, {sr(S_J)}, 9")
    e(f"s_lshl_b32 {sr(S_T1)}, {sr(S_I2)}, 4")
    e(f"s_lshl_b32 {sr(S_T2)}, {sr(S_LW)}, 2")
    e(f"s_add_u32 {sr(S_T0)}, {sr(S_T0)}, {sr(S_T1)}")
    e(f"s_add_u32 {sr(S_T0)}, {sr(S_T0)}, {sr(S_T2)}")
    e(f"s_add_u32 {sr(S_T0)}, {sr(S_T0)}, {WS_FL+FL_KV}")
    flag_set(S_T0, t0)
    e("s_waitcnt lgkmcnt(0)")
    e("s_barrier")
    e("s_setprio 0")
    stamp(3)
    for n in range(NR): wd_dma(n)
    S_C, S_RH, S_UB, S_KVO = S_G0, S_G1, S_G2, S_G3
    e(f"s_lshl_b32 {sr(S_C)}, {sr(S_WG)}, 1")
    e(f"s_add_u32 {sr(S_C)}, {sr(S_C)}, {sr(S_CIDX)}")
    e(f"s_and_b32 {sr(S_RH)}, {sr(S_LW)}, 1")
    e(f"s_mul_i32 {sr(S_UB)}, {sr(S_LW)}, {UBSZ}")
    e(f"s_add_u32 {sr(S_UB)}, {sr(S_UB)}, {L_UB}")
    e(f"s_lshr_b32 {sr(S_KVO)}, {sr(S_C)}, 6")
    e(f"s_lshl_b32 {sr(S_KVO)}, {sr(S_KVO)}, 9")
    e(f"s_add_u32 {sr(S_KVO)}, {sr(S_KVO)}, {WS_FL+FL_KV}")
    srd(SRD_AUX, 5, 1024)
    e(f"s_lshl_b32 {sr(S_T0)}, {sr(S_C)}, 1")
    V_DD = 32; V_CA = 33; V_CB = 34
    A.vmem(f"buffer_load_ushort {vr(V_DD)}, off, {sr(SRD_AUX,4)}, {sr(S_T0)}", "DD")
    e(f"v_and_b32 {vr(t0)}, 15, {L}")
    e(f"v_lshrrev_b32 {vr(t1)}, 4, {L}")
    e(f"v_lshl_add_u32 {vr(t2)}, {vr(t1)}, 3, {vr(t0)}")
    e(f"v_add_u32 {vr(t2)}, 1, {vr(t2)}")
    e(f"v_and_b32 {vr(t3)}, 3, {vr(t2)}")
    e(f"v_sub_u32 {vr(t2)}, {vr(t2)}, {vr(t3)}")
    e(f"v_lshlrev_b32 {vr(t2)}, 1, {vr(t2)}")
    e(f"v_mul_u32_u24 {vr(t3)}, {HCOPY}, {vr(t3)}")
    e(f"v_add_u32 {vr(t2)}, {vr(t2)}, {vr(t3)}")
    e(f"s_mul_i32 {sr(S_T0)}, {sr(S_CIDX)}, {HCH}")
    e(f"s_lshl_b32 {sr(S_T1)}, {sr(S_RH)}, 8")
    e(f"s_add_u32 {sr(S_T0)}, {sr(S_T0)}, {sr(S_T1)}")
    e(f"s_add_u32 {sr(S_T0)}, {sr(S_T0)}, {L_HANK}")
    e(f"v_add_u32 {vr(V_CA)}, {sr(S_T0)}, {vr(t2)}")
    e(f"v_lshlrev_b32 {vr(t2)}, 1, {vr(t0)}")
    e(f"v_sub_u32 {vr(t2)}, {vr(t1)}, {vr(t2)}")
    e(f"v_add_u32 {vr(t2)}, 254, {vr(t2)}")
    e(f"v_lshlrev_b32 {vr(t2)}, 4, {vr(t2)}")
    e(f"s_add_u32 {sr(S_T0)}, {sr(S_UB)}, {sr(S_T1)}")
    e(f"s_sub_u32 {sr(S_T0)}, {sr(S_T0)}, 3584")
    e(f"v_add_u32 {vr(V_CB)}, {sr(S_T0)}, {vr(t2)}")
    CACC = 192; CSET = [64, 128]
    for r in range(32): e(f"v_mov_b32 {vr(CACC+r)}, 0")
    for r in range(4): e(f"v_mov_b32 {vr(52+r)}, 0")
    V_PF = 30
    A.wait_vm("WDP", "DD")
    e(f"s_lshl_b32 {sr(S_T0)}, {sr(S_LW)}, 2")
    e(f"s_add_u32 {sr(S_T0)}, {sr(S_T0)}, {L_FLAG}")
    e(f"v_mov_b32 {vr(V_PF)}, {sr(S_T0)}")
    e(f"v_mov_b32 {vr(V_PF+1)}, 1")
    e(f"ds_write_b32 {vr(V_PF)}, {vr(V_PF+1)} offset:16")
    lk1 = A.newlabel("KP"); lk2 = A.newlabel("KP")
    e(f"s_cmp_lg_u32 {sr(S_LW)}, 0")
    e(f"s_cbranch_scc1 {lk1}")
    flag_wait_blocking(V_FL, 2, S_KVO, sleep=6)
    e(f"v_mov_b32 {vr(t0)}, {L_FLAG+84}")
    e(f"v_mov_b32 {vr(t1)}, 1")
    e(f"ds_write_b32 {vr(t0)}, {vr(t1)}")
    e(f"s_branch {lk2}")
    A.label(lk1)
    e(f"s_mov_b32 {sr(S_T0)}, {L_FLAG+84}")
    lds_spin(S_T0, t1, t0, sleep=2)
    A.label(lk2)
    e(f"v_lshlrev_b32 {vr(V_DD)}, 16, {vr(V_DD)}")
    e(f"s_lshl_b32 {sr(S_T0)}, {sr(S_C)}, 12")
    A.vm = []
    for q in range(4):
        e(f"v_add_u32 {vr(t2)}, {1024*q}, {vr(V_L16)}")
        A.vmem(f"buffer_load_dwordx4 {vr(36+4*q,4)}, {vr(t2)}, {sr(SRD_WS,4)}, {sr(S_T0)} offen sc1", f"U{q}")
    e(f"v_and_b32 {vr(t0)}, 31, {L}")
    e(f"v_lshlrev_b32 {vr(t0)}, 4, {vr(t0)}")
    e(f"v_add_u32 {vr(t0)}, {sr(S_UB)}, {vr(t0)}")
    e(f"ds_write_b128 {vr(t0)}, {vr(52,4)} offset:4096")
    e(f"v_add_u32 {vr(t1)}, {sr(S_UB)}, {vr(V_L16)}")
    for q in range(4):
        A.wait_vm(f"U{q}")
        e(f"ds_write_b128 {vr(t1)}, {vr(36+4*q,4)} offset:{1024*q}")
    e("s_waitcnt lgkmcnt(0)")
    if opts.get("gate", 1):
        e(f"s_lshl_b32 {sr(S_T0)}, {sr(S_LW)}, 2")
        e(f"s_add_u32 {sr(S_T0)}, {sr(S_T0)}, {L_FLAG+48}")
        lds_spin(S_T0, t1, t0)
    stamp(4)
    def creads(r, st):
        out = []; b = CSET[st]
        for sp in range(8):
            out.append(f"ds_read_b64 {vr(b+4*sp,2)}, {vr(V_CA)} offset:{512*sp+64*r}")
            out.append(f"ds_read_b64 {vr(b+4*sp+2,2)}, {vr(V_CA)} offset:{512*sp+64*r+8}")
            out.append(f"ds_read_b128 {vr(b+32+4*sp,4)}, {vr(V_CB)} offset:{512*(7-sp)+64*r}")
        return out
    def cmfmas(st):
        out = []; b = CSET[st]
        for t in range(8):
            for sp in range(t + 1):
                out.append(f"v_mfma_f32_16x16x32_bf16 {vr(CACC+4*t,4)}, {vr(b+4*sp,4)}, {vr(b+32+4*(t-sp),4)}, {vr(CACC+4*t,4)}")
        return out
    for x in creads(0, 0): e(x)
    for r in range(4):
        e("s_waitcnt lgkmcnt(0)")
        mf = cmfmas(r & 1)
        rd = creads(r + 1, (r + 1) & 1) if r < 3 else []
        for idx, m in enumerate(mf):
            e(m)
            if idx < len(rd): e(rd[idx])
    stamp(5)
    V_UU = 64
    e("s_nop 7")
    e(f"v_and_b32 {vr(t0)}, 15, {L}")
    e(f"v_lshrrev_b32 {vr(t1)}, 4, {L}")
    e(f"v_lshlrev_b32 {vr(t2)}, 2, {vr(t0)}")
    e(f"v_add_u32 {vr(t2)}, {vr(t2)}, {vr(t1)}")
    e(f"v_lshlrev_b32 {vr(t2)}, 3, {vr(t2)}")
    e(f"s_lshl_b32 {sr(S_T1)}, {sr(S_RH)}, 11")
    e(f"s_sub_u32 {sr(S_T0)}, {sr(S_UB)}, {sr(S_T1)}")
    e(f"s_add_u32 {sr(S_T0)}, {sr(S_T0)}, {4088 - 1536}")
    e(f"v_sub_u32 {vr(t3)}, {sr(S_T0)}, {vr(t2)}")
    for tt in range(4): e(f"ds_read_b64 {vr(V_UU+2*tt,2)}, {vr(t3)} offset:{512*(3-tt)}")
    e("s_waitcnt lgkmcnt(0)")
    e(f"v_add_u32 {vr(t3)}, {sr(S_UB)}, {vr(V_L16)}")
    l1 = A.newlabel("PR"); l2 = A.newlabel("PR")
    e(f"s_cmp_eq_u32 {sr(S_RH)}, 0")
    e(f"s_cbranch_scc1 {l1}")
    for tt in range(4): e(f"ds_write_b128 {vr(t3)}, {vr(CACC+4*tt,4)} offset:{1024*tt}")
    e("s_nop 1")
    for r in range(16): e(f"v_mov_b32 {vr(CACC+r)}, {vr(CACC+16+r)}")
    e(f"s_branch {l2}")
    A.label(l1)
    for tt in range(4): e(f"ds_write_b128 {vr(t3)}, {vr(CACC+16+4*tt,4)} offset:{1024*tt}")
    A.label(l2)
    e("s_waitcnt lgkmcnt(0)")
    e(f"ds_write_b32 {vr(V_PF)}, {vr(V_PF+1)}")
    e(f"s_lshl_b32 {sr(S_T0)}, {sr(S_LW)}, 2")
    e(f"s_add_u32 {sr(S_T0)}, {sr(S_T0)}, {L_FLAG}")
    e(f"s_xor_b32 {sr(S_T0)}, {sr(S_T0)}, 4")
    lds_spin(S_T0, t1, t0)
    e(f"s_xor_b32 {sr(S_T0)}, {sr(S_LW)}, 1")
    e(f"s_mul_i32 {sr(S_T0)}, {sr(S_T0)}, {UBSZ}")
    e(f"s_add_u32 {sr(S_T0)}, {sr(S_T0)}, {L_UB}")
    e(f"v_add_u32 {vr(t3)}, {sr(S_T0)}, {vr(V_L16)}")
    V_PP = 80
    for tt in range(4): e(f"ds_read_b128 {vr(V_PP+4*tt,4)}, {vr(t3)} offset:{1024*tt}")
    e("s_waitcnt lgkmcnt(0)")
    for r in range(16): e(f"v_add_f32 {vr(CACC+r)}, {vr(CACC+r)}, {vr(V_PP+r)}")
    V_YP = 96
    for tt in range(4):
        y = CACC + 4*tt; u0, u1 = V_UU + 2*tt, V_UU + 2*tt + 1; U = 112
        e(f"v_and_b32 {vr(U+0)}, 0xffff0000, {vr(u1)}")
        e(f"v_lshlrev_b32 {vr(U+1)}, 16, {vr(u1)}")
        e(f"v_and_b32 {vr(U+2)}, 0xffff0000, {vr(u0)}")
        e(f"v_lshlrev_b32 {vr(U+3)}, 16, {vr(u0)}")
        for k in range(4): e(f"v_mul_f32 {vr(U+k)}, {vr(U+k)}, {vr(V_DD)}")
        e(f"v_cvt_pk_bf16_f32 {vr(U+4)}, {vr(U+0)}, {vr(U+1)}")
        e(f"v_cvt_pk_bf16_f32 {vr(U+5)}, {vr(U+2)}, {vr(U+3)}")
        e(f"v_cvt_pk_bf16_f32 {vr(U+6)}, {vr(y+0)}, {vr(y+1)}")
        e(f"v_cvt_pk_bf16_f32 {vr(U+7)}, {vr(y+2)}, {vr(y+3)}")
        for h in range(2):
            e(f"v_lshlrev_b32 {vr(U+2*h)}, 16, {vr(U+4+h)}")
            e(f"v_and_b32 {vr(U+2*h+1)}, 0xffff0000, {vr(U+4+h)}")
            e(f"v_lshlrev_b32 {vr(y+2*h)}, 16, {vr(U+6+h)}")
            e(f"v_and_b32 {vr(y+2*h+1)}, 0xffff0000, {vr(U+6+h)}")
        for k in range(4): e(f"v_add_f32 {vr(y+k)}, {vr(y+k)}, {vr(U+k)}")
        e(f"v_cvt_pk_bf16_f32 {vr(V_YP+2*tt)}, {vr(y+0)}, {vr(y+1)}")
        e(f"v_cvt_pk_bf16_f32 {vr(V_YP+2*tt+1)}, {vr(y+2)}, {vr(y+3)}")
    e("s_nop 1")
    for p in range(2):
        e(f"v_permlane16_swap_b32 {vr(V_YP+4*p)}, {vr(V_YP+4*p+2)}")
        e(f"v_permlane16_swap_b32 {vr(V_YP+4*p+1)}, {vr(V_YP+4*p+3)}")
    e(f"v_and_b32 {vr(t0)}, 15, {L}")
    e(f"v_lshrrev_b32 {vr(t1)}, 4, {L}")
    e(f"v_and_b32 {vr(t2)}, 1, {vr(t1)}")
    e(f"v_lshlrev_b32 {vr(t2)}, 9, {vr(t2)}")
    e(f"v_and_b32 {vr(t1)}, 2, {vr(t1)}")
    e(f"v_lshlrev_b32 {vr(t1)}, 3, {vr(t1)}")
    e(f"v_lshlrev_b32 {vr(t0)}, 5, {vr(t0)}")
    e(f"v_add3_u32 {vr(t0)}, {vr(t0)}, {vr(t1)}, {vr(t2)}")
    e(f"s_lshl_b32 {sr(S_T0)}, {sr(S_C)}, 12")
    e(f"s_lshl_b32 {sr(S_T1)}, {sr(S_RH)}, 11")
    e(f"s_add_u32 {sr(S_T0)}, {sr(S_T0)}, {sr(S_T1)}")
    e(f"s_add_u32 {sr(S_T0)}, {sr(S_T0)}, {WS_YYT}")
    for p in range(2):
        e(f"buffer_store_dwordx4 {vr(V_YP+4*p,4)}, {vr(t0)}, {sr(SRD_WS,4)}, {sr(S_T0)} offen offset:{1024*p} sc0 sc1")
    e("s_waitcnt vmcnt(0)")
    e(f"s_lshr_b32 {sr(S_T0)}, {sr(S_C)}, 6")
    e(f"s_lshl_b32 {sr(S_T0)}, {sr(S_T0)}, 9")
    e(f"s_and_b32 {sr(S_T1)}, {sr(S_WG)}, 31")
    e(f"s_lshl_b32 {sr(S_T1)}, {sr(S_T1)}, 4")
    e(f"s_lshl_b32 {sr(S_T2)}, {sr(S_LW)}, 2")
    e(f"s_add_u32 {sr(S_T0)}, {sr(S_T0)}, {sr(S_T1)}")
    e(f"s_add_u32 {sr(S_T0)}, {sr(S_T0)}, {sr(S_T2)}")
    e(f"s_add_u32 {sr(S_T0)}, {sr(S_T0)}, {WS_FL+FL_Y}")
    flag_set(S_T0, t0)
    stamp(6)
    ly1 = A.newlabel("YP"); ly2 = A.newlabel("YP")
    e(f"s_cmp_lg_u32 {sr(S_LW)}, 0")
    e(f"s_cbranch_scc1 {ly1}")
    e(f"s_mov_b32 {sr(S_T0)}, {L_FLAG+64}")
    lds_spin(S_T0, t1, t0, sleep=4)
    e(f"s_lshl_b32 {sr(S_T0)}, {sr(S_J)}, 9")
    e(f"s_add_u32 {sr(S_T0)}, {sr(S_T0)}, {WS_FL+FL_Y}")
    flag_wait_blocking(V_FL, 2, S_T0, sleep=8)
    e(f"v_mov_b32 {vr(t0)}, {L_FLAG+68}")
    e(f"v_mov_b32 {vr(t1)}, 1")
    e(f"ds_write_b32 {vr(t0)}, {vr(t1)}")
    e(f"s_branch {ly2}")
    A.label(ly1)
    e(f"s_mov_b32 {sr(S_T0)}, {L_FLAG+68}")
    lds_spin(S_T0, t1, t0, sleep=4)
    A.label(ly2)
    stamp(7)
    e(f"v_lshrrev_b32 {vr(t0)}, 3, {L}")
    e(f"v_and_b32 {vr(t1)}, 7, {L}")
    e(f"s_lshl_b32 {sr(S_T0)}, {sr(S_LW)}, 4")
    e(f"v_add_u32 {vr(t0)}, {sr(S_T0)}, {vr(t0)}")
    e(f"v_lshlrev_b32 {vr(t2)}, 12, {vr(t0)}")
    e(f"v_lshl_add_u32 {vr(t2)}, {vr(t1)}, 4, {vr(t2)}")
    e(f"s_lshl_b32 {sr(S_T0)}, {sr(S_J)}, 18")
    e(f"s_lshl_b32 {sr(S_T1)}, {sr(S_I2)}, 7")
    e(f"s_add_u32 {sr(S_T0)}, {sr(S_T0)}, {sr(S_T1)}")
    e(f"s_add_u32 {sr(S_T0)}, {sr(S_T0)}, {WS_YYT}")
    e(f"buffer_load_dwordx4 {vr(64,4)}, {vr(t2)}, {sr(SRD_WS,4)}, {sr(S_T0)} offen sc1")
    e(f"v_add_u32 {vr(t2)}, {8*4096}, {vr(t2)}")
    e(f"buffer_load_dwordx4 {vr(68,4)}, {vr(t2)}, {sr(SRD_WS,4)}, {sr(S_T0)} offen sc1")
    e(f"v_mul_u32_u24 {vr(t3)}, {YTROW}, {vr(t0)}")
    e(f"v_lshl_add_u32 {vr(t3)}, {vr(t1)}, 4, {vr(t3)}")
    e(f"v_add_u32 {vr(t3)}, {L_YT}, {vr(t3)}")
    e("s_waitcnt vmcnt(1)")
    e(f"ds_write_b128 {vr(t3)}, {vr(64,4)}")
    e("s_waitcnt vmcnt(0)")
    e(f"ds_write_b128 {vr(t3)}, {vr(68,4)} offset:{8*YTROW}")
    srd(SRD_OUT, 10, 2 << 20)

    A.label("L_FINAL")
    e("s_setprio 0")
    FT, FD, FO = 28, 29, 30
    e(f"v_lshrrev_b32 {vr(t0)}, 5, {L}")
    e(f"v_and_b32 {vr(t1)}, 3, {L}")
    e(f"v_lshl_add_u32 {vr(FT)}, {vr(t0)}, 2, {vr(t1)}")
    e(f"s_lshl_b32 {sr(S_T0)}, {sr(S_WAVE)}, 3")
    e(f"v_add_u32 {vr(FT)}, {sr(S_T0)}, {vr(FT)}")
    e(f"v_bfe_u32 {vr(FD)}, {L}, 2, 3")
    e(f"s_lshl_b32 {sr(S_T0)}, {sr(S_I2)}, 16")
    e(f"s_lshl_b32 {sr(S_T1)}, {sr(S_J)}, 7")
    e(f"s_add_u32 {sr(S_T0)}, {sr(S_T0)}, {sr(S_T1)}")
    e(f"v_lshlrev_b32 {vr(FO)}, 10, {vr(FT)}")
    e(f"v_lshl_add_u32 {vr(FO)}, {vr(FD)}, 4, {vr(FO)}")
    e(f"v_add_u32 {vr(FO)}, {sr(S_T0)}, {vr(FO)}")
    FX_, FS_ = 32, 36
    e(f"buffer_load_dwordx4 {vr(FX_,4)}, {vr(FO)}, {sr(SRD_Q,4)}, 0 offen")
    e("s_waitcnt lgkmcnt(0)")
    e("s_barrier")
    stamp(9)
    e(f"s_lshl_b32 {sr(S_T0)}, {sr(S_I2)}, 9")
    e(f"s_add_u32 {sr(S_T0)}, {sr(S_T0)}, {WS_ST}")
    e(f"v_lshlrev_b32 {vr(t1)}, 3, {vr(FT)}")
    e(f"buffer_load_dwordx2 {vr(FS_,2)}, {vr(t1)}, {sr(SRD_WS,4)}, {sr(S_T0)} offen sc1")
    FP = 40
    e(f"v_and_b32 {vr(t0)}, 31, {vr(FT)}")
    e(f"v_mul_u32_u24 {vr(t0)}, 272, {vr(t0)}")
    e(f"v_lshl_add_u32 {vr(t0)}, {vr(FD)}, 5, {vr(t0)}")
    e(f"s_cmp_lt_u32 {sr(S_WAVE)}, 4")
    e(f"s_cselect_b32 {sr(S_T0)}, {RA}, {RB_}")
    e(f"v_add_u32 {vr(t0)}, {sr(S_T0)}, {vr(t0)}")
    for kg in range(4):
        e(f"ds_read_b128 {vr(FP+8*kg,4)}, {vr(t0)} offset:{kg*10240}")
        e(f"ds_read_b128 {vr(FP+8*kg+4,4)}, {vr(t0)} offset:{kg*10240+16}")
    FY = 72
    e(f"v_bfe_u32 {vr(t2)}, {L}, 2, 2")
    e(f"v_and_b32 {vr(t3)}, 3, {L}")
    e(f"v_bfe_u32 {vr(t4)}, {L}, 4, 1")
    e(f"v_lshl_add_u32 {vr(t3)}, {vr(t4)}, 2, {vr(t3)}")
    e(f"v_lshl_add_u32 {vr(t2)}, {vr(t3)}, 3, {vr(t2)}")
    e(f"v_mul_u32_u24 {vr(t2)}, {YTROW}, {vr(t2)}")
    e(f"v_lshrrev_b32 {vr(t3)}, 5, {L}")
    e(f"v_lshlrev_b32 {vr(t3)}, 3, {vr(t3)}")
    e(f"s_lshl_b32 {sr(S_T0)}, {sr(S_WAVE)}, 4")
    e(f"s_add_u32 {sr(S_T0)}, {sr(S_T0)}, {L_YT}")
    e(f"v_add3_u32 {vr(t2)}, {vr(t2)}, {vr(t3)}, {sr(S_T0)}")
    e(f"ds_read_b64_tr_b16 {vr(FY,2)}, {vr(t2)}")
    e(f"ds_read_b64_tr_b16 {vr(FY+2,2)}, {vr(t2)} offset:{4*YTROW}")
    e("s_waitcnt lgkmcnt(2)")
    for kg in range(1, 4):
        for k in range(8): e(f"v_add_f32 {vr(FP+k)}, {vr(FP+k)}, {vr(FP+8*kg+k)}")
    O = FP; T = 48; XV = 56; YV = 64
    for k in range(0, 8, 2): e(f"v_cvt_pk_bf16_f32 {vr(T+k)}, {vr(O+k)}, {vr(O+k+1)}")
    for k in range(0, 8, 2):
        e(f"v_and_b32 {vr(O+k+1)}, 0xffff0000, {vr(T+k)}")
        e(f"v_lshlrev_b32 {vr(O+k)}, 16, {vr(T+k)}")
    e(f"s_mov_b32 {sr(S_T0)}, 0xbfb8aa3b")
    for k in range(8): e(f"v_mul_f32 {vr(T+k)}, {sr(S_T0)}, {vr(O+k)}")
    for k in range(8): e(f"v_exp_f32 {vr(T+k)}, {vr(T+k)}")
    for k in range(8): e(f"v_add_f32 {vr(T+k)}, 1.0, {vr(T+k)}")
    for k in range(8): e(f"v_rcp_f32 {vr(T+k)}, {vr(T+k)}")
    e("s_nop 0")
    for k in range(8): e(f"v_mul_f32 {vr(O+k)}, {vr(O+k)}, {vr(T+k)}")
    e("s_waitcnt vmcnt(0) lgkmcnt(0)")
    for k in range(4):
        e(f"v_lshlrev_b32 {vr(XV+2*k)}, 16, {vr(FX_+k)}")
        e(f"v_and_b32 {vr(XV+2*k+1)}, 0xffff0000, {vr(FX_+k)}")
        e(f"v_lshlrev_b32 {vr(YV+2*k)}, 16, {vr(FY+k)}")
        e(f"v_and_b32 {vr(YV+2*k+1)}, 0xffff0000, {vr(FY+k)}")
    e(f"v_and_b32 {vr(FS_+1)}, 0xffff0000, {vr(FS_)}")
    e(f"v_lshlrev_b32 {vr(FS_)}, 16, {vr(FS_)}")
    e(f"v_rcp_f32 {vr(FS_+1)}, {vr(FS_+1)}")
    for k in range(8): e(f"v_sub_f32 {vr(T+k)}, {vr(XV+k)}, {vr(FS_)}")
    def round8(b):
        for k in range(0, 8, 2): e(f"v_cvt_pk_bf16_f32 {vr(b+k)}, {vr(b+k)}, {vr(b+k+1)}")
        for k in range(0, 8, 2):
            e(f"v_and_b32 {vr(b+k+1)}, 0xffff0000, {vr(b+k)}")
            e(f"v_lshlrev_b32 {vr(b+k)}, 16, {vr(b+k)}")
    round8(T)
    for k in range(8): e(f"v_mul_f32 {vr(T+k)}, {vr(T+k)}, {vr(FS_+1)}")
    round8(T)
    for k in range(8): e(f"v_mul_f32 {vr(T+k)}, {vr(T+k)}, {vr(YV+k)}")
    round8(T); round8(O)
    for k in range(8): e(f"v_mul_f32 {vr(T+k)}, {vr(T+k)}, {vr(O+k)}")
    round8(T)
    for k in range(8): e(f"v_add_f32 {vr(T+k)}, {vr(T+k)}, {vr(XV+k)}")
    for k in range(4): e(f"v_cvt_pk_bf16_f32 {vr(FY+k)}, {vr(T+2*k)}, {vr(T+2*k+1)}")
    e(f"buffer_store_dwordx4 {vr(FY,4)}, {vr(FO)}, {sr(SRD_OUT,4)}, 0 offen")
    stamp(10)
    stamp_flush()
    A.label("L_END")
    e("s_endpgm")
    A.label("L_CODE_END")

    body = A.text()
    hdr = open("cdna_kernels/" + NAME + ".s.ref").read().split("; Override launch geometry")[0]
    out = hdr + "; Override launch geometry by editing the next line.\n"
    out += f"; @launch grid=(256,1,1) block=(512,1,1) lds={LDS_TOTAL}\n"
    out += f""".amdgcn_target "amdgcn-amd-amdhsa--gfx950"
.text
.globl {NAME}_kernel
.p2align 8
.type {NAME}_kernel,@function
{NAME}_kernel:
"""
    out += body
    out += f""".section .rodata,"a"
.p2align 6
.amdhsa_kernel {NAME}_kernel
  .amdhsa_next_free_vgpr 256
  .amdhsa_next_free_sgpr 102
  .amdhsa_accum_offset 256
  .amdhsa_group_segment_fixed_size 0
  .amdhsa_kernarg_size 104
  .amdhsa_user_sgpr_count 2
  .amdhsa_user_sgpr_kernarg_segment_ptr 1
  .amdhsa_system_sgpr_workgroup_id_x 1
.end_amdhsa_kernel
"""
    return out

if __name__ == "__main__":
    opts = {}
    outp = sys.argv[1]
    for a in sys.argv[2:]:
        k, _, v = a.partition("=")
        opts[k] = (int(v) if v.lstrip("-").isdigit() else (v or True))
    open(outp, "w").write(gen(opts))
```

```python
import sys, struct

NAME = "recurrent_scan__ssm_conv_h3__glu_gated_geglu__prompt"
f2u = lambda x: struct.unpack("<I", struct.pack("<f", x))[0]

class Asm:
    def __init__(self):
        self.lines = []; self.nlabel = 0; self.vm = []; self.cap = None
    def e(self, s):
        if self.cap is not None: self.cap.append(("  " + s, None))
        else: self.lines.append("  " + s)
    def label(self, l):
        assert self.cap is None, l
        self.lines.append(l + ":")
    def newlabel(self, p="L"):
        self.nlabel += 1; return f"{p}_{self.nlabel}"
    def text(self): return "\n".join(self.lines) + "\n"
    def vmem(self, s, tag):
        if self.cap is not None:
            self.cap.append(("  " + s, tag)); return
        self.e(s); self.vm.append(tag)
    def capture(self, fn):
        assert self.cap is None
        self.cap = []
        fn()
        out = self.cap; self.cap = None
        return out
    def emit_list(self, lst):
        for line, tag in lst:
            self.lines.append(line)
            if tag is not None: self.vm.append(tag)
    def merge(self, a, b):
        groups = []; cur = []
        for it in a:
            cur.append(it)
            if it[1] is not None: groups.append(cur); cur = []
        if cur: groups.append(cur)
        n = len(groups); out = []; k = 0
        for gi, g in enumerate(groups):
            out += g
            upto = (len(b) * (gi + 1)) // n
            out += b[k:upto]; k = upto
        out += b[k:]
        return out
    def wait_vm(self, *tags):
        assert self.cap is None
        last = -1
        for i, t in enumerate(self.vm):
            if t in tags: last = i
        assert last >= 0, tags
        n = len(self.vm) - 1 - last
        n = min(n, 63)
        self.e(f"s_waitcnt vmcnt({n})")
        return n

def vr(a, n=1): return f"v{a}" if n == 1 else f"v[{a}:{a+n-1}]"
def sr(a, n=1): return f"s{a}" if n == 1 else f"s[{a}:{a+n-1}]"

S, D, F = 2048, 512, 1376
WROW = F * 2
WBYTES = 512 * WROW
WS_KVT, WS_YYT, WS_HF, WS_ST, WS_FL, WS_TS = 0, 2 << 20, 4 << 20, 12 << 20, 13 << 20, 16 << 20
WS_VT = 14 << 20
FL_KV, FL_ST, FL_H, FL_Y = 0, 4096, 8192, 12288
STAGE = 40960
L_HANK = 122880
HCOPY = 4160
HCH = 4 * HCOPY
L_MISC = L_HANK + 2 * HCH
L_CS = L_MISC
L_STAT = L_MISC + 1536
L_FLAG = L_MISC + 2560
LDS_TOTAL = 163840
L_KT, L_VT = L_HANK, L_HANK + 8192
RA, RB_ = 2 * STAGE, 0
L_UB = STAGE
UBSZ = 4608
L_YT = L_UB + 4 * UBSZ
YTROW = 144
RC = L_YT + 64 * YTROW
NR = 11
def ring_off(n):
    if n < 5: return (0, n * 2048)
    if n < 10: return (1, (n - 5) * 2048)
    return (2, 0)

SRD_Q, SRD_K, SRD_V, SRD_W, SRD_WD, SRD_WS, SRD_DBG, SRD_OUT, SRD_SK, SRD_AUX = 4, 8, 12, 16, 20, 24, 28, 32, 36, 40
P = 48
S_WG = 2
S_WAVE, S_RB, S_CP, S_I2, S_J, S_F0, S_N32, S_A, S_B = 76, 77, 78, 79, 80, 81, 82, 83, 84
S_NONCE = 85
S_T0, S_T1, S_T2, S_T3, S_T4, S_T5 = 86, 87, 88, 89, 90, 91
S_G0, S_G1, S_G2, S_G3, S_G4, S_G5 = 92, 93, 94, 95, 96, 97
S_C0, S_C1 = 98, 99
S_EX = 100
S_TSP = 74
S_X0, S_X1, S_X2, S_X3 = 44, 45, 46, 47

def gen(opts):
    A = Asm(); e = A.e
    TS = opts.get("ts", False)
    HSC = "" if opts.get("hplain", 1) else " sc1"
    t0, t1, t2, t3, t4, t5 = 8, 9, 10, 11, 12, 13
    V_LANE = 3; L = vr(V_LANE)
    V_TS = 15

    def stamp(idx, dyn=None):
        if not TS: return
        e(f"{'s_memtime' if opts.get('cyc') else 's_memrealtime'} {sr(S_TSP,2)}")
        e("s_waitcnt lgkmcnt(0)")
        if dyn is None:
            e(f"v_writelane_b32 {vr(V_TS)}, {sr(S_TSP)}, {idx}")
        else:
            e(f"s_add_u32 m0, {sr(dyn)}, {idx}")
            e("s_nop 0")
            e(f"v_writelane_b32 {vr(V_TS)}, {sr(S_TSP)}, m0")
    def stamp_flush():
        if not TS: return
        e(f"s_lshl_b32 {sr(S_TSP+1)}, {sr(S_WG)}, 3")
        e(f"s_add_u32 {sr(S_TSP+1)}, {sr(S_TSP+1)}, {sr(S_WAVE)}")
        e(f"s_lshl_b32 {sr(S_TSP+1)}, {sr(S_TSP+1)}, 8")
        e(f"s_add_u32 {sr(S_TSP+1)}, {sr(S_TSP+1)}, {WS_TS}")
        e(f"v_lshlrev_b32 v14, 2, {L}")
        e(f"buffer_store_dword {vr(V_TS)}, v14, {sr(SRD_WS,4)}, {sr(S_TSP+1)} offen")

    def srd(dst, pidx, nbytes):
        e(f"s_mov_b32 {sr(dst)}, {sr(P+2*pidx)}")
        e(f"s_mov_b32 {sr(dst+1)}, {sr(P+2*pidx+1)}")
        e(f"s_mov_b32 {sr(dst+2)}, {nbytes}")
        e(f"s_mov_b32 {sr(dst+3)}, 0x20000")

    def flag_issue(vdst, nw, soff_sgpr, tag):
        e(f"v_lshlrev_b32 {vr(t5)}, {1 + nw}, {L}")
        op = "buffer_load_dword" if nw == 1 else "buffer_load_dwordx2"
        A.vmem(f"{op} {vr(vdst,nw)}, {vr(t5)}, {sr(SRD_WS,4)}, {sr(soff_sgpr)} offen sc1", tag)
    def flag_check_scc(vdst, nw):
        e(f"v_cmp_eq_u32 vcc, {sr(S_NONCE)}, {vr(vdst)}")
        if nw == 2:
            e(f"v_cmp_eq_u32 {sr(S_T4,2)}, {sr(S_NONCE)}, {vr(vdst+1)}")
            e("s_nop 1")
            e(f"s_and_b64 vcc, vcc, {sr(S_T4,2)}")
        else:
            e("s_nop 1")
        e("s_cmp_eq_u64 vcc, -1")
    def flag_wait_blocking(vdst, nw, soff_sgpr, sleep=4):
        l = A.newlabel("POLL"); d = A.newlabel("POLLD")
        n0 = len(A.vm)
        e(f"s_mov_b32 {sr(S_T3)}, 0x40000")
        A.label(l)
        flag_issue(vdst, nw, soff_sgpr, "poll")
        e("s_waitcnt vmcnt(0)")
        flag_check_scc(vdst, nw)
        e(f"s_cbranch_scc1 {d}")
        e(f"s_sub_u32 {sr(S_T3)}, {sr(S_T3)}, 1")
        e(f"s_cmp_eq_u32 {sr(S_T3)}, 0")
        e(f"s_cbranch_scc1 {d}")
        e(f"s_sleep {sleep}")
        e(f"s_branch {l}")
        A.label(d)
        del A.vm[n0:]
    def flag_set(soff_sgpr, vtmp):
        e(f"v_mov_b32 {vr(vtmp)}, {sr(S_NONCE)}")
        e(f"s_mov_b64 {sr(S_EX,2)}, exec")
        e("s_mov_b64 exec, 1")
        A.vmem(f"buffer_store_dword {vr(vtmp)}, off, {sr(SRD_WS,4)}, {sr(soff_sgpr)} sc0 sc1", "flag")
        e(f"s_mov_b64 exec, {sr(S_EX,2)}")
    def lds_spin(addr_sgpr, vt, va, sleep=1):
        l = A.newlabel("LS"); d = A.newlabel("LSD")
        e(f"v_mov_b32 {vr(va)}, {sr(addr_sgpr)}")
        e(f"s_mov_b32 {sr(S_T3)}, 0x200000")
        A.label(l)
        e(f"ds_read_b32 {vr(vt)}, {vr(va)}")
        e("s_waitcnt lgkmcnt(0)")
        e(f"v_readfirstlane_b32 {sr(S_T2)}, {vr(vt)}")
        e("s_nop 3")
        e(f"s_cmp_eq_u32 {sr(S_T2)}, 1")
        e(f"s_cbranch_scc1 {d}")
        e(f"s_sub_u32 {sr(S_T3)}, {sr(S_T3)}, 1")
        e(f"s_cmp_eq_u32 {sr(S_T3)}, 0")
        e(f"s_cbranch_scc1 {d}")
        e(f"s_sleep {sleep}")
        e(f"s_branch {l}")
        A.label(d)
    def wd_voffset(dst):
        e(f"v_lshrrev_b32 {vr(t0)}, 3, {L}")
        e(f"v_and_b32 {vr(t1)}, 7, {L}")
        e(f"v_bfe_u32 {vr(t2)}, {L}, 4, 1")
        e(f"v_lshlrev_b32 {vr(t2)}, 2, {vr(t2)}")
        e(f"v_xor_b32 {vr(t1)}, {vr(t1)}, {vr(t2)}")
        e(f"v_lshlrev_b32 {vr(t1)}, 4, {vr(t1)}")
        e(f"v_lshl_add_u32 {vr(t1)}, {vr(t0)}, 10, {vr(t1)}")
        e(f"s_lshl_b32 {sr(S_T1)}, {sr(S_J)}, 7")
        e(f"v_add_u32 {vr(dst)}, {sr(S_T1)}, {vr(t1)}")
    def ku_start(dst, kg):
        e(f"s_mul_i32 {sr(dst)}, {sr(kg)}, 22")
        e(f"s_cmp_eq_u32 {sr(kg)}, 3")
        e(f"s_cselect_b32 {sr(S_T1)}, 1, 0")
        e(f"s_sub_u32 {sr(dst)}, {sr(dst)}, {sr(S_T1)}")
    def unit_at(n, dst, rot, kun):
        e(f"s_add_u32 {sr(dst)}, {sr(rot)}, {n}")
        e(f"s_cmp_ge_u32 {sr(dst)}, 22")
        e(f"s_cselect_b32 {sr(S_T5)}, 22, 0")
        e(f"s_sub_u32 {sr(dst)}, {sr(dst)}, {sr(S_T5)}")
        e(f"s_cmp_lt_u32 {sr(dst)}, {sr(kun)}")
    def wd_soff(n, dst, rot, kun, ku0, oob):
        unit_at(n, dst, rot, kun)
        e(f"s_cselect_b32 {sr(S_T5)}, 1, 0")
        e(f"s_add_u32 {sr(dst)}, {sr(dst)}, {sr(ku0)}")
        e(f"s_lshl_b32 {sr(dst)}, {sr(dst)}, 14")
        e(f"s_cmp_eq_u32 {sr(S_T5)}, 1")
        e(f"s_cselect_b32 {sr(dst)}, {sr(dst)}, {sr(oob)}")
    def ring_bases(kg, ra, rb, rc):
        e(f"s_mul_i32 {sr(ra)}, {sr(kg)}, 10240")
        e(f"s_add_u32 {sr(rb)}, {sr(ra)}, {RB_}")
        e(f"s_add_u32 {sr(ra)}, {sr(ra)}, {RA}")
        e(f"s_lshl_b32 {sr(rc)}, {sr(kg)}, 11")
        e(f"s_add_u32 {sr(rc)}, {sr(rc)}, {RC}")

    def loader_setup(lw, V_XO, V_WO, S_M0X, S_M0W):
        e(f"v_lshrrev_b32 {vr(t0)}, 3, {L}")
        e(f"v_lshrrev_b32 {vr(t1)}, 4, {L}")
        e(f"v_and_b32 {vr(t2)}, 7, {L}")
        e(f"s_lshl_b32 {sr(S_T2)}, {sr(S_RB)}, 7")
        e(f"s_lshl_b32 {sr(S_T3)}, {sr(lw)}, 5")
        e(f"s_add_u32 {sr(S_T2)}, {sr(S_T2)}, {sr(S_T3)}")
        for a in range(2):
            e(f"v_add_u32 {vr(t3)}, {4*a}, {vr(t1)}")
            e(f"v_xor_b32 {vr(t3)}, {vr(t3)}, {vr(t2)}")
            e(f"v_lshlrev_b32 {vr(t3)}, 4, {vr(t3)}")
            e(f"v_add_u32 {vr(t4)}, {sr(S_T2)}, {vr(t0)}")
            e(f"v_add_u32 {vr(t4)}, {8*a}, {vr(t4)}")
            e(f"v_lshl_add_u32 {vr(V_XO+a)}, {vr(t4)}, 10, {vr(t3)}")
        e(f"s_and_b32 {sr(S_T1)}, {sr(lw)}, 1")
        e(f"s_lshl_b32 {sr(S_T3)}, {sr(S_T1)}, 1")
        e(f"s_lshr_b32 {sr(S_T4)}, {sr(lw)}, 1")
        e(f"s_lshl_b32 {sr(S_T4)}, {sr(S_T4)}, 5")
        e(f"s_lshl_b32 {sr(S_T5)}, {sr(S_F0)}, 1")
        e(f"s_movk_i32 {sr(S_T0)}, {WROW}")
        for i in range(3):
            e(f"v_add_u32 {vr(t0)}, {64*i}, {L}")
            e(f"v_lshrrev_b32 {vr(t1)}, 4, {vr(t0)}")
            e(f"v_mul_u32_u24 {vr(t1)}, 43, {vr(t1)}")
            e(f"v_lshrrev_b32 {vr(t1)}, 7, {vr(t1)}")
            e(f"v_mul_u32_u24 {vr(t2)}, 48, {vr(t1)}")
            e(f"v_sub_u32 {vr(t2)}, {vr(t0)}, {vr(t2)}")
            e(f"v_lshrrev_b32 {vr(t3)}, 4, {vr(t2)}")
            e(f"v_bfe_u32 {vr(t4)}, {vr(t2)}, 2, 2")
            e(f"v_and_b32 {vr(t2)}, 3, {vr(t2)}")
            e(f"v_xor_b32 {vr(t2)}, {sr(S_T3)}, {vr(t2)}")
            e(f"v_lshl_add_u32 {vr(t2)}, {vr(t3)}, 2, {vr(t2)}")
            e(f"v_lshl_add_u32 {vr(t1)}, {vr(t1)}, 2, {vr(t4)}")
            e(f"v_add_u32 {vr(t1)}, {sr(S_T4)}, {vr(t1)}")
            e(f"v_mul_u32_u24 {vr(t1)}, {sr(S_T0)}, {vr(t1)}")
            e(f"v_lshl_add_u32 {vr(t2)}, {vr(t2)}, 4, {vr(t1)}")
            e(f"v_add_u32 {vr(V_WO+i)}, {sr(S_T5)}, {vr(t2)}")
        e(f"s_lshl_b32 {sr(S_M0X)}, {sr(lw)}, 12")
        e(f"s_mul_i32 {sr(S_M0W)}, {sr(S_T1)}, 12288")
        e(f"s_lshr_b32 {sr(S_T4)}, {sr(lw)}, 1")
        e(f"s_mul_i32 {sr(S_T4)}, {sr(S_T4)}, 6144")
        e(f"s_add_u32 {sr(S_M0W)}, {sr(S_M0W)}, {sr(S_T4)}")
        e(f"s_add_u32 {sr(S_M0W)}, {sr(S_M0W)}, 16384")
    def srd_w_select(lw):
        e(f"s_and_b32 {sr(S_T0)}, {sr(lw)}, 1")
        e(f"s_cmp_eq_u32 {sr(S_T0)}, 0")
        e(f"s_cselect_b32 {sr(SRD_W)}, {sr(P+14)}, {sr(P+16)}")
        e(f"s_cselect_b32 {sr(SRD_W+1)}, {sr(P+15)}, {sr(P+17)}")
        e(f"s_mov_b32 {sr(SRD_W+2)}, {WBYTES}")
        e(f"s_mov_b32 {sr(SRD_W+3)}, 0x20000")
    def dma_stage_g(s, V_XO, V_WO, S_M0X, S_M0W, S_XSO, S_WSO):
        slot = (s % 3) * STAGE
        e(f"s_mov_b32 {sr(S_XSO)}, {s*128}")
        e(f"s_add_u32 m0, {sr(S_M0X)}, {slot}")
        for a in range(4):
            if a == 2: e(f"s_mov_b32 {sr(S_XSO)}, {s*128+16384}")
            else: e("s_nop 0")
            A.vmem(f"buffer_load_dwordx4 {vr(V_XO+(a&1))}, {sr(SRD_Q,4)}, {sr(S_XSO)} offen lds", f"S{s}")
            if a < 3: e("s_add_u32 m0, m0, 1024")
        e(f"s_mov_b32 {sr(S_WSO)}, {s*64*WROW}")
        e(f"s_add_u32 m0, {sr(S_M0W)}, {slot}")
        for blk in range(2):
            for i in range(3):
                if blk == 1 and i == 0: e(f"s_mov_b32 {sr(S_WSO)}, {s*64*WROW+16*WROW}")
                else: e("s_nop 0")
                A.vmem(f"buffer_load_dwordx4 {vr(V_WO+i)}, {sr(SRD_W,4)}, {sr(S_WSO)} offen lds", f"S{s}")
                if not (blk == 1 and i == 2): e("s_add_u32 m0, m0, 1024")

    e(f"s_cmp_ge_u32 {sr(S_WG)}, 256")
    e("s_cbranch_scc1 L_END")
    e(f"s_load_dwordx16 {sr(P,16)}, s[0:1], 0")
    e(f"s_load_dwordx8 {sr(P+16,8)}, s[0:1], 64")
    e(f"s_load_dwordx2 {sr(P+24,2)}, s[0:1], 96")
    e(f"s_getpc_b64 {sr(S_T0,2)}")
    e("v_lshlrev_b32 v1, 6, v0")
    e(f"v_cmp_gt_u32 vcc, L_CODE_END-{NAME}_kernel, v1")
    e(f"s_and_saveexec_b64 {sr(S_EX,2)}, vcc")
    e(f"global_load_dword v2, v1, {sr(S_T0,2)}")
    e(f"s_mov_b64 exec, {sr(S_EX,2)}")
    e(f"v_and_b32 {L}, 63, v0")
    e("v_lshrrev_b32 v4, 6, v0")
    e(f"s_and_b32 {sr(S_T0)}, {sr(S_WG)}, 7")
    e(f"v_readfirstlane_b32 {sr(S_WAVE)}, v4")
    e(f"s_lshr_b32 {sr(S_T1)}, {sr(S_WG)}, 3")
    e(f"s_and_b32 {sr(S_T2)}, {sr(S_T0)}, 1")
    e(f"s_lshl_b32 {sr(S_T2)}, {sr(S_T2)}, 3")
    e(f"s_and_b32 {sr(S_T3)}, {sr(S_T1)}, 7")
    e(f"s_add_u32 {sr(S_RB)}, {sr(S_T2)}, {sr(S_T3)}")
    e(f"s_lshr_b32 {sr(S_T2)}, {sr(S_T0)}, 1")
    e(f"s_lshl_b32 {sr(S_T2)}, {sr(S_T2)}, 2")
    e(f"s_lshr_b32 {sr(S_T3)}, {sr(S_T1)}, 3")
    e(f"s_add_u32 {sr(S_CP)}, {sr(S_T2)}, {sr(S_T3)}")
    e(f"s_lshl_b32 {sr(S_T2)}, {sr(S_T0)}, 2")
    e(f"s_and_b32 {sr(S_T3)}, {sr(S_T1)}, 3")
    e(f"s_add_u32 {sr(S_I2)}, {sr(S_T2)}, {sr(S_T3)}")
    e(f"s_lshr_b32 {sr(S_J)}, {sr(S_T1)}, 2")
    e(f"s_mul_i32 {sr(S_T2)}, {sr(S_CP)}, 96")
    e(f"s_lshl_b32 {sr(S_T3)}, {sr(S_CP)}, 6")
    e(f"s_add_u32 {sr(S_T3)}, {sr(S_T3)}, 352")
    e(f"s_cmp_lt_u32 {sr(S_CP)}, 11")
    e(f"s_cselect_b32 {sr(S_F0)}, {sr(S_T2)}, {sr(S_T3)}")
    e(f"s_cselect_b32 {sr(S_N32)}, 3, 2")
    if TS: e(f"v_mov_b32 {vr(V_TS)}, 0")
    e(f"s_cmp_ge_u32 {sr(S_WAVE)}, 4")
    e("s_cbranch_scc1 L_HELPER")

    A.vm = ["code"]
    e(f"s_setprio {opts.get('cprio', 2)}")
    e(f"s_and_b32 {sr(S_A)}, {sr(S_WAVE)}, 1")
    e(f"s_lshr_b32 {sr(S_B)}, {sr(S_WAVE)}, 1")
    FS = [16, 36]
    V_XR, V_WR, V_XR2, V_WR2 = 56, 60, 66, 70
    ACC = 160
    e(f"v_and_b32 {vr(t0)}, 31, {L}")
    e(f"v_lshrrev_b32 {vr(t1)}, 5, {L}")
    e(f"v_bfe_u32 {vr(t2)}, {vr(t0)}, 1, 3")
    e(f"v_xor_b32 {vr(t2)}, {vr(t2)}, {vr(t1)}")
    e(f"s_lshl_b32 {sr(S_T0)}, {sr(S_A)}, 1")
    e(f"v_xor_b32 {vr(t2)}, {sr(S_T0)}, {vr(t2)}")
    e(f"s_lshl_b32 {sr(S_T0)}, {sr(S_A)}, 6")
    e(f"v_add_u32 {vr(t0)}, {sr(S_T0)}, {vr(t0)}")
    e(f"v_lshlrev_b32 {vr(t0)}, 7, {vr(t0)}")
    for ks in range(4):
        e(f"v_xor_b32 {vr(t3)}, {2*ks}, {vr(t2)}")
        e(f"v_lshl_add_u32 {vr(V_XR+ks)}, {vr(t3)}, 4, {vr(t0)}")
    e(f"v_bfe_u32 {vr(t0)}, {L}, 4, 1")
    e(f"v_lshrrev_b32 {vr(t1)}, 5, {L}")
    e(f"v_bfe_u32 {vr(t2)}, {L}, 2, 2")
    e(f"v_bfe_u32 {vr(t3)}, {L}, 1, 1")
    e(f"v_and_b32 {vr(t4)}, 1, {L}")
    e(f"s_lshl_b32 {sr(S_T0)}, {sr(S_B)}, 1")
    e(f"v_add_u32 {vr(t3)}, {sr(S_T0)}, {vr(t3)}")
    e(f"v_lshlrev_b32 {vr(t5)}, 1, {vr(t0)}")
    e(f"v_xor_b32 {vr(t3)}, {vr(t3)}, {vr(t5)}")
    e(f"v_lshlrev_b32 {vr(t3)}, 4, {vr(t3)}")
    e(f"v_lshl_add_u32 {vr(t3)}, {vr(t4)}, 3, {vr(t3)}")
    e(f"v_lshl_add_u32 {vr(t3)}, {vr(t2)}, 6, {vr(t3)}")
    e(f"v_mul_u32_u24 {vr(t1)}, 1536, {vr(t1)}")
    e(f"v_mul_u32_u24 {vr(t0)}, 12288, {vr(t0)}")
    e(f"v_add3_u32 {vr(t3)}, {vr(t3)}, {vr(t1)}, {vr(t0)}")
    e(f"v_add_u32 {vr(t3)}, 16384, {vr(t3)}")
    e(f"s_mul_i32 {sr(S_T1)}, {sr(S_A)}, 3072")
    for i in range(3):
        e(f"s_cmp_eq_u32 {sr(S_A)}, 0")
        e(f"s_cselect_b32 {sr(S_T0)}, {i*256}, {(2-i)*256}")
        e(f"s_add_u32 {sr(S_T2)}, {sr(S_T0)}, {sr(S_T1)}")
        e(f"v_add_u32 {vr(V_WR+i)}, {sr(S_T2)}, {vr(t3)}")
        e(f"s_sub_u32 {sr(S_T2)}, {sr(S_T0)}, {sr(S_T1)}")
        e(f"v_add_u32 {vr(V_WR+3+i)}, {sr(S_T2)}, {vr(t3)}")
    for ks in range(4): e(f"v_add_u32 {vr(V_XR2+ks)}, {2*STAGE}, {vr(V_XR+ks)}")
    for i in range(6): e(f"v_add_u32 {vr(V_WR2+i)}, {2*STAGE}, {vr(V_WR+i)}")
    loader_setup(S_WAVE, 94, 96, S_X0, S_X1)
    for r in range(96): e(f"v_mov_b32 {vr(ACC+r)}, 0")
    for r in range(12): e(f"v_mov_b32 {vr(80+r)}, 0")
    e(f"v_and_b32 {vr(t0)}, 15, {L}")
    e(f"v_bfe_u32 {vr(t1)}, {L}, 4, 1")
    e(f"v_cmp_eq_u32 vcc, {vr(t0)}, {vr(t1)}")
    e(f"v_mov_b32 {vr(t2)}, 0x3f803f80")
    e("s_nop 0")
    e(f"v_cndmask_b32 {vr(76)}, 0, {vr(t2)}, vcc")
    for r in range(1, 4): e(f"v_mov_b32 {vr(76+r)}, {vr(76)}")
    e("s_waitcnt lgkmcnt(0)")
    srd(SRD_Q, 0, 2 << 20); srd(SRD_WD, 9, WBYTES); srd(SRD_OUT, 10, 2 << 20); srd(SRD_WS, 12, 0x10000000)
    if not opts.get("tfirst", 1): e("s_barrier")
    if not opts.get("notouch"):
        BAD = 0x7fffff00; V_DUM = 92
        lW = A.newlabel("TW"); lD = A.newlabel("TD")
        e(f"s_cmp_eq_u32 {sr(S_WAVE)}, 1"); e(f"s_cbranch_scc1 {lW}")
        e(f"s_cmp_eq_u32 {sr(S_WAVE)}, 2"); e(f"s_cbranch_scc1 {lW}")
        e(f"s_and_b32 {sr(S_T0)}, {sr(S_CP)}, 3")
        e(f"s_lshl_b32 {sr(S_T0)}, {sr(S_T0)}, 5")
        e(f"s_lshl_b32 {sr(S_T1)}, {sr(S_RB)}, 7")
        e(f"s_add_u32 {sr(S_T0)}, {sr(S_T0)}, {sr(S_T1)}")
        e(f"v_and_b32 {vr(t1)}, 31, {L}")
        e(f"v_add_u32 {vr(t1)}, {sr(S_T0)}, {vr(t1)}")
        e(f"v_lshlrev_b32 {vr(t1)}, 10, {vr(t1)}")
        e(f"v_lshrrev_b32 {vr(t0)}, 5, {L}")
        e(f"v_lshl_add_u32 {vr(t1)}, {vr(t0)}, 7, {vr(t1)}")
        e(f"s_cmp_eq_u32 {sr(S_WAVE)}, 3")
        e(f"s_cselect_b32 {sr(S_T0)}, 256, 0")
        e(f"buffer_load_dword {vr(V_DUM)}, {vr(t1)}, {sr(SRD_Q,4)}, {sr(S_T0)} offen")
        e(f"buffer_load_dword {vr(V_DUM)}, {vr(t1)}, {sr(SRD_Q,4)}, {sr(S_T0)} offen offset:512")
        e(f"s_branch {lD}")
        A.label(lW)
        e(f"s_cmp_eq_u32 {sr(S_WAVE)}, 1")
        e(f"s_cselect_b32 {sr(SRD_W)}, {sr(P+14)}, {sr(P+16)}")
        e(f"s_cselect_b32 {sr(SRD_W+1)}, {sr(P+15)}, {sr(P+17)}")
        e(f"s_mov_b32 {sr(SRD_W+2)}, {WBYTES}")
        e(f"s_mov_b32 {sr(SRD_W+3)}, 0x20000")
        e(f"s_and_b32 {sr(S_T0)}, {sr(S_RB)}, 7")
        e(f"s_lshl_b32 {sr(S_T0)}, {sr(S_T0)}, 3")
        e(f"v_lshrrev_b32 {vr(t0)}, 4, {L}")
        e(f"v_lshlrev_b32 {vr(t0)}, 6, {vr(t0)}")
        e(f"v_bfe_u32 {vr(t1)}, {L}, 1, 3")
        e(f"v_add3_u32 {vr(t0)}, {vr(t0)}, {vr(t1)}, {sr(S_T0)}")
        e(f"s_movk_i32 {sr(S_T1)}, {WROW}")
        e(f"v_mul_lo_u32 {vr(t1)}, {vr(t0)}, {sr(S_T1)}")
        e(f"v_and_b32 {vr(t2)}, 1, {L}")
        e(f"v_lshl_add_u32 {vr(t1)}, {vr(t2)}, 7, {vr(t1)}")
        e(f"s_lshl_b32 {sr(S_T1)}, {sr(S_F0)}, 1")
        e(f"v_add_u32 {vr(t1)}, {sr(S_T1)}, {vr(t1)}")
        e(f"s_mov_b32 {sr(S_T2)}, {256*WROW}")
        e(f"buffer_load_dword {vr(V_DUM)}, {vr(t1)}, {sr(SRD_W,4)}, 0 offen")
        e(f"buffer_load_dword {vr(V_DUM)}, {vr(t1)}, {sr(SRD_W,4)}, {sr(S_T2)} offen")
        A.label(lD)
    if opts.get("tfirst", 1): e("s_barrier")
    srd_w_select(S_WAVE)
    dma_stage_g(1, 94, 96, S_X0, S_X1, S_X2, S_X3)
    TOUCH2 = []
    stamp(0)
    def reads(stage, ks, st):
        b = FS[st]; out = []
        slot = stage % 3
        xr, wr, o = (V_XR, V_WR, slot*STAGE) if slot < 2 else (V_XR2, V_WR2, 0)
        out.append(f"ds_read_b128 {vr(b,4)}, {vr(xr+ks)} offset:{o}")
        wa = wr + (3 if ks & 1 else 0)
        for h in range(2): out.append(f"ds_read_b64_tr_b16 {vr(b+8+2*h,2)}, {vr(wa)} offset:{o+ks*3072+h*768}")
        out.append(f"ds_read_b128 {vr(b+4,4)}, {vr(xr+ks)} offset:{o+4096}")
        for i in range(1, 3):
            for h in range(2): out.append(f"ds_read_b64_tr_b16 {vr(b+8+4*i+2*h,2)}, {vr(wa+i)} offset:{o+ks*3072+h*768}")
        return out
    V_SEL = 76; V_CSA = 80
    def kstep(ks, st, nxt, job=()):
        b = FS[st]; mf = []
        for i in range(3):
            for tt in range(2):
                a = ACC + 16*(2*i+tt)
                mf.append((f"v_mfma_f32_32x32x16_bf16 {vr(a,16)}, {vr(b+8+4*i,4)}, {vr(b+4*tt,4)}, {vr(a,16)}", 4))
            if ks % 2 == 0 and not opts.get("nocs"):
                mf.append((f"v_mfma_f32_16x16x32_bf16 {vr(V_CSA+4*i,4)}, {vr(V_SEL,4)}, {vr(b+8+4*i,4)}, {vr(V_CSA+4*i,4)}", 2))
        fill = list(nxt) + list(job)
        cap = sum(c for _, c in mf)
        k = 0; done = 0
        for m, c in mf:
            e(m)
            done += c
            upto = (len(fill) * done + cap - 1) // cap
            for x in fill[k:upto]: e(x)
            k = max(k, upto)
    job_at = {}
    e("s_barrier")
    stamp(1)
    for x in reads(0, 0, 0): e(x)
    for it in range(8):
        for ks in range(4):
            g = 4*it + ks
            if ks == 3 and it < 7:
                e("s_waitcnt vmcnt(0) lgkmcnt(0)" if it == 0 else "s_waitcnt lgkmcnt(0)")
                if opts.get("barstamp"): stamp(24 + it)
                e("s_barrier")
                if opts.get("barstamp"): stamp(32 + it)
            else:
                e("s_waitcnt lgkmcnt(0)")
            if ks < 3: nxt = reads(it, ks + 1, (g + 1) & 1)
            elif it < 7: nxt = reads(it + 1, 0, (g + 1) & 1)
            else: nxt = []
            kstep(ks, g & 1, nxt, job_at.get(g, []))
        if opts.get("itstamp"): stamp(16 + it)
    stamp(2)
    e("s_nop 7")
    e(f"s_lshl_b32 {sr(S_T0)}, {sr(S_B)}, 1")
    e(f"s_add_u32 {sr(S_T0)}, {sr(S_T0)}, {sr(S_A)}")
    e(f"s_mul_i32 {sr(S_T0)}, {sr(S_T0)}, 384")
    e(f"s_add_u32 {sr(S_T0)}, {sr(S_T0)}, {L_CS}")
    e(f"v_lshlrev_b32 {vr(t0)}, 2, {L}")
    e(f"v_add_u32 {vr(t0)}, {sr(S_T0)}, {vr(t0)}")
    e(f"s_mov_b64 {sr(S_EX,2)}, exec")
    e("s_mov_b64 exec, 0xffff")
    for i in range(3):
        e(f"s_cmp_eq_u32 {sr(S_A)}, 0")
        e(f"s_cselect_b32 {sr(S_T1)}, {i*128}, {(2-i)*128}")
        e(f"v_add_u32 {vr(t1)}, {sr(S_T1)}, {vr(t0)}")
        e(f"ds_write_b32 {vr(t1)}, {vr(80+4*i)}")
        e(f"ds_write_b32 {vr(t1)}, {vr(80+4*i+1)} offset:64")
    e(f"s_mov_b64 exec, {sr(S_EX,2)}")
    e("s_waitcnt lgkmcnt(0)")
    e("s_barrier")
    stamp(3)
    if opts.get("g1only"):
        stamp_flush()
        e("s_endpgm")
    e("s_setprio 2")
    e(f"v_mov_b32 {vr(t0)}, {L_FLAG+32}")
    e(f"ds_read_b32 {vr(t1)}, {vr(t0)}")
    ST = 84
    e(f"v_and_b32 {vr(t2)}, 31, {L}")
    e(f"v_lshlrev_b32 {vr(t2)}, 3, {vr(t2)}")
    e(f"s_lshl_b32 {sr(S_T0)}, {sr(S_A)}, 9")
    e(f"s_add_u32 {sr(S_T0)}, {sr(S_T0)}, {L_STAT}")
    e(f"v_add_u32 {vr(t2)}, {sr(S_T0)}, {vr(t2)}")
    e(f"ds_read_b64 {vr(ST,2)}, {vr(t2)}")
    e(f"ds_read_b64 {vr(ST+2,2)}, {vr(t2)} offset:256")
    CGS = [16, 32, 48]; CG2 = [64, 96, 112]
    e(f"v_lshrrev_b32 {vr(t5)}, 5, {L}")
    e(f"v_lshlrev_b32 {vr(t5)}, 4, {vr(t5)}")
    e(f"s_mul_i32 {sr(S_T0)}, {sr(S_B)}, 768")
    e(f"s_add_u32 {sr(S_T0)}, {sr(S_T0)}, {L_CS}")
    e(f"v_add_u32 {vr(t5)}, {sr(S_T0)}, {vr(t5)}")
    for i in range(3):
        e(f"s_cmp_eq_u32 {sr(S_A)}, 0")
        e(f"s_cselect_b32 {sr(S_T1)}, {i*128}, {(2-i)*128}")
        e(f"v_add_u32 {vr(t0)}, {sr(S_T1)}, {vr(t5)}")
        for rp in range(4): e(f"ds_read_b128 {vr(CGS[i]+4*rp,4)}, {vr(t0)} offset:{32*rp}")
        for rp in range(4): e(f"ds_read_b128 {vr(CG2[i]+4*rp,4)}, {vr(t0)} offset:{384+32*rp}")
    e("s_waitcnt lgkmcnt(0)")
    e(f"v_readfirstlane_b32 {sr(S_NONCE)}, {vr(t1)}")
    C1 = -2.0 * 0.7978845608028654 * 0.044715 * 1.4426950408889634
    C0 = -2.0 * 0.7978845608028654 * 1.4426950408889634
    NMp, K1p, K0p, IRp = [144, 146], [148, 150], [152, 154], [156, 158]
    e(f"s_mov_b32 {sr(S_T4)}, {f2u(C1):#x}")
    e(f"s_mov_b32 {sr(S_T5)}, {f2u(C0):#x}")
    for tt in range(2):
        m, r = ST + 2*tt, ST + 2*tt + 1
        e(f"v_sub_f32 {vr(NMp[tt])}, 0, {vr(m)}")
        e(f"v_mul_f32 {vr(K0p[tt])}, {sr(S_T5)}, {vr(r)}")
        e(f"v_mul_f32 {vr(t3)}, {vr(r)}, {vr(r)}")
        e(f"v_mul_f32 {vr(t4)}, {vr(t3)}, {vr(r)}")
        e(f"v_mul_f32 {vr(K1p[tt])}, {sr(S_T4)}, {vr(t4)}")
        e(f"v_rcp_f32 {vr(IRp[tt])}, {vr(t3)}")
        e("s_nop 1")
        for rr in (NMp, K0p, K1p, IRp): e(f"v_mov_b32 {vr(rr[tt]+1)}, {vr(rr[tt])}")
    for i in range(3):
        for k in range(0, 16, 2): e(f"v_pk_add_f32 {vr(CGS[i]+k,2)}, {vr(CGS[i]+k,2)}, {vr(CG2[i]+k,2)}")
    TT = 128; HP = [136, 140]
    e(f"v_lshlrev_b32 {vr(t4)}, 4, {L}")
    e(f"s_lshl_b32 {sr(S_T1)}, {sr(S_RB)}, 2")
    e(f"s_lshl_b32 {sr(S_T2)}, {sr(S_A)}, 1")
    e(f"s_add_u32 {sr(S_T1)}, {sr(S_T1)}, {sr(S_T2)}")
    e(f"s_mul_i32 {sr(S_T1)}, {sr(S_T1)}, 86")
    e(f"s_lshr_b32 {sr(S_T2)}, {sr(S_F0)}, 4")
    e(f"s_add_u32 {sr(S_T1)}, {sr(S_T1)}, {sr(S_T2)}")
    e(f"s_add_u32 {sr(S_T1)}, {sr(S_T1)}, {sr(S_B)}")
    e(f"s_lshl_b32 {sr(S_T1)}, {sr(S_T1)}, 10")
    e(f"s_add_u32 {sr(S_G2)}, {sr(S_T1)}, {WS_HF}")
    for i in range(3):
        lsk = A.newlabel("EP")
        if i == 1: e(f"s_mov_b32 {sr(S_T0)}, 1")
        else:
            e(f"s_cmp_eq_u32 {sr(S_A)}, 0")
            e(f"s_cselect_b32 {sr(S_T0)}, {i}, {2-i}")
        e(f"s_cmp_ge_u32 {sr(S_T0)}, {sr(S_N32)}")
        e(f"s_cbranch_scc1 {lsk}")
        e(f"s_lshl_b32 {sr(S_T0)}, {sr(S_T0)}, 11")
        e(f"s_add_u32 {sr(S_T1)}, {sr(S_G2)}, {sr(S_T0)}")
        e(f"s_add_u32 {sr(S_T2)}, {sr(S_T1)}, {86*1024}")
        CG = CGS[i]
        for tt in range(2):
            a = ACC + 16*(2*i+tt)
            NM, K1, K0, IR = NMp[tt], K1p[tt], K0p[tt], IRp[tt]
            G = [a+2*k for k in range(4)]; U = [a+8+2*k for k in range(4)]
            cg = [CG+2*k for k in range(4)]; cu = [CG+8+2*k for k in range(4)]
            T = [TT+2*k for k in range(4)]
            for k in range(4): e(f"v_pk_fma_f32 {vr(G[k],2)}, {vr(NM,2)}, {vr(cg[k],2)}, {vr(G[k],2)}")
            for k in range(4): e(f"v_pk_mul_f32 {vr(T[k],2)}, {vr(G[k],2)}, {vr(G[k],2)}")
            for k in range(4): e(f"v_pk_fma_f32 {vr(T[k],2)}, {vr(T[k],2)}, {vr(K1,2)}, {vr(K0,2)}")
            for k in range(4): e(f"v_pk_mul_f32 {vr(T[k],2)}, {vr(T[k],2)}, {vr(G[k],2)}")
            for k in range(4):
                e(f"v_exp_f32 {vr(TT+2*k)}, {vr(TT+2*k)}")
                e(f"v_exp_f32 {vr(TT+2*k+1)}, {vr(TT+2*k+1)}")
                e(f"v_pk_fma_f32 {vr(U[k],2)}, {vr(NM,2)}, {vr(cu[k],2)}, {vr(U[k],2)}")
            for k in range(4): e(f"v_pk_fma_f32 {vr(T[k],2)}, {vr(T[k],2)}, {vr(IR,2)}, {vr(IR,2)}")
            for k in range(4):
                e(f"v_rcp_f32 {vr(TT+2*k)}, {vr(TT+2*k)}")
                e(f"v_rcp_f32 {vr(TT+2*k+1)}, {vr(TT+2*k+1)}")
                e(f"v_pk_mul_f32 {vr(G[k],2)}, {vr(G[k],2)}, {vr(U[k],2)}")
            for k in range(4): e(f"v_pk_mul_f32 {vr(G[k],2)}, {vr(G[k],2)}, {vr(T[k],2)}")
            for k in range(4): e(f"v_cvt_pk_bf16_f32 {vr(HP[tt]+k)}, {vr(G[k])}, {vr(G[k]+1)}")
            A.vmem(f"buffer_store_dwordx4 {vr(HP[tt],4)}, {vr(t4)}, {sr(SRD_WS,4)}, {sr(S_T1 if tt == 0 else S_T2)} offen sc0 sc1", "hst")
        A.label(lsk)
    stamp(4)
    e(f"s_lshl_b32 {sr(S_T0)}, {sr(S_WAVE)}, 2")
    e(f"s_add_u32 {sr(S_T0)}, {sr(S_T0)}, {L_FLAG+48}")
    e(f"v_mov_b32 {vr(t0)}, {sr(S_T0)}")
    e(f"v_mov_b32 {vr(t1)}, 1")
    e(f"ds_write_b32 {vr(t0)}, {vr(t1)}")
    GACC = 160; PH = opts.get('ph', 8); GH = 16; GW = 80
    GACC = 176
    GW = 80
    GA = [168, 240]
    V_AR = 248
    V_HL, V_DO = 254, 255
    S_KU0, S_KUN, S_RA, S_RBB, S_RC, S_H0 = S_G0, S_G1, S_G2, S_G3, S_G4, S_G5
    S_H1, S_OOB, S_DSO, S_ROT, S_HB = S_C0, S_C1, S_X0, S_X1, S_X2
    e(f"s_mul_i32 {sr(S_ROT)}, {sr(S_J)}, {opts.get('rot', 3)}")
    ku_start(S_KU0, S_WAVE)
    e(f"s_cmp_lt_u32 {sr(S_WAVE)}, 2")
    e(f"s_cselect_b32 {sr(S_KUN)}, 22, 21")
    ring_bases(S_WAVE, S_RA, S_RBB, S_RC)
    wd_voffset(V_DO)
    e(f"v_lshrrev_b32 {vr(t0)}, 5, {L}")
    e(f"v_bfe_u32 {vr(t1)}, {L}, 2, 2")
    e(f"v_lshl_add_u32 {vr(t0)}, {vr(t0)}, 2, {vr(t1)}")
    e(f"v_lshlrev_b32 {vr(t0)}, 7, {vr(t0)}")
    e(f"v_bfe_u32 {vr(t2)}, {L}, 4, 1")
    e(f"v_bfe_u32 {vr(t3)}, {L}, 1, 1")
    e(f"v_lshl_add_u32 {vr(t2)}, {vr(t2)}, 1, {vr(t3)}")
    e(f"v_lshlrev_b32 {vr(t2)}, 4, {vr(t2)}")
    e(f"v_and_b32 {vr(t3)}, 1, {L}")
    e(f"v_lshl_add_u32 {vr(t2)}, {vr(t3)}, 3, {vr(t2)}")
    e(f"v_add_u32 {vr(t0)}, {vr(t0)}, {vr(t2)}")
    e(f"v_bfe_u32 {vr(t1)}, {L}, 3, 1")
    e(f"v_lshlrev_b32 {vr(t1)}, 6, {vr(t1)}")
    e(f"v_add_u32 {vr(t2)}, {vr(t0)}, {vr(t1)}")
    e(f"v_xor_b32 {vr(t1)}, 64, {vr(t1)}")
    e(f"v_add_u32 {vr(t3)}, {vr(t0)}, {vr(t1)}")
    for bi, sb in enumerate((S_RA, S_RBB, S_RC)):
        e(f"v_add_u32 {vr(V_AR+2*bi)}, {sr(sb)}, {vr(t2)}")
        e(f"v_add_u32 {vr(V_AR+2*bi+1)}, {sr(sb)}, {vr(t3)}")
    e(f"v_lshlrev_b32 {vr(V_HL)}, 4, {L}")
    e(f"s_mov_b32 {sr(S_OOB)}, 0x20000000")
    e("s_waitcnt vmcnt(0)")
    e(f"s_lshl_b32 {sr(S_T0)}, {sr(S_RB)}, 8")
    e(f"s_lshl_b32 {sr(S_T1)}, {sr(S_CP)}, 4")
    e(f"s_lshl_b32 {sr(S_T2)}, {sr(S_WAVE)}, 2")
    e(f"s_add_u32 {sr(S_T0)}, {sr(S_T0)}, {sr(S_T1)}")
    e(f"s_add_u32 {sr(S_T0)}, {sr(S_T0)}, {sr(S_T2)}")
    e(f"s_add_u32 {sr(S_T0)}, {sr(S_T0)}, {WS_FL+FL_H}")
    flag_set(S_T0, t0)
    stamp(5)
    e(f"s_lshl_b32 {sr(S_T0)}, {sr(S_WAVE)}, 2")
    e(f"s_add_u32 {sr(S_T0)}, {sr(S_T0)}, {L_FLAG+16}")
    lds_spin(S_T0, t0, t1)
    def afrag_reads(n, dst):
        bi, off = ring_off(n); out = []
        for dt in range(2):
            for h in range(2):
                out.append(f"ds_read_b64_tr_b16 {vr(dst+4*dt+2*h,2)}, {vr(V_AR+2*bi+dt)} offset:{off+1024*h}")
        return out
    for n in range(NR):
        for x in afrag_reads(n, GW+8*n): e(x)
        if n % 3 == 2: e("s_waitcnt lgkmcnt(4)")
    e("s_waitcnt lgkmcnt(0)")
    for n in range(NR):
        bi, off = ring_off(n)
        sb = (S_RA, S_RBB, S_RC)[bi]
        wd_soff(NR + n, S_DSO, S_ROT, S_KUN, S_KU0, S_OOB)
        for a in range(2):
            e(f"s_add_u32 m0, {sr(sb)}, {off + 1024*a}")
            if a == 1: e(f"s_add_u32 {sr(S_DSO)}, {sr(S_DSO)}, 8192")
            else: e("s_nop 0")
            A.vmem(f"buffer_load_dwordx4 {vr(V_DO)}, {sr(SRD_WD,4)}, {sr(S_DSO)} offen lds", "WR2")
    for r in range(64): e(f"v_mov_b32 {vr(GACC+r)}, 0")
    stamp(6)
    e(f"s_lshr_b32 {sr(S_T0)}, {sr(S_I2)}, 1")
    e(f"s_lshl_b32 {sr(S_T0)}, {sr(S_T0)}, 8")
    e(f"s_add_u32 {sr(S_T0)}, {sr(S_T0)}, {WS_FL+FL_H}")
    lh1 = A.newlabel("HP"); lh2 = A.newlabel("HP")
    e(f"s_cmp_lg_u32 {sr(S_WAVE)}, 0")
    e(f"s_cbranch_scc1 {lh1}")
    flag_wait_blocking(t1, 1, S_T0, sleep=opts.get('hsleep', 2))
    e(f"v_mov_b32 {vr(t0)}, {L_FLAG+72}")
    e(f"v_mov_b32 {vr(t1)}, 1")
    e(f"ds_write_b32 {vr(t0)}, {vr(t1)}")
    e(f"s_branch {lh2}")
    A.label(lh1)
    e(f"s_mov_b32 {sr(S_T0)}, {L_FLAG+72}")
    lds_spin(S_T0, t1, t0, sleep=1)
    e("s_waitcnt vmcnt(0)")
    A.label(lh2)
    stamp(7)
    e(f"s_lshl_b32 {sr(S_T0)}, {sr(S_I2)}, 1")
    e(f"s_mul_i32 {sr(S_T0)}, {sr(S_T0)}, 86")
    e(f"s_add_u32 {sr(S_T0)}, {sr(S_T0)}, {sr(S_KU0)}")
    e(f"s_lshl_b32 {sr(S_T0)}, {sr(S_T0)}, 10")
    e(f"s_add_u32 {sr(S_HB)}, {sr(S_T0)}, {WS_HF}")
    A.vm = []
    def hload(n):
        hb = GH + 8*(n % PH)
        unit_at(n, S_H0, S_ROT, S_KUN)
        e(f"s_cselect_b32 {sr(S_T5)}, 1, 0")
        e(f"s_lshl_b32 {sr(S_H0)}, {sr(S_H0)}, 10")
        e(f"s_add_u32 {sr(S_H0)}, {sr(S_H0)}, {sr(S_HB)}")
        e(f"s_cmp_eq_u32 {sr(S_T5)}, 1")
        e(f"s_cselect_b32 {sr(S_H0)}, {sr(S_H0)}, {sr(S_OOB)}")
        e(f"s_add_u32 {sr(S_H1)}, {sr(S_H0)}, {86*1024}")
        A.vmem(f"buffer_load_dwordx4 {vr(hb,4)}, {vr(V_HL)}, {sr(SRD_WS,4)}, {sr(S_H0)} offen{HSC}", f"H{n}")
        A.vmem(f"buffer_load_dwordx4 {vr(hb+4,4)}, {vr(V_HL)}, {sr(SRD_WS,4)}, {sr(S_H1)} offen{HSC}", f"H{n}")
    for n in range(PH): hload(n)
    for n in range(22):
        hb = GH + 8*(n % PH)
        if n < NR: aw = GW + 8*n
        else: aw = GA[n & 1]
        if n + 1 >= NR and n + 1 < 22:
            for x in afrag_reads(n + 1 - NR, GA[(n+1) & 1]): e(x)
        A.wait_vm(f"H{n}")
        if n >= NR: e("s_waitcnt lgkmcnt(4)" if n + 1 < 22 else "s_waitcnt lgkmcnt(0)")
        e(f"v_mfma_f32_32x32x16_bf16 {vr(GACC,16)}, {vr(aw,4)}, {vr(hb,4)}, {vr(GACC,16)}")
        e(f"v_mfma_f32_32x32x16_bf16 {vr(GACC+16,16)}, {vr(aw,4)}, {vr(hb+4,4)}, {vr(GACC+16,16)}")
        e(f"v_mfma_f32_32x32x16_bf16 {vr(GACC+32,16)}, {vr(aw+4,4)}, {vr(hb,4)}, {vr(GACC+32,16)}")
        e(f"v_mfma_f32_32x32x16_bf16 {vr(GACC+48,16)}, {vr(aw+4,4)}, {vr(hb+4,4)}, {vr(GACC+48,16)}")
        if n + PH < 22: hload(n + PH)
        if n == opts.get("yun", 12):
            e(f"v_mov_b32 {vr(t0)}, {L_FLAG+64}")
            e(f"v_mov_b32 {vr(t1)}, 1")
            e(f"ds_write_b32 {vr(t0)}, {vr(t1)}")
        if opts.get("g2stamp") and n % 2 == 1: stamp(32 + n // 2)
    stamp(8)
    e("s_nop 7")
    e(f"v_and_b32 {vr(t0)}, 31, {L}")
    e(f"v_lshrrev_b32 {vr(t1)}, 5, {L}")
    e(f"v_mul_u32_u24 {vr(t0)}, 272, {vr(t0)}")
    e(f"v_lshl_add_u32 {vr(t0)}, {vr(t1)}, 4, {vr(t0)}")
    e(f"v_add_u32 {vr(t1)}, {sr(S_RBB)}, {vr(t0)}")
    e(f"v_add_u32 {vr(t0)}, {sr(S_RA)}, {vr(t0)}")
    for dt in range(2):
        for tt in range(2):
            for rp in range(4):
                a = GACC + 16*(2*dt+tt) + 4*rp
                e(f"ds_write_b128 {vr(t0 if tt == 0 else t1)}, {vr(a,4)} offset:{dt*128 + rp*32}")
    e("s_branch L_FINAL")

    A.label("L_HELPER")
    A.vm = ["code"]
    if opts.get("g1only"):
        for _ in range(10): e("s_barrier")
        e("s_endpgm")
    S_LW = S_A
    e(f"s_sub_u32 {sr(S_LW)}, {sr(S_WAVE)}, 4")
    V_XO, V_WO, V_L16, V_TO, V_DO2 = 16, 18, 21, 22, 23
    S_XSO, S_WSO, S_M0X, S_M0W = S_G0, S_G1, S_G3, S_G4
    BAD = 0x7fffff00
    e(f"v_lshlrev_b32 {vr(V_L16)}, 4, {L}")
    loader_setup(S_LW, V_XO, V_WO, S_M0X, S_M0W)
    S_ROW = S_G5
    e(f"s_lshl_b32 {sr(S_ROW)}, {sr(S_I2)}, 6")
    e(f"s_lshl_b32 {sr(S_T0)}, {sr(S_J)}, 3")
    e(f"s_add_u32 {sr(S_ROW)}, {sr(S_ROW)}, {sr(S_T0)}")
    e(f"s_lshl_b32 {sr(S_T0)}, {sr(S_LW)}, 1")
    e(f"s_add_u32 {sr(S_ROW)}, {sr(S_ROW)}, {sr(S_T0)}")
    e(f"v_lshrrev_b32 {vr(t0)}, 3, {L}")
    e(f"v_and_b32 {vr(t1)}, 7, {L}")
    e(f"v_lshrrev_b32 {vr(t2)}, 4, {L}")
    e(f"s_and_b32 {sr(S_T1)}, {sr(S_LW)}, 1")
    e(f"s_lshl_b32 {sr(S_T1)}, {sr(S_T1)}, 2")
    e(f"v_add_u32 {vr(t2)}, {sr(S_T1)}, {vr(t2)}")
    e(f"v_xor_b32 {vr(t1)}, {vr(t1)}, {vr(t2)}")
    e(f"v_lshlrev_b32 {vr(t1)}, 4, {vr(t1)}")
    e(f"v_lshl_add_u32 {vr(t1)}, {vr(t0)}, 10, {vr(t1)}")
    e(f"s_lshl_b32 {sr(S_T1)}, {sr(S_J)}, 7")
    e(f"v_add_u32 {vr(V_TO)}, {sr(S_T1)}, {vr(t1)}")
    wd_voffset(V_DO2)
    e("s_waitcnt lgkmcnt(0)")
    srd(SRD_Q, 0, 2 << 20)
    srd_w_select(S_LW)
    stamp(0)
    def dma_stage(s): dma_stage_g(s, V_XO, V_WO, S_M0X, S_M0W, S_XSO, S_WSO)
    SX = 24; V_NL = 33; V_SL = 116; V_SLA = 34; V_FL = 114; V_DUM = 32
    e(f"s_lshl_b32 {sr(S_T0)}, {sr(S_ROW)}, 10")
    A.vmem(f"buffer_load_dwordx4 {vr(SX,4)}, {vr(V_L16)}, {sr(SRD_Q,4)}, {sr(S_T0)} offen", "SX")
    A.vmem(f"buffer_load_dwordx4 {vr(SX+4,4)}, {vr(V_L16)}, {sr(SRD_Q,4)}, {sr(S_T0)} offen offset:1024", "SX")
    srd(SRD_DBG, 11, 256)
    lnn = A.newlabel("NN")
    e(f"s_cmp_lg_u32 {sr(S_WG)}, 0")
    e(f"s_cbranch_scc1 {lnn}")
    e(f"s_cmp_lg_u32 {sr(S_WAVE)}, 4")
    e(f"s_cbranch_scc1 {lnn}")
    e(f"s_memrealtime {sr(S_T0,2)}")
    e("s_waitcnt lgkmcnt(0)")
    e(f"s_or_b32 {sr(S_T0)}, {sr(S_T0)}, 1")
    e(f"v_mov_b32 {vr(t0)}, {sr(S_T0)}")
    e(f"buffer_store_dword {vr(t0)}, off, {sr(SRD_DBG,4)}, 0 sc0 sc1")
    A.label(lnn)
    if opts.get("tfirst", 1): e("s_barrier")
    dma_stage(0)
    if not opts.get("tfirst", 1): e("s_barrier")
    srd(SRD_K, 1, 2 << 20); srd(SRD_V, 2, 2 << 20)
    srd(SRD_WS, 12, 0x10000000); srd(SRD_WD, 9, WBYTES)
    def tiles():
        e(f"s_lshl_b32 {sr(S_T0)}, {sr(S_I2)}, 16")
        for srd_, base in ((SRD_K, L_KT), (SRD_V, L_VT)):
            for gi in range(2):
                e(f"s_add_u32 {sr(S_T1)}, {sr(S_LW)}, {4*gi}")
                e(f"s_lshl_b32 {sr(S_T2)}, {sr(S_T1)}, 13")
                e(f"s_add_u32 {sr(S_T2)}, {sr(S_T2)}, {sr(S_T0)}")
                e(f"s_lshl_b32 {sr(S_T1)}, {sr(S_T1)}, 10")
                e(f"s_add_u32 m0, {sr(S_T1)}, {base}")
                e("s_nop 0")
                A.vmem(f"buffer_load_dwordx4 {vr(V_TO)}, {sr(srd_,4)}, {sr(S_T2)} offen lds", "P")
    S_CIDX = S_C1
    HK = [88, 96]; HPB = 112
    def hk_loads():
        e(f"s_lshl_b32 {sr(S_T0)}, {sr(S_WG)}, 1")
        e(f"s_add_u32 {sr(S_T0)}, {sr(S_T0)}, {sr(S_CIDX)}")
        e(f"s_lshl_b32 {sr(S_T0)}, {sr(S_T0)}, 12")
        e(f"s_add_u32 {sr(SRD_SK)}, {sr(P+8)}, {sr(S_T0)}")
        e(f"s_addc_u32 {sr(SRD_SK+1)}, {sr(P+9)}, 0")
        e(f"s_mov_b32 {sr(SRD_SK+2)}, 4096")
        e(f"s_mov_b32 {sr(SRD_SK+3)}, 0x20000")
        e(f"s_and_b32 {sr(S_T1)}, {sr(S_LW)}, 1")
        e(f"s_lshl_b32 {sr(S_T1)}, {sr(S_T1)}, 11")
        for y in range(2):
            e(f"s_add_u32 {sr(S_T2)}, {sr(S_T1)}, {1024*y}")
            A.vmem(f"buffer_load_dwordx4 {vr(HK[y],4)}, {vr(V_L16)}, {sr(SRD_SK,4)}, {sr(S_T2)} offen", "HK")
            A.vmem(f"buffer_load_dwordx2 {vr(HK[y]+4,2)}, {vr(V_L16)}, {sr(SRD_SK,4)}, {sr(S_T2)} offen offset:16", "HK")
        e(f"v_cmp_eq_u32 vcc, 1, {L}")
        e(f"v_mov_b32 {vr(t5)}, 0x10000")
        e("s_nop 0")
        e(f"v_cndmask_b32 {vr(t5)}, {vr(t5)}, 0, vcc")
        A.vmem(f"buffer_load_dwordx2 {vr(HPB,2)}, {vr(t5)}, {sr(SRD_SK,4)}, 0 offen", "HK")
    def wd_touch():
        e(f"s_mul_i32 {sr(S_T0)}, {sr(S_WG)}, {43*128}")
        e(f"s_mul_i32 {sr(S_T1)}, {sr(S_LW)}, 11")
        e(f"v_add_u32 {vr(t4)}, {sr(S_T1)}, {L}")
        e(f"v_cmp_gt_u32 vcc, 11, {L}")
        e(f"v_lshlrev_b32 {vr(t4)}, 7, {vr(t4)}")
        e(f"v_add_u32 {vr(t4)}, {sr(S_T0)}, {vr(t4)}")
        e(f"v_mov_b32 {vr(t5)}, {BAD}")
        e(f"v_cndmask_b32 {vr(t4)}, {vr(t5)}, {vr(t4)}, vcc")
        A.vmem(f"buffer_load_dword {vr(V_DUM)}, {vr(t4)}, {sr(SRD_WD,4)}, 0 offen", "T2")
    e(f"s_lshr_b32 {sr(S_CIDX)}, {sr(S_LW)}, 1")
    PPOS = opts.get("ppos", -1)
    if PPOS < 0: tiles()
    A.vmem(f"buffer_load_dword {vr(V_NL)}, off, {sr(SRD_DBG,4)}, 0 sc1", "NL")
    e(f"v_lshlrev_b32 {vr(t0)}, 2, {L}")
    e(f"v_add_u32 {vr(t0)}, {L_FLAG}, {vr(t0)}")
    e(f"v_mov_b32 {vr(t1)}, 0")
    e(f"s_mov_b64 {sr(S_EX,2)}, exec")
    e("s_mov_b64 exec, 0xfffffff")
    e(f"ds_write_b32 {vr(t0)}, {vr(t1)}")
    e(f"s_mov_b64 exec, {sr(S_EX,2)}")
    A.wait_vm("SX")
    XU = 120; SA = 136
    for rr in range(2):
        for k in range(4):
            e(f"v_lshlrev_b32 {vr(XU+8*rr+2*k)}, 16, {vr(SX+4*rr+k)}")
            e(f"v_and_b32 {vr(XU+8*rr+2*k+1)}, 0xffff0000, {vr(SX+4*rr+k)}")
    def wave_reduce(regs):
        for sh in ("row_shr:1", "row_shr:2", "row_shr:4", "row_shr:8"):
            for r in regs: e(f"v_add_f32_dpp {vr(r)}, {vr(r)}, {vr(r)} {sh} row_mask:0xf bank_mask:0xf bound_ctrl:0")
            e("s_nop 0")
        for r in regs: e(f"v_add_f32_dpp {vr(r)}, {vr(r)}, {vr(r)} row_bcast:15 row_mask:0xa bank_mask:0xf")
        e("s_nop 0")
        for r in regs: e(f"v_add_f32_dpp {vr(r)}, {vr(r)}, {vr(r)} row_bcast:31 row_mask:0xc bank_mask:0xf")
        e("s_nop 1")
    for k in range(1, 8):
        for rr in range(2):
            b = XU + 8*rr
            if k == 1: e(f"v_add_f32 {vr(SA+rr)}, {vr(b)}, {vr(b+1)}")
            else: e(f"v_add_f32 {vr(SA+rr)}, {vr(SA+rr)}, {vr(b+k)}")
    e("s_nop 1")
    wave_reduce([SA, SA+1])
    e(f"v_readlane_b32 {sr(S_T0)}, {vr(SA)}, 63")
    e(f"v_readlane_b32 {sr(S_T1)}, {vr(SA+1)}, 63")
    e(f"v_mov_b32 {vr(SA+2)}, 0x3b000000")
    e("s_nop 0")
    e(f"v_mul_f32 {vr(SA+4)}, {sr(S_T0)}, {vr(SA+2)}")
    e(f"v_mul_f32 {vr(SA+5)}, {sr(S_T1)}, {vr(SA+2)}")
    for k in range(8):
        for rr in range(2): e(f"v_sub_f32 {vr(XU+8*rr+k)}, {vr(XU+8*rr+k)}, {vr(SA+4+rr)}")
    for k in range(8):
        for rr in range(2):
            b = XU + 8*rr
            if k == 0: e(f"v_mul_f32 {vr(SA+rr)}, {vr(b)}, {vr(b)}")
            else: e(f"v_fma_f32 {vr(SA+rr)}, {vr(b+k)}, {vr(b+k)}, {vr(SA+rr)}")
    e("s_nop 1")
    wave_reduce([SA, SA+1])
    e(f"v_readlane_b32 {sr(S_T0)}, {vr(SA)}, 63")
    e(f"v_readlane_b32 {sr(S_T1)}, {vr(SA+1)}, 63")
    e(f"v_cmp_eq_u32 vcc, 1, {L}")
    e("s_nop 0")
    e(f"v_mov_b32 {vr(SA)}, {sr(S_T0)}")
    e(f"v_mov_b32 {vr(SA+1)}, {sr(S_T1)}")
    e(f"v_cndmask_b32 {vr(SA)}, {vr(SA)}, {vr(SA+1)}, vcc")
    e(f"v_cndmask_b32 {vr(SA+4)}, {vr(SA+4)}, {vr(SA+5)}, vcc")
    e(f"v_mul_f32 {vr(SA)}, {vr(SA)}, {vr(SA+2)}")
    e(f"v_cvt_pk_bf16_f32 {vr(SA)}, {vr(SA)}, {vr(SA)}")
    e(f"v_lshlrev_b32 {vr(SA)}, 16, {vr(SA)}")
    e(f"v_add_f32 {vr(SA)}, 0x3727c5ac, {vr(SA)}")
    e(f"v_cvt_pk_bf16_f32 {vr(SA)}, {vr(SA)}, {vr(SA)}")
    e(f"v_lshlrev_b32 {vr(SA)}, 16, {vr(SA)}")
    e(f"v_sqrt_f32 {vr(SA)}, {vr(SA)}")
    e("s_nop 0")
    V_STP = 110
    e(f"v_cvt_pk_bf16_f32 {vr(V_STP)}, {vr(SA+4)}, {vr(SA)}")
    A.wait_vm("S0")
    e("s_waitcnt lgkmcnt(0)")
    e("s_barrier")
    stamp(1)
    def it_end(it, stages, waits=()):
        if opts.get("barstamp"): stamp(24 + it)
        if waits: A.wait_vm(*waits)
        e("s_waitcnt lgkmcnt(0)")
        if opts.get("barstamp"): stamp(32 + it)
        e("s_barrier")
        if opts.get("barstamp"): stamp(40 + it)
        for st_ in stages: st_()
        if opts.get("barstamp"): stamp(48 + it)
    def job_nonce_sts():
        lok = A.newlabel("NOK"); lre = A.newlabel("NRE")
        e(f"s_mov_b32 {sr(S_T3)}, 0x40000")
        A.label(lre)
        e(f"v_readfirstlane_b32 {sr(S_NONCE)}, {vr(V_NL)}")
        e("s_nop 3")
        e(f"s_cmp_lg_u32 {sr(S_NONCE)}, 0")
        e(f"s_cbranch_scc1 {lok}")
        e(f"s_sub_u32 {sr(S_T3)}, {sr(S_T3)}, 1")
        e(f"s_cmp_eq_u32 {sr(S_T3)}, 0")
        e(f"s_cbranch_scc1 {lok}")
        e("s_sleep 2")
        e(f"buffer_load_dword {vr(V_NL)}, off, {sr(SRD_DBG,4)}, 0 sc1")
        e("s_waitcnt vmcnt(0)")
        e(f"s_branch {lre}")
        A.label(lok)
        e(f"v_mov_b32 {vr(t0)}, {L_FLAG+32}")
        e(f"v_mov_b32 {vr(V_STP+1)}, {sr(S_NONCE)}")
        e(f"ds_write_b32 {vr(t0)}, {vr(V_STP+1)}")
        e(f"s_lshl_b32 {sr(S_T0)}, {sr(S_ROW)}, 3")
        e(f"s_add_u32 {sr(S_T0)}, {sr(S_T0)}, {WS_ST}")
        e(f"v_lshlrev_b32 {vr(t0)}, 3, {L}")
        e(f"s_mov_b64 {sr(S_EX,2)}, exec")
        e("s_mov_b64 exec, 3")
        A.vmem(f"buffer_store_dwordx2 {vr(V_STP,2)}, {vr(t0)}, {sr(SRD_WS,4)}, {sr(S_T0)} offen sc0 sc1", "STS")
        e(f"s_mov_b64 exec, {sr(S_EX,2)}")
    T = 128
    def job_tr_store():
        e(f"v_and_b32 {vr(t0)}, 3, {L}")
        e(f"v_bfe_u32 {vr(t1)}, {L}, 4, 1")
        e(f"v_lshl_add_u32 {vr(t0)}, {vr(t1)}, 2, {vr(t0)}")
        e(f"v_lshlrev_b32 {vr(t0)}, 3, {vr(t0)}")
        e(f"v_bfe_u32 {vr(t1)}, {L}, 2, 2")
        e(f"v_sub_u32 {vr(t0)}, {vr(t0)}, {vr(t1)}")
        e(f"v_add_u32 {vr(t0)}, 7, {vr(t0)}")
        e(f"v_lshrrev_b32 {vr(t3)}, 5, {L}")
        e(f"v_lshlrev_b32 {vr(t3)}, 3, {vr(t3)}")
        e(f"s_lshl_b32 {sr(S_T0)}, {sr(S_LW)}, 1")
        for h in range(2):
            if h == 1: e(f"v_subrev_u32 {vr(t0)}, 4, {vr(t0)}")
            e(f"v_bfe_u32 {vr(t1)}, {vr(t0)}, 1, 3")
            e(f"v_xor_b32 {vr(t1)}, {sr(S_T0)}, {vr(t1)}")
            e(f"v_lshlrev_b32 {vr(t1)}, 4, {vr(t1)}")
            e(f"v_lshl_add_u32 {vr(t1)}, {vr(t0)}, 7, {vr(t1)}")
            e(f"v_add_u32 {vr(t1)}, {vr(t1)}, {vr(t3)}")
            e(f"v_add_u32 {vr(t1)}, {L_KT}, {vr(t1)}")
            e(f"v_xor_b32 {vr(t2)}, 16, {vr(t1)}")
            for x, a in ((0, t1), (1, t2)):
                e(f"ds_read_b64_tr_b16 {vr(T+4*x+2*h,2)}, {vr(a)}")
                e(f"ds_read_b64_tr_b16 {vr(T+8+4*x+2*h,2)}, {vr(a)} offset:{L_VT-L_KT}")
        e(f"v_and_b32 {vr(t1)}, 3, {L}")
        e(f"v_lshrrev_b32 {vr(t2)}, 5, {L}")
        e(f"v_lshl_add_u32 {vr(t1)}, {vr(t2)}, 2, {vr(t1)}")
        e(f"v_lshlrev_b32 {vr(t1)}, 12, {vr(t1)}")
        e(f"v_bfe_u32 {vr(t2)}, {L}, 2, 3")
        e(f"v_lshlrev_b32 {vr(t2)}, 4, {vr(t2)}")
        e(f"v_sub_u32 {vr(t1)}, {vr(t1)}, {vr(t2)}")
        e(f"v_add_u32 {vr(t1)}, 4080, {vr(t1)}")
        e(f"s_lshl_b32 {sr(S_T0)}, {sr(S_J)}, 6")
        e(f"s_lshl_b32 {sr(S_T1)}, {sr(S_LW)}, 4")
        e(f"s_add_u32 {sr(S_T0)}, {sr(S_T0)}, {sr(S_T1)}")
        e(f"s_lshl_b32 {sr(S_T0)}, {sr(S_T0)}, 12")
        e(f"s_lshl_b32 {sr(S_T1)}, {sr(S_I2)}, 7")
        e(f"s_sub_u32 {sr(S_T0)}, {sr(S_T0)}, {sr(S_T1)}")
        e(f"v_add_u32 {vr(t1)}, {sr(S_T0)}, {vr(t1)}")
        e(f"v_add_u32 {vr(t2)}, {8*4096}, {vr(t1)}")
        e(f"s_mov_b32 {sr(S_T0)}, {WS_VT}")
        e("s_waitcnt lgkmcnt(0)")
        A.vmem(f"buffer_store_dwordx4 {vr(T,4)}, {vr(t1)}, {sr(SRD_WS,4)}, 0 offen sc0 sc1", "KVS")
        A.vmem(f"buffer_store_dwordx4 {vr(T+4,4)}, {vr(t2)}, {sr(SRD_WS,4)}, 0 offen sc0 sc1", "KVS")
        A.vmem(f"buffer_store_dwordx4 {vr(T+8,4)}, {vr(t1)}, {sr(SRD_WS,4)}, {sr(S_T0)} offen sc0 sc1", "KVS")
        A.vmem(f"buffer_store_dwordx4 {vr(T+12,4)}, {vr(t2)}, {sr(SRD_WS,4)}, {sr(S_T0)} offen sc0 sc1", "KVS")
    S_STO = S_X3
    def job_sl():
        e(f"s_lshl_b32 {sr(S_STO)}, {sr(S_RB)}, 7")
        e(f"s_lshl_b32 {sr(S_T1)}, {sr(S_LW)}, 5")
        e(f"s_add_u32 {sr(S_STO)}, {sr(S_STO)}, {sr(S_T1)}")
        e(f"s_lshl_b32 {sr(S_STO)}, {sr(S_STO)}, 3")
        e(f"s_add_u32 {sr(S_STO)}, {sr(S_STO)}, {WS_ST}")
        e(f"v_and_b32 {vr(V_SLA)}, 31, {L}")
        e(f"v_lshlrev_b32 {vr(V_SLA)}, 3, {vr(V_SLA)}")
        A.vmem(f"buffer_load_dwordx2 {vr(V_SL,2)}, {vr(V_SLA)}, {sr(SRD_WS,4)}, {sr(S_STO)} offen sc1", "SL")
    def job_kvf():
        A.wait_vm("KVS")
        e(f"s_lshl_b32 {sr(S_T0)}, {sr(S_J)}, 9")
        e(f"s_lshl_b32 {sr(S_T1)}, {sr(S_I2)}, 4")
        e(f"s_lshl_b32 {sr(S_T2)}, {sr(S_LW)}, 2")
        e(f"s_add_u32 {sr(S_T0)}, {sr(S_T0)}, {sr(S_T1)}")
        e(f"s_add_u32 {sr(S_T0)}, {sr(S_T0)}, {sr(S_T2)}")
        e(f"s_add_u32 {sr(S_T0)}, {sr(S_T0)}, {WS_FL+FL_KV}")
        flag_set(S_T0, t0)
    S_C, S_KVO, S_W, S_OKF = 62, 63, 64, 70
    def job_conv_scalars():
        e(f"s_lshl_b32 {sr(S_C)}, {sr(S_WG)}, 1")
        e(f"s_add_u32 {sr(S_C)}, {sr(S_C)}, {sr(S_CIDX)}")
        e(f"s_lshr_b32 {sr(S_KVO)}, {sr(S_C)}, 6")
        e(f"s_lshl_b32 {sr(S_KVO)}, {sr(S_KVO)}, 9")
        e(f"s_add_u32 {sr(S_KVO)}, {sr(S_KVO)}, {WS_FL+FL_KV}")
        e(f"s_lshl_b32 {sr(S_T0)}, {sr(S_C)}, 3")
        e(f"s_load_dwordx2 {sr(S_W,2)}, {sr(P+6,2)}, {sr(S_T0)}")
        e("s_waitcnt lgkmcnt(0)")
        e(f"s_and_b32 {sr(S_W+3)}, {sr(S_W+1)}, 0xffff0000")
        e(f"s_lshl_b32 {sr(S_W+2)}, {sr(S_W+1)}, 16")
        e(f"s_and_b32 {sr(S_W+1)}, {sr(S_W)}, 0xffff0000")
        e(f"s_lshl_b32 {sr(S_W)}, {sr(S_W)}, 16")
    def job_statchk():
        A.wait_vm("SL")
        lsr = A.newlabel("SR"); lso = A.newlabel("SO")
        e(f"s_mov_b32 {sr(S_T3)}, 0x40000")
        A.label(lsr)
        e(f"v_cmp_eq_u32 vcc, {sr(S_NONCE)}, {vr(V_SL+1)}")
        e("s_nop 1")
        e("s_cmp_eq_u64 vcc, -1")
        e(f"s_cbranch_scc1 {lso}")
        e(f"s_sub_u32 {sr(S_T3)}, {sr(S_T3)}, 1")
        e(f"s_cmp_eq_u32 {sr(S_T3)}, 0")
        e(f"s_cbranch_scc1 {lso}")
        e("s_sleep 2")
        e(f"buffer_load_dwordx2 {vr(V_SL,2)}, {vr(V_SLA)}, {sr(SRD_WS,4)}, {sr(S_STO)} offen sc1")
        e("s_waitcnt vmcnt(0)")
        e(f"s_branch {lsr}")
        A.label(lso)
        e(f"v_and_b32 {vr(t1)}, 0xffff0000, {vr(V_SL)}")
        e(f"v_lshlrev_b32 {vr(V_SL)}, 16, {vr(V_SL)}")
        e(f"v_rcp_f32 {vr(V_SL+1)}, {vr(t1)}")
        e(f"s_lshl_b32 {sr(S_T0)}, {sr(S_LW)}, 8")
        e(f"s_add_u32 {sr(S_T0)}, {sr(S_T0)}, {L_STAT}")
        e(f"v_add_u32 {vr(t0)}, {sr(S_T0)}, {vr(V_SLA)}")
        e("s_nop 0")
        e(f"ds_write_b64 {vr(t0)}, {vr(V_SL,2)}")
    KR, VR = 128, 160
    def job_row_srds():
        e(f"s_lshl_b32 {sr(S_T0)}, {sr(S_C)}, 12")
        e(f"s_add_u32 {sr(SRD_K)}, {sr(P+24)}, {sr(S_T0)}")
        e(f"s_addc_u32 {sr(SRD_K+1)}, {sr(P+25)}, 0")
        e(f"s_mov_b32 {sr(SRD_K+2)}, 4096")
        e(f"s_mov_b32 {sr(SRD_K+3)}, 0x20000")
        e(f"s_add_u32 {sr(S_T0)}, {sr(S_T0)}, {WS_VT}")
        e(f"s_add_u32 {sr(SRD_V)}, {sr(P+24)}, {sr(S_T0)}")
        e(f"s_addc_u32 {sr(SRD_V+1)}, {sr(P+25)}, 0")
        e(f"s_mov_b32 {sr(SRD_V+2)}, 4096")
        e(f"s_mov_b32 {sr(SRD_V+3)}, 0x20000")
    def uk_loads(track):
        for q in range(4):
            e(f"s_movk_i32 {sr(S_T2)}, {1024*q}")
            for txt in (f"buffer_load_dwordx4 {vr(KR+8*q,4)}, {vr(V_L16)}, {sr(SRD_K,4)}, {sr(S_T2)} offen sc1",
                        f"buffer_load_dwordx2 {vr(KR+8*q+4,2)}, {vr(V_L16)}, {sr(SRD_K,4)}, {sr(S_T2)} offen offset:16 sc1",
                        f"buffer_load_dwordx4 {vr(VR+4*q,4)}, {vr(V_L16)}, {sr(SRD_V,4)}, {sr(S_T2)} offen sc1"):
                if track: A.vmem(txt, "UK")
                else: e(txt)
    def job_pkv_check():
        A.wait_vm("PKV")
        lkno = A.newlabel("KNO")
        flag_check_scc(V_FL, 2)
        e(f"s_cselect_b32 {sr(S_OKF)}, 1, 0")
        e(f"s_cbranch_scc0 {lkno}")
        uk_loads(True)
        A.label(lkno)
    E = 36
    def kv_chunk(q):
        D = KR + 8*q; V = VR + 4*q
        for i in range(11):
            src = D + (i >> 1)
            e(f"v_and_b32 {vr(E+i)}, 0xffff0000, {vr(src)}" if i & 1 else f"v_lshlrev_b32 {vr(E+i)}, 16, {vr(src)}")
        for i in range(8):
            src = V + (i >> 1)
            e(f"v_and_b32 {vr(E+11+i)}, 0xffff0000, {vr(src)}" if i & 1 else f"v_lshlrev_b32 {vr(E+11+i)}, 16, {vr(src)}")
        for i in range(8): e(f"v_mul_f32 {vr(56+i)}, {sr(S_W+3)}, {vr(E+i+3)}")
        for i in range(8): e(f"v_fma_f32 {vr(56+i)}, {vr(E+i+2)}, {sr(S_W+2)}, {vr(56+i)}")
        for i in range(8): e(f"v_fma_f32 {vr(56+i)}, {vr(E+i+1)}, {sr(S_W+1)}, {vr(56+i)}")
        for i in range(8): e(f"v_fma_f32 {vr(56+i)}, {vr(E+i)}, {sr(S_W)}, {vr(56+i)}")
        for i in range(8): e(f"v_mul_f32 {vr(56+i)}, {vr(56+i)}, {vr(E+11+i)}")
        for k in range(4): e(f"v_cvt_pk_bf16_f32 {vr(D+k)}, {vr(56+2*k)}, {vr(56+2*k+1)}")
    S_DSO2, S_RA, S_RBB, S_RC = S_G4, S_X0, S_X1, S_X2
    S_KU2, S_KUN2, S_ROT2, S_OOB2 = 61, S_C0, S_G5, 60
    def job_wd_setup():
        ku_start(S_KU2, S_LW)
        e(f"s_cmp_lt_u32 {sr(S_LW)}, 2")
        e(f"s_cselect_b32 {sr(S_KUN2)}, 22, 21")
        e(f"s_mul_i32 {sr(S_ROT2)}, {sr(S_J)}, {opts.get('rot', 3)}")
        e(f"s_mov_b32 {sr(S_OOB2)}, 0x20000000")
        ring_bases(S_LW, S_RA, S_RBB, S_RC)
    def wd_dma(n):
        bi, off = ring_off(n); sb = (S_RA, S_RBB, S_RC)[bi]
        wd_soff(n, S_DSO2, S_ROT2, S_KUN2, S_KU2, S_OOB2)
        for a in range(2):
            e(f"s_add_u32 m0, {sr(sb)}, {off + 1024*a}")
            if a == 1: e(f"s_add_u32 {sr(S_DSO2)}, {sr(S_DSO2)}, 8192")
            else: e("s_nop 0")
            A.vmem(f"buffer_load_dwordx4 {vr(V_DO2)}, {sr(SRD_WD,4)}, {sr(S_DSO2)} offen lds", "WDP")
    def hk(w, addr, extra):
        O1, O2, O3 = 116, 120, 124
        for j in range(4):
            e(f"v_alignbit_b32 {vr(O1+j)}, {vr(w+j+1)}, {vr(w+j)}, 16")
            e(f"v_mov_b32 {vr(O2+j)}, {vr(w+j+1)}")
            e(f"v_alignbit_b32 {vr(O3+j)}, {vr(w+j+2)}, {vr(w+j+1)}, 16")
        e(f"ds_write_b128 {vr(addr)}, {vr(w,4)} offset:{extra}")
        e(f"ds_write_b128 {vr(addr)}, {vr(O1,4)} offset:{extra+HCOPY}")
        e(f"ds_write_b128 {vr(addr)}, {vr(O2,4)} offset:{extra+2*HCOPY}")
        e(f"ds_write_b128 {vr(addr)}, {vr(O3,4)} offset:{extra+3*HCOPY}")
        e("s_nop 1")
    S_RH, S_UB = 71, 3
    V_PF = 30
    def job_hankel():
        e(f"s_and_b32 {sr(S_RH)}, {sr(S_LW)}, 1")
        e(f"s_mul_i32 {sr(S_T0)}, {sr(S_CIDX)}, {HCH}")
        e(f"s_add_u32 {sr(S_T0)}, {sr(S_T0)}, {L_HANK}")
        e(f"s_lshl_b32 {sr(S_T1)}, {sr(S_RH)}, 11")
        e(f"s_add_u32 {sr(S_T1)}, {sr(S_T1)}, {sr(S_T0)}")
        e(f"v_add_u32 {vr(27)}, {sr(S_T0)}, {vr(V_L16)}")
        e(f"v_add_u32 {vr(28)}, {sr(S_T1)}, {vr(V_L16)}")
        for y in range(2): hk(HK[y], 28, 32 + 1024*y)
        lpb = A.newlabel("PB")
        e(f"s_cmp_lg_u32 {sr(S_RH)}, 0")
        e(f"s_cbranch_scc1 {lpb}")
        e(f"s_mov_b64 {sr(S_EX,2)}, exec")
        e("s_mov_b64 exec, 3")
        w = HK[0]
        for r in range(4): e(f"v_mov_b32 {vr(w+r)}, 0")
        e(f"v_mov_b32 {vr(w+4)}, {vr(HPB)}"); e(f"v_mov_b32 {vr(w+5)}, {vr(HPB+1)}")
        hk(w, 27, 0)
        e(f"s_mov_b64 exec, {sr(S_EX,2)}")
        A.label(lpb)
    def pt(it): return [tiles] if PPOS == it else []
    dma_stage(2)
    it_end(0, [lambda: dma_stage(3)] + pt(0), waits=("NL",))
    job_nonce_sts()
    it_end(1, [lambda: dma_stage(4)] + pt(1), waits=("S2",))
    TRI = {-1: 2, 0: 4, 1: 5}[PPOS]
    for it in range(2, 8):
        if it == TRI: job_tr_store()
        if it == 2: job_sl()
        if it == TRI + 2: job_kvf()
        if it == 4: job_conv_scalars(); job_row_srds() if False else None
        if it == 5: job_statchk(); job_wd_setup()
        if it == TRI + 3 and it <= 7:
            job_row_srds(); flag_issue(V_FL, 2, S_KVO, "PKV")
        if it == TRI + 4 and it <= 7: job_pkv_check()
        if it == TRI + 5 and it <= 7:
            lk7 = A.newlabel("K7")
            e(f"s_cmp_eq_u32 {sr(S_OKF)}, 1")
            e(f"s_cbranch_scc0 {lk7}")
            A.wait_vm("UK")
            kv_chunk(0); kv_chunk(1)
            A.label(lk7)
        if it == opts.get("hankit", 7): job_hankel()
        if it == 7: break
        st = []
        if it + 3 <= 7: st.append(lambda it=it: dma_stage(it + 3))
        if it == 2: st.append(hk_loads)
        if it == 3: st.append(wd_touch)
        if it == 5: st.append(lambda: [wd_dma(n) for n in range(0, 5)])
        if it == 6: st.append(lambda: [wd_dma(n) for n in range(5, 10)])
        w_ = [f"S{it+1}"]
        if it + 1 == TRI: w_.append("P")
        it_end(it, st, waits=tuple(w_))
    done_chunks01 = (TRI + 5 <= 7); done_check = (TRI + 4 <= 7); done_pkv = (TRI + 3 <= 7)
    e("s_waitcnt lgkmcnt(0)")
    e("s_barrier")
    stamp(3)
    wd_dma(10)
    if not done_pkv:
        job_row_srds(); flag_issue(V_FL, 2, S_KVO, "PKV")
    e(f"s_and_b32 {sr(S_RH)}, {sr(S_LW)}, 1")
    e(f"s_mul_i32 {sr(S_UB)}, {sr(S_LW)}, {UBSZ}")
    e(f"s_add_u32 {sr(S_UB)}, {sr(S_UB)}, {L_UB}")
    srd(SRD_AUX, 5, 1024)
    e(f"s_lshl_b32 {sr(S_T0)}, {sr(S_C)}, 1")
    V_DD = 32; V_CA = 33; V_CB = 34
    A.vmem(f"buffer_load_ushort {vr(V_DD)}, off, {sr(SRD_AUX,4)}, {sr(S_T0)}", "DD")
    if not done_check: job_pkv_check()
    if opts.get("hankit", 7) > 7: job_hankel()
    e("s_waitcnt lgkmcnt(0)")
    e(f"s_lshl_b32 {sr(S_T0)}, {sr(S_LW)}, 2")
    e(f"s_add_u32 {sr(S_T0)}, {sr(S_T0)}, {L_FLAG}")
    e(f"v_mov_b32 {vr(V_PF)}, {sr(S_T0)}")
    e(f"v_mov_b32 {vr(V_PF+1)}, 1")
    e(f"ds_write_b32 {vr(V_PF)}, {vr(V_PF+1)} offset:96")
    A.wait_vm("WDP")
    e(f"ds_write_b32 {vr(V_PF)}, {vr(V_PF+1)} offset:16")
    lko2 = A.newlabel("KO2"); lko3 = A.newlabel("KO3")
    e(f"s_cmp_eq_u32 {sr(S_OKF)}, 1")
    e(f"s_cbranch_scc1 {lko2}")
    flag_wait_blocking(V_FL, 2, S_KVO, sleep=4)
    uk_loads(False)
    e("s_waitcnt vmcnt(0)")
    if done_chunks01:
        kv_chunk(0); kv_chunk(1)
    A.label(lko2)
    A.wait_vm("UK", "DD")
    if not done_chunks01:
        kv_chunk(0); kv_chunk(1)
    kv_chunk(2); kv_chunk(3)
    e(f"v_add_u32 {vr(29)}, {sr(S_UB)}, {vr(V_L16)}")
    for q in range(4): e(f"ds_write_b128 {vr(29)}, {vr(KR+8*q,4)} offset:{1024*q}")
    for r in range(4): e(f"v_mov_b32 {vr(52+r)}, 0")
    e(f"v_and_b32 {vr(t0)}, 31, {L}")
    e(f"v_lshlrev_b32 {vr(t0)}, 4, {vr(t0)}")
    e(f"v_add_u32 {vr(t0)}, {sr(S_UB)}, {vr(t0)}")
    e(f"ds_write_b128 {vr(t0)}, {vr(52,4)} offset:4096")
    e(f"v_lshlrev_b32 {vr(V_DD)}, 16, {vr(V_DD)}")
    e(f"v_and_b32 {vr(t0)}, 15, {L}")
    e(f"v_lshrrev_b32 {vr(t1)}, 4, {L}")
    e(f"v_lshl_add_u32 {vr(t2)}, {vr(t1)}, 3, {vr(t0)}")
    e(f"v_add_u32 {vr(t2)}, 1, {vr(t2)}")
    e(f"v_and_b32 {vr(t3)}, 3, {vr(t2)}")
    e(f"v_sub_u32 {vr(t2)}, {vr(t2)}, {vr(t3)}")
    e(f"v_lshlrev_b32 {vr(t2)}, 1, {vr(t2)}")
    e(f"v_mul_u32_u24 {vr(t3)}, {HCOPY}, {vr(t3)}")
    e(f"v_add_u32 {vr(t2)}, {vr(t2)}, {vr(t3)}")
    e(f"s_mul_i32 {sr(S_T0)}, {sr(S_CIDX)}, {HCH}")
    e(f"s_lshl_b32 {sr(S_T1)}, {sr(S_RH)}, 8")
    e(f"s_add_u32 {sr(S_T0)}, {sr(S_T0)}, {sr(S_T1)}")
    e(f"s_add_u32 {sr(S_T0)}, {sr(S_T0)}, {L_HANK}")
    e(f"v_add_u32 {vr(V_CA)}, {sr(S_T0)}, {vr(t2)}")
    e(f"v_lshlrev_b32 {vr(t2)}, 1, {vr(t0)}")
    e(f"v_sub_u32 {vr(t2)}, {vr(t1)}, {vr(t2)}")
    e(f"v_add_u32 {vr(t2)}, 254, {vr(t2)}")
    e(f"v_lshlrev_b32 {vr(t2)}, 4, {vr(t2)}")
    e(f"s_add_u32 {sr(S_T0)}, {sr(S_UB)}, {sr(S_T1)}")
    e(f"s_sub_u32 {sr(S_T0)}, {sr(S_T0)}, 3584")
    e(f"v_add_u32 {vr(V_CB)}, {sr(S_T0)}, {vr(t2)}")
    CACC = 192; CSET = [64, 128]
    for r in range(32): e(f"v_mov_b32 {vr(CACC+r)}, 0")
    e(f"s_lshl_b32 {sr(S_T0)}, {sr(S_LW)}, 2")
    e(f"s_xor_b32 {sr(S_T0)}, {sr(S_T0)}, 4")
    e(f"s_add_u32 {sr(S_T0)}, {sr(S_T0)}, {L_FLAG+96}")
    lds_spin(S_T0, t1, t0)
    e("s_waitcnt lgkmcnt(0)")
    if opts.get("gate", 1):
        e(f"s_lshl_b32 {sr(S_T0)}, {sr(S_LW)}, 2")
        e(f"s_add_u32 {sr(S_T0)}, {sr(S_T0)}, {L_FLAG+48}")
        lds_spin(S_T0, t1, t0)
    stamp(4)
    def creads(r, st):
        out = []; b = CSET[st]
        for sp in range(8):
            out.append(f"ds_read_b64 {vr(b+4*sp,2)}, {vr(V_CA)} offset:{512*sp+64*r}")
            out.append(f"ds_read_b64 {vr(b+4*sp+2,2)}, {vr(V_CA)} offset:{512*sp+64*r+8}")
            out.append(f"ds_read_b128 {vr(b+32+4*sp,4)}, {vr(V_CB)} offset:{512*(7-sp)+64*r}")
        return out
    def cmfmas(st):
        out = []; b = CSET[st]
        for t in range(8):
            for sp in range(t + 1):
                out.append(f"v_mfma_f32_16x16x32_bf16 {vr(CACC+4*t,4)}, {vr(b+4*sp,4)}, {vr(b+32+4*(t-sp),4)}, {vr(CACC+4*t,4)}")
        return out
    for x in creads(0, 0): e(x)
    for r in range(4):
        e("s_waitcnt lgkmcnt(0)")
        mf = cmfmas(r & 1)
        rd = creads(r + 1, (r + 1) & 1) if r < 3 else []
        for idx, m in enumerate(mf):
            e(m)
            if idx < len(rd): e(rd[idx])
    stamp(5)
    V_UU = 64
    e("s_nop 7")
    e(f"v_and_b32 {vr(t0)}, 15, {L}")
    e(f"v_lshrrev_b32 {vr(t1)}, 4, {L}")
    e(f"v_lshlrev_b32 {vr(t2)}, 2, {vr(t0)}")
    e(f"v_add_u32 {vr(t2)}, {vr(t2)}, {vr(t1)}")
    e(f"v_lshlrev_b32 {vr(t2)}, 3, {vr(t2)}")
    e(f"s_lshl_b32 {sr(S_T1)}, {sr(S_RH)}, 11")
    e(f"s_sub_u32 {sr(S_T0)}, {sr(S_UB)}, {sr(S_T1)}")
    e(f"s_add_u32 {sr(S_T0)}, {sr(S_T0)}, {4088 - 1536}")
    e(f"v_sub_u32 {vr(t3)}, {sr(S_T0)}, {vr(t2)}")
    for tt in range(4): e(f"ds_read_b64 {vr(V_UU+2*tt,2)}, {vr(t3)} offset:{512*(3-tt)}")
    e("s_waitcnt lgkmcnt(0)")
    e(f"v_add_u32 {vr(t3)}, {sr(S_UB)}, {vr(V_L16)}")
    l1 = A.newlabel("PR"); l2 = A.newlabel("PR")
    e(f"s_cmp_eq_u32 {sr(S_RH)}, 0")
    e(f"s_cbranch_scc1 {l1}")
    for tt in range(4): e(f"ds_write_b128 {vr(t3)}, {vr(CACC+4*tt,4)} offset:{1024*tt}")
    e("s_nop 1")
    for r in range(16): e(f"v_mov_b32 {vr(CACC+r)}, {vr(CACC+16+r)}")
    e(f"s_branch {l2}")
    A.label(l1)
    for tt in range(4): e(f"ds_write_b128 {vr(t3)}, {vr(CACC+16+4*tt,4)} offset:{1024*tt}")
    A.label(l2)
    e("s_waitcnt lgkmcnt(0)")
    e(f"ds_write_b32 {vr(V_PF)}, {vr(V_PF+1)}")
    e(f"s_lshl_b32 {sr(S_T0)}, {sr(S_LW)}, 2")
    e(f"s_add_u32 {sr(S_T0)}, {sr(S_T0)}, {L_FLAG}")
    e(f"s_xor_b32 {sr(S_T0)}, {sr(S_T0)}, 4")
    lds_spin(S_T0, t1, t0)
    e(f"s_xor_b32 {sr(S_T0)}, {sr(S_LW)}, 1")
    e(f"s_mul_i32 {sr(S_T0)}, {sr(S_T0)}, {UBSZ}")
    e(f"s_add_u32 {sr(S_T0)}, {sr(S_T0)}, {L_UB}")
    e(f"v_add_u32 {vr(t3)}, {sr(S_T0)}, {vr(V_L16)}")
    V_PP = 80
    for tt in range(4): e(f"ds_read_b128 {vr(V_PP+4*tt,4)}, {vr(t3)} offset:{1024*tt}")
    e("s_waitcnt lgkmcnt(0)")
    for r in range(16): e(f"v_add_f32 {vr(CACC+r)}, {vr(CACC+r)}, {vr(V_PP+r)}")
    V_YP = 96
    for tt in range(4):
        y = CACC + 4*tt; u0, u1 = V_UU + 2*tt, V_UU + 2*tt + 1; U = 112
        e(f"v_and_b32 {vr(U+0)}, 0xffff0000, {vr(u1)}")
        e(f"v_lshlrev_b32 {vr(U+1)}, 16, {vr(u1)}")
        e(f"v_and_b32 {vr(U+2)}, 0xffff0000, {vr(u0)}")
        e(f"v_lshlrev_b32 {vr(U+3)}, 16, {vr(u0)}")
        for k in range(4): e(f"v_mul_f32 {vr(U+k)}, {vr(U+k)}, {vr(V_DD)}")
        e(f"v_cvt_pk_bf16_f32 {vr(U+4)}, {vr(U+0)}, {vr(U+1)}")
        e(f"v_cvt_pk_bf16_f32 {vr(U+5)}, {vr(U+2)}, {vr(U+3)}")
        e(f"v_cvt_pk_bf16_f32 {vr(U+6)}, {vr(y+0)}, {vr(y+1)}")
        e(f"v_cvt_pk_bf16_f32 {vr(U+7)}, {vr(y+2)}, {vr(y+3)}")
        for h in range(2):
            e(f"v_lshlrev_b32 {vr(U+2*h)}, 16, {vr(U+4+h)}")
            e(f"v_and_b32 {vr(U+2*h+1)}, 0xffff0000, {vr(U+4+h)}")
            e(f"v_lshlrev_b32 {vr(y+2*h)}, 16, {vr(U+6+h)}")
            e(f"v_and_b32 {vr(y+2*h+1)}, 0xffff0000, {vr(U+6+h)}")
        for k in range(4): e(f"v_add_f32 {vr(y+k)}, {vr(y+k)}, {vr(U+k)}")
        e(f"v_cvt_pk_bf16_f32 {vr(V_YP+2*tt)}, {vr(y+0)}, {vr(y+1)}")
        e(f"v_cvt_pk_bf16_f32 {vr(V_YP+2*tt+1)}, {vr(y+2)}, {vr(y+3)}")
    e("s_nop 1")
    for p in range(2):
        e(f"v_permlane16_swap_b32 {vr(V_YP+4*p)}, {vr(V_YP+4*p+2)}")
        e(f"v_permlane16_swap_b32 {vr(V_YP+4*p+1)}, {vr(V_YP+4*p+3)}")
    e(f"v_and_b32 {vr(t0)}, 15, {L}")
    e(f"v_lshrrev_b32 {vr(t1)}, 4, {L}")
    e(f"v_and_b32 {vr(t2)}, 1, {vr(t1)}")
    e(f"v_lshlrev_b32 {vr(t2)}, 9, {vr(t2)}")
    e(f"v_and_b32 {vr(t1)}, 2, {vr(t1)}")
    e(f"v_lshlrev_b32 {vr(t1)}, 3, {vr(t1)}")
    e(f"v_lshlrev_b32 {vr(t0)}, 5, {vr(t0)}")
    e(f"v_add3_u32 {vr(t0)}, {vr(t0)}, {vr(t1)}, {vr(t2)}")
    e(f"s_lshl_b32 {sr(S_T0)}, {sr(S_C)}, 12")
    e(f"s_lshl_b32 {sr(S_T1)}, {sr(S_RH)}, 11")
    e(f"s_add_u32 {sr(S_T0)}, {sr(S_T0)}, {sr(S_T1)}")
    e(f"s_add_u32 {sr(S_T0)}, {sr(S_T0)}, {WS_YYT}")
    for p in range(2):
        e(f"buffer_store_dwordx4 {vr(V_YP+4*p,4)}, {vr(t0)}, {sr(SRD_WS,4)}, {sr(S_T0)} offen offset:{1024*p} sc0 sc1")
    e("s_waitcnt vmcnt(0)")
    e(f"s_lshr_b32 {sr(S_T0)}, {sr(S_C)}, 6")
    e(f"s_lshl_b32 {sr(S_T0)}, {sr(S_T0)}, 9")
    e(f"s_and_b32 {sr(S_T1)}, {sr(S_WG)}, 31")
    e(f"s_lshl_b32 {sr(S_T1)}, {sr(S_T1)}, 4")
    e(f"s_lshl_b32 {sr(S_T2)}, {sr(S_LW)}, 2")
    e(f"s_add_u32 {sr(S_T0)}, {sr(S_T0)}, {sr(S_T1)}")
    e(f"s_add_u32 {sr(S_T0)}, {sr(S_T0)}, {sr(S_T2)}")
    e(f"s_add_u32 {sr(S_T0)}, {sr(S_T0)}, {WS_FL+FL_Y}")
    flag_set(S_T0, t0)
    stamp(6)
    ly1 = A.newlabel("YP"); ly2 = A.newlabel("YP")
    e(f"s_cmp_lg_u32 {sr(S_LW)}, 0")
    e(f"s_cbranch_scc1 {ly1}")
    if opts.get("ygate"):
        e(f"s_mov_b32 {sr(S_T0)}, {L_FLAG+64}")
        lds_spin(S_T0, t1, t0, sleep=4)
    e(f"s_lshl_b32 {sr(S_T0)}, {sr(S_J)}, 9")
    e(f"s_add_u32 {sr(S_T0)}, {sr(S_T0)}, {WS_FL+FL_Y}")
    flag_wait_blocking(V_FL, 2, S_T0, sleep=opts.get('ysleep', 8))
    e(f"v_mov_b32 {vr(t0)}, {L_FLAG+68}")
    e(f"v_mov_b32 {vr(t1)}, 1")
    e(f"ds_write_b32 {vr(t0)}, {vr(t1)}")
    e(f"s_branch {ly2}")
    A.label(ly1)
    e(f"s_mov_b32 {sr(S_T0)}, {L_FLAG+68}")
    lds_spin(S_T0, t1, t0, sleep=4)
    A.label(ly2)
    stamp(7)
    e(f"v_lshrrev_b32 {vr(t0)}, 3, {L}")
    e(f"v_and_b32 {vr(t1)}, 7, {L}")
    e(f"s_lshl_b32 {sr(S_T0)}, {sr(S_LW)}, 4")
    e(f"v_add_u32 {vr(t0)}, {sr(S_T0)}, {vr(t0)}")
    e(f"v_lshlrev_b32 {vr(t2)}, 12, {vr(t0)}")
    e(f"v_lshl_add_u32 {vr(t2)}, {vr(t1)}, 4, {vr(t2)}")
    e(f"s_lshl_b32 {sr(S_T0)}, {sr(S_J)}, 18")
    e(f"s_lshl_b32 {sr(S_T1)}, {sr(S_I2)}, 7")
    e(f"s_add_u32 {sr(S_T0)}, {sr(S_T0)}, {sr(S_T1)}")
    e(f"s_add_u32 {sr(S_T0)}, {sr(S_T0)}, {WS_YYT}")
    e(f"buffer_load_dwordx4 {vr(64,4)}, {vr(t2)}, {sr(SRD_WS,4)}, {sr(S_T0)} offen sc1")
    e(f"v_add_u32 {vr(t2)}, {8*4096}, {vr(t2)}")
    e(f"buffer_load_dwordx4 {vr(68,4)}, {vr(t2)}, {sr(SRD_WS,4)}, {sr(S_T0)} offen sc1")
    e(f"v_mul_u32_u24 {vr(t3)}, {YTROW}, {vr(t0)}")
    e(f"v_lshl_add_u32 {vr(t3)}, {vr(t1)}, 4, {vr(t3)}")
    e(f"v_add_u32 {vr(t3)}, {L_YT}, {vr(t3)}")
    e("s_waitcnt vmcnt(1)")
    e(f"ds_write_b128 {vr(t3)}, {vr(64,4)}")
    e("s_waitcnt vmcnt(0)")
    e(f"ds_write_b128 {vr(t3)}, {vr(68,4)} offset:{8*YTROW}")
    srd(SRD_OUT, 10, 2 << 20)

    A.label("L_FINAL")
    e("s_setprio 0")
    FT, FD, FO = 28, 29, 30
    e(f"v_lshrrev_b32 {vr(t0)}, 5, {L}")
    e(f"v_and_b32 {vr(t1)}, 3, {L}")
    e(f"v_lshl_add_u32 {vr(FT)}, {vr(t0)}, 2, {vr(t1)}")
    e(f"s_lshl_b32 {sr(S_T0)}, {sr(S_WAVE)}, 3")
    e(f"v_add_u32 {vr(FT)}, {sr(S_T0)}, {vr(FT)}")
    e(f"v_bfe_u32 {vr(FD)}, {L}, 2, 3")
    e(f"s_lshl_b32 {sr(S_T0)}, {sr(S_I2)}, 16")
    e(f"s_lshl_b32 {sr(S_T1)}, {sr(S_J)}, 7")
    e(f"s_add_u32 {sr(S_T0)}, {sr(S_T0)}, {sr(S_T1)}")
    e(f"v_lshlrev_b32 {vr(FO)}, 10, {vr(FT)}")
    e(f"v_lshl_add_u32 {vr(FO)}, {vr(FD)}, 4, {vr(FO)}")
    e(f"v_add_u32 {vr(FO)}, {sr(S_T0)}, {vr(FO)}")
    FX_, FS_ = 32, 36
    e(f"buffer_load_dwordx4 {vr(FX_,4)}, {vr(FO)}, {sr(SRD_Q,4)}, 0 offen")
    e("s_waitcnt lgkmcnt(0)")
    e("s_barrier")
    stamp(9)
    e(f"s_lshl_b32 {sr(S_T0)}, {sr(S_I2)}, 9")
    e(f"s_add_u32 {sr(S_T0)}, {sr(S_T0)}, {WS_ST}")
    e(f"v_lshlrev_b32 {vr(t1)}, 3, {vr(FT)}")
    e(f"buffer_load_dwordx2 {vr(FS_,2)}, {vr(t1)}, {sr(SRD_WS,4)}, {sr(S_T0)} offen sc1")
    FP = 40
    e(f"v_and_b32 {vr(t0)}, 31, {vr(FT)}")
    e(f"v_mul_u32_u24 {vr(t0)}, 272, {vr(t0)}")
    e(f"v_lshl_add_u32 {vr(t0)}, {vr(FD)}, 5, {vr(t0)}")
    e(f"s_cmp_lt_u32 {sr(S_WAVE)}, 4")
    e(f"s_cselect_b32 {sr(S_T0)}, {RA}, {RB_}")
    e(f"v_add_u32 {vr(t0)}, {sr(S_T0)}, {vr(t0)}")
    for kg in range(4):
        e(f"ds_read_b128 {vr(FP+8*kg,4)}, {vr(t0)} offset:{kg*10240}")
        e(f"ds_read_b128 {vr(FP+8*kg+4,4)}, {vr(t0)} offset:{kg*10240+16}")
    FY = 72
    e(f"v_bfe_u32 {vr(t2)}, {L}, 2, 2")
    e(f"v_and_b32 {vr(t3)}, 3, {L}")
    e(f"v_bfe_u32 {vr(t4)}, {L}, 4, 1")
    e(f"v_lshl_add_u32 {vr(t3)}, {vr(t4)}, 2, {vr(t3)}")
    e(f"v_lshl_add_u32 {vr(t2)}, {vr(t3)}, 3, {vr(t2)}")
    e(f"v_mul_u32_u24 {vr(t2)}, {YTROW}, {vr(t2)}")
    e(f"v_lshrrev_b32 {vr(t3)}, 5, {L}")
    e(f"v_lshlrev_b32 {vr(t3)}, 3, {vr(t3)}")
    e(f"s_lshl_b32 {sr(S_T0)}, {sr(S_WAVE)}, 4")
    e(f"s_add_u32 {sr(S_T0)}, {sr(S_T0)}, {L_YT}")
    e(f"v_add3_u32 {vr(t2)}, {vr(t2)}, {vr(t3)}, {sr(S_T0)}")
    e(f"ds_read_b64_tr_b16 {vr(FY,2)}, {vr(t2)}")
    e(f"ds_read_b64_tr_b16 {vr(FY+2,2)}, {vr(t2)} offset:{4*YTROW}")
    e("s_waitcnt lgkmcnt(2)")
    for kg in range(1, 4):
        for k in range(8): e(f"v_add_f32 {vr(FP+k)}, {vr(FP+k)}, {vr(FP+8*kg+k)}")
    O = FP; T = 48; XV = 56; YV = 64
    for k in range(0, 8, 2): e(f"v_cvt_pk_bf16_f32 {vr(T+k)}, {vr(O+k)}, {vr(O+k+1)}")
    for k in range(0, 8, 2):
        e(f"v_and_b32 {vr(O+k+1)}, 0xffff0000, {vr(T+k)}")
        e(f"v_lshlrev_b32 {vr(O+k)}, 16, {vr(T+k)}")
    e(f"s_mov_b32 {sr(S_T0)}, 0xbfb8aa3b")
    for k in range(8): e(f"v_mul_f32 {vr(T+k)}, {sr(S_T0)}, {vr(O+k)}")
    for k in range(8): e(f"v_exp_f32 {vr(T+k)}, {vr(T+k)}")
    for k in range(8): e(f"v_add_f32 {vr(T+k)}, 1.0, {vr(T+k)}")
    for k in range(8): e(f"v_rcp_f32 {vr(T+k)}, {vr(T+k)}")
    e("s_nop 0")
    for k in range(8): e(f"v_mul_f32 {vr(O+k)}, {vr(O+k)}, {vr(T+k)}")
    e("s_waitcnt vmcnt(0) lgkmcnt(0)")
    for k in range(4):
        e(f"v_lshlrev_b32 {vr(XV+2*k)}, 16, {vr(FX_+k)}")
        e(f"v_and_b32 {vr(XV+2*k+1)}, 0xffff0000, {vr(FX_+k)}")
        e(f"v_lshlrev_b32 {vr(YV+2*k)}, 16, {vr(FY+k)}")
        e(f"v_and_b32 {vr(YV+2*k+1)}, 0xffff0000, {vr(FY+k)}")
    e(f"v_and_b32 {vr(FS_+1)}, 0xffff0000, {vr(FS_)}")
    e(f"v_lshlrev_b32 {vr(FS_)}, 16, {vr(FS_)}")
    e(f"v_rcp_f32 {vr(FS_+1)}, {vr(FS_+1)}")
    for k in range(8): e(f"v_sub_f32 {vr(T+k)}, {vr(XV+k)}, {vr(FS_)}")
    def round8(b):
        for k in range(0, 8, 2): e(f"v_cvt_pk_bf16_f32 {vr(b+k)}, {vr(b+k)}, {vr(b+k+1)}")
        for k in range(0, 8, 2):
            e(f"v_and_b32 {vr(b+k+1)}, 0xffff0000, {vr(b+k)}")
            e(f"v_lshlrev_b32 {vr(b+k)}, 16, {vr(b+k)}")
    round8(T)
    for k in range(8): e(f"v_mul_f32 {vr(T+k)}, {vr(T+k)}, {vr(FS_+1)}")
    round8(T)
    for k in range(8): e(f"v_mul_f32 {vr(T+k)}, {vr(T+k)}, {vr(YV+k)}")
    round8(T); round8(O)
    for k in range(8): e(f"v_mul_f32 {vr(T+k)}, {vr(T+k)}, {vr(O+k)}")
    round8(T)
    for k in range(8): e(f"v_add_f32 {vr(T+k)}, {vr(T+k)}, {vr(XV+k)}")
    for k in range(4): e(f"v_cvt_pk_bf16_f32 {vr(FY+k)}, {vr(T+2*k)}, {vr(T+2*k+1)}")
    e(f"buffer_store_dwordx4 {vr(FY,4)}, {vr(FO)}, {sr(SRD_OUT,4)}, 0 offen")
    stamp(10)
    stamp_flush()
    A.label("L_END")
    e("s_endpgm")
    A.label("L_CODE_END")

    body = A.text()
    hdr = open("cdna_kernels/" + NAME + ".s.ref").read().split("; Override launch geometry")[0]
    out = hdr + "; Override launch geometry by editing the next line.\n"
    out += f"; @launch grid=(256,1,1) block=(512,1,1) lds={LDS_TOTAL}\n"
    out += f""".amdgcn_target "amdgcn-amd-amdhsa--gfx950"
.text
.globl {NAME}_kernel
.p2align 8
.type {NAME}_kernel,@function
{NAME}_kernel:
"""
    out += body
    out += f""".section .rodata,"a"
.p2align 6
.amdhsa_kernel {NAME}_kernel
  .amdhsa_next_free_vgpr 256
  .amdhsa_next_free_sgpr 102
  .amdhsa_accum_offset 256
  .amdhsa_group_segment_fixed_size 0
  .amdhsa_kernarg_size 104
  .amdhsa_user_sgpr_count 2
  .amdhsa_user_sgpr_kernarg_segment_ptr 1
  .amdhsa_system_sgpr_workgroup_id_x 1
.end_amdhsa_kernel
"""
    return out

if __name__ == "__main__":
    opts = {}
    outp = sys.argv[1]
    for a in sys.argv[2:]:
        k, _, v = a.partition("=")
        opts[k] = (int(v) if v.lstrip("-").isdigit() else (v or True))
    open(outp, "w").write(gen(opts))
```

```python
import sys, struct

NAME = "recurrent_scan__ssm_conv_h3__glu_gated_geglu__prompt"
f2u = lambda x: struct.unpack("<I", struct.pack("<f", x))[0]

class Asm:
    def __init__(self):
        self.lines = []; self.nlabel = 0; self.vm = []; self.cap = None
    def e(self, s):
        if self.cap is not None: self.cap.append(("  " + s, None))
        else: self.lines.append("  " + s)
    def label(self, l):
        assert self.cap is None, l
        self.lines.append(l + ":")
    def newlabel(self, p="L"):
        self.nlabel += 1; return f"{p}_{self.nlabel}"
    def text(self): return "\n".join(self.lines) + "\n"
    def vmem(self, s, tag):
        if self.cap is not None:
            self.cap.append(("  " + s, tag)); return
        self.e(s); self.vm.append(tag)
    def capture(self, fn):
        assert self.cap is None
        self.cap = []
        fn()
        out = self.cap; self.cap = None
        return out
    def emit_list(self, lst):
        for line, tag in lst:
            self.lines.append(line)
            if tag is not None: self.vm.append(tag)
    def merge(self, a, b):
        groups = []; cur = []
        for it in a:
            cur.append(it)
            if it[1] is not None: groups.append(cur); cur = []
        if cur: groups.append(cur)
        n = len(groups); out = []; k = 0
        for gi, g in enumerate(groups):
            out += g
            upto = (len(b) * (gi + 1)) // n
            out += b[k:upto]; k = upto
        out += b[k:]
        return out
    def wait_vm(self, *tags):
        assert self.cap is None
        last = -1
        for i, t in enumerate(self.vm):
            if t in tags: last = i
        assert last >= 0, tags
        n = len(self.vm) - 1 - last
        n = min(n, 63)
        self.e(f"s_waitcnt vmcnt({n})")
        return n

def vr(a, n=1): return f"v{a}" if n == 1 else f"v[{a}:{a+n-1}]"
def sr(a, n=1): return f"s{a}" if n == 1 else f"s[{a}:{a+n-1}]"

S, D, F = 2048, 512, 1376
WROW = F * 2
WBYTES = 512 * WROW
WS_KVT, WS_YYT, WS_HF, WS_ST, WS_FL, WS_TS = 0, 2 << 20, 4 << 20, 12 << 20, 13 << 20, 16 << 20
WS_VT = 14 << 20
FL_KV, FL_ST, FL_H, FL_Y = 0, 4096, 8192, 12288
STAGE = 40960
L_HANK = 122880
HCOPY = 4160
HCH = 4 * HCOPY
L_MISC = L_HANK + 2 * HCH
L_CS = L_MISC
L_STAT = L_MISC + 1536
L_FLAG = L_MISC + 2560
LDS_TOTAL = 163840
L_KT, L_VT = L_HANK, L_HANK + 8192
RA, RB_ = 2 * STAGE, 0
L_UB = STAGE
UBSZ = 4608
L_YT = L_UB + 4 * UBSZ
YTROW = 144
RC = L_YT + 64 * YTROW
NR = 11
def ring_off(n):
    if n < 5: return (0, n * 2048)
    if n < 10: return (1, (n - 5) * 2048)
    return (2, 0)

SRD_Q, SRD_K, SRD_V, SRD_W, SRD_WD, SRD_WS, SRD_DBG, SRD_OUT, SRD_SK, SRD_AUX = 4, 8, 12, 16, 20, 24, 28, 32, 36, 40
P = 48
S_WG = 2
S_WAVE, S_RB, S_CP, S_I2, S_J, S_F0, S_N32, S_A, S_B = 76, 77, 78, 79, 80, 81, 82, 83, 84
S_NONCE = 85
S_T0, S_T1, S_T2, S_T3, S_T4, S_T5 = 86, 87, 88, 89, 90, 91
S_G0, S_G1, S_G2, S_G3, S_G4, S_G5 = 92, 93, 94, 95, 96, 97
S_C0, S_C1 = 98, 99
S_EX = 100
S_TSP = 74
S_X0, S_X1, S_X2, S_X3 = 44, 45, 46, 47

def gen(opts):
    A = Asm(); e = A.e
    TS = opts.get("ts", False)
    HSC = "" if opts.get("hplain", 1) else " sc1"
    t0, t1, t2, t3, t4, t5 = 8, 9, 10, 11, 12, 13
    V_LANE = 3; L = vr(V_LANE)
    V_TS = 15

    def stamp(idx, dyn=None):
        if not TS: return
        e(f"{'s_memtime' if opts.get('cyc') else 's_memrealtime'} {sr(S_TSP,2)}")
        e("s_waitcnt lgkmcnt(0)")
        if dyn is None:
            e(f"v_writelane_b32 {vr(V_TS)}, {sr(S_TSP)}, {idx}")
        else:
            e(f"s_add_u32 m0, {sr(dyn)}, {idx}")
            e("s_nop 0")
            e(f"v_writelane_b32 {vr(V_TS)}, {sr(S_TSP)}, m0")
    def stamp_flush():
        if not TS: return
        e(f"s_lshl_b32 {sr(S_TSP+1)}, {sr(S_WG)}, 3")
        e(f"s_add_u32 {sr(S_TSP+1)}, {sr(S_TSP+1)}, {sr(S_WAVE)}")
        e(f"s_lshl_b32 {sr(S_TSP+1)}, {sr(S_TSP+1)}, 8")
        e(f"s_add_u32 {sr(S_TSP+1)}, {sr(S_TSP+1)}, {WS_TS}")
        e(f"v_lshlrev_b32 v14, 2, {L}")
        e(f"buffer_store_dword {vr(V_TS)}, v14, {sr(SRD_WS,4)}, {sr(S_TSP+1)} offen")

    def srd(dst, pidx, nbytes):
        e(f"s_mov_b32 {sr(dst)}, {sr(P+2*pidx)}")
        e(f"s_mov_b32 {sr(dst+1)}, {sr(P+2*pidx+1)}")
        e(f"s_mov_b32 {sr(dst+2)}, {nbytes}")
        e(f"s_mov_b32 {sr(dst+3)}, 0x20000")

    def flag_issue(vdst, nw, soff_sgpr, tag):
        e(f"v_lshlrev_b32 {vr(t5)}, {1 + nw}, {L}")
        op = "buffer_load_dword" if nw == 1 else "buffer_load_dwordx2"
        A.vmem(f"{op} {vr(vdst,nw)}, {vr(t5)}, {sr(SRD_WS,4)}, {sr(soff_sgpr)} offen sc1", tag)
    def flag_check_scc(vdst, nw):
        e(f"v_cmp_eq_u32 vcc, {sr(S_NONCE)}, {vr(vdst)}")
        if nw == 2:
            e(f"v_cmp_eq_u32 {sr(S_T4,2)}, {sr(S_NONCE)}, {vr(vdst+1)}")
            e("s_nop 1")
            e(f"s_and_b64 vcc, vcc, {sr(S_T4,2)}")
        else:
            e("s_nop 1")
        e("s_cmp_eq_u64 vcc, -1")
    def flag_wait_blocking(vdst, nw, soff_sgpr, sleep=4):
        l = A.newlabel("POLL"); d = A.newlabel("POLLD")
        n0 = len(A.vm)
        e(f"s_mov_b32 {sr(S_T3)}, 0x40000")
        A.label(l)
        flag_issue(vdst, nw, soff_sgpr, "poll")
        e("s_waitcnt vmcnt(0)")
        flag_check_scc(vdst, nw)
        e(f"s_cbranch_scc1 {d}")
        e(f"s_sub_u32 {sr(S_T3)}, {sr(S_T3)}, 1")
        e(f"s_cmp_eq_u32 {sr(S_T3)}, 0")
        e(f"s_cbranch_scc1 {d}")
        e(f"s_sleep {sleep}")
        e(f"s_branch {l}")
        A.label(d)
        del A.vm[n0:]
    def flag_set(soff_sgpr, vtmp):
        e(f"v_mov_b32 {vr(vtmp)}, {sr(S_NONCE)}")
        e(f"s_mov_b64 {sr(S_EX,2)}, exec")
        e("s_mov_b64 exec, 1")
        A.vmem(f"buffer_store_dword {vr(vtmp)}, off, {sr(SRD_WS,4)}, {sr(soff_sgpr)} sc0 sc1", "flag")
        e(f"s_mov_b64 exec, {sr(S_EX,2)}")
    def lds_spin(addr_sgpr, vt, va, sleep=1):
        l = A.newlabel("LS"); d = A.newlabel("LSD")
        e(f"v_mov_b32 {vr(va)}, {sr(addr_sgpr)}")
        e(f"s_mov_b32 {sr(S_T3)}, 0x200000")
        A.label(l)
        e(f"ds_read_b32 {vr(vt)}, {vr(va)}")
        e("s_waitcnt lgkmcnt(0)")
        e(f"v_readfirstlane_b32 {sr(S_T2)}, {vr(vt)}")
        e("s_nop 3")
        e(f"s_cmp_eq_u32 {sr(S_T2)}, 1")
        e(f"s_cbranch_scc1 {d}")
        e(f"s_sub_u32 {sr(S_T3)}, {sr(S_T3)}, 1")
        e(f"s_cmp_eq_u32 {sr(S_T3)}, 0")
        e(f"s_cbranch_scc1 {d}")
        e(f"s_sleep {sleep}")
        e(f"s_branch {l}")
        A.label(d)
    def wd_voffset(dst):
        e(f"v_lshrrev_b32 {vr(t0)}, 3, {L}")
        e(f"v_and_b32 {vr(t1)}, 7, {L}")
        e(f"v_bfe_u32 {vr(t2)}, {L}, 4, 1")
        e(f"v_lshlrev_b32 {vr(t2)}, 2, {vr(t2)}")
        e(f"v_xor_b32 {vr(t1)}, {vr(t1)}, {vr(t2)}")
        e(f"v_lshlrev_b32 {vr(t1)}, 4, {vr(t1)}")
        e(f"v_lshl_add_u32 {vr(t1)}, {vr(t0)}, 10, {vr(t1)}")
        e(f"s_lshl_b32 {sr(S_T1)}, {sr(S_J)}, 7")
        e(f"v_add_u32 {vr(dst)}, {sr(S_T1)}, {vr(t1)}")
    def ku_start(dst, kg):
        e(f"s_mul_i32 {sr(dst)}, {sr(kg)}, 22")
        e(f"s_cmp_eq_u32 {sr(kg)}, 3")
        e(f"s_cselect_b32 {sr(S_T1)}, 1, 0")
        e(f"s_sub_u32 {sr(dst)}, {sr(dst)}, {sr(S_T1)}")
    def unit_at(n, dst, rot, kun):
        e(f"s_add_u32 {sr(dst)}, {sr(rot)}, {n}")
        e(f"s_cmp_ge_u32 {sr(dst)}, 22")
        e(f"s_cselect_b32 {sr(S_T5)}, 22, 0")
        e(f"s_sub_u32 {sr(dst)}, {sr(dst)}, {sr(S_T5)}")
        e(f"s_cmp_lt_u32 {sr(dst)}, {sr(kun)}")
    def wd_soff(n, dst, rot, kun, ku0, oob):
        unit_at(n, dst, rot, kun)
        e(f"s_cselect_b32 {sr(S_T5)}, 1, 0")
        e(f"s_add_u32 {sr(dst)}, {sr(dst)}, {sr(ku0)}")
        e(f"s_lshl_b32 {sr(dst)}, {sr(dst)}, 14")
        e(f"s_cmp_eq_u32 {sr(S_T5)}, 1")
        e(f"s_cselect_b32 {sr(dst)}, {sr(dst)}, {sr(oob)}")
    def ring_bases(kg, ra, rb, rc):
        e(f"s_mul_i32 {sr(ra)}, {sr(kg)}, 10240")
        e(f"s_add_u32 {sr(rb)}, {sr(ra)}, {RB_}")
        e(f"s_add_u32 {sr(ra)}, {sr(ra)}, {RA}")
        e(f"s_lshl_b32 {sr(rc)}, {sr(kg)}, 11")
        e(f"s_add_u32 {sr(rc)}, {sr(rc)}, {RC}")

    def loader_setup(lw, V_XO, V_WO, S_M0X, S_M0W):
        e(f"v_lshrrev_b32 {vr(t0)}, 3, {L}")
        e(f"v_lshrrev_b32 {vr(t1)}, 4, {L}")
        e(f"v_and_b32 {vr(t2)}, 7, {L}")
        e(f"s_lshl_b32 {sr(S_T2)}, {sr(S_RB)}, 7")
        e(f"s_lshl_b32 {sr(S_T3)}, {sr(lw)}, 5")
        e(f"s_add_u32 {sr(S_T2)}, {sr(S_T2)}, {sr(S_T3)}")
        for a in range(2):
            e(f"v_add_u32 {vr(t3)}, {4*a}, {vr(t1)}")
            e(f"v_xor_b32 {vr(t3)}, {vr(t3)}, {vr(t2)}")
            e(f"v_lshlrev_b32 {vr(t3)}, 4, {vr(t3)}")
            e(f"v_add_u32 {vr(t4)}, {sr(S_T2)}, {vr(t0)}")
            e(f"v_add_u32 {vr(t4)}, {8*a}, {vr(t4)}")
            e(f"v_lshl_add_u32 {vr(V_XO+a)}, {vr(t4)}, 10, {vr(t3)}")
        e(f"s_and_b32 {sr(S_T1)}, {sr(lw)}, 1")
        e(f"s_lshl_b32 {sr(S_T3)}, {sr(S_T1)}, 1")
        e(f"s_lshr_b32 {sr(S_T4)}, {sr(lw)}, 1")
        e(f"s_lshl_b32 {sr(S_T4)}, {sr(S_T4)}, 5")
        e(f"s_lshl_b32 {sr(S_T5)}, {sr(S_F0)}, 1")
        e(f"s_movk_i32 {sr(S_T0)}, {WROW}")
        for i in range(3):
            e(f"v_add_u32 {vr(t0)}, {64*i}, {L}")
            e(f"v_lshrrev_b32 {vr(t1)}, 4, {vr(t0)}")
            e(f"v_mul_u32_u24 {vr(t1)}, 43, {vr(t1)}")
            e(f"v_lshrrev_b32 {vr(t1)}, 7, {vr(t1)}")
            e(f"v_mul_u32_u24 {vr(t2)}, 48, {vr(t1)}")
            e(f"v_sub_u32 {vr(t2)}, {vr(t0)}, {vr(t2)}")
            e(f"v_lshrrev_b32 {vr(t3)}, 4, {vr(t2)}")
            e(f"v_bfe_u32 {vr(t4)}, {vr(t2)}, 2, 2")
            e(f"v_and_b32 {vr(t2)}, 3, {vr(t2)}")
            e(f"v_xor_b32 {vr(t2)}, {sr(S_T3)}, {vr(t2)}")
            e(f"v_lshl_add_u32 {vr(t2)}, {vr(t3)}, 2, {vr(t2)}")
            e(f"v_lshl_add_u32 {vr(t1)}, {vr(t1)}, 2, {vr(t4)}")
            e(f"v_add_u32 {vr(t1)}, {sr(S_T4)}, {vr(t1)}")
            e(f"v_mul_u32_u24 {vr(t1)}, {sr(S_T0)}, {vr(t1)}")
            e(f"v_lshl_add_u32 {vr(t2)}, {vr(t2)}, 4, {vr(t1)}")
            e(f"v_add_u32 {vr(V_WO+i)}, {sr(S_T5)}, {vr(t2)}")
        e(f"s_lshl_b32 {sr(S_M0X)}, {sr(lw)}, 12")
        e(f"s_mul_i32 {sr(S_M0W)}, {sr(S_T1)}, 12288")
        e(f"s_lshr_b32 {sr(S_T4)}, {sr(lw)}, 1")
        e(f"s_mul_i32 {sr(S_T4)}, {sr(S_T4)}, 6144")
        e(f"s_add_u32 {sr(S_M0W)}, {sr(S_M0W)}, {sr(S_T4)}")
        e(f"s_add_u32 {sr(S_M0W)}, {sr(S_M0W)}, 16384")
    def srd_w_select(lw):
        e(f"s_and_b32 {sr(S_T0)}, {sr(lw)}, 1")
        e(f"s_cmp_eq_u32 {sr(S_T0)}, 0")
        e(f"s_cselect_b32 {sr(SRD_W)}, {sr(P+14)}, {sr(P+16)}")
        e(f"s_cselect_b32 {sr(SRD_W+1)}, {sr(P+15)}, {sr(P+17)}")
        e(f"s_mov_b32 {sr(SRD_W+2)}, {WBYTES}")
        e(f"s_mov_b32 {sr(SRD_W+3)}, 0x20000")
    def dma_stage_g(s, V_XO, V_WO, S_M0X, S_M0W, S_XSO, S_WSO):
        slot = (s % 3) * STAGE
        e(f"s_mov_b32 {sr(S_XSO)}, {s*128}")
        e(f"s_add_u32 m0, {sr(S_M0X)}, {slot}")
        for a in range(4):
            if a == 2: e(f"s_mov_b32 {sr(S_XSO)}, {s*128+16384}")
            else: e("s_nop 0")
            A.vmem(f"buffer_load_dwordx4 {vr(V_XO+(a&1))}, {sr(SRD_Q,4)}, {sr(S_XSO)} offen lds", f"S{s}")
            if a < 3: e("s_add_u32 m0, m0, 1024")
        e(f"s_mov_b32 {sr(S_WSO)}, {s*64*WROW}")
        e(f"s_add_u32 m0, {sr(S_M0W)}, {slot}")
        for blk in range(2):
            for i in range(3):
                if blk == 1 and i == 0: e(f"s_mov_b32 {sr(S_WSO)}, {s*64*WROW+16*WROW}")
                else: e("s_nop 0")
                A.vmem(f"buffer_load_dwordx4 {vr(V_WO+i)}, {sr(SRD_W,4)}, {sr(S_WSO)} offen lds", f"S{s}")
                if not (blk == 1 and i == 2): e("s_add_u32 m0, m0, 1024")

    if TS: e("s_memrealtime s[44:45]")
    e(f"s_cmp_ge_u32 {sr(S_WG)}, 256")
    e("s_cbranch_scc1 L_END")
    e(f"s_load_dwordx16 {sr(P,16)}, s[0:1], 0")
    e(f"s_load_dwordx8 {sr(P+16,8)}, s[0:1], 64")
    e(f"s_load_dwordx2 {sr(P+24,2)}, s[0:1], 96")
    e(f"s_getpc_b64 {sr(S_T0,2)}")
    e("v_lshlrev_b32 v1, 6, v0")
    e(f"v_cmp_gt_u32 vcc, L_CODE_END-{NAME}_kernel, v1")
    e(f"s_and_saveexec_b64 {sr(S_EX,2)}, vcc")
    e(f"global_load_dword v2, v1, {sr(S_T0,2)}")
    e(f"s_mov_b64 exec, {sr(S_EX,2)}")
    e(f"v_and_b32 {L}, 63, v0")
    e("v_lshrrev_b32 v4, 6, v0")
    e(f"s_and_b32 {sr(S_T0)}, {sr(S_WG)}, 7")
    e(f"v_readfirstlane_b32 {sr(S_WAVE)}, v4")
    e(f"s_lshr_b32 {sr(S_T1)}, {sr(S_WG)}, 3")
    e(f"s_and_b32 {sr(S_T2)}, {sr(S_T0)}, 1")
    e(f"s_lshl_b32 {sr(S_T2)}, {sr(S_T2)}, 3")
    e(f"s_and_b32 {sr(S_T3)}, {sr(S_T1)}, 7")
    e(f"s_add_u32 {sr(S_RB)}, {sr(S_T2)}, {sr(S_T3)}")
    e(f"s_lshr_b32 {sr(S_T2)}, {sr(S_T0)}, 1")
    e(f"s_lshl_b32 {sr(S_T2)}, {sr(S_T2)}, 2")
    e(f"s_lshr_b32 {sr(S_T3)}, {sr(S_T1)}, 3")
    e(f"s_add_u32 {sr(S_CP)}, {sr(S_T2)}, {sr(S_T3)}")
    e(f"s_lshl_b32 {sr(S_T2)}, {sr(S_T0)}, 2")
    e(f"s_and_b32 {sr(S_T3)}, {sr(S_T1)}, 3")
    e(f"s_add_u32 {sr(S_I2)}, {sr(S_T2)}, {sr(S_T3)}")
    e(f"s_lshr_b32 {sr(S_J)}, {sr(S_T1)}, 2")
    e(f"s_mul_i32 {sr(S_T2)}, {sr(S_CP)}, 96")
    e(f"s_lshl_b32 {sr(S_T3)}, {sr(S_CP)}, 6")
    e(f"s_add_u32 {sr(S_T3)}, {sr(S_T3)}, 352")
    e(f"s_cmp_lt_u32 {sr(S_CP)}, 11")
    e(f"s_cselect_b32 {sr(S_F0)}, {sr(S_T2)}, {sr(S_T3)}")
    e(f"s_cselect_b32 {sr(S_N32)}, 3, 2")
    if TS:
        e(f"v_mov_b32 {vr(V_TS)}, 0")
        e("s_waitcnt lgkmcnt(0)")
        e(f"v_writelane_b32 {vr(V_TS)}, s44, 63")
        e(f"s_memrealtime s[44:45]")
        e("s_waitcnt lgkmcnt(0)")
        e(f"v_writelane_b32 {vr(V_TS)}, s44, 62")
    e(f"s_cmp_ge_u32 {sr(S_WAVE)}, 4")
    e("s_cbranch_scc1 L_HELPER")

    A.vm = ["code"]
    e(f"s_setprio {opts.get('cprio', 2)}")
    e(f"s_and_b32 {sr(S_A)}, {sr(S_WAVE)}, 1")
    e(f"s_lshr_b32 {sr(S_B)}, {sr(S_WAVE)}, 1")
    FS = [16, 36]
    V_XR, V_WR, V_XR2, V_WR2 = 56, 60, 66, 70
    ACC = 160
    e(f"v_and_b32 {vr(t0)}, 31, {L}")
    e(f"v_lshrrev_b32 {vr(t1)}, 5, {L}")
    e(f"v_bfe_u32 {vr(t2)}, {vr(t0)}, 1, 3")
    e(f"v_xor_b32 {vr(t2)}, {vr(t2)}, {vr(t1)}")
    e(f"s_lshl_b32 {sr(S_T0)}, {sr(S_A)}, 1")
    e(f"v_xor_b32 {vr(t2)}, {sr(S_T0)}, {vr(t2)}")
    e(f"s_lshl_b32 {sr(S_T0)}, {sr(S_A)}, 6")
    e(f"v_add_u32 {vr(t0)}, {sr(S_T0)}, {vr(t0)}")
    e(f"v_lshlrev_b32 {vr(t0)}, 7, {vr(t0)}")
    for ks in range(4):
        e(f"v_xor_b32 {vr(t3)}, {2*ks}, {vr(t2)}")
        e(f"v_lshl_add_u32 {vr(V_XR+ks)}, {vr(t3)}, 4, {vr(t0)}")
    e(f"v_bfe_u32 {vr(t0)}, {L}, 4, 1")
    e(f"v_lshrrev_b32 {vr(t1)}, 5, {L}")
    e(f"v_bfe_u32 {vr(t2)}, {L}, 2, 2")
    e(f"v_bfe_u32 {vr(t3)}, {L}, 1, 1")
    e(f"v_and_b32 {vr(t4)}, 1, {L}")
    e(f"s_lshl_b32 {sr(S_T0)}, {sr(S_B)}, 1")
    e(f"v_add_u32 {vr(t3)}, {sr(S_T0)}, {vr(t3)}")
    e(f"v_lshlrev_b32 {vr(t5)}, 1, {vr(t0)}")
    e(f"v_xor_b32 {vr(t3)}, {vr(t3)}, {vr(t5)}")
    e(f"v_lshlrev_b32 {vr(t3)}, 4, {vr(t3)}")
    e(f"v_lshl_add_u32 {vr(t3)}, {vr(t4)}, 3, {vr(t3)}")
    e(f"v_lshl_add_u32 {vr(t3)}, {vr(t2)}, 6, {vr(t3)}")
    e(f"v_mul_u32_u24 {vr(t1)}, 1536, {vr(t1)}")
    e(f"v_mul_u32_u24 {vr(t0)}, 12288, {vr(t0)}")
    e(f"v_add3_u32 {vr(t3)}, {vr(t3)}, {vr(t1)}, {vr(t0)}")
    e(f"v_add_u32 {vr(t3)}, 16384, {vr(t3)}")
    e(f"s_mul_i32 {sr(S_T1)}, {sr(S_A)}, 3072")
    for i in range(3):
        e(f"s_cmp_eq_u32 {sr(S_A)}, 0")
        e(f"s_cselect_b32 {sr(S_T0)}, {i*256}, {(2-i)*256}")
        e(f"s_add_u32 {sr(S_T2)}, {sr(S_T0)}, {sr(S_T1)}")
        e(f"v_add_u32 {vr(V_WR+i)}, {sr(S_T2)}, {vr(t3)}")
        e(f"s_sub_u32 {sr(S_T2)}, {sr(S_T0)}, {sr(S_T1)}")
        e(f"v_add_u32 {vr(V_WR+3+i)}, {sr(S_T2)}, {vr(t3)}")
    for ks in range(4): e(f"v_add_u32 {vr(V_XR2+ks)}, {2*STAGE}, {vr(V_XR+ks)}")
    for i in range(6): e(f"v_add_u32 {vr(V_WR2+i)}, {2*STAGE}, {vr(V_WR+i)}")
    loader_setup(S_WAVE, 94, 96, S_X0, S_X1)
    for r in range(96): e(f"v_mov_b32 {vr(ACC+r)}, 0")
    for r in range(12): e(f"v_mov_b32 {vr(80+r)}, 0")
    e(f"v_and_b32 {vr(t0)}, 15, {L}")
    e(f"v_bfe_u32 {vr(t1)}, {L}, 4, 1")
    e(f"v_cmp_eq_u32 vcc, {vr(t0)}, {vr(t1)}")
    e(f"v_mov_b32 {vr(t2)}, 0x3f803f80")
    e("s_nop 0")
    e(f"v_cndmask_b32 {vr(76)}, 0, {vr(t2)}, vcc")
    for r in range(1, 4): e(f"v_mov_b32 {vr(76+r)}, {vr(76)}")
    e("s_waitcnt lgkmcnt(0)")
    srd(SRD_Q, 0, 2 << 20); srd(SRD_WD, 9, WBYTES); srd(SRD_OUT, 10, 2 << 20); srd(SRD_WS, 12, 0x10000000)
    V_TX, V_TW, V_DUM = 100, 101, 92
    BAD = 0x7fffff00
    e(f"s_and_b32 {sr(S_T0)}, {sr(S_CP)}, 3")
    e(f"s_lshl_b32 {sr(S_T0)}, {sr(S_T0)}, 5")
    e(f"s_lshl_b32 {sr(S_T1)}, {sr(S_RB)}, 7")
    e(f"s_add_u32 {sr(S_T0)}, {sr(S_T0)}, {sr(S_T1)}")
    e(f"v_and_b32 {vr(t1)}, 31, {L}")
    e(f"v_add_u32 {vr(t1)}, {sr(S_T0)}, {vr(t1)}")
    e(f"v_lshlrev_b32 {vr(t1)}, 10, {vr(t1)}")
    e(f"v_lshrrev_b32 {vr(t0)}, 5, {L}")
    e(f"v_lshl_add_u32 {vr(V_TX)}, {vr(t0)}, 7, {vr(t1)}")
    e(f"v_cmp_gt_u32 vcc, 32, {L}")
    e(f"v_mov_b32 {vr(t2)}, {BAD}")
    e("s_nop 0")
    e(f"v_cndmask_b32 {vr(V_TX+2)}, {vr(t2)}, {vr(V_TX)}, vcc")
    e(f"s_and_b32 {sr(S_T0)}, {sr(S_RB)}, 7")
    e(f"s_lshl_b32 {sr(S_T0)}, {sr(S_T0)}, 3")
    e(f"v_lshrrev_b32 {vr(t0)}, 4, {L}")
    e(f"v_lshlrev_b32 {vr(t3)}, 6, {vr(t0)}")
    e(f"v_bfe_u32 {vr(t1)}, {L}, 1, 3")
    e(f"v_add3_u32 {vr(t3)}, {vr(t3)}, {vr(t1)}, {sr(S_T0)}")
    e(f"s_movk_i32 {sr(S_T1)}, {WROW}")
    e(f"v_mul_lo_u32 {vr(t1)}, {vr(t3)}, {sr(S_T1)}")
    e(f"v_and_b32 {vr(t2)}, 1, {L}")
    e(f"v_lshl_add_u32 {vr(t1)}, {vr(t2)}, 7, {vr(t1)}")
    e(f"s_lshl_b32 {sr(S_T1)}, {sr(S_F0)}, 1")
    e(f"v_add_u32 {vr(V_TW)}, {sr(S_T1)}, {vr(t1)}")
    e(f"v_mov_b32 {vr(t2)}, {BAD}")
    e(f"v_cmp_gt_u32 vcc, 48, {L}")
    e("s_nop 0")
    e(f"v_cndmask_b32 {vr(V_TW+2)}, {vr(t2)}, {vr(V_TW)}, vcc")
    e(f"v_cmp_gt_u32 vcc, 16, {L}")
    e("s_nop 1")
    e(f"v_cndmask_b32 {vr(V_TW+3)}, {vr(t2)}, {vr(V_TW)}, vcc")
    e(f"s_cmp_eq_u32 {sr(S_WAVE)}, 1")
    e(f"s_cselect_b32 {sr(SRD_K)}, {sr(P+14)}, {sr(P+16)}")
    e(f"s_cselect_b32 {sr(SRD_K+1)}, {sr(P+15)}, {sr(P+17)}")
    e(f"s_mov_b32 {sr(SRD_K+2)}, {WBYTES}")
    e(f"s_mov_b32 {sr(SRD_K+3)}, 0x20000")
    NPT = opts.get("npt", 3)
    def touch(stage_lo, nst):
        l1 = A.newlabel("TC"); l2 = A.newlabel("TC")
        e(f"s_cmp_eq_u32 {sr(S_WAVE)}, 0"); e(f"s_cbranch_scc0 {l1}")
        if nst == 1:
            e(f"s_movk_i32 {sr(S_T0)}, {stage_lo*128}")
            e(f"buffer_load_dword {vr(V_DUM)}, {vr(V_TX+2)}, {sr(SRD_Q,4)}, {sr(S_T0)} offen")
        else:
            e(f"s_movk_i32 {sr(S_T0)}, {stage_lo*128}")
            e(f"buffer_load_dword {vr(V_DUM)}, {vr(V_TX)}, {sr(SRD_Q,4)}, {sr(S_T0)} offen")
            e(f"s_movk_i32 {sr(S_T0)}, {(stage_lo+2)*128}")
            e(f"buffer_load_dword {vr(V_DUM)}, {vr(V_TX+2)}, {sr(SRD_Q,4)}, {sr(S_T0)} offen")
        e(f"s_branch {l2}")
        A.label(l1)
        e(f"s_mov_b32 {sr(S_T0)}, {stage_lo*64*WROW}")
        e(f"s_cmp_eq_u32 {sr(S_WAVE)}, 3")
        e(f"s_cselect_b32 {sr(S_T0)}, 0x40000000, {sr(S_T0)}")
        e(f"buffer_load_dword {vr(V_DUM)}, {vr(V_TW+3 if nst == 1 else V_TW+2)}, {sr(SRD_K,4)}, {sr(S_T0)} offen")
        A.label(l2)
    touch(1, 3)
    if opts.get("tfirst", 1): e("s_barrier")
    srd_w_select(S_WAVE)
    dma_stage_g(1, 94, 96, S_X0, S_X1, S_X2, S_X3)
    TOUCH2 = []
    stamp(0)
    def reads(stage, ks, st):
        b = FS[st]; out = []
        slot = stage % 3
        xr, wr, o = (V_XR, V_WR, slot*STAGE) if slot < 2 else (V_XR2, V_WR2, 0)
        out.append(f"ds_read_b128 {vr(b,4)}, {vr(xr+ks)} offset:{o}")
        wa = wr + (3 if ks & 1 else 0)
        for h in range(2): out.append(f"ds_read_b64_tr_b16 {vr(b+8+2*h,2)}, {vr(wa)} offset:{o+ks*3072+h*768}")
        out.append(f"ds_read_b128 {vr(b+4,4)}, {vr(xr+ks)} offset:{o+4096}")
        for i in range(1, 3):
            for h in range(2): out.append(f"ds_read_b64_tr_b16 {vr(b+8+4*i+2*h,2)}, {vr(wa+i)} offset:{o+ks*3072+h*768}")
        return out
    V_SEL = 76; V_CSA = 80
    def kstep(ks, st, nxt, job=()):
        b = FS[st]; mf = []
        for i in range(3):
            for tt in range(2):
                a = ACC + 16*(2*i+tt)
                mf.append((f"v_mfma_f32_32x32x16_bf16 {vr(a,16)}, {vr(b+8+4*i,4)}, {vr(b+4*tt,4)}, {vr(a,16)}", 4))
            if ks % 2 == 0 and not opts.get("nocs"):
                mf.append((f"v_mfma_f32_16x16x32_bf16 {vr(V_CSA+4*i,4)}, {vr(V_SEL,4)}, {vr(b+8+4*i,4)}, {vr(V_CSA+4*i,4)}", 2))
        fill = list(nxt) + list(job)
        cap = sum(c for _, c in mf)
        k = 0; done = 0
        for m, c in mf:
            e(m)
            done += c
            upto = (len(fill) * done + cap - 1) // cap
            for x in fill[k:upto]: e(x)
            k = max(k, upto)
    job_at = {}
    e("s_barrier")
    stamp(1)
    for x in reads(0, 0, 0): e(x)
    for it in range(8):
        for ks in range(4):
            g = 4*it + ks
            if ks == 3 and it < 7:
                e("s_waitcnt vmcnt(1) lgkmcnt(0)" if it == 0 else "s_waitcnt lgkmcnt(0)")
                if opts.get("barstamp"): stamp(24 + it)
                e("s_barrier")
                if opts.get("barstamp"): stamp(32 + it)
            else:
                e("s_waitcnt lgkmcnt(0)")
            if ks == 1 and it + 4 <= 7: touch(it + 4, 1)
            if ks < 3: nxt = reads(it, ks + 1, (g + 1) & 1)
            elif it < 7: nxt = reads(it + 1, 0, (g + 1) & 1)
            else: nxt = []
            kstep(ks, g & 1, nxt, job_at.get(g, []))
        if opts.get("itstamp"): stamp(16 + it)
    stamp(2)
    e("s_nop 7")
    e(f"s_lshl_b32 {sr(S_T0)}, {sr(S_B)}, 1")
    e(f"s_add_u32 {sr(S_T0)}, {sr(S_T0)}, {sr(S_A)}")
    e(f"s_mul_i32 {sr(S_T0)}, {sr(S_T0)}, 384")
    e(f"s_add_u32 {sr(S_T0)}, {sr(S_T0)}, {L_CS}")
    e(f"v_lshlrev_b32 {vr(t0)}, 2, {L}")
    e(f"v_add_u32 {vr(t0)}, {sr(S_T0)}, {vr(t0)}")
    e(f"s_mov_b64 {sr(S_EX,2)}, exec")
    e("s_mov_b64 exec, 0xffff")
    for i in range(3):
        e(f"s_cmp_eq_u32 {sr(S_A)}, 0")
        e(f"s_cselect_b32 {sr(S_T1)}, {i*128}, {(2-i)*128}")
        e(f"v_add_u32 {vr(t1)}, {sr(S_T1)}, {vr(t0)}")
        e(f"ds_write_b32 {vr(t1)}, {vr(80+4*i)}")
        e(f"ds_write_b32 {vr(t1)}, {vr(80+4*i+1)} offset:64")
    e(f"s_mov_b64 exec, {sr(S_EX,2)}")
    e("s_waitcnt lgkmcnt(0)")
    e("s_barrier")
    stamp(3)
    if opts.get("g1only"):
        stamp_flush()
        e("s_endpgm")
    e("s_setprio 2")
    e(f"v_mov_b32 {vr(t0)}, {L_FLAG+32}")
    e(f"ds_read_b32 {vr(t1)}, {vr(t0)}")
    ST = 84
    e(f"v_and_b32 {vr(t2)}, 31, {L}")
    e(f"v_lshlrev_b32 {vr(t2)}, 3, {vr(t2)}")
    e(f"s_lshl_b32 {sr(S_T0)}, {sr(S_A)}, 9")
    e(f"s_add_u32 {sr(S_T0)}, {sr(S_T0)}, {L_STAT}")
    e(f"v_add_u32 {vr(t2)}, {sr(S_T0)}, {vr(t2)}")
    e(f"ds_read_b64 {vr(ST,2)}, {vr(t2)}")
    e(f"ds_read_b64 {vr(ST+2,2)}, {vr(t2)} offset:256")
    CGS = [16, 32, 48]; CG2 = [64, 96, 112]
    e(f"v_lshrrev_b32 {vr(t5)}, 5, {L}")
    e(f"v_lshlrev_b32 {vr(t5)}, 4, {vr(t5)}")
    e(f"s_mul_i32 {sr(S_T0)}, {sr(S_B)}, 768")
    e(f"s_add_u32 {sr(S_T0)}, {sr(S_T0)}, {L_CS}")
    e(f"v_add_u32 {vr(t5)}, {sr(S_T0)}, {vr(t5)}")
    for i in range(3):
        e(f"s_cmp_eq_u32 {sr(S_A)}, 0")
        e(f"s_cselect_b32 {sr(S_T1)}, {i*128}, {(2-i)*128}")
        e(f"v_add_u32 {vr(t0)}, {sr(S_T1)}, {vr(t5)}")
        for rp in range(4): e(f"ds_read_b128 {vr(CGS[i]+4*rp,4)}, {vr(t0)} offset:{32*rp}")
        for rp in range(4): e(f"ds_read_b128 {vr(CG2[i]+4*rp,4)}, {vr(t0)} offset:{384+32*rp}")
    e("s_waitcnt lgkmcnt(0)")
    e(f"v_readfirstlane_b32 {sr(S_NONCE)}, {vr(t1)}")
    C1 = -2.0 * 0.7978845608028654 * 0.044715 * 1.4426950408889634
    C0 = -2.0 * 0.7978845608028654 * 1.4426950408889634
    NMp, K1p, K0p, IRp = [144, 146], [148, 150], [152, 154], [156, 158]
    e(f"s_mov_b32 {sr(S_T4)}, {f2u(C1):#x}")
    e(f"s_mov_b32 {sr(S_T5)}, {f2u(C0):#x}")
    for tt in range(2):
        m, r = ST + 2*tt, ST + 2*tt + 1
        e(f"v_sub_f32 {vr(NMp[tt])}, 0, {vr(m)}")
        e(f"v_mul_f32 {vr(K0p[tt])}, {sr(S_T5)}, {vr(r)}")
        e(f"v_mul_f32 {vr(t3)}, {vr(r)}, {vr(r)}")
        e(f"v_mul_f32 {vr(t4)}, {vr(t3)}, {vr(r)}")
        e(f"v_mul_f32 {vr(K1p[tt])}, {sr(S_T4)}, {vr(t4)}")
        e(f"v_rcp_f32 {vr(IRp[tt])}, {vr(t3)}")
        e("s_nop 1")
        for rr in (NMp, K0p, K1p, IRp): e(f"v_mov_b32 {vr(rr[tt]+1)}, {vr(rr[tt])}")
    for i in range(3):
        for k in range(0, 16, 2): e(f"v_pk_add_f32 {vr(CGS[i]+k,2)}, {vr(CGS[i]+k,2)}, {vr(CG2[i]+k,2)}")
    TT = 128; HP = [136, 140]
    e(f"v_lshlrev_b32 {vr(t4)}, 4, {L}")
    e(f"s_lshl_b32 {sr(S_T1)}, {sr(S_RB)}, 2")
    e(f"s_lshl_b32 {sr(S_T2)}, {sr(S_A)}, 1")
    e(f"s_add_u32 {sr(S_T1)}, {sr(S_T1)}, {sr(S_T2)}")
    e(f"s_mul_i32 {sr(S_T1)}, {sr(S_T1)}, 86")
    e(f"s_lshr_b32 {sr(S_T2)}, {sr(S_F0)}, 4")
    e(f"s_add_u32 {sr(S_T1)}, {sr(S_T1)}, {sr(S_T2)}")
    e(f"s_add_u32 {sr(S_T1)}, {sr(S_T1)}, {sr(S_B)}")
    e(f"s_lshl_b32 {sr(S_T1)}, {sr(S_T1)}, 10")
    e(f"s_add_u32 {sr(S_G2)}, {sr(S_T1)}, {WS_HF}")
    for i in range(3):
        lsk = A.newlabel("EP")
        if i == 1: e(f"s_mov_b32 {sr(S_T0)}, 1")
        else:
            e(f"s_cmp_eq_u32 {sr(S_A)}, 0")
            e(f"s_cselect_b32 {sr(S_T0)}, {i}, {2-i}")
        e(f"s_cmp_ge_u32 {sr(S_T0)}, {sr(S_N32)}")
        e(f"s_cbranch_scc1 {lsk}")
        e(f"s_lshl_b32 {sr(S_T0)}, {sr(S_T0)}, 11")
        e(f"s_add_u32 {sr(S_T1)}, {sr(S_G2)}, {sr(S_T0)}")
        e(f"s_add_u32 {sr(S_T2)}, {sr(S_T1)}, {86*1024}")
        CG = CGS[i]
        for tt in range(2):
            a = ACC + 16*(2*i+tt)
            NM, K1, K0, IR = NMp[tt], K1p[tt], K0p[tt], IRp[tt]
            G = [a+2*k for k in range(4)]; U = [a+8+2*k for k in range(4)]
            cg = [CG+2*k for k in range(4)]; cu = [CG+8+2*k for k in range(4)]
            T = [TT+2*k for k in range(4)]
            for k in range(4): e(f"v_pk_fma_f32 {vr(G[k],2)}, {vr(NM,2)}, {vr(cg[k],2)}, {vr(G[k],2)}")
            for k in range(4): e(f"v_pk_mul_f32 {vr(T[k],2)}, {vr(G[k],2)}, {vr(G[k],2)}")
            for k in range(4): e(f"v_pk_fma_f32 {vr(T[k],2)}, {vr(T[k],2)}, {vr(K1,2)}, {vr(K0,2)}")
            for k in range(4): e(f"v_pk_mul_f32 {vr(T[k],2)}, {vr(T[k],2)}, {vr(G[k],2)}")
            for k in range(4):
                e(f"v_exp_f32 {vr(TT+2*k)}, {vr(TT+2*k)}")
                e(f"v_exp_f32 {vr(TT+2*k+1)}, {vr(TT+2*k+1)}")
                e(f"v_pk_fma_f32 {vr(U[k],2)}, {vr(NM,2)}, {vr(cu[k],2)}, {vr(U[k],2)}")
            for k in range(4): e(f"v_pk_fma_f32 {vr(T[k],2)}, {vr(T[k],2)}, {vr(IR,2)}, {vr(IR,2)}")
            for k in range(4):
                e(f"v_rcp_f32 {vr(TT+2*k)}, {vr(TT+2*k)}")
                e(f"v_rcp_f32 {vr(TT+2*k+1)}, {vr(TT+2*k+1)}")
                e(f"v_pk_mul_f32 {vr(G[k],2)}, {vr(G[k],2)}, {vr(U[k],2)}")
            for k in range(4): e(f"v_pk_mul_f32 {vr(G[k],2)}, {vr(G[k],2)}, {vr(T[k],2)}")
            for k in range(4): e(f"v_cvt_pk_bf16_f32 {vr(HP[tt]+k)}, {vr(G[k])}, {vr(G[k]+1)}")
            A.vmem(f"buffer_store_dwordx4 {vr(HP[tt],4)}, {vr(t4)}, {sr(SRD_WS,4)}, {sr(S_T1 if tt == 0 else S_T2)} offen sc0 sc1", "hst")
        A.label(lsk)
    stamp(4)
    e(f"s_lshl_b32 {sr(S_T0)}, {sr(S_WAVE)}, 2")
    e(f"s_add_u32 {sr(S_T0)}, {sr(S_T0)}, {L_FLAG+48}")
    e(f"v_mov_b32 {vr(t0)}, {sr(S_T0)}")
    e(f"v_mov_b32 {vr(t1)}, 1")
    e(f"ds_write_b32 {vr(t0)}, {vr(t1)}")
    GACC = 160; PH = opts.get('ph', 8); GH = 16; GW = 80
    GACC = 176
    GW = 80
    GA = [168, 240]
    V_AR = 248
    V_HL, V_DO = 254, 255
    S_KU0, S_KUN, S_RA, S_RBB, S_RC, S_H0 = S_G0, S_G1, S_G2, S_G3, S_G4, S_G5
    S_H1, S_OOB, S_DSO, S_ROT, S_HB = S_C0, S_C1, S_X0, S_X1, S_X2
    e(f"s_mul_i32 {sr(S_ROT)}, {sr(S_J)}, {opts.get('rot', 3)}")
    ku_start(S_KU0, S_WAVE)
    e(f"s_cmp_lt_u32 {sr(S_WAVE)}, 2")
    e(f"s_cselect_b32 {sr(S_KUN)}, 22, 21")
    ring_bases(S_WAVE, S_RA, S_RBB, S_RC)
    wd_voffset(V_DO)
    e(f"v_lshrrev_b32 {vr(t0)}, 5, {L}")
    e(f"v_bfe_u32 {vr(t1)}, {L}, 2, 2")
    e(f"v_lshl_add_u32 {vr(t0)}, {vr(t0)}, 2, {vr(t1)}")
    e(f"v_lshlrev_b32 {vr(t0)}, 7, {vr(t0)}")
    e(f"v_bfe_u32 {vr(t2)}, {L}, 4, 1")
    e(f"v_bfe_u32 {vr(t3)}, {L}, 1, 1")
    e(f"v_lshl_add_u32 {vr(t2)}, {vr(t2)}, 1, {vr(t3)}")
    e(f"v_lshlrev_b32 {vr(t2)}, 4, {vr(t2)}")
    e(f"v_and_b32 {vr(t3)}, 1, {L}")
    e(f"v_lshl_add_u32 {vr(t2)}, {vr(t3)}, 3, {vr(t2)}")
    e(f"v_add_u32 {vr(t0)}, {vr(t0)}, {vr(t2)}")
    e(f"v_bfe_u32 {vr(t1)}, {L}, 3, 1")
    e(f"v_lshlrev_b32 {vr(t1)}, 6, {vr(t1)}")
    e(f"v_add_u32 {vr(t2)}, {vr(t0)}, {vr(t1)}")
    e(f"v_xor_b32 {vr(t1)}, 64, {vr(t1)}")
    e(f"v_add_u32 {vr(t3)}, {vr(t0)}, {vr(t1)}")
    for bi, sb in enumerate((S_RA, S_RBB, S_RC)):
        e(f"v_add_u32 {vr(V_AR+2*bi)}, {sr(sb)}, {vr(t2)}")
        e(f"v_add_u32 {vr(V_AR+2*bi+1)}, {sr(sb)}, {vr(t3)}")
    e(f"v_lshlrev_b32 {vr(V_HL)}, 4, {L}")
    e(f"s_mov_b32 {sr(S_OOB)}, 0x20000000")
    e("s_waitcnt vmcnt(0)")
    e(f"s_lshl_b32 {sr(S_T0)}, {sr(S_RB)}, 8")
    e(f"s_lshl_b32 {sr(S_T1)}, {sr(S_CP)}, 4")
    e(f"s_lshl_b32 {sr(S_T2)}, {sr(S_WAVE)}, 2")
    e(f"s_add_u32 {sr(S_T0)}, {sr(S_T0)}, {sr(S_T1)}")
    e(f"s_add_u32 {sr(S_T0)}, {sr(S_T0)}, {sr(S_T2)}")
    e(f"s_add_u32 {sr(S_T0)}, {sr(S_T0)}, {WS_FL+FL_H}")
    flag_set(S_T0, t0)
    stamp(5)
    e(f"s_lshl_b32 {sr(S_T0)}, {sr(S_WAVE)}, 2")
    e(f"s_add_u32 {sr(S_T0)}, {sr(S_T0)}, {L_FLAG+16}")
    lds_spin(S_T0, t0, t1)
    def afrag_reads(n, dst):
        bi, off = ring_off(n); out = []
        for dt in range(2):
            for h in range(2):
                out.append(f"ds_read_b64_tr_b16 {vr(dst+4*dt+2*h,2)}, {vr(V_AR+2*bi+dt)} offset:{off+1024*h}")
        return out
    for n in range(NR):
        for x in afrag_reads(n, GW+8*n): e(x)
        if n % 3 == 2: e("s_waitcnt lgkmcnt(4)")
    e("s_waitcnt lgkmcnt(0)")
    for n in range(NR):
        bi, off = ring_off(n)
        sb = (S_RA, S_RBB, S_RC)[bi]
        wd_soff(NR + n, S_DSO, S_ROT, S_KUN, S_KU0, S_OOB)
        for a in range(2):
            e(f"s_add_u32 m0, {sr(sb)}, {off + 1024*a}")
            if a == 1: e(f"s_add_u32 {sr(S_DSO)}, {sr(S_DSO)}, 8192")
            else: e("s_nop 0")
            A.vmem(f"buffer_load_dwordx4 {vr(V_DO)}, {sr(SRD_WD,4)}, {sr(S_DSO)} offen lds", "WR2")
    for r in range(64): e(f"v_mov_b32 {vr(GACC+r)}, 0")
    stamp(6)
    e(f"s_lshr_b32 {sr(S_T0)}, {sr(S_I2)}, 1")
    e(f"s_lshl_b32 {sr(S_T0)}, {sr(S_T0)}, 8")
    e(f"s_add_u32 {sr(S_T0)}, {sr(S_T0)}, {WS_FL+FL_H}")
    lh1 = A.newlabel("HP"); lh2 = A.newlabel("HP")
    e(f"s_cmp_lg_u32 {sr(S_WAVE)}, 0")
    e(f"s_cbranch_scc1 {lh1}")
    flag_wait_blocking(t1, 1, S_T0, sleep=opts.get('hsleep', 2))
    e(f"v_mov_b32 {vr(t0)}, {L_FLAG+72}")
    e(f"v_mov_b32 {vr(t1)}, 1")
    e(f"ds_write_b32 {vr(t0)}, {vr(t1)}")
    e(f"s_branch {lh2}")
    A.label(lh1)
    e(f"s_mov_b32 {sr(S_T0)}, {L_FLAG+72}")
    lds_spin(S_T0, t1, t0, sleep=1)
    e("s_waitcnt vmcnt(0)")
    A.label(lh2)
    stamp(7)
    e(f"s_lshl_b32 {sr(S_T0)}, {sr(S_I2)}, 1")
    e(f"s_mul_i32 {sr(S_T0)}, {sr(S_T0)}, 86")
    e(f"s_add_u32 {sr(S_T0)}, {sr(S_T0)}, {sr(S_KU0)}")
    e(f"s_lshl_b32 {sr(S_T0)}, {sr(S_T0)}, 10")
    e(f"s_add_u32 {sr(S_HB)}, {sr(S_T0)}, {WS_HF}")
    A.vm = []
    def hload(n):
        hb = GH + 8*(n % PH)
        unit_at(n, S_H0, S_ROT, S_KUN)
        e(f"s_cselect_b32 {sr(S_T5)}, 1, 0")
        e(f"s_lshl_b32 {sr(S_H0)}, {sr(S_H0)}, 10")
        e(f"s_add_u32 {sr(S_H0)}, {sr(S_H0)}, {sr(S_HB)}")
        e(f"s_cmp_eq_u32 {sr(S_T5)}, 1")
        e(f"s_cselect_b32 {sr(S_H0)}, {sr(S_H0)}, {sr(S_OOB)}")
        e(f"s_add_u32 {sr(S_H1)}, {sr(S_H0)}, {86*1024}")
        A.vmem(f"buffer_load_dwordx4 {vr(hb,4)}, {vr(V_HL)}, {sr(SRD_WS,4)}, {sr(S_H0)} offen{HSC}", f"H{n}")
        A.vmem(f"buffer_load_dwordx4 {vr(hb+4,4)}, {vr(V_HL)}, {sr(SRD_WS,4)}, {sr(S_H1)} offen{HSC}", f"H{n}")
    for n in range(PH): hload(n)
    for n in range(22):
        hb = GH + 8*(n % PH)
        if n < NR: aw = GW + 8*n
        else: aw = GA[n & 1]
        if n + 1 >= NR and n + 1 < 22:
            for x in afrag_reads(n + 1 - NR, GA[(n+1) & 1]): e(x)
        A.wait_vm(f"H{n}")
        if n >= NR: e("s_waitcnt lgkmcnt(4)" if n + 1 < 22 else "s_waitcnt lgkmcnt(0)")
        e(f"v_mfma_f32_32x32x16_bf16 {vr(GACC,16)}, {vr(aw,4)}, {vr(hb,4)}, {vr(GACC,16)}")
        e(f"v_mfma_f32_32x32x16_bf16 {vr(GACC+16,16)}, {vr(aw,4)}, {vr(hb+4,4)}, {vr(GACC+16,16)}")
        e(f"v_mfma_f32_32x32x16_bf16 {vr(GACC+32,16)}, {vr(aw+4,4)}, {vr(hb,4)}, {vr(GACC+32,16)}")
        e(f"v_mfma_f32_32x32x16_bf16 {vr(GACC+48,16)}, {vr(aw+4,4)}, {vr(hb+4,4)}, {vr(GACC+48,16)}")
        if n + PH < 22: hload(n + PH)
        if n == opts.get("yun", 12):
            e(f"v_mov_b32 {vr(t0)}, {L_FLAG+64}")
            e(f"v_mov_b32 {vr(t1)}, 1")
            e(f"ds_write_b32 {vr(t0)}, {vr(t1)}")
        if opts.get("g2stamp") and n % 2 == 1: stamp(32 + n // 2)
    stamp(8)
    e("s_nop 7")
    e(f"v_and_b32 {vr(t0)}, 31, {L}")
    e(f"v_lshrrev_b32 {vr(t1)}, 5, {L}")
    e(f"v_mul_u32_u24 {vr(t0)}, 272, {vr(t0)}")
    e(f"v_lshl_add_u32 {vr(t0)}, {vr(t1)}, 4, {vr(t0)}")
    e(f"v_add_u32 {vr(t1)}, {sr(S_RBB)}, {vr(t0)}")
    e(f"v_add_u32 {vr(t0)}, {sr(S_RA)}, {vr(t0)}")
    for dt in range(2):
        for tt in range(2):
            for rp in range(4):
                a = GACC + 16*(2*dt+tt) + 4*rp
                e(f"ds_write_b128 {vr(t0 if tt == 0 else t1)}, {vr(a,4)} offset:{dt*128 + rp*32}")
    e("s_branch L_FINAL")

    A.label("L_HELPER")
    A.vm = ["code"]
    if opts.get("g1only"):
        for _ in range(10): e("s_barrier")
        e("s_endpgm")
    S_LW = S_A
    e(f"s_sub_u32 {sr(S_LW)}, {sr(S_WAVE)}, 4")
    V_XO, V_WO, V_L16, V_TO, V_DO2 = 16, 18, 21, 22, 23
    S_XSO, S_WSO, S_M0X, S_M0W = S_G0, S_G1, S_G3, S_G4
    BAD = 0x7fffff00
    e(f"v_lshlrev_b32 {vr(V_L16)}, 4, {L}")
    loader_setup(S_LW, V_XO, V_WO, S_M0X, S_M0W)
    S_ROW = S_G5
    e(f"s_lshl_b32 {sr(S_ROW)}, {sr(S_I2)}, 6")
    e(f"s_lshl_b32 {sr(S_T0)}, {sr(S_J)}, 3")
    e(f"s_add_u32 {sr(S_ROW)}, {sr(S_ROW)}, {sr(S_T0)}")
    e(f"s_lshl_b32 {sr(S_T0)}, {sr(S_LW)}, 1")
    e(f"s_add_u32 {sr(S_ROW)}, {sr(S_ROW)}, {sr(S_T0)}")
    e(f"v_lshrrev_b32 {vr(t0)}, 3, {L}")
    e(f"v_and_b32 {vr(t1)}, 7, {L}")
    e(f"v_lshrrev_b32 {vr(t2)}, 4, {L}")
    e(f"s_and_b32 {sr(S_T1)}, {sr(S_LW)}, 1")
    e(f"s_lshl_b32 {sr(S_T1)}, {sr(S_T1)}, 2")
    e(f"v_add_u32 {vr(t2)}, {sr(S_T1)}, {vr(t2)}")
    e(f"v_xor_b32 {vr(t1)}, {vr(t1)}, {vr(t2)}")
    e(f"v_lshlrev_b32 {vr(t1)}, 4, {vr(t1)}")
    e(f"v_lshl_add_u32 {vr(t1)}, {vr(t0)}, 10, {vr(t1)}")
    e(f"s_lshl_b32 {sr(S_T1)}, {sr(S_J)}, 7")
    e(f"v_add_u32 {vr(V_TO)}, {sr(S_T1)}, {vr(t1)}")
    wd_voffset(V_DO2)
    e("s_waitcnt lgkmcnt(0)")
    srd(SRD_Q, 0, 2 << 20)
    srd_w_select(S_LW)
    stamp(0)
    def dma_stage(s): dma_stage_g(s, V_XO, V_WO, S_M0X, S_M0W, S_XSO, S_WSO)
    SX = 24; V_NL = 33; V_SL = 116; V_SLA = 34; V_FL = 114; V_DUM = 32
    e(f"s_lshl_b32 {sr(S_T0)}, {sr(S_ROW)}, 10")
    A.vmem(f"buffer_load_dwordx4 {vr(SX,4)}, {vr(V_L16)}, {sr(SRD_Q,4)}, {sr(S_T0)} offen", "SX")
    A.vmem(f"buffer_load_dwordx4 {vr(SX+4,4)}, {vr(V_L16)}, {sr(SRD_Q,4)}, {sr(S_T0)} offen offset:1024", "SX")
    srd(SRD_DBG, 11, 256)
    lnn = A.newlabel("NN")
    e(f"s_cmp_lg_u32 {sr(S_WG)}, 0")
    e(f"s_cbranch_scc1 {lnn}")
    e(f"s_cmp_lg_u32 {sr(S_WAVE)}, 4")
    e(f"s_cbranch_scc1 {lnn}")
    e(f"s_memrealtime {sr(S_T0,2)}")
    e("s_waitcnt lgkmcnt(0)")
    e(f"s_or_b32 {sr(S_T0)}, {sr(S_T0)}, 1")
    e(f"v_mov_b32 {vr(t0)}, {sr(S_T0)}")
    e(f"buffer_store_dword {vr(t0)}, off, {sr(SRD_DBG,4)}, 0 sc0 sc1")
    A.label(lnn)
    if opts.get("tfirst", 1): e("s_barrier")
    dma_stage(0)
    if not opts.get("tfirst", 1): e("s_barrier")
    srd(SRD_K, 1, 2 << 20); srd(SRD_V, 2, 2 << 20)
    srd(SRD_WS, 12, 0x10000000); srd(SRD_WD, 9, WBYTES)
    def tiles():
        e(f"s_lshl_b32 {sr(S_T0)}, {sr(S_I2)}, 16")
        for srd_, base in ((SRD_K, L_KT), (SRD_V, L_VT)):
            for gi in range(2):
                e(f"s_add_u32 {sr(S_T1)}, {sr(S_LW)}, {4*gi}")
                e(f"s_lshl_b32 {sr(S_T2)}, {sr(S_T1)}, 13")
                e(f"s_add_u32 {sr(S_T2)}, {sr(S_T2)}, {sr(S_T0)}")
                e(f"s_lshl_b32 {sr(S_T1)}, {sr(S_T1)}, 10")
                e(f"s_add_u32 m0, {sr(S_T1)}, {base}")
                e("s_nop 0")
                A.vmem(f"buffer_load_dwordx4 {vr(V_TO)}, {sr(srd_,4)}, {sr(S_T2)} offen lds", "P")
    S_CIDX = S_C1
    HK = [88, 96]; HPB = 112
    def hk_loads():
        e(f"s_lshl_b32 {sr(S_T0)}, {sr(S_WG)}, 1")
        e(f"s_add_u32 {sr(S_T0)}, {sr(S_T0)}, {sr(S_CIDX)}")
        e(f"s_lshl_b32 {sr(S_T0)}, {sr(S_T0)}, 12")
        e(f"s_add_u32 {sr(SRD_SK)}, {sr(P+8)}, {sr(S_T0)}")
        e(f"s_addc_u32 {sr(SRD_SK+1)}, {sr(P+9)}, 0")
        e(f"s_mov_b32 {sr(SRD_SK+2)}, 4096")
        e(f"s_mov_b32 {sr(SRD_SK+3)}, 0x20000")
        e(f"s_and_b32 {sr(S_T1)}, {sr(S_LW)}, 1")
        e(f"s_lshl_b32 {sr(S_T1)}, {sr(S_T1)}, 11")
        for y in range(2):
            e(f"s_add_u32 {sr(S_T2)}, {sr(S_T1)}, {1024*y}")
            A.vmem(f"buffer_load_dwordx4 {vr(HK[y],4)}, {vr(V_L16)}, {sr(SRD_SK,4)}, {sr(S_T2)} offen", "HK")
            A.vmem(f"buffer_load_dwordx2 {vr(HK[y]+4,2)}, {vr(V_L16)}, {sr(SRD_SK,4)}, {sr(S_T2)} offen offset:16", "HK")
        e(f"v_cmp_eq_u32 vcc, 1, {L}")
        e(f"v_mov_b32 {vr(t5)}, 0x10000")
        e("s_nop 0")
        e(f"v_cndmask_b32 {vr(t5)}, {vr(t5)}, 0, vcc")
        A.vmem(f"buffer_load_dwordx2 {vr(HPB,2)}, {vr(t5)}, {sr(SRD_SK,4)}, 0 offen", "HK")
    def wd_touch():
        e(f"s_mul_i32 {sr(S_T0)}, {sr(S_WG)}, {43*128}")
        e(f"s_mul_i32 {sr(S_T1)}, {sr(S_LW)}, 11")
        e(f"v_add_u32 {vr(t4)}, {sr(S_T1)}, {L}")
        e(f"v_cmp_gt_u32 vcc, 11, {L}")
        e(f"v_lshlrev_b32 {vr(t4)}, 7, {vr(t4)}")
        e(f"v_add_u32 {vr(t4)}, {sr(S_T0)}, {vr(t4)}")
        e(f"v_mov_b32 {vr(t5)}, {BAD}")
        e(f"v_cndmask_b32 {vr(t4)}, {vr(t5)}, {vr(t4)}, vcc")
        A.vmem(f"buffer_load_dword {vr(V_DUM)}, {vr(t4)}, {sr(SRD_WD,4)}, 0 offen", "T2")
    e(f"s_lshr_b32 {sr(S_CIDX)}, {sr(S_LW)}, 1")
    PPOS = opts.get("ppos", -1)
    if PPOS < 0: tiles()
    A.vmem(f"buffer_load_dword {vr(V_NL)}, off, {sr(SRD_DBG,4)}, 0 sc1", "NL")
    e(f"v_lshlrev_b32 {vr(t0)}, 2, {L}")
    e(f"v_add_u32 {vr(t0)}, {L_FLAG}, {vr(t0)}")
    e(f"v_mov_b32 {vr(t1)}, 0")
    e(f"s_mov_b64 {sr(S_EX,2)}, exec")
    e("s_mov_b64 exec, 0xfffffff")
    e(f"ds_write_b32 {vr(t0)}, {vr(t1)}")
    e(f"s_mov_b64 exec, {sr(S_EX,2)}")
    A.wait_vm("SX")
    XU = 120; SA = 136
    for rr in range(2):
        for k in range(4):
            e(f"v_lshlrev_b32 {vr(XU+8*rr+2*k)}, 16, {vr(SX+4*rr+k)}")
            e(f"v_and_b32 {vr(XU+8*rr+2*k+1)}, 0xffff0000, {vr(SX+4*rr+k)}")
    def wave_reduce(regs):
        for sh in ("row_shr:1", "row_shr:2", "row_shr:4", "row_shr:8"):
            for r in regs: e(f"v_add_f32_dpp {vr(r)}, {vr(r)}, {vr(r)} {sh} row_mask:0xf bank_mask:0xf bound_ctrl:0")
            e("s_nop 0")
        for r in regs: e(f"v_add_f32_dpp {vr(r)}, {vr(r)}, {vr(r)} row_bcast:15 row_mask:0xa bank_mask:0xf")
        e("s_nop 0")
        for r in regs: e(f"v_add_f32_dpp {vr(r)}, {vr(r)}, {vr(r)} row_bcast:31 row_mask:0xc bank_mask:0xf")
        e("s_nop 1")
    for k in range(1, 8):
        for rr in range(2):
            b = XU + 8*rr
            if k == 1: e(f"v_add_f32 {vr(SA+rr)}, {vr(b)}, {vr(b+1)}")
            else: e(f"v_add_f32 {vr(SA+rr)}, {vr(SA+rr)}, {vr(b+k)}")
    e("s_nop 1")
    wave_reduce([SA, SA+1])
    e(f"v_readlane_b32 {sr(S_T0)}, {vr(SA)}, 63")
    e(f"v_readlane_b32 {sr(S_T1)}, {vr(SA+1)}, 63")
    e(f"v_mov_b32 {vr(SA+2)}, 0x3b000000")
    e("s_nop 0")
    e(f"v_mul_f32 {vr(SA+4)}, {sr(S_T0)}, {vr(SA+2)}")
    e(f"v_mul_f32 {vr(SA+5)}, {sr(S_T1)}, {vr(SA+2)}")
    for k in range(8):
        for rr in range(2): e(f"v_sub_f32 {vr(XU+8*rr+k)}, {vr(XU+8*rr+k)}, {vr(SA+4+rr)}")
    for k in range(8):
        for rr in range(2):
            b = XU + 8*rr
            if k == 0: e(f"v_mul_f32 {vr(SA+rr)}, {vr(b)}, {vr(b)}")
            else: e(f"v_fma_f32 {vr(SA+rr)}, {vr(b+k)}, {vr(b+k)}, {vr(SA+rr)}")
    e("s_nop 1")
    wave_reduce([SA, SA+1])
    e(f"v_readlane_b32 {sr(S_T0)}, {vr(SA)}, 63")
    e(f"v_readlane_b32 {sr(S_T1)}, {vr(SA+1)}, 63")
    e(f"v_cmp_eq_u32 vcc, 1, {L}")
    e("s_nop 0")
    e(f"v_mov_b32 {vr(SA)}, {sr(S_T0)}")
    e(f"v_mov_b32 {vr(SA+1)}, {sr(S_T1)}")
    e(f"v_cndmask_b32 {vr(SA)}, {vr(SA)}, {vr(SA+1)}, vcc")
    e(f"v_cndmask_b32 {vr(SA+4)}, {vr(SA+4)}, {vr(SA+5)}, vcc")
    e(f"v_mul_f32 {vr(SA)}, {vr(SA)}, {vr(SA+2)}")
    e(f"v_cvt_pk_bf16_f32 {vr(SA)}, {vr(SA)}, {vr(SA)}")
    e(f"v_lshlrev_b32 {vr(SA)}, 16, {vr(SA)}")
    e(f"v_add_f32 {vr(SA)}, 0x3727c5ac, {vr(SA)}")
    e(f"v_cvt_pk_bf16_f32 {vr(SA)}, {vr(SA)}, {vr(SA)}")
    e(f"v_lshlrev_b32 {vr(SA)}, 16, {vr(SA)}")
    e(f"v_sqrt_f32 {vr(SA)}, {vr(SA)}")
    e("s_nop 0")
    V_STP = 110
    e(f"v_cvt_pk_bf16_f32 {vr(V_STP)}, {vr(SA+4)}, {vr(SA)}")
    A.wait_vm("S0")
    e("s_waitcnt lgkmcnt(0)")
    e("s_barrier")
    stamp(1)
    def it_end(it, stages, waits=()):
        if opts.get("barstamp"): stamp(24 + it)
        if waits: A.wait_vm(*waits)
        e("s_waitcnt lgkmcnt(0)")
        if opts.get("barstamp"): stamp(32 + it)
        e("s_barrier")
        if opts.get("barstamp"): stamp(40 + it)
        for st_ in stages: st_()
        if opts.get("barstamp"): stamp(48 + it)
    def job_nonce_sts():
        lok = A.newlabel("NOK"); lre = A.newlabel("NRE")
        e(f"s_mov_b32 {sr(S_T3)}, 0x40000")
        A.label(lre)
        e(f"v_readfirstlane_b32 {sr(S_NONCE)}, {vr(V_NL)}")
        e("s_nop 3")
        e(f"s_cmp_lg_u32 {sr(S_NONCE)}, 0")
        e(f"s_cbranch_scc1 {lok}")
        e(f"s_sub_u32 {sr(S_T3)}, {sr(S_T3)}, 1")
        e(f"s_cmp_eq_u32 {sr(S_T3)}, 0")
        e(f"s_cbranch_scc1 {lok}")
        e("s_sleep 2")
        e(f"buffer_load_dword {vr(V_NL)}, off, {sr(SRD_DBG,4)}, 0 sc1")
        e("s_waitcnt vmcnt(0)")
        e(f"s_branch {lre}")
        A.label(lok)
        e(f"v_mov_b32 {vr(t0)}, {L_FLAG+32}")
        e(f"v_mov_b32 {vr(V_STP+1)}, {sr(S_NONCE)}")
        e(f"ds_write_b32 {vr(t0)}, {vr(V_STP+1)}")
        e(f"s_lshl_b32 {sr(S_T0)}, {sr(S_ROW)}, 3")
        e(f"s_add_u32 {sr(S_T0)}, {sr(S_T0)}, {WS_ST}")
        e(f"v_lshlrev_b32 {vr(t0)}, 3, {L}")
        e(f"s_mov_b64 {sr(S_EX,2)}, exec")
        e("s_mov_b64 exec, 3")
        A.vmem(f"buffer_store_dwordx2 {vr(V_STP,2)}, {vr(t0)}, {sr(SRD_WS,4)}, {sr(S_T0)} offen sc0 sc1", "STS")
        e(f"s_mov_b64 exec, {sr(S_EX,2)}")
    T = 128
    def job_tr_store():
        e(f"v_and_b32 {vr(t0)}, 3, {L}")
        e(f"v_bfe_u32 {vr(t1)}, {L}, 4, 1")
        e(f"v_lshl_add_u32 {vr(t0)}, {vr(t1)}, 2, {vr(t0)}")
        e(f"v_lshlrev_b32 {vr(t0)}, 3, {vr(t0)}")
        e(f"v_bfe_u32 {vr(t1)}, {L}, 2, 2")
        e(f"v_sub_u32 {vr(t0)}, {vr(t0)}, {vr(t1)}")
        e(f"v_add_u32 {vr(t0)}, 7, {vr(t0)}")
        e(f"v_lshrrev_b32 {vr(t3)}, 5, {L}")
        e(f"v_lshlrev_b32 {vr(t3)}, 3, {vr(t3)}")
        e(f"s_lshl_b32 {sr(S_T0)}, {sr(S_LW)}, 1")
        for h in range(2):
            if h == 1: e(f"v_subrev_u32 {vr(t0)}, 4, {vr(t0)}")
            e(f"v_bfe_u32 {vr(t1)}, {vr(t0)}, 1, 3")
            e(f"v_xor_b32 {vr(t1)}, {sr(S_T0)}, {vr(t1)}")
            e(f"v_lshlrev_b32 {vr(t1)}, 4, {vr(t1)}")
            e(f"v_lshl_add_u32 {vr(t1)}, {vr(t0)}, 7, {vr(t1)}")
            e(f"v_add_u32 {vr(t1)}, {vr(t1)}, {vr(t3)}")
            e(f"v_add_u32 {vr(t1)}, {L_KT}, {vr(t1)}")
            e(f"v_xor_b32 {vr(t2)}, 16, {vr(t1)}")
            for x, a in ((0, t1), (1, t2)):
                e(f"ds_read_b64_tr_b16 {vr(T+4*x+2*h,2)}, {vr(a)}")
                e(f"ds_read_b64_tr_b16 {vr(T+8+4*x+2*h,2)}, {vr(a)} offset:{L_VT-L_KT}")
        e(f"v_and_b32 {vr(t1)}, 3, {L}")
        e(f"v_lshrrev_b32 {vr(t2)}, 5, {L}")
        e(f"v_lshl_add_u32 {vr(t1)}, {vr(t2)}, 2, {vr(t1)}")
        e(f"v_lshlrev_b32 {vr(t1)}, 12, {vr(t1)}")
        e(f"v_bfe_u32 {vr(t2)}, {L}, 2, 3")
        e(f"v_lshlrev_b32 {vr(t2)}, 4, {vr(t2)}")
        e(f"v_sub_u32 {vr(t1)}, {vr(t1)}, {vr(t2)}")
        e(f"v_add_u32 {vr(t1)}, 4080, {vr(t1)}")
        e(f"s_lshl_b32 {sr(S_T0)}, {sr(S_J)}, 6")
        e(f"s_lshl_b32 {sr(S_T1)}, {sr(S_LW)}, 4")
        e(f"s_add_u32 {sr(S_T0)}, {sr(S_T0)}, {sr(S_T1)}")
        e(f"s_lshl_b32 {sr(S_T0)}, {sr(S_T0)}, 12")
        e(f"s_lshl_b32 {sr(S_T1)}, {sr(S_I2)}, 7")
        e(f"s_sub_u32 {sr(S_T0)}, {sr(S_T0)}, {sr(S_T1)}")
        e(f"v_add_u32 {vr(t1)}, {sr(S_T0)}, {vr(t1)}")
        e(f"v_add_u32 {vr(t2)}, {8*4096}, {vr(t1)}")
        e(f"s_mov_b32 {sr(S_T0)}, {WS_VT}")
        e("s_waitcnt lgkmcnt(0)")
        A.vmem(f"buffer_store_dwordx4 {vr(T,4)}, {vr(t1)}, {sr(SRD_WS,4)}, 0 offen sc0 sc1", "KVS")
        A.vmem(f"buffer_store_dwordx4 {vr(T+4,4)}, {vr(t2)}, {sr(SRD_WS,4)}, 0 offen sc0 sc1", "KVS")
        A.vmem(f"buffer_store_dwordx4 {vr(T+8,4)}, {vr(t1)}, {sr(SRD_WS,4)}, {sr(S_T0)} offen sc0 sc1", "KVS")
        A.vmem(f"buffer_store_dwordx4 {vr(T+12,4)}, {vr(t2)}, {sr(SRD_WS,4)}, {sr(S_T0)} offen sc0 sc1", "KVS")
    S_STO = S_X3
    def job_sl():
        e(f"s_lshl_b32 {sr(S_STO)}, {sr(S_RB)}, 7")
        e(f"s_lshl_b32 {sr(S_T1)}, {sr(S_LW)}, 5")
        e(f"s_add_u32 {sr(S_STO)}, {sr(S_STO)}, {sr(S_T1)}")
        e(f"s_lshl_b32 {sr(S_STO)}, {sr(S_STO)}, 3")
        e(f"s_add_u32 {sr(S_STO)}, {sr(S_STO)}, {WS_ST}")
        e(f"v_and_b32 {vr(V_SLA)}, 31, {L}")
        e(f"v_lshlrev_b32 {vr(V_SLA)}, 3, {vr(V_SLA)}")
        A.vmem(f"buffer_load_dwordx2 {vr(V_SL,2)}, {vr(V_SLA)}, {sr(SRD_WS,4)}, {sr(S_STO)} offen sc1", "SL")
    def job_kvf():
        A.wait_vm("KVS")
        e(f"s_lshl_b32 {sr(S_T0)}, {sr(S_J)}, 9")
        e(f"s_lshl_b32 {sr(S_T1)}, {sr(S_I2)}, 4")
        e(f"s_lshl_b32 {sr(S_T2)}, {sr(S_LW)}, 2")
        e(f"s_add_u32 {sr(S_T0)}, {sr(S_T0)}, {sr(S_T1)}")
        e(f"s_add_u32 {sr(S_T0)}, {sr(S_T0)}, {sr(S_T2)}")
        e(f"s_add_u32 {sr(S_T0)}, {sr(S_T0)}, {WS_FL+FL_KV}")
        flag_set(S_T0, t0)
    S_C, S_KVO, S_W, S_OKF = 62, 63, 64, 70
    def job_conv_scalars():
        e(f"s_lshl_b32 {sr(S_C)}, {sr(S_WG)}, 1")
        e(f"s_add_u32 {sr(S_C)}, {sr(S_C)}, {sr(S_CIDX)}")
        e(f"s_lshr_b32 {sr(S_KVO)}, {sr(S_C)}, 6")
        e(f"s_lshl_b32 {sr(S_KVO)}, {sr(S_KVO)}, 9")
        e(f"s_add_u32 {sr(S_KVO)}, {sr(S_KVO)}, {WS_FL+FL_KV}")
        e(f"s_lshl_b32 {sr(S_T0)}, {sr(S_C)}, 3")
        e(f"s_load_dwordx2 {sr(S_W,2)}, {sr(P+6,2)}, {sr(S_T0)}")
        e("s_waitcnt lgkmcnt(0)")
        e(f"s_and_b32 {sr(S_W+3)}, {sr(S_W+1)}, 0xffff0000")
        e(f"s_lshl_b32 {sr(S_W+2)}, {sr(S_W+1)}, 16")
        e(f"s_and_b32 {sr(S_W+1)}, {sr(S_W)}, 0xffff0000")
        e(f"s_lshl_b32 {sr(S_W)}, {sr(S_W)}, 16")
    def job_statchk():
        A.wait_vm("SL")
        lsr = A.newlabel("SR"); lso = A.newlabel("SO")
        e(f"s_mov_b32 {sr(S_T3)}, 0x40000")
        A.label(lsr)
        e(f"v_cmp_eq_u32 vcc, {sr(S_NONCE)}, {vr(V_SL+1)}")
        e("s_nop 1")
        e("s_cmp_eq_u64 vcc, -1")
        e(f"s_cbranch_scc1 {lso}")
        e(f"s_sub_u32 {sr(S_T3)}, {sr(S_T3)}, 1")
        e(f"s_cmp_eq_u32 {sr(S_T3)}, 0")
        e(f"s_cbranch_scc1 {lso}")
        e("s_sleep 2")
        e(f"buffer_load_dwordx2 {vr(V_SL,2)}, {vr(V_SLA)}, {sr(SRD_WS,4)}, {sr(S_STO)} offen sc1")
        e("s_waitcnt vmcnt(0)")
        e(f"s_branch {lsr}")
        A.label(lso)
        e(f"v_and_b32 {vr(t1)}, 0xffff0000, {vr(V_SL)}")
        e(f"v_lshlrev_b32 {vr(V_SL)}, 16, {vr(V_SL)}")
        e(f"v_rcp_f32 {vr(V_SL+1)}, {vr(t1)}")
        e(f"s_lshl_b32 {sr(S_T0)}, {sr(S_LW)}, 8")
        e(f"s_add_u32 {sr(S_T0)}, {sr(S_T0)}, {L_STAT}")
        e(f"v_add_u32 {vr(t0)}, {sr(S_T0)}, {vr(V_SLA)}")
        e("s_nop 0")
        e(f"ds_write_b64 {vr(t0)}, {vr(V_SL,2)}")
    KR, VR = 128, 160
    def job_row_srds():
        e(f"s_lshl_b32 {sr(S_T0)}, {sr(S_C)}, 12")
        e(f"s_add_u32 {sr(SRD_K)}, {sr(P+24)}, {sr(S_T0)}")
        e(f"s_addc_u32 {sr(SRD_K+1)}, {sr(P+25)}, 0")
        e(f"s_mov_b32 {sr(SRD_K+2)}, 4096")
        e(f"s_mov_b32 {sr(SRD_K+3)}, 0x20000")
        e(f"s_add_u32 {sr(S_T0)}, {sr(S_T0)}, {WS_VT}")
        e(f"s_add_u32 {sr(SRD_V)}, {sr(P+24)}, {sr(S_T0)}")
        e(f"s_addc_u32 {sr(SRD_V+1)}, {sr(P+25)}, 0")
        e(f"s_mov_b32 {sr(SRD_V+2)}, 4096")
        e(f"s_mov_b32 {sr(SRD_V+3)}, 0x20000")
    def uk_loads(track):
        for q in range(4):
            if track:
                e(f"s_cmp_eq_u32 {sr(S_OKF)}, 1")
                e(f"s_cselect_b32 {sr(S_T2)}, {1024*q}, 0x40000000" if q == 0 else f"s_cselect_b32 {sr(S_T2)}, {sr(S_T1)}, {sr(S_T3)}")
                if q < 3:
                    e(f"s_movk_i32 {sr(S_T1)}, {1024*(q+1)}")
                    e(f"s_mov_b32 {sr(S_T3)}, 0x40000000")
            else:
                e(f"s_movk_i32 {sr(S_T2)}, {1024*q}")
            for txt in (f"buffer_load_dwordx4 {vr(KR+8*q,4)}, {vr(V_L16)}, {sr(SRD_K,4)}, {sr(S_T2)} offen sc1",
                        f"buffer_load_dwordx2 {vr(KR+8*q+4,2)}, {vr(V_L16)}, {sr(SRD_K,4)}, {sr(S_T2)} offen offset:16 sc1",
                        f"buffer_load_dwordx4 {vr(VR+4*q,4)}, {vr(V_L16)}, {sr(SRD_V,4)}, {sr(S_T2)} offen sc1"):
                if track: A.vmem(txt, "UK")
                else: e(txt)
    def job_pkv_check():
        A.wait_vm("PKV")
        flag_check_scc(V_FL, 2)
        e(f"s_cselect_b32 {sr(S_OKF)}, 1, 0")
        uk_loads(True)
    E = 36
    def kv_chunk(q):
        D = KR + 8*q; V = VR + 4*q
        for i in range(11):
            src = D + (i >> 1)
            e(f"v_and_b32 {vr(E+i)}, 0xffff0000, {vr(src)}" if i & 1 else f"v_lshlrev_b32 {vr(E+i)}, 16, {vr(src)}")
        for i in range(8):
            src = V + (i >> 1)
            e(f"v_and_b32 {vr(E+11+i)}, 0xffff0000, {vr(src)}" if i & 1 else f"v_lshlrev_b32 {vr(E+11+i)}, 16, {vr(src)}")
        for i in range(8): e(f"v_mul_f32 {vr(56+i)}, {sr(S_W+3)}, {vr(E+i+3)}")
        for i in range(8): e(f"v_fma_f32 {vr(56+i)}, {vr(E+i+2)}, {sr(S_W+2)}, {vr(56+i)}")
        for i in range(8): e(f"v_fma_f32 {vr(56+i)}, {vr(E+i+1)}, {sr(S_W+1)}, {vr(56+i)}")
        for i in range(8): e(f"v_fma_f32 {vr(56+i)}, {vr(E+i)}, {sr(S_W)}, {vr(56+i)}")
        for i in range(8): e(f"v_mul_f32 {vr(56+i)}, {vr(56+i)}, {vr(E+11+i)}")
        for k in range(4): e(f"v_cvt_pk_bf16_f32 {vr(D+k)}, {vr(56+2*k)}, {vr(56+2*k+1)}")
    S_DSO2, S_RA, S_RBB, S_RC = S_G4, S_X0, S_X1, S_X2
    S_KU2, S_KUN2, S_ROT2, S_OOB2 = 61, S_C0, S_G5, 60
    def job_wd_setup():
        ku_start(S_KU2, S_LW)
        e(f"s_cmp_lt_u32 {sr(S_LW)}, 2")
        e(f"s_cselect_b32 {sr(S_KUN2)}, 22, 21")
        e(f"s_mul_i32 {sr(S_ROT2)}, {sr(S_J)}, {opts.get('rot', 3)}")
        e(f"s_mov_b32 {sr(S_OOB2)}, 0x20000000")
        ring_bases(S_LW, S_RA, S_RBB, S_RC)
    def wd_dma(n):
        bi, off = ring_off(n); sb = (S_RA, S_RBB, S_RC)[bi]
        wd_soff(n, S_DSO2, S_ROT2, S_KUN2, S_KU2, S_OOB2)
        for a in range(2):
            e(f"s_add_u32 m0, {sr(sb)}, {off + 1024*a}")
            if a == 1: e(f"s_add_u32 {sr(S_DSO2)}, {sr(S_DSO2)}, 8192")
            else: e("s_nop 0")
            A.vmem(f"buffer_load_dwordx4 {vr(V_DO2)}, {sr(SRD_WD,4)}, {sr(S_DSO2)} offen lds", "WDP")
    def hk(w, addr, extra):
        O1, O2, O3 = 116, 120, 124
        for j in range(4):
            e(f"v_alignbit_b32 {vr(O1+j)}, {vr(w+j+1)}, {vr(w+j)}, 16")
            e(f"v_mov_b32 {vr(O2+j)}, {vr(w+j+1)}")
            e(f"v_alignbit_b32 {vr(O3+j)}, {vr(w+j+2)}, {vr(w+j+1)}, 16")
        e(f"ds_write_b128 {vr(addr)}, {vr(w,4)} offset:{extra}")
        e(f"ds_write_b128 {vr(addr)}, {vr(O1,4)} offset:{extra+HCOPY}")
        e(f"ds_write_b128 {vr(addr)}, {vr(O2,4)} offset:{extra+2*HCOPY}")
        e(f"ds_write_b128 {vr(addr)}, {vr(O3,4)} offset:{extra+3*HCOPY}")
        e("s_nop 1")
    S_RH, S_UB = 71, 3
    V_PF = 30
    def job_hankel():
        e(f"s_and_b32 {sr(S_RH)}, {sr(S_LW)}, 1")
        e(f"s_mul_i32 {sr(S_T0)}, {sr(S_CIDX)}, {HCH}")
        e(f"s_add_u32 {sr(S_T0)}, {sr(S_T0)}, {L_HANK}")
        e(f"s_lshl_b32 {sr(S_T1)}, {sr(S_RH)}, 11")
        e(f"s_add_u32 {sr(S_T1)}, {sr(S_T1)}, {sr(S_T0)}")
        e(f"v_add_u32 {vr(27)}, {sr(S_T0)}, {vr(V_L16)}")
        e(f"v_add_u32 {vr(28)}, {sr(S_T1)}, {vr(V_L16)}")
        for y in range(2): hk(HK[y], 28, 32 + 1024*y)
        lpb = A.newlabel("PB")
        e(f"s_cmp_lg_u32 {sr(S_RH)}, 0")
        e(f"s_cbranch_scc1 {lpb}")
        e(f"s_mov_b64 {sr(S_EX,2)}, exec")
        e("s_mov_b64 exec, 3")
        w = HK[0]
        for r in range(4): e(f"v_mov_b32 {vr(w+r)}, 0")
        e(f"v_mov_b32 {vr(w+4)}, {vr(HPB)}"); e(f"v_mov_b32 {vr(w+5)}, {vr(HPB+1)}")
        hk(w, 27, 0)
        e(f"s_mov_b64 exec, {sr(S_EX,2)}")
        A.label(lpb)
    V_DD = 32; V_CA = 35; V_CB = 29
    CACC = 192; CSET = [64, 128]
    def conv_addr():
        e(f"s_and_b32 {sr(S_RH)}, {sr(S_LW)}, 1")
        e(f"s_mul_i32 {sr(S_UB)}, {sr(S_LW)}, {UBSZ}")
        e(f"s_add_u32 {sr(S_UB)}, {sr(S_UB)}, {L_UB}")
        e(f"v_and_b32 {vr(t0)}, 15, {L}")
        e(f"v_lshrrev_b32 {vr(t1)}, 4, {L}")
        e(f"v_lshl_add_u32 {vr(t2)}, {vr(t1)}, 3, {vr(t0)}")
        e(f"v_add_u32 {vr(t2)}, 1, {vr(t2)}")
        e(f"v_and_b32 {vr(t3)}, 3, {vr(t2)}")
        e(f"v_sub_u32 {vr(t2)}, {vr(t2)}, {vr(t3)}")
        e(f"v_lshlrev_b32 {vr(t2)}, 1, {vr(t2)}")
        e(f"v_mul_u32_u24 {vr(t3)}, {HCOPY}, {vr(t3)}")
        e(f"v_add_u32 {vr(t2)}, {vr(t2)}, {vr(t3)}")
        e(f"s_mul_i32 {sr(S_T0)}, {sr(S_CIDX)}, {HCH}")
        e(f"s_lshl_b32 {sr(S_T1)}, {sr(S_RH)}, 8")
        e(f"s_add_u32 {sr(S_T0)}, {sr(S_T0)}, {sr(S_T1)}")
        e(f"s_add_u32 {sr(S_T0)}, {sr(S_T0)}, {L_HANK}")
        e(f"v_add_u32 {vr(V_CA)}, {sr(S_T0)}, {vr(t2)}")
        e(f"v_lshlrev_b32 {vr(t2)}, 1, {vr(t0)}")
        e(f"v_sub_u32 {vr(t2)}, {vr(t1)}, {vr(t2)}")
        e(f"v_add_u32 {vr(t2)}, 254, {vr(t2)}")
        e(f"v_lshlrev_b32 {vr(t2)}, 4, {vr(t2)}")
        e(f"s_add_u32 {sr(S_T0)}, {sr(S_UB)}, {sr(S_T1)}")
        e(f"s_sub_u32 {sr(S_T0)}, {sr(S_T0)}, 3584")
        e(f"v_add_u32 {vr(V_CB)}, {sr(S_T0)}, {vr(t2)}")
        for r in range(32): e(f"v_mov_b32 {vr(CACC+r)}, 0")
    def pt(it): return [tiles] if PPOS == it else []
    dma_stage(2)
    it_end(0, [lambda: dma_stage(3)] + pt(0), waits=())
    it_end(1, [lambda: dma_stage(4)] + pt(1), waits=("S2", "NL"))
    job_nonce_sts()
    TRI = {-1: 2, 0: 4, 1: 5}[PPOS]
    for it in range(2, 8):
        if it == TRI: job_tr_store()
        if it == 3: job_sl()
        if it == TRI + 2: job_kvf()
        if it == 4: job_conv_scalars(); job_row_srds() if False else None
        if it == 5: job_wd_setup()
        if it == 6: job_statchk(); conv_addr()
        if it == TRI + 3 and it <= 7:
            job_row_srds(); flag_issue(V_FL, 2, S_KVO, "PKV")
        if it == TRI + 4 and it <= 7: job_pkv_check()
        if it == TRI + 5 and it <= 7:
            lk7 = A.newlabel("K7")
            e(f"s_cmp_eq_u32 {sr(S_OKF)}, 1")
            e(f"s_cbranch_scc0 {lk7}")
            A.wait_vm("UK")
            kv_chunk(0); kv_chunk(1)
            A.label(lk7)
        if it == opts.get("hankit", 7): job_hankel()
        if it == 7: break
        st = []
        if it + 3 <= 7: st.append(lambda it=it: dma_stage(it + 3))
        if it == opts.get('hkit', 2): st.append(hk_loads)
        if it == opts.get('wtit', 3): st.append(wd_touch)
        if it == 5: st.append(lambda: [wd_dma(n) for n in range(0, 5)])
        if it == 6: st.append(lambda: [wd_dma(n) for n in range(5, 10)])
        w_ = [f"S{it+1}"]
        if it + 1 == TRI: w_.append("P")
        it_end(it, st, waits=tuple(w_))
    done_chunks01 = (TRI + 5 <= 7); done_check = (TRI + 4 <= 7); done_pkv = (TRI + 3 <= 7)
    e("s_waitcnt lgkmcnt(0)")
    e("s_barrier")
    stamp(3)
    wd_dma(10)
    if not done_pkv:
        job_row_srds(); flag_issue(V_FL, 2, S_KVO, "PKV")
    srd(SRD_AUX, 5, 1024)
    e(f"s_lshl_b32 {sr(S_T0)}, {sr(S_C)}, 1")
    A.vmem(f"buffer_load_ushort {vr(V_DD)}, off, {sr(SRD_AUX,4)}, {sr(S_T0)}", "DD")
    if not done_check: job_pkv_check()
    if opts.get("hankit", 7) > 7: job_hankel()
    e("s_waitcnt lgkmcnt(0)")
    e(f"s_lshl_b32 {sr(S_T0)}, {sr(S_LW)}, 2")
    e(f"s_add_u32 {sr(S_T0)}, {sr(S_T0)}, {L_FLAG}")
    e(f"v_mov_b32 {vr(V_PF)}, {sr(S_T0)}")
    e(f"v_mov_b32 {vr(V_PF+1)}, 1")
    e(f"ds_write_b32 {vr(V_PF)}, {vr(V_PF+1)} offset:96")
    A.wait_vm("WDP")
    e(f"ds_write_b32 {vr(V_PF)}, {vr(V_PF+1)} offset:16")
    lko2 = A.newlabel("KO2"); lko3 = A.newlabel("KO3")
    e(f"s_cmp_eq_u32 {sr(S_OKF)}, 1")
    e(f"s_cbranch_scc1 {lko2}")
    flag_wait_blocking(V_FL, 2, S_KVO, sleep=4)
    uk_loads(False)
    e("s_waitcnt vmcnt(0)")
    if done_chunks01:
        kv_chunk(0); kv_chunk(1)
    A.label(lko2)
    A.wait_vm("UK", "DD")
    if not done_chunks01:
        kv_chunk(0); kv_chunk(1)
    kv_chunk(2); kv_chunk(3)
    e(f"v_add_u32 {vr(26)}, {sr(S_UB)}, {vr(V_L16)}")
    for q in range(4): e(f"ds_write_b128 {vr(26)}, {vr(KR+8*q,4)} offset:{1024*q}")
    for r in range(4): e(f"v_mov_b32 {vr(52+r)}, 0")
    e(f"v_and_b32 {vr(t0)}, 31, {L}")
    e(f"v_lshlrev_b32 {vr(t0)}, 4, {vr(t0)}")
    e(f"v_add_u32 {vr(t0)}, {sr(S_UB)}, {vr(t0)}")
    e(f"ds_write_b128 {vr(t0)}, {vr(52,4)} offset:4096")
    e(f"v_lshlrev_b32 {vr(V_DD)}, 16, {vr(V_DD)}")
    e(f"s_lshl_b32 {sr(S_T0)}, {sr(S_LW)}, 2")
    e(f"s_xor_b32 {sr(S_T0)}, {sr(S_T0)}, 4")
    e(f"s_add_u32 {sr(S_T0)}, {sr(S_T0)}, {L_FLAG+96}")
    lds_spin(S_T0, t1, t0)
    e("s_waitcnt lgkmcnt(0)")
    if opts.get("gate", 1):
        e(f"s_lshl_b32 {sr(S_T0)}, {sr(S_LW)}, 2")
        e(f"s_add_u32 {sr(S_T0)}, {sr(S_T0)}, {L_FLAG+48}")
        lds_spin(S_T0, t1, t0)
    stamp(4)
    def creads(r, st):
        out = []; b = CSET[st]
        for sp in range(8):
            out.append(f"ds_read_b64 {vr(b+4*sp,2)}, {vr(V_CA)} offset:{512*sp+64*r}")
            out.append(f"ds_read_b64 {vr(b+4*sp+2,2)}, {vr(V_CA)} offset:{512*sp+64*r+8}")
            out.append(f"ds_read_b128 {vr(b+32+4*sp,4)}, {vr(V_CB)} offset:{512*(7-sp)+64*r}")
        return out
    def cmfmas(st):
        out = []; b = CSET[st]
        for t in range(8):
            for sp in range(t + 1):
                out.append(f"v_mfma_f32_16x16x32_bf16 {vr(CACC+4*t,4)}, {vr(b+4*sp,4)}, {vr(b+32+4*(t-sp),4)}, {vr(CACC+4*t,4)}")
        return out
    for x in creads(0, 0): e(x)
    for r in range(4):
        e("s_waitcnt lgkmcnt(0)")
        mf = cmfmas(r & 1)
        rd = creads(r + 1, (r + 1) & 1) if r < 3 else []
        for idx, m in enumerate(mf):
            e(m)
            if idx < len(rd): e(rd[idx])
    stamp(5)
    V_UU = 64
    e("s_nop 7")
    e(f"v_and_b32 {vr(t0)}, 15, {L}")
    e(f"v_lshrrev_b32 {vr(t1)}, 4, {L}")
    e(f"v_lshlrev_b32 {vr(t2)}, 2, {vr(t0)}")
    e(f"v_add_u32 {vr(t2)}, {vr(t2)}, {vr(t1)}")
    e(f"v_lshlrev_b32 {vr(t2)}, 3, {vr(t2)}")
    e(f"s_lshl_b32 {sr(S_T1)}, {sr(S_RH)}, 11")
    e(f"s_sub_u32 {sr(S_T0)}, {sr(S_UB)}, {sr(S_T1)}")
    e(f"s_add_u32 {sr(S_T0)}, {sr(S_T0)}, {4088 - 1536}")
    e(f"v_sub_u32 {vr(t3)}, {sr(S_T0)}, {vr(t2)}")
    for tt in range(4): e(f"ds_read_b64 {vr(V_UU+2*tt,2)}, {vr(t3)} offset:{512*(3-tt)}")
    e("s_waitcnt lgkmcnt(0)")
    e(f"v_add_u32 {vr(t3)}, {sr(S_UB)}, {vr(V_L16)}")
    l1 = A.newlabel("PR"); l2 = A.newlabel("PR")
    e(f"s_cmp_eq_u32 {sr(S_RH)}, 0")
    e(f"s_cbranch_scc1 {l1}")
    for tt in range(4): e(f"ds_write_b128 {vr(t3)}, {vr(CACC+4*tt,4)} offset:{1024*tt}")
    e("s_nop 1")
    for r in range(16): e(f"v_mov_b32 {vr(CACC+r)}, {vr(CACC+16+r)}")
    e(f"s_branch {l2}")
    A.label(l1)
    for tt in range(4): e(f"ds_write_b128 {vr(t3)}, {vr(CACC+16+4*tt,4)} offset:{1024*tt}")
    A.label(l2)
    e("s_waitcnt lgkmcnt(0)")
    e(f"ds_write_b32 {vr(V_PF)}, {vr(V_PF+1)}")
    e(f"s_lshl_b32 {sr(S_T0)}, {sr(S_LW)}, 2")
    e(f"s_add_u32 {sr(S_T0)}, {sr(S_T0)}, {L_FLAG}")
    e(f"s_xor_b32 {sr(S_T0)}, {sr(S_T0)}, 4")
    lds_spin(S_T0, t1, t0)
    e(f"s_xor_b32 {sr(S_T0)}, {sr(S_LW)}, 1")
    e(f"s_mul_i32 {sr(S_T0)}, {sr(S_T0)}, {UBSZ}")
    e(f"s_add_u32 {sr(S_T0)}, {sr(S_T0)}, {L_UB}")
    e(f"v_add_u32 {vr(t3)}, {sr(S_T0)}, {vr(V_L16)}")
    V_PP = 80
    for tt in range(4): e(f"ds_read_b128 {vr(V_PP+4*tt,4)}, {vr(t3)} offset:{1024*tt}")
    e("s_waitcnt lgkmcnt(0)")
    for r in range(16): e(f"v_add_f32 {vr(CACC+r)}, {vr(CACC+r)}, {vr(V_PP+r)}")
    V_YP = 96
    for tt in range(4):
        y = CACC + 4*tt; u0, u1 = V_UU + 2*tt, V_UU + 2*tt + 1; U = 112
        e(f"v_and_b32 {vr(U+0)}, 0xffff0000, {vr(u1)}")
        e(f"v_lshlrev_b32 {vr(U+1)}, 16, {vr(u1)}")
        e(f"v_and_b32 {vr(U+2)}, 0xffff0000, {vr(u0)}")
        e(f"v_lshlrev_b32 {vr(U+3)}, 16, {vr(u0)}")
        for k in range(4): e(f"v_mul_f32 {vr(U+k)}, {vr(U+k)}, {vr(V_DD)}")
        e(f"v_cvt_pk_bf16_f32 {vr(U+4)}, {vr(U+0)}, {vr(U+1)}")
        e(f"v_cvt_pk_bf16_f32 {vr(U+5)}, {vr(U+2)}, {vr(U+3)}")
        e(f"v_cvt_pk_bf16_f32 {vr(U+6)}, {vr(y+0)}, {vr(y+1)}")
        e(f"v_cvt_pk_bf16_f32 {vr(U+7)}, {vr(y+2)}, {vr(y+3)}")
        for h in range(2):
            e(f"v_lshlrev_b32 {vr(U+2*h)}, 16, {vr(U+4+h)}")
            e(f"v_and_b32 {vr(U+2*h+1)}, 0xffff0000, {vr(U+4+h)}")
            e(f"v_lshlrev_b32 {vr(y+2*h)}, 16, {vr(U+6+h)}")
            e(f"v_and_b32 {vr(y+2*h+1)}, 0xffff0000, {vr(U+6+h)}")
        for k in range(4): e(f"v_add_f32 {vr(y+k)}, {vr(y+k)}, {vr(U+k)}")
        e(f"v_cvt_pk_bf16_f32 {vr(V_YP+2*tt)}, {vr(y+0)}, {vr(y+1)}")
        e(f"v_cvt_pk_bf16_f32 {vr(V_YP+2*tt+1)}, {vr(y+2)}, {vr(y+3)}")
    e("s_nop 1")
    for p in range(2):
        e(f"v_permlane16_swap_b32 {vr(V_YP+4*p)}, {vr(V_YP+4*p+2)}")
        e(f"v_permlane16_swap_b32 {vr(V_YP+4*p+1)}, {vr(V_YP+4*p+3)}")
    e(f"v_and_b32 {vr(t0)}, 15, {L}")
    e(f"v_lshrrev_b32 {vr(t1)}, 4, {L}")
    e(f"v_and_b32 {vr(t2)}, 1, {vr(t1)}")
    e(f"v_lshlrev_b32 {vr(t2)}, 9, {vr(t2)}")
    e(f"v_and_b32 {vr(t1)}, 2, {vr(t1)}")
    e(f"v_lshlrev_b32 {vr(t1)}, 3, {vr(t1)}")
    e(f"v_lshlrev_b32 {vr(t0)}, 5, {vr(t0)}")
    e(f"v_add3_u32 {vr(t0)}, {vr(t0)}, {vr(t1)}, {vr(t2)}")
    e(f"s_lshl_b32 {sr(S_T0)}, {sr(S_C)}, 12")
    e(f"s_lshl_b32 {sr(S_T1)}, {sr(S_RH)}, 11")
    e(f"s_add_u32 {sr(S_T0)}, {sr(S_T0)}, {sr(S_T1)}")
    e(f"s_add_u32 {sr(S_T0)}, {sr(S_T0)}, {WS_YYT}")
    for p in range(2):
        e(f"buffer_store_dwordx4 {vr(V_YP+4*p,4)}, {vr(t0)}, {sr(SRD_WS,4)}, {sr(S_T0)} offen offset:{1024*p} sc0 sc1")
    e("s_waitcnt vmcnt(0)")
    e(f"s_lshr_b32 {sr(S_T0)}, {sr(S_C)}, 6")
    e(f"s_lshl_b32 {sr(S_T0)}, {sr(S_T0)}, 9")
    e(f"s_and_b32 {sr(S_T1)}, {sr(S_WG)}, 31")
    e(f"s_lshl_b32 {sr(S_T1)}, {sr(S_T1)}, 4")
    e(f"s_lshl_b32 {sr(S_T2)}, {sr(S_LW)}, 2")
    e(f"s_add_u32 {sr(S_T0)}, {sr(S_T0)}, {sr(S_T1)}")
    e(f"s_add_u32 {sr(S_T0)}, {sr(S_T0)}, {sr(S_T2)}")
    e(f"s_add_u32 {sr(S_T0)}, {sr(S_T0)}, {WS_FL+FL_Y}")
    flag_set(S_T0, t0)
    stamp(6)
    ly1 = A.newlabel("YP"); ly2 = A.newlabel("YP")
    e(f"s_cmp_lg_u32 {sr(S_LW)}, 0")
    e(f"s_cbranch_scc1 {ly1}")
    if opts.get("ygate"):
        e(f"s_mov_b32 {sr(S_T0)}, {L_FLAG+64}")
        lds_spin(S_T0, t1, t0, sleep=4)
    e(f"s_lshl_b32 {sr(S_T0)}, {sr(S_J)}, 9")
    e(f"s_add_u32 {sr(S_T0)}, {sr(S_T0)}, {WS_FL+FL_Y}")
    flag_wait_blocking(V_FL, 2, S_T0, sleep=opts.get('ysleep', 8))
    e(f"v_mov_b32 {vr(t0)}, {L_FLAG+68}")
    e(f"v_mov_b32 {vr(t1)}, 1")
    e(f"ds_write_b32 {vr(t0)}, {vr(t1)}")
    e(f"s_branch {ly2}")
    A.label(ly1)
    e(f"s_mov_b32 {sr(S_T0)}, {L_FLAG+68}")
    lds_spin(S_T0, t1, t0, sleep=4)
    A.label(ly2)
    stamp(7)
    e(f"v_lshrrev_b32 {vr(t0)}, 3, {L}")
    e(f"v_and_b32 {vr(t1)}, 7, {L}")
    e(f"s_lshl_b32 {sr(S_T0)}, {sr(S_LW)}, 4")
    e(f"v_add_u32 {vr(t0)}, {sr(S_T0)}, {vr(t0)}")
    e(f"v_lshlrev_b32 {vr(t2)}, 12, {vr(t0)}")
    e(f"v_lshl_add_u32 {vr(t2)}, {vr(t1)}, 4, {vr(t2)}")
    e(f"s_lshl_b32 {sr(S_T0)}, {sr(S_J)}, 18")
    e(f"s_lshl_b32 {sr(S_T1)}, {sr(S_I2)}, 7")
    e(f"s_add_u32 {sr(S_T0)}, {sr(S_T0)}, {sr(S_T1)}")
    e(f"s_add_u32 {sr(S_T0)}, {sr(S_T0)}, {WS_YYT}")
    e(f"buffer_load_dwordx4 {vr(64,4)}, {vr(t2)}, {sr(SRD_WS,4)}, {sr(S_T0)} offen sc1")
    e(f"v_add_u32 {vr(t2)}, {8*4096}, {vr(t2)}")
    e(f"buffer_load_dwordx4 {vr(68,4)}, {vr(t2)}, {sr(SRD_WS,4)}, {sr(S_T0)} offen sc1")
    e(f"v_mul_u32_u24 {vr(t3)}, {YTROW}, {vr(t0)}")
    e(f"v_lshl_add_u32 {vr(t3)}, {vr(t1)}, 4, {vr(t3)}")
    e(f"v_add_u32 {vr(t3)}, {L_YT}, {vr(t3)}")
    e("s_waitcnt vmcnt(1)")
    e(f"ds_write_b128 {vr(t3)}, {vr(64,4)}")
    e("s_waitcnt vmcnt(0)")
    e(f"ds_write_b128 {vr(t3)}, {vr(68,4)} offset:{8*YTROW}")
    srd(SRD_OUT, 10, 2 << 20)

    A.label("L_FINAL")
    e("s_setprio 0")
    FT, FD, FO = 28, 29, 30
    e(f"v_lshrrev_b32 {vr(t0)}, 5, {L}")
    e(f"v_and_b32 {vr(t1)}, 3, {L}")
    e(f"v_lshl_add_u32 {vr(FT)}, {vr(t0)}, 2, {vr(t1)}")
    e(f"s_lshl_b32 {sr(S_T0)}, {sr(S_WAVE)}, 3")
    e(f"v_add_u32 {vr(FT)}, {sr(S_T0)}, {vr(FT)}")
    e(f"v_bfe_u32 {vr(FD)}, {L}, 2, 3")
    e(f"s_lshl_b32 {sr(S_T0)}, {sr(S_I2)}, 16")
    e(f"s_lshl_b32 {sr(S_T1)}, {sr(S_J)}, 7")
    e(f"s_add_u32 {sr(S_T0)}, {sr(S_T0)}, {sr(S_T1)}")
    e(f"v_lshlrev_b32 {vr(FO)}, 10, {vr(FT)}")
    e(f"v_lshl_add_u32 {vr(FO)}, {vr(FD)}, 4, {vr(FO)}")
    e(f"v_add_u32 {vr(FO)}, {sr(S_T0)}, {vr(FO)}")
    FX_, FS_ = 32, 36
    e(f"buffer_load_dwordx4 {vr(FX_,4)}, {vr(FO)}, {sr(SRD_Q,4)}, 0 offen")
    e("s_waitcnt lgkmcnt(0)")
    e("s_barrier")
    stamp(9)
    e(f"s_lshl_b32 {sr(S_T0)}, {sr(S_I2)}, 9")
    e(f"s_add_u32 {sr(S_T0)}, {sr(S_T0)}, {WS_ST}")
    e(f"v_lshlrev_b32 {vr(t1)}, 3, {vr(FT)}")
    e(f"buffer_load_dwordx2 {vr(FS_,2)}, {vr(t1)}, {sr(SRD_WS,4)}, {sr(S_T0)} offen sc1")
    FP = 40
    e(f"v_and_b32 {vr(t0)}, 31, {vr(FT)}")
    e(f"v_mul_u32_u24 {vr(t0)}, 272, {vr(t0)}")
    e(f"v_lshl_add_u32 {vr(t0)}, {vr(FD)}, 5, {vr(t0)}")
    e(f"s_cmp_lt_u32 {sr(S_WAVE)}, 4")
    e(f"s_cselect_b32 {sr(S_T0)}, {RA}, {RB_}")
    e(f"v_add_u32 {vr(t0)}, {sr(S_T0)}, {vr(t0)}")
    for kg in range(4):
        e(f"ds_read_b128 {vr(FP+8*kg,4)}, {vr(t0)} offset:{kg*10240}")
        e(f"ds_read_b128 {vr(FP+8*kg+4,4)}, {vr(t0)} offset:{kg*10240+16}")
    FY = 72
    e(f"v_bfe_u32 {vr(t2)}, {L}, 2, 2")
    e(f"v_and_b32 {vr(t3)}, 3, {L}")
    e(f"v_bfe_u32 {vr(t4)}, {L}, 4, 1")
    e(f"v_lshl_add_u32 {vr(t3)}, {vr(t4)}, 2, {vr(t3)}")
    e(f"v_lshl_add_u32 {vr(t2)}, {vr(t3)}, 3, {vr(t2)}")
    e(f"v_mul_u32_u24 {vr(t2)}, {YTROW}, {vr(t2)}")
    e(f"v_lshrrev_b32 {vr(t3)}, 5, {L}")
    e(f"v_lshlrev_b32 {vr(t3)}, 3, {vr(t3)}")
    e(f"s_lshl_b32 {sr(S_T0)}, {sr(S_WAVE)}, 4")
    e(f"s_add_u32 {sr(S_T0)}, {sr(S_T0)}, {L_YT}")
    e(f"v_add3_u32 {vr(t2)}, {vr(t2)}, {vr(t3)}, {sr(S_T0)}")
    e(f"ds_read_b64_tr_b16 {vr(FY,2)}, {vr(t2)}")
    e(f"ds_read_b64_tr_b16 {vr(FY+2,2)}, {vr(t2)} offset:{4*YTROW}")
    e("s_waitcnt lgkmcnt(2)")
    for kg in range(1, 4):
        for k in range(8): e(f"v_add_f32 {vr(FP+k)}, {vr(FP+k)}, {vr(FP+8*kg+k)}")
    O = FP; T = 48; XV = 56; YV = 64
    for k in range(0, 8, 2): e(f"v_cvt_pk_bf16_f32 {vr(T+k)}, {vr(O+k)}, {vr(O+k+1)}")
    for k in range(0, 8, 2):
        e(f"v_and_b32 {vr(O+k+1)}, 0xffff0000, {vr(T+k)}")
        e(f"v_lshlrev_b32 {vr(O+k)}, 16, {vr(T+k)}")
    e(f"s_mov_b32 {sr(S_T0)}, 0xbfb8aa3b")
    for k in range(8): e(f"v_mul_f32 {vr(T+k)}, {sr(S_T0)}, {vr(O+k)}")
    for k in range(8): e(f"v_exp_f32 {vr(T+k)}, {vr(T+k)}")
    for k in range(8): e(f"v_add_f32 {vr(T+k)}, 1.0, {vr(T+k)}")
    for k in range(8): e(f"v_rcp_f32 {vr(T+k)}, {vr(T+k)}")
    e("s_nop 0")
    for k in range(8): e(f"v_mul_f32 {vr(O+k)}, {vr(O+k)}, {vr(T+k)}")
    e("s_waitcnt vmcnt(0) lgkmcnt(0)")
    for k in range(4):
        e(f"v_lshlrev_b32 {vr(XV+2*k)}, 16, {vr(FX_+k)}")
        e(f"v_and_b32 {vr(XV+2*k+1)}, 0xffff0000, {vr(FX_+k)}")
        e(f"v_lshlrev_b32 {vr(YV+2*k)}, 16, {vr(FY+k)}")
        e(f"v_and_b32 {vr(YV+2*k+1)}, 0xffff0000, {vr(FY+k)}")
    e(f"v_and_b32 {vr(FS_+1)}, 0xffff0000, {vr(FS_)}")
    e(f"v_lshlrev_b32 {vr(FS_)}, 16, {vr(FS_)}")
    e(f"v_rcp_f32 {vr(FS_+1)}, {vr(FS_+1)}")
    for k in range(8): e(f"v_sub_f32 {vr(T+k)}, {vr(XV+k)}, {vr(FS_)}")
    def round8(b):
        for k in range(0, 8, 2): e(f"v_cvt_pk_bf16_f32 {vr(b+k)}, {vr(b+k)}, {vr(b+k+1)}")
        for k in range(0, 8, 2):
            e(f"v_and_b32 {vr(b+k+1)}, 0xffff0000, {vr(b+k)}")
            e(f"v_lshlrev_b32 {vr(b+k)}, 16, {vr(b+k)}")
    round8(T)
    for k in range(8): e(f"v_mul_f32 {vr(T+k)}, {vr(T+k)}, {vr(FS_+1)}")
    round8(T)
    for k in range(8): e(f"v_mul_f32 {vr(T+k)}, {vr(T+k)}, {vr(YV+k)}")
    round8(T); round8(O)
    for k in range(8): e(f"v_mul_f32 {vr(T+k)}, {vr(T+k)}, {vr(O+k)}")
    round8(T)
    for k in range(8): e(f"v_add_f32 {vr(T+k)}, {vr(T+k)}, {vr(XV+k)}")
    for k in range(4): e(f"v_cvt_pk_bf16_f32 {vr(FY+k)}, {vr(T+2*k)}, {vr(T+2*k+1)}")
    e(f"buffer_store_dwordx4 {vr(FY,4)}, {vr(FO)}, {sr(SRD_OUT,4)}, 0 offen")
    stamp(10)
    stamp_flush()
    A.label("L_END")
    e("s_endpgm")
    A.label("L_CODE_END")

    body = A.text()
    hdr = open("cdna_kernels/" + NAME + ".s.ref").read().split("; Override launch geometry")[0]
    out = hdr + "; Override launch geometry by editing the next line.\n"
    out += f"; @launch grid=(256,1,1) block=(512,1,1) lds={LDS_TOTAL}\n"
    out += f""".amdgcn_target "amdgcn-amd-amdhsa--gfx950"
.text
.globl {NAME}_kernel
.p2align 8
.type {NAME}_kernel,@function
{NAME}_kernel:
"""
    out += body
    out += f""".section .rodata,"a"
.p2align 6
.amdhsa_kernel {NAME}_kernel
  .amdhsa_next_free_vgpr 256
  .amdhsa_next_free_sgpr 102
  .amdhsa_accum_offset 256
  .amdhsa_group_segment_fixed_size 0
  .amdhsa_kernarg_size 104
  .amdhsa_user_sgpr_count 2
  .amdhsa_user_sgpr_kernarg_segment_ptr 1
  .amdhsa_system_sgpr_workgroup_id_x 1
.end_amdhsa_kernel
"""
    return out

if __name__ == "__main__":
    opts = {}
    outp = sys.argv[1]
    for a in sys.argv[2:]:
        k, _, v = a.partition("=")
        opts[k] = (int(v) if v.lstrip("-").isdigit() else (v or True))
    open(outp, "w").write(gen(opts))
```

```python
import sys, struct

NAME = "recurrent_scan__ssm_conv_h3__glu_gated_geglu__prompt"
f2u = lambda x: struct.unpack("<I", struct.pack("<f", x))[0]

class Asm:
    def __init__(self):
        self.lines = []; self.nlabel = 0; self.vm = []; self.cap = None
    def e(self, s):
        if self.cap is not None: self.cap.append(("  " + s, None))
        else: self.lines.append("  " + s)
    def label(self, l):
        assert self.cap is None, l
        self.lines.append(l + ":")
    def newlabel(self, p="L"):
        self.nlabel += 1; return f"{p}_{self.nlabel}"
    def text(self): return "\n".join(self.lines) + "\n"
    def vmem(self, s, tag):
        if self.cap is not None:
            self.cap.append(("  " + s, tag)); return
        self.e(s); self.vm.append(tag)
    def capture(self, fn):
        assert self.cap is None
        self.cap = []
        fn()
        out = self.cap; self.cap = None
        return out
    def emit_list(self, lst):
        for line, tag in lst:
            self.lines.append(line)
            if tag is not None: self.vm.append(tag)
    def merge(self, a, b):
        groups = []; cur = []
        for it in a:
            cur.append(it)
            if it[1] is not None: groups.append(cur); cur = []
        if cur: groups.append(cur)
        n = len(groups); out = []; k = 0
        for gi, g in enumerate(groups):
            out += g
            upto = (len(b) * (gi + 1)) // n
            out += b[k:upto]; k = upto
        out += b[k:]
        return out
    def wait_vm(self, *tags):
        assert self.cap is None
        last = -1
        for i, t in enumerate(self.vm):
            if t in tags: last = i
        assert last >= 0, tags
        n = len(self.vm) - 1 - last
        n = min(n, 63)
        self.e(f"s_waitcnt vmcnt({n})")
        return n

def vr(a, n=1): return f"v{a}" if n == 1 else f"v[{a}:{a+n-1}]"
def sr(a, n=1): return f"s{a}" if n == 1 else f"s[{a}:{a+n-1}]"

S, D, F = 2048, 512, 1376
WROW = F * 2
WBYTES = 512 * WROW
WS_KVT, WS_YYT, WS_HF, WS_ST, WS_FL, WS_TS = 0, 2 << 20, 4 << 20, 12 << 20, 13 << 20, 16 << 20
WS_VT = 14 << 20
FL_KV, FL_ST, FL_H, FL_Y = 0, 4096, 8192, 12288
STAGE = 40960
L_HANK = 122880
HCOPY = 4160
HCH = 4 * HCOPY
L_MISC = L_HANK + 2 * HCH
L_CS = L_MISC
L_STAT = L_MISC + 1536
L_FLAG = L_MISC + 2560
LDS_TOTAL = 163840
L_KT, L_VT = L_HANK, L_HANK + 8192
RA, RB_ = 2 * STAGE, 0
L_UB = STAGE
UBSZ = 4608
L_YT = L_UB + 4 * UBSZ
YTROW = 144
RC = L_YT + 64 * YTROW
NR = 11
def ring_off(n):
    if n < 5: return (0, n * 2048)
    if n < 10: return (1, (n - 5) * 2048)
    return (2, 0)

SRD_Q, SRD_K, SRD_V, SRD_W, SRD_WD, SRD_WS, SRD_DBG, SRD_OUT, SRD_SK, SRD_AUX = 4, 8, 12, 16, 20, 24, 28, 32, 36, 40
P = 48
S_WG = 2
S_WAVE, S_RB, S_CP, S_I2, S_J, S_F0, S_N32, S_A, S_B = 76, 77, 78, 79, 80, 81, 82, 83, 84
S_NONCE = 85
S_T0, S_T1, S_T2, S_T3, S_T4, S_T5 = 86, 87, 88, 89, 90, 91
S_G0, S_G1, S_G2, S_G3, S_G4, S_G5 = 92, 93, 94, 95, 96, 97
S_C0, S_C1 = 98, 99
S_EX = 100
S_TSP = 74
S_X0, S_X1, S_X2, S_X3 = 44, 45, 46, 47

def gen(opts):
    A = Asm(); e = A.e
    TS = opts.get("ts", False)
    HSC = "" if opts.get("hplain", 1) else " sc1"
    USC = "" if opts.get("uplain", 1) else " sc1"
    t0, t1, t2, t3, t4, t5 = 8, 9, 10, 11, 12, 13
    V_LANE = 3; L = vr(V_LANE)
    V_TS = 15

    def stamp(idx, dyn=None):
        if not TS: return
        e(f"{'s_memtime' if opts.get('cyc') else 's_memrealtime'} {sr(S_TSP,2)}")
        e("s_waitcnt lgkmcnt(0)")
        if dyn is None:
            e(f"v_writelane_b32 {vr(V_TS)}, {sr(S_TSP)}, {idx}")
        else:
            e(f"s_add_u32 m0, {sr(dyn)}, {idx}")
            e("s_nop 0")
            e(f"v_writelane_b32 {vr(V_TS)}, {sr(S_TSP)}, m0")
    def stamp_flush():
        if not TS: return
        e(f"s_lshl_b32 {sr(S_TSP+1)}, {sr(S_WG)}, 3")
        e(f"s_add_u32 {sr(S_TSP+1)}, {sr(S_TSP+1)}, {sr(S_WAVE)}")
        e(f"s_lshl_b32 {sr(S_TSP+1)}, {sr(S_TSP+1)}, 8")
        e(f"s_add_u32 {sr(S_TSP+1)}, {sr(S_TSP+1)}, {WS_TS}")
        e(f"v_lshlrev_b32 v14, 2, {L}")
        e(f"buffer_store_dword {vr(V_TS)}, v14, {sr(SRD_WS,4)}, {sr(S_TSP+1)} offen")

    def srd(dst, pidx, nbytes):
        e(f"s_mov_b32 {sr(dst)}, {sr(P+2*pidx)}")
        e(f"s_mov_b32 {sr(dst+1)}, {sr(P+2*pidx+1)}")
        e(f"s_mov_b32 {sr(dst+2)}, {nbytes}")
        e(f"s_mov_b32 {sr(dst+3)}, 0x20000")

    def flag_issue(vdst, nw, soff_sgpr, tag):
        e(f"v_lshlrev_b32 {vr(t5)}, {1 + nw}, {L}")
        op = "buffer_load_dword" if nw == 1 else "buffer_load_dwordx2"
        A.vmem(f"{op} {vr(vdst,nw)}, {vr(t5)}, {sr(SRD_WS,4)}, {sr(soff_sgpr)} offen sc1", tag)
    def flag_check_scc(vdst, nw):
        e(f"v_cmp_eq_u32 vcc, {sr(S_NONCE)}, {vr(vdst)}")
        if nw == 2:
            e(f"v_cmp_eq_u32 {sr(S_T4,2)}, {sr(S_NONCE)}, {vr(vdst+1)}")
            e("s_nop 1")
            e(f"s_and_b64 vcc, vcc, {sr(S_T4,2)}")
        else:
            e("s_nop 1")
        e("s_cmp_eq_u64 vcc, -1")
    def flag_wait_blocking(vdst, nw, soff_sgpr, sleep=4):
        l = A.newlabel("POLL"); d = A.newlabel("POLLD")
        n0 = len(A.vm)
        e(f"s_mov_b32 {sr(S_T3)}, 0x40000")
        A.label(l)
        flag_issue(vdst, nw, soff_sgpr, "poll")
        e("s_waitcnt vmcnt(0)")
        flag_check_scc(vdst, nw)
        e(f"s_cbranch_scc1 {d}")
        e(f"s_sub_u32 {sr(S_T3)}, {sr(S_T3)}, 1")
        e(f"s_cmp_eq_u32 {sr(S_T3)}, 0")
        e(f"s_cbranch_scc1 {d}")
        e(f"s_sleep {sleep}")
        e(f"s_branch {l}")
        A.label(d)
        del A.vm[n0:]
    def flag_set(soff_sgpr, vtmp):
        e(f"v_mov_b32 {vr(vtmp)}, {sr(S_NONCE)}")
        e(f"s_mov_b64 {sr(S_EX,2)}, exec")
        e("s_mov_b64 exec, 1")
        A.vmem(f"buffer_store_dword {vr(vtmp)}, off, {sr(SRD_WS,4)}, {sr(soff_sgpr)} sc0 sc1", "flag")
        e(f"s_mov_b64 exec, {sr(S_EX,2)}")
    def lds_spin(addr_sgpr, vt, va, sleep=1):
        l = A.newlabel("LS"); d = A.newlabel("LSD")
        e(f"v_mov_b32 {vr(va)}, {sr(addr_sgpr)}")
        e(f"s_mov_b32 {sr(S_T3)}, 0x200000")
        A.label(l)
        e(f"ds_read_b32 {vr(vt)}, {vr(va)}")
        e("s_waitcnt lgkmcnt(0)")
        e(f"v_readfirstlane_b32 {sr(S_T2)}, {vr(vt)}")
        e("s_nop 3")
        e(f"s_cmp_eq_u32 {sr(S_T2)}, 1")
        e(f"s_cbranch_scc1 {d}")
        e(f"s_sub_u32 {sr(S_T3)}, {sr(S_T3)}, 1")
        e(f"s_cmp_eq_u32 {sr(S_T3)}, 0")
        e(f"s_cbranch_scc1 {d}")
        e(f"s_sleep {sleep}")
        e(f"s_branch {l}")
        A.label(d)
    def wd_voffset(dst):
        e(f"v_lshrrev_b32 {vr(t0)}, 3, {L}")
        e(f"v_and_b32 {vr(t1)}, 7, {L}")
        e(f"v_bfe_u32 {vr(t2)}, {L}, 4, 1")
        e(f"v_lshlrev_b32 {vr(t2)}, 2, {vr(t2)}")
        e(f"v_xor_b32 {vr(t1)}, {vr(t1)}, {vr(t2)}")
        e(f"v_lshlrev_b32 {vr(t1)}, 4, {vr(t1)}")
        e(f"v_lshl_add_u32 {vr(t1)}, {vr(t0)}, 10, {vr(t1)}")
        e(f"s_lshl_b32 {sr(S_T1)}, {sr(S_J)}, 7")
        e(f"v_add_u32 {vr(dst)}, {sr(S_T1)}, {vr(t1)}")
    def ku_start(dst, kg):
        e(f"s_mul_i32 {sr(dst)}, {sr(kg)}, 22")
        e(f"s_cmp_eq_u32 {sr(kg)}, 3")
        e(f"s_cselect_b32 {sr(S_T1)}, 1, 0")
        e(f"s_sub_u32 {sr(dst)}, {sr(dst)}, {sr(S_T1)}")
    def unit_at(n, dst, rot, kun):
        e(f"s_add_u32 {sr(dst)}, {sr(rot)}, {n}")
        e(f"s_cmp_ge_u32 {sr(dst)}, 22")
        e(f"s_cselect_b32 {sr(S_T5)}, 22, 0")
        e(f"s_sub_u32 {sr(dst)}, {sr(dst)}, {sr(S_T5)}")
        e(f"s_cmp_lt_u32 {sr(dst)}, {sr(kun)}")
    def wd_soff(n, dst, rot, kun, ku0, oob):
        unit_at(n, dst, rot, kun)
        e(f"s_cselect_b32 {sr(S_T5)}, 1, 0")
        e(f"s_add_u32 {sr(dst)}, {sr(dst)}, {sr(ku0)}")
        e(f"s_lshl_b32 {sr(dst)}, {sr(dst)}, 14")
        e(f"s_cmp_eq_u32 {sr(S_T5)}, 1")
        e(f"s_cselect_b32 {sr(dst)}, {sr(dst)}, {sr(oob)}")
    def ring_bases(kg, ra, rb, rc):
        e(f"s_mul_i32 {sr(ra)}, {sr(kg)}, 10240")
        e(f"s_add_u32 {sr(rb)}, {sr(ra)}, {RB_}")
        e(f"s_add_u32 {sr(ra)}, {sr(ra)}, {RA}")
        e(f"s_lshl_b32 {sr(rc)}, {sr(kg)}, 11")
        e(f"s_add_u32 {sr(rc)}, {sr(rc)}, {RC}")

    def loader_setup(lw, V_XO, V_WO, S_M0X, S_M0W):
        e(f"v_lshrrev_b32 {vr(t0)}, 3, {L}")
        e(f"v_lshrrev_b32 {vr(t1)}, 4, {L}")
        e(f"v_and_b32 {vr(t2)}, 7, {L}")
        e(f"s_lshl_b32 {sr(S_T2)}, {sr(S_RB)}, 7")
        e(f"s_lshl_b32 {sr(S_T3)}, {sr(lw)}, 5")
        e(f"s_add_u32 {sr(S_T2)}, {sr(S_T2)}, {sr(S_T3)}")
        for a in range(2):
            e(f"v_add_u32 {vr(t3)}, {4*a}, {vr(t1)}")
            e(f"v_xor_b32 {vr(t3)}, {vr(t3)}, {vr(t2)}")
            e(f"v_lshlrev_b32 {vr(t3)}, 4, {vr(t3)}")
            e(f"v_add_u32 {vr(t4)}, {sr(S_T2)}, {vr(t0)}")
            e(f"v_add_u32 {vr(t4)}, {8*a}, {vr(t4)}")
            e(f"v_lshl_add_u32 {vr(V_XO+a)}, {vr(t4)}, 10, {vr(t3)}")
        e(f"s_and_b32 {sr(S_T1)}, {sr(lw)}, 1")
        e(f"s_lshl_b32 {sr(S_T3)}, {sr(S_T1)}, 1")
        e(f"s_lshr_b32 {sr(S_T4)}, {sr(lw)}, 1")
        e(f"s_lshl_b32 {sr(S_T4)}, {sr(S_T4)}, 5")
        e(f"s_lshl_b32 {sr(S_T5)}, {sr(S_F0)}, 1")
        e(f"s_movk_i32 {sr(S_T0)}, {WROW}")
        for i in range(3):
            e(f"v_add_u32 {vr(t0)}, {64*i}, {L}")
            e(f"v_lshrrev_b32 {vr(t1)}, 4, {vr(t0)}")
            e(f"v_mul_u32_u24 {vr(t1)}, 43, {vr(t1)}")
            e(f"v_lshrrev_b32 {vr(t1)}, 7, {vr(t1)}")
            e(f"v_mul_u32_u24 {vr(t2)}, 48, {vr(t1)}")
            e(f"v_sub_u32 {vr(t2)}, {vr(t0)}, {vr(t2)}")
            e(f"v_lshrrev_b32 {vr(t3)}, 4, {vr(t2)}")
            e(f"v_bfe_u32 {vr(t4)}, {vr(t2)}, 2, 2")
            e(f"v_and_b32 {vr(t2)}, 3, {vr(t2)}")
            e(f"v_xor_b32 {vr(t2)}, {sr(S_T3)}, {vr(t2)}")
            e(f"v_lshl_add_u32 {vr(t2)}, {vr(t3)}, 2, {vr(t2)}")
            e(f"v_lshl_add_u32 {vr(t1)}, {vr(t1)}, 2, {vr(t4)}")
            e(f"v_add_u32 {vr(t1)}, {sr(S_T4)}, {vr(t1)}")
            e(f"v_mul_u32_u24 {vr(t1)}, {sr(S_T0)}, {vr(t1)}")
            e(f"v_lshl_add_u32 {vr(t2)}, {vr(t2)}, 4, {vr(t1)}")
            e(f"v_add_u32 {vr(V_WO+i)}, {sr(S_T5)}, {vr(t2)}")
        e(f"s_lshl_b32 {sr(S_M0X)}, {sr(lw)}, 12")
        e(f"s_mul_i32 {sr(S_M0W)}, {sr(S_T1)}, 12288")
        e(f"s_lshr_b32 {sr(S_T4)}, {sr(lw)}, 1")
        e(f"s_mul_i32 {sr(S_T4)}, {sr(S_T4)}, 6144")
        e(f"s_add_u32 {sr(S_M0W)}, {sr(S_M0W)}, {sr(S_T4)}")
        e(f"s_add_u32 {sr(S_M0W)}, {sr(S_M0W)}, 16384")
    def srd_w_select(lw):
        e(f"s_and_b32 {sr(S_T0)}, {sr(lw)}, 1")
        e(f"s_cmp_eq_u32 {sr(S_T0)}, 0")
        e(f"s_cselect_b32 {sr(SRD_W)}, {sr(P+14)}, {sr(P+16)}")
        e(f"s_cselect_b32 {sr(SRD_W+1)}, {sr(P+15)}, {sr(P+17)}")
        e(f"s_mov_b32 {sr(SRD_W+2)}, {WBYTES}")
        e(f"s_mov_b32 {sr(SRD_W+3)}, 0x20000")
    def dma_stage_g(s, V_XO, V_WO, S_M0X, S_M0W, S_XSO, S_WSO):
        slot = (s % 3) * STAGE
        e(f"s_mov_b32 {sr(S_XSO)}, {s*128}")
        e(f"s_add_u32 m0, {sr(S_M0X)}, {slot}")
        for a in range(4):
            if a == 2: e(f"s_mov_b32 {sr(S_XSO)}, {s*128+16384}")
            else: e("s_nop 0")
            A.vmem(f"buffer_load_dwordx4 {vr(V_XO+(a&1))}, {sr(SRD_Q,4)}, {sr(S_XSO)} offen lds", f"S{s}")
            if a < 3: e("s_add_u32 m0, m0, 1024")
        e(f"s_mov_b32 {sr(S_WSO)}, {s*64*WROW}")
        e(f"s_add_u32 m0, {sr(S_M0W)}, {slot}")
        for blk in range(2):
            for i in range(3):
                if blk == 1 and i == 0: e(f"s_mov_b32 {sr(S_WSO)}, {s*64*WROW+16*WROW}")
                else: e("s_nop 0")
                A.vmem(f"buffer_load_dwordx4 {vr(V_WO+i)}, {sr(SRD_W,4)}, {sr(S_WSO)} offen lds", f"S{s}")
                if not (blk == 1 and i == 2): e("s_add_u32 m0, m0, 1024")

    if TS: e("s_memrealtime s[44:45]")
    e(f"s_cmp_ge_u32 {sr(S_WG)}, 256")
    e("s_cbranch_scc1 L_END")
    e(f"s_load_dwordx16 {sr(P,16)}, s[0:1], 0")
    e(f"s_load_dwordx8 {sr(P+16,8)}, s[0:1], 64")
    e(f"s_load_dwordx2 {sr(P+24,2)}, s[0:1], 96")
    e(f"s_getpc_b64 {sr(S_T0,2)}")
    e("v_lshlrev_b32 v1, 6, v0")
    e(f"v_cmp_gt_u32 vcc, L_CODE_END-{NAME}_kernel, v1")
    e(f"s_and_saveexec_b64 {sr(S_EX,2)}, vcc")
    e(f"global_load_dword v2, v1, {sr(S_T0,2)}")
    e(f"s_mov_b64 exec, {sr(S_EX,2)}")
    e(f"v_and_b32 {L}, 63, v0")
    e("v_lshrrev_b32 v4, 6, v0")
    e(f"s_and_b32 {sr(S_T0)}, {sr(S_WG)}, 7")
    e(f"v_readfirstlane_b32 {sr(S_WAVE)}, v4")
    e(f"s_lshr_b32 {sr(S_T1)}, {sr(S_WG)}, 3")
    e(f"s_and_b32 {sr(S_T2)}, {sr(S_T0)}, 1")
    e(f"s_lshl_b32 {sr(S_T2)}, {sr(S_T2)}, 3")
    e(f"s_and_b32 {sr(S_T3)}, {sr(S_T1)}, 7")
    e(f"s_add_u32 {sr(S_RB)}, {sr(S_T2)}, {sr(S_T3)}")
    e(f"s_lshr_b32 {sr(S_T2)}, {sr(S_T0)}, 1")
    e(f"s_lshl_b32 {sr(S_T2)}, {sr(S_T2)}, 2")
    e(f"s_lshr_b32 {sr(S_T3)}, {sr(S_T1)}, 3")
    e(f"s_add_u32 {sr(S_CP)}, {sr(S_T2)}, {sr(S_T3)}")
    e(f"s_lshl_b32 {sr(S_T2)}, {sr(S_T0)}, 2")
    e(f"s_and_b32 {sr(S_T3)}, {sr(S_T1)}, 3")
    e(f"s_add_u32 {sr(S_I2)}, {sr(S_T2)}, {sr(S_T3)}")
    e(f"s_lshr_b32 {sr(S_J)}, {sr(S_T1)}, 2")
    e(f"s_mul_i32 {sr(S_T2)}, {sr(S_CP)}, 96")
    e(f"s_lshl_b32 {sr(S_T3)}, {sr(S_CP)}, 6")
    e(f"s_add_u32 {sr(S_T3)}, {sr(S_T3)}, 352")
    e(f"s_cmp_lt_u32 {sr(S_CP)}, 11")
    e(f"s_cselect_b32 {sr(S_F0)}, {sr(S_T2)}, {sr(S_T3)}")
    e(f"s_cselect_b32 {sr(S_N32)}, 3, 2")
    if TS:
        e(f"v_mov_b32 {vr(V_TS)}, 0")
        e("s_waitcnt lgkmcnt(0)")
        e(f"v_writelane_b32 {vr(V_TS)}, s44, 63")
        e(f"s_memrealtime s[44:45]")
        e("s_waitcnt lgkmcnt(0)")
        e(f"v_writelane_b32 {vr(V_TS)}, s44, 62")
    e(f"s_cmp_ge_u32 {sr(S_WAVE)}, 4")
    e("s_cbranch_scc1 L_HELPER")

    A.vm = ["code"]
    e(f"s_setprio {opts.get('cprio', 2)}")
    e(f"s_and_b32 {sr(S_A)}, {sr(S_WAVE)}, 1")
    e(f"s_lshr_b32 {sr(S_B)}, {sr(S_WAVE)}, 1")
    FS = [16, 36]
    V_XR, V_WR, V_XR2, V_WR2 = 56, 60, 66, 70
    ACC = 160
    e(f"v_and_b32 {vr(t0)}, 31, {L}")
    e(f"v_lshrrev_b32 {vr(t1)}, 5, {L}")
    e(f"v_bfe_u32 {vr(t2)}, {vr(t0)}, 1, 3")
    e(f"v_xor_b32 {vr(t2)}, {vr(t2)}, {vr(t1)}")
    e(f"s_lshl_b32 {sr(S_T0)}, {sr(S_A)}, 1")
    e(f"v_xor_b32 {vr(t2)}, {sr(S_T0)}, {vr(t2)}")
    e(f"s_lshl_b32 {sr(S_T0)}, {sr(S_A)}, 6")
    e(f"v_add_u32 {vr(t0)}, {sr(S_T0)}, {vr(t0)}")
    e(f"v_lshlrev_b32 {vr(t0)}, 7, {vr(t0)}")
    for ks in range(4):
        e(f"v_xor_b32 {vr(t3)}, {2*ks}, {vr(t2)}")
        e(f"v_lshl_add_u32 {vr(V_XR+ks)}, {vr(t3)}, 4, {vr(t0)}")
    e(f"v_bfe_u32 {vr(t0)}, {L}, 4, 1")
    e(f"v_lshrrev_b32 {vr(t1)}, 5, {L}")
    e(f"v_bfe_u32 {vr(t2)}, {L}, 2, 2")
    e(f"v_bfe_u32 {vr(t3)}, {L}, 1, 1")
    e(f"v_and_b32 {vr(t4)}, 1, {L}")
    e(f"s_lshl_b32 {sr(S_T0)}, {sr(S_B)}, 1")
    e(f"v_add_u32 {vr(t3)}, {sr(S_T0)}, {vr(t3)}")
    e(f"v_lshlrev_b32 {vr(t5)}, 1, {vr(t0)}")
    e(f"v_xor_b32 {vr(t3)}, {vr(t3)}, {vr(t5)}")
    e(f"v_lshlrev_b32 {vr(t3)}, 4, {vr(t3)}")
    e(f"v_lshl_add_u32 {vr(t3)}, {vr(t4)}, 3, {vr(t3)}")
    e(f"v_lshl_add_u32 {vr(t3)}, {vr(t2)}, 6, {vr(t3)}")
    e(f"v_mul_u32_u24 {vr(t1)}, 1536, {vr(t1)}")
    e(f"v_mul_u32_u24 {vr(t0)}, 12288, {vr(t0)}")
    e(f"v_add3_u32 {vr(t3)}, {vr(t3)}, {vr(t1)}, {vr(t0)}")
    e(f"v_add_u32 {vr(t3)}, 16384, {vr(t3)}")
    e(f"s_mul_i32 {sr(S_T1)}, {sr(S_A)}, 3072")
    for i in range(3):
        e(f"s_cmp_eq_u32 {sr(S_A)}, 0")
        e(f"s_cselect_b32 {sr(S_T0)}, {i*256}, {(2-i)*256}")
        e(f"s_add_u32 {sr(S_T2)}, {sr(S_T0)}, {sr(S_T1)}")
        e(f"v_add_u32 {vr(V_WR+i)}, {sr(S_T2)}, {vr(t3)}")
        e(f"s_sub_u32 {sr(S_T2)}, {sr(S_T0)}, {sr(S_T1)}")
        e(f"v_add_u32 {vr(V_WR+3+i)}, {sr(S_T2)}, {vr(t3)}")
    for ks in range(4): e(f"v_add_u32 {vr(V_XR2+ks)}, {2*STAGE}, {vr(V_XR+ks)}")
    for i in range(6): e(f"v_add_u32 {vr(V_WR2+i)}, {2*STAGE}, {vr(V_WR+i)}")
    loader_setup(S_WAVE, 94, 96, S_X0, S_X1)
    for r in range(96): e(f"v_mov_b32 {vr(ACC+r)}, 0")
    for r in range(12): e(f"v_mov_b32 {vr(80+r)}, 0")
    e(f"v_and_b32 {vr(t0)}, 15, {L}")
    e(f"v_bfe_u32 {vr(t1)}, {L}, 4, 1")
    e(f"v_cmp_eq_u32 vcc, {vr(t0)}, {vr(t1)}")
    e(f"v_mov_b32 {vr(t2)}, 0x3f803f80")
    e("s_nop 0")
    e(f"v_cndmask_b32 {vr(76)}, 0, {vr(t2)}, vcc")
    for r in range(1, 4): e(f"v_mov_b32 {vr(76+r)}, {vr(76)}")
    e("s_waitcnt lgkmcnt(0)")
    srd(SRD_Q, 0, 2 << 20); srd(SRD_WD, 9, WBYTES); srd(SRD_OUT, 10, 2 << 20); srd(SRD_WS, 12, 0x10000000)
    V_TX, V_TW, V_DUM = 100, 101, 92
    BAD = 0x7fffff00
    e(f"s_and_b32 {sr(S_T0)}, {sr(S_CP)}, 3")
    e(f"s_lshl_b32 {sr(S_T0)}, {sr(S_T0)}, 5")
    e(f"s_lshl_b32 {sr(S_T1)}, {sr(S_RB)}, 7")
    e(f"s_add_u32 {sr(S_T0)}, {sr(S_T0)}, {sr(S_T1)}")
    e(f"v_and_b32 {vr(t1)}, 31, {L}")
    e(f"v_add_u32 {vr(t1)}, {sr(S_T0)}, {vr(t1)}")
    e(f"v_lshlrev_b32 {vr(t1)}, 10, {vr(t1)}")
    e(f"v_lshrrev_b32 {vr(t0)}, 5, {L}")
    e(f"v_lshl_add_u32 {vr(V_TX)}, {vr(t0)}, 7, {vr(t1)}")
    e(f"v_cmp_gt_u32 vcc, 32, {L}")
    e(f"v_mov_b32 {vr(t2)}, {BAD}")
    e("s_nop 0")
    e(f"v_cndmask_b32 {vr(V_TX+2)}, {vr(t2)}, {vr(V_TX)}, vcc")
    e(f"s_and_b32 {sr(S_T0)}, {sr(S_RB)}, 7")
    e(f"s_lshl_b32 {sr(S_T0)}, {sr(S_T0)}, 3")
    e(f"v_lshrrev_b32 {vr(t0)}, 4, {L}")
    e(f"v_lshlrev_b32 {vr(t3)}, 6, {vr(t0)}")
    e(f"v_bfe_u32 {vr(t1)}, {L}, 1, 3")
    e(f"v_add3_u32 {vr(t3)}, {vr(t3)}, {vr(t1)}, {sr(S_T0)}")
    e(f"s_movk_i32 {sr(S_T1)}, {WROW}")
    e(f"v_mul_lo_u32 {vr(t1)}, {vr(t3)}, {sr(S_T1)}")
    e(f"v_and_b32 {vr(t2)}, 1, {L}")
    e(f"v_lshl_add_u32 {vr(t1)}, {vr(t2)}, 7, {vr(t1)}")
    e(f"s_lshl_b32 {sr(S_T1)}, {sr(S_F0)}, 1")
    e(f"v_add_u32 {vr(V_TW)}, {sr(S_T1)}, {vr(t1)}")
    e(f"v_mov_b32 {vr(t2)}, {BAD}")
    e(f"v_cmp_gt_u32 vcc, 48, {L}")
    e("s_nop 0")
    e(f"v_cndmask_b32 {vr(V_TW+2)}, {vr(t2)}, {vr(V_TW)}, vcc")
    e(f"v_cmp_gt_u32 vcc, 16, {L}")
    e("s_nop 1")
    e(f"v_cndmask_b32 {vr(V_TW+3)}, {vr(t2)}, {vr(V_TW)}, vcc")
    e(f"s_cmp_eq_u32 {sr(S_WAVE)}, 1")
    e(f"s_cselect_b32 {sr(SRD_K)}, {sr(P+14)}, {sr(P+16)}")
    e(f"s_cselect_b32 {sr(SRD_K+1)}, {sr(P+15)}, {sr(P+17)}")
    e(f"s_mov_b32 {sr(SRD_K+2)}, {WBYTES}")
    e(f"s_mov_b32 {sr(SRD_K+3)}, 0x20000")
    NPT = opts.get("npt", 3)
    def touch(stage_lo, nst):
        l1 = A.newlabel("TC"); l2 = A.newlabel("TC")
        e(f"s_cmp_eq_u32 {sr(S_WAVE)}, 0"); e(f"s_cbranch_scc0 {l1}")
        if nst == 1:
            e(f"s_movk_i32 {sr(S_T0)}, {stage_lo*128}")
            e(f"buffer_load_dword {vr(V_DUM)}, {vr(V_TX+2)}, {sr(SRD_Q,4)}, {sr(S_T0)} offen")
        else:
            e(f"s_movk_i32 {sr(S_T0)}, {stage_lo*128}")
            e(f"buffer_load_dword {vr(V_DUM)}, {vr(V_TX)}, {sr(SRD_Q,4)}, {sr(S_T0)} offen")
            e(f"s_movk_i32 {sr(S_T0)}, {(stage_lo+2)*128}")
            e(f"buffer_load_dword {vr(V_DUM)}, {vr(V_TX+2)}, {sr(SRD_Q,4)}, {sr(S_T0)} offen")
        e(f"s_branch {l2}")
        A.label(l1)
        e(f"s_mov_b32 {sr(S_T0)}, {stage_lo*64*WROW}")
        e(f"s_cmp_eq_u32 {sr(S_WAVE)}, 3")
        e(f"s_cselect_b32 {sr(S_T0)}, 0x40000000, {sr(S_T0)}")
        e(f"buffer_load_dword {vr(V_DUM)}, {vr(V_TW+3 if nst == 1 else V_TW+2)}, {sr(SRD_K,4)}, {sr(S_T0)} offen")
        A.label(l2)
    touch(1, 3)
    if opts.get("tfirst", 1): e("s_barrier")
    srd_w_select(S_WAVE)
    dma_stage_g(1, 94, 96, S_X0, S_X1, S_X2, S_X3)
    TOUCH2 = []
    stamp(0)
    def reads(stage, ks, st):
        b = FS[st]; out = []
        slot = stage % 3
        xr, wr, o = (V_XR, V_WR, slot*STAGE) if slot < 2 else (V_XR2, V_WR2, 0)
        out.append(f"ds_read_b128 {vr(b,4)}, {vr(xr+ks)} offset:{o}")
        wa = wr + (3 if ks & 1 else 0)
        for h in range(2): out.append(f"ds_read_b64_tr_b16 {vr(b+8+2*h,2)}, {vr(wa)} offset:{o+ks*3072+h*768}")
        out.append(f"ds_read_b128 {vr(b+4,4)}, {vr(xr+ks)} offset:{o+4096}")
        for i in range(1, 3):
            for h in range(2): out.append(f"ds_read_b64_tr_b16 {vr(b+8+4*i+2*h,2)}, {vr(wa+i)} offset:{o+ks*3072+h*768}")
        return out
    V_SEL = 76; V_CSA = 80
    def kstep(ks, st, nxt, job=()):
        b = FS[st]; mf = []
        for i in range(3):
            for tt in range(2):
                a = ACC + 16*(2*i+tt)
                mf.append((f"v_mfma_f32_32x32x16_bf16 {vr(a,16)}, {vr(b+8+4*i,4)}, {vr(b+4*tt,4)}, {vr(a,16)}", 4))
            if ks % 2 == 0 and not opts.get("nocs"):
                mf.append((f"v_mfma_f32_16x16x32_bf16 {vr(V_CSA+4*i,4)}, {vr(V_SEL,4)}, {vr(b+8+4*i,4)}, {vr(V_CSA+4*i,4)}", 2))
        fill = list(nxt) + list(job)
        cap = sum(c for _, c in mf)
        k = 0; done = 0
        for m, c in mf:
            e(m)
            done += c
            upto = (len(fill) * done + cap - 1) // cap
            for x in fill[k:upto]: e(x)
            k = max(k, upto)
    job_at = {}
    e("s_barrier")
    stamp(1)
    for x in reads(0, 0, 0): e(x)
    for it in range(8):
        for ks in range(4):
            g = 4*it + ks
            if ks == 3 and it < 7:
                e("s_waitcnt vmcnt(1) lgkmcnt(0)" if it == 0 else "s_waitcnt lgkmcnt(0)")
                if opts.get("barstamp"): stamp(24 + it)
                e("s_barrier")
                if opts.get("barstamp"): stamp(32 + it)
            else:
                e("s_waitcnt lgkmcnt(0)")
            if ks == 1 and it + 4 <= 7: touch(it + 4, 1)
            if ks < 3: nxt = reads(it, ks + 1, (g + 1) & 1)
            elif it < 7: nxt = reads(it + 1, 0, (g + 1) & 1)
            else: nxt = []
            kstep(ks, g & 1, nxt, job_at.get(g, []))
        if opts.get("itstamp"): stamp(16 + it)
    stamp(2)
    e("s_nop 7")
    e(f"s_lshl_b32 {sr(S_T0)}, {sr(S_B)}, 1")
    e(f"s_add_u32 {sr(S_T0)}, {sr(S_T0)}, {sr(S_A)}")
    e(f"s_mul_i32 {sr(S_T0)}, {sr(S_T0)}, 384")
    e(f"s_add_u32 {sr(S_T0)}, {sr(S_T0)}, {L_CS}")
    e(f"v_lshlrev_b32 {vr(t0)}, 2, {L}")
    e(f"v_add_u32 {vr(t0)}, {sr(S_T0)}, {vr(t0)}")
    e(f"s_mov_b64 {sr(S_EX,2)}, exec")
    e("s_mov_b64 exec, 0xffff")
    for i in range(3):
        e(f"s_cmp_eq_u32 {sr(S_A)}, 0")
        e(f"s_cselect_b32 {sr(S_T1)}, {i*128}, {(2-i)*128}")
        e(f"v_add_u32 {vr(t1)}, {sr(S_T1)}, {vr(t0)}")
        e(f"ds_write_b32 {vr(t1)}, {vr(80+4*i)}")
        e(f"ds_write_b32 {vr(t1)}, {vr(80+4*i+1)} offset:64")
    e(f"s_mov_b64 exec, {sr(S_EX,2)}")
    e("s_waitcnt lgkmcnt(0)")
    e("s_barrier")
    stamp(3)
    if opts.get("g1only"):
        stamp_flush()
        e("s_endpgm")
    e("s_setprio 2")
    e(f"v_mov_b32 {vr(t0)}, {L_FLAG+32}")
    e(f"ds_read_b32 {vr(t1)}, {vr(t0)}")
    ST = 84
    e(f"v_and_b32 {vr(t2)}, 31, {L}")
    e(f"v_lshlrev_b32 {vr(t2)}, 3, {vr(t2)}")
    e(f"s_lshl_b32 {sr(S_T0)}, {sr(S_A)}, 9")
    e(f"s_add_u32 {sr(S_T0)}, {sr(S_T0)}, {L_STAT}")
    e(f"v_add_u32 {vr(t2)}, {sr(S_T0)}, {vr(t2)}")
    e(f"ds_read_b64 {vr(ST,2)}, {vr(t2)}")
    e(f"ds_read_b64 {vr(ST+2,2)}, {vr(t2)} offset:256")
    CGS = [16, 32, 48]; CG2 = [64, 96, 112]
    e(f"v_lshrrev_b32 {vr(t5)}, 5, {L}")
    e(f"v_lshlrev_b32 {vr(t5)}, 4, {vr(t5)}")
    e(f"s_mul_i32 {sr(S_T0)}, {sr(S_B)}, 768")
    e(f"s_add_u32 {sr(S_T0)}, {sr(S_T0)}, {L_CS}")
    e(f"v_add_u32 {vr(t5)}, {sr(S_T0)}, {vr(t5)}")
    for i in range(3):
        e(f"s_cmp_eq_u32 {sr(S_A)}, 0")
        e(f"s_cselect_b32 {sr(S_T1)}, {i*128}, {(2-i)*128}")
        e(f"v_add_u32 {vr(t0)}, {sr(S_T1)}, {vr(t5)}")
        for rp in range(4): e(f"ds_read_b128 {vr(CGS[i]+4*rp,4)}, {vr(t0)} offset:{32*rp}")
        for rp in range(4): e(f"ds_read_b128 {vr(CG2[i]+4*rp,4)}, {vr(t0)} offset:{384+32*rp}")
    e("s_waitcnt lgkmcnt(0)")
    e(f"v_readfirstlane_b32 {sr(S_NONCE)}, {vr(t1)}")
    C1 = -2.0 * 0.7978845608028654 * 0.044715 * 1.4426950408889634
    C0 = -2.0 * 0.7978845608028654 * 1.4426950408889634
    NMp, K1p, K0p, IRp = [144, 146], [148, 150], [152, 154], [156, 158]
    e(f"s_mov_b32 {sr(S_T4)}, {f2u(C1):#x}")
    e(f"s_mov_b32 {sr(S_T5)}, {f2u(C0):#x}")
    for tt in range(2):
        m, r = ST + 2*tt, ST + 2*tt + 1
        e(f"v_sub_f32 {vr(NMp[tt])}, 0, {vr(m)}")
        e(f"v_mul_f32 {vr(K0p[tt])}, {sr(S_T5)}, {vr(r)}")
        e(f"v_mul_f32 {vr(t3)}, {vr(r)}, {vr(r)}")
        e(f"v_mul_f32 {vr(t4)}, {vr(t3)}, {vr(r)}")
        e(f"v_mul_f32 {vr(K1p[tt])}, {sr(S_T4)}, {vr(t4)}")
        e(f"v_rcp_f32 {vr(IRp[tt])}, {vr(t3)}")
        e("s_nop 1")
        for rr in (NMp, K0p, K1p, IRp): e(f"v_mov_b32 {vr(rr[tt]+1)}, {vr(rr[tt])}")
    for i in range(3):
        for k in range(0, 16, 2): e(f"v_pk_add_f32 {vr(CGS[i]+k,2)}, {vr(CGS[i]+k,2)}, {vr(CG2[i]+k,2)}")
    TT = 128; HP = [136, 140]
    e(f"v_lshlrev_b32 {vr(t4)}, 4, {L}")
    e(f"s_lshl_b32 {sr(S_T1)}, {sr(S_RB)}, 2")
    e(f"s_lshl_b32 {sr(S_T2)}, {sr(S_A)}, 1")
    e(f"s_add_u32 {sr(S_T1)}, {sr(S_T1)}, {sr(S_T2)}")
    e(f"s_mul_i32 {sr(S_T1)}, {sr(S_T1)}, 86")
    e(f"s_lshr_b32 {sr(S_T2)}, {sr(S_F0)}, 4")
    e(f"s_add_u32 {sr(S_T1)}, {sr(S_T1)}, {sr(S_T2)}")
    e(f"s_add_u32 {sr(S_T1)}, {sr(S_T1)}, {sr(S_B)}")
    e(f"s_lshl_b32 {sr(S_T1)}, {sr(S_T1)}, 10")
    e(f"s_add_u32 {sr(S_G2)}, {sr(S_T1)}, {WS_HF}")
    for i in range(3):
        lsk = A.newlabel("EP")
        if i == 1: e(f"s_mov_b32 {sr(S_T0)}, 1")
        else:
            e(f"s_cmp_eq_u32 {sr(S_A)}, 0")
            e(f"s_cselect_b32 {sr(S_T0)}, {i}, {2-i}")
        e(f"s_cmp_ge_u32 {sr(S_T0)}, {sr(S_N32)}")
        e(f"s_cbranch_scc1 {lsk}")
        e(f"s_lshl_b32 {sr(S_T0)}, {sr(S_T0)}, 11")
        e(f"s_add_u32 {sr(S_T1)}, {sr(S_G2)}, {sr(S_T0)}")
        e(f"s_add_u32 {sr(S_T2)}, {sr(S_T1)}, {86*1024}")
        CG = CGS[i]
        for tt in range(2):
            a = ACC + 16*(2*i+tt)
            NM, K1, K0, IR = NMp[tt], K1p[tt], K0p[tt], IRp[tt]
            G = [a+2*k for k in range(4)]; U = [a+8+2*k for k in range(4)]
            cg = [CG+2*k for k in range(4)]; cu = [CG+8+2*k for k in range(4)]
            T = [TT+2*k for k in range(4)]
            for k in range(4): e(f"v_pk_fma_f32 {vr(G[k],2)}, {vr(NM,2)}, {vr(cg[k],2)}, {vr(G[k],2)}")
            for k in range(4): e(f"v_pk_mul_f32 {vr(T[k],2)}, {vr(G[k],2)}, {vr(G[k],2)}")
            for k in range(4): e(f"v_pk_fma_f32 {vr(T[k],2)}, {vr(T[k],2)}, {vr(K1,2)}, {vr(K0,2)}")
            for k in range(4): e(f"v_pk_mul_f32 {vr(T[k],2)}, {vr(T[k],2)}, {vr(G[k],2)}")
            for k in range(4):
                e(f"v_exp_f32 {vr(TT+2*k)}, {vr(TT+2*k)}")
                e(f"v_exp_f32 {vr(TT+2*k+1)}, {vr(TT+2*k+1)}")
                e(f"v_pk_fma_f32 {vr(U[k],2)}, {vr(NM,2)}, {vr(cu[k],2)}, {vr(U[k],2)}")
            for k in range(4): e(f"v_pk_fma_f32 {vr(T[k],2)}, {vr(T[k],2)}, {vr(IR,2)}, {vr(IR,2)}")
            for k in range(4):
                e(f"v_rcp_f32 {vr(TT+2*k)}, {vr(TT+2*k)}")
                e(f"v_rcp_f32 {vr(TT+2*k+1)}, {vr(TT+2*k+1)}")
                e(f"v_pk_mul_f32 {vr(G[k],2)}, {vr(G[k],2)}, {vr(U[k],2)}")
            for k in range(4): e(f"v_pk_mul_f32 {vr(G[k],2)}, {vr(G[k],2)}, {vr(T[k],2)}")
            for k in range(4): e(f"v_cvt_pk_bf16_f32 {vr(HP[tt]+k)}, {vr(G[k])}, {vr(G[k]+1)}")
            A.vmem(f"buffer_store_dwordx4 {vr(HP[tt],4)}, {vr(t4)}, {sr(SRD_WS,4)}, {sr(S_T1 if tt == 0 else S_T2)} offen sc0 sc1", "hst")
        A.label(lsk)
    stamp(4)
    e(f"s_lshl_b32 {sr(S_T0)}, {sr(S_WAVE)}, 2")
    e(f"s_add_u32 {sr(S_T0)}, {sr(S_T0)}, {L_FLAG+48}")
    e(f"v_mov_b32 {vr(t0)}, {sr(S_T0)}")
    e(f"v_mov_b32 {vr(t1)}, 1")
    e(f"ds_write_b32 {vr(t0)}, {vr(t1)}")
    GACC = 160; PH = opts.get('ph', 8); GH = 16; GW = 80
    GACC = 176
    GW = 80
    GA = [168, 240]
    V_AR = 248
    V_HL, V_DO = 254, 255
    S_KU0, S_KUN, S_RA, S_RBB, S_RC, S_H0 = S_G0, S_G1, S_G2, S_G3, S_G4, S_G5
    S_H1, S_OOB, S_DSO, S_ROT, S_HB = S_C0, S_C1, S_X0, S_X1, S_X2
    e(f"s_mul_i32 {sr(S_ROT)}, {sr(S_J)}, {opts.get('rot', 3)}")
    ku_start(S_KU0, S_WAVE)
    e(f"s_cmp_lt_u32 {sr(S_WAVE)}, 2")
    e(f"s_cselect_b32 {sr(S_KUN)}, 22, 21")
    ring_bases(S_WAVE, S_RA, S_RBB, S_RC)
    wd_voffset(V_DO)
    e(f"v_lshrrev_b32 {vr(t0)}, 5, {L}")
    e(f"v_bfe_u32 {vr(t1)}, {L}, 2, 2")
    e(f"v_lshl_add_u32 {vr(t0)}, {vr(t0)}, 2, {vr(t1)}")
    e(f"v_lshlrev_b32 {vr(t0)}, 7, {vr(t0)}")
    e(f"v_bfe_u32 {vr(t2)}, {L}, 4, 1")
    e(f"v_bfe_u32 {vr(t3)}, {L}, 1, 1")
    e(f"v_lshl_add_u32 {vr(t2)}, {vr(t2)}, 1, {vr(t3)}")
    e(f"v_lshlrev_b32 {vr(t2)}, 4, {vr(t2)}")
    e(f"v_and_b32 {vr(t3)}, 1, {L}")
    e(f"v_lshl_add_u32 {vr(t2)}, {vr(t3)}, 3, {vr(t2)}")
    e(f"v_add_u32 {vr(t0)}, {vr(t0)}, {vr(t2)}")
    e(f"v_bfe_u32 {vr(t1)}, {L}, 3, 1")
    e(f"v_lshlrev_b32 {vr(t1)}, 6, {vr(t1)}")
    e(f"v_add_u32 {vr(t2)}, {vr(t0)}, {vr(t1)}")
    e(f"v_xor_b32 {vr(t1)}, 64, {vr(t1)}")
    e(f"v_add_u32 {vr(t3)}, {vr(t0)}, {vr(t1)}")
    for bi, sb in enumerate((S_RA, S_RBB, S_RC)):
        e(f"v_add_u32 {vr(V_AR+2*bi)}, {sr(sb)}, {vr(t2)}")
        e(f"v_add_u32 {vr(V_AR+2*bi+1)}, {sr(sb)}, {vr(t3)}")
    e(f"v_lshlrev_b32 {vr(V_HL)}, 4, {L}")
    e(f"s_mov_b32 {sr(S_OOB)}, 0x20000000")
    e("s_waitcnt vmcnt(0)")
    e(f"s_lshl_b32 {sr(S_T0)}, {sr(S_RB)}, 8")
    e(f"s_lshl_b32 {sr(S_T1)}, {sr(S_CP)}, 4")
    e(f"s_lshl_b32 {sr(S_T2)}, {sr(S_WAVE)}, 2")
    e(f"s_add_u32 {sr(S_T0)}, {sr(S_T0)}, {sr(S_T1)}")
    e(f"s_add_u32 {sr(S_T0)}, {sr(S_T0)}, {sr(S_T2)}")
    e(f"s_add_u32 {sr(S_T0)}, {sr(S_T0)}, {WS_FL+FL_H}")
    flag_set(S_T0, t0)
    stamp(5)
    e(f"s_lshl_b32 {sr(S_T0)}, {sr(S_WAVE)}, 2")
    e(f"s_add_u32 {sr(S_T0)}, {sr(S_T0)}, {L_FLAG+16}")
    lds_spin(S_T0, t0, t1)
    def afrag_reads(n, dst):
        bi, off = ring_off(n); out = []
        for dt in range(2):
            for h in range(2):
                out.append(f"ds_read_b64_tr_b16 {vr(dst+4*dt+2*h,2)}, {vr(V_AR+2*bi+dt)} offset:{off+1024*h}")
        return out
    for n in range(NR):
        for x in afrag_reads(n, GW+8*n): e(x)
        if n % 3 == 2: e("s_waitcnt lgkmcnt(4)")
    e("s_waitcnt lgkmcnt(0)")
    for n in range(NR):
        bi, off = ring_off(n)
        sb = (S_RA, S_RBB, S_RC)[bi]
        wd_soff(NR + n, S_DSO, S_ROT, S_KUN, S_KU0, S_OOB)
        for a in range(2):
            e(f"s_add_u32 m0, {sr(sb)}, {off + 1024*a}")
            if a == 1: e(f"s_add_u32 {sr(S_DSO)}, {sr(S_DSO)}, 8192")
            else: e("s_nop 0")
            A.vmem(f"buffer_load_dwordx4 {vr(V_DO)}, {sr(SRD_WD,4)}, {sr(S_DSO)} offen lds", "WR2")
    for r in range(64): e(f"v_mov_b32 {vr(GACC+r)}, 0")
    stamp(6)
    e(f"s_lshr_b32 {sr(S_T0)}, {sr(S_I2)}, 1")
    e(f"s_lshl_b32 {sr(S_T0)}, {sr(S_T0)}, 8")
    e(f"s_add_u32 {sr(S_T0)}, {sr(S_T0)}, {WS_FL+FL_H}")
    lh1 = A.newlabel("HP"); lh2 = A.newlabel("HP")
    e(f"s_cmp_lg_u32 {sr(S_WAVE)}, 0")
    e(f"s_cbranch_scc1 {lh1}")
    flag_wait_blocking(t1, 1, S_T0, sleep=opts.get('hsleep', 2))
    e(f"v_mov_b32 {vr(t0)}, {L_FLAG+72}")
    e(f"v_mov_b32 {vr(t1)}, 1")
    e(f"ds_write_b32 {vr(t0)}, {vr(t1)}")
    e(f"s_branch {lh2}")
    A.label(lh1)
    e(f"s_mov_b32 {sr(S_T0)}, {L_FLAG+72}")
    lds_spin(S_T0, t1, t0, sleep=1)
    e("s_waitcnt vmcnt(0)")
    A.label(lh2)
    stamp(7)
    e(f"s_lshl_b32 {sr(S_T0)}, {sr(S_I2)}, 1")
    e(f"s_mul_i32 {sr(S_T0)}, {sr(S_T0)}, 86")
    e(f"s_add_u32 {sr(S_T0)}, {sr(S_T0)}, {sr(S_KU0)}")
    e(f"s_lshl_b32 {sr(S_T0)}, {sr(S_T0)}, 10")
    e(f"s_add_u32 {sr(S_HB)}, {sr(S_T0)}, {WS_HF}")
    A.vm = []
    def hload(n):
        hb = GH + 8*(n % PH)
        unit_at(n, S_H0, S_ROT, S_KUN)
        e(f"s_cselect_b32 {sr(S_T5)}, 1, 0")
        e(f"s_lshl_b32 {sr(S_H0)}, {sr(S_H0)}, 10")
        e(f"s_add_u32 {sr(S_H0)}, {sr(S_H0)}, {sr(S_HB)}")
        e(f"s_cmp_eq_u32 {sr(S_T5)}, 1")
        e(f"s_cselect_b32 {sr(S_H0)}, {sr(S_H0)}, {sr(S_OOB)}")
        e(f"s_add_u32 {sr(S_H1)}, {sr(S_H0)}, {86*1024}")
        A.vmem(f"buffer_load_dwordx4 {vr(hb,4)}, {vr(V_HL)}, {sr(SRD_WS,4)}, {sr(S_H0)} offen{HSC}", f"H{n}")
        A.vmem(f"buffer_load_dwordx4 {vr(hb+4,4)}, {vr(V_HL)}, {sr(SRD_WS,4)}, {sr(S_H1)} offen{HSC}", f"H{n}")
    for n in range(PH): hload(n)
    for n in range(22):
        hb = GH + 8*(n % PH)
        if n < NR: aw = GW + 8*n
        else: aw = GA[n & 1]
        if n + 1 >= NR and n + 1 < 22:
            for x in afrag_reads(n + 1 - NR, GA[(n+1) & 1]): e(x)
        A.wait_vm(f"H{n}")
        if n >= NR: e("s_waitcnt lgkmcnt(4)" if n + 1 < 22 else "s_waitcnt lgkmcnt(0)")
        e(f"v_mfma_f32_32x32x16_bf16 {vr(GACC,16)}, {vr(aw,4)}, {vr(hb,4)}, {vr(GACC,16)}")
        e(f"v_mfma_f32_32x32x16_bf16 {vr(GACC+16,16)}, {vr(aw,4)}, {vr(hb+4,4)}, {vr(GACC+16,16)}")
        e(f"v_mfma_f32_32x32x16_bf16 {vr(GACC+32,16)}, {vr(aw+4,4)}, {vr(hb,4)}, {vr(GACC+32,16)}")
        e(f"v_mfma_f32_32x32x16_bf16 {vr(GACC+48,16)}, {vr(aw+4,4)}, {vr(hb+4,4)}, {vr(GACC+48,16)}")
        if n + PH < 22: hload(n + PH)
        if n == opts.get("yun", 12):
            e(f"v_mov_b32 {vr(t0)}, {L_FLAG+64}")
            e(f"v_mov_b32 {vr(t1)}, 1")
            e(f"ds_write_b32 {vr(t0)}, {vr(t1)}")
        if opts.get("g2stamp") and n % 2 == 1: stamp(32 + n // 2)
    stamp(8)
    e("s_nop 7")
    e(f"v_and_b32 {vr(t0)}, 31, {L}")
    e(f"v_lshrrev_b32 {vr(t1)}, 5, {L}")
    e(f"v_mul_u32_u24 {vr(t0)}, 272, {vr(t0)}")
    e(f"v_lshl_add_u32 {vr(t0)}, {vr(t1)}, 4, {vr(t0)}")
    e(f"v_add_u32 {vr(t1)}, {sr(S_RBB)}, {vr(t0)}")
    e(f"v_add_u32 {vr(t0)}, {sr(S_RA)}, {vr(t0)}")
    for dt in range(2):
        for tt in range(2):
            for rp in range(4):
                a = GACC + 16*(2*dt+tt) + 4*rp
                e(f"ds_write_b128 {vr(t0 if tt == 0 else t1)}, {vr(a,4)} offset:{dt*128 + rp*32}")
    e("s_branch L_FINAL")

    A.label("L_HELPER")
    A.vm = ["code"]
    if opts.get("g1only"):
        for _ in range(10): e("s_barrier")
        e("s_endpgm")
    S_LW = S_A
    e(f"s_sub_u32 {sr(S_LW)}, {sr(S_WAVE)}, 4")
    V_XO, V_WO, V_L16, V_TO, V_DO2 = 16, 18, 21, 22, 23
    S_XSO, S_WSO, S_M0X, S_M0W = S_G0, S_G1, S_G3, S_G4
    BAD = 0x7fffff00
    e(f"v_lshlrev_b32 {vr(V_L16)}, 4, {L}")
    loader_setup(S_LW, V_XO, V_WO, S_M0X, S_M0W)
    S_ROW = S_G5
    e(f"s_lshl_b32 {sr(S_ROW)}, {sr(S_RB)}, 7")
    e(f"s_lshl_b32 {sr(S_T0)}, {sr(S_CP)}, 3")
    e(f"s_add_u32 {sr(S_ROW)}, {sr(S_ROW)}, {sr(S_T0)}")
    e(f"s_lshl_b32 {sr(S_T0)}, {sr(S_LW)}, 1")
    e(f"s_add_u32 {sr(S_ROW)}, {sr(S_ROW)}, {sr(S_T0)}")
    e(f"v_lshrrev_b32 {vr(t0)}, 3, {L}")
    e(f"v_and_b32 {vr(t1)}, 7, {L}")
    e(f"v_lshrrev_b32 {vr(t2)}, 4, {L}")
    e(f"s_and_b32 {sr(S_T1)}, {sr(S_LW)}, 1")
    e(f"s_lshl_b32 {sr(S_T1)}, {sr(S_T1)}, 2")
    e(f"v_add_u32 {vr(t2)}, {sr(S_T1)}, {vr(t2)}")
    e(f"v_xor_b32 {vr(t1)}, {vr(t1)}, {vr(t2)}")
    e(f"v_lshlrev_b32 {vr(t1)}, 4, {vr(t1)}")
    e(f"v_lshl_add_u32 {vr(t1)}, {vr(t0)}, 10, {vr(t1)}")
    e(f"s_lshl_b32 {sr(S_T1)}, {sr(S_J)}, 7")
    e(f"v_add_u32 {vr(V_TO)}, {sr(S_T1)}, {vr(t1)}")
    wd_voffset(V_DO2)
    e("s_waitcnt lgkmcnt(0)")
    srd(SRD_Q, 0, 2 << 20)
    srd_w_select(S_LW)
    stamp(0)
    def dma_stage(s): dma_stage_g(s, V_XO, V_WO, S_M0X, S_M0W, S_XSO, S_WSO)
    SX = 24; V_NL = 33; V_SL = 116; V_SLA = 34; V_FL = 114; V_DUM = 32
    e(f"s_lshl_b32 {sr(S_T0)}, {sr(S_ROW)}, 10")
    A.vmem(f"buffer_load_dwordx4 {vr(SX,4)}, {vr(V_L16)}, {sr(SRD_Q,4)}, {sr(S_T0)} offen", "SX")
    A.vmem(f"buffer_load_dwordx4 {vr(SX+4,4)}, {vr(V_L16)}, {sr(SRD_Q,4)}, {sr(S_T0)} offen offset:1024", "SX")
    srd(SRD_DBG, 11, 256)
    lnn = A.newlabel("NN")
    e(f"s_cmp_lg_u32 {sr(S_WG)}, 0")
    e(f"s_cbranch_scc1 {lnn}")
    e(f"s_cmp_lg_u32 {sr(S_WAVE)}, 4")
    e(f"s_cbranch_scc1 {lnn}")
    e(f"s_memrealtime {sr(S_T0,2)}")
    e("s_waitcnt lgkmcnt(0)")
    e(f"s_or_b32 {sr(S_T0)}, {sr(S_T0)}, 1")
    e(f"v_mov_b32 {vr(t0)}, {sr(S_T0)}")
    e(f"buffer_store_dword {vr(t0)}, off, {sr(SRD_DBG,4)}, 0 sc0 sc1")
    A.label(lnn)
    if opts.get("tfirst", 1): e("s_barrier")
    dma_stage(0)
    if not opts.get("tfirst", 1): e("s_barrier")
    srd(SRD_K, 1, 2 << 20); srd(SRD_V, 2, 2 << 20)
    srd(SRD_WS, 12, 0x10000000); srd(SRD_WD, 9, WBYTES)
    def tiles():
        e(f"s_lshl_b32 {sr(S_T0)}, {sr(S_I2)}, 16")
        for srd_, base in ((SRD_K, L_KT), (SRD_V, L_VT)):
            for gi in range(2):
                e(f"s_add_u32 {sr(S_T1)}, {sr(S_LW)}, {4*gi}")
                e(f"s_lshl_b32 {sr(S_T2)}, {sr(S_T1)}, 13")
                e(f"s_add_u32 {sr(S_T2)}, {sr(S_T2)}, {sr(S_T0)}")
                e(f"s_lshl_b32 {sr(S_T1)}, {sr(S_T1)}, 10")
                e(f"s_add_u32 m0, {sr(S_T1)}, {base}")
                e("s_nop 0")
                A.vmem(f"buffer_load_dwordx4 {vr(V_TO)}, {sr(srd_,4)}, {sr(S_T2)} offen lds", "P")
    S_CIDX = S_C1
    HK = [88, 96]; HPB = 112
    def hk_loads():
        e(f"s_lshl_b32 {sr(S_T0)}, {sr(S_WG)}, 1")
        e(f"s_add_u32 {sr(S_T0)}, {sr(S_T0)}, {sr(S_CIDX)}")
        e(f"s_lshl_b32 {sr(S_T0)}, {sr(S_T0)}, 12")
        e(f"s_add_u32 {sr(SRD_SK)}, {sr(P+8)}, {sr(S_T0)}")
        e(f"s_addc_u32 {sr(SRD_SK+1)}, {sr(P+9)}, 0")
        e(f"s_mov_b32 {sr(SRD_SK+2)}, 4096")
        e(f"s_mov_b32 {sr(SRD_SK+3)}, 0x20000")
        e(f"s_and_b32 {sr(S_T1)}, {sr(S_LW)}, 1")
        e(f"s_lshl_b32 {sr(S_T1)}, {sr(S_T1)}, 11")
        for y in range(2):
            e(f"s_add_u32 {sr(S_T2)}, {sr(S_T1)}, {1024*y}")
            A.vmem(f"buffer_load_dwordx4 {vr(HK[y],4)}, {vr(V_L16)}, {sr(SRD_SK,4)}, {sr(S_T2)} offen", "HK")
            A.vmem(f"buffer_load_dwordx2 {vr(HK[y]+4,2)}, {vr(V_L16)}, {sr(SRD_SK,4)}, {sr(S_T2)} offen offset:16", "HK")
        e(f"v_cmp_eq_u32 vcc, 1, {L}")
        e(f"v_mov_b32 {vr(t5)}, 0x10000")
        e("s_nop 0")
        e(f"v_cndmask_b32 {vr(t5)}, {vr(t5)}, 0, vcc")
        A.vmem(f"buffer_load_dwordx2 {vr(HPB,2)}, {vr(t5)}, {sr(SRD_SK,4)}, 0 offen", "HK")
    def wd_touch():
        e(f"s_mul_i32 {sr(S_T0)}, {sr(S_WG)}, {43*128}")
        e(f"s_mul_i32 {sr(S_T1)}, {sr(S_LW)}, 11")
        e(f"v_add_u32 {vr(t4)}, {sr(S_T1)}, {L}")
        e(f"v_cmp_gt_u32 vcc, 11, {L}")
        e(f"v_lshlrev_b32 {vr(t4)}, 7, {vr(t4)}")
        e(f"v_add_u32 {vr(t4)}, {sr(S_T0)}, {vr(t4)}")
        e(f"v_mov_b32 {vr(t5)}, {BAD}")
        e(f"v_cndmask_b32 {vr(t4)}, {vr(t5)}, {vr(t4)}, vcc")
        A.vmem(f"buffer_load_dword {vr(V_DUM)}, {vr(t4)}, {sr(SRD_WD,4)}, 0 offen", "T2")
    e(f"s_lshr_b32 {sr(S_CIDX)}, {sr(S_LW)}, 1")
    PPOS = opts.get("ppos", -1)
    if PPOS < 0: tiles()
    A.vmem(f"buffer_load_dword {vr(V_NL)}, off, {sr(SRD_DBG,4)}, 0 sc1", "NL")
    e(f"v_lshlrev_b32 {vr(t0)}, 2, {L}")
    e(f"v_add_u32 {vr(t0)}, {L_FLAG}, {vr(t0)}")
    e(f"v_mov_b32 {vr(t1)}, 0")
    e(f"s_mov_b64 {sr(S_EX,2)}, exec")
    e("s_mov_b64 exec, 0xfffffff")
    e(f"ds_write_b32 {vr(t0)}, {vr(t1)}")
    e(f"s_mov_b64 exec, {sr(S_EX,2)}")
    A.wait_vm("SX")
    XU = 120; SA = 136
    for rr in range(2):
        for k in range(4):
            e(f"v_lshlrev_b32 {vr(XU+8*rr+2*k)}, 16, {vr(SX+4*rr+k)}")
            e(f"v_and_b32 {vr(XU+8*rr+2*k+1)}, 0xffff0000, {vr(SX+4*rr+k)}")
    def wave_reduce(regs):
        for sh in ("row_shr:1", "row_shr:2", "row_shr:4", "row_shr:8"):
            for r in regs: e(f"v_add_f32_dpp {vr(r)}, {vr(r)}, {vr(r)} {sh} row_mask:0xf bank_mask:0xf bound_ctrl:0")
            e("s_nop 0")
        for r in regs: e(f"v_add_f32_dpp {vr(r)}, {vr(r)}, {vr(r)} row_bcast:15 row_mask:0xa bank_mask:0xf")
        e("s_nop 0")
        for r in regs: e(f"v_add_f32_dpp {vr(r)}, {vr(r)}, {vr(r)} row_bcast:31 row_mask:0xc bank_mask:0xf")
        e("s_nop 1")
    for k in range(1, 8):
        for rr in range(2):
            b = XU + 8*rr
            if k == 1: e(f"v_add_f32 {vr(SA+rr)}, {vr(b)}, {vr(b+1)}")
            else: e(f"v_add_f32 {vr(SA+rr)}, {vr(SA+rr)}, {vr(b+k)}")
    e("s_nop 1")
    wave_reduce([SA, SA+1])
    e(f"v_readlane_b32 {sr(S_T0)}, {vr(SA)}, 63")
    e(f"v_readlane_b32 {sr(S_T1)}, {vr(SA+1)}, 63")
    e(f"v_mov_b32 {vr(SA+2)}, 0x3b000000")
    e("s_nop 0")
    e(f"v_mul_f32 {vr(SA+4)}, {sr(S_T0)}, {vr(SA+2)}")
    e(f"v_mul_f32 {vr(SA+5)}, {sr(S_T1)}, {vr(SA+2)}")
    for k in range(8):
        for rr in range(2): e(f"v_sub_f32 {vr(XU+8*rr+k)}, {vr(XU+8*rr+k)}, {vr(SA+4+rr)}")
    for k in range(8):
        for rr in range(2):
            b = XU + 8*rr
            if k == 0: e(f"v_mul_f32 {vr(SA+rr)}, {vr(b)}, {vr(b)}")
            else: e(f"v_fma_f32 {vr(SA+rr)}, {vr(b+k)}, {vr(b+k)}, {vr(SA+rr)}")
    e("s_nop 1")
    wave_reduce([SA, SA+1])
    e(f"v_readlane_b32 {sr(S_T0)}, {vr(SA)}, 63")
    e(f"v_readlane_b32 {sr(S_T1)}, {vr(SA+1)}, 63")
    e(f"v_cmp_eq_u32 vcc, 1, {L}")
    e("s_nop 0")
    e(f"v_mov_b32 {vr(SA)}, {sr(S_T0)}")
    e(f"v_mov_b32 {vr(SA+1)}, {sr(S_T1)}")
    e(f"v_cndmask_b32 {vr(SA)}, {vr(SA)}, {vr(SA+1)}, vcc")
    e(f"v_cndmask_b32 {vr(SA+4)}, {vr(SA+4)}, {vr(SA+5)}, vcc")
    e(f"v_mul_f32 {vr(SA)}, {vr(SA)}, {vr(SA+2)}")
    e(f"v_cvt_pk_bf16_f32 {vr(SA)}, {vr(SA)}, {vr(SA)}")
    e(f"v_lshlrev_b32 {vr(SA)}, 16, {vr(SA)}")
    e(f"v_add_f32 {vr(SA)}, 0x3727c5ac, {vr(SA)}")
    e(f"v_cvt_pk_bf16_f32 {vr(SA)}, {vr(SA)}, {vr(SA)}")
    e(f"v_lshlrev_b32 {vr(SA)}, 16, {vr(SA)}")
    e(f"v_sqrt_f32 {vr(SA)}, {vr(SA)}")
    e("s_nop 0")
    V_STP = 110
    e(f"v_cvt_pk_bf16_f32 {vr(V_STP)}, {vr(SA+4)}, {vr(SA)}")
    A.wait_vm("S0")
    e("s_waitcnt lgkmcnt(0)")
    e("s_barrier")
    stamp(1)
    def it_end(it, stages, waits=()):
        if opts.get("barstamp"): stamp(24 + it)
        if waits: A.wait_vm(*waits)
        e("s_waitcnt lgkmcnt(0)")
        if opts.get("barstamp"): stamp(32 + it)
        e("s_barrier")
        if opts.get("barstamp"): stamp(40 + it)
        for st_ in stages: st_()
        if opts.get("barstamp"): stamp(48 + it)
    def job_nonce_sts():
        lok = A.newlabel("NOK"); lre = A.newlabel("NRE")
        e(f"s_mov_b32 {sr(S_T3)}, 0x40000")
        A.label(lre)
        e(f"v_readfirstlane_b32 {sr(S_NONCE)}, {vr(V_NL)}")
        e("s_nop 3")
        e(f"s_cmp_lg_u32 {sr(S_NONCE)}, 0")
        e(f"s_cbranch_scc1 {lok}")
        e(f"s_sub_u32 {sr(S_T3)}, {sr(S_T3)}, 1")
        e(f"s_cmp_eq_u32 {sr(S_T3)}, 0")
        e(f"s_cbranch_scc1 {lok}")
        e("s_sleep 2")
        e(f"buffer_load_dword {vr(V_NL)}, off, {sr(SRD_DBG,4)}, 0 sc1")
        e("s_waitcnt vmcnt(0)")
        e(f"s_branch {lre}")
        A.label(lok)
        e(f"v_mov_b32 {vr(t0)}, {L_FLAG+32}")
        e(f"v_mov_b32 {vr(V_STP+1)}, {sr(S_NONCE)}")
        e(f"ds_write_b32 {vr(t0)}, {vr(V_STP+1)}")
        e(f"s_lshl_b32 {sr(S_T0)}, {sr(S_ROW)}, 3")
        e(f"s_add_u32 {sr(S_T0)}, {sr(S_T0)}, {WS_ST}")
        e(f"v_lshlrev_b32 {vr(t0)}, 3, {L}")
        e(f"s_mov_b64 {sr(S_EX,2)}, exec")
        e("s_mov_b64 exec, 3")
        A.vmem(f"buffer_store_dwordx2 {vr(V_STP,2)}, {vr(t0)}, {sr(SRD_WS,4)}, {sr(S_T0)} offen sc0 sc1", "STS")
        e(f"s_mov_b64 exec, {sr(S_EX,2)}")
    T = 128
    def job_tr_store():
        e(f"v_and_b32 {vr(t0)}, 3, {L}")
        e(f"v_bfe_u32 {vr(t1)}, {L}, 4, 1")
        e(f"v_lshl_add_u32 {vr(t0)}, {vr(t1)}, 2, {vr(t0)}")
        e(f"v_lshlrev_b32 {vr(t0)}, 3, {vr(t0)}")
        e(f"v_bfe_u32 {vr(t1)}, {L}, 2, 2")
        e(f"v_sub_u32 {vr(t0)}, {vr(t0)}, {vr(t1)}")
        e(f"v_add_u32 {vr(t0)}, 7, {vr(t0)}")
        e(f"v_lshrrev_b32 {vr(t3)}, 5, {L}")
        e(f"v_lshlrev_b32 {vr(t3)}, 3, {vr(t3)}")
        e(f"s_lshl_b32 {sr(S_T0)}, {sr(S_LW)}, 1")
        for h in range(2):
            if h == 1: e(f"v_subrev_u32 {vr(t0)}, 4, {vr(t0)}")
            e(f"v_bfe_u32 {vr(t1)}, {vr(t0)}, 1, 3")
            e(f"v_xor_b32 {vr(t1)}, {sr(S_T0)}, {vr(t1)}")
            e(f"v_lshlrev_b32 {vr(t1)}, 4, {vr(t1)}")
            e(f"v_lshl_add_u32 {vr(t1)}, {vr(t0)}, 7, {vr(t1)}")
            e(f"v_add_u32 {vr(t1)}, {vr(t1)}, {vr(t3)}")
            e(f"v_add_u32 {vr(t1)}, {L_KT}, {vr(t1)}")
            e(f"v_xor_b32 {vr(t2)}, 16, {vr(t1)}")
            for x, a in ((0, t1), (1, t2)):
                e(f"ds_read_b64_tr_b16 {vr(T+4*x+2*h,2)}, {vr(a)}")
                e(f"ds_read_b64_tr_b16 {vr(T+8+4*x+2*h,2)}, {vr(a)} offset:{L_VT-L_KT}")
        e(f"v_and_b32 {vr(t1)}, 3, {L}")
        e(f"v_lshrrev_b32 {vr(t2)}, 5, {L}")
        e(f"v_lshl_add_u32 {vr(t1)}, {vr(t2)}, 2, {vr(t1)}")
        e(f"v_lshlrev_b32 {vr(t1)}, 12, {vr(t1)}")
        e(f"v_bfe_u32 {vr(t2)}, {L}, 2, 3")
        e(f"v_lshlrev_b32 {vr(t2)}, 4, {vr(t2)}")
        e(f"v_sub_u32 {vr(t1)}, {vr(t1)}, {vr(t2)}")
        e(f"v_add_u32 {vr(t1)}, 4080, {vr(t1)}")
        e(f"s_lshl_b32 {sr(S_T0)}, {sr(S_J)}, 6")
        e(f"s_lshl_b32 {sr(S_T1)}, {sr(S_LW)}, 4")
        e(f"s_add_u32 {sr(S_T0)}, {sr(S_T0)}, {sr(S_T1)}")
        e(f"s_lshl_b32 {sr(S_T0)}, {sr(S_T0)}, 12")
        e(f"s_lshl_b32 {sr(S_T1)}, {sr(S_I2)}, 7")
        e(f"s_sub_u32 {sr(S_T0)}, {sr(S_T0)}, {sr(S_T1)}")
        e(f"v_add_u32 {vr(t1)}, {sr(S_T0)}, {vr(t1)}")
        e(f"v_add_u32 {vr(t2)}, {8*4096}, {vr(t1)}")
        e(f"s_mov_b32 {sr(S_T0)}, {WS_VT}")
        e("s_waitcnt lgkmcnt(0)")
        A.vmem(f"buffer_store_dwordx4 {vr(T,4)}, {vr(t1)}, {sr(SRD_WS,4)}, 0 offen sc0 sc1", "KVS")
        A.vmem(f"buffer_store_dwordx4 {vr(T+4,4)}, {vr(t2)}, {sr(SRD_WS,4)}, 0 offen sc0 sc1", "KVS")
        A.vmem(f"buffer_store_dwordx4 {vr(T+8,4)}, {vr(t1)}, {sr(SRD_WS,4)}, {sr(S_T0)} offen sc0 sc1", "KVS")
        A.vmem(f"buffer_store_dwordx4 {vr(T+12,4)}, {vr(t2)}, {sr(SRD_WS,4)}, {sr(S_T0)} offen sc0 sc1", "KVS")
    S_STO = S_X3
    def job_sl():
        e(f"s_lshl_b32 {sr(S_STO)}, {sr(S_RB)}, 7")
        e(f"s_lshl_b32 {sr(S_T1)}, {sr(S_LW)}, 5")
        e(f"s_add_u32 {sr(S_STO)}, {sr(S_STO)}, {sr(S_T1)}")
        e(f"s_lshl_b32 {sr(S_STO)}, {sr(S_STO)}, 3")
        e(f"s_add_u32 {sr(S_STO)}, {sr(S_STO)}, {WS_ST}")
        e(f"v_and_b32 {vr(V_SLA)}, 31, {L}")
        e(f"v_lshlrev_b32 {vr(V_SLA)}, 3, {vr(V_SLA)}")
        A.vmem(f"buffer_load_dwordx2 {vr(V_SL,2)}, {vr(V_SLA)}, {sr(SRD_WS,4)}, {sr(S_STO)} offen sc1", "SL")
    def job_kvf():
        A.wait_vm("KVS")
        e(f"s_lshl_b32 {sr(S_T0)}, {sr(S_J)}, 9")
        e(f"s_lshl_b32 {sr(S_T1)}, {sr(S_I2)}, 4")
        e(f"s_lshl_b32 {sr(S_T2)}, {sr(S_LW)}, 2")
        e(f"s_add_u32 {sr(S_T0)}, {sr(S_T0)}, {sr(S_T1)}")
        e(f"s_add_u32 {sr(S_T0)}, {sr(S_T0)}, {sr(S_T2)}")
        e(f"s_add_u32 {sr(S_T0)}, {sr(S_T0)}, {WS_FL+FL_KV}")
        flag_set(S_T0, t0)
    S_C, S_KVO, S_W, S_OKF = 62, 63, 64, 70
    def job_conv_scalars():
        e(f"s_lshl_b32 {sr(S_C)}, {sr(S_WG)}, 1")
        e(f"s_add_u32 {sr(S_C)}, {sr(S_C)}, {sr(S_CIDX)}")
        e(f"s_lshr_b32 {sr(S_KVO)}, {sr(S_C)}, 6")
        e(f"s_lshl_b32 {sr(S_KVO)}, {sr(S_KVO)}, 9")
        e(f"s_add_u32 {sr(S_KVO)}, {sr(S_KVO)}, {WS_FL+FL_KV}")
        e(f"s_lshl_b32 {sr(S_T0)}, {sr(S_C)}, 3")
        e(f"s_load_dwordx2 {sr(S_W,2)}, {sr(P+6,2)}, {sr(S_T0)}")
        e("s_waitcnt lgkmcnt(0)")
        e(f"s_and_b32 {sr(S_W+3)}, {sr(S_W+1)}, 0xffff0000")
        e(f"s_lshl_b32 {sr(S_W+2)}, {sr(S_W+1)}, 16")
        e(f"s_and_b32 {sr(S_W+1)}, {sr(S_W)}, 0xffff0000")
        e(f"s_lshl_b32 {sr(S_W)}, {sr(S_W)}, 16")
    def job_statchk():
        A.wait_vm("SL")
        lsr = A.newlabel("SR"); lso = A.newlabel("SO")
        e(f"s_mov_b32 {sr(S_T3)}, 0x40000")
        A.label(lsr)
        e(f"v_cmp_eq_u32 vcc, {sr(S_NONCE)}, {vr(V_SL+1)}")
        e("s_nop 1")
        e("s_cmp_eq_u64 vcc, -1")
        e(f"s_cbranch_scc1 {lso}")
        e(f"s_sub_u32 {sr(S_T3)}, {sr(S_T3)}, 1")
        e(f"s_cmp_eq_u32 {sr(S_T3)}, 0")
        e(f"s_cbranch_scc1 {lso}")
        e("s_sleep 2")
        e(f"buffer_load_dwordx2 {vr(V_SL,2)}, {vr(V_SLA)}, {sr(SRD_WS,4)}, {sr(S_STO)} offen sc1")
        e("s_waitcnt vmcnt(0)")
        e(f"s_branch {lsr}")
        A.label(lso)
        e(f"v_and_b32 {vr(t1)}, 0xffff0000, {vr(V_SL)}")
        e(f"v_lshlrev_b32 {vr(V_SL)}, 16, {vr(V_SL)}")
        e(f"v_rcp_f32 {vr(V_SL+1)}, {vr(t1)}")
        e(f"s_lshl_b32 {sr(S_T0)}, {sr(S_LW)}, 8")
        e(f"s_add_u32 {sr(S_T0)}, {sr(S_T0)}, {L_STAT}")
        e(f"v_add_u32 {vr(t0)}, {sr(S_T0)}, {vr(V_SLA)}")
        e("s_nop 0")
        e(f"ds_write_b64 {vr(t0)}, {vr(V_SL,2)}")
    KR, VR = 128, 160
    def job_row_srds():
        e(f"s_lshl_b32 {sr(S_T0)}, {sr(S_C)}, 12")
        e(f"s_add_u32 {sr(SRD_K)}, {sr(P+24)}, {sr(S_T0)}")
        e(f"s_addc_u32 {sr(SRD_K+1)}, {sr(P+25)}, 0")
        e(f"s_mov_b32 {sr(SRD_K+2)}, 4096")
        e(f"s_mov_b32 {sr(SRD_K+3)}, 0x20000")
        e(f"s_add_u32 {sr(S_T0)}, {sr(S_T0)}, {WS_VT}")
        e(f"s_add_u32 {sr(SRD_V)}, {sr(P+24)}, {sr(S_T0)}")
        e(f"s_addc_u32 {sr(SRD_V+1)}, {sr(P+25)}, 0")
        e(f"s_mov_b32 {sr(SRD_V+2)}, 4096")
        e(f"s_mov_b32 {sr(SRD_V+3)}, 0x20000")
    def uk_loads(track):
        for q in range(4):
            if track:
                e(f"s_cmp_eq_u32 {sr(S_OKF)}, 1")
                e(f"s_cselect_b32 {sr(S_T2)}, {1024*q}, 0x40000000" if q == 0 else f"s_cselect_b32 {sr(S_T2)}, {sr(S_T1)}, {sr(S_T3)}")
                if q < 3:
                    e(f"s_movk_i32 {sr(S_T1)}, {1024*(q+1)}")
                    e(f"s_mov_b32 {sr(S_T3)}, 0x40000000")
            else:
                e(f"s_movk_i32 {sr(S_T2)}, {1024*q}")
            for txt in (f"buffer_load_dwordx4 {vr(KR+8*q,4)}, {vr(V_L16)}, {sr(SRD_K,4)}, {sr(S_T2)} offen{USC}",
                        f"buffer_load_dwordx2 {vr(KR+8*q+4,2)}, {vr(V_L16)}, {sr(SRD_K,4)}, {sr(S_T2)} offen offset:16{USC}",
                        f"buffer_load_dwordx4 {vr(VR+4*q,4)}, {vr(V_L16)}, {sr(SRD_V,4)}, {sr(S_T2)} offen{USC}"):
                if track: A.vmem(txt, "UK")
                else: e(txt)
    def job_pkv_check():
        A.wait_vm("PKV")
        flag_check_scc(V_FL, 2)
        e(f"s_cselect_b32 {sr(S_OKF)}, 1, 0")
        uk_loads(True)
    E = 36
    def kv_chunk(q):
        D = KR + 8*q; V = VR + 4*q
        for i in range(11):
            src = D + (i >> 1)
            e(f"v_and_b32 {vr(E+i)}, 0xffff0000, {vr(src)}" if i & 1 else f"v_lshlrev_b32 {vr(E+i)}, 16, {vr(src)}")
        for i in range(8):
            src = V + (i >> 1)
            e(f"v_and_b32 {vr(E+11+i)}, 0xffff0000, {vr(src)}" if i & 1 else f"v_lshlrev_b32 {vr(E+11+i)}, 16, {vr(src)}")
        for i in range(8): e(f"v_mul_f32 {vr(56+i)}, {sr(S_W+3)}, {vr(E+i+3)}")
        for i in range(8): e(f"v_fma_f32 {vr(56+i)}, {vr(E+i+2)}, {sr(S_W+2)}, {vr(56+i)}")
        for i in range(8): e(f"v_fma_f32 {vr(56+i)}, {vr(E+i+1)}, {sr(S_W+1)}, {vr(56+i)}")
        for i in range(8): e(f"v_fma_f32 {vr(56+i)}, {vr(E+i)}, {sr(S_W)}, {vr(56+i)}")
        for i in range(8): e(f"v_mul_f32 {vr(56+i)}, {vr(56+i)}, {vr(E+11+i)}")
        for k in range(4): e(f"v_cvt_pk_bf16_f32 {vr(D+k)}, {vr(56+2*k)}, {vr(56+2*k+1)}")
    S_DSO2, S_RA, S_RBB, S_RC = S_G4, S_X0, S_X1, S_X2
    S_KU2, S_KUN2, S_ROT2, S_OOB2 = 61, S_C0, S_G5, 60
    def job_wd_setup():
        ku_start(S_KU2, S_LW)
        e(f"s_cmp_lt_u32 {sr(S_LW)}, 2")
        e(f"s_cselect_b32 {sr(S_KUN2)}, 22, 21")
        e(f"s_mul_i32 {sr(S_ROT2)}, {sr(S_J)}, {opts.get('rot', 3)}")
        e(f"s_mov_b32 {sr(S_OOB2)}, 0x20000000")
        ring_bases(S_LW, S_RA, S_RBB, S_RC)
    def wd_dma(n):
        bi, off = ring_off(n); sb = (S_RA, S_RBB, S_RC)[bi]
        wd_soff(n, S_DSO2, S_ROT2, S_KUN2, S_KU2, S_OOB2)
        for a in range(2):
            e(f"s_add_u32 m0, {sr(sb)}, {off + 1024*a}")
            if a == 1: e(f"s_add_u32 {sr(S_DSO2)}, {sr(S_DSO2)}, 8192")
            else: e("s_nop 0")
            A.vmem(f"buffer_load_dwordx4 {vr(V_DO2)}, {sr(SRD_WD,4)}, {sr(S_DSO2)} offen lds", "WDP")
    def hk(w, addr, extra):
        O1, O2, O3 = 116, 120, 124
        for j in range(4):
            e(f"v_alignbit_b32 {vr(O1+j)}, {vr(w+j+1)}, {vr(w+j)}, 16")
            e(f"v_mov_b32 {vr(O2+j)}, {vr(w+j+1)}")
            e(f"v_alignbit_b32 {vr(O3+j)}, {vr(w+j+2)}, {vr(w+j+1)}, 16")
        e(f"ds_write_b128 {vr(addr)}, {vr(w,4)} offset:{extra}")
        e(f"ds_write_b128 {vr(addr)}, {vr(O1,4)} offset:{extra+HCOPY}")
        e(f"ds_write_b128 {vr(addr)}, {vr(O2,4)} offset:{extra+2*HCOPY}")
        e(f"ds_write_b128 {vr(addr)}, {vr(O3,4)} offset:{extra+3*HCOPY}")
        e("s_nop 1")
    S_RH, S_UB = 71, 3
    V_PF = 30
    def job_hankel():
        e(f"s_and_b32 {sr(S_RH)}, {sr(S_LW)}, 1")
        e(f"s_mul_i32 {sr(S_T0)}, {sr(S_CIDX)}, {HCH}")
        e(f"s_add_u32 {sr(S_T0)}, {sr(S_T0)}, {L_HANK}")
        e(f"s_lshl_b32 {sr(S_T1)}, {sr(S_RH)}, 11")
        e(f"s_add_u32 {sr(S_T1)}, {sr(S_T1)}, {sr(S_T0)}")
        e(f"v_add_u32 {vr(27)}, {sr(S_T0)}, {vr(V_L16)}")
        e(f"v_add_u32 {vr(28)}, {sr(S_T1)}, {vr(V_L16)}")
        for y in range(2): hk(HK[y], 28, 32 + 1024*y)
        lpb = A.newlabel("PB")
        e(f"s_cmp_lg_u32 {sr(S_RH)}, 0")
        e(f"s_cbranch_scc1 {lpb}")
        e(f"s_mov_b64 {sr(S_EX,2)}, exec")
        e("s_mov_b64 exec, 3")
        w = HK[0]
        for r in range(4): e(f"v_mov_b32 {vr(w+r)}, 0")
        e(f"v_mov_b32 {vr(w+4)}, {vr(HPB)}"); e(f"v_mov_b32 {vr(w+5)}, {vr(HPB+1)}")
        hk(w, 27, 0)
        e(f"s_mov_b64 exec, {sr(S_EX,2)}")
        A.label(lpb)
    V_DD = 32; V_CA = 35; V_CB = 29
    CACC = 192; CSET = [64, 128]
    def conv_addr():
        e(f"s_and_b32 {sr(S_RH)}, {sr(S_LW)}, 1")
        e(f"s_mul_i32 {sr(S_UB)}, {sr(S_LW)}, {UBSZ}")
        e(f"s_add_u32 {sr(S_UB)}, {sr(S_UB)}, {L_UB}")
        e(f"v_and_b32 {vr(t0)}, 15, {L}")
        e(f"v_lshrrev_b32 {vr(t1)}, 4, {L}")
        e(f"v_lshl_add_u32 {vr(t2)}, {vr(t1)}, 3, {vr(t0)}")
        e(f"v_add_u32 {vr(t2)}, 1, {vr(t2)}")
        e(f"v_and_b32 {vr(t3)}, 3, {vr(t2)}")
        e(f"v_sub_u32 {vr(t2)}, {vr(t2)}, {vr(t3)}")
        e(f"v_lshlrev_b32 {vr(t2)}, 1, {vr(t2)}")
        e(f"v_mul_u32_u24 {vr(t3)}, {HCOPY}, {vr(t3)}")
        e(f"v_add_u32 {vr(t2)}, {vr(t2)}, {vr(t3)}")
        e(f"s_mul_i32 {sr(S_T0)}, {sr(S_CIDX)}, {HCH}")
        e(f"s_lshl_b32 {sr(S_T1)}, {sr(S_RH)}, 8")
        e(f"s_add_u32 {sr(S_T0)}, {sr(S_T0)}, {sr(S_T1)}")
        e(f"s_add_u32 {sr(S_T0)}, {sr(S_T0)}, {L_HANK}")
        e(f"v_add_u32 {vr(V_CA)}, {sr(S_T0)}, {vr(t2)}")
        e(f"v_lshlrev_b32 {vr(t2)}, 1, {vr(t0)}")
        e(f"v_sub_u32 {vr(t2)}, {vr(t1)}, {vr(t2)}")
        e(f"v_add_u32 {vr(t2)}, 254, {vr(t2)}")
        e(f"v_lshlrev_b32 {vr(t2)}, 4, {vr(t2)}")
        e(f"s_add_u32 {sr(S_T0)}, {sr(S_UB)}, {sr(S_T1)}")
        e(f"s_sub_u32 {sr(S_T0)}, {sr(S_T0)}, 3584")
        e(f"v_add_u32 {vr(V_CB)}, {sr(S_T0)}, {vr(t2)}")
        for r in range(32): e(f"v_mov_b32 {vr(CACC+r)}, 0")
    def pt(it): return [tiles] if PPOS == it else []
    dma_stage(2)
    it_end(0, [lambda: dma_stage(3)] + pt(0), waits=())
    it_end(1, [lambda: dma_stage(4)] + pt(1), waits=("S2", "NL"))
    job_nonce_sts()
    TRI = {-1: 2, 0: 4, 1: 5}[PPOS]
    for it in range(2, 8):
        if it == TRI: job_tr_store()
        if it == 3: job_sl()
        if it == TRI + 2: job_kvf()
        if it == 4: job_conv_scalars(); job_row_srds() if False else None
        if it == 5: job_wd_setup()
        if it == 6: job_statchk(); conv_addr()
        if it == TRI + 3 and it <= 7:
            job_row_srds(); flag_issue(V_FL, 2, S_KVO, "PKV")
        if it == TRI + 4 and it <= 7: job_pkv_check()
        if it == TRI + 5 and it <= 7:
            lk7 = A.newlabel("K7")
            e(f"s_cmp_eq_u32 {sr(S_OKF)}, 1")
            e(f"s_cbranch_scc0 {lk7}")
            A.wait_vm("UK")
            kv_chunk(0); kv_chunk(1)
            A.label(lk7)
        if it == opts.get("hankit", 7): job_hankel()
        if it == 7: break
        st = []
        if it + 3 <= 7: st.append(lambda it=it: dma_stage(it + 3))
        if it == opts.get('hkit', 2): st.append(hk_loads)
        if it == opts.get('wtit', 3): st.append(wd_touch)
        if it == 5: st.append(lambda: [wd_dma(n) for n in range(0, 5)])
        if it == 6: st.append(lambda: [wd_dma(n) for n in range(5, 10)])
        w_ = [f"S{it+1}"]
        if it + 1 == TRI: w_.append("P")
        it_end(it, st, waits=tuple(w_))
    done_chunks01 = (TRI + 5 <= 7); done_check = (TRI + 4 <= 7); done_pkv = (TRI + 3 <= 7)
    e("s_waitcnt lgkmcnt(0)")
    e("s_barrier")
    stamp(3)
    wd_dma(10)
    if not done_pkv:
        job_row_srds(); flag_issue(V_FL, 2, S_KVO, "PKV")
    srd(SRD_AUX, 5, 1024)
    e(f"s_lshl_b32 {sr(S_T0)}, {sr(S_C)}, 1")
    A.vmem(f"buffer_load_ushort {vr(V_DD)}, off, {sr(SRD_AUX,4)}, {sr(S_T0)}", "DD")
    if not done_check: job_pkv_check()
    if opts.get("hankit", 7) > 7: job_hankel()
    e("s_waitcnt lgkmcnt(0)")
    e(f"s_lshl_b32 {sr(S_T0)}, {sr(S_LW)}, 2")
    e(f"s_add_u32 {sr(S_T0)}, {sr(S_T0)}, {L_FLAG}")
    e(f"v_mov_b32 {vr(V_PF)}, {sr(S_T0)}")
    e(f"v_mov_b32 {vr(V_PF+1)}, 1")
    e(f"ds_write_b32 {vr(V_PF)}, {vr(V_PF+1)} offset:96")
    A.wait_vm("WDP")
    e(f"ds_write_b32 {vr(V_PF)}, {vr(V_PF+1)} offset:16")
    lko2 = A.newlabel("KO2"); lko3 = A.newlabel("KO3")
    e(f"s_cmp_eq_u32 {sr(S_OKF)}, 1")
    e(f"s_cbranch_scc1 {lko2}")
    flag_wait_blocking(V_FL, 2, S_KVO, sleep=4)
    uk_loads(False)
    e("s_waitcnt vmcnt(0)")
    if done_chunks01:
        kv_chunk(0); kv_chunk(1)
    A.label(lko2)
    A.wait_vm("UK", "DD")
    if not done_chunks01:
        kv_chunk(0); kv_chunk(1)
    kv_chunk(2); kv_chunk(3)
    e(f"v_add_u32 {vr(26)}, {sr(S_UB)}, {vr(V_L16)}")
    for q in range(4): e(f"ds_write_b128 {vr(26)}, {vr(KR+8*q,4)} offset:{1024*q}")
    for r in range(4): e(f"v_mov_b32 {vr(52+r)}, 0")
    e(f"v_and_b32 {vr(t0)}, 31, {L}")
    e(f"v_lshlrev_b32 {vr(t0)}, 4, {vr(t0)}")
    e(f"v_add_u32 {vr(t0)}, {sr(S_UB)}, {vr(t0)}")
    e(f"ds_write_b128 {vr(t0)}, {vr(52,4)} offset:4096")
    e(f"v_lshlrev_b32 {vr(V_DD)}, 16, {vr(V_DD)}")
    e(f"s_lshl_b32 {sr(S_T0)}, {sr(S_LW)}, 2")
    e(f"s_xor_b32 {sr(S_T0)}, {sr(S_T0)}, 4")
    e(f"s_add_u32 {sr(S_T0)}, {sr(S_T0)}, {L_FLAG+96}")
    lds_spin(S_T0, t1, t0)
    e("s_waitcnt lgkmcnt(0)")
    if opts.get("gate", 1):
        e(f"s_lshl_b32 {sr(S_T0)}, {sr(S_LW)}, 2")
        e(f"s_add_u32 {sr(S_T0)}, {sr(S_T0)}, {L_FLAG+48}")
        lds_spin(S_T0, t1, t0)
    stamp(4)
    def creads(r, st):
        out = []; b = CSET[st]
        for sp in range(8):
            out.append(f"ds_read_b64 {vr(b+4*sp,2)}, {vr(V_CA)} offset:{512*sp+64*r}")
            out.append(f"ds_read_b64 {vr(b+4*sp+2,2)}, {vr(V_CA)} offset:{512*sp+64*r+8}")
            out.append(f"ds_read_b128 {vr(b+32+4*sp,4)}, {vr(V_CB)} offset:{512*(7-sp)+64*r}")
        return out
    def cmfmas(st):
        out = []; b = CSET[st]
        for t in range(8):
            for sp in range(t + 1):
                out.append(f"v_mfma_f32_16x16x32_bf16 {vr(CACC+4*t,4)}, {vr(b+4*sp,4)}, {vr(b+32+4*(t-sp),4)}, {vr(CACC+4*t,4)}")
        return out
    for x in creads(0, 0): e(x)
    for r in range(4):
        e("s_waitcnt lgkmcnt(0)")
        mf = cmfmas(r & 1)
        rd = creads(r + 1, (r + 1) & 1) if r < 3 else []
        for idx, m in enumerate(mf):
            e(m)
            if idx < len(rd): e(rd[idx])
    stamp(5)
    V_UU = 64
    e("s_nop 7")
    e(f"v_and_b32 {vr(t0)}, 15, {L}")
    e(f"v_lshrrev_b32 {vr(t1)}, 4, {L}")
    e(f"v_lshlrev_b32 {vr(t2)}, 2, {vr(t0)}")
    e(f"v_add_u32 {vr(t2)}, {vr(t2)}, {vr(t1)}")
    e(f"v_lshlrev_b32 {vr(t2)}, 3, {vr(t2)}")
    e(f"s_lshl_b32 {sr(S_T1)}, {sr(S_RH)}, 11")
    e(f"s_sub_u32 {sr(S_T0)}, {sr(S_UB)}, {sr(S_T1)}")
    e(f"s_add_u32 {sr(S_T0)}, {sr(S_T0)}, {4088 - 1536}")
    e(f"v_sub_u32 {vr(t3)}, {sr(S_T0)}, {vr(t2)}")
    for tt in range(4): e(f"ds_read_b64 {vr(V_UU+2*tt,2)}, {vr(t3)} offset:{512*(3-tt)}")
    e("s_waitcnt lgkmcnt(0)")
    e(f"v_add_u32 {vr(t3)}, {sr(S_UB)}, {vr(V_L16)}")
    l1 = A.newlabel("PR"); l2 = A.newlabel("PR")
    e(f"s_cmp_eq_u32 {sr(S_RH)}, 0")
    e(f"s_cbranch_scc1 {l1}")
    for tt in range(4): e(f"ds_write_b128 {vr(t3)}, {vr(CACC+4*tt,4)} offset:{1024*tt}")
    e("s_nop 1")
    for r in range(16): e(f"v_mov_b32 {vr(CACC+r)}, {vr(CACC+16+r)}")
    e(f"s_branch {l2}")
    A.label(l1)
    for tt in range(4): e(f"ds_write_b128 {vr(t3)}, {vr(CACC+16+4*tt,4)} offset:{1024*tt}")
    A.label(l2)
    e("s_waitcnt lgkmcnt(0)")
    e(f"ds_write_b32 {vr(V_PF)}, {vr(V_PF+1)}")
    e(f"s_lshl_b32 {sr(S_T0)}, {sr(S_LW)}, 2")
    e(f"s_add_u32 {sr(S_T0)}, {sr(S_T0)}, {L_FLAG}")
    e(f"s_xor_b32 {sr(S_T0)}, {sr(S_T0)}, 4")
    lds_spin(S_T0, t1, t0)
    e(f"s_xor_b32 {sr(S_T0)}, {sr(S_LW)}, 1")
    e(f"s_mul_i32 {sr(S_T0)}, {sr(S_T0)}, {UBSZ}")
    e(f"s_add_u32 {sr(S_T0)}, {sr(S_T0)}, {L_UB}")
    e(f"v_add_u32 {vr(t3)}, {sr(S_T0)}, {vr(V_L16)}")
    V_PP = 80
    for tt in range(4): e(f"ds_read_b128 {vr(V_PP+4*tt,4)}, {vr(t3)} offset:{1024*tt}")
    e("s_waitcnt lgkmcnt(0)")
    for r in range(16): e(f"v_add_f32 {vr(CACC+r)}, {vr(CACC+r)}, {vr(V_PP+r)}")
    V_YP = 96
    for tt in range(4):
        y = CACC + 4*tt; u0, u1 = V_UU + 2*tt, V_UU + 2*tt + 1; U = 112
        e(f"v_and_b32 {vr(U+0)}, 0xffff0000, {vr(u1)}")
        e(f"v_lshlrev_b32 {vr(U+1)}, 16, {vr(u1)}")
        e(f"v_and_b32 {vr(U+2)}, 0xffff0000, {vr(u0)}")
        e(f"v_lshlrev_b32 {vr(U+3)}, 16, {vr(u0)}")
        for k in range(4): e(f"v_mul_f32 {vr(U+k)}, {vr(U+k)}, {vr(V_DD)}")
        e(f"v_cvt_pk_bf16_f32 {vr(U+4)}, {vr(U+0)}, {vr(U+1)}")
        e(f"v_cvt_pk_bf16_f32 {vr(U+5)}, {vr(U+2)}, {vr(U+3)}")
        e(f"v_cvt_pk_bf16_f32 {vr(U+6)}, {vr(y+0)}, {vr(y+1)}")
        e(f"v_cvt_pk_bf16_f32 {vr(U+7)}, {vr(y+2)}, {vr(y+3)}")
        for h in range(2):
            e(f"v_lshlrev_b32 {vr(U+2*h)}, 16, {vr(U+4+h)}")
            e(f"v_and_b32 {vr(U+2*h+1)}, 0xffff0000, {vr(U+4+h)}")
            e(f"v_lshlrev_b32 {vr(y+2*h)}, 16, {vr(U+6+h)}")
            e(f"v_and_b32 {vr(y+2*h+1)}, 0xffff0000, {vr(U+6+h)}")
        for k in range(4): e(f"v_add_f32 {vr(y+k)}, {vr(y+k)}, {vr(U+k)}")
        e(f"v_cvt_pk_bf16_f32 {vr(V_YP+2*tt)}, {vr(y+0)}, {vr(y+1)}")
        e(f"v_cvt_pk_bf16_f32 {vr(V_YP+2*tt+1)}, {vr(y+2)}, {vr(y+3)}")
    e("s_nop 1")
    for p in range(2):
        e(f"v_permlane16_swap_b32 {vr(V_YP+4*p)}, {vr(V_YP+4*p+2)}")
        e(f"v_permlane16_swap_b32 {vr(V_YP+4*p+1)}, {vr(V_YP+4*p+3)}")
    e(f"v_and_b32 {vr(t0)}, 15, {L}")
    e(f"v_lshrrev_b32 {vr(t1)}, 4, {L}")
    e(f"v_and_b32 {vr(t2)}, 1, {vr(t1)}")
    e(f"v_lshlrev_b32 {vr(t2)}, 9, {vr(t2)}")
    e(f"v_and_b32 {vr(t1)}, 2, {vr(t1)}")
    e(f"v_lshlrev_b32 {vr(t1)}, 3, {vr(t1)}")
    e(f"v_lshlrev_b32 {vr(t0)}, 5, {vr(t0)}")
    e(f"v_add3_u32 {vr(t0)}, {vr(t0)}, {vr(t1)}, {vr(t2)}")
    e(f"s_lshl_b32 {sr(S_T0)}, {sr(S_C)}, 12")
    e(f"s_lshl_b32 {sr(S_T1)}, {sr(S_RH)}, 11")
    e(f"s_add_u32 {sr(S_T0)}, {sr(S_T0)}, {sr(S_T1)}")
    e(f"s_add_u32 {sr(S_T0)}, {sr(S_T0)}, {WS_YYT}")
    for p in range(2):
        e(f"buffer_store_dwordx4 {vr(V_YP+4*p,4)}, {vr(t0)}, {sr(SRD_WS,4)}, {sr(S_T0)} offen offset:{1024*p} sc0 sc1")
    e("s_waitcnt vmcnt(0)")
    e(f"s_lshr_b32 {sr(S_T0)}, {sr(S_C)}, 6")
    e(f"s_lshl_b32 {sr(S_T0)}, {sr(S_T0)}, 9")
    e(f"s_and_b32 {sr(S_T1)}, {sr(S_WG)}, 31")
    e(f"s_lshl_b32 {sr(S_T1)}, {sr(S_T1)}, 4")
    e(f"s_lshl_b32 {sr(S_T2)}, {sr(S_LW)}, 2")
    e(f"s_add_u32 {sr(S_T0)}, {sr(S_T0)}, {sr(S_T1)}")
    e(f"s_add_u32 {sr(S_T0)}, {sr(S_T0)}, {sr(S_T2)}")
    e(f"s_add_u32 {sr(S_T0)}, {sr(S_T0)}, {WS_FL+FL_Y}")
    flag_set(S_T0, t0)
    stamp(6)
    ly1 = A.newlabel("YP"); ly2 = A.newlabel("YP")
    e(f"s_cmp_lg_u32 {sr(S_LW)}, 0")
    e(f"s_cbranch_scc1 {ly1}")
    if opts.get("ygate"):
        e(f"s_mov_b32 {sr(S_T0)}, {L_FLAG+64}")
        lds_spin(S_T0, t1, t0, sleep=4)
    e(f"s_lshl_b32 {sr(S_T0)}, {sr(S_J)}, 9")
    e(f"s_add_u32 {sr(S_T0)}, {sr(S_T0)}, {WS_FL+FL_Y}")
    flag_wait_blocking(V_FL, 2, S_T0, sleep=opts.get('ysleep', 8))
    e(f"v_mov_b32 {vr(t0)}, {L_FLAG+68}")
    e(f"v_mov_b32 {vr(t1)}, 1")
    e(f"ds_write_b32 {vr(t0)}, {vr(t1)}")
    e(f"s_branch {ly2}")
    A.label(ly1)
    e(f"s_mov_b32 {sr(S_T0)}, {L_FLAG+68}")
    lds_spin(S_T0, t1, t0, sleep=4)
    A.label(ly2)
    stamp(7)
    e(f"v_lshrrev_b32 {vr(t0)}, 3, {L}")
    e(f"v_and_b32 {vr(t1)}, 7, {L}")
    e(f"s_lshl_b32 {sr(S_T0)}, {sr(S_LW)}, 4")
    e(f"v_add_u32 {vr(t0)}, {sr(S_T0)}, {vr(t0)}")
    e(f"v_lshlrev_b32 {vr(t2)}, 12, {vr(t0)}")
    e(f"v_lshl_add_u32 {vr(t2)}, {vr(t1)}, 4, {vr(t2)}")
    e(f"s_lshl_b32 {sr(S_T0)}, {sr(S_J)}, 18")
    e(f"s_lshl_b32 {sr(S_T1)}, {sr(S_I2)}, 7")
    e(f"s_add_u32 {sr(S_T0)}, {sr(S_T0)}, {sr(S_T1)}")
    e(f"s_add_u32 {sr(S_T0)}, {sr(S_T0)}, {WS_YYT}")
    e(f"buffer_load_dwordx4 {vr(64,4)}, {vr(t2)}, {sr(SRD_WS,4)}, {sr(S_T0)} offen sc1")
    e(f"v_add_u32 {vr(t2)}, {8*4096}, {vr(t2)}")
    e(f"buffer_load_dwordx4 {vr(68,4)}, {vr(t2)}, {sr(SRD_WS,4)}, {sr(S_T0)} offen sc1")
    e(f"v_mul_u32_u24 {vr(t3)}, {YTROW}, {vr(t0)}")
    e(f"v_lshl_add_u32 {vr(t3)}, {vr(t1)}, 4, {vr(t3)}")
    e(f"v_add_u32 {vr(t3)}, {L_YT}, {vr(t3)}")
    e("s_waitcnt vmcnt(1)")
    e(f"ds_write_b128 {vr(t3)}, {vr(64,4)}")
    e("s_waitcnt vmcnt(0)")
    e(f"ds_write_b128 {vr(t3)}, {vr(68,4)} offset:{8*YTROW}")
    srd(SRD_OUT, 10, 2 << 20)

    A.label("L_FINAL")
    e("s_setprio 0")
    FT, FD, FO = 28, 29, 30
    e(f"v_lshrrev_b32 {vr(t0)}, 5, {L}")
    e(f"v_and_b32 {vr(t1)}, 3, {L}")
    e(f"v_lshl_add_u32 {vr(FT)}, {vr(t0)}, 2, {vr(t1)}")
    e(f"s_lshl_b32 {sr(S_T0)}, {sr(S_WAVE)}, 3")
    e(f"v_add_u32 {vr(FT)}, {sr(S_T0)}, {vr(FT)}")
    e(f"v_bfe_u32 {vr(FD)}, {L}, 2, 3")
    e(f"s_lshl_b32 {sr(S_T0)}, {sr(S_I2)}, 16")
    e(f"s_lshl_b32 {sr(S_T1)}, {sr(S_J)}, 7")
    e(f"s_add_u32 {sr(S_T0)}, {sr(S_T0)}, {sr(S_T1)}")
    e(f"v_lshlrev_b32 {vr(FO)}, 10, {vr(FT)}")
    e(f"v_lshl_add_u32 {vr(FO)}, {vr(FD)}, 4, {vr(FO)}")
    e(f"v_add_u32 {vr(FO)}, {sr(S_T0)}, {vr(FO)}")
    FX_, FS_ = 32, 36
    e(f"buffer_load_dwordx4 {vr(FX_,4)}, {vr(FO)}, {sr(SRD_Q,4)}, 0 offen")
    e("s_waitcnt lgkmcnt(0)")
    e("s_barrier")
    stamp(9)
    e(f"s_lshl_b32 {sr(S_T0)}, {sr(S_I2)}, 9")
    e(f"s_add_u32 {sr(S_T0)}, {sr(S_T0)}, {WS_ST}")
    e(f"v_lshlrev_b32 {vr(t1)}, 3, {vr(FT)}")
    e(f"buffer_load_dwordx2 {vr(FS_,2)}, {vr(t1)}, {sr(SRD_WS,4)}, {sr(S_T0)} offen sc1")
    FP = 40
    e(f"v_and_b32 {vr(t0)}, 31, {vr(FT)}")
    e(f"v_mul_u32_u24 {vr(t0)}, 272, {vr(t0)}")
    e(f"v_lshl_add_u32 {vr(t0)}, {vr(FD)}, 5, {vr(t0)}")
    e(f"s_cmp_lt_u32 {sr(S_WAVE)}, 4")
    e(f"s_cselect_b32 {sr(S_T0)}, {RA}, {RB_}")
    e(f"v_add_u32 {vr(t0)}, {sr(S_T0)}, {vr(t0)}")
    for kg in range(4):
        e(f"ds_read_b128 {vr(FP+8*kg,4)}, {vr(t0)} offset:{kg*10240}")
        e(f"ds_read_b128 {vr(FP+8*kg+4,4)}, {vr(t0)} offset:{kg*10240+16}")
    FY = 72
    e(f"v_bfe_u32 {vr(t2)}, {L}, 2, 2")
    e(f"v_and_b32 {vr(t3)}, 3, {L}")
    e(f"v_bfe_u32 {vr(t4)}, {L}, 4, 1")
    e(f"v_lshl_add_u32 {vr(t3)}, {vr(t4)}, 2, {vr(t3)}")
    e(f"v_lshl_add_u32 {vr(t2)}, {vr(t3)}, 3, {vr(t2)}")
    e(f"v_mul_u32_u24 {vr(t2)}, {YTROW}, {vr(t2)}")
    e(f"v_lshrrev_b32 {vr(t3)}, 5, {L}")
    e(f"v_lshlrev_b32 {vr(t3)}, 3, {vr(t3)}")
    e(f"s_lshl_b32 {sr(S_T0)}, {sr(S_WAVE)}, 4")
    e(f"s_add_u32 {sr(S_T0)}, {sr(S_T0)}, {L_YT}")
    e(f"v_add3_u32 {vr(t2)}, {vr(t2)}, {vr(t3)}, {sr(S_T0)}")
    e(f"ds_read_b64_tr_b16 {vr(FY,2)}, {vr(t2)}")
    e(f"ds_read_b64_tr_b16 {vr(FY+2,2)}, {vr(t2)} offset:{4*YTROW}")
    e("s_waitcnt lgkmcnt(2)")
    for kg in range(1, 4):
        for k in range(8): e(f"v_add_f32 {vr(FP+k)}, {vr(FP+k)}, {vr(FP+8*kg+k)}")
    O = FP; T = 48; XV = 56; YV = 64
    for k in range(0, 8, 2): e(f"v_cvt_pk_bf16_f32 {vr(T+k)}, {vr(O+k)}, {vr(O+k+1)}")
    for k in range(0, 8, 2):
        e(f"v_and_b32 {vr(O+k+1)}, 0xffff0000, {vr(T+k)}")
        e(f"v_lshlrev_b32 {vr(O+k)}, 16, {vr(T+k)}")
    e(f"s_mov_b32 {sr(S_T0)}, 0xbfb8aa3b")
    for k in range(8): e(f"v_mul_f32 {vr(T+k)}, {sr(S_T0)}, {vr(O+k)}")
    for k in range(8): e(f"v_exp_f32 {vr(T+k)}, {vr(T+k)}")
    for k in range(8): e(f"v_add_f32 {vr(T+k)}, 1.0, {vr(T+k)}")
    for k in range(8): e(f"v_rcp_f32 {vr(T+k)}, {vr(T+k)}")
    e("s_nop 0")
    for k in range(8): e(f"v_mul_f32 {vr(O+k)}, {vr(O+k)}, {vr(T+k)}")
    e("s_waitcnt vmcnt(0) lgkmcnt(0)")
    for k in range(4):
        e(f"v_lshlrev_b32 {vr(XV+2*k)}, 16, {vr(FX_+k)}")
        e(f"v_and_b32 {vr(XV+2*k+1)}, 0xffff0000, {vr(FX_+k)}")
        e(f"v_lshlrev_b32 {vr(YV+2*k)}, 16, {vr(FY+k)}")
        e(f"v_and_b32 {vr(YV+2*k+1)}, 0xffff0000, {vr(FY+k)}")
    e(f"v_and_b32 {vr(FS_+1)}, 0xffff0000, {vr(FS_)}")
    e(f"v_lshlrev_b32 {vr(FS_)}, 16, {vr(FS_)}")
    e(f"v_rcp_f32 {vr(FS_+1)}, {vr(FS_+1)}")
    for k in range(8): e(f"v_sub_f32 {vr(T+k)}, {vr(XV+k)}, {vr(FS_)}")
    def round8(b):
        for k in range(0, 8, 2): e(f"v_cvt_pk_bf16_f32 {vr(b+k)}, {vr(b+k)}, {vr(b+k+1)}")
        for k in range(0, 8, 2):
            e(f"v_and_b32 {vr(b+k+1)}, 0xffff0000, {vr(b+k)}")
            e(f"v_lshlrev_b32 {vr(b+k)}, 16, {vr(b+k)}")
    round8(T)
    for k in range(8): e(f"v_mul_f32 {vr(T+k)}, {vr(T+k)}, {vr(FS_+1)}")
    round8(T)
    for k in range(8): e(f"v_mul_f32 {vr(T+k)}, {vr(T+k)}, {vr(YV+k)}")
    round8(T); round8(O)
    for k in range(8): e(f"v_mul_f32 {vr(T+k)}, {vr(T+k)}, {vr(O+k)}")
    round8(T)
    for k in range(8): e(f"v_add_f32 {vr(T+k)}, {vr(T+k)}, {vr(XV+k)}")
    for k in range(4): e(f"v_cvt_pk_bf16_f32 {vr(FY+k)}, {vr(T+2*k)}, {vr(T+2*k+1)}")
    e(f"buffer_store_dwordx4 {vr(FY,4)}, {vr(FO)}, {sr(SRD_OUT,4)}, 0 offen")
    stamp(10)
    stamp_flush()
    A.label("L_END")
    e("s_endpgm")
    A.label("L_CODE_END")

    body = A.text()
    hdr = open("cdna_kernels/" + NAME + ".s.ref").read().split("; Override launch geometry")[0]
    out = hdr + "; Override launch geometry by editing the next line.\n"
    out += f"; @launch grid=(256,1,1) block=(512,1,1) lds={LDS_TOTAL}\n"
    out += f""".amdgcn_target "amdgcn-amd-amdhsa--gfx950"
.text
.globl {NAME}_kernel
.p2align 8
.type {NAME}_kernel,@function
{NAME}_kernel:
"""
    out += body
    out += f""".section .rodata,"a"
.p2align 6
.amdhsa_kernel {NAME}_kernel
  .amdhsa_next_free_vgpr 256
  .amdhsa_next_free_sgpr 102
  .amdhsa_accum_offset 256
  .amdhsa_group_segment_fixed_size 0
  .amdhsa_kernarg_size 104
  .amdhsa_user_sgpr_count 2
  .amdhsa_user_sgpr_kernarg_segment_ptr 1
  .amdhsa_system_sgpr_workgroup_id_x 1
.end_amdhsa_kernel
"""
    return out

if __name__ == "__main__":
    opts = {}
    outp = sys.argv[1]
    for a in sys.argv[2:]:
        k, _, v = a.partition("=")
        opts[k] = (int(v) if v.lstrip("-").isdigit() else (v or True))
    open(outp, "w").write(gen(opts))
```

```python
import sys, struct

NAME = "recurrent_scan__ssm_conv_h3__glu_gated_geglu__prompt"
f2u = lambda x: struct.unpack("<I", struct.pack("<f", x))[0]

class Asm:
    def __init__(self):
        self.lines = []; self.nlabel = 0; self.vm = []; self.cap = None
    def e(self, s):
        if self.cap is not None: self.cap.append(("  " + s, None))
        else: self.lines.append("  " + s)
    def label(self, l):
        assert self.cap is None, l
        self.lines.append(l + ":")
    def newlabel(self, p="L"):
        self.nlabel += 1; return f"{p}_{self.nlabel}"
    def text(self): return "\n".join(self.lines) + "\n"
    def vmem(self, s, tag):
        if self.cap is not None:
            self.cap.append(("  " + s, tag)); return
        self.e(s); self.vm.append(tag)
    def capture(self, fn):
        assert self.cap is None
        self.cap = []
        fn()
        out = self.cap; self.cap = None
        return out
    def emit_list(self, lst):
        for line, tag in lst:
            self.lines.append(line)
            if tag is not None: self.vm.append(tag)
    def merge(self, a, b):
        groups = []; cur = []
        for it in a:
            cur.append(it)
            if it[1] is not None: groups.append(cur); cur = []
        if cur: groups.append(cur)
        n = len(groups); out = []; k = 0
        for gi, g in enumerate(groups):
            out += g
            upto = (len(b) * (gi + 1)) // n
            out += b[k:upto]; k = upto
        out += b[k:]
        return out
    def wait_vm(self, *tags):
        assert self.cap is None
        last = -1
        for i, t in enumerate(self.vm):
            if t in tags: last = i
        assert last >= 0, tags
        n = len(self.vm) - 1 - last
        n = min(n, 63)
        self.e(f"s_waitcnt vmcnt({n})")
        return n

def vr(a, n=1): return f"v{a}" if n == 1 else f"v[{a}:{a+n-1}]"
def sr(a, n=1): return f"s{a}" if n == 1 else f"s[{a}:{a+n-1}]"

S, D, F = 2048, 512, 1376
WROW = F * 2
WBYTES = 512 * WROW
WS_KVT, WS_YYT, WS_HF, WS_ST, WS_FL, WS_TS = 0, 2 << 20, 4 << 20, 12 << 20, 13 << 20, 16 << 20
WS_VT = 14 << 20
FL_KV, FL_ST, FL_H, FL_Y = 0, 4096, 8192, 12288
STAGE = 40960
L_HANK = 122880
HCOPY = 4160
HCH = 4 * HCOPY
L_MISC = L_HANK + 2 * HCH
L_CS = L_MISC
L_STAT = L_MISC + 1536
L_FLAG = L_MISC + 2560
LDS_TOTAL = 163840
L_KT, L_VT = L_HANK, L_HANK + 8192
RA, RB_ = 2 * STAGE, 0
L_UB = STAGE
UBSZ = 4608
L_YT = L_UB + 4 * UBSZ
YTROW = 144
RC = L_YT + 64 * YTROW
NR = 11
def ring_off(n):
    if n < 5: return (0, n * 2048)
    if n < 10: return (1, (n - 5) * 2048)
    return (2, 0)

SRD_Q, SRD_K, SRD_V, SRD_W, SRD_WD, SRD_WS, SRD_DBG, SRD_OUT, SRD_SK, SRD_AUX = 4, 8, 12, 16, 20, 24, 28, 32, 36, 40
P = 48
S_WG = 2
S_WAVE, S_RB, S_CP, S_I2, S_J, S_F0, S_N32, S_A, S_B = 76, 77, 78, 79, 80, 81, 82, 83, 84
S_NONCE = 85
S_T0, S_T1, S_T2, S_T3, S_T4, S_T5 = 86, 87, 88, 89, 90, 91
S_G0, S_G1, S_G2, S_G3, S_G4, S_G5 = 92, 93, 94, 95, 96, 97
S_C0, S_C1 = 98, 99
S_EX = 100
S_TSP = 74
S_X0, S_X1, S_X2, S_X3 = 44, 45, 46, 47

def gen(opts):
    A = Asm(); e = A.e
    TS = opts.get("ts", False)
    HSC = "" if opts.get("hplain", 1) else " sc1"
    USC = "" if opts.get("uplain", 1) else " sc1"
    t0, t1, t2, t3, t4, t5 = 8, 9, 10, 11, 12, 13
    V_LANE = 3; L = vr(V_LANE)
    V_TS = 15

    def stamp(idx, dyn=None):
        if not TS: return
        e(f"{'s_memtime' if opts.get('cyc') else 's_memrealtime'} {sr(S_TSP,2)}")
        e("s_waitcnt lgkmcnt(0)")
        if dyn is None:
            e(f"v_writelane_b32 {vr(V_TS)}, {sr(S_TSP)}, {idx}")
        else:
            e(f"s_add_u32 m0, {sr(dyn)}, {idx}")
            e("s_nop 0")
            e(f"v_writelane_b32 {vr(V_TS)}, {sr(S_TSP)}, m0")
    def stamp_flush():
        if not TS: return
        e(f"s_lshl_b32 {sr(S_TSP+1)}, {sr(S_WG)}, 3")
        e(f"s_add_u32 {sr(S_TSP+1)}, {sr(S_TSP+1)}, {sr(S_WAVE)}")
        e(f"s_lshl_b32 {sr(S_TSP+1)}, {sr(S_TSP+1)}, 8")
        e(f"s_add_u32 {sr(S_TSP+1)}, {sr(S_TSP+1)}, {WS_TS}")
        e(f"v_lshlrev_b32 v14, 2, {L}")
        e(f"buffer_store_dword {vr(V_TS)}, v14, {sr(SRD_WS,4)}, {sr(S_TSP+1)} offen")

    def srd(dst, pidx, nbytes):
        e(f"s_mov_b32 {sr(dst)}, {sr(P+2*pidx)}")
        e(f"s_mov_b32 {sr(dst+1)}, {sr(P+2*pidx+1)}")
        e(f"s_mov_b32 {sr(dst+2)}, {nbytes}")
        e(f"s_mov_b32 {sr(dst+3)}, 0x20000")

    def flag_issue(vdst, nw, soff_sgpr, tag):
        e(f"v_lshlrev_b32 {vr(t5)}, {1 + nw}, {L}")
        op = "buffer_load_dword" if nw == 1 else "buffer_load_dwordx2"
        A.vmem(f"{op} {vr(vdst,nw)}, {vr(t5)}, {sr(SRD_WS,4)}, {sr(soff_sgpr)} offen sc1", tag)
    def flag_check_scc(vdst, nw):
        e(f"v_cmp_eq_u32 vcc, {sr(S_NONCE)}, {vr(vdst)}")
        if nw == 2:
            e(f"v_cmp_eq_u32 {sr(S_T4,2)}, {sr(S_NONCE)}, {vr(vdst+1)}")
            e("s_nop 1")
            e(f"s_and_b64 vcc, vcc, {sr(S_T4,2)}")
        else:
            e("s_nop 1")
        e("s_cmp_eq_u64 vcc, -1")
    def flag_wait_blocking(vdst, nw, soff_sgpr, sleep=4):
        l = A.newlabel("POLL"); d = A.newlabel("POLLD")
        n0 = len(A.vm)
        e(f"s_mov_b32 {sr(S_T3)}, 0x40000")
        A.label(l)
        flag_issue(vdst, nw, soff_sgpr, "poll")
        e("s_waitcnt vmcnt(0)")
        flag_check_scc(vdst, nw)
        e(f"s_cbranch_scc1 {d}")
        e(f"s_sub_u32 {sr(S_T3)}, {sr(S_T3)}, 1")
        e(f"s_cmp_eq_u32 {sr(S_T3)}, 0")
        e(f"s_cbranch_scc1 {d}")
        e(f"s_sleep {sleep}")
        e(f"s_branch {l}")
        A.label(d)
        del A.vm[n0:]
    def flag_set(soff_sgpr, vtmp):
        e(f"v_mov_b32 {vr(vtmp)}, {sr(S_NONCE)}")
        e(f"s_mov_b64 {sr(S_EX,2)}, exec")
        e("s_mov_b64 exec, 1")
        A.vmem(f"buffer_store_dword {vr(vtmp)}, off, {sr(SRD_WS,4)}, {sr(soff_sgpr)} sc0 sc1", "flag")
        e(f"s_mov_b64 exec, {sr(S_EX,2)}")
    def lds_spin(addr_sgpr, vt, va, sleep=1):
        l = A.newlabel("LS"); d = A.newlabel("LSD")
        e(f"v_mov_b32 {vr(va)}, {sr(addr_sgpr)}")
        e(f"s_mov_b32 {sr(S_T3)}, 0x200000")
        A.label(l)
        e(f"ds_read_b32 {vr(vt)}, {vr(va)}")
        e("s_waitcnt lgkmcnt(0)")
        e(f"v_readfirstlane_b32 {sr(S_T2)}, {vr(vt)}")
        e("s_nop 3")
        e(f"s_cmp_eq_u32 {sr(S_T2)}, 1")
        e(f"s_cbranch_scc1 {d}")
        e(f"s_sub_u32 {sr(S_T3)}, {sr(S_T3)}, 1")
        e(f"s_cmp_eq_u32 {sr(S_T3)}, 0")
        e(f"s_cbranch_scc1 {d}")
        e(f"s_sleep {sleep}")
        e(f"s_branch {l}")
        A.label(d)
    def wd_voffset(dst):
        e(f"v_lshrrev_b32 {vr(t0)}, 3, {L}")
        e(f"v_and_b32 {vr(t1)}, 7, {L}")
        e(f"v_bfe_u32 {vr(t2)}, {L}, 4, 1")
        e(f"v_lshlrev_b32 {vr(t2)}, 2, {vr(t2)}")
        e(f"v_xor_b32 {vr(t1)}, {vr(t1)}, {vr(t2)}")
        e(f"v_lshlrev_b32 {vr(t1)}, 4, {vr(t1)}")
        e(f"v_lshl_add_u32 {vr(t1)}, {vr(t0)}, 10, {vr(t1)}")
        e(f"s_lshl_b32 {sr(S_T1)}, {sr(S_J)}, 7")
        e(f"v_add_u32 {vr(dst)}, {sr(S_T1)}, {vr(t1)}")
    def ku_start(dst, kg):
        e(f"s_mul_i32 {sr(dst)}, {sr(kg)}, 22")
        e(f"s_cmp_eq_u32 {sr(kg)}, 3")
        e(f"s_cselect_b32 {sr(S_T1)}, 1, 0")
        e(f"s_sub_u32 {sr(dst)}, {sr(dst)}, {sr(S_T1)}")
    def unit_at(n, dst, rot, kun):
        e(f"s_add_u32 {sr(dst)}, {sr(rot)}, {n}")
        e(f"s_cmp_ge_u32 {sr(dst)}, 22")
        e(f"s_cselect_b32 {sr(S_T5)}, 22, 0")
        e(f"s_sub_u32 {sr(dst)}, {sr(dst)}, {sr(S_T5)}")
        e(f"s_cmp_lt_u32 {sr(dst)}, {sr(kun)}")
    def wd_soff(n, dst, rot, kun, ku0, oob):
        unit_at(n, dst, rot, kun)
        e(f"s_cselect_b32 {sr(S_T5)}, 1, 0")
        e(f"s_add_u32 {sr(dst)}, {sr(dst)}, {sr(ku0)}")
        e(f"s_lshl_b32 {sr(dst)}, {sr(dst)}, 14")
        e(f"s_cmp_eq_u32 {sr(S_T5)}, 1")
        e(f"s_cselect_b32 {sr(dst)}, {sr(dst)}, {sr(oob)}")
    def ring_bases(kg, ra, rb, rc):
        e(f"s_mul_i32 {sr(ra)}, {sr(kg)}, 10240")
        e(f"s_add_u32 {sr(rb)}, {sr(ra)}, {RB_}")
        e(f"s_add_u32 {sr(ra)}, {sr(ra)}, {RA}")
        e(f"s_lshl_b32 {sr(rc)}, {sr(kg)}, 11")
        e(f"s_add_u32 {sr(rc)}, {sr(rc)}, {RC}")

    def loader_setup(lw, V_XO, V_WO, S_M0X, S_M0W):
        e(f"v_lshrrev_b32 {vr(t0)}, 3, {L}")
        e(f"v_lshrrev_b32 {vr(t1)}, 4, {L}")
        e(f"v_and_b32 {vr(t2)}, 7, {L}")
        e(f"s_lshl_b32 {sr(S_T2)}, {sr(S_RB)}, 7")
        e(f"s_lshl_b32 {sr(S_T3)}, {sr(lw)}, 5")
        e(f"s_add_u32 {sr(S_T2)}, {sr(S_T2)}, {sr(S_T3)}")
        for a in range(2):
            e(f"v_add_u32 {vr(t3)}, {4*a}, {vr(t1)}")
            e(f"v_xor_b32 {vr(t3)}, {vr(t3)}, {vr(t2)}")
            e(f"v_lshlrev_b32 {vr(t3)}, 4, {vr(t3)}")
            e(f"v_add_u32 {vr(t4)}, {sr(S_T2)}, {vr(t0)}")
            e(f"v_add_u32 {vr(t4)}, {8*a}, {vr(t4)}")
            e(f"v_lshl_add_u32 {vr(V_XO+a)}, {vr(t4)}, 10, {vr(t3)}")
        e(f"s_and_b32 {sr(S_T1)}, {sr(lw)}, 1")
        e(f"s_lshl_b32 {sr(S_T3)}, {sr(S_T1)}, 1")
        e(f"s_lshr_b32 {sr(S_T4)}, {sr(lw)}, 1")
        e(f"s_lshl_b32 {sr(S_T4)}, {sr(S_T4)}, 5")
        e(f"s_lshl_b32 {sr(S_T5)}, {sr(S_F0)}, 1")
        e(f"s_movk_i32 {sr(S_T0)}, {WROW}")
        for i in range(3):
            e(f"v_add_u32 {vr(t0)}, {64*i}, {L}")
            e(f"v_lshrrev_b32 {vr(t1)}, 4, {vr(t0)}")
            e(f"v_mul_u32_u24 {vr(t1)}, 43, {vr(t1)}")
            e(f"v_lshrrev_b32 {vr(t1)}, 7, {vr(t1)}")
            e(f"v_mul_u32_u24 {vr(t2)}, 48, {vr(t1)}")
            e(f"v_sub_u32 {vr(t2)}, {vr(t0)}, {vr(t2)}")
            e(f"v_lshrrev_b32 {vr(t3)}, 4, {vr(t2)}")
            e(f"v_bfe_u32 {vr(t4)}, {vr(t2)}, 2, 2")
            e(f"v_and_b32 {vr(t2)}, 3, {vr(t2)}")
            e(f"v_xor_b32 {vr(t2)}, {sr(S_T3)}, {vr(t2)}")
            e(f"v_lshl_add_u32 {vr(t2)}, {vr(t3)}, 2, {vr(t2)}")
            e(f"v_lshl_add_u32 {vr(t1)}, {vr(t1)}, 2, {vr(t4)}")
            e(f"v_add_u32 {vr(t1)}, {sr(S_T4)}, {vr(t1)}")
            e(f"v_mul_u32_u24 {vr(t1)}, {sr(S_T0)}, {vr(t1)}")
            e(f"v_lshl_add_u32 {vr(t2)}, {vr(t2)}, 4, {vr(t1)}")
            e(f"v_add_u32 {vr(V_WO+i)}, {sr(S_T5)}, {vr(t2)}")
        e(f"s_lshl_b32 {sr(S_M0X)}, {sr(lw)}, 12")
        e(f"s_mul_i32 {sr(S_M0W)}, {sr(S_T1)}, 12288")
        e(f"s_lshr_b32 {sr(S_T4)}, {sr(lw)}, 1")
        e(f"s_mul_i32 {sr(S_T4)}, {sr(S_T4)}, 6144")
        e(f"s_add_u32 {sr(S_M0W)}, {sr(S_M0W)}, {sr(S_T4)}")
        e(f"s_add_u32 {sr(S_M0W)}, {sr(S_M0W)}, 16384")
    def srd_w_select(lw):
        e(f"s_and_b32 {sr(S_T0)}, {sr(lw)}, 1")
        e(f"s_cmp_eq_u32 {sr(S_T0)}, 0")
        e(f"s_cselect_b32 {sr(SRD_W)}, {sr(P+14)}, {sr(P+16)}")
        e(f"s_cselect_b32 {sr(SRD_W+1)}, {sr(P+15)}, {sr(P+17)}")
        e(f"s_mov_b32 {sr(SRD_W+2)}, {WBYTES}")
        e(f"s_mov_b32 {sr(SRD_W+3)}, 0x20000")
    def dma_stage_g(s, V_XO, V_WO, S_M0X, S_M0W, S_XSO, S_WSO):
        slot = (s % 3) * STAGE
        e(f"s_mov_b32 {sr(S_XSO)}, {s*128}")
        e(f"s_add_u32 m0, {sr(S_M0X)}, {slot}")
        for a in range(4):
            if a == 2: e(f"s_mov_b32 {sr(S_XSO)}, {s*128+16384}")
            else: e("s_nop 0")
            A.vmem(f"buffer_load_dwordx4 {vr(V_XO+(a&1))}, {sr(SRD_Q,4)}, {sr(S_XSO)} offen lds", f"S{s}")
            if a < 3: e("s_add_u32 m0, m0, 1024")
        e(f"s_mov_b32 {sr(S_WSO)}, {s*64*WROW}")
        e(f"s_add_u32 m0, {sr(S_M0W)}, {slot}")
        for blk in range(2):
            for i in range(3):
                if blk == 1 and i == 0: e(f"s_mov_b32 {sr(S_WSO)}, {s*64*WROW+16*WROW}")
                else: e("s_nop 0")
                A.vmem(f"buffer_load_dwordx4 {vr(V_WO+i)}, {sr(SRD_W,4)}, {sr(S_WSO)} offen lds", f"S{s}")
                if not (blk == 1 and i == 2): e("s_add_u32 m0, m0, 1024")

    if TS: e("s_memrealtime s[44:45]")
    e(f"s_cmp_ge_u32 {sr(S_WG)}, 256")
    e("s_cbranch_scc1 L_END")
    e(f"s_load_dwordx16 {sr(P,16)}, s[0:1], 0")
    e(f"s_load_dwordx8 {sr(P+16,8)}, s[0:1], 64")
    e(f"s_load_dwordx2 {sr(P+24,2)}, s[0:1], 96")
    e(f"s_getpc_b64 {sr(S_T0,2)}")
    e("v_lshlrev_b32 v1, 6, v0")
    e(f"v_cmp_gt_u32 vcc, L_CODE_END-{NAME}_kernel, v1")
    e(f"s_and_saveexec_b64 {sr(S_EX,2)}, vcc")
    e(f"global_load_dword v2, v1, {sr(S_T0,2)}")
    e(f"s_mov_b64 exec, {sr(S_EX,2)}")
    e(f"v_and_b32 {L}, 63, v0")
    e("v_lshrrev_b32 v4, 6, v0")
    e(f"s_and_b32 {sr(S_T0)}, {sr(S_WG)}, 7")
    e(f"v_readfirstlane_b32 {sr(S_WAVE)}, v4")
    e(f"s_lshr_b32 {sr(S_T1)}, {sr(S_WG)}, 3")
    e(f"s_and_b32 {sr(S_T2)}, {sr(S_T0)}, 1")
    e(f"s_lshl_b32 {sr(S_T2)}, {sr(S_T2)}, 3")
    e(f"s_and_b32 {sr(S_T3)}, {sr(S_T1)}, 7")
    e(f"s_add_u32 {sr(S_RB)}, {sr(S_T2)}, {sr(S_T3)}")
    e(f"s_lshr_b32 {sr(S_T2)}, {sr(S_T0)}, 1")
    e(f"s_lshl_b32 {sr(S_T2)}, {sr(S_T2)}, 2")
    e(f"s_lshr_b32 {sr(S_T3)}, {sr(S_T1)}, 3")
    e(f"s_add_u32 {sr(S_CP)}, {sr(S_T2)}, {sr(S_T3)}")
    e(f"s_lshl_b32 {sr(S_T2)}, {sr(S_T0)}, 2")
    e(f"s_and_b32 {sr(S_T3)}, {sr(S_T1)}, 3")
    e(f"s_add_u32 {sr(S_I2)}, {sr(S_T2)}, {sr(S_T3)}")
    e(f"s_lshr_b32 {sr(S_J)}, {sr(S_T1)}, 2")
    e(f"s_mul_i32 {sr(S_T2)}, {sr(S_CP)}, 96")
    e(f"s_lshl_b32 {sr(S_T3)}, {sr(S_CP)}, 6")
    e(f"s_add_u32 {sr(S_T3)}, {sr(S_T3)}, 352")
    e(f"s_cmp_lt_u32 {sr(S_CP)}, 11")
    e(f"s_cselect_b32 {sr(S_F0)}, {sr(S_T2)}, {sr(S_T3)}")
    e(f"s_cselect_b32 {sr(S_N32)}, 3, 2")
    if TS:
        e(f"v_mov_b32 {vr(V_TS)}, 0")
        e("s_waitcnt lgkmcnt(0)")
        e(f"v_writelane_b32 {vr(V_TS)}, s44, 63")
        e(f"s_memrealtime s[44:45]")
        e("s_waitcnt lgkmcnt(0)")
        e(f"v_writelane_b32 {vr(V_TS)}, s44, 62")
    e(f"s_cmp_ge_u32 {sr(S_WAVE)}, 4")
    e("s_cbranch_scc1 L_HELPER")

    A.vm = ["code"]
    e(f"s_setprio {opts.get('cprio', 2)}")
    e(f"s_and_b32 {sr(S_A)}, {sr(S_WAVE)}, 1")
    e(f"s_lshr_b32 {sr(S_B)}, {sr(S_WAVE)}, 1")
    FS = [16, 36]
    V_XR, V_WR, V_XR2, V_WR2 = 56, 60, 66, 70
    ACC = 160
    e(f"v_and_b32 {vr(t0)}, 31, {L}")
    e(f"v_lshrrev_b32 {vr(t1)}, 5, {L}")
    e(f"v_bfe_u32 {vr(t2)}, {vr(t0)}, 1, 3")
    e(f"v_xor_b32 {vr(t2)}, {vr(t2)}, {vr(t1)}")
    e(f"s_lshl_b32 {sr(S_T0)}, {sr(S_A)}, 1")
    e(f"v_xor_b32 {vr(t2)}, {sr(S_T0)}, {vr(t2)}")
    e(f"s_lshl_b32 {sr(S_T0)}, {sr(S_A)}, 6")
    e(f"v_add_u32 {vr(t0)}, {sr(S_T0)}, {vr(t0)}")
    e(f"v_lshlrev_b32 {vr(t0)}, 7, {vr(t0)}")
    for ks in range(4):
        e(f"v_xor_b32 {vr(t3)}, {2*ks}, {vr(t2)}")
        e(f"v_lshl_add_u32 {vr(V_XR+ks)}, {vr(t3)}, 4, {vr(t0)}")
    e(f"v_bfe_u32 {vr(t0)}, {L}, 4, 1")
    e(f"v_lshrrev_b32 {vr(t1)}, 5, {L}")
    e(f"v_bfe_u32 {vr(t2)}, {L}, 2, 2")
    e(f"v_bfe_u32 {vr(t3)}, {L}, 1, 1")
    e(f"v_and_b32 {vr(t4)}, 1, {L}")
    e(f"s_lshl_b32 {sr(S_T0)}, {sr(S_B)}, 1")
    e(f"v_add_u32 {vr(t3)}, {sr(S_T0)}, {vr(t3)}")
    e(f"v_lshlrev_b32 {vr(t5)}, 1, {vr(t0)}")
    e(f"v_xor_b32 {vr(t3)}, {vr(t3)}, {vr(t5)}")
    e(f"v_lshlrev_b32 {vr(t3)}, 4, {vr(t3)}")
    e(f"v_lshl_add_u32 {vr(t3)}, {vr(t4)}, 3, {vr(t3)}")
    e(f"v_lshl_add_u32 {vr(t3)}, {vr(t2)}, 6, {vr(t3)}")
    e(f"v_mul_u32_u24 {vr(t1)}, 1536, {vr(t1)}")
    e(f"v_mul_u32_u24 {vr(t0)}, 12288, {vr(t0)}")
    e(f"v_add3_u32 {vr(t3)}, {vr(t3)}, {vr(t1)}, {vr(t0)}")
    e(f"v_add_u32 {vr(t3)}, 16384, {vr(t3)}")
    e(f"s_mul_i32 {sr(S_T1)}, {sr(S_A)}, 3072")
    for i in range(3):
        e(f"s_cmp_eq_u32 {sr(S_A)}, 0")
        e(f"s_cselect_b32 {sr(S_T0)}, {i*256}, {(2-i)*256}")
        e(f"s_add_u32 {sr(S_T2)}, {sr(S_T0)}, {sr(S_T1)}")
        e(f"v_add_u32 {vr(V_WR+i)}, {sr(S_T2)}, {vr(t3)}")
        e(f"s_sub_u32 {sr(S_T2)}, {sr(S_T0)}, {sr(S_T1)}")
        e(f"v_add_u32 {vr(V_WR+3+i)}, {sr(S_T2)}, {vr(t3)}")
    for ks in range(4): e(f"v_add_u32 {vr(V_XR2+ks)}, {2*STAGE}, {vr(V_XR+ks)}")
    for i in range(6): e(f"v_add_u32 {vr(V_WR2+i)}, {2*STAGE}, {vr(V_WR+i)}")
    loader_setup(S_WAVE, 94, 96, S_X0, S_X1)
    for r in range(96): e(f"v_mov_b32 {vr(ACC+r)}, 0")
    for r in range(12): e(f"v_mov_b32 {vr(80+r)}, 0")
    e(f"v_and_b32 {vr(t0)}, 15, {L}")
    e(f"v_bfe_u32 {vr(t1)}, {L}, 4, 1")
    e(f"v_cmp_eq_u32 vcc, {vr(t0)}, {vr(t1)}")
    e(f"v_mov_b32 {vr(t2)}, 0x3f803f80")
    e("s_nop 0")
    e(f"v_cndmask_b32 {vr(76)}, 0, {vr(t2)}, vcc")
    for r in range(1, 4): e(f"v_mov_b32 {vr(76+r)}, {vr(76)}")
    e("s_waitcnt lgkmcnt(0)")
    srd(SRD_Q, 0, 2 << 20); srd(SRD_WD, 9, WBYTES); srd(SRD_OUT, 10, 2 << 20); srd(SRD_WS, 12, 0x10000000)
    V_TX, V_TW, V_DUM = 100, 101, 92
    BAD = 0x7fffff00
    e(f"s_and_b32 {sr(S_T0)}, {sr(S_CP)}, 3")
    e(f"s_lshl_b32 {sr(S_T0)}, {sr(S_T0)}, 5")
    e(f"s_lshl_b32 {sr(S_T1)}, {sr(S_RB)}, 7")
    e(f"s_add_u32 {sr(S_T0)}, {sr(S_T0)}, {sr(S_T1)}")
    e(f"v_and_b32 {vr(t1)}, 31, {L}")
    e(f"v_add_u32 {vr(t1)}, {sr(S_T0)}, {vr(t1)}")
    e(f"v_lshlrev_b32 {vr(t1)}, 10, {vr(t1)}")
    e(f"v_lshrrev_b32 {vr(t0)}, 5, {L}")
    e(f"v_lshl_add_u32 {vr(V_TX)}, {vr(t0)}, 7, {vr(t1)}")
    e(f"v_cmp_gt_u32 vcc, 32, {L}")
    e(f"v_mov_b32 {vr(t2)}, {BAD}")
    e("s_nop 0")
    e(f"v_cndmask_b32 {vr(V_TX+2)}, {vr(t2)}, {vr(V_TX)}, vcc")
    e(f"s_and_b32 {sr(S_T0)}, {sr(S_RB)}, 7")
    e(f"s_lshl_b32 {sr(S_T0)}, {sr(S_T0)}, 3")
    e(f"v_lshrrev_b32 {vr(t0)}, 4, {L}")
    e(f"v_lshlrev_b32 {vr(t3)}, 6, {vr(t0)}")
    e(f"v_bfe_u32 {vr(t1)}, {L}, 1, 3")
    e(f"v_add3_u32 {vr(t3)}, {vr(t3)}, {vr(t1)}, {sr(S_T0)}")
    e(f"s_movk_i32 {sr(S_T1)}, {WROW}")
    e(f"v_mul_lo_u32 {vr(t1)}, {vr(t3)}, {sr(S_T1)}")
    e(f"v_and_b32 {vr(t2)}, 1, {L}")
    e(f"v_lshl_add_u32 {vr(t1)}, {vr(t2)}, 7, {vr(t1)}")
    e(f"s_lshl_b32 {sr(S_T1)}, {sr(S_F0)}, 1")
    e(f"v_add_u32 {vr(V_TW)}, {sr(S_T1)}, {vr(t1)}")
    e(f"v_mov_b32 {vr(t2)}, {BAD}")
    e(f"v_cmp_gt_u32 vcc, 48, {L}")
    e("s_nop 0")
    e(f"v_cndmask_b32 {vr(V_TW+2)}, {vr(t2)}, {vr(V_TW)}, vcc")
    e(f"v_cmp_gt_u32 vcc, 16, {L}")
    e("s_nop 1")
    e(f"v_cndmask_b32 {vr(V_TW+3)}, {vr(t2)}, {vr(V_TW)}, vcc")
    e(f"s_cmp_eq_u32 {sr(S_WAVE)}, 1")
    e(f"s_cselect_b32 {sr(SRD_K)}, {sr(P+14)}, {sr(P+16)}")
    e(f"s_cselect_b32 {sr(SRD_K+1)}, {sr(P+15)}, {sr(P+17)}")
    e(f"s_mov_b32 {sr(SRD_K+2)}, {WBYTES}")
    e(f"s_mov_b32 {sr(SRD_K+3)}, 0x20000")
    NPT = opts.get("npt", 3)
    def touch(stage_lo, nst):
        l1 = A.newlabel("TC"); l2 = A.newlabel("TC")
        e(f"s_cmp_eq_u32 {sr(S_WAVE)}, 0"); e(f"s_cbranch_scc0 {l1}")
        if nst == 1:
            e(f"s_movk_i32 {sr(S_T0)}, {stage_lo*128}")
            e(f"buffer_load_dword {vr(V_DUM)}, {vr(V_TX+2)}, {sr(SRD_Q,4)}, {sr(S_T0)} offen")
        else:
            e(f"s_movk_i32 {sr(S_T0)}, {stage_lo*128}")
            e(f"buffer_load_dword {vr(V_DUM)}, {vr(V_TX)}, {sr(SRD_Q,4)}, {sr(S_T0)} offen")
            e(f"s_movk_i32 {sr(S_T0)}, {(stage_lo+2)*128}")
            e(f"buffer_load_dword {vr(V_DUM)}, {vr(V_TX+2)}, {sr(SRD_Q,4)}, {sr(S_T0)} offen")
        e(f"s_branch {l2}")
        A.label(l1)
        e(f"s_mov_b32 {sr(S_T0)}, {stage_lo*64*WROW}")
        e(f"s_cmp_eq_u32 {sr(S_WAVE)}, 3")
        e(f"s_cselect_b32 {sr(S_T0)}, 0x40000000, {sr(S_T0)}")
        e(f"buffer_load_dword {vr(V_DUM)}, {vr(V_TW+3 if nst == 1 else V_TW+2)}, {sr(SRD_K,4)}, {sr(S_T0)} offen")
        A.label(l2)
    touch(1, 3)
    if opts.get("tfirst", 1): e("s_barrier")
    srd_w_select(S_WAVE)
    dma_stage_g(1, 94, 96, S_X0, S_X1, S_X2, S_X3)
    TOUCH2 = []
    stamp(0)
    def reads(stage, ks, st):
        b = FS[st]; out = []
        slot = stage % 3
        xr, wr, o = (V_XR, V_WR, slot*STAGE) if slot < 2 else (V_XR2, V_WR2, 0)
        out.append(f"ds_read_b128 {vr(b,4)}, {vr(xr+ks)} offset:{o}")
        wa = wr + (3 if ks & 1 else 0)
        for h in range(2): out.append(f"ds_read_b64_tr_b16 {vr(b+8+2*h,2)}, {vr(wa)} offset:{o+ks*3072+h*768}")
        out.append(f"ds_read_b128 {vr(b+4,4)}, {vr(xr+ks)} offset:{o+4096}")
        for i in range(1, 3):
            for h in range(2): out.append(f"ds_read_b64_tr_b16 {vr(b+8+4*i+2*h,2)}, {vr(wa+i)} offset:{o+ks*3072+h*768}")
        return out
    V_SEL = 76; V_CSA = 80
    def kstep(ks, st, nxt, job=()):
        b = FS[st]; mf = []
        for i in range(3):
            for tt in range(2):
                a = ACC + 16*(2*i+tt)
                mf.append((f"v_mfma_f32_32x32x16_bf16 {vr(a,16)}, {vr(b+8+4*i,4)}, {vr(b+4*tt,4)}, {vr(a,16)}", 4))
            if ks % 2 == 0 and not opts.get("nocs"):
                mf.append((f"v_mfma_f32_16x16x32_bf16 {vr(V_CSA+4*i,4)}, {vr(V_SEL,4)}, {vr(b+8+4*i,4)}, {vr(V_CSA+4*i,4)}", 2))
        fill = list(nxt) + list(job)
        cap = sum(c for _, c in mf)
        k = 0; done = 0
        for m, c in mf:
            e(m)
            done += c
            upto = (len(fill) * done + cap - 1) // cap
            for x in fill[k:upto]: e(x)
            k = max(k, upto)
    job_at = {}
    e("s_barrier")
    stamp(1)
    for x in reads(0, 0, 0): e(x)
    for it in range(8):
        for ks in range(4):
            g = 4*it + ks
            if ks == 3 and it < 7:
                e("s_waitcnt vmcnt(1) lgkmcnt(0)" if it == 0 else "s_waitcnt lgkmcnt(0)")
                if opts.get("barstamp"): stamp(24 + it)
                e("s_barrier")
                if opts.get("barstamp"): stamp(32 + it)
            else:
                e("s_waitcnt lgkmcnt(0)")
            if ks == 1 and it + 4 <= 7: touch(it + 4, 1)
            if ks < 3: nxt = reads(it, ks + 1, (g + 1) & 1)
            elif it < 7: nxt = reads(it + 1, 0, (g + 1) & 1)
            else: nxt = []
            kstep(ks, g & 1, nxt, job_at.get(g, []))
        if opts.get("itstamp"): stamp(16 + it)
    stamp(2)
    e("s_nop 7")
    e(f"s_lshl_b32 {sr(S_T0)}, {sr(S_B)}, 1")
    e(f"s_add_u32 {sr(S_T0)}, {sr(S_T0)}, {sr(S_A)}")
    e(f"s_mul_i32 {sr(S_T0)}, {sr(S_T0)}, 384")
    e(f"s_add_u32 {sr(S_T0)}, {sr(S_T0)}, {L_CS}")
    e(f"v_lshlrev_b32 {vr(t0)}, 2, {L}")
    e(f"v_add_u32 {vr(t0)}, {sr(S_T0)}, {vr(t0)}")
    e(f"s_mov_b64 {sr(S_EX,2)}, exec")
    e("s_mov_b64 exec, 0xffff")
    for i in range(3):
        e(f"s_cmp_eq_u32 {sr(S_A)}, 0")
        e(f"s_cselect_b32 {sr(S_T1)}, {i*128}, {(2-i)*128}")
        e(f"v_add_u32 {vr(t1)}, {sr(S_T1)}, {vr(t0)}")
        e(f"ds_write_b32 {vr(t1)}, {vr(80+4*i)}")
        e(f"ds_write_b32 {vr(t1)}, {vr(80+4*i+1)} offset:64")
    e(f"s_mov_b64 exec, {sr(S_EX,2)}")
    e("s_waitcnt lgkmcnt(0)")
    e("s_barrier")
    stamp(3)
    if opts.get("g1only"):
        stamp_flush()
        e("s_endpgm")
    e("s_setprio 2")
    e(f"v_mov_b32 {vr(t0)}, {L_FLAG+32}")
    e(f"ds_read_b32 {vr(t1)}, {vr(t0)}")
    ST = 84
    e(f"v_and_b32 {vr(t2)}, 31, {L}")
    e(f"v_lshlrev_b32 {vr(t2)}, 3, {vr(t2)}")
    e(f"s_lshl_b32 {sr(S_T0)}, {sr(S_A)}, 9")
    e(f"s_add_u32 {sr(S_T0)}, {sr(S_T0)}, {L_STAT}")
    e(f"v_add_u32 {vr(t2)}, {sr(S_T0)}, {vr(t2)}")
    e(f"ds_read_b64 {vr(ST,2)}, {vr(t2)}")
    e(f"ds_read_b64 {vr(ST+2,2)}, {vr(t2)} offset:256")
    CGS = [16, 32, 48]; CG2 = [64, 96, 112]
    e(f"v_lshrrev_b32 {vr(t5)}, 5, {L}")
    e(f"v_lshlrev_b32 {vr(t5)}, 4, {vr(t5)}")
    e(f"s_mul_i32 {sr(S_T0)}, {sr(S_B)}, 768")
    e(f"s_add_u32 {sr(S_T0)}, {sr(S_T0)}, {L_CS}")
    e(f"v_add_u32 {vr(t5)}, {sr(S_T0)}, {vr(t5)}")
    for i in range(3):
        e(f"s_cmp_eq_u32 {sr(S_A)}, 0")
        e(f"s_cselect_b32 {sr(S_T1)}, {i*128}, {(2-i)*128}")
        e(f"v_add_u32 {vr(t0)}, {sr(S_T1)}, {vr(t5)}")
        for rp in range(4): e(f"ds_read_b128 {vr(CGS[i]+4*rp,4)}, {vr(t0)} offset:{32*rp}")
        for rp in range(4): e(f"ds_read_b128 {vr(CG2[i]+4*rp,4)}, {vr(t0)} offset:{384+32*rp}")
    e("s_waitcnt lgkmcnt(0)")
    e(f"v_readfirstlane_b32 {sr(S_NONCE)}, {vr(t1)}")
    C1 = -2.0 * 0.7978845608028654 * 0.044715 * 1.4426950408889634
    C0 = -2.0 * 0.7978845608028654 * 1.4426950408889634
    NMp, K1p, K0p, IRp = [144, 146], [148, 150], [152, 154], [156, 158]
    e(f"s_mov_b32 {sr(S_T4)}, {f2u(C1):#x}")
    e(f"s_mov_b32 {sr(S_T5)}, {f2u(C0):#x}")
    for tt in range(2):
        m, r = ST + 2*tt, ST + 2*tt + 1
        e(f"v_sub_f32 {vr(NMp[tt])}, 0, {vr(m)}")
        e(f"v_mul_f32 {vr(K0p[tt])}, {sr(S_T5)}, {vr(r)}")
        e(f"v_mul_f32 {vr(t3)}, {vr(r)}, {vr(r)}")
        e(f"v_mul_f32 {vr(t4)}, {vr(t3)}, {vr(r)}")
        e(f"v_mul_f32 {vr(K1p[tt])}, {sr(S_T4)}, {vr(t4)}")
        e(f"v_rcp_f32 {vr(IRp[tt])}, {vr(t3)}")
        e("s_nop 1")
        for rr in (NMp, K0p, K1p, IRp): e(f"v_mov_b32 {vr(rr[tt]+1)}, {vr(rr[tt])}")
    for i in range(3):
        for k in range(0, 16, 2): e(f"v_pk_add_f32 {vr(CGS[i]+k,2)}, {vr(CGS[i]+k,2)}, {vr(CG2[i]+k,2)}")
    TT = 128; HP = [136, 140]
    e(f"v_lshlrev_b32 {vr(t4)}, 4, {L}")
    e(f"s_lshl_b32 {sr(S_T1)}, {sr(S_RB)}, 2")
    e(f"s_lshl_b32 {sr(S_T2)}, {sr(S_A)}, 1")
    e(f"s_add_u32 {sr(S_T1)}, {sr(S_T1)}, {sr(S_T2)}")
    e(f"s_mul_i32 {sr(S_T1)}, {sr(S_T1)}, 86")
    e(f"s_lshr_b32 {sr(S_T2)}, {sr(S_F0)}, 4")
    e(f"s_add_u32 {sr(S_T1)}, {sr(S_T1)}, {sr(S_T2)}")
    e(f"s_add_u32 {sr(S_T1)}, {sr(S_T1)}, {sr(S_B)}")
    e(f"s_lshl_b32 {sr(S_T1)}, {sr(S_T1)}, 10")
    e(f"s_add_u32 {sr(S_G2)}, {sr(S_T1)}, {WS_HF}")
    for i in range(3):
        lsk = A.newlabel("EP")
        if i == 1: e(f"s_mov_b32 {sr(S_T0)}, 1")
        else:
            e(f"s_cmp_eq_u32 {sr(S_A)}, 0")
            e(f"s_cselect_b32 {sr(S_T0)}, {i}, {2-i}")
        e(f"s_cmp_ge_u32 {sr(S_T0)}, {sr(S_N32)}")
        e(f"s_cbranch_scc1 {lsk}")
        e(f"s_lshl_b32 {sr(S_T0)}, {sr(S_T0)}, 11")
        e(f"s_add_u32 {sr(S_T1)}, {sr(S_G2)}, {sr(S_T0)}")
        e(f"s_add_u32 {sr(S_T2)}, {sr(S_T1)}, {86*1024}")
        CG = CGS[i]
        for tt in range(2):
            a = ACC + 16*(2*i+tt)
            NM, K1, K0, IR = NMp[tt], K1p[tt], K0p[tt], IRp[tt]
            G = [a+2*k for k in range(4)]; U = [a+8+2*k for k in range(4)]
            cg = [CG+2*k for k in range(4)]; cu = [CG+8+2*k for k in range(4)]
            T = [TT+2*k for k in range(4)]
            for k in range(4): e(f"v_pk_fma_f32 {vr(G[k],2)}, {vr(NM,2)}, {vr(cg[k],2)}, {vr(G[k],2)}")
            for k in range(4): e(f"v_pk_mul_f32 {vr(T[k],2)}, {vr(G[k],2)}, {vr(G[k],2)}")
            for k in range(4): e(f"v_pk_fma_f32 {vr(T[k],2)}, {vr(T[k],2)}, {vr(K1,2)}, {vr(K0,2)}")
            for k in range(4): e(f"v_pk_mul_f32 {vr(T[k],2)}, {vr(T[k],2)}, {vr(G[k],2)}")
            for k in range(4):
                e(f"v_exp_f32 {vr(TT+2*k)}, {vr(TT+2*k)}")
                e(f"v_exp_f32 {vr(TT+2*k+1)}, {vr(TT+2*k+1)}")
                e(f"v_pk_fma_f32 {vr(U[k],2)}, {vr(NM,2)}, {vr(cu[k],2)}, {vr(U[k],2)}")
            for k in range(4): e(f"v_pk_fma_f32 {vr(T[k],2)}, {vr(T[k],2)}, {vr(IR,2)}, {vr(IR,2)}")
            for k in range(4):
                e(f"v_rcp_f32 {vr(TT+2*k)}, {vr(TT+2*k)}")
                e(f"v_rcp_f32 {vr(TT+2*k+1)}, {vr(TT+2*k+1)}")
                e(f"v_pk_mul_f32 {vr(G[k],2)}, {vr(G[k],2)}, {vr(U[k],2)}")
            for k in range(4): e(f"v_pk_mul_f32 {vr(G[k],2)}, {vr(G[k],2)}, {vr(T[k],2)}")
            for k in range(4): e(f"v_cvt_pk_bf16_f32 {vr(HP[tt]+k)}, {vr(G[k])}, {vr(G[k]+1)}")
            A.vmem(f"buffer_store_dwordx4 {vr(HP[tt],4)}, {vr(t4)}, {sr(SRD_WS,4)}, {sr(S_T1 if tt == 0 else S_T2)} offen sc0 sc1", "hst")
        A.label(lsk)
    stamp(4)
    e(f"s_lshl_b32 {sr(S_T0)}, {sr(S_WAVE)}, 2")
    e(f"s_add_u32 {sr(S_T0)}, {sr(S_T0)}, {L_FLAG+48}")
    e(f"v_mov_b32 {vr(t0)}, {sr(S_T0)}")
    e(f"v_mov_b32 {vr(t1)}, 1")
    e(f"ds_write_b32 {vr(t0)}, {vr(t1)}")
    GACC = 160; PH = opts.get('ph', 8); GH = 16; GW = 80
    GACC = 176
    GW = 80
    GA = [168, 240]
    V_AR = 248
    V_HL, V_DO = 254, 255
    S_KU0, S_KUN, S_RA, S_RBB, S_RC, S_H0 = S_G0, S_G1, S_G2, S_G3, S_G4, S_G5
    S_H1, S_OOB, S_DSO, S_ROT, S_HB = S_C0, S_C1, S_X0, S_X1, S_X2
    e(f"s_mul_i32 {sr(S_ROT)}, {sr(S_J)}, {opts.get('rot', 3)}")
    ku_start(S_KU0, S_WAVE)
    e(f"s_cmp_lt_u32 {sr(S_WAVE)}, 2")
    e(f"s_cselect_b32 {sr(S_KUN)}, 22, 21")
    ring_bases(S_WAVE, S_RA, S_RBB, S_RC)
    wd_voffset(V_DO)
    e(f"v_lshrrev_b32 {vr(t0)}, 5, {L}")
    e(f"v_bfe_u32 {vr(t1)}, {L}, 2, 2")
    e(f"v_lshl_add_u32 {vr(t0)}, {vr(t0)}, 2, {vr(t1)}")
    e(f"v_lshlrev_b32 {vr(t0)}, 7, {vr(t0)}")
    e(f"v_bfe_u32 {vr(t2)}, {L}, 4, 1")
    e(f"v_bfe_u32 {vr(t3)}, {L}, 1, 1")
    e(f"v_lshl_add_u32 {vr(t2)}, {vr(t2)}, 1, {vr(t3)}")
    e(f"v_lshlrev_b32 {vr(t2)}, 4, {vr(t2)}")
    e(f"v_and_b32 {vr(t3)}, 1, {L}")
    e(f"v_lshl_add_u32 {vr(t2)}, {vr(t3)}, 3, {vr(t2)}")
    e(f"v_add_u32 {vr(t0)}, {vr(t0)}, {vr(t2)}")
    e(f"v_bfe_u32 {vr(t1)}, {L}, 3, 1")
    e(f"v_lshlrev_b32 {vr(t1)}, 6, {vr(t1)}")
    e(f"v_add_u32 {vr(t2)}, {vr(t0)}, {vr(t1)}")
    e(f"v_xor_b32 {vr(t1)}, 64, {vr(t1)}")
    e(f"v_add_u32 {vr(t3)}, {vr(t0)}, {vr(t1)}")
    for bi, sb in enumerate((S_RA, S_RBB, S_RC)):
        e(f"v_add_u32 {vr(V_AR+2*bi)}, {sr(sb)}, {vr(t2)}")
        e(f"v_add_u32 {vr(V_AR+2*bi+1)}, {sr(sb)}, {vr(t3)}")
    e(f"v_lshlrev_b32 {vr(V_HL)}, 4, {L}")
    e(f"s_mov_b32 {sr(S_OOB)}, 0x20000000")
    e("s_waitcnt vmcnt(0)")
    e(f"s_lshl_b32 {sr(S_T0)}, {sr(S_RB)}, 8")
    e(f"s_lshl_b32 {sr(S_T1)}, {sr(S_CP)}, 4")
    e(f"s_lshl_b32 {sr(S_T2)}, {sr(S_WAVE)}, 2")
    e(f"s_add_u32 {sr(S_T0)}, {sr(S_T0)}, {sr(S_T1)}")
    e(f"s_add_u32 {sr(S_T0)}, {sr(S_T0)}, {sr(S_T2)}")
    e(f"s_add_u32 {sr(S_T0)}, {sr(S_T0)}, {WS_FL+FL_H}")
    flag_set(S_T0, t0)
    stamp(5)
    e(f"s_lshl_b32 {sr(S_T0)}, {sr(S_WAVE)}, 2")
    e(f"s_add_u32 {sr(S_T0)}, {sr(S_T0)}, {L_FLAG+16}")
    lds_spin(S_T0, t0, t1)
    def afrag_reads(n, dst):
        bi, off = ring_off(n); out = []
        for dt in range(2):
            for h in range(2):
                out.append(f"ds_read_b64_tr_b16 {vr(dst+4*dt+2*h,2)}, {vr(V_AR+2*bi+dt)} offset:{off+1024*h}")
        return out
    for n in range(NR):
        for x in afrag_reads(n, GW+8*n): e(x)
        if n % 3 == 2: e("s_waitcnt lgkmcnt(4)")
    e("s_waitcnt lgkmcnt(0)")
    for n in range(NR):
        bi, off = ring_off(n)
        sb = (S_RA, S_RBB, S_RC)[bi]
        wd_soff(NR + n, S_DSO, S_ROT, S_KUN, S_KU0, S_OOB)
        for a in range(2):
            e(f"s_add_u32 m0, {sr(sb)}, {off + 1024*a}")
            if a == 1: e(f"s_add_u32 {sr(S_DSO)}, {sr(S_DSO)}, 8192")
            else: e("s_nop 0")
            A.vmem(f"buffer_load_dwordx4 {vr(V_DO)}, {sr(SRD_WD,4)}, {sr(S_DSO)} offen lds", "WR2")
    for r in range(64): e(f"v_mov_b32 {vr(GACC+r)}, 0")
    stamp(6)
    e(f"s_lshr_b32 {sr(S_T0)}, {sr(S_I2)}, 1")
    e(f"s_lshl_b32 {sr(S_T0)}, {sr(S_T0)}, 8")
    e(f"s_add_u32 {sr(S_T0)}, {sr(S_T0)}, {WS_FL+FL_H}")
    lh1 = A.newlabel("HP"); lh2 = A.newlabel("HP")
    e(f"s_cmp_lg_u32 {sr(S_WAVE)}, 0")
    e(f"s_cbranch_scc1 {lh1}")
    flag_wait_blocking(t1, 1, S_T0, sleep=opts.get('hsleep', 2))
    e(f"v_mov_b32 {vr(t0)}, {L_FLAG+72}")
    e(f"v_mov_b32 {vr(t1)}, 1")
    e(f"ds_write_b32 {vr(t0)}, {vr(t1)}")
    e(f"s_branch {lh2}")
    A.label(lh1)
    e(f"s_mov_b32 {sr(S_T0)}, {L_FLAG+72}")
    lds_spin(S_T0, t1, t0, sleep=1)
    e("s_waitcnt vmcnt(0)")
    A.label(lh2)
    stamp(7)
    e(f"s_lshl_b32 {sr(S_T0)}, {sr(S_I2)}, 1")
    e(f"s_mul_i32 {sr(S_T0)}, {sr(S_T0)}, 86")
    e(f"s_add_u32 {sr(S_T0)}, {sr(S_T0)}, {sr(S_KU0)}")
    e(f"s_lshl_b32 {sr(S_T0)}, {sr(S_T0)}, 10")
    e(f"s_add_u32 {sr(S_HB)}, {sr(S_T0)}, {WS_HF}")
    A.vm = []
    def hload(n):
        hb = GH + 8*(n % PH)
        unit_at(n, S_H0, S_ROT, S_KUN)
        e(f"s_cselect_b32 {sr(S_T5)}, 1, 0")
        e(f"s_lshl_b32 {sr(S_H0)}, {sr(S_H0)}, 10")
        e(f"s_add_u32 {sr(S_H0)}, {sr(S_H0)}, {sr(S_HB)}")
        e(f"s_cmp_eq_u32 {sr(S_T5)}, 1")
        e(f"s_cselect_b32 {sr(S_H0)}, {sr(S_H0)}, {sr(S_OOB)}")
        e(f"s_add_u32 {sr(S_H1)}, {sr(S_H0)}, {86*1024}")
        A.vmem(f"buffer_load_dwordx4 {vr(hb,4)}, {vr(V_HL)}, {sr(SRD_WS,4)}, {sr(S_H0)} offen{HSC}", f"H{n}")
        A.vmem(f"buffer_load_dwordx4 {vr(hb+4,4)}, {vr(V_HL)}, {sr(SRD_WS,4)}, {sr(S_H1)} offen{HSC}", f"H{n}")
    for n in range(PH): hload(n)
    for n in range(22):
        hb = GH + 8*(n % PH)
        if n < NR: aw = GW + 8*n
        else: aw = GA[n & 1]
        if n + 1 >= NR and n + 1 < 22:
            for x in afrag_reads(n + 1 - NR, GA[(n+1) & 1]): e(x)
        A.wait_vm(f"H{n}")
        if n >= NR: e("s_waitcnt lgkmcnt(4)" if n + 1 < 22 else "s_waitcnt lgkmcnt(0)")
        e(f"v_mfma_f32_32x32x16_bf16 {vr(GACC,16)}, {vr(aw,4)}, {vr(hb,4)}, {vr(GACC,16)}")
        e(f"v_mfma_f32_32x32x16_bf16 {vr(GACC+16,16)}, {vr(aw,4)}, {vr(hb+4,4)}, {vr(GACC+16,16)}")
        e(f"v_mfma_f32_32x32x16_bf16 {vr(GACC+32,16)}, {vr(aw+4,4)}, {vr(hb,4)}, {vr(GACC+32,16)}")
        e(f"v_mfma_f32_32x32x16_bf16 {vr(GACC+48,16)}, {vr(aw+4,4)}, {vr(hb+4,4)}, {vr(GACC+48,16)}")
        if n + PH < 22: hload(n + PH)
        if n == opts.get("yun", 12):
            e(f"v_mov_b32 {vr(t0)}, {L_FLAG+64}")
            e(f"v_mov_b32 {vr(t1)}, 1")
            e(f"ds_write_b32 {vr(t0)}, {vr(t1)}")
        if opts.get("g2stamp") and n % 2 == 1: stamp(32 + n // 2)
    stamp(8)
    e("s_nop 7")
    e(f"v_and_b32 {vr(t0)}, 31, {L}")
    e(f"v_lshrrev_b32 {vr(t1)}, 5, {L}")
    e(f"v_mul_u32_u24 {vr(t0)}, 272, {vr(t0)}")
    e(f"v_lshl_add_u32 {vr(t0)}, {vr(t1)}, 4, {vr(t0)}")
    e(f"v_add_u32 {vr(t1)}, {sr(S_RBB)}, {vr(t0)}")
    e(f"v_add_u32 {vr(t0)}, {sr(S_RA)}, {vr(t0)}")
    for dt in range(2):
        for tt in range(2):
            for rp in range(4):
                a = GACC + 16*(2*dt+tt) + 4*rp
                e(f"ds_write_b128 {vr(t0 if tt == 0 else t1)}, {vr(a,4)} offset:{dt*128 + rp*32}")
    e("s_branch L_FINAL")

    A.label("L_HELPER")
    A.vm = ["code"]
    if opts.get("g1only"):
        for _ in range(10): e("s_barrier")
        e("s_endpgm")
    S_LW = S_A
    e(f"s_sub_u32 {sr(S_LW)}, {sr(S_WAVE)}, 4")
    V_XO, V_WO, V_L16, V_TO, V_DO2 = 16, 18, 21, 22, 23
    S_XSO, S_WSO, S_M0X, S_M0W = S_G0, S_G1, S_G3, S_G4
    BAD = 0x7fffff00
    e(f"v_lshlrev_b32 {vr(V_L16)}, 4, {L}")
    loader_setup(S_LW, V_XO, V_WO, S_M0X, S_M0W)
    S_ROW = S_G5
    e(f"s_lshl_b32 {sr(S_ROW)}, {sr(S_RB)}, 7")
    e(f"s_lshl_b32 {sr(S_T0)}, {sr(S_CP)}, 3")
    e(f"s_add_u32 {sr(S_ROW)}, {sr(S_ROW)}, {sr(S_T0)}")
    e(f"s_lshl_b32 {sr(S_T0)}, {sr(S_LW)}, 1")
    e(f"s_add_u32 {sr(S_ROW)}, {sr(S_ROW)}, {sr(S_T0)}")
    e(f"v_lshrrev_b32 {vr(t0)}, 3, {L}")
    e(f"v_and_b32 {vr(t1)}, 7, {L}")
    e(f"v_lshrrev_b32 {vr(t2)}, 4, {L}")
    e(f"s_and_b32 {sr(S_T1)}, {sr(S_LW)}, 1")
    e(f"s_lshl_b32 {sr(S_T1)}, {sr(S_T1)}, 2")
    e(f"v_add_u32 {vr(t2)}, {sr(S_T1)}, {vr(t2)}")
    e(f"v_xor_b32 {vr(t1)}, {vr(t1)}, {vr(t2)}")
    e(f"v_lshlrev_b32 {vr(t1)}, 4, {vr(t1)}")
    e(f"v_lshl_add_u32 {vr(t1)}, {vr(t0)}, 10, {vr(t1)}")
    e(f"s_lshl_b32 {sr(S_T1)}, {sr(S_J)}, 7")
    e(f"v_add_u32 {vr(V_TO)}, {sr(S_T1)}, {vr(t1)}")
    wd_voffset(V_DO2)
    e("s_waitcnt lgkmcnt(0)")
    srd(SRD_Q, 0, 2 << 20)
    srd_w_select(S_LW)
    stamp(0)
    def dma_stage(s): dma_stage_g(s, V_XO, V_WO, S_M0X, S_M0W, S_XSO, S_WSO)
    SX = 24; V_NL = 33; V_SL = 116; V_SLA = 34; V_FL = 114; V_DUM = 32
    e(f"s_lshl_b32 {sr(S_T0)}, {sr(S_ROW)}, 10")
    A.vmem(f"buffer_load_dwordx4 {vr(SX,4)}, {vr(V_L16)}, {sr(SRD_Q,4)}, {sr(S_T0)} offen", "SX")
    A.vmem(f"buffer_load_dwordx4 {vr(SX+4,4)}, {vr(V_L16)}, {sr(SRD_Q,4)}, {sr(S_T0)} offen offset:1024", "SX")
    srd(SRD_DBG, 11, 256)
    lnn = A.newlabel("NN")
    e(f"s_cmp_lg_u32 {sr(S_WG)}, 0")
    e(f"s_cbranch_scc1 {lnn}")
    e(f"s_cmp_lg_u32 {sr(S_WAVE)}, 4")
    e(f"s_cbranch_scc1 {lnn}")
    e(f"s_memrealtime {sr(S_T0,2)}")
    e("s_waitcnt lgkmcnt(0)")
    e(f"s_or_b32 {sr(S_T0)}, {sr(S_T0)}, 1")
    e(f"v_mov_b32 {vr(t0)}, {sr(S_T0)}")
    e(f"buffer_store_dword {vr(t0)}, off, {sr(SRD_DBG,4)}, 0 sc0 sc1")
    A.label(lnn)
    if opts.get("tfirst", 1): e("s_barrier")
    dma_stage(0)
    if not opts.get("tfirst", 1): e("s_barrier")
    srd(SRD_K, 1, 2 << 20); srd(SRD_V, 2, 2 << 20)
    srd(SRD_WS, 12, 0x10000000); srd(SRD_WD, 9, WBYTES)
    def tiles():
        e(f"s_lshl_b32 {sr(S_T0)}, {sr(S_I2)}, 16")
        for srd_, base in ((SRD_K, L_KT), (SRD_V, L_VT)):
            for gi in range(2):
                e(f"s_add_u32 {sr(S_T1)}, {sr(S_LW)}, {4*gi}")
                e(f"s_lshl_b32 {sr(S_T2)}, {sr(S_T1)}, 13")
                e(f"s_add_u32 {sr(S_T2)}, {sr(S_T2)}, {sr(S_T0)}")
                e(f"s_lshl_b32 {sr(S_T1)}, {sr(S_T1)}, 10")
                e(f"s_add_u32 m0, {sr(S_T1)}, {base}")
                e("s_nop 0")
                A.vmem(f"buffer_load_dwordx4 {vr(V_TO)}, {sr(srd_,4)}, {sr(S_T2)} offen lds", "P")
    S_CIDX = S_C1
    HK = [88, 96]; HPB = 112
    def hk_loads():
        e(f"s_lshl_b32 {sr(S_T0)}, {sr(S_WG)}, 1")
        e(f"s_add_u32 {sr(S_T0)}, {sr(S_T0)}, {sr(S_CIDX)}")
        e(f"s_lshl_b32 {sr(S_T0)}, {sr(S_T0)}, 12")
        e(f"s_add_u32 {sr(SRD_SK)}, {sr(P+8)}, {sr(S_T0)}")
        e(f"s_addc_u32 {sr(SRD_SK+1)}, {sr(P+9)}, 0")
        e(f"s_mov_b32 {sr(SRD_SK+2)}, 4096")
        e(f"s_mov_b32 {sr(SRD_SK+3)}, 0x20000")
        e(f"s_and_b32 {sr(S_T1)}, {sr(S_LW)}, 1")
        e(f"s_lshl_b32 {sr(S_T1)}, {sr(S_T1)}, 11")
        for y in range(2):
            e(f"s_add_u32 {sr(S_T2)}, {sr(S_T1)}, {1024*y}")
            A.vmem(f"buffer_load_dwordx4 {vr(HK[y],4)}, {vr(V_L16)}, {sr(SRD_SK,4)}, {sr(S_T2)} offen", "HK")
            A.vmem(f"buffer_load_dwordx2 {vr(HK[y]+4,2)}, {vr(V_L16)}, {sr(SRD_SK,4)}, {sr(S_T2)} offen offset:16", "HK")
        e(f"v_cmp_eq_u32 vcc, 1, {L}")
        e(f"v_mov_b32 {vr(t5)}, 0x10000")
        e("s_nop 0")
        e(f"v_cndmask_b32 {vr(t5)}, {vr(t5)}, 0, vcc")
        A.vmem(f"buffer_load_dwordx2 {vr(HPB,2)}, {vr(t5)}, {sr(SRD_SK,4)}, 0 offen", "HK")
    def wd_touch():
        e(f"s_mul_i32 {sr(S_T0)}, {sr(S_WG)}, {43*128}")
        e(f"s_mul_i32 {sr(S_T1)}, {sr(S_LW)}, 11")
        e(f"v_add_u32 {vr(t4)}, {sr(S_T1)}, {L}")
        e(f"v_cmp_gt_u32 vcc, 11, {L}")
        e(f"v_lshlrev_b32 {vr(t4)}, 7, {vr(t4)}")
        e(f"v_add_u32 {vr(t4)}, {sr(S_T0)}, {vr(t4)}")
        e(f"v_mov_b32 {vr(t5)}, {BAD}")
        e(f"v_cndmask_b32 {vr(t4)}, {vr(t5)}, {vr(t4)}, vcc")
        A.vmem(f"buffer_load_dword {vr(V_DUM)}, {vr(t4)}, {sr(SRD_WD,4)}, 0 offen", "T2")
    e(f"s_lshr_b32 {sr(S_CIDX)}, {sr(S_LW)}, 1")
    PPOS = opts.get("ppos", -1)
    if PPOS < 0: tiles()
    A.vmem(f"buffer_load_dword {vr(V_NL)}, off, {sr(SRD_DBG,4)}, 0 sc1", "NL")
    e(f"v_lshlrev_b32 {vr(t0)}, 2, {L}")
    e(f"v_add_u32 {vr(t0)}, {L_FLAG}, {vr(t0)}")
    e(f"v_mov_b32 {vr(t1)}, 0")
    e(f"s_mov_b64 {sr(S_EX,2)}, exec")
    e("s_mov_b64 exec, 0xfffffff")
    e(f"ds_write_b32 {vr(t0)}, {vr(t1)}")
    e(f"s_mov_b64 exec, {sr(S_EX,2)}")
    A.wait_vm("SX")
    XU = 120; SA = 136
    for rr in range(2):
        for k in range(4):
            e(f"v_lshlrev_b32 {vr(XU+8*rr+2*k)}, 16, {vr(SX+4*rr+k)}")
            e(f"v_and_b32 {vr(XU+8*rr+2*k+1)}, 0xffff0000, {vr(SX+4*rr+k)}")
    def wave_reduce(regs):
        for sh in ("row_shr:1", "row_shr:2", "row_shr:4", "row_shr:8"):
            for r in regs: e(f"v_add_f32_dpp {vr(r)}, {vr(r)}, {vr(r)} {sh} row_mask:0xf bank_mask:0xf bound_ctrl:0")
            e("s_nop 0")
        for r in regs: e(f"v_add_f32_dpp {vr(r)}, {vr(r)}, {vr(r)} row_bcast:15 row_mask:0xa bank_mask:0xf")
        e("s_nop 0")
        for r in regs: e(f"v_add_f32_dpp {vr(r)}, {vr(r)}, {vr(r)} row_bcast:31 row_mask:0xc bank_mask:0xf")
        e("s_nop 1")
    for k in range(1, 8):
        for rr in range(2):
            b = XU + 8*rr
            if k == 1: e(f"v_add_f32 {vr(SA+rr)}, {vr(b)}, {vr(b+1)}")
            else: e(f"v_add_f32 {vr(SA+rr)}, {vr(SA+rr)}, {vr(b+k)}")
    e("s_nop 1")
    wave_reduce([SA, SA+1])
    e(f"v_readlane_b32 {sr(S_T0)}, {vr(SA)}, 63")
    e(f"v_readlane_b32 {sr(S_T1)}, {vr(SA+1)}, 63")
    e(f"v_mov_b32 {vr(SA+2)}, 0x3b000000")
    e("s_nop 0")
    e(f"v_mul_f32 {vr(SA+4)}, {sr(S_T0)}, {vr(SA+2)}")
    e(f"v_mul_f32 {vr(SA+5)}, {sr(S_T1)}, {vr(SA+2)}")
    for k in range(8):
        for rr in range(2): e(f"v_sub_f32 {vr(XU+8*rr+k)}, {vr(XU+8*rr+k)}, {vr(SA+4+rr)}")
    for k in range(8):
        for rr in range(2):
            b = XU + 8*rr
            if k == 0: e(f"v_mul_f32 {vr(SA+rr)}, {vr(b)}, {vr(b)}")
            else: e(f"v_fma_f32 {vr(SA+rr)}, {vr(b+k)}, {vr(b+k)}, {vr(SA+rr)}")
    e("s_nop 1")
    wave_reduce([SA, SA+1])
    e(f"v_readlane_b32 {sr(S_T0)}, {vr(SA)}, 63")
    e(f"v_readlane_b32 {sr(S_T1)}, {vr(SA+1)}, 63")
    e(f"v_cmp_eq_u32 vcc, 1, {L}")
    e("s_nop 0")
    e(f"v_mov_b32 {vr(SA)}, {sr(S_T0)}")
    e(f"v_mov_b32 {vr(SA+1)}, {sr(S_T1)}")
    e(f"v_cndmask_b32 {vr(SA)}, {vr(SA)}, {vr(SA+1)}, vcc")
    e(f"v_cndmask_b32 {vr(SA+4)}, {vr(SA+4)}, {vr(SA+5)}, vcc")
    e(f"v_mul_f32 {vr(SA)}, {vr(SA)}, {vr(SA+2)}")
    e(f"v_cvt_pk_bf16_f32 {vr(SA)}, {vr(SA)}, {vr(SA)}")
    e(f"v_lshlrev_b32 {vr(SA)}, 16, {vr(SA)}")
    e(f"v_add_f32 {vr(SA)}, 0x3727c5ac, {vr(SA)}")
    e(f"v_cvt_pk_bf16_f32 {vr(SA)}, {vr(SA)}, {vr(SA)}")
    e(f"v_lshlrev_b32 {vr(SA)}, 16, {vr(SA)}")
    e(f"v_sqrt_f32 {vr(SA)}, {vr(SA)}")
    e("s_nop 0")
    V_STP = 110
    e(f"v_cvt_pk_bf16_f32 {vr(V_STP)}, {vr(SA+4)}, {vr(SA)}")
    A.wait_vm("S0")
    e("s_waitcnt lgkmcnt(0)")
    e("s_barrier")
    stamp(1)
    def it_end(it, stages, waits=()):
        if opts.get("barstamp"): stamp(24 + it)
        if waits: A.wait_vm(*waits)
        e("s_waitcnt lgkmcnt(0)")
        if opts.get("barstamp"): stamp(32 + it)
        e("s_barrier")
        if opts.get("barstamp"): stamp(40 + it)
        for st_ in stages: st_()
        if opts.get("barstamp"): stamp(48 + it)
    def job_nonce_sts():
        lok = A.newlabel("NOK"); lre = A.newlabel("NRE")
        e(f"s_mov_b32 {sr(S_T3)}, 0x40000")
        A.label(lre)
        e(f"v_readfirstlane_b32 {sr(S_NONCE)}, {vr(V_NL)}")
        e("s_nop 3")
        e(f"s_cmp_lg_u32 {sr(S_NONCE)}, 0")
        e(f"s_cbranch_scc1 {lok}")
        e(f"s_sub_u32 {sr(S_T3)}, {sr(S_T3)}, 1")
        e(f"s_cmp_eq_u32 {sr(S_T3)}, 0")
        e(f"s_cbranch_scc1 {lok}")
        e("s_sleep 2")
        e(f"buffer_load_dword {vr(V_NL)}, off, {sr(SRD_DBG,4)}, 0 sc1")
        e("s_waitcnt vmcnt(0)")
        e(f"s_branch {lre}")
        A.label(lok)
        e(f"v_mov_b32 {vr(t0)}, {L_FLAG+32}")
        e(f"v_mov_b32 {vr(V_STP+1)}, {sr(S_NONCE)}")
        e(f"ds_write_b32 {vr(t0)}, {vr(V_STP+1)}")
        e(f"s_lshl_b32 {sr(S_T0)}, {sr(S_ROW)}, 3")
        e(f"s_add_u32 {sr(S_T0)}, {sr(S_T0)}, {WS_ST}")
        e(f"v_lshlrev_b32 {vr(t0)}, 3, {L}")
        e(f"s_mov_b64 {sr(S_EX,2)}, exec")
        e("s_mov_b64 exec, 3")
        A.vmem(f"buffer_store_dwordx2 {vr(V_STP,2)}, {vr(t0)}, {sr(SRD_WS,4)}, {sr(S_T0)} offen sc0 sc1", "STS")
        e(f"s_mov_b64 exec, {sr(S_EX,2)}")
    T = 128
    def job_tr_store():
        e(f"v_and_b32 {vr(t0)}, 3, {L}")
        e(f"v_bfe_u32 {vr(t1)}, {L}, 4, 1")
        e(f"v_lshl_add_u32 {vr(t0)}, {vr(t1)}, 2, {vr(t0)}")
        e(f"v_lshlrev_b32 {vr(t0)}, 3, {vr(t0)}")
        e(f"v_bfe_u32 {vr(t1)}, {L}, 2, 2")
        e(f"v_sub_u32 {vr(t0)}, {vr(t0)}, {vr(t1)}")
        e(f"v_add_u32 {vr(t0)}, 7, {vr(t0)}")
        e(f"v_lshrrev_b32 {vr(t3)}, 5, {L}")
        e(f"v_lshlrev_b32 {vr(t3)}, 3, {vr(t3)}")
        e(f"s_lshl_b32 {sr(S_T0)}, {sr(S_LW)}, 1")
        for h in range(2):
            if h == 1: e(f"v_subrev_u32 {vr(t0)}, 4, {vr(t0)}")
            e(f"v_bfe_u32 {vr(t1)}, {vr(t0)}, 1, 3")
            e(f"v_xor_b32 {vr(t1)}, {sr(S_T0)}, {vr(t1)}")
            e(f"v_lshlrev_b32 {vr(t1)}, 4, {vr(t1)}")
            e(f"v_lshl_add_u32 {vr(t1)}, {vr(t0)}, 7, {vr(t1)}")
            e(f"v_add_u32 {vr(t1)}, {vr(t1)}, {vr(t3)}")
            e(f"v_add_u32 {vr(t1)}, {L_KT}, {vr(t1)}")
            e(f"v_xor_b32 {vr(t2)}, 16, {vr(t1)}")
            for x, a in ((0, t1), (1, t2)):
                e(f"ds_read_b64_tr_b16 {vr(T+4*x+2*h,2)}, {vr(a)}")
                e(f"ds_read_b64_tr_b16 {vr(T+8+4*x+2*h,2)}, {vr(a)} offset:{L_VT-L_KT}")
        e(f"v_and_b32 {vr(t1)}, 3, {L}")
        e(f"v_lshrrev_b32 {vr(t2)}, 5, {L}")
        e(f"v_lshl_add_u32 {vr(t1)}, {vr(t2)}, 2, {vr(t1)}")
        e(f"v_lshlrev_b32 {vr(t1)}, 12, {vr(t1)}")
        e(f"v_bfe_u32 {vr(t2)}, {L}, 2, 3")
        e(f"v_lshlrev_b32 {vr(t2)}, 4, {vr(t2)}")
        e(f"v_sub_u32 {vr(t1)}, {vr(t1)}, {vr(t2)}")
        e(f"v_add_u32 {vr(t1)}, 4080, {vr(t1)}")
        e(f"s_lshl_b32 {sr(S_T0)}, {sr(S_J)}, 6")
        e(f"s_lshl_b32 {sr(S_T1)}, {sr(S_LW)}, 4")
        e(f"s_add_u32 {sr(S_T0)}, {sr(S_T0)}, {sr(S_T1)}")
        e(f"s_lshl_b32 {sr(S_T0)}, {sr(S_T0)}, 12")
        e(f"s_lshl_b32 {sr(S_T1)}, {sr(S_I2)}, 7")
        e(f"s_sub_u32 {sr(S_T0)}, {sr(S_T0)}, {sr(S_T1)}")
        e(f"v_add_u32 {vr(t1)}, {sr(S_T0)}, {vr(t1)}")
        e(f"v_add_u32 {vr(t2)}, {8*4096}, {vr(t1)}")
        e(f"s_mov_b32 {sr(S_T0)}, {WS_VT}")
        e("s_waitcnt lgkmcnt(0)")
        A.vmem(f"buffer_store_dwordx4 {vr(T,4)}, {vr(t1)}, {sr(SRD_WS,4)}, 0 offen sc0 sc1", "KVS")
        A.vmem(f"buffer_store_dwordx4 {vr(T+4,4)}, {vr(t2)}, {sr(SRD_WS,4)}, 0 offen sc0 sc1", "KVS")
        A.vmem(f"buffer_store_dwordx4 {vr(T+8,4)}, {vr(t1)}, {sr(SRD_WS,4)}, {sr(S_T0)} offen sc0 sc1", "KVS")
        A.vmem(f"buffer_store_dwordx4 {vr(T+12,4)}, {vr(t2)}, {sr(SRD_WS,4)}, {sr(S_T0)} offen sc0 sc1", "KVS")
    S_STO = S_X3
    def job_sl():
        e(f"s_lshl_b32 {sr(S_STO)}, {sr(S_RB)}, 7")
        e(f"s_lshl_b32 {sr(S_T1)}, {sr(S_LW)}, 5")
        e(f"s_add_u32 {sr(S_STO)}, {sr(S_STO)}, {sr(S_T1)}")
        e(f"s_lshl_b32 {sr(S_STO)}, {sr(S_STO)}, 3")
        e(f"s_add_u32 {sr(S_STO)}, {sr(S_STO)}, {WS_ST}")
        e(f"v_and_b32 {vr(V_SLA)}, 31, {L}")
        e(f"v_lshlrev_b32 {vr(V_SLA)}, 3, {vr(V_SLA)}")
        A.vmem(f"buffer_load_dwordx2 {vr(V_SL,2)}, {vr(V_SLA)}, {sr(SRD_WS,4)}, {sr(S_STO)} offen sc1", "SL")
    def job_kvf():
        A.wait_vm("KVS")
        e(f"s_lshl_b32 {sr(S_T0)}, {sr(S_J)}, 9")
        e(f"s_lshl_b32 {sr(S_T1)}, {sr(S_I2)}, 4")
        e(f"s_lshl_b32 {sr(S_T2)}, {sr(S_LW)}, 2")
        e(f"s_add_u32 {sr(S_T0)}, {sr(S_T0)}, {sr(S_T1)}")
        e(f"s_add_u32 {sr(S_T0)}, {sr(S_T0)}, {sr(S_T2)}")
        e(f"s_add_u32 {sr(S_T0)}, {sr(S_T0)}, {WS_FL+FL_KV}")
        flag_set(S_T0, t0)
    S_C, S_KVO, S_W, S_OKF = 62, 63, 64, 70
    def job_conv_scalars():
        e(f"s_lshl_b32 {sr(S_C)}, {sr(S_WG)}, 1")
        e(f"s_add_u32 {sr(S_C)}, {sr(S_C)}, {sr(S_CIDX)}")
        e(f"s_lshr_b32 {sr(S_KVO)}, {sr(S_C)}, 6")
        e(f"s_lshl_b32 {sr(S_KVO)}, {sr(S_KVO)}, 9")
        e(f"s_add_u32 {sr(S_KVO)}, {sr(S_KVO)}, {WS_FL+FL_KV}")
        e(f"s_lshl_b32 {sr(S_T0)}, {sr(S_C)}, 3")
        e(f"s_load_dwordx2 {sr(S_W,2)}, {sr(P+6,2)}, {sr(S_T0)}")
        e("s_waitcnt lgkmcnt(0)")
        e(f"s_and_b32 {sr(S_W+3)}, {sr(S_W+1)}, 0xffff0000")
        e(f"s_lshl_b32 {sr(S_W+2)}, {sr(S_W+1)}, 16")
        e(f"s_and_b32 {sr(S_W+1)}, {sr(S_W)}, 0xffff0000")
        e(f"s_lshl_b32 {sr(S_W)}, {sr(S_W)}, 16")
    def job_statchk():
        A.wait_vm("SL")
        lsr = A.newlabel("SR"); lso = A.newlabel("SO")
        e(f"s_mov_b32 {sr(S_T3)}, 0x40000")
        A.label(lsr)
        e(f"v_cmp_eq_u32 vcc, {sr(S_NONCE)}, {vr(V_SL+1)}")
        e("s_nop 1")
        e("s_cmp_eq_u64 vcc, -1")
        e(f"s_cbranch_scc1 {lso}")
        e(f"s_sub_u32 {sr(S_T3)}, {sr(S_T3)}, 1")
        e(f"s_cmp_eq_u32 {sr(S_T3)}, 0")
        e(f"s_cbranch_scc1 {lso}")
        e("s_sleep 2")
        e(f"buffer_load_dwordx2 {vr(V_SL,2)}, {vr(V_SLA)}, {sr(SRD_WS,4)}, {sr(S_STO)} offen sc1")
        e("s_waitcnt vmcnt(0)")
        e(f"s_branch {lsr}")
        A.label(lso)
        e(f"v_and_b32 {vr(t1)}, 0xffff0000, {vr(V_SL)}")
        e(f"v_lshlrev_b32 {vr(V_SL)}, 16, {vr(V_SL)}")
        e(f"v_rcp_f32 {vr(V_SL+1)}, {vr(t1)}")
        e(f"s_lshl_b32 {sr(S_T0)}, {sr(S_LW)}, 8")
        e(f"s_add_u32 {sr(S_T0)}, {sr(S_T0)}, {L_STAT}")
        e(f"v_add_u32 {vr(t0)}, {sr(S_T0)}, {vr(V_SLA)}")
        e("s_nop 0")
        e(f"ds_write_b64 {vr(t0)}, {vr(V_SL,2)}")
    KR, VR = 128, 160
    def job_row_srds():
        e(f"s_lshl_b32 {sr(S_T0)}, {sr(S_C)}, 12")
        e(f"s_add_u32 {sr(SRD_K)}, {sr(P+24)}, {sr(S_T0)}")
        e(f"s_addc_u32 {sr(SRD_K+1)}, {sr(P+25)}, 0")
        e(f"s_mov_b32 {sr(SRD_K+2)}, 4096")
        e(f"s_mov_b32 {sr(SRD_K+3)}, 0x20000")
        e(f"s_add_u32 {sr(S_T0)}, {sr(S_T0)}, {WS_VT}")
        e(f"s_add_u32 {sr(SRD_V)}, {sr(P+24)}, {sr(S_T0)}")
        e(f"s_addc_u32 {sr(SRD_V+1)}, {sr(P+25)}, 0")
        e(f"s_mov_b32 {sr(SRD_V+2)}, 4096")
        e(f"s_mov_b32 {sr(SRD_V+3)}, 0x20000")
    def uk_loads(track):
        for q in range(4):
            if track:
                e(f"s_cmp_eq_u32 {sr(S_OKF)}, 1")
                e(f"s_cselect_b32 {sr(S_T2)}, {1024*q}, 0x40000000" if q == 0 else f"s_cselect_b32 {sr(S_T2)}, {sr(S_T1)}, {sr(S_T3)}")
                if q < 3:
                    e(f"s_movk_i32 {sr(S_T1)}, {1024*(q+1)}")
                    e(f"s_mov_b32 {sr(S_T3)}, 0x40000000")
            else:
                e(f"s_movk_i32 {sr(S_T2)}, {1024*q}")
            for txt in (f"buffer_load_dwordx4 {vr(KR+8*q,4)}, {vr(V_L16)}, {sr(SRD_K,4)}, {sr(S_T2)} offen{USC}",
                        f"buffer_load_dwordx2 {vr(KR+8*q+4,2)}, {vr(V_L16)}, {sr(SRD_K,4)}, {sr(S_T2)} offen offset:16{USC}",
                        f"buffer_load_dwordx4 {vr(VR+4*q,4)}, {vr(V_L16)}, {sr(SRD_V,4)}, {sr(S_T2)} offen{USC}"):
                if track: A.vmem(txt, "UK")
                else: e(txt)
    def job_pkv_check():
        A.wait_vm("PKV")
        flag_check_scc(V_FL, 2)
        e(f"s_cselect_b32 {sr(S_OKF)}, 1, 0")
        uk_loads(True)
    E = 36
    def kv_chunk(q):
        D = KR + 8*q; V = VR + 4*q
        for i in range(11):
            src = D + (i >> 1)
            e(f"v_and_b32 {vr(E+i)}, 0xffff0000, {vr(src)}" if i & 1 else f"v_lshlrev_b32 {vr(E+i)}, 16, {vr(src)}")
        for i in range(8):
            src = V + (i >> 1)
            e(f"v_and_b32 {vr(E+11+i)}, 0xffff0000, {vr(src)}" if i & 1 else f"v_lshlrev_b32 {vr(E+11+i)}, 16, {vr(src)}")
        for i in range(8): e(f"v_mul_f32 {vr(56+i)}, {sr(S_W+3)}, {vr(E+i+3)}")
        for i in range(8): e(f"v_fma_f32 {vr(56+i)}, {vr(E+i+2)}, {sr(S_W+2)}, {vr(56+i)}")
        for i in range(8): e(f"v_fma_f32 {vr(56+i)}, {vr(E+i+1)}, {sr(S_W+1)}, {vr(56+i)}")
        for i in range(8): e(f"v_fma_f32 {vr(56+i)}, {vr(E+i)}, {sr(S_W)}, {vr(56+i)}")
        for i in range(8): e(f"v_mul_f32 {vr(56+i)}, {vr(56+i)}, {vr(E+11+i)}")
        for k in range(4): e(f"v_cvt_pk_bf16_f32 {vr(D+k)}, {vr(56+2*k)}, {vr(56+2*k+1)}")
    S_DSO2, S_RA, S_RBB, S_RC = S_G4, S_X0, S_X1, S_X2
    S_KU2, S_KUN2, S_ROT2, S_OOB2 = 61, S_C0, S_G5, 60
    def job_wd_setup():
        ku_start(S_KU2, S_LW)
        e(f"s_cmp_lt_u32 {sr(S_LW)}, 2")
        e(f"s_cselect_b32 {sr(S_KUN2)}, 22, 21")
        e(f"s_mul_i32 {sr(S_ROT2)}, {sr(S_J)}, {opts.get('rot', 3)}")
        e(f"s_mov_b32 {sr(S_OOB2)}, 0x20000000")
        ring_bases(S_LW, S_RA, S_RBB, S_RC)
    def wd_dma(n):
        bi, off = ring_off(n); sb = (S_RA, S_RBB, S_RC)[bi]
        wd_soff(n, S_DSO2, S_ROT2, S_KUN2, S_KU2, S_OOB2)
        for a in range(2):
            e(f"s_add_u32 m0, {sr(sb)}, {off + 1024*a}")
            if a == 1: e(f"s_add_u32 {sr(S_DSO2)}, {sr(S_DSO2)}, 8192")
            else: e("s_nop 0")
            A.vmem(f"buffer_load_dwordx4 {vr(V_DO2)}, {sr(SRD_WD,4)}, {sr(S_DSO2)} offen lds", "WDP")
    def hk(w, addr, extra):
        O1, O2, O3 = 116, 120, 124
        for j in range(4):
            e(f"v_alignbit_b32 {vr(O1+j)}, {vr(w+j+1)}, {vr(w+j)}, 16")
            e(f"v_mov_b32 {vr(O2+j)}, {vr(w+j+1)}")
            e(f"v_alignbit_b32 {vr(O3+j)}, {vr(w+j+2)}, {vr(w+j+1)}, 16")
        e(f"ds_write_b128 {vr(addr)}, {vr(w,4)} offset:{extra}")
        e(f"ds_write_b128 {vr(addr)}, {vr(O1,4)} offset:{extra+HCOPY}")
        e(f"ds_write_b128 {vr(addr)}, {vr(O2,4)} offset:{extra+2*HCOPY}")
        e(f"ds_write_b128 {vr(addr)}, {vr(O3,4)} offset:{extra+3*HCOPY}")
        e("s_nop 1")
    S_RH, S_UB = 71, 3
    V_PF = 30
    def job_hankel():
        e(f"s_and_b32 {sr(S_RH)}, {sr(S_LW)}, 1")
        e(f"s_mul_i32 {sr(S_T0)}, {sr(S_CIDX)}, {HCH}")
        e(f"s_add_u32 {sr(S_T0)}, {sr(S_T0)}, {L_HANK}")
        e(f"s_lshl_b32 {sr(S_T1)}, {sr(S_RH)}, 11")
        e(f"s_add_u32 {sr(S_T1)}, {sr(S_T1)}, {sr(S_T0)}")
        e(f"v_add_u32 {vr(27)}, {sr(S_T0)}, {vr(V_L16)}")
        e(f"v_add_u32 {vr(28)}, {sr(S_T1)}, {vr(V_L16)}")
        for y in range(2): hk(HK[y], 28, 32 + 1024*y)
        lpb = A.newlabel("PB")
        e(f"s_cmp_lg_u32 {sr(S_RH)}, 0")
        e(f"s_cbranch_scc1 {lpb}")
        e(f"s_mov_b64 {sr(S_EX,2)}, exec")
        e("s_mov_b64 exec, 3")
        w = HK[0]
        for r in range(4): e(f"v_mov_b32 {vr(w+r)}, 0")
        e(f"v_mov_b32 {vr(w+4)}, {vr(HPB)}"); e(f"v_mov_b32 {vr(w+5)}, {vr(HPB+1)}")
        hk(w, 27, 0)
        e(f"s_mov_b64 exec, {sr(S_EX,2)}")
        A.label(lpb)
    V_DD = 32; V_CA = 35; V_CB = 29
    CACC = 192; CSET = [64, 128]
    def conv_addr():
        e(f"s_and_b32 {sr(S_RH)}, {sr(S_LW)}, 1")
        e(f"s_mul_i32 {sr(S_UB)}, {sr(S_LW)}, {UBSZ}")
        e(f"s_add_u32 {sr(S_UB)}, {sr(S_UB)}, {L_UB}")
        e(f"v_and_b32 {vr(t0)}, 15, {L}")
        e(f"v_lshrrev_b32 {vr(t1)}, 4, {L}")
        e(f"v_lshl_add_u32 {vr(t2)}, {vr(t1)}, 3, {vr(t0)}")
        e(f"v_add_u32 {vr(t2)}, 1, {vr(t2)}")
        e(f"v_and_b32 {vr(t3)}, 3, {vr(t2)}")
        e(f"v_sub_u32 {vr(t2)}, {vr(t2)}, {vr(t3)}")
        e(f"v_lshlrev_b32 {vr(t2)}, 1, {vr(t2)}")
        e(f"v_mul_u32_u24 {vr(t3)}, {HCOPY}, {vr(t3)}")
        e(f"v_add_u32 {vr(t2)}, {vr(t2)}, {vr(t3)}")
        e(f"s_mul_i32 {sr(S_T0)}, {sr(S_CIDX)}, {HCH}")
        e(f"s_lshl_b32 {sr(S_T1)}, {sr(S_RH)}, 8")
        e(f"s_add_u32 {sr(S_T0)}, {sr(S_T0)}, {sr(S_T1)}")
        e(f"s_add_u32 {sr(S_T0)}, {sr(S_T0)}, {L_HANK}")
        e(f"v_add_u32 {vr(V_CA)}, {sr(S_T0)}, {vr(t2)}")
        e(f"v_lshlrev_b32 {vr(t2)}, 1, {vr(t0)}")
        e(f"v_sub_u32 {vr(t2)}, {vr(t1)}, {vr(t2)}")
        e(f"v_add_u32 {vr(t2)}, 254, {vr(t2)}")
        e(f"v_lshlrev_b32 {vr(t2)}, 4, {vr(t2)}")
        e(f"s_add_u32 {sr(S_T0)}, {sr(S_UB)}, {sr(S_T1)}")
        e(f"s_sub_u32 {sr(S_T0)}, {sr(S_T0)}, 3584")
        e(f"v_add_u32 {vr(V_CB)}, {sr(S_T0)}, {vr(t2)}")
        for r in range(32): e(f"v_mov_b32 {vr(CACC+r)}, 0")
    def pt(it): return [tiles] if PPOS == it else []
    dma_stage(2)
    it_end(0, [lambda: dma_stage(3)] + pt(0), waits=())
    it_end(1, [lambda: dma_stage(4)] + pt(1), waits=("S2", "NL"))
    job_nonce_sts()
    TRI = {-1: 2, 0: 4, 1: 5}[PPOS]
    for it in range(2, 8):
        if it == TRI: job_tr_store()
        if it == 3: job_sl()
        if it == TRI + 2: job_kvf()
        if it == 4: job_conv_scalars(); job_row_srds() if False else None
        if it == 5: job_wd_setup()
        if it == 6: job_statchk(); conv_addr()
        if it == TRI + 3 and it <= 7:
            job_row_srds(); flag_issue(V_FL, 2, S_KVO, "PKV")
        if it == TRI + 4 and it <= 7: job_pkv_check()
        if it == TRI + 5 and it <= 7:
            lk7 = A.newlabel("K7")
            e(f"s_cmp_eq_u32 {sr(S_OKF)}, 1")
            e(f"s_cbranch_scc0 {lk7}")
            A.wait_vm("UK")
            kv_chunk(0); kv_chunk(1)
            A.label(lk7)
        if it == opts.get("hankit", 7): job_hankel()
        if it == 7: break
        st = []
        if it + 3 <= 7: st.append(lambda it=it: dma_stage(it + 3))
        if it == opts.get('hkit', 2): st.append(hk_loads)
        if it == opts.get('wtit', 3): st.append(wd_touch)
        if it == 5: st.append(lambda: [wd_dma(n) for n in range(0, 5)])
        if it == 6: st.append(lambda: [wd_dma(n) for n in range(5, 10)])
        w_ = [f"S{it+1}"]
        if it + 1 == TRI: w_.append("P")
        it_end(it, st, waits=tuple(w_))
    done_chunks01 = (TRI + 5 <= 7); done_check = (TRI + 4 <= 7); done_pkv = (TRI + 3 <= 7)
    e("s_waitcnt lgkmcnt(0)")
    e("s_barrier")
    stamp(3)
    wd_dma(10)
    if not done_pkv:
        job_row_srds(); flag_issue(V_FL, 2, S_KVO, "PKV")
    srd(SRD_AUX, 5, 1024)
    e(f"s_lshl_b32 {sr(S_T0)}, {sr(S_C)}, 1")
    A.vmem(f"buffer_load_ushort {vr(V_DD)}, off, {sr(SRD_AUX,4)}, {sr(S_T0)}", "DD")
    if not done_check: job_pkv_check()
    if opts.get("hankit", 7) > 7: job_hankel()
    e("s_waitcnt lgkmcnt(0)")
    e(f"s_lshl_b32 {sr(S_T0)}, {sr(S_LW)}, 2")
    e(f"s_add_u32 {sr(S_T0)}, {sr(S_T0)}, {L_FLAG}")
    e(f"v_mov_b32 {vr(V_PF)}, {sr(S_T0)}")
    e(f"v_mov_b32 {vr(V_PF+1)}, 1")
    e(f"ds_write_b32 {vr(V_PF)}, {vr(V_PF+1)} offset:96")
    A.wait_vm("WDP")
    e(f"ds_write_b32 {vr(V_PF)}, {vr(V_PF+1)} offset:16")
    lko2 = A.newlabel("KO2"); lko3 = A.newlabel("KO3")
    e(f"s_cmp_eq_u32 {sr(S_OKF)}, 1")
    e(f"s_cbranch_scc1 {lko2}")
    flag_wait_blocking(V_FL, 2, S_KVO, sleep=4)
    uk_loads(False)
    e("s_waitcnt vmcnt(0)")
    if done_chunks01:
        kv_chunk(0); kv_chunk(1)
    A.label(lko2)
    A.wait_vm("UK", "DD")
    if not done_chunks01:
        kv_chunk(0); kv_chunk(1)
    kv_chunk(2); kv_chunk(3)
    e(f"v_add_u32 {vr(26)}, {sr(S_UB)}, {vr(V_L16)}")
    for q in range(4): e(f"ds_write_b128 {vr(26)}, {vr(KR+8*q,4)} offset:{1024*q}")
    for r in range(4): e(f"v_mov_b32 {vr(52+r)}, 0")
    e(f"v_and_b32 {vr(t0)}, 31, {L}")
    e(f"v_lshlrev_b32 {vr(t0)}, 4, {vr(t0)}")
    e(f"v_add_u32 {vr(t0)}, {sr(S_UB)}, {vr(t0)}")
    e(f"ds_write_b128 {vr(t0)}, {vr(52,4)} offset:4096")
    e(f"v_lshlrev_b32 {vr(V_DD)}, 16, {vr(V_DD)}")
    e(f"s_lshl_b32 {sr(S_T0)}, {sr(S_LW)}, 2")
    e(f"s_xor_b32 {sr(S_T0)}, {sr(S_T0)}, 4")
    e(f"s_add_u32 {sr(S_T0)}, {sr(S_T0)}, {L_FLAG+96}")
    lds_spin(S_T0, t1, t0)
    e("s_waitcnt lgkmcnt(0)")
    if opts.get("gate", 1):
        e(f"s_lshl_b32 {sr(S_T0)}, {sr(S_LW)}, 2")
        e(f"s_add_u32 {sr(S_T0)}, {sr(S_T0)}, {L_FLAG+48}")
        lds_spin(S_T0, t1, t0)
    stamp(4)
    def creads(r, st):
        out = []; b = CSET[st]
        for sp in range(8):
            out.append(f"ds_read_b64 {vr(b+4*sp,2)}, {vr(V_CA)} offset:{512*sp+64*r}")
            out.append(f"ds_read_b64 {vr(b+4*sp+2,2)}, {vr(V_CA)} offset:{512*sp+64*r+8}")
            out.append(f"ds_read_b128 {vr(b+32+4*sp,4)}, {vr(V_CB)} offset:{512*(7-sp)+64*r}")
        return out
    def cmfmas(st):
        out = []; b = CSET[st]
        for t in range(8):
            for sp in range(t + 1):
                out.append(f"v_mfma_f32_16x16x32_bf16 {vr(CACC+4*t,4)}, {vr(b+4*sp,4)}, {vr(b+32+4*(t-sp),4)}, {vr(CACC+4*t,4)}")
        return out
    for x in creads(0, 0): e(x)
    for r in range(4):
        e("s_waitcnt lgkmcnt(0)")
        mf = cmfmas(r & 1)
        rd = creads(r + 1, (r + 1) & 1) if r < 3 else []
        for idx, m in enumerate(mf):
            e(m)
            if idx < len(rd): e(rd[idx])
    stamp(5)
    V_UU = 64
    e("s_nop 7")
    e(f"v_and_b32 {vr(t0)}, 15, {L}")
    e(f"v_lshrrev_b32 {vr(t1)}, 4, {L}")
    e(f"v_lshlrev_b32 {vr(t2)}, 2, {vr(t0)}")
    e(f"v_add_u32 {vr(t2)}, {vr(t2)}, {vr(t1)}")
    e(f"v_lshlrev_b32 {vr(t2)}, 3, {vr(t2)}")
    e(f"s_lshl_b32 {sr(S_T1)}, {sr(S_RH)}, 11")
    e(f"s_sub_u32 {sr(S_T0)}, {sr(S_UB)}, {sr(S_T1)}")
    e(f"s_add_u32 {sr(S_T0)}, {sr(S_T0)}, {4088 - 1536}")
    e(f"v_sub_u32 {vr(t3)}, {sr(S_T0)}, {vr(t2)}")
    for tt in range(4): e(f"ds_read_b64 {vr(V_UU+2*tt,2)}, {vr(t3)} offset:{512*(3-tt)}")
    e("s_waitcnt lgkmcnt(0)")
    e(f"v_add_u32 {vr(t3)}, {sr(S_UB)}, {vr(V_L16)}")
    l1 = A.newlabel("PR"); l2 = A.newlabel("PR")
    e(f"s_cmp_eq_u32 {sr(S_RH)}, 0")
    e(f"s_cbranch_scc1 {l1}")
    for tt in range(4): e(f"ds_write_b128 {vr(t3)}, {vr(CACC+4*tt,4)} offset:{1024*tt}")
    e("s_nop 1")
    for r in range(16): e(f"v_mov_b32 {vr(CACC+r)}, {vr(CACC+16+r)}")
    e(f"s_branch {l2}")
    A.label(l1)
    for tt in range(4): e(f"ds_write_b128 {vr(t3)}, {vr(CACC+16+4*tt,4)} offset:{1024*tt}")
    A.label(l2)
    e("s_waitcnt lgkmcnt(0)")
    e(f"ds_write_b32 {vr(V_PF)}, {vr(V_PF+1)}")
    e(f"s_lshl_b32 {sr(S_T0)}, {sr(S_LW)}, 2")
    e(f"s_add_u32 {sr(S_T0)}, {sr(S_T0)}, {L_FLAG}")
    e(f"s_xor_b32 {sr(S_T0)}, {sr(S_T0)}, 4")
    lds_spin(S_T0, t1, t0)
    e(f"s_xor_b32 {sr(S_T0)}, {sr(S_LW)}, 1")
    e(f"s_mul_i32 {sr(S_T0)}, {sr(S_T0)}, {UBSZ}")
    e(f"s_add_u32 {sr(S_T0)}, {sr(S_T0)}, {L_UB}")
    e(f"v_add_u32 {vr(t3)}, {sr(S_T0)}, {vr(V_L16)}")
    V_PP = 80
    for tt in range(4): e(f"ds_read_b128 {vr(V_PP+4*tt,4)}, {vr(t3)} offset:{1024*tt}")
    e("s_waitcnt lgkmcnt(0)")
    for r in range(16): e(f"v_add_f32 {vr(CACC+r)}, {vr(CACC+r)}, {vr(V_PP+r)}")
    V_YP = 96
    for tt in range(4):
        y = CACC + 4*tt; u0, u1 = V_UU + 2*tt, V_UU + 2*tt + 1; U = 112
        e(f"v_and_b32 {vr(U+0)}, 0xffff0000, {vr(u1)}")
        e(f"v_lshlrev_b32 {vr(U+1)}, 16, {vr(u1)}")
        e(f"v_and_b32 {vr(U+2)}, 0xffff0000, {vr(u0)}")
        e(f"v_lshlrev_b32 {vr(U+3)}, 16, {vr(u0)}")
        for k in range(4): e(f"v_mul_f32 {vr(U+k)}, {vr(U+k)}, {vr(V_DD)}")
        e(f"v_cvt_pk_bf16_f32 {vr(U+4)}, {vr(U+0)}, {vr(U+1)}")
        e(f"v_cvt_pk_bf16_f32 {vr(U+5)}, {vr(U+2)}, {vr(U+3)}")
        e(f"v_cvt_pk_bf16_f32 {vr(U+6)}, {vr(y+0)}, {vr(y+1)}")
        e(f"v_cvt_pk_bf16_f32 {vr(U+7)}, {vr(y+2)}, {vr(y+3)}")
        for h in range(2):
            e(f"v_lshlrev_b32 {vr(U+2*h)}, 16, {vr(U+4+h)}")
            e(f"v_and_b32 {vr(U+2*h+1)}, 0xffff0000, {vr(U+4+h)}")
            e(f"v_lshlrev_b32 {vr(y+2*h)}, 16, {vr(U+6+h)}")
            e(f"v_and_b32 {vr(y+2*h+1)}, 0xffff0000, {vr(U+6+h)}")
        for k in range(4): e(f"v_add_f32 {vr(y+k)}, {vr(y+k)}, {vr(U+k)}")
        e(f"v_cvt_pk_bf16_f32 {vr(V_YP+2*tt)}, {vr(y+0)}, {vr(y+1)}")
        e(f"v_cvt_pk_bf16_f32 {vr(V_YP+2*tt+1)}, {vr(y+2)}, {vr(y+3)}")
    e("s_nop 1")
    for p in range(2):
        e(f"v_permlane16_swap_b32 {vr(V_YP+4*p)}, {vr(V_YP+4*p+2)}")
        e(f"v_permlane16_swap_b32 {vr(V_YP+4*p+1)}, {vr(V_YP+4*p+3)}")
    e(f"v_and_b32 {vr(t0)}, 15, {L}")
    e(f"v_lshrrev_b32 {vr(t1)}, 4, {L}")
    e(f"v_and_b32 {vr(t2)}, 1, {vr(t1)}")
    e(f"v_lshlrev_b32 {vr(t2)}, 9, {vr(t2)}")
    e(f"v_and_b32 {vr(t1)}, 2, {vr(t1)}")
    e(f"v_lshlrev_b32 {vr(t1)}, 3, {vr(t1)}")
    e(f"v_lshlrev_b32 {vr(t0)}, 5, {vr(t0)}")
    e(f"v_add3_u32 {vr(t0)}, {vr(t0)}, {vr(t1)}, {vr(t2)}")
    e(f"s_lshl_b32 {sr(S_T0)}, {sr(S_C)}, 12")
    e(f"s_lshl_b32 {sr(S_T1)}, {sr(S_RH)}, 11")
    e(f"s_add_u32 {sr(S_T0)}, {sr(S_T0)}, {sr(S_T1)}")
    e(f"s_add_u32 {sr(S_T0)}, {sr(S_T0)}, {WS_YYT}")
    for p in range(2):
        e(f"buffer_store_dwordx4 {vr(V_YP+4*p,4)}, {vr(t0)}, {sr(SRD_WS,4)}, {sr(S_T0)} offen offset:{1024*p} sc0 sc1")
    e("s_waitcnt vmcnt(0)")
    e(f"s_lshr_b32 {sr(S_T0)}, {sr(S_C)}, 6")
    e(f"s_lshl_b32 {sr(S_T0)}, {sr(S_T0)}, 9")
    e(f"s_and_b32 {sr(S_T1)}, {sr(S_WG)}, 31")
    e(f"s_lshl_b32 {sr(S_T1)}, {sr(S_T1)}, 4")
    e(f"s_lshl_b32 {sr(S_T2)}, {sr(S_LW)}, 2")
    e(f"s_add_u32 {sr(S_T0)}, {sr(S_T0)}, {sr(S_T1)}")
    e(f"s_add_u32 {sr(S_T0)}, {sr(S_T0)}, {sr(S_T2)}")
    e(f"s_add_u32 {sr(S_T0)}, {sr(S_T0)}, {WS_FL+FL_Y}")
    flag_set(S_T0, t0)
    stamp(6)
    ly1 = A.newlabel("YP"); ly2 = A.newlabel("YP")
    e(f"s_cmp_lg_u32 {sr(S_LW)}, 0")
    e(f"s_cbranch_scc1 {ly1}")
    if opts.get("ygate"):
        e(f"s_mov_b32 {sr(S_T0)}, {L_FLAG+64}")
        lds_spin(S_T0, t1, t0, sleep=4)
    e(f"s_lshl_b32 {sr(S_T0)}, {sr(S_J)}, 9")
    e(f"s_add_u32 {sr(S_T0)}, {sr(S_T0)}, {WS_FL+FL_Y}")
    flag_wait_blocking(V_FL, 2, S_T0, sleep=opts.get('ysleep', 8))
    e(f"v_mov_b32 {vr(t0)}, {L_FLAG+68}")
    e(f"v_mov_b32 {vr(t1)}, 1")
    e(f"ds_write_b32 {vr(t0)}, {vr(t1)}")
    e(f"s_branch {ly2}")
    A.label(ly1)
    e(f"s_mov_b32 {sr(S_T0)}, {L_FLAG+68}")
    lds_spin(S_T0, t1, t0, sleep=4)
    A.label(ly2)
    stamp(7)
    e(f"v_lshrrev_b32 {vr(t0)}, 3, {L}")
    e(f"v_and_b32 {vr(t1)}, 7, {L}")
    e(f"s_lshl_b32 {sr(S_T0)}, {sr(S_LW)}, 4")
    e(f"v_add_u32 {vr(t0)}, {sr(S_T0)}, {vr(t0)}")
    e(f"v_lshlrev_b32 {vr(t2)}, 12, {vr(t0)}")
    e(f"v_lshl_add_u32 {vr(t2)}, {vr(t1)}, 4, {vr(t2)}")
    e(f"s_lshl_b32 {sr(S_T0)}, {sr(S_J)}, 18")
    e(f"s_lshl_b32 {sr(S_T1)}, {sr(S_I2)}, 7")
    e(f"s_add_u32 {sr(S_T0)}, {sr(S_T0)}, {sr(S_T1)}")
    e(f"s_add_u32 {sr(S_T0)}, {sr(S_T0)}, {WS_YYT}")
    e(f"buffer_load_dwordx4 {vr(64,4)}, {vr(t2)}, {sr(SRD_WS,4)}, {sr(S_T0)} offen sc1")
    e(f"v_add_u32 {vr(t2)}, {8*4096}, {vr(t2)}")
    e(f"buffer_load_dwordx4 {vr(68,4)}, {vr(t2)}, {sr(SRD_WS,4)}, {sr(S_T0)} offen sc1")
    e(f"v_mul_u32_u24 {vr(t3)}, {YTROW}, {vr(t0)}")
    e(f"v_lshl_add_u32 {vr(t3)}, {vr(t1)}, 4, {vr(t3)}")
    e(f"v_add_u32 {vr(t3)}, {L_YT}, {vr(t3)}")
    e("s_waitcnt vmcnt(1)")
    e(f"ds_write_b128 {vr(t3)}, {vr(64,4)}")
    e("s_waitcnt vmcnt(0)")
    e(f"ds_write_b128 {vr(t3)}, {vr(68,4)} offset:{8*YTROW}")
    srd(SRD_OUT, 10, 2 << 20)

    A.label("L_FINAL")
    e("s_setprio 0")
    FT, FD, FO = 28, 29, 30
    e(f"v_lshrrev_b32 {vr(t0)}, 5, {L}")
    e(f"v_and_b32 {vr(t1)}, 3, {L}")
    e(f"v_lshl_add_u32 {vr(FT)}, {vr(t0)}, 2, {vr(t1)}")
    e(f"s_lshl_b32 {sr(S_T0)}, {sr(S_WAVE)}, 3")
    e(f"v_add_u32 {vr(FT)}, {sr(S_T0)}, {vr(FT)}")
    e(f"v_bfe_u32 {vr(FD)}, {L}, 2, 3")
    e(f"s_lshl_b32 {sr(S_T0)}, {sr(S_I2)}, 16")
    e(f"s_lshl_b32 {sr(S_T1)}, {sr(S_J)}, 7")
    e(f"s_add_u32 {sr(S_T0)}, {sr(S_T0)}, {sr(S_T1)}")
    e(f"v_lshlrev_b32 {vr(FO)}, 10, {vr(FT)}")
    e(f"v_lshl_add_u32 {vr(FO)}, {vr(FD)}, 4, {vr(FO)}")
    e(f"v_add_u32 {vr(FO)}, {sr(S_T0)}, {vr(FO)}")
    FX_, FS_ = 32, 36
    e(f"buffer_load_dwordx4 {vr(FX_,4)}, {vr(FO)}, {sr(SRD_Q,4)}, 0 offen")
    e("s_waitcnt lgkmcnt(0)")
    e("s_barrier")
    stamp(9)
    e(f"s_lshl_b32 {sr(S_T0)}, {sr(S_I2)}, 9")
    e(f"s_add_u32 {sr(S_T0)}, {sr(S_T0)}, {WS_ST}")
    e(f"v_lshlrev_b32 {vr(t1)}, 3, {vr(FT)}")
    e(f"buffer_load_dwordx2 {vr(FS_,2)}, {vr(t1)}, {sr(SRD_WS,4)}, {sr(S_T0)} offen sc1")
    FP = 40
    e(f"v_and_b32 {vr(t0)}, 31, {vr(FT)}")
    e(f"v_mul_u32_u24 {vr(t0)}, 272, {vr(t0)}")
    e(f"v_lshl_add_u32 {vr(t0)}, {vr(FD)}, 5, {vr(t0)}")
    e(f"s_cmp_lt_u32 {sr(S_WAVE)}, 4")
    e(f"s_cselect_b32 {sr(S_T0)}, {RA}, {RB_}")
    e(f"v_add_u32 {vr(t0)}, {sr(S_T0)}, {vr(t0)}")
    for kg in range(4):
        e(f"ds_read_b128 {vr(FP+8*kg,4)}, {vr(t0)} offset:{kg*10240}")
        e(f"ds_read_b128 {vr(FP+8*kg+4,4)}, {vr(t0)} offset:{kg*10240+16}")
    FY = 72
    e(f"v_bfe_u32 {vr(t2)}, {L}, 2, 2")
    e(f"v_and_b32 {vr(t3)}, 3, {L}")
    e(f"v_bfe_u32 {vr(t4)}, {L}, 4, 1")
    e(f"v_lshl_add_u32 {vr(t3)}, {vr(t4)}, 2, {vr(t3)}")
    e(f"v_lshl_add_u32 {vr(t2)}, {vr(t3)}, 3, {vr(t2)}")
    e(f"v_mul_u32_u24 {vr(t2)}, {YTROW}, {vr(t2)}")
    e(f"v_lshrrev_b32 {vr(t3)}, 5, {L}")
    e(f"v_lshlrev_b32 {vr(t3)}, 3, {vr(t3)}")
    e(f"s_lshl_b32 {sr(S_T0)}, {sr(S_WAVE)}, 4")
    e(f"s_add_u32 {sr(S_T0)}, {sr(S_T0)}, {L_YT}")
    e(f"v_add3_u32 {vr(t2)}, {vr(t2)}, {vr(t3)}, {sr(S_T0)}")
    e(f"ds_read_b64_tr_b16 {vr(FY,2)}, {vr(t2)}")
    e(f"ds_read_b64_tr_b16 {vr(FY+2,2)}, {vr(t2)} offset:{4*YTROW}")
    e("s_waitcnt lgkmcnt(2)")
    for kg in range(1, 4):
        for k in range(8): e(f"v_add_f32 {vr(FP+k)}, {vr(FP+k)}, {vr(FP+8*kg+k)}")
    O = FP; T = 48; XV = 56; YV = 64
    for k in range(0, 8, 2): e(f"v_cvt_pk_bf16_f32 {vr(T+k)}, {vr(O+k)}, {vr(O+k+1)}")
    for k in range(0, 8, 2):
        e(f"v_and_b32 {vr(O+k+1)}, 0xffff0000, {vr(T+k)}")
        e(f"v_lshlrev_b32 {vr(O+k)}, 16, {vr(T+k)}")
    e(f"s_mov_b32 {sr(S_T0)}, 0xbfb8aa3b")
    for k in range(8): e(f"v_mul_f32 {vr(T+k)}, {sr(S_T0)}, {vr(O+k)}")
    for k in range(8): e(f"v_exp_f32 {vr(T+k)}, {vr(T+k)}")
    for k in range(8): e(f"v_add_f32 {vr(T+k)}, 1.0, {vr(T+k)}")
    for k in range(8): e(f"v_rcp_f32 {vr(T+k)}, {vr(T+k)}")
    e("s_nop 0")
    for k in range(8): e(f"v_mul_f32 {vr(O+k)}, {vr(O+k)}, {vr(T+k)}")
    e("s_waitcnt vmcnt(0) lgkmcnt(0)")
    for k in range(4):
        e(f"v_lshlrev_b32 {vr(XV+2*k)}, 16, {vr(FX_+k)}")
        e(f"v_and_b32 {vr(XV+2*k+1)}, 0xffff0000, {vr(FX_+k)}")
        e(f"v_lshlrev_b32 {vr(YV+2*k)}, 16, {vr(FY+k)}")
        e(f"v_and_b32 {vr(YV+2*k+1)}, 0xffff0000, {vr(FY+k)}")
    e(f"v_and_b32 {vr(FS_+1)}, 0xffff0000, {vr(FS_)}")
    e(f"v_lshlrev_b32 {vr(FS_)}, 16, {vr(FS_)}")
    e(f"v_rcp_f32 {vr(FS_+1)}, {vr(FS_+1)}")
    for k in range(8): e(f"v_sub_f32 {vr(T+k)}, {vr(XV+k)}, {vr(FS_)}")
    def round8(b):
        for k in range(0, 8, 2): e(f"v_cvt_pk_bf16_f32 {vr(b+k)}, {vr(b+k)}, {vr(b+k+1)}")
        for k in range(0, 8, 2):
            e(f"v_and_b32 {vr(b+k+1)}, 0xffff0000, {vr(b+k)}")
            e(f"v_lshlrev_b32 {vr(b+k)}, 16, {vr(b+k)}")
    if not opts.get("lightfinal"): round8(T)
    for k in range(8): e(f"v_mul_f32 {vr(T+k)}, {vr(T+k)}, {vr(FS_+1)}")
    round8(T)
    for k in range(8): e(f"v_mul_f32 {vr(T+k)}, {vr(T+k)}, {vr(YV+k)}")
    if not opts.get("lightfinal"):
        round8(T); round8(O)
    for k in range(8): e(f"v_mul_f32 {vr(T+k)}, {vr(T+k)}, {vr(O+k)}")
    if not opts.get("lightfinal"): round8(T)
    for k in range(8): e(f"v_add_f32 {vr(T+k)}, {vr(T+k)}, {vr(XV+k)}")
    for k in range(4): e(f"v_cvt_pk_bf16_f32 {vr(FY+k)}, {vr(T+2*k)}, {vr(T+2*k+1)}")
    e(f"buffer_store_dwordx4 {vr(FY,4)}, {vr(FO)}, {sr(SRD_OUT,4)}, 0 offen" + (" sc0 sc1" if opts.get("outwt") else (" nt" if opts.get("outnt") else "")))
    stamp(10)
    stamp_flush()
    A.label("L_END")
    e("s_endpgm")
    A.label("L_CODE_END")

    body = A.text()
    hdr = open("cdna_kernels/" + NAME + ".s.ref").read().split("; Override launch geometry")[0]
    out = hdr + "; Override launch geometry by editing the next line.\n"
    out += f"; @launch grid=(256,1,1) block=(512,1,1) lds={LDS_TOTAL}\n"
    out += f""".amdgcn_target "amdgcn-amd-amdhsa--gfx950"
.text
.globl {NAME}_kernel
.p2align 8
.type {NAME}_kernel,@function
{NAME}_kernel:
"""
    out += body
    out += f""".section .rodata,"a"
.p2align 6
.amdhsa_kernel {NAME}_kernel
  .amdhsa_next_free_vgpr 256
  .amdhsa_next_free_sgpr 102
  .amdhsa_accum_offset 256
  .amdhsa_group_segment_fixed_size 0
  .amdhsa_kernarg_size 104
  .amdhsa_user_sgpr_count 2
  .amdhsa_user_sgpr_kernarg_segment_ptr 1
  .amdhsa_system_sgpr_workgroup_id_x 1
.end_amdhsa_kernel
"""
    return out

if __name__ == "__main__":
    opts = {}
    outp = sys.argv[1]
    for a in sys.argv[2:]:
        k, _, v = a.partition("=")
        opts[k] = (int(v) if v.lstrip("-").isdigit() else (v or True))
    open(outp, "w").write(gen(opts))
```

```python
import sys, struct

NAME = "recurrent_scan__ssm_conv_h3__glu_gated_geglu__prompt"
f2u = lambda x: struct.unpack("<I", struct.pack("<f", x))[0]

class Asm:
    def __init__(self):
        self.lines = []; self.nlabel = 0; self.vm = []; self.cap = None
    def e(self, s):
        if self.cap is not None: self.cap.append(("  " + s, None))
        else: self.lines.append("  " + s)
    def label(self, l):
        assert self.cap is None, l
        self.lines.append(l + ":")
    def newlabel(self, p="L"):
        self.nlabel += 1; return f"{p}_{self.nlabel}"
    def text(self): return "\n".join(self.lines) + "\n"
    def vmem(self, s, tag):
        if self.cap is not None:
            self.cap.append(("  " + s, tag)); return
        self.e(s); self.vm.append(tag)
    def capture(self, fn):
        assert self.cap is None
        self.cap = []
        fn()
        out = self.cap; self.cap = None
        return out
    def emit_list(self, lst):
        for line, tag in lst:
            self.lines.append(line)
            if tag is not None: self.vm.append(tag)
    def merge(self, a, b):
        groups = []; cur = []
        for it in a:
            cur.append(it)
            if it[1] is not None: groups.append(cur); cur = []
        if cur: groups.append(cur)
        n = len(groups); out = []; k = 0
        for gi, g in enumerate(groups):
            out += g
            upto = (len(b) * (gi + 1)) // n
            out += b[k:upto]; k = upto
        out += b[k:]
        return out
    def wait_vm(self, *tags):
        assert self.cap is None
        last = -1
        for i, t in enumerate(self.vm):
            if t in tags: last = i
        assert last >= 0, tags
        n = len(self.vm) - 1 - last
        n = min(n, 63)
        self.e(f"s_waitcnt vmcnt({n})")
        return n

def vr(a, n=1): return f"v{a}" if n == 1 else f"v[{a}:{a+n-1}]"
def sr(a, n=1): return f"s{a}" if n == 1 else f"s[{a}:{a+n-1}]"

S, D, F = 2048, 512, 1376
WROW = F * 2
WBYTES = 512 * WROW
WS_KVT, WS_YYT, WS_HF, WS_ST, WS_FL, WS_TS = 0, 2 << 20, 4 << 20, 12 << 20, 13 << 20, 16 << 20
WS_VT = 14 << 20
FL_KV, FL_ST, FL_H, FL_Y = 0, 4096, 8192, 12288
STAGE = 40960
L_HANK = 122880
HCOPY = 4160
HCH = 4 * HCOPY
L_MISC = L_HANK + 2 * HCH
L_CS = L_MISC
L_STAT = L_MISC + 1536
L_FLAG = L_MISC + 2560
LDS_TOTAL = 163840
L_KT, L_VT = L_HANK, L_HANK + 8192
RA, RB_ = 2 * STAGE, 0
L_UB = STAGE
UBSZ = 4608
L_YT = L_UB + 4 * UBSZ
YTROW = 144
RC = L_YT + 64 * YTROW
NR = 11
def ring_off(n):
    if n < 5: return (0, n * 2048)
    if n < 10: return (1, (n - 5) * 2048)
    return (2, 0)

SRD_Q, SRD_K, SRD_V, SRD_W, SRD_WD, SRD_WS, SRD_DBG, SRD_OUT, SRD_SK, SRD_AUX = 4, 8, 12, 16, 20, 24, 28, 32, 36, 40
P = 48
S_WG = 2
S_WAVE, S_RB, S_CP, S_I2, S_J, S_F0, S_N32, S_A, S_B = 76, 77, 78, 79, 80, 81, 82, 83, 84
S_NONCE = 85
S_T0, S_T1, S_T2, S_T3, S_T4, S_T5 = 86, 87, 88, 89, 90, 91
S_G0, S_G1, S_G2, S_G3, S_G4, S_G5 = 92, 93, 94, 95, 96, 97
S_C0, S_C1 = 98, 99
S_EX = 100
S_TSP = 74
S_X0, S_X1, S_X2, S_X3 = 44, 45, 46, 47

def gen(opts):
    A = Asm(); e = A.e
    TS = opts.get("ts", False)
    HSC = "" if opts.get("hplain", 1) else " sc1"
    USC = "" if opts.get("uplain", 1) else " sc1"
    t0, t1, t2, t3, t4, t5 = 8, 9, 10, 11, 12, 13
    V_LANE = 3; L = vr(V_LANE)
    V_TS = 15

    def stamp(idx, dyn=None):
        if not TS: return
        e(f"{'s_memtime' if opts.get('cyc') else 's_memrealtime'} {sr(S_TSP,2)}")
        e("s_waitcnt lgkmcnt(0)")
        if dyn is None:
            e(f"v_writelane_b32 {vr(V_TS)}, {sr(S_TSP)}, {idx}")
        else:
            e(f"s_add_u32 m0, {sr(dyn)}, {idx}")
            e("s_nop 0")
            e(f"v_writelane_b32 {vr(V_TS)}, {sr(S_TSP)}, m0")
    def stamp_flush():
        if not TS: return
        e(f"s_lshl_b32 {sr(S_TSP+1)}, {sr(S_WG)}, 3")
        e(f"s_add_u32 {sr(S_TSP+1)}, {sr(S_TSP+1)}, {sr(S_WAVE)}")
        e(f"s_lshl_b32 {sr(S_TSP+1)}, {sr(S_TSP+1)}, 8")
        e(f"s_add_u32 {sr(S_TSP+1)}, {sr(S_TSP+1)}, {WS_TS}")
        e(f"v_lshlrev_b32 v14, 2, {L}")
        e(f"buffer_store_dword {vr(V_TS)}, v14, {sr(SRD_WS,4)}, {sr(S_TSP+1)} offen")

    def srd(dst, pidx, nbytes):
        e(f"s_mov_b32 {sr(dst)}, {sr(P+2*pidx)}")
        e(f"s_mov_b32 {sr(dst+1)}, {sr(P+2*pidx+1)}")
        e(f"s_mov_b32 {sr(dst+2)}, {nbytes}")
        e(f"s_mov_b32 {sr(dst+3)}, 0x20000")

    def flag_issue(vdst, nw, soff_sgpr, tag):
        e(f"v_lshlrev_b32 {vr(t5)}, {1 + nw}, {L}")
        op = "buffer_load_dword" if nw == 1 else "buffer_load_dwordx2"
        A.vmem(f"{op} {vr(vdst,nw)}, {vr(t5)}, {sr(SRD_WS,4)}, {sr(soff_sgpr)} offen sc1", tag)
    def flag_check_scc(vdst, nw):
        e(f"v_cmp_eq_u32 vcc, {sr(S_NONCE)}, {vr(vdst)}")
        if nw == 2:
            e(f"v_cmp_eq_u32 {sr(S_T4,2)}, {sr(S_NONCE)}, {vr(vdst+1)}")
            e("s_nop 1")
            e(f"s_and_b64 vcc, vcc, {sr(S_T4,2)}")
        else:
            e("s_nop 1")
        e("s_cmp_eq_u64 vcc, -1")
    def flag_wait_blocking(vdst, nw, soff_sgpr, sleep=4):
        l = A.newlabel("POLL"); d = A.newlabel("POLLD")
        n0 = len(A.vm)
        e(f"s_mov_b32 {sr(S_T3)}, 0x40000")
        A.label(l)
        flag_issue(vdst, nw, soff_sgpr, "poll")
        e("s_waitcnt vmcnt(0)")
        flag_check_scc(vdst, nw)
        e(f"s_cbranch_scc1 {d}")
        e(f"s_sub_u32 {sr(S_T3)}, {sr(S_T3)}, 1")
        e(f"s_cmp_eq_u32 {sr(S_T3)}, 0")
        e(f"s_cbranch_scc1 {d}")
        e(f"s_sleep {sleep}")
        e(f"s_branch {l}")
        A.label(d)
        del A.vm[n0:]
    def flag_set(soff_sgpr, vtmp):
        e(f"v_mov_b32 {vr(vtmp)}, {sr(S_NONCE)}")
        e(f"s_mov_b64 {sr(S_EX,2)}, exec")
        e("s_mov_b64 exec, 1")
        A.vmem(f"buffer_store_dword {vr(vtmp)}, off, {sr(SRD_WS,4)}, {sr(soff_sgpr)} sc0 sc1", "flag")
        e(f"s_mov_b64 exec, {sr(S_EX,2)}")
    def lds_spin(addr_sgpr, vt, va, sleep=1):
        l = A.newlabel("LS"); d = A.newlabel("LSD")
        e(f"v_mov_b32 {vr(va)}, {sr(addr_sgpr)}")
        e(f"s_mov_b32 {sr(S_T3)}, 0x200000")
        A.label(l)
        e(f"ds_read_b32 {vr(vt)}, {vr(va)}")
        e("s_waitcnt lgkmcnt(0)")
        e(f"v_readfirstlane_b32 {sr(S_T2)}, {vr(vt)}")
        e("s_nop 3")
        e(f"s_cmp_eq_u32 {sr(S_T2)}, 1")
        e(f"s_cbranch_scc1 {d}")
        e(f"s_sub_u32 {sr(S_T3)}, {sr(S_T3)}, 1")
        e(f"s_cmp_eq_u32 {sr(S_T3)}, 0")
        e(f"s_cbranch_scc1 {d}")
        e(f"s_sleep {sleep}")
        e(f"s_branch {l}")
        A.label(d)
    def wd_voffset(dst):
        e(f"v_lshrrev_b32 {vr(t0)}, 3, {L}")
        e(f"v_and_b32 {vr(t1)}, 7, {L}")
        e(f"v_bfe_u32 {vr(t2)}, {L}, 4, 1")
        e(f"v_lshlrev_b32 {vr(t2)}, 2, {vr(t2)}")
        e(f"v_xor_b32 {vr(t1)}, {vr(t1)}, {vr(t2)}")
        e(f"v_lshlrev_b32 {vr(t1)}, 4, {vr(t1)}")
        e(f"v_lshl_add_u32 {vr(t1)}, {vr(t0)}, 10, {vr(t1)}")
        e(f"s_lshl_b32 {sr(S_T1)}, {sr(S_J)}, 7")
        e(f"v_add_u32 {vr(dst)}, {sr(S_T1)}, {vr(t1)}")
    def ku_start(dst, kg):
        e(f"s_mul_i32 {sr(dst)}, {sr(kg)}, 22")
        e(f"s_cmp_eq_u32 {sr(kg)}, 3")
        e(f"s_cselect_b32 {sr(S_T1)}, 1, 0")
        e(f"s_sub_u32 {sr(dst)}, {sr(dst)}, {sr(S_T1)}")
    def unit_at(n, dst, rot, kun):
        e(f"s_add_u32 {sr(dst)}, {sr(rot)}, {n}")
        e(f"s_cmp_ge_u32 {sr(dst)}, 22")
        e(f"s_cselect_b32 {sr(S_T5)}, 22, 0")
        e(f"s_sub_u32 {sr(dst)}, {sr(dst)}, {sr(S_T5)}")
        e(f"s_cmp_lt_u32 {sr(dst)}, {sr(kun)}")
    def wd_soff(n, dst, rot, kun, ku0, oob):
        unit_at(n, dst, rot, kun)
        e(f"s_cselect_b32 {sr(S_T5)}, 1, 0")
        e(f"s_add_u32 {sr(dst)}, {sr(dst)}, {sr(ku0)}")
        e(f"s_lshl_b32 {sr(dst)}, {sr(dst)}, 14")
        e(f"s_cmp_eq_u32 {sr(S_T5)}, 1")
        e(f"s_cselect_b32 {sr(dst)}, {sr(dst)}, {sr(oob)}")
    def ring_bases(kg, ra, rb, rc):
        e(f"s_mul_i32 {sr(ra)}, {sr(kg)}, 10240")
        e(f"s_add_u32 {sr(rb)}, {sr(ra)}, {RB_}")
        e(f"s_add_u32 {sr(ra)}, {sr(ra)}, {RA}")
        e(f"s_lshl_b32 {sr(rc)}, {sr(kg)}, 11")
        e(f"s_add_u32 {sr(rc)}, {sr(rc)}, {RC}")

    def loader_setup(lw, V_XO, V_WO, S_M0X, S_M0W):
        e(f"v_lshrrev_b32 {vr(t0)}, 3, {L}")
        e(f"v_lshrrev_b32 {vr(t1)}, 4, {L}")
        e(f"v_and_b32 {vr(t2)}, 7, {L}")
        e(f"s_lshl_b32 {sr(S_T2)}, {sr(S_RB)}, 7")
        e(f"s_lshl_b32 {sr(S_T3)}, {sr(lw)}, 5")
        e(f"s_add_u32 {sr(S_T2)}, {sr(S_T2)}, {sr(S_T3)}")
        for a in range(2):
            e(f"v_add_u32 {vr(t3)}, {4*a}, {vr(t1)}")
            e(f"v_xor_b32 {vr(t3)}, {vr(t3)}, {vr(t2)}")
            e(f"v_lshlrev_b32 {vr(t3)}, 4, {vr(t3)}")
            e(f"v_add_u32 {vr(t4)}, {sr(S_T2)}, {vr(t0)}")
            e(f"v_add_u32 {vr(t4)}, {8*a}, {vr(t4)}")
            e(f"v_lshl_add_u32 {vr(V_XO+a)}, {vr(t4)}, 10, {vr(t3)}")
        e(f"s_and_b32 {sr(S_T1)}, {sr(lw)}, 1")
        e(f"s_lshl_b32 {sr(S_T3)}, {sr(S_T1)}, 1")
        e(f"s_lshr_b32 {sr(S_T4)}, {sr(lw)}, 1")
        e(f"s_lshl_b32 {sr(S_T4)}, {sr(S_T4)}, 5")
        e(f"s_lshl_b32 {sr(S_T5)}, {sr(S_F0)}, 1")
        e(f"s_movk_i32 {sr(S_T0)}, {WROW}")
        for i in range(3):
            e(f"v_add_u32 {vr(t0)}, {64*i}, {L}")
            e(f"v_lshrrev_b32 {vr(t1)}, 4, {vr(t0)}")
            e(f"v_mul_u32_u24 {vr(t1)}, 43, {vr(t1)}")
            e(f"v_lshrrev_b32 {vr(t1)}, 7, {vr(t1)}")
            e(f"v_mul_u32_u24 {vr(t2)}, 48, {vr(t1)}")
            e(f"v_sub_u32 {vr(t2)}, {vr(t0)}, {vr(t2)}")
            e(f"v_lshrrev_b32 {vr(t3)}, 4, {vr(t2)}")
            e(f"v_bfe_u32 {vr(t4)}, {vr(t2)}, 2, 2")
            e(f"v_and_b32 {vr(t2)}, 3, {vr(t2)}")
            e(f"v_xor_b32 {vr(t2)}, {sr(S_T3)}, {vr(t2)}")
            e(f"v_lshl_add_u32 {vr(t2)}, {vr(t3)}, 2, {vr(t2)}")
            e(f"v_lshl_add_u32 {vr(t1)}, {vr(t1)}, 2, {vr(t4)}")
            e(f"v_add_u32 {vr(t1)}, {sr(S_T4)}, {vr(t1)}")
            e(f"v_mul_u32_u24 {vr(t1)}, {sr(S_T0)}, {vr(t1)}")
            e(f"v_lshl_add_u32 {vr(t2)}, {vr(t2)}, 4, {vr(t1)}")
            e(f"v_add_u32 {vr(V_WO+i)}, {sr(S_T5)}, {vr(t2)}")
        e(f"s_lshl_b32 {sr(S_M0X)}, {sr(lw)}, 12")
        e(f"s_mul_i32 {sr(S_M0W)}, {sr(S_T1)}, 12288")
        e(f"s_lshr_b32 {sr(S_T4)}, {sr(lw)}, 1")
        e(f"s_mul_i32 {sr(S_T4)}, {sr(S_T4)}, 6144")
        e(f"s_add_u32 {sr(S_M0W)}, {sr(S_M0W)}, {sr(S_T4)}")
        e(f"s_add_u32 {sr(S_M0W)}, {sr(S_M0W)}, 16384")
    def srd_w_select(lw):
        e(f"s_and_b32 {sr(S_T0)}, {sr(lw)}, 1")
        e(f"s_cmp_eq_u32 {sr(S_T0)}, 0")
        e(f"s_cselect_b32 {sr(SRD_W)}, {sr(P+14)}, {sr(P+16)}")
        e(f"s_cselect_b32 {sr(SRD_W+1)}, {sr(P+15)}, {sr(P+17)}")
        e(f"s_mov_b32 {sr(SRD_W+2)}, {WBYTES}")
        e(f"s_mov_b32 {sr(SRD_W+3)}, 0x20000")
    def dma_stage_g(s, V_XO, V_WO, S_M0X, S_M0W, S_XSO, S_WSO):
        slot = (s % 3) * STAGE
        e(f"s_mov_b32 {sr(S_XSO)}, {s*128}")
        e(f"s_add_u32 m0, {sr(S_M0X)}, {slot}")
        for a in range(4):
            if a == 2: e(f"s_mov_b32 {sr(S_XSO)}, {s*128+16384}")
            else: e("s_nop 0")
            A.vmem(f"buffer_load_dwordx4 {vr(V_XO+(a&1))}, {sr(SRD_Q,4)}, {sr(S_XSO)} offen lds", f"S{s}")
            if a < 3: e("s_add_u32 m0, m0, 1024")
        e(f"s_mov_b32 {sr(S_WSO)}, {s*64*WROW}")
        e(f"s_add_u32 m0, {sr(S_M0W)}, {slot}")
        for blk in range(2):
            for i in range(3):
                if blk == 1 and i == 0: e(f"s_mov_b32 {sr(S_WSO)}, {s*64*WROW+16*WROW}")
                else: e("s_nop 0")
                A.vmem(f"buffer_load_dwordx4 {vr(V_WO+i)}, {sr(SRD_W,4)}, {sr(S_WSO)} offen lds", f"S{s}")
                if not (blk == 1 and i == 2): e("s_add_u32 m0, m0, 1024")

    if TS: e("s_memrealtime s[44:45]")
    e(f"s_cmp_ge_u32 {sr(S_WG)}, 256")
    e("s_cbranch_scc1 L_END")
    e(f"s_load_dwordx16 {sr(P,16)}, s[0:1], 0")
    e(f"s_load_dwordx8 {sr(P+16,8)}, s[0:1], 64")
    e(f"s_load_dwordx2 {sr(P+24,2)}, s[0:1], 96")
    e(f"s_getpc_b64 {sr(S_T0,2)}")
    e("v_lshlrev_b32 v1, 6, v0")
    e(f"v_cmp_gt_u32 vcc, L_CODE_END-{NAME}_kernel, v1")
    e(f"s_and_saveexec_b64 {sr(S_EX,2)}, vcc")
    e(f"global_load_dword v2, v1, {sr(S_T0,2)}")
    e(f"s_mov_b64 exec, {sr(S_EX,2)}")
    e(f"v_and_b32 {L}, 63, v0")
    e("v_lshrrev_b32 v4, 6, v0")
    e(f"s_and_b32 {sr(S_T0)}, {sr(S_WG)}, 7")
    e(f"v_readfirstlane_b32 {sr(S_WAVE)}, v4")
    e(f"s_lshr_b32 {sr(S_T1)}, {sr(S_WG)}, 3")
    e(f"s_and_b32 {sr(S_T2)}, {sr(S_T0)}, 1")
    e(f"s_lshl_b32 {sr(S_T2)}, {sr(S_T2)}, 3")
    e(f"s_and_b32 {sr(S_T3)}, {sr(S_T1)}, 7")
    e(f"s_add_u32 {sr(S_RB)}, {sr(S_T2)}, {sr(S_T3)}")
    e(f"s_lshr_b32 {sr(S_T2)}, {sr(S_T0)}, 1")
    e(f"s_lshl_b32 {sr(S_T2)}, {sr(S_T2)}, 2")
    e(f"s_lshr_b32 {sr(S_T3)}, {sr(S_T1)}, 3")
    e(f"s_add_u32 {sr(S_CP)}, {sr(S_T2)}, {sr(S_T3)}")
    e(f"s_lshl_b32 {sr(S_T2)}, {sr(S_T0)}, 2")
    e(f"s_and_b32 {sr(S_T3)}, {sr(S_T1)}, 3")
    e(f"s_add_u32 {sr(S_I2)}, {sr(S_T2)}, {sr(S_T3)}")
    e(f"s_lshr_b32 {sr(S_J)}, {sr(S_T1)}, 2")
    e(f"s_mul_i32 {sr(S_T2)}, {sr(S_CP)}, 96")
    e(f"s_lshl_b32 {sr(S_T3)}, {sr(S_CP)}, 6")
    e(f"s_add_u32 {sr(S_T3)}, {sr(S_T3)}, 352")
    e(f"s_cmp_lt_u32 {sr(S_CP)}, 11")
    e(f"s_cselect_b32 {sr(S_F0)}, {sr(S_T2)}, {sr(S_T3)}")
    e(f"s_cselect_b32 {sr(S_N32)}, 3, 2")
    if TS:
        e(f"v_mov_b32 {vr(V_TS)}, 0")
        e("s_waitcnt lgkmcnt(0)")
        e(f"v_writelane_b32 {vr(V_TS)}, s44, 63")
        e(f"s_memrealtime s[44:45]")
        e("s_waitcnt lgkmcnt(0)")
        e(f"v_writelane_b32 {vr(V_TS)}, s44, 62")
    e(f"s_cmp_ge_u32 {sr(S_WAVE)}, 4")
    e("s_cbranch_scc1 L_HELPER")

    A.vm = ["code"]
    e(f"s_setprio {opts.get('cprio', 2)}")
    e(f"s_and_b32 {sr(S_A)}, {sr(S_WAVE)}, 1")
    e(f"s_lshr_b32 {sr(S_B)}, {sr(S_WAVE)}, 1")
    FS = [16, 36]
    V_XR, V_WR, V_XR2, V_WR2 = 56, 60, 66, 70
    ACC = 160
    e(f"v_and_b32 {vr(t0)}, 31, {L}")
    e(f"v_lshrrev_b32 {vr(t1)}, 5, {L}")
    e(f"v_bfe_u32 {vr(t2)}, {vr(t0)}, 1, 3")
    e(f"v_xor_b32 {vr(t2)}, {vr(t2)}, {vr(t1)}")
    e(f"s_lshl_b32 {sr(S_T0)}, {sr(S_A)}, 1")
    e(f"v_xor_b32 {vr(t2)}, {sr(S_T0)}, {vr(t2)}")
    e(f"s_lshl_b32 {sr(S_T0)}, {sr(S_A)}, 6")
    e(f"v_add_u32 {vr(t0)}, {sr(S_T0)}, {vr(t0)}")
    e(f"v_lshlrev_b32 {vr(t0)}, 7, {vr(t0)}")
    for ks in range(4):
        e(f"v_xor_b32 {vr(t3)}, {2*ks}, {vr(t2)}")
        e(f"v_lshl_add_u32 {vr(V_XR+ks)}, {vr(t3)}, 4, {vr(t0)}")
    e(f"v_bfe_u32 {vr(t0)}, {L}, 4, 1")
    e(f"v_lshrrev_b32 {vr(t1)}, 5, {L}")
    e(f"v_bfe_u32 {vr(t2)}, {L}, 2, 2")
    e(f"v_bfe_u32 {vr(t3)}, {L}, 1, 1")
    e(f"v_and_b32 {vr(t4)}, 1, {L}")
    e(f"s_lshl_b32 {sr(S_T0)}, {sr(S_B)}, 1")
    e(f"v_add_u32 {vr(t3)}, {sr(S_T0)}, {vr(t3)}")
    e(f"v_lshlrev_b32 {vr(t5)}, 1, {vr(t0)}")
    e(f"v_xor_b32 {vr(t3)}, {vr(t3)}, {vr(t5)}")
    e(f"v_lshlrev_b32 {vr(t3)}, 4, {vr(t3)}")
    e(f"v_lshl_add_u32 {vr(t3)}, {vr(t4)}, 3, {vr(t3)}")
    e(f"v_lshl_add_u32 {vr(t3)}, {vr(t2)}, 6, {vr(t3)}")
    e(f"v_mul_u32_u24 {vr(t1)}, 1536, {vr(t1)}")
    e(f"v_mul_u32_u24 {vr(t0)}, 12288, {vr(t0)}")
    e(f"v_add3_u32 {vr(t3)}, {vr(t3)}, {vr(t1)}, {vr(t0)}")
    e(f"v_add_u32 {vr(t3)}, 16384, {vr(t3)}")
    e(f"s_mul_i32 {sr(S_T1)}, {sr(S_A)}, 3072")
    for i in range(3):
        e(f"s_cmp_eq_u32 {sr(S_A)}, 0")
        e(f"s_cselect_b32 {sr(S_T0)}, {i*256}, {(2-i)*256}")
        e(f"s_add_u32 {sr(S_T2)}, {sr(S_T0)}, {sr(S_T1)}")
        e(f"v_add_u32 {vr(V_WR+i)}, {sr(S_T2)}, {vr(t3)}")
        e(f"s_sub_u32 {sr(S_T2)}, {sr(S_T0)}, {sr(S_T1)}")
        e(f"v_add_u32 {vr(V_WR+3+i)}, {sr(S_T2)}, {vr(t3)}")
    for ks in range(4): e(f"v_add_u32 {vr(V_XR2+ks)}, {2*STAGE}, {vr(V_XR+ks)}")
    for i in range(6): e(f"v_add_u32 {vr(V_WR2+i)}, {2*STAGE}, {vr(V_WR+i)}")
    loader_setup(S_WAVE, 94, 96, S_X0, S_X1)
    for r in range(96): e(f"v_mov_b32 {vr(ACC+r)}, 0")
    for r in range(12): e(f"v_mov_b32 {vr(80+r)}, 0")
    e(f"v_and_b32 {vr(t0)}, 15, {L}")
    e(f"v_bfe_u32 {vr(t1)}, {L}, 4, 1")
    e(f"v_cmp_eq_u32 vcc, {vr(t0)}, {vr(t1)}")
    e(f"v_mov_b32 {vr(t2)}, 0x3f803f80")
    e("s_nop 0")
    e(f"v_cndmask_b32 {vr(76)}, 0, {vr(t2)}, vcc")
    for r in range(1, 4): e(f"v_mov_b32 {vr(76+r)}, {vr(76)}")
    e("s_waitcnt lgkmcnt(0)")
    srd(SRD_Q, 0, 2 << 20); srd(SRD_WD, 9, WBYTES); srd(SRD_OUT, 10, 2 << 20); srd(SRD_WS, 12, 0x10000000)
    V_TX, V_TW, V_DUM = 100, 101, 92
    BAD = 0x7fffff00
    e(f"s_and_b32 {sr(S_T0)}, {sr(S_CP)}, 3")
    e(f"s_lshl_b32 {sr(S_T0)}, {sr(S_T0)}, 5")
    e(f"s_lshl_b32 {sr(S_T1)}, {sr(S_RB)}, 7")
    e(f"s_add_u32 {sr(S_T0)}, {sr(S_T0)}, {sr(S_T1)}")
    e(f"v_and_b32 {vr(t1)}, 31, {L}")
    e(f"v_add_u32 {vr(t1)}, {sr(S_T0)}, {vr(t1)}")
    e(f"v_lshlrev_b32 {vr(t1)}, 10, {vr(t1)}")
    e(f"v_lshrrev_b32 {vr(t0)}, 5, {L}")
    e(f"v_lshl_add_u32 {vr(V_TX)}, {vr(t0)}, 7, {vr(t1)}")
    e(f"v_cmp_gt_u32 vcc, 32, {L}")
    e(f"v_mov_b32 {vr(t2)}, {BAD}")
    e("s_nop 0")
    e(f"v_cndmask_b32 {vr(V_TX+2)}, {vr(t2)}, {vr(V_TX)}, vcc")
    e(f"s_and_b32 {sr(S_T0)}, {sr(S_RB)}, 7")
    e(f"s_lshl_b32 {sr(S_T0)}, {sr(S_T0)}, 3")
    e(f"v_lshrrev_b32 {vr(t0)}, 4, {L}")
    e(f"v_lshlrev_b32 {vr(t3)}, 6, {vr(t0)}")
    e(f"v_bfe_u32 {vr(t1)}, {L}, 1, 3")
    e(f"v_add3_u32 {vr(t3)}, {vr(t3)}, {vr(t1)}, {sr(S_T0)}")
    e(f"s_movk_i32 {sr(S_T1)}, {WROW}")
    e(f"v_mul_lo_u32 {vr(t1)}, {vr(t3)}, {sr(S_T1)}")
    e(f"v_and_b32 {vr(t2)}, 1, {L}")
    e(f"v_lshl_add_u32 {vr(t1)}, {vr(t2)}, 7, {vr(t1)}")
    e(f"s_lshl_b32 {sr(S_T1)}, {sr(S_F0)}, 1")
    e(f"v_add_u32 {vr(V_TW)}, {sr(S_T1)}, {vr(t1)}")
    e(f"v_mov_b32 {vr(t2)}, {BAD}")
    e(f"v_cmp_gt_u32 vcc, 48, {L}")
    e("s_nop 0")
    e(f"v_cndmask_b32 {vr(V_TW+2)}, {vr(t2)}, {vr(V_TW)}, vcc")
    e(f"v_cmp_gt_u32 vcc, 16, {L}")
    e("s_nop 1")
    e(f"v_cndmask_b32 {vr(V_TW+3)}, {vr(t2)}, {vr(V_TW)}, vcc")
    e(f"s_cmp_eq_u32 {sr(S_WAVE)}, 1")
    e(f"s_cselect_b32 {sr(SRD_K)}, {sr(P+14)}, {sr(P+16)}")
    e(f"s_cselect_b32 {sr(SRD_K+1)}, {sr(P+15)}, {sr(P+17)}")
    e(f"s_mov_b32 {sr(SRD_K+2)}, {WBYTES}")
    e(f"s_mov_b32 {sr(SRD_K+3)}, 0x20000")
    NPT = opts.get("npt", 3)
    def touch(stage_lo, nst):
        l1 = A.newlabel("TC"); l2 = A.newlabel("TC")
        e(f"s_cmp_eq_u32 {sr(S_WAVE)}, 0"); e(f"s_cbranch_scc0 {l1}")
        if nst == 1:
            e(f"s_movk_i32 {sr(S_T0)}, {stage_lo*128}")
            e(f"buffer_load_dword {vr(V_DUM)}, {vr(V_TX+2)}, {sr(SRD_Q,4)}, {sr(S_T0)} offen")
        else:
            e(f"s_movk_i32 {sr(S_T0)}, {stage_lo*128}")
            e(f"buffer_load_dword {vr(V_DUM)}, {vr(V_TX)}, {sr(SRD_Q,4)}, {sr(S_T0)} offen")
            e(f"s_movk_i32 {sr(S_T0)}, {(stage_lo+2)*128}")
            e(f"buffer_load_dword {vr(V_DUM)}, {vr(V_TX+2)}, {sr(SRD_Q,4)}, {sr(S_T0)} offen")
        e(f"s_branch {l2}")
        A.label(l1)
        e(f"s_mov_b32 {sr(S_T0)}, {stage_lo*64*WROW}")
        e(f"s_cmp_eq_u32 {sr(S_WAVE)}, 3")
        e(f"s_cselect_b32 {sr(S_T0)}, 0x40000000, {sr(S_T0)}")
        e(f"buffer_load_dword {vr(V_DUM)}, {vr(V_TW+3 if nst == 1 else V_TW+2)}, {sr(SRD_K,4)}, {sr(S_T0)} offen")
        A.label(l2)
    touch(1, 3)
    TLEAD = opts.get("tlead", 4)
    for st_ in range(4, TLEAD): touch(st_, 1)
    if opts.get("tfirst", 1): e("s_barrier")
    srd_w_select(S_WAVE)
    dma_stage_g(1, 94, 96, S_X0, S_X1, S_X2, S_X3)
    TOUCH2 = []
    stamp(0)
    def reads(stage, ks, st):
        b = FS[st]; out = []
        slot = stage % 3
        xr, wr, o = (V_XR, V_WR, slot*STAGE) if slot < 2 else (V_XR2, V_WR2, 0)
        out.append(f"ds_read_b128 {vr(b,4)}, {vr(xr+ks)} offset:{o}")
        wa = wr + (3 if ks & 1 else 0)
        for h in range(2): out.append(f"ds_read_b64_tr_b16 {vr(b+8+2*h,2)}, {vr(wa)} offset:{o+ks*3072+h*768}")
        out.append(f"ds_read_b128 {vr(b+4,4)}, {vr(xr+ks)} offset:{o+4096}")
        for i in range(1, 3):
            for h in range(2): out.append(f"ds_read_b64_tr_b16 {vr(b+8+4*i+2*h,2)}, {vr(wa+i)} offset:{o+ks*3072+h*768}")
        return out
    V_SEL = 76; V_CSA = 80
    def kstep(ks, st, nxt, job=()):
        b = FS[st]; mf = []
        for i in range(3):
            for tt in range(2):
                a = ACC + 16*(2*i+tt)
                mf.append((f"v_mfma_f32_32x32x16_bf16 {vr(a,16)}, {vr(b+8+4*i,4)}, {vr(b+4*tt,4)}, {vr(a,16)}", 4))
            if ks % 2 == 0 and not opts.get("nocs"):
                mf.append((f"v_mfma_f32_16x16x32_bf16 {vr(V_CSA+4*i,4)}, {vr(V_SEL,4)}, {vr(b+8+4*i,4)}, {vr(V_CSA+4*i,4)}", 2))
        fill = list(nxt) + list(job)
        cap = sum(c for _, c in mf)
        k = 0; done = 0
        for m, c in mf:
            e(m)
            done += c
            upto = (len(fill) * done + cap - 1) // cap
            for x in fill[k:upto]: e(x)
            k = max(k, upto)
    job_at = {}
    e("s_barrier")
    stamp(1)
    for x in reads(0, 0, 0): e(x)
    for it in range(8):
        for ks in range(4):
            g = 4*it + ks
            if ks == 3 and it < 7:
                e("s_waitcnt vmcnt(1) lgkmcnt(0)" if it == 0 else "s_waitcnt lgkmcnt(0)")
                if opts.get("barstamp"): stamp(24 + it)
                e("s_barrier")
                if opts.get("barstamp"): stamp(32 + it)
            else:
                e("s_waitcnt lgkmcnt(0)")
            if ks == 1 and it + TLEAD <= 7: touch(it + TLEAD, 1)
            if ks < 3: nxt = reads(it, ks + 1, (g + 1) & 1)
            elif it < 7: nxt = reads(it + 1, 0, (g + 1) & 1)
            else: nxt = []
            kstep(ks, g & 1, nxt, job_at.get(g, []))
        if opts.get("itstamp"): stamp(16 + it)
    stamp(2)
    e("s_nop 7")
    e(f"s_lshl_b32 {sr(S_T0)}, {sr(S_B)}, 1")
    e(f"s_add_u32 {sr(S_T0)}, {sr(S_T0)}, {sr(S_A)}")
    e(f"s_mul_i32 {sr(S_T0)}, {sr(S_T0)}, 384")
    e(f"s_add_u32 {sr(S_T0)}, {sr(S_T0)}, {L_CS}")
    e(f"v_lshlrev_b32 {vr(t0)}, 2, {L}")
    e(f"v_add_u32 {vr(t0)}, {sr(S_T0)}, {vr(t0)}")
    e(f"s_mov_b64 {sr(S_EX,2)}, exec")
    e("s_mov_b64 exec, 0xffff")
    for i in range(3):
        e(f"s_cmp_eq_u32 {sr(S_A)}, 0")
        e(f"s_cselect_b32 {sr(S_T1)}, {i*128}, {(2-i)*128}")
        e(f"v_add_u32 {vr(t1)}, {sr(S_T1)}, {vr(t0)}")
        e(f"ds_write_b32 {vr(t1)}, {vr(80+4*i)}")
        e(f"ds_write_b32 {vr(t1)}, {vr(80+4*i+1)} offset:64")
    e(f"s_mov_b64 exec, {sr(S_EX,2)}")
    e("s_waitcnt lgkmcnt(0)")
    e("s_barrier")
    stamp(3)
    if opts.get("g1only"):
        stamp_flush()
        e("s_endpgm")
    e("s_setprio 2")
    e(f"v_mov_b32 {vr(t0)}, {L_FLAG+32}")
    e(f"ds_read_b32 {vr(t1)}, {vr(t0)}")
    ST = 84
    e(f"v_and_b32 {vr(t2)}, 31, {L}")
    e(f"v_lshlrev_b32 {vr(t2)}, 3, {vr(t2)}")
    e(f"s_lshl_b32 {sr(S_T0)}, {sr(S_A)}, 9")
    e(f"s_add_u32 {sr(S_T0)}, {sr(S_T0)}, {L_STAT}")
    e(f"v_add_u32 {vr(t2)}, {sr(S_T0)}, {vr(t2)}")
    e(f"ds_read_b64 {vr(ST,2)}, {vr(t2)}")
    e(f"ds_read_b64 {vr(ST+2,2)}, {vr(t2)} offset:256")
    CGS = [16, 32, 48]; CG2 = [64, 96, 112]
    e(f"v_lshrrev_b32 {vr(t5)}, 5, {L}")
    e(f"v_lshlrev_b32 {vr(t5)}, 4, {vr(t5)}")
    e(f"s_mul_i32 {sr(S_T0)}, {sr(S_B)}, 768")
    e(f"s_add_u32 {sr(S_T0)}, {sr(S_T0)}, {L_CS}")
    e(f"v_add_u32 {vr(t5)}, {sr(S_T0)}, {vr(t5)}")
    for i in range(3):
        e(f"s_cmp_eq_u32 {sr(S_A)}, 0")
        e(f"s_cselect_b32 {sr(S_T1)}, {i*128}, {(2-i)*128}")
        e(f"v_add_u32 {vr(t0)}, {sr(S_T1)}, {vr(t5)}")
        for rp in range(4): e(f"ds_read_b128 {vr(CGS[i]+4*rp,4)}, {vr(t0)} offset:{32*rp}")
        for rp in range(4): e(f"ds_read_b128 {vr(CG2[i]+4*rp,4)}, {vr(t0)} offset:{384+32*rp}")
    e("s_waitcnt lgkmcnt(0)")
    e(f"v_readfirstlane_b32 {sr(S_NONCE)}, {vr(t1)}")
    C1 = -2.0 * 0.7978845608028654 * 0.044715 * 1.4426950408889634
    C0 = -2.0 * 0.7978845608028654 * 1.4426950408889634
    NMp, K1p, K0p, IRp = [144, 146], [148, 150], [152, 154], [156, 158]
    e(f"s_mov_b32 {sr(S_T4)}, {f2u(C1):#x}")
    e(f"s_mov_b32 {sr(S_T5)}, {f2u(C0):#x}")
    for tt in range(2):
        m, r = ST + 2*tt, ST + 2*tt + 1
        e(f"v_sub_f32 {vr(NMp[tt])}, 0, {vr(m)}")
        e(f"v_mul_f32 {vr(K0p[tt])}, {sr(S_T5)}, {vr(r)}")
        e(f"v_mul_f32 {vr(t3)}, {vr(r)}, {vr(r)}")
        e(f"v_mul_f32 {vr(t4)}, {vr(t3)}, {vr(r)}")
        e(f"v_mul_f32 {vr(K1p[tt])}, {sr(S_T4)}, {vr(t4)}")
        e(f"v_rcp_f32 {vr(IRp[tt])}, {vr(t3)}")
        e("s_nop 1")
        for rr in (NMp, K0p, K1p, IRp): e(f"v_mov_b32 {vr(rr[tt]+1)}, {vr(rr[tt])}")
    for i in range(3):
        for k in range(0, 16, 2): e(f"v_pk_add_f32 {vr(CGS[i]+k,2)}, {vr(CGS[i]+k,2)}, {vr(CG2[i]+k,2)}")
    TT = 128; HP = [136, 140]
    e(f"v_lshlrev_b32 {vr(t4)}, 4, {L}")
    e(f"s_lshl_b32 {sr(S_T1)}, {sr(S_RB)}, 2")
    e(f"s_lshl_b32 {sr(S_T2)}, {sr(S_A)}, 1")
    e(f"s_add_u32 {sr(S_T1)}, {sr(S_T1)}, {sr(S_T2)}")
    e(f"s_mul_i32 {sr(S_T1)}, {sr(S_T1)}, 86")
    e(f"s_lshr_b32 {sr(S_T2)}, {sr(S_F0)}, 4")
    e(f"s_add_u32 {sr(S_T1)}, {sr(S_T1)}, {sr(S_T2)}")
    e(f"s_add_u32 {sr(S_T1)}, {sr(S_T1)}, {sr(S_B)}")
    e(f"s_lshl_b32 {sr(S_T1)}, {sr(S_T1)}, 10")
    e(f"s_add_u32 {sr(S_G2)}, {sr(S_T1)}, {WS_HF}")
    for i in range(3):
        lsk = A.newlabel("EP")
        if i == 1: e(f"s_mov_b32 {sr(S_T0)}, 1")
        else:
            e(f"s_cmp_eq_u32 {sr(S_A)}, 0")
            e(f"s_cselect_b32 {sr(S_T0)}, {i}, {2-i}")
        e(f"s_cmp_ge_u32 {sr(S_T0)}, {sr(S_N32)}")
        e(f"s_cbranch_scc1 {lsk}")
        e(f"s_lshl_b32 {sr(S_T0)}, {sr(S_T0)}, 11")
        e(f"s_add_u32 {sr(S_T1)}, {sr(S_G2)}, {sr(S_T0)}")
        e(f"s_add_u32 {sr(S_T2)}, {sr(S_T1)}, {86*1024}")
        CG = CGS[i]
        for tt in range(2):
            a = ACC + 16*(2*i+tt)
            NM, K1, K0, IR = NMp[tt], K1p[tt], K0p[tt], IRp[tt]
            G = [a+2*k for k in range(4)]; U = [a+8+2*k for k in range(4)]
            cg = [CG+2*k for k in range(4)]; cu = [CG+8+2*k for k in range(4)]
            T = [TT+2*k for k in range(4)]
            for k in range(4): e(f"v_pk_fma_f32 {vr(G[k],2)}, {vr(NM,2)}, {vr(cg[k],2)}, {vr(G[k],2)}")
            for k in range(4): e(f"v_pk_mul_f32 {vr(T[k],2)}, {vr(G[k],2)}, {vr(G[k],2)}")
            for k in range(4): e(f"v_pk_fma_f32 {vr(T[k],2)}, {vr(T[k],2)}, {vr(K1,2)}, {vr(K0,2)}")
            for k in range(4): e(f"v_pk_mul_f32 {vr(T[k],2)}, {vr(T[k],2)}, {vr(G[k],2)}")
            for k in range(4):
                e(f"v_exp_f32 {vr(TT+2*k)}, {vr(TT+2*k)}")
                e(f"v_exp_f32 {vr(TT+2*k+1)}, {vr(TT+2*k+1)}")
                e(f"v_pk_fma_f32 {vr(U[k],2)}, {vr(NM,2)}, {vr(cu[k],2)}, {vr(U[k],2)}")
            for k in range(4): e(f"v_pk_fma_f32 {vr(T[k],2)}, {vr(T[k],2)}, {vr(IR,2)}, {vr(IR,2)}")
            for k in range(4):
                e(f"v_rcp_f32 {vr(TT+2*k)}, {vr(TT+2*k)}")
                e(f"v_rcp_f32 {vr(TT+2*k+1)}, {vr(TT+2*k+1)}")
                e(f"v_pk_mul_f32 {vr(G[k],2)}, {vr(G[k],2)}, {vr(U[k],2)}")
            for k in range(4): e(f"v_pk_mul_f32 {vr(G[k],2)}, {vr(G[k],2)}, {vr(T[k],2)}")
            for k in range(4): e(f"v_cvt_pk_bf16_f32 {vr(HP[tt]+k)}, {vr(G[k])}, {vr(G[k]+1)}")
            A.vmem(f"buffer_store_dwordx4 {vr(HP[tt],4)}, {vr(t4)}, {sr(SRD_WS,4)}, {sr(S_T1 if tt == 0 else S_T2)} offen sc0 sc1", "hst")
        A.label(lsk)
    stamp(4)
    e(f"s_lshl_b32 {sr(S_T0)}, {sr(S_WAVE)}, 2")
    e(f"s_add_u32 {sr(S_T0)}, {sr(S_T0)}, {L_FLAG+48}")
    e(f"v_mov_b32 {vr(t0)}, {sr(S_T0)}")
    e(f"v_mov_b32 {vr(t1)}, 1")
    e(f"ds_write_b32 {vr(t0)}, {vr(t1)}")
    GACC = 160; PH = opts.get('ph', 8); GH = 16; GW = 80
    GACC = 176
    GW = 80
    GA = [168, 240]
    V_AR = 248
    V_HL, V_DO = 254, 255
    S_KU0, S_KUN, S_RA, S_RBB, S_RC, S_H0 = S_G0, S_G1, S_G2, S_G3, S_G4, S_G5
    S_H1, S_OOB, S_DSO, S_ROT, S_HB = S_C0, S_C1, S_X0, S_X1, S_X2
    e(f"s_mul_i32 {sr(S_ROT)}, {sr(S_J)}, {opts.get('rot', 3)}")
    ku_start(S_KU0, S_WAVE)
    e(f"s_cmp_lt_u32 {sr(S_WAVE)}, 2")
    e(f"s_cselect_b32 {sr(S_KUN)}, 22, 21")
    ring_bases(S_WAVE, S_RA, S_RBB, S_RC)
    wd_voffset(V_DO)
    e(f"v_lshrrev_b32 {vr(t0)}, 5, {L}")
    e(f"v_bfe_u32 {vr(t1)}, {L}, 2, 2")
    e(f"v_lshl_add_u32 {vr(t0)}, {vr(t0)}, 2, {vr(t1)}")
    e(f"v_lshlrev_b32 {vr(t0)}, 7, {vr(t0)}")
    e(f"v_bfe_u32 {vr(t2)}, {L}, 4, 1")
    e(f"v_bfe_u32 {vr(t3)}, {L}, 1, 1")
    e(f"v_lshl_add_u32 {vr(t2)}, {vr(t2)}, 1, {vr(t3)}")
    e(f"v_lshlrev_b32 {vr(t2)}, 4, {vr(t2)}")
    e(f"v_and_b32 {vr(t3)}, 1, {L}")
    e(f"v_lshl_add_u32 {vr(t2)}, {vr(t3)}, 3, {vr(t2)}")
    e(f"v_add_u32 {vr(t0)}, {vr(t0)}, {vr(t2)}")
    e(f"v_bfe_u32 {vr(t1)}, {L}, 3, 1")
    e(f"v_lshlrev_b32 {vr(t1)}, 6, {vr(t1)}")
    e(f"v_add_u32 {vr(t2)}, {vr(t0)}, {vr(t1)}")
    e(f"v_xor_b32 {vr(t1)}, 64, {vr(t1)}")
    e(f"v_add_u32 {vr(t3)}, {vr(t0)}, {vr(t1)}")
    for bi, sb in enumerate((S_RA, S_RBB, S_RC)):
        e(f"v_add_u32 {vr(V_AR+2*bi)}, {sr(sb)}, {vr(t2)}")
        e(f"v_add_u32 {vr(V_AR+2*bi+1)}, {sr(sb)}, {vr(t3)}")
    e(f"v_lshlrev_b32 {vr(V_HL)}, 4, {L}")
    e(f"s_mov_b32 {sr(S_OOB)}, 0x20000000")
    e("s_waitcnt vmcnt(0)")
    e(f"s_lshl_b32 {sr(S_T0)}, {sr(S_RB)}, 8")
    e(f"s_lshl_b32 {sr(S_T1)}, {sr(S_CP)}, 4")
    e(f"s_lshl_b32 {sr(S_T2)}, {sr(S_WAVE)}, 2")
    e(f"s_add_u32 {sr(S_T0)}, {sr(S_T0)}, {sr(S_T1)}")
    e(f"s_add_u32 {sr(S_T0)}, {sr(S_T0)}, {sr(S_T2)}")
    e(f"s_add_u32 {sr(S_T0)}, {sr(S_T0)}, {WS_FL+FL_H}")
    flag_set(S_T0, t0)
    stamp(5)
    e(f"s_lshl_b32 {sr(S_T0)}, {sr(S_WAVE)}, 2")
    e(f"s_add_u32 {sr(S_T0)}, {sr(S_T0)}, {L_FLAG+16}")
    lds_spin(S_T0, t0, t1)
    def afrag_reads(n, dst):
        bi, off = ring_off(n); out = []
        for dt in range(2):
            for h in range(2):
                out.append(f"ds_read_b64_tr_b16 {vr(dst+4*dt+2*h,2)}, {vr(V_AR+2*bi+dt)} offset:{off+1024*h}")
        return out
    for n in range(NR):
        for x in afrag_reads(n, GW+8*n): e(x)
        if n % 3 == 2: e("s_waitcnt lgkmcnt(4)")
    e("s_waitcnt lgkmcnt(0)")
    for n in range(NR):
        bi, off = ring_off(n)
        sb = (S_RA, S_RBB, S_RC)[bi]
        wd_soff(NR + n, S_DSO, S_ROT, S_KUN, S_KU0, S_OOB)
        for a in range(2):
            e(f"s_add_u32 m0, {sr(sb)}, {off + 1024*a}")
            if a == 1: e(f"s_add_u32 {sr(S_DSO)}, {sr(S_DSO)}, 8192")
            else: e("s_nop 0")
            A.vmem(f"buffer_load_dwordx4 {vr(V_DO)}, {sr(SRD_WD,4)}, {sr(S_DSO)} offen lds", "WR2")
    for r in range(64): e(f"v_mov_b32 {vr(GACC+r)}, 0")
    stamp(6)
    e(f"s_lshr_b32 {sr(S_T0)}, {sr(S_I2)}, 1")
    e(f"s_lshl_b32 {sr(S_T0)}, {sr(S_T0)}, 8")
    e(f"s_add_u32 {sr(S_T0)}, {sr(S_T0)}, {WS_FL+FL_H}")
    lh1 = A.newlabel("HP"); lh2 = A.newlabel("HP")
    e(f"s_cmp_lg_u32 {sr(S_WAVE)}, 0")
    e(f"s_cbranch_scc1 {lh1}")
    flag_wait_blocking(t1, 1, S_T0, sleep=opts.get('hsleep', 2))
    e(f"v_mov_b32 {vr(t0)}, {L_FLAG+72}")
    e(f"v_mov_b32 {vr(t1)}, 1")
    e(f"ds_write_b32 {vr(t0)}, {vr(t1)}")
    e(f"s_branch {lh2}")
    A.label(lh1)
    e(f"s_mov_b32 {sr(S_T0)}, {L_FLAG+72}")
    lds_spin(S_T0, t1, t0, sleep=1)
    e("s_waitcnt vmcnt(0)")
    A.label(lh2)
    stamp(7)
    e(f"s_lshl_b32 {sr(S_T0)}, {sr(S_I2)}, 1")
    e(f"s_mul_i32 {sr(S_T0)}, {sr(S_T0)}, 86")
    e(f"s_add_u32 {sr(S_T0)}, {sr(S_T0)}, {sr(S_KU0)}")
    e(f"s_lshl_b32 {sr(S_T0)}, {sr(S_T0)}, 10")
    e(f"s_add_u32 {sr(S_HB)}, {sr(S_T0)}, {WS_HF}")
    A.vm = []
    def hload(n):
        hb = GH + 8*(n % PH)
        unit_at(n, S_H0, S_ROT, S_KUN)
        e(f"s_cselect_b32 {sr(S_T5)}, 1, 0")
        e(f"s_lshl_b32 {sr(S_H0)}, {sr(S_H0)}, 10")
        e(f"s_add_u32 {sr(S_H0)}, {sr(S_H0)}, {sr(S_HB)}")
        e(f"s_cmp_eq_u32 {sr(S_T5)}, 1")
        e(f"s_cselect_b32 {sr(S_H0)}, {sr(S_H0)}, {sr(S_OOB)}")
        e(f"s_add_u32 {sr(S_H1)}, {sr(S_H0)}, {86*1024}")
        A.vmem(f"buffer_load_dwordx4 {vr(hb,4)}, {vr(V_HL)}, {sr(SRD_WS,4)}, {sr(S_H0)} offen{HSC}", f"H{n}")
        A.vmem(f"buffer_load_dwordx4 {vr(hb+4,4)}, {vr(V_HL)}, {sr(SRD_WS,4)}, {sr(S_H1)} offen{HSC}", f"H{n}")
    for n in range(PH): hload(n)
    for n in range(22):
        hb = GH + 8*(n % PH)
        if n < NR: aw = GW + 8*n
        else: aw = GA[n & 1]
        if n + 1 >= NR and n + 1 < 22:
            for x in afrag_reads(n + 1 - NR, GA[(n+1) & 1]): e(x)
        A.wait_vm(f"H{n}")
        if n >= NR: e("s_waitcnt lgkmcnt(4)" if n + 1 < 22 else "s_waitcnt lgkmcnt(0)")
        e(f"v_mfma_f32_32x32x16_bf16 {vr(GACC,16)}, {vr(aw,4)}, {vr(hb,4)}, {vr(GACC,16)}")
        e(f"v_mfma_f32_32x32x16_bf16 {vr(GACC+16,16)}, {vr(aw,4)}, {vr(hb+4,4)}, {vr(GACC+16,16)}")
        e(f"v_mfma_f32_32x32x16_bf16 {vr(GACC+32,16)}, {vr(aw+4,4)}, {vr(hb,4)}, {vr(GACC+32,16)}")
        e(f"v_mfma_f32_32x32x16_bf16 {vr(GACC+48,16)}, {vr(aw+4,4)}, {vr(hb+4,4)}, {vr(GACC+48,16)}")
        if n + PH < 22: hload(n + PH)
        if n == opts.get("yun", 12):
            e(f"v_mov_b32 {vr(t0)}, {L_FLAG+64}")
            e(f"v_mov_b32 {vr(t1)}, 1")
            e(f"ds_write_b32 {vr(t0)}, {vr(t1)}")
        if opts.get("g2stamp") and n % 2 == 1: stamp(32 + n // 2)
    stamp(8)
    e("s_nop 7")
    e(f"v_and_b32 {vr(t0)}, 31, {L}")
    e(f"v_lshrrev_b32 {vr(t1)}, 5, {L}")
    e(f"v_mul_u32_u24 {vr(t0)}, 272, {vr(t0)}")
    e(f"v_lshl_add_u32 {vr(t0)}, {vr(t1)}, 4, {vr(t0)}")
    e(f"v_add_u32 {vr(t1)}, {sr(S_RBB)}, {vr(t0)}")
    e(f"v_add_u32 {vr(t0)}, {sr(S_RA)}, {vr(t0)}")
    for dt in range(2):
        for tt in range(2):
            for rp in range(4):
                a = GACC + 16*(2*dt+tt) + 4*rp
                e(f"ds_write_b128 {vr(t0 if tt == 0 else t1)}, {vr(a,4)} offset:{dt*128 + rp*32}")
    e("s_branch L_FINAL")

    A.label("L_HELPER")
    A.vm = ["code"]
    if opts.get("g1only"):
        for _ in range(10): e("s_barrier")
        e("s_endpgm")
    S_LW = S_A
    e(f"s_sub_u32 {sr(S_LW)}, {sr(S_WAVE)}, 4")
    V_XO, V_WO, V_L16, V_TO, V_DO2 = 16, 18, 21, 22, 23
    S_XSO, S_WSO, S_M0X, S_M0W = S_G0, S_G1, S_G3, S_G4
    BAD = 0x7fffff00
    e(f"v_lshlrev_b32 {vr(V_L16)}, 4, {L}")
    loader_setup(S_LW, V_XO, V_WO, S_M0X, S_M0W)
    S_ROW = S_G5
    e(f"s_lshl_b32 {sr(S_ROW)}, {sr(S_RB)}, 7")
    e(f"s_lshl_b32 {sr(S_T0)}, {sr(S_CP)}, 3")
    e(f"s_add_u32 {sr(S_ROW)}, {sr(S_ROW)}, {sr(S_T0)}")
    e(f"s_lshl_b32 {sr(S_T0)}, {sr(S_LW)}, 1")
    e(f"s_add_u32 {sr(S_ROW)}, {sr(S_ROW)}, {sr(S_T0)}")
    e(f"v_lshrrev_b32 {vr(t0)}, 3, {L}")
    e(f"v_and_b32 {vr(t1)}, 7, {L}")
    e(f"v_lshrrev_b32 {vr(t2)}, 4, {L}")
    e(f"s_and_b32 {sr(S_T1)}, {sr(S_LW)}, 1")
    e(f"s_lshl_b32 {sr(S_T1)}, {sr(S_T1)}, 2")
    e(f"v_add_u32 {vr(t2)}, {sr(S_T1)}, {vr(t2)}")
    e(f"v_xor_b32 {vr(t1)}, {vr(t1)}, {vr(t2)}")
    e(f"v_lshlrev_b32 {vr(t1)}, 4, {vr(t1)}")
    e(f"v_lshl_add_u32 {vr(t1)}, {vr(t0)}, 10, {vr(t1)}")
    e(f"s_lshl_b32 {sr(S_T1)}, {sr(S_J)}, 7")
    e(f"v_add_u32 {vr(V_TO)}, {sr(S_T1)}, {vr(t1)}")
    wd_voffset(V_DO2)
    e("s_waitcnt lgkmcnt(0)")
    srd(SRD_Q, 0, 2 << 20)
    srd_w_select(S_LW)
    stamp(0)
    def dma_stage(s): dma_stage_g(s, V_XO, V_WO, S_M0X, S_M0W, S_XSO, S_WSO)
    SX = 24; V_NL = 33; V_SL = 116; V_SLA = 34; V_FL = 114; V_DUM = 32
    e(f"s_lshl_b32 {sr(S_T0)}, {sr(S_ROW)}, 10")
    A.vmem(f"buffer_load_dwordx4 {vr(SX,4)}, {vr(V_L16)}, {sr(SRD_Q,4)}, {sr(S_T0)} offen", "SX")
    A.vmem(f"buffer_load_dwordx4 {vr(SX+4,4)}, {vr(V_L16)}, {sr(SRD_Q,4)}, {sr(S_T0)} offen offset:1024", "SX")
    srd(SRD_DBG, 11, 256)
    lnn = A.newlabel("NN")
    e(f"s_cmp_lg_u32 {sr(S_WG)}, 0")
    e(f"s_cbranch_scc1 {lnn}")
    e(f"s_cmp_lg_u32 {sr(S_WAVE)}, 4")
    e(f"s_cbranch_scc1 {lnn}")
    e(f"s_memrealtime {sr(S_T0,2)}")
    e("s_waitcnt lgkmcnt(0)")
    e(f"s_or_b32 {sr(S_T0)}, {sr(S_T0)}, 1")
    e(f"v_mov_b32 {vr(t0)}, {sr(S_T0)}")
    e(f"buffer_store_dword {vr(t0)}, off, {sr(SRD_DBG,4)}, 0 sc0 sc1")
    A.label(lnn)
    if opts.get("tfirst", 1): e("s_barrier")
    dma_stage(0)
    if not opts.get("tfirst", 1): e("s_barrier")
    srd(SRD_K, 1, 2 << 20); srd(SRD_V, 2, 2 << 20)
    srd(SRD_WS, 12, 0x10000000); srd(SRD_WD, 9, WBYTES)
    def tiles():
        e(f"s_lshl_b32 {sr(S_T0)}, {sr(S_I2)}, 16")
        for srd_, base in ((SRD_K, L_KT), (SRD_V, L_VT)):
            for gi in range(2):
                e(f"s_add_u32 {sr(S_T1)}, {sr(S_LW)}, {4*gi}")
                e(f"s_lshl_b32 {sr(S_T2)}, {sr(S_T1)}, 13")
                e(f"s_add_u32 {sr(S_T2)}, {sr(S_T2)}, {sr(S_T0)}")
                e(f"s_lshl_b32 {sr(S_T1)}, {sr(S_T1)}, 10")
                e(f"s_add_u32 m0, {sr(S_T1)}, {base}")
                e("s_nop 0")
                A.vmem(f"buffer_load_dwordx4 {vr(V_TO)}, {sr(srd_,4)}, {sr(S_T2)} offen lds", "P")
    S_CIDX = S_C1
    HK = [88, 96]; HPB = 112
    def hk_loads():
        e(f"s_lshl_b32 {sr(S_T0)}, {sr(S_WG)}, 1")
        e(f"s_add_u32 {sr(S_T0)}, {sr(S_T0)}, {sr(S_CIDX)}")
        e(f"s_lshl_b32 {sr(S_T0)}, {sr(S_T0)}, 12")
        e(f"s_add_u32 {sr(SRD_SK)}, {sr(P+8)}, {sr(S_T0)}")
        e(f"s_addc_u32 {sr(SRD_SK+1)}, {sr(P+9)}, 0")
        e(f"s_mov_b32 {sr(SRD_SK+2)}, 4096")
        e(f"s_mov_b32 {sr(SRD_SK+3)}, 0x20000")
        e(f"s_and_b32 {sr(S_T1)}, {sr(S_LW)}, 1")
        e(f"s_lshl_b32 {sr(S_T1)}, {sr(S_T1)}, 11")
        for y in range(2):
            e(f"s_add_u32 {sr(S_T2)}, {sr(S_T1)}, {1024*y}")
            A.vmem(f"buffer_load_dwordx4 {vr(HK[y],4)}, {vr(V_L16)}, {sr(SRD_SK,4)}, {sr(S_T2)} offen", "HK")
            A.vmem(f"buffer_load_dwordx2 {vr(HK[y]+4,2)}, {vr(V_L16)}, {sr(SRD_SK,4)}, {sr(S_T2)} offen offset:16", "HK")
        e(f"v_cmp_eq_u32 vcc, 1, {L}")
        e(f"v_mov_b32 {vr(t5)}, 0x10000")
        e("s_nop 0")
        e(f"v_cndmask_b32 {vr(t5)}, {vr(t5)}, 0, vcc")
        A.vmem(f"buffer_load_dwordx2 {vr(HPB,2)}, {vr(t5)}, {sr(SRD_SK,4)}, 0 offen", "HK")
    def wd_touch():
        e(f"s_mul_i32 {sr(S_T0)}, {sr(S_WG)}, {43*128}")
        e(f"s_mul_i32 {sr(S_T1)}, {sr(S_LW)}, 11")
        e(f"v_add_u32 {vr(t4)}, {sr(S_T1)}, {L}")
        e(f"v_cmp_gt_u32 vcc, 11, {L}")
        e(f"v_lshlrev_b32 {vr(t4)}, 7, {vr(t4)}")
        e(f"v_add_u32 {vr(t4)}, {sr(S_T0)}, {vr(t4)}")
        e(f"v_mov_b32 {vr(t5)}, {BAD}")
        e(f"v_cndmask_b32 {vr(t4)}, {vr(t5)}, {vr(t4)}, vcc")
        A.vmem(f"buffer_load_dword {vr(V_DUM)}, {vr(t4)}, {sr(SRD_WD,4)}, 0 offen", "T2")
    e(f"s_lshr_b32 {sr(S_CIDX)}, {sr(S_LW)}, 1")
    PPOS = opts.get("ppos", -1)
    if PPOS < 0: tiles()
    A.vmem(f"buffer_load_dword {vr(V_NL)}, off, {sr(SRD_DBG,4)}, 0 sc1", "NL")
    e(f"v_lshlrev_b32 {vr(t0)}, 2, {L}")
    e(f"v_add_u32 {vr(t0)}, {L_FLAG}, {vr(t0)}")
    e(f"v_mov_b32 {vr(t1)}, 0")
    e(f"s_mov_b64 {sr(S_EX,2)}, exec")
    e("s_mov_b64 exec, 0xfffffff")
    e(f"ds_write_b32 {vr(t0)}, {vr(t1)}")
    e(f"s_mov_b64 exec, {sr(S_EX,2)}")
    A.wait_vm("SX")
    XU = 120; SA = 136
    for rr in range(2):
        for k in range(4):
            e(f"v_lshlrev_b32 {vr(XU+8*rr+2*k)}, 16, {vr(SX+4*rr+k)}")
            e(f"v_and_b32 {vr(XU+8*rr+2*k+1)}, 0xffff0000, {vr(SX+4*rr+k)}")
    def wave_reduce(regs):
        for sh in ("row_shr:1", "row_shr:2", "row_shr:4", "row_shr:8"):
            for r in regs: e(f"v_add_f32_dpp {vr(r)}, {vr(r)}, {vr(r)} {sh} row_mask:0xf bank_mask:0xf bound_ctrl:0")
            e("s_nop 0")
        for r in regs: e(f"v_add_f32_dpp {vr(r)}, {vr(r)}, {vr(r)} row_bcast:15 row_mask:0xa bank_mask:0xf")
        e("s_nop 0")
        for r in regs: e(f"v_add_f32_dpp {vr(r)}, {vr(r)}, {vr(r)} row_bcast:31 row_mask:0xc bank_mask:0xf")
        e("s_nop 1")
    for k in range(1, 8):
        for rr in range(2):
            b = XU + 8*rr
            if k == 1: e(f"v_add_f32 {vr(SA+rr)}, {vr(b)}, {vr(b+1)}")
            else: e(f"v_add_f32 {vr(SA+rr)}, {vr(SA+rr)}, {vr(b+k)}")
    e("s_nop 1")
    wave_reduce([SA, SA+1])
    e(f"v_readlane_b32 {sr(S_T0)}, {vr(SA)}, 63")
    e(f"v_readlane_b32 {sr(S_T1)}, {vr(SA+1)}, 63")
    e(f"v_mov_b32 {vr(SA+2)}, 0x3b000000")
    e("s_nop 0")
    e(f"v_mul_f32 {vr(SA+4)}, {sr(S_T0)}, {vr(SA+2)}")
    e(f"v_mul_f32 {vr(SA+5)}, {sr(S_T1)}, {vr(SA+2)}")
    for k in range(8):
        for rr in range(2): e(f"v_sub_f32 {vr(XU+8*rr+k)}, {vr(XU+8*rr+k)}, {vr(SA+4+rr)}")
    for k in range(8):
        for rr in range(2):
            b = XU + 8*rr
            if k == 0: e(f"v_mul_f32 {vr(SA+rr)}, {vr(b)}, {vr(b)}")
            else: e(f"v_fma_f32 {vr(SA+rr)}, {vr(b+k)}, {vr(b+k)}, {vr(SA+rr)}")
    e("s_nop 1")
    wave_reduce([SA, SA+1])
    e(f"v_readlane_b32 {sr(S_T0)}, {vr(SA)}, 63")
    e(f"v_readlane_b32 {sr(S_T1)}, {vr(SA+1)}, 63")
    e(f"v_cmp_eq_u32 vcc, 1, {L}")
    e("s_nop 0")
    e(f"v_mov_b32 {vr(SA)}, {sr(S_T0)}")
    e(f"v_mov_b32 {vr(SA+1)}, {sr(S_T1)}")
    e(f"v_cndmask_b32 {vr(SA)}, {vr(SA)}, {vr(SA+1)}, vcc")
    e(f"v_cndmask_b32 {vr(SA+4)}, {vr(SA+4)}, {vr(SA+5)}, vcc")
    e(f"v_mul_f32 {vr(SA)}, {vr(SA)}, {vr(SA+2)}")
    e(f"v_cvt_pk_bf16_f32 {vr(SA)}, {vr(SA)}, {vr(SA)}")
    e(f"v_lshlrev_b32 {vr(SA)}, 16, {vr(SA)}")
    e(f"v_add_f32 {vr(SA)}, 0x3727c5ac, {vr(SA)}")
    e(f"v_cvt_pk_bf16_f32 {vr(SA)}, {vr(SA)}, {vr(SA)}")
    e(f"v_lshlrev_b32 {vr(SA)}, 16, {vr(SA)}")
    e(f"v_sqrt_f32 {vr(SA)}, {vr(SA)}")
    e("s_nop 0")
    V_STP = 110
    e(f"v_cvt_pk_bf16_f32 {vr(V_STP)}, {vr(SA+4)}, {vr(SA)}")
    A.wait_vm("S0")
    e("s_waitcnt lgkmcnt(0)")
    e("s_barrier")
    stamp(1)
    def it_end(it, stages, waits=()):
        if opts.get("barstamp"): stamp(24 + it)
        if waits: A.wait_vm(*waits)
        e("s_waitcnt lgkmcnt(0)")
        if opts.get("barstamp"): stamp(32 + it)
        e("s_barrier")
        if opts.get("barstamp"): stamp(40 + it)
        for st_ in stages: st_()
        if opts.get("barstamp"): stamp(48 + it)
    def job_nonce_sts():
        lok = A.newlabel("NOK"); lre = A.newlabel("NRE")
        e(f"s_mov_b32 {sr(S_T3)}, 0x40000")
        A.label(lre)
        e(f"v_readfirstlane_b32 {sr(S_NONCE)}, {vr(V_NL)}")
        e("s_nop 3")
        e(f"s_cmp_lg_u32 {sr(S_NONCE)}, 0")
        e(f"s_cbranch_scc1 {lok}")
        e(f"s_sub_u32 {sr(S_T3)}, {sr(S_T3)}, 1")
        e(f"s_cmp_eq_u32 {sr(S_T3)}, 0")
        e(f"s_cbranch_scc1 {lok}")
        e("s_sleep 2")
        e(f"buffer_load_dword {vr(V_NL)}, off, {sr(SRD_DBG,4)}, 0 sc1")
        e("s_waitcnt vmcnt(0)")
        e(f"s_branch {lre}")
        A.label(lok)
        e(f"v_mov_b32 {vr(t0)}, {L_FLAG+32}")
        e(f"v_mov_b32 {vr(V_STP+1)}, {sr(S_NONCE)}")
        e(f"ds_write_b32 {vr(t0)}, {vr(V_STP+1)}")
        e(f"s_lshl_b32 {sr(S_T0)}, {sr(S_ROW)}, 3")
        e(f"s_add_u32 {sr(S_T0)}, {sr(S_T0)}, {WS_ST}")
        e(f"v_lshlrev_b32 {vr(t0)}, 3, {L}")
        e(f"s_mov_b64 {sr(S_EX,2)}, exec")
        e("s_mov_b64 exec, 3")
        A.vmem(f"buffer_store_dwordx2 {vr(V_STP,2)}, {vr(t0)}, {sr(SRD_WS,4)}, {sr(S_T0)} offen sc0 sc1", "STS")
        e(f"s_mov_b64 exec, {sr(S_EX,2)}")
    T = 128
    def job_tr_store():
        e(f"v_and_b32 {vr(t0)}, 3, {L}")
        e(f"v_bfe_u32 {vr(t1)}, {L}, 4, 1")
        e(f"v_lshl_add_u32 {vr(t0)}, {vr(t1)}, 2, {vr(t0)}")
        e(f"v_lshlrev_b32 {vr(t0)}, 3, {vr(t0)}")
        e(f"v_bfe_u32 {vr(t1)}, {L}, 2, 2")
        e(f"v_sub_u32 {vr(t0)}, {vr(t0)}, {vr(t1)}")
        e(f"v_add_u32 {vr(t0)}, 7, {vr(t0)}")
        e(f"v_lshrrev_b32 {vr(t3)}, 5, {L}")
        e(f"v_lshlrev_b32 {vr(t3)}, 3, {vr(t3)}")
        e(f"s_lshl_b32 {sr(S_T0)}, {sr(S_LW)}, 1")
        for h in range(2):
            if h == 1: e(f"v_subrev_u32 {vr(t0)}, 4, {vr(t0)}")
            e(f"v_bfe_u32 {vr(t1)}, {vr(t0)}, 1, 3")
            e(f"v_xor_b32 {vr(t1)}, {sr(S_T0)}, {vr(t1)}")
            e(f"v_lshlrev_b32 {vr(t1)}, 4, {vr(t1)}")
            e(f"v_lshl_add_u32 {vr(t1)}, {vr(t0)}, 7, {vr(t1)}")
            e(f"v_add_u32 {vr(t1)}, {vr(t1)}, {vr(t3)}")
            e(f"v_add_u32 {vr(t1)}, {L_KT}, {vr(t1)}")
            e(f"v_xor_b32 {vr(t2)}, 16, {vr(t1)}")
            for x, a in ((0, t1), (1, t2)):
                e(f"ds_read_b64_tr_b16 {vr(T+4*x+2*h,2)}, {vr(a)}")
                e(f"ds_read_b64_tr_b16 {vr(T+8+4*x+2*h,2)}, {vr(a)} offset:{L_VT-L_KT}")
        e(f"v_and_b32 {vr(t1)}, 3, {L}")
        e(f"v_lshrrev_b32 {vr(t2)}, 5, {L}")
        e(f"v_lshl_add_u32 {vr(t1)}, {vr(t2)}, 2, {vr(t1)}")
        e(f"v_lshlrev_b32 {vr(t1)}, 12, {vr(t1)}")
        e(f"v_bfe_u32 {vr(t2)}, {L}, 2, 3")
        e(f"v_lshlrev_b32 {vr(t2)}, 4, {vr(t2)}")
        e(f"v_sub_u32 {vr(t1)}, {vr(t1)}, {vr(t2)}")
        e(f"v_add_u32 {vr(t1)}, 4080, {vr(t1)}")
        e(f"s_lshl_b32 {sr(S_T0)}, {sr(S_J)}, 6")
        e(f"s_lshl_b32 {sr(S_T1)}, {sr(S_LW)}, 4")
        e(f"s_add_u32 {sr(S_T0)}, {sr(S_T0)}, {sr(S_T1)}")
        e(f"s_lshl_b32 {sr(S_T0)}, {sr(S_T0)}, 12")
        e(f"s_lshl_b32 {sr(S_T1)}, {sr(S_I2)}, 7")
        e(f"s_sub_u32 {sr(S_T0)}, {sr(S_T0)}, {sr(S_T1)}")
        e(f"v_add_u32 {vr(t1)}, {sr(S_T0)}, {vr(t1)}")
        e(f"v_add_u32 {vr(t2)}, {8*4096}, {vr(t1)}")
        e(f"s_mov_b32 {sr(S_T0)}, {WS_VT}")
        e("s_waitcnt lgkmcnt(0)")
        A.vmem(f"buffer_store_dwordx4 {vr(T,4)}, {vr(t1)}, {sr(SRD_WS,4)}, 0 offen sc0 sc1", "KVS")
        A.vmem(f"buffer_store_dwordx4 {vr(T+4,4)}, {vr(t2)}, {sr(SRD_WS,4)}, 0 offen sc0 sc1", "KVS")
        A.vmem(f"buffer_store_dwordx4 {vr(T+8,4)}, {vr(t1)}, {sr(SRD_WS,4)}, {sr(S_T0)} offen sc0 sc1", "KVS")
        A.vmem(f"buffer_store_dwordx4 {vr(T+12,4)}, {vr(t2)}, {sr(SRD_WS,4)}, {sr(S_T0)} offen sc0 sc1", "KVS")
    S_STO = S_X3
    def job_sl():
        e(f"s_lshl_b32 {sr(S_STO)}, {sr(S_RB)}, 7")
        e(f"s_lshl_b32 {sr(S_T1)}, {sr(S_LW)}, 5")
        e(f"s_add_u32 {sr(S_STO)}, {sr(S_STO)}, {sr(S_T1)}")
        e(f"s_lshl_b32 {sr(S_STO)}, {sr(S_STO)}, 3")
        e(f"s_add_u32 {sr(S_STO)}, {sr(S_STO)}, {WS_ST}")
        e(f"v_and_b32 {vr(V_SLA)}, 31, {L}")
        e(f"v_lshlrev_b32 {vr(V_SLA)}, 3, {vr(V_SLA)}")
        A.vmem(f"buffer_load_dwordx2 {vr(V_SL,2)}, {vr(V_SLA)}, {sr(SRD_WS,4)}, {sr(S_STO)} offen sc1", "SL")
    def job_kvf():
        A.wait_vm("KVS")
        e(f"s_lshl_b32 {sr(S_T0)}, {sr(S_J)}, 9")
        e(f"s_lshl_b32 {sr(S_T1)}, {sr(S_I2)}, 4")
        e(f"s_lshl_b32 {sr(S_T2)}, {sr(S_LW)}, 2")
        e(f"s_add_u32 {sr(S_T0)}, {sr(S_T0)}, {sr(S_T1)}")
        e(f"s_add_u32 {sr(S_T0)}, {sr(S_T0)}, {sr(S_T2)}")
        e(f"s_add_u32 {sr(S_T0)}, {sr(S_T0)}, {WS_FL+FL_KV}")
        flag_set(S_T0, t0)
    S_C, S_KVO, S_W, S_OKF = 62, 63, 64, 70
    def job_conv_scalars():
        e(f"s_lshl_b32 {sr(S_C)}, {sr(S_WG)}, 1")
        e(f"s_add_u32 {sr(S_C)}, {sr(S_C)}, {sr(S_CIDX)}")
        e(f"s_lshr_b32 {sr(S_KVO)}, {sr(S_C)}, 6")
        e(f"s_lshl_b32 {sr(S_KVO)}, {sr(S_KVO)}, 9")
        e(f"s_add_u32 {sr(S_KVO)}, {sr(S_KVO)}, {WS_FL+FL_KV}")
        e(f"s_lshl_b32 {sr(S_T0)}, {sr(S_C)}, 3")
        e(f"s_load_dwordx2 {sr(S_W,2)}, {sr(P+6,2)}, {sr(S_T0)}")
        e("s_waitcnt lgkmcnt(0)")
        e(f"s_and_b32 {sr(S_W+3)}, {sr(S_W+1)}, 0xffff0000")
        e(f"s_lshl_b32 {sr(S_W+2)}, {sr(S_W+1)}, 16")
        e(f"s_and_b32 {sr(S_W+1)}, {sr(S_W)}, 0xffff0000")
        e(f"s_lshl_b32 {sr(S_W)}, {sr(S_W)}, 16")
    def job_statchk():
        A.wait_vm("SL")
        lsr = A.newlabel("SR"); lso = A.newlabel("SO")
        e(f"s_mov_b32 {sr(S_T3)}, 0x40000")
        A.label(lsr)
        e(f"v_cmp_eq_u32 vcc, {sr(S_NONCE)}, {vr(V_SL+1)}")
        e("s_nop 1")
        e("s_cmp_eq_u64 vcc, -1")
        e(f"s_cbranch_scc1 {lso}")
        e(f"s_sub_u32 {sr(S_T3)}, {sr(S_T3)}, 1")
        e(f"s_cmp_eq_u32 {sr(S_T3)}, 0")
        e(f"s_cbranch_scc1 {lso}")
        e("s_sleep 2")
        e(f"buffer_load_dwordx2 {vr(V_SL,2)}, {vr(V_SLA)}, {sr(SRD_WS,4)}, {sr(S_STO)} offen sc1")
        e("s_waitcnt vmcnt(0)")
        e(f"s_branch {lsr}")
        A.label(lso)
        e(f"v_and_b32 {vr(t1)}, 0xffff0000, {vr(V_SL)}")
        e(f"v_lshlrev_b32 {vr(V_SL)}, 16, {vr(V_SL)}")
        e(f"v_rcp_f32 {vr(V_SL+1)}, {vr(t1)}")
        e(f"s_lshl_b32 {sr(S_T0)}, {sr(S_LW)}, 8")
        e(f"s_add_u32 {sr(S_T0)}, {sr(S_T0)}, {L_STAT}")
        e(f"v_add_u32 {vr(t0)}, {sr(S_T0)}, {vr(V_SLA)}")
        e("s_nop 0")
        e(f"ds_write_b64 {vr(t0)}, {vr(V_SL,2)}")
    KR, VR = 128, 160
    def job_row_srds():
        e(f"s_lshl_b32 {sr(S_T0)}, {sr(S_C)}, 12")
        e(f"s_add_u32 {sr(SRD_K)}, {sr(P+24)}, {sr(S_T0)}")
        e(f"s_addc_u32 {sr(SRD_K+1)}, {sr(P+25)}, 0")
        e(f"s_mov_b32 {sr(SRD_K+2)}, 4096")
        e(f"s_mov_b32 {sr(SRD_K+3)}, 0x20000")
        e(f"s_add_u32 {sr(S_T0)}, {sr(S_T0)}, {WS_VT}")
        e(f"s_add_u32 {sr(SRD_V)}, {sr(P+24)}, {sr(S_T0)}")
        e(f"s_addc_u32 {sr(SRD_V+1)}, {sr(P+25)}, 0")
        e(f"s_mov_b32 {sr(SRD_V+2)}, 4096")
        e(f"s_mov_b32 {sr(SRD_V+3)}, 0x20000")
    def uk_loads(track):
        for q in range(4):
            if track:
                e(f"s_cmp_eq_u32 {sr(S_OKF)}, 1")
                e(f"s_cselect_b32 {sr(S_T2)}, {1024*q}, 0x40000000" if q == 0 else f"s_cselect_b32 {sr(S_T2)}, {sr(S_T1)}, {sr(S_T3)}")
                if q < 3:
                    e(f"s_movk_i32 {sr(S_T1)}, {1024*(q+1)}")
                    e(f"s_mov_b32 {sr(S_T3)}, 0x40000000")
            else:
                e(f"s_movk_i32 {sr(S_T2)}, {1024*q}")
            for txt in (f"buffer_load_dwordx4 {vr(KR+8*q,4)}, {vr(V_L16)}, {sr(SRD_K,4)}, {sr(S_T2)} offen{USC}",
                        f"buffer_load_dwordx2 {vr(KR+8*q+4,2)}, {vr(V_L16)}, {sr(SRD_K,4)}, {sr(S_T2)} offen offset:16{USC}",
                        f"buffer_load_dwordx4 {vr(VR+4*q,4)}, {vr(V_L16)}, {sr(SRD_V,4)}, {sr(S_T2)} offen{USC}"):
                if track: A.vmem(txt, "UK")
                else: e(txt)
    def job_pkv_check():
        A.wait_vm("PKV")
        flag_check_scc(V_FL, 2)
        e(f"s_cselect_b32 {sr(S_OKF)}, 1, 0")
        uk_loads(True)
    E = 36
    def kv_chunk(q):
        D = KR + 8*q; V = VR + 4*q
        for i in range(11):
            src = D + (i >> 1)
            e(f"v_and_b32 {vr(E+i)}, 0xffff0000, {vr(src)}" if i & 1 else f"v_lshlrev_b32 {vr(E+i)}, 16, {vr(src)}")
        for i in range(8):
            src = V + (i >> 1)
            e(f"v_and_b32 {vr(E+11+i)}, 0xffff0000, {vr(src)}" if i & 1 else f"v_lshlrev_b32 {vr(E+11+i)}, 16, {vr(src)}")
        for i in range(8): e(f"v_mul_f32 {vr(56+i)}, {sr(S_W+3)}, {vr(E+i+3)}")
        for i in range(8): e(f"v_fma_f32 {vr(56+i)}, {vr(E+i+2)}, {sr(S_W+2)}, {vr(56+i)}")
        for i in range(8): e(f"v_fma_f32 {vr(56+i)}, {vr(E+i+1)}, {sr(S_W+1)}, {vr(56+i)}")
        for i in range(8): e(f"v_fma_f32 {vr(56+i)}, {vr(E+i)}, {sr(S_W)}, {vr(56+i)}")
        for i in range(8): e(f"v_mul_f32 {vr(56+i)}, {vr(56+i)}, {vr(E+11+i)}")
        for k in range(4): e(f"v_cvt_pk_bf16_f32 {vr(D+k)}, {vr(56+2*k)}, {vr(56+2*k+1)}")
    S_DSO2, S_RA, S_RBB, S_RC = S_G4, S_X0, S_X1, S_X2
    S_KU2, S_KUN2, S_ROT2, S_OOB2 = 61, S_C0, S_G5, 60
    def job_wd_setup():
        ku_start(S_KU2, S_LW)
        e(f"s_cmp_lt_u32 {sr(S_LW)}, 2")
        e(f"s_cselect_b32 {sr(S_KUN2)}, 22, 21")
        e(f"s_mul_i32 {sr(S_ROT2)}, {sr(S_J)}, {opts.get('rot', 3)}")
        e(f"s_mov_b32 {sr(S_OOB2)}, 0x20000000")
        ring_bases(S_LW, S_RA, S_RBB, S_RC)
    def wd_dma(n):
        bi, off = ring_off(n); sb = (S_RA, S_RBB, S_RC)[bi]
        wd_soff(n, S_DSO2, S_ROT2, S_KUN2, S_KU2, S_OOB2)
        for a in range(2):
            e(f"s_add_u32 m0, {sr(sb)}, {off + 1024*a}")
            if a == 1: e(f"s_add_u32 {sr(S_DSO2)}, {sr(S_DSO2)}, 8192")
            else: e("s_nop 0")
            A.vmem(f"buffer_load_dwordx4 {vr(V_DO2)}, {sr(SRD_WD,4)}, {sr(S_DSO2)} offen lds", "WDP")
    def hk(w, addr, extra):
        O1, O2, O3 = 116, 120, 124
        for j in range(4):
            e(f"v_alignbit_b32 {vr(O1+j)}, {vr(w+j+1)}, {vr(w+j)}, 16")
            e(f"v_mov_b32 {vr(O2+j)}, {vr(w+j+1)}")
            e(f"v_alignbit_b32 {vr(O3+j)}, {vr(w+j+2)}, {vr(w+j+1)}, 16")
        e(f"ds_write_b128 {vr(addr)}, {vr(w,4)} offset:{extra}")
        e(f"ds_write_b128 {vr(addr)}, {vr(O1,4)} offset:{extra+HCOPY}")
        e(f"ds_write_b128 {vr(addr)}, {vr(O2,4)} offset:{extra+2*HCOPY}")
        e(f"ds_write_b128 {vr(addr)}, {vr(O3,4)} offset:{extra+3*HCOPY}")
        e("s_nop 1")
    S_RH, S_UB = 71, 3
    V_PF = 30
    def job_hankel():
        e(f"s_and_b32 {sr(S_RH)}, {sr(S_LW)}, 1")
        e(f"s_mul_i32 {sr(S_T0)}, {sr(S_CIDX)}, {HCH}")
        e(f"s_add_u32 {sr(S_T0)}, {sr(S_T0)}, {L_HANK}")
        e(f"s_lshl_b32 {sr(S_T1)}, {sr(S_RH)}, 11")
        e(f"s_add_u32 {sr(S_T1)}, {sr(S_T1)}, {sr(S_T0)}")
        e(f"v_add_u32 {vr(27)}, {sr(S_T0)}, {vr(V_L16)}")
        e(f"v_add_u32 {vr(28)}, {sr(S_T1)}, {vr(V_L16)}")
        for y in range(2): hk(HK[y], 28, 32 + 1024*y)
        lpb = A.newlabel("PB")
        e(f"s_cmp_lg_u32 {sr(S_RH)}, 0")
        e(f"s_cbranch_scc1 {lpb}")
        e(f"s_mov_b64 {sr(S_EX,2)}, exec")
        e("s_mov_b64 exec, 3")
        w = HK[0]
        for r in range(4): e(f"v_mov_b32 {vr(w+r)}, 0")
        e(f"v_mov_b32 {vr(w+4)}, {vr(HPB)}"); e(f"v_mov_b32 {vr(w+5)}, {vr(HPB+1)}")
        hk(w, 27, 0)
        e(f"s_mov_b64 exec, {sr(S_EX,2)}")
        A.label(lpb)
    V_DD = 32; V_CA = 35; V_CB = 29
    CACC = 192; CSET = [64, 128]
    def conv_addr():
        e(f"s_and_b32 {sr(S_RH)}, {sr(S_LW)}, 1")
        e(f"s_mul_i32 {sr(S_UB)}, {sr(S_LW)}, {UBSZ}")
        e(f"s_add_u32 {sr(S_UB)}, {sr(S_UB)}, {L_UB}")
        e(f"v_and_b32 {vr(t0)}, 15, {L}")
        e(f"v_lshrrev_b32 {vr(t1)}, 4, {L}")
        e(f"v_lshl_add_u32 {vr(t2)}, {vr(t1)}, 3, {vr(t0)}")
        e(f"v_add_u32 {vr(t2)}, 1, {vr(t2)}")
        e(f"v_and_b32 {vr(t3)}, 3, {vr(t2)}")
        e(f"v_sub_u32 {vr(t2)}, {vr(t2)}, {vr(t3)}")
        e(f"v_lshlrev_b32 {vr(t2)}, 1, {vr(t2)}")
        e(f"v_mul_u32_u24 {vr(t3)}, {HCOPY}, {vr(t3)}")
        e(f"v_add_u32 {vr(t2)}, {vr(t2)}, {vr(t3)}")
        e(f"s_mul_i32 {sr(S_T0)}, {sr(S_CIDX)}, {HCH}")
        e(f"s_lshl_b32 {sr(S_T1)}, {sr(S_RH)}, 8")
        e(f"s_add_u32 {sr(S_T0)}, {sr(S_T0)}, {sr(S_T1)}")
        e(f"s_add_u32 {sr(S_T0)}, {sr(S_T0)}, {L_HANK}")
        e(f"v_add_u32 {vr(V_CA)}, {sr(S_T0)}, {vr(t2)}")
        e(f"v_lshlrev_b32 {vr(t2)}, 1, {vr(t0)}")
        e(f"v_sub_u32 {vr(t2)}, {vr(t1)}, {vr(t2)}")
        e(f"v_add_u32 {vr(t2)}, 254, {vr(t2)}")
        e(f"v_lshlrev_b32 {vr(t2)}, 4, {vr(t2)}")
        e(f"s_add_u32 {sr(S_T0)}, {sr(S_UB)}, {sr(S_T1)}")
        e(f"s_sub_u32 {sr(S_T0)}, {sr(S_T0)}, 3584")
        e(f"v_add_u32 {vr(V_CB)}, {sr(S_T0)}, {vr(t2)}")
        for r in range(32): e(f"v_mov_b32 {vr(CACC+r)}, 0")
    def pt(it): return [tiles] if PPOS == it else []
    dma_stage(2)
    it_end(0, [lambda: dma_stage(3)] + pt(0), waits=())
    it_end(1, [lambda: dma_stage(4)] + pt(1), waits=("S2", "NL"))
    job_nonce_sts()
    TRI = {-1: 2, 0: 4, 1: 5}[PPOS]
    for it in range(2, 8):
        if it == TRI: job_tr_store()
        if it == 3: job_sl()
        if it == TRI + 2: job_kvf()
        if it == 4: job_conv_scalars(); job_row_srds() if False else None
        if it == 5: job_wd_setup()
        if it == 6: job_statchk(); conv_addr()
        if it == TRI + 3 and it <= 7:
            job_row_srds(); flag_issue(V_FL, 2, S_KVO, "PKV")
        if it == TRI + 4 and it <= 7: job_pkv_check()
        if it == TRI + 5 and it <= 7:
            lk7 = A.newlabel("K7")
            e(f"s_cmp_eq_u32 {sr(S_OKF)}, 1")
            e(f"s_cbranch_scc0 {lk7}")
            A.wait_vm("UK")
            kv_chunk(0); kv_chunk(1)
            A.label(lk7)
        if it == opts.get("hankit", 7): job_hankel()
        if it == 7: break
        st = []
        if it + 3 <= 7: st.append(lambda it=it: dma_stage(it + 3))
        if it == opts.get('hkit', 2): st.append(hk_loads)
        if it == opts.get('wtit', 3): st.append(wd_touch)
        if it == 5: st.append(lambda: [wd_dma(n) for n in range(0, 5)])
        if it == 6: st.append(lambda: [wd_dma(n) for n in range(5, 10)])
        w_ = [f"S{it+1}"]
        if it + 1 == TRI: w_.append("P")
        it_end(it, st, waits=tuple(w_))
    done_chunks01 = (TRI + 5 <= 7); done_check = (TRI + 4 <= 7); done_pkv = (TRI + 3 <= 7)
    e("s_waitcnt lgkmcnt(0)")
    e("s_barrier")
    stamp(3)
    wd_dma(10)
    if not done_pkv:
        job_row_srds(); flag_issue(V_FL, 2, S_KVO, "PKV")
    srd(SRD_AUX, 5, 1024)
    e(f"s_lshl_b32 {sr(S_T0)}, {sr(S_C)}, 1")
    A.vmem(f"buffer_load_ushort {vr(V_DD)}, off, {sr(SRD_AUX,4)}, {sr(S_T0)}", "DD")
    if not done_check: job_pkv_check()
    if opts.get("hankit", 7) > 7: job_hankel()
    e("s_waitcnt lgkmcnt(0)")
    e(f"s_lshl_b32 {sr(S_T0)}, {sr(S_LW)}, 2")
    e(f"s_add_u32 {sr(S_T0)}, {sr(S_T0)}, {L_FLAG}")
    e(f"v_mov_b32 {vr(V_PF)}, {sr(S_T0)}")
    e(f"v_mov_b32 {vr(V_PF+1)}, 1")
    e(f"ds_write_b32 {vr(V_PF)}, {vr(V_PF+1)} offset:96")
    A.wait_vm("WDP")
    e(f"ds_write_b32 {vr(V_PF)}, {vr(V_PF+1)} offset:16")
    lko2 = A.newlabel("KO2"); lko3 = A.newlabel("KO3")
    e(f"s_cmp_eq_u32 {sr(S_OKF)}, 1")
    e(f"s_cbranch_scc1 {lko2}")
    flag_wait_blocking(V_FL, 2, S_KVO, sleep=4)
    uk_loads(False)
    e("s_waitcnt vmcnt(0)")
    if done_chunks01:
        kv_chunk(0); kv_chunk(1)
    A.label(lko2)
    A.wait_vm("UK", "DD")
    if not done_chunks01:
        kv_chunk(0); kv_chunk(1)
    kv_chunk(2); kv_chunk(3)
    e(f"v_add_u32 {vr(26)}, {sr(S_UB)}, {vr(V_L16)}")
    for q in range(4): e(f"ds_write_b128 {vr(26)}, {vr(KR+8*q,4)} offset:{1024*q}")
    for r in range(4): e(f"v_mov_b32 {vr(52+r)}, 0")
    e(f"v_and_b32 {vr(t0)}, 31, {L}")
    e(f"v_lshlrev_b32 {vr(t0)}, 4, {vr(t0)}")
    e(f"v_add_u32 {vr(t0)}, {sr(S_UB)}, {vr(t0)}")
    e(f"ds_write_b128 {vr(t0)}, {vr(52,4)} offset:4096")
    e(f"v_lshlrev_b32 {vr(V_DD)}, 16, {vr(V_DD)}")
    e(f"s_lshl_b32 {sr(S_T0)}, {sr(S_LW)}, 2")
    e(f"s_xor_b32 {sr(S_T0)}, {sr(S_T0)}, 4")
    e(f"s_add_u32 {sr(S_T0)}, {sr(S_T0)}, {L_FLAG+96}")
    lds_spin(S_T0, t1, t0)
    e("s_waitcnt lgkmcnt(0)")
    if opts.get("gate", 1):
        e(f"s_lshl_b32 {sr(S_T0)}, {sr(S_LW)}, 2")
        e(f"s_add_u32 {sr(S_T0)}, {sr(S_T0)}, {L_FLAG+48}")
        lds_spin(S_T0, t1, t0)
    stamp(4)
    def creads(r, st):
        out = []; b = CSET[st]
        for sp in range(8):
            out.append(f"ds_read_b64 {vr(b+4*sp,2)}, {vr(V_CA)} offset:{512*sp+64*r}")
            out.append(f"ds_read_b64 {vr(b+4*sp+2,2)}, {vr(V_CA)} offset:{512*sp+64*r+8}")
            out.append(f"ds_read_b128 {vr(b+32+4*sp,4)}, {vr(V_CB)} offset:{512*(7-sp)+64*r}")
        return out
    def cmfmas(st):
        out = []; b = CSET[st]
        for t in range(8):
            for sp in range(t + 1):
                out.append(f"v_mfma_f32_16x16x32_bf16 {vr(CACC+4*t,4)}, {vr(b+4*sp,4)}, {vr(b+32+4*(t-sp),4)}, {vr(CACC+4*t,4)}")
        return out
    for x in creads(0, 0): e(x)
    for r in range(4):
        e("s_waitcnt lgkmcnt(0)")
        mf = cmfmas(r & 1)
        rd = creads(r + 1, (r + 1) & 1) if r < 3 else []
        for idx, m in enumerate(mf):
            e(m)
            if idx < len(rd): e(rd[idx])
    stamp(5)
    V_UU = 64
    e("s_nop 7")
    e(f"v_and_b32 {vr(t0)}, 15, {L}")
    e(f"v_lshrrev_b32 {vr(t1)}, 4, {L}")
    e(f"v_lshlrev_b32 {vr(t2)}, 2, {vr(t0)}")
    e(f"v_add_u32 {vr(t2)}, {vr(t2)}, {vr(t1)}")
    e(f"v_lshlrev_b32 {vr(t2)}, 3, {vr(t2)}")
    e(f"s_lshl_b32 {sr(S_T1)}, {sr(S_RH)}, 11")
    e(f"s_sub_u32 {sr(S_T0)}, {sr(S_UB)}, {sr(S_T1)}")
    e(f"s_add_u32 {sr(S_T0)}, {sr(S_T0)}, {4088 - 1536}")
    e(f"v_sub_u32 {vr(t3)}, {sr(S_T0)}, {vr(t2)}")
    for tt in range(4): e(f"ds_read_b64 {vr(V_UU+2*tt,2)}, {vr(t3)} offset:{512*(3-tt)}")
    e("s_waitcnt lgkmcnt(0)")
    e(f"v_add_u32 {vr(t3)}, {sr(S_UB)}, {vr(V_L16)}")
    l1 = A.newlabel("PR"); l2 = A.newlabel("PR")
    e(f"s_cmp_eq_u32 {sr(S_RH)}, 0")
    e(f"s_cbranch_scc1 {l1}")
    for tt in range(4): e(f"ds_write_b128 {vr(t3)}, {vr(CACC+4*tt,4)} offset:{1024*tt}")
    e("s_nop 1")
    for r in range(16): e(f"v_mov_b32 {vr(CACC+r)}, {vr(CACC+16+r)}")
    e(f"s_branch {l2}")
    A.label(l1)
    for tt in range(4): e(f"ds_write_b128 {vr(t3)}, {vr(CACC+16+4*tt,4)} offset:{1024*tt}")
    A.label(l2)
    e("s_waitcnt lgkmcnt(0)")
    e(f"ds_write_b32 {vr(V_PF)}, {vr(V_PF+1)}")
    e(f"s_lshl_b32 {sr(S_T0)}, {sr(S_LW)}, 2")
    e(f"s_add_u32 {sr(S_T0)}, {sr(S_T0)}, {L_FLAG}")
    e(f"s_xor_b32 {sr(S_T0)}, {sr(S_T0)}, 4")
    lds_spin(S_T0, t1, t0)
    e(f"s_xor_b32 {sr(S_T0)}, {sr(S_LW)}, 1")
    e(f"s_mul_i32 {sr(S_T0)}, {sr(S_T0)}, {UBSZ}")
    e(f"s_add_u32 {sr(S_T0)}, {sr(S_T0)}, {L_UB}")
    e(f"v_add_u32 {vr(t3)}, {sr(S_T0)}, {vr(V_L16)}")
    V_PP = 80
    for tt in range(4): e(f"ds_read_b128 {vr(V_PP+4*tt,4)}, {vr(t3)} offset:{1024*tt}")
    e("s_waitcnt lgkmcnt(0)")
    for r in range(16): e(f"v_add_f32 {vr(CACC+r)}, {vr(CACC+r)}, {vr(V_PP+r)}")
    V_YP = 96
    for tt in range(4):
        y = CACC + 4*tt; u0, u1 = V_UU + 2*tt, V_UU + 2*tt + 1; U = 112
        e(f"v_and_b32 {vr(U+0)}, 0xffff0000, {vr(u1)}")
        e(f"v_lshlrev_b32 {vr(U+1)}, 16, {vr(u1)}")
        e(f"v_and_b32 {vr(U+2)}, 0xffff0000, {vr(u0)}")
        e(f"v_lshlrev_b32 {vr(U+3)}, 16, {vr(u0)}")
        for k in range(4): e(f"v_mul_f32 {vr(U+k)}, {vr(U+k)}, {vr(V_DD)}")
        e(f"v_cvt_pk_bf16_f32 {vr(U+4)}, {vr(U+0)}, {vr(U+1)}")
        e(f"v_cvt_pk_bf16_f32 {vr(U+5)}, {vr(U+2)}, {vr(U+3)}")
        e(f"v_cvt_pk_bf16_f32 {vr(U+6)}, {vr(y+0)}, {vr(y+1)}")
        e(f"v_cvt_pk_bf16_f32 {vr(U+7)}, {vr(y+2)}, {vr(y+3)}")
        for h in range(2):
            e(f"v_lshlrev_b32 {vr(U+2*h)}, 16, {vr(U+4+h)}")
            e(f"v_and_b32 {vr(U+2*h+1)}, 0xffff0000, {vr(U+4+h)}")
            e(f"v_lshlrev_b32 {vr(y+2*h)}, 16, {vr(U+6+h)}")
            e(f"v_and_b32 {vr(y+2*h+1)}, 0xffff0000, {vr(U+6+h)}")
        for k in range(4): e(f"v_add_f32 {vr(y+k)}, {vr(y+k)}, {vr(U+k)}")
        e(f"v_cvt_pk_bf16_f32 {vr(V_YP+2*tt)}, {vr(y+0)}, {vr(y+1)}")
        e(f"v_cvt_pk_bf16_f32 {vr(V_YP+2*tt+1)}, {vr(y+2)}, {vr(y+3)}")
    e("s_nop 1")
    for p in range(2):
        e(f"v_permlane16_swap_b32 {vr(V_YP+4*p)}, {vr(V_YP+4*p+2)}")
        e(f"v_permlane16_swap_b32 {vr(V_YP+4*p+1)}, {vr(V_YP+4*p+3)}")
    e(f"v_and_b32 {vr(t0)}, 15, {L}")
    e(f"v_lshrrev_b32 {vr(t1)}, 4, {L}")
    e(f"v_and_b32 {vr(t2)}, 1, {vr(t1)}")
    e(f"v_lshlrev_b32 {vr(t2)}, 9, {vr(t2)}")
    e(f"v_and_b32 {vr(t1)}, 2, {vr(t1)}")
    e(f"v_lshlrev_b32 {vr(t1)}, 3, {vr(t1)}")
    e(f"v_lshlrev_b32 {vr(t0)}, 5, {vr(t0)}")
    e(f"v_add3_u32 {vr(t0)}, {vr(t0)}, {vr(t1)}, {vr(t2)}")
    e(f"s_lshl_b32 {sr(S_T0)}, {sr(S_C)}, 12")
    e(f"s_lshl_b32 {sr(S_T1)}, {sr(S_RH)}, 11")
    e(f"s_add_u32 {sr(S_T0)}, {sr(S_T0)}, {sr(S_T1)}")
    e(f"s_add_u32 {sr(S_T0)}, {sr(S_T0)}, {WS_YYT}")
    for p in range(2):
        e(f"buffer_store_dwordx4 {vr(V_YP+4*p,4)}, {vr(t0)}, {sr(SRD_WS,4)}, {sr(S_T0)} offen offset:{1024*p} sc0 sc1")
    e("s_waitcnt vmcnt(0)")
    e(f"s_lshr_b32 {sr(S_T0)}, {sr(S_C)}, 6")
    e(f"s_lshl_b32 {sr(S_T0)}, {sr(S_T0)}, 9")
    e(f"s_and_b32 {sr(S_T1)}, {sr(S_WG)}, 31")
    e(f"s_lshl_b32 {sr(S_T1)}, {sr(S_T1)}, 4")
    e(f"s_lshl_b32 {sr(S_T2)}, {sr(S_LW)}, 2")
    e(f"s_add_u32 {sr(S_T0)}, {sr(S_T0)}, {sr(S_T1)}")
    e(f"s_add_u32 {sr(S_T0)}, {sr(S_T0)}, {sr(S_T2)}")
    e(f"s_add_u32 {sr(S_T0)}, {sr(S_T0)}, {WS_FL+FL_Y}")
    flag_set(S_T0, t0)
    stamp(6)
    ly1 = A.newlabel("YP"); ly2 = A.newlabel("YP")
    e(f"s_cmp_lg_u32 {sr(S_LW)}, 0")
    e(f"s_cbranch_scc1 {ly1}")
    if opts.get("ygate"):
        e(f"s_mov_b32 {sr(S_T0)}, {L_FLAG+64}")
        lds_spin(S_T0, t1, t0, sleep=4)
    e(f"s_lshl_b32 {sr(S_T0)}, {sr(S_J)}, 9")
    e(f"s_add_u32 {sr(S_T0)}, {sr(S_T0)}, {WS_FL+FL_Y}")
    flag_wait_blocking(V_FL, 2, S_T0, sleep=opts.get('ysleep', 8))
    e(f"v_mov_b32 {vr(t0)}, {L_FLAG+68}")
    e(f"v_mov_b32 {vr(t1)}, 1")
    e(f"ds_write_b32 {vr(t0)}, {vr(t1)}")
    e(f"s_branch {ly2}")
    A.label(ly1)
    e(f"s_mov_b32 {sr(S_T0)}, {L_FLAG+68}")
    lds_spin(S_T0, t1, t0, sleep=4)
    A.label(ly2)
    stamp(7)
    e(f"v_lshrrev_b32 {vr(t0)}, 3, {L}")
    e(f"v_and_b32 {vr(t1)}, 7, {L}")
    e(f"s_lshl_b32 {sr(S_T0)}, {sr(S_LW)}, 4")
    e(f"v_add_u32 {vr(t0)}, {sr(S_T0)}, {vr(t0)}")
    e(f"v_lshlrev_b32 {vr(t2)}, 12, {vr(t0)}")
    e(f"v_lshl_add_u32 {vr(t2)}, {vr(t1)}, 4, {vr(t2)}")
    e(f"s_lshl_b32 {sr(S_T0)}, {sr(S_J)}, 18")
    e(f"s_lshl_b32 {sr(S_T1)}, {sr(S_I2)}, 7")
    e(f"s_add_u32 {sr(S_T0)}, {sr(S_T0)}, {sr(S_T1)}")
    e(f"s_add_u32 {sr(S_T0)}, {sr(S_T0)}, {WS_YYT}")
    e(f"buffer_load_dwordx4 {vr(64,4)}, {vr(t2)}, {sr(SRD_WS,4)}, {sr(S_T0)} offen sc1")
    e(f"v_add_u32 {vr(t2)}, {8*4096}, {vr(t2)}")
    e(f"buffer_load_dwordx4 {vr(68,4)}, {vr(t2)}, {sr(SRD_WS,4)}, {sr(S_T0)} offen sc1")
    e(f"v_mul_u32_u24 {vr(t3)}, {YTROW}, {vr(t0)}")
    e(f"v_lshl_add_u32 {vr(t3)}, {vr(t1)}, 4, {vr(t3)}")
    e(f"v_add_u32 {vr(t3)}, {L_YT}, {vr(t3)}")
    e("s_waitcnt vmcnt(1)")
    e(f"ds_write_b128 {vr(t3)}, {vr(64,4)}")
    e("s_waitcnt vmcnt(0)")
    e(f"ds_write_b128 {vr(t3)}, {vr(68,4)} offset:{8*YTROW}")
    srd(SRD_OUT, 10, 2 << 20)

    A.label("L_FINAL")
    e("s_setprio 0")
    FT, FD, FO = 28, 29, 30
    e(f"v_lshrrev_b32 {vr(t0)}, 5, {L}")
    e(f"v_and_b32 {vr(t1)}, 3, {L}")
    e(f"v_lshl_add_u32 {vr(FT)}, {vr(t0)}, 2, {vr(t1)}")
    e(f"s_lshl_b32 {sr(S_T0)}, {sr(S_WAVE)}, 3")
    e(f"v_add_u32 {vr(FT)}, {sr(S_T0)}, {vr(FT)}")
    e(f"v_bfe_u32 {vr(FD)}, {L}, 2, 3")
    e(f"s_lshl_b32 {sr(S_T0)}, {sr(S_I2)}, 16")
    e(f"s_lshl_b32 {sr(S_T1)}, {sr(S_J)}, 7")
    e(f"s_add_u32 {sr(S_T0)}, {sr(S_T0)}, {sr(S_T1)}")
    e(f"v_lshlrev_b32 {vr(FO)}, 10, {vr(FT)}")
    e(f"v_lshl_add_u32 {vr(FO)}, {vr(FD)}, 4, {vr(FO)}")
    e(f"v_add_u32 {vr(FO)}, {sr(S_T0)}, {vr(FO)}")
    FX_, FS_ = 32, 36
    e(f"buffer_load_dwordx4 {vr(FX_,4)}, {vr(FO)}, {sr(SRD_Q,4)}, 0 offen")
    S_FSO = S_G5
    e(f"s_lshl_b32 {sr(S_FSO)}, {sr(S_I2)}, 9")
    e(f"s_add_u32 {sr(S_FSO)}, {sr(S_FSO)}, {WS_ST}")
    V_FSA = 31
    e(f"v_lshlrev_b32 {vr(V_FSA)}, 3, {vr(FT)}")
    e(f"buffer_load_dwordx2 {vr(FS_,2)}, {vr(V_FSA)}, {sr(SRD_WS,4)}, {sr(S_FSO)} offen sc1")
    e("s_waitcnt lgkmcnt(0)")
    e("s_barrier")
    stamp(9)
    FP = 40
    e(f"v_and_b32 {vr(t0)}, 31, {vr(FT)}")
    e(f"v_mul_u32_u24 {vr(t0)}, 272, {vr(t0)}")
    e(f"v_lshl_add_u32 {vr(t0)}, {vr(FD)}, 5, {vr(t0)}")
    e(f"s_cmp_lt_u32 {sr(S_WAVE)}, 4")
    e(f"s_cselect_b32 {sr(S_T0)}, {RA}, {RB_}")
    e(f"v_add_u32 {vr(t0)}, {sr(S_T0)}, {vr(t0)}")
    for kg in range(4):
        e(f"ds_read_b128 {vr(FP+8*kg,4)}, {vr(t0)} offset:{kg*10240}")
        e(f"ds_read_b128 {vr(FP+8*kg+4,4)}, {vr(t0)} offset:{kg*10240+16}")
    FY = 72
    e(f"v_bfe_u32 {vr(t2)}, {L}, 2, 2")
    e(f"v_and_b32 {vr(t3)}, 3, {L}")
    e(f"v_bfe_u32 {vr(t4)}, {L}, 4, 1")
    e(f"v_lshl_add_u32 {vr(t3)}, {vr(t4)}, 2, {vr(t3)}")
    e(f"v_lshl_add_u32 {vr(t2)}, {vr(t3)}, 3, {vr(t2)}")
    e(f"v_mul_u32_u24 {vr(t2)}, {YTROW}, {vr(t2)}")
    e(f"v_lshrrev_b32 {vr(t3)}, 5, {L}")
    e(f"v_lshlrev_b32 {vr(t3)}, 3, {vr(t3)}")
    e(f"s_lshl_b32 {sr(S_T0)}, {sr(S_WAVE)}, 4")
    e(f"s_add_u32 {sr(S_T0)}, {sr(S_T0)}, {L_YT}")
    e(f"v_add3_u32 {vr(t2)}, {vr(t2)}, {vr(t3)}, {sr(S_T0)}")
    e(f"ds_read_b64_tr_b16 {vr(FY,2)}, {vr(t2)}")
    e(f"ds_read_b64_tr_b16 {vr(FY+2,2)}, {vr(t2)} offset:{4*YTROW}")
    e("s_waitcnt lgkmcnt(2)")
    for kg in range(1, 4):
        for k in range(8): e(f"v_add_f32 {vr(FP+k)}, {vr(FP+k)}, {vr(FP+8*kg+k)}")
    O = FP; T = 48; XV = 56; YV = 64
    for k in range(0, 8, 2): e(f"v_cvt_pk_bf16_f32 {vr(T+k)}, {vr(O+k)}, {vr(O+k+1)}")
    for k in range(0, 8, 2):
        e(f"v_and_b32 {vr(O+k+1)}, 0xffff0000, {vr(T+k)}")
        e(f"v_lshlrev_b32 {vr(O+k)}, 16, {vr(T+k)}")
    e(f"s_mov_b32 {sr(S_T0)}, 0xbfb8aa3b")
    for k in range(8): e(f"v_mul_f32 {vr(T+k)}, {sr(S_T0)}, {vr(O+k)}")
    for k in range(8): e(f"v_exp_f32 {vr(T+k)}, {vr(T+k)}")
    for k in range(8): e(f"v_add_f32 {vr(T+k)}, 1.0, {vr(T+k)}")
    for k in range(8): e(f"v_rcp_f32 {vr(T+k)}, {vr(T+k)}")
    e("s_nop 0")
    for k in range(8): e(f"v_mul_f32 {vr(O+k)}, {vr(O+k)}, {vr(T+k)}")
    e("s_waitcnt vmcnt(0) lgkmcnt(0)")
    lf1 = A.newlabel("FS"); lf2 = A.newlabel("FS")
    e(f"s_mov_b32 {sr(S_T3)}, 0x40000")
    A.label(lf1)
    e(f"v_cmp_eq_u32 vcc, {sr(S_NONCE)}, {vr(FS_+1)}")
    e("s_nop 1")
    e("s_cmp_eq_u64 vcc, -1")
    e(f"s_cbranch_scc1 {lf2}")
    e(f"s_sub_u32 {sr(S_T3)}, {sr(S_T3)}, 1")
    e(f"s_cmp_eq_u32 {sr(S_T3)}, 0")
    e(f"s_cbranch_scc1 {lf2}")
    e(f"buffer_load_dwordx2 {vr(FS_,2)}, {vr(V_FSA)}, {sr(SRD_WS,4)}, {sr(S_FSO)} offen sc1")
    e("s_waitcnt vmcnt(0)")
    e(f"s_branch {lf1}")
    A.label(lf2)
    for k in range(4):
        e(f"v_lshlrev_b32 {vr(XV+2*k)}, 16, {vr(FX_+k)}")
        e(f"v_and_b32 {vr(XV+2*k+1)}, 0xffff0000, {vr(FX_+k)}")
        e(f"v_lshlrev_b32 {vr(YV+2*k)}, 16, {vr(FY+k)}")
        e(f"v_and_b32 {vr(YV+2*k+1)}, 0xffff0000, {vr(FY+k)}")
    e(f"v_and_b32 {vr(FS_+1)}, 0xffff0000, {vr(FS_)}")
    e(f"v_lshlrev_b32 {vr(FS_)}, 16, {vr(FS_)}")
    e(f"v_rcp_f32 {vr(FS_+1)}, {vr(FS_+1)}")
    for k in range(8): e(f"v_sub_f32 {vr(T+k)}, {vr(XV+k)}, {vr(FS_)}")
    def round8(b):
        for k in range(0, 8, 2): e(f"v_cvt_pk_bf16_f32 {vr(b+k)}, {vr(b+k)}, {vr(b+k+1)}")
        for k in range(0, 8, 2):
            e(f"v_and_b32 {vr(b+k+1)}, 0xffff0000, {vr(b+k)}")
            e(f"v_lshlrev_b32 {vr(b+k)}, 16, {vr(b+k)}")
    if not opts.get("lightfinal"): round8(T)
    for k in range(8): e(f"v_mul_f32 {vr(T+k)}, {vr(T+k)}, {vr(FS_+1)}")
    round8(T)
    for k in range(8): e(f"v_mul_f32 {vr(T+k)}, {vr(T+k)}, {vr(YV+k)}")
    if not opts.get("lightfinal"):
        round8(T); round8(O)
    for k in range(8): e(f"v_mul_f32 {vr(T+k)}, {vr(T+k)}, {vr(O+k)}")
    if not opts.get("lightfinal"): round8(T)
    for k in range(8): e(f"v_add_f32 {vr(T+k)}, {vr(T+k)}, {vr(XV+k)}")
    for k in range(4): e(f"v_cvt_pk_bf16_f32 {vr(FY+k)}, {vr(T+2*k)}, {vr(T+2*k+1)}")
    e(f"buffer_store_dwordx4 {vr(FY,4)}, {vr(FO)}, {sr(SRD_OUT,4)}, 0 offen" + (" sc0 sc1" if opts.get("outwt") else (" nt" if opts.get("outnt") else "")))
    stamp(10)
    stamp_flush()
    A.label("L_END")
    e("s_endpgm")
    A.label("L_CODE_END")

    body = A.text()
    hdr = open("cdna_kernels/" + NAME + ".s.ref").read().split("; Override launch geometry")[0]
    out = hdr + "; Override launch geometry by editing the next line.\n"
    out += f"; @launch grid=(256,1,1) block=(512,1,1) lds={LDS_TOTAL}\n"
    out += f""".amdgcn_target "amdgcn-amd-amdhsa--gfx950"
.text
.globl {NAME}_kernel
.p2align 8
.type {NAME}_kernel,@function
{NAME}_kernel:
"""
    out += body
    out += f""".section .rodata,"a"
.p2align 6
.amdhsa_kernel {NAME}_kernel
  .amdhsa_next_free_vgpr 256
  .amdhsa_next_free_sgpr 102
  .amdhsa_accum_offset 256
  .amdhsa_group_segment_fixed_size 0
  .amdhsa_kernarg_size 104
  .amdhsa_user_sgpr_count 2
  .amdhsa_user_sgpr_kernarg_segment_ptr 1
  .amdhsa_system_sgpr_workgroup_id_x 1
.end_amdhsa_kernel
"""
    return out

if __name__ == "__main__":
    opts = {}
    outp = sys.argv[1]
    for a in sys.argv[2:]:
        k, _, v = a.partition("=")
        opts[k] = (int(v) if v.lstrip("-").isdigit() else (v or True))
    open(outp, "w").write(gen(opts))
```

```python
import sys, struct

NAME = "recurrent_scan__ssm_conv_h3__glu_gated_geglu__prompt"
f2u = lambda x: struct.unpack("<I", struct.pack("<f", x))[0]

class Asm:
    def __init__(self):
        self.lines = []; self.nlabel = 0; self.vm = []; self.cap = None
    def e(self, s):
        if self.cap is not None: self.cap.append(("  " + s, None))
        else: self.lines.append("  " + s)
    def label(self, l):
        assert self.cap is None, l
        self.lines.append(l + ":")
    def newlabel(self, p="L"):
        self.nlabel += 1; return f"{p}_{self.nlabel}"
    def text(self): return "\n".join(self.lines) + "\n"
    def vmem(self, s, tag):
        if self.cap is not None:
            self.cap.append(("  " + s, tag)); return
        self.e(s); self.vm.append(tag)
    def capture(self, fn):
        assert self.cap is None
        self.cap = []
        fn()
        out = self.cap; self.cap = None
        return out
    def emit_list(self, lst):
        for line, tag in lst:
            self.lines.append(line)
            if tag is not None: self.vm.append(tag)
    def merge(self, a, b):
        groups = []; cur = []
        for it in a:
            cur.append(it)
            if it[1] is not None: groups.append(cur); cur = []
        if cur: groups.append(cur)
        n = len(groups); out = []; k = 0
        for gi, g in enumerate(groups):
            out += g
            upto = (len(b) * (gi + 1)) // n
            out += b[k:upto]; k = upto
        out += b[k:]
        return out
    def wait_vm(self, *tags):
        assert self.cap is None
        last = -1
        for i, t in enumerate(self.vm):
            if t in tags: last = i
        assert last >= 0, tags
        n = len(self.vm) - 1 - last
        n = min(n, 63)
        self.e(f"s_waitcnt vmcnt({n})")
        return n

def vr(a, n=1): return f"v{a}" if n == 1 else f"v[{a}:{a+n-1}]"
def sr(a, n=1): return f"s{a}" if n == 1 else f"s[{a}:{a+n-1}]"

S, D, F = 2048, 512, 1376
WROW = F * 2
WBYTES = 512 * WROW
WS_KVT, WS_YYT, WS_HF, WS_ST, WS_FL, WS_TS = 0, 2 << 20, 4 << 20, 12 << 20, 13 << 20, 16 << 20
WS_VT = 14 << 20
FL_KV, FL_ST, FL_H, FL_Y = 0, 4096, 8192, 12288
STAGE = 40960
L_HANK = 122880
HCOPY = 4160
HCH = 4 * HCOPY
L_MISC = L_HANK + 2 * HCH
L_CS = L_MISC
L_STAT = L_MISC + 1536
L_FLAG = L_MISC + 2560
LDS_TOTAL = 163840
L_KT, L_VT = L_HANK, L_HANK + 8192
RA, RB_ = 2 * STAGE, 0
L_UB = STAGE
UBSZ = 4608
L_YT = L_UB + 4 * UBSZ
YTROW = 144
RC = L_YT + 64 * YTROW
NR = 11
def ring_off(n):
    if n < 5: return (0, n * 2048)
    if n < 10: return (1, (n - 5) * 2048)
    return (2, 0)

SRD_Q, SRD_K, SRD_V, SRD_W, SRD_WD, SRD_WS, SRD_DBG, SRD_OUT, SRD_SK, SRD_AUX = 4, 8, 12, 16, 20, 24, 28, 32, 36, 40
P = 48
S_WG = 2
S_WAVE, S_RB, S_CP, S_I2, S_J, S_F0, S_N32, S_A, S_B = 76, 77, 78, 79, 80, 81, 82, 83, 84
S_NONCE = 85
S_T0, S_T1, S_T2, S_T3, S_T4, S_T5 = 86, 87, 88, 89, 90, 91
S_G0, S_G1, S_G2, S_G3, S_G4, S_G5 = 92, 93, 94, 95, 96, 97
S_C0, S_C1 = 98, 99
S_EX = 100
S_TSP = 74
S_X0, S_X1, S_X2, S_X3 = 44, 45, 46, 47

def gen(opts):
    A = Asm(); e = A.e
    TS = opts.get("ts", False)
    HSC = "" if opts.get("hplain", 1) else " sc1"
    USC = "" if opts.get("uplain", 1) else " sc1"
    t0, t1, t2, t3, t4, t5 = 8, 9, 10, 11, 12, 13
    V_LANE = 3; L = vr(V_LANE)
    V_TS = 15

    def stamp(idx, dyn=None):
        if not TS: return
        e(f"{'s_memtime' if opts.get('cyc') else 's_memrealtime'} {sr(S_TSP,2)}")
        e("s_waitcnt lgkmcnt(0)")
        if dyn is None:
            e(f"v_writelane_b32 {vr(V_TS)}, {sr(S_TSP)}, {idx}")
        else:
            e(f"s_add_u32 m0, {sr(dyn)}, {idx}")
            e("s_nop 0")
            e(f"v_writelane_b32 {vr(V_TS)}, {sr(S_TSP)}, m0")
    def stamp_flush():
        if not TS: return
        e(f"s_lshl_b32 {sr(S_TSP+1)}, {sr(S_WG)}, 3")
        e(f"s_add_u32 {sr(S_TSP+1)}, {sr(S_TSP+1)}, {sr(S_WAVE)}")
        e(f"s_lshl_b32 {sr(S_TSP+1)}, {sr(S_TSP+1)}, 8")
        e(f"s_add_u32 {sr(S_TSP+1)}, {sr(S_TSP+1)}, {WS_TS}")
        e(f"v_lshlrev_b32 v14, 2, {L}")
        e(f"buffer_store_dword {vr(V_TS)}, v14, {sr(SRD_WS,4)}, {sr(S_TSP+1)} offen")

    def srd(dst, pidx, nbytes):
        e(f"s_mov_b32 {sr(dst)}, {sr(P+2*pidx)}")
        e(f"s_mov_b32 {sr(dst+1)}, {sr(P+2*pidx+1)}")
        e(f"s_mov_b32 {sr(dst+2)}, {nbytes}")
        e(f"s_mov_b32 {sr(dst+3)}, 0x20000")

    def flag_issue(vdst, nw, soff_sgpr, tag):
        e(f"v_lshlrev_b32 {vr(t5)}, {1 + nw}, {L}")
        op = "buffer_load_dword" if nw == 1 else "buffer_load_dwordx2"
        A.vmem(f"{op} {vr(vdst,nw)}, {vr(t5)}, {sr(SRD_WS,4)}, {sr(soff_sgpr)} offen sc1", tag)
    def flag_check_scc(vdst, nw):
        e(f"v_cmp_eq_u32 vcc, {sr(S_NONCE)}, {vr(vdst)}")
        if nw == 2:
            e(f"v_cmp_eq_u32 {sr(S_T4,2)}, {sr(S_NONCE)}, {vr(vdst+1)}")
            e("s_nop 1")
            e(f"s_and_b64 vcc, vcc, {sr(S_T4,2)}")
        else:
            e("s_nop 1")
        e("s_cmp_eq_u64 vcc, -1")
    def flag_wait_blocking(vdst, nw, soff_sgpr, sleep=4):
        l = A.newlabel("POLL"); d = A.newlabel("POLLD")
        n0 = len(A.vm)
        e(f"s_mov_b32 {sr(S_T3)}, 0x40000")
        A.label(l)
        flag_issue(vdst, nw, soff_sgpr, "poll")
        e("s_waitcnt vmcnt(0)")
        flag_check_scc(vdst, nw)
        e(f"s_cbranch_scc1 {d}")
        e(f"s_sub_u32 {sr(S_T3)}, {sr(S_T3)}, 1")
        e(f"s_cmp_eq_u32 {sr(S_T3)}, 0")
        e(f"s_cbranch_scc1 {d}")
        e(f"s_sleep {sleep}")
        e(f"s_branch {l}")
        A.label(d)
        del A.vm[n0:]
    def flag_set(soff_sgpr, vtmp):
        e(f"v_mov_b32 {vr(vtmp)}, {sr(S_NONCE)}")
        e(f"s_mov_b64 {sr(S_EX,2)}, exec")
        e("s_mov_b64 exec, 1")
        A.vmem(f"buffer_store_dword {vr(vtmp)}, off, {sr(SRD_WS,4)}, {sr(soff_sgpr)} sc0 sc1", "flag")
        e(f"s_mov_b64 exec, {sr(S_EX,2)}")
    def lds_spin(addr_sgpr, vt, va, sleep=1):
        l = A.newlabel("LS"); d = A.newlabel("LSD")
        e(f"v_mov_b32 {vr(va)}, {sr(addr_sgpr)}")
        e(f"s_mov_b32 {sr(S_T3)}, 0x200000")
        A.label(l)
        e(f"ds_read_b32 {vr(vt)}, {vr(va)}")
        e("s_waitcnt lgkmcnt(0)")
        e(f"v_readfirstlane_b32 {sr(S_T2)}, {vr(vt)}")
        e("s_nop 3")
        e(f"s_cmp_eq_u32 {sr(S_T2)}, 1")
        e(f"s_cbranch_scc1 {d}")
        e(f"s_sub_u32 {sr(S_T3)}, {sr(S_T3)}, 1")
        e(f"s_cmp_eq_u32 {sr(S_T3)}, 0")
        e(f"s_cbranch_scc1 {d}")
        e(f"s_sleep {sleep}")
        e(f"s_branch {l}")
        A.label(d)
    def wd_voffset(dst):
        e(f"v_lshrrev_b32 {vr(t0)}, 3, {L}")
        e(f"v_and_b32 {vr(t1)}, 7, {L}")
        e(f"v_bfe_u32 {vr(t2)}, {L}, 4, 1")
        e(f"v_lshlrev_b32 {vr(t2)}, 2, {vr(t2)}")
        e(f"v_xor_b32 {vr(t1)}, {vr(t1)}, {vr(t2)}")
        e(f"v_lshlrev_b32 {vr(t1)}, 4, {vr(t1)}")
        e(f"v_lshl_add_u32 {vr(t1)}, {vr(t0)}, 10, {vr(t1)}")
        e(f"s_lshl_b32 {sr(S_T1)}, {sr(S_J)}, 7")
        e(f"v_add_u32 {vr(dst)}, {sr(S_T1)}, {vr(t1)}")
    def ku_start(dst, kg):
        e(f"s_mul_i32 {sr(dst)}, {sr(kg)}, 22")
        e(f"s_cmp_eq_u32 {sr(kg)}, 3")
        e(f"s_cselect_b32 {sr(S_T1)}, 1, 0")
        e(f"s_sub_u32 {sr(dst)}, {sr(dst)}, {sr(S_T1)}")
    def unit_at(n, dst, rot, kun):
        e(f"s_add_u32 {sr(dst)}, {sr(rot)}, {n}")
        e(f"s_cmp_ge_u32 {sr(dst)}, 22")
        e(f"s_cselect_b32 {sr(S_T5)}, 22, 0")
        e(f"s_sub_u32 {sr(dst)}, {sr(dst)}, {sr(S_T5)}")
        e(f"s_cmp_lt_u32 {sr(dst)}, {sr(kun)}")
    def wd_soff(n, dst, rot, kun, ku0, oob):
        unit_at(n, dst, rot, kun)
        e(f"s_cselect_b32 {sr(S_T5)}, 1, 0")
        e(f"s_add_u32 {sr(dst)}, {sr(dst)}, {sr(ku0)}")
        e(f"s_lshl_b32 {sr(dst)}, {sr(dst)}, 14")
        e(f"s_cmp_eq_u32 {sr(S_T5)}, 1")
        e(f"s_cselect_b32 {sr(dst)}, {sr(dst)}, {sr(oob)}")
    def ring_bases(kg, ra, rb, rc):
        e(f"s_mul_i32 {sr(ra)}, {sr(kg)}, 10240")
        e(f"s_add_u32 {sr(rb)}, {sr(ra)}, {RB_}")
        e(f"s_add_u32 {sr(ra)}, {sr(ra)}, {RA}")
        e(f"s_lshl_b32 {sr(rc)}, {sr(kg)}, 11")
        e(f"s_add_u32 {sr(rc)}, {sr(rc)}, {RC}")

    def loader_setup(lw, V_XO, V_WO, S_M0X, S_M0W):
        e(f"v_lshrrev_b32 {vr(t0)}, 3, {L}")
        e(f"v_lshrrev_b32 {vr(t1)}, 4, {L}")
        e(f"v_and_b32 {vr(t2)}, 7, {L}")
        e(f"s_lshl_b32 {sr(S_T2)}, {sr(S_RB)}, 7")
        e(f"s_lshl_b32 {sr(S_T3)}, {sr(lw)}, 5")
        e(f"s_add_u32 {sr(S_T2)}, {sr(S_T2)}, {sr(S_T3)}")
        for a in range(2):
            e(f"v_add_u32 {vr(t3)}, {4*a}, {vr(t1)}")
            e(f"v_xor_b32 {vr(t3)}, {vr(t3)}, {vr(t2)}")
            e(f"v_lshlrev_b32 {vr(t3)}, 4, {vr(t3)}")
            e(f"v_add_u32 {vr(t4)}, {sr(S_T2)}, {vr(t0)}")
            e(f"v_add_u32 {vr(t4)}, {8*a}, {vr(t4)}")
            e(f"v_lshl_add_u32 {vr(V_XO+a)}, {vr(t4)}, 10, {vr(t3)}")
        e(f"s_and_b32 {sr(S_T1)}, {sr(lw)}, 1")
        e(f"s_lshl_b32 {sr(S_T3)}, {sr(S_T1)}, 1")
        e(f"s_lshr_b32 {sr(S_T4)}, {sr(lw)}, 1")
        e(f"s_lshl_b32 {sr(S_T4)}, {sr(S_T4)}, 5")
        e(f"s_lshl_b32 {sr(S_T5)}, {sr(S_F0)}, 1")
        e(f"s_movk_i32 {sr(S_T0)}, {WROW}")
        for i in range(3):
            e(f"v_add_u32 {vr(t0)}, {64*i}, {L}")
            e(f"v_lshrrev_b32 {vr(t1)}, 4, {vr(t0)}")
            e(f"v_mul_u32_u24 {vr(t1)}, 43, {vr(t1)}")
            e(f"v_lshrrev_b32 {vr(t1)}, 7, {vr(t1)}")
            e(f"v_mul_u32_u24 {vr(t2)}, 48, {vr(t1)}")
            e(f"v_sub_u32 {vr(t2)}, {vr(t0)}, {vr(t2)}")
            e(f"v_lshrrev_b32 {vr(t3)}, 4, {vr(t2)}")
            e(f"v_bfe_u32 {vr(t4)}, {vr(t2)}, 2, 2")
            e(f"v_and_b32 {vr(t2)}, 3, {vr(t2)}")
            e(f"v_xor_b32 {vr(t2)}, {sr(S_T3)}, {vr(t2)}")
            e(f"v_lshl_add_u32 {vr(t2)}, {vr(t3)}, 2, {vr(t2)}")
            e(f"v_lshl_add_u32 {vr(t1)}, {vr(t1)}, 2, {vr(t4)}")
            e(f"v_add_u32 {vr(t1)}, {sr(S_T4)}, {vr(t1)}")
            e(f"v_mul_u32_u24 {vr(t1)}, {sr(S_T0)}, {vr(t1)}")
            e(f"v_lshl_add_u32 {vr(t2)}, {vr(t2)}, 4, {vr(t1)}")
            e(f"v_add_u32 {vr(V_WO+i)}, {sr(S_T5)}, {vr(t2)}")
        e(f"s_lshl_b32 {sr(S_M0X)}, {sr(lw)}, 12")
        e(f"s_mul_i32 {sr(S_M0W)}, {sr(S_T1)}, 12288")
        e(f"s_lshr_b32 {sr(S_T4)}, {sr(lw)}, 1")
        e(f"s_mul_i32 {sr(S_T4)}, {sr(S_T4)}, 6144")
        e(f"s_add_u32 {sr(S_M0W)}, {sr(S_M0W)}, {sr(S_T4)}")
        e(f"s_add_u32 {sr(S_M0W)}, {sr(S_M0W)}, 16384")
    def srd_w_select(lw):
        e(f"s_and_b32 {sr(S_T0)}, {sr(lw)}, 1")
        e(f"s_cmp_eq_u32 {sr(S_T0)}, 0")
        e(f"s_cselect_b32 {sr(SRD_W)}, {sr(P+14)}, {sr(P+16)}")
        e(f"s_cselect_b32 {sr(SRD_W+1)}, {sr(P+15)}, {sr(P+17)}")
        e(f"s_mov_b32 {sr(SRD_W+2)}, {WBYTES}")
        e(f"s_mov_b32 {sr(SRD_W+3)}, 0x20000")
    def dma_stage_g(s, V_XO, V_WO, S_M0X, S_M0W, S_XSO, S_WSO):
        slot = (s % 3) * STAGE
        e(f"s_mov_b32 {sr(S_XSO)}, {s*128}")
        e(f"s_add_u32 m0, {sr(S_M0X)}, {slot}")
        for a in range(4):
            if a == 2: e(f"s_mov_b32 {sr(S_XSO)}, {s*128+16384}")
            else: e("s_nop 0")
            A.vmem(f"buffer_load_dwordx4 {vr(V_XO+(a&1))}, {sr(SRD_Q,4)}, {sr(S_XSO)} offen lds", f"S{s}")
            if a < 3: e("s_add_u32 m0, m0, 1024")
        e(f"s_mov_b32 {sr(S_WSO)}, {s*64*WROW}")
        e(f"s_add_u32 m0, {sr(S_M0W)}, {slot}")
        for blk in range(2):
            for i in range(3):
                if blk == 1 and i == 0: e(f"s_mov_b32 {sr(S_WSO)}, {s*64*WROW+16*WROW}")
                else: e("s_nop 0")
                A.vmem(f"buffer_load_dwordx4 {vr(V_WO+i)}, {sr(SRD_W,4)}, {sr(S_WSO)} offen lds", f"S{s}")
                if not (blk == 1 and i == 2): e("s_add_u32 m0, m0, 1024")

    if TS: e("s_memrealtime s[44:45]")
    e(f"s_cmp_ge_u32 {sr(S_WG)}, 256")
    e("s_cbranch_scc1 L_END")
    e(f"s_load_dwordx16 {sr(P,16)}, s[0:1], 0")
    e(f"s_load_dwordx8 {sr(P+16,8)}, s[0:1], 64")
    e(f"s_load_dwordx2 {sr(P+24,2)}, s[0:1], 96")
    e(f"s_getpc_b64 {sr(S_T0,2)}")
    e("v_lshlrev_b32 v1, 6, v0")
    e(f"v_cmp_gt_u32 vcc, L_CODE_END-{NAME}_kernel, v1")
    e(f"s_and_saveexec_b64 {sr(S_EX,2)}, vcc")
    e(f"global_load_dword v2, v1, {sr(S_T0,2)}")
    e(f"s_mov_b64 exec, {sr(S_EX,2)}")
    e(f"v_and_b32 {L}, 63, v0")
    e("v_lshrrev_b32 v4, 6, v0")
    e(f"s_and_b32 {sr(S_T0)}, {sr(S_WG)}, 7")
    e(f"v_readfirstlane_b32 {sr(S_WAVE)}, v4")
    e(f"s_lshr_b32 {sr(S_T1)}, {sr(S_WG)}, 3")
    e(f"s_and_b32 {sr(S_T2)}, {sr(S_T0)}, 1")
    e(f"s_lshl_b32 {sr(S_T2)}, {sr(S_T2)}, 3")
    e(f"s_and_b32 {sr(S_T3)}, {sr(S_T1)}, 7")
    e(f"s_add_u32 {sr(S_RB)}, {sr(S_T2)}, {sr(S_T3)}")
    e(f"s_lshr_b32 {sr(S_T2)}, {sr(S_T0)}, 1")
    e(f"s_lshl_b32 {sr(S_T2)}, {sr(S_T2)}, 2")
    e(f"s_lshr_b32 {sr(S_T3)}, {sr(S_T1)}, 3")
    e(f"s_add_u32 {sr(S_CP)}, {sr(S_T2)}, {sr(S_T3)}")
    e(f"s_lshl_b32 {sr(S_T2)}, {sr(S_T0)}, 2")
    e(f"s_and_b32 {sr(S_T3)}, {sr(S_T1)}, 3")
    e(f"s_add_u32 {sr(S_I2)}, {sr(S_T2)}, {sr(S_T3)}")
    e(f"s_lshr_b32 {sr(S_J)}, {sr(S_T1)}, 2")
    e(f"s_mul_i32 {sr(S_T2)}, {sr(S_CP)}, 96")
    e(f"s_lshl_b32 {sr(S_T3)}, {sr(S_CP)}, 6")
    e(f"s_add_u32 {sr(S_T3)}, {sr(S_T3)}, 352")
    e(f"s_cmp_lt_u32 {sr(S_CP)}, 11")
    e(f"s_cselect_b32 {sr(S_F0)}, {sr(S_T2)}, {sr(S_T3)}")
    e(f"s_cselect_b32 {sr(S_N32)}, 3, 2")
    if TS:
        e(f"v_mov_b32 {vr(V_TS)}, 0")
        e("s_waitcnt lgkmcnt(0)")
        e(f"v_writelane_b32 {vr(V_TS)}, s44, 63")
        e(f"s_memrealtime s[44:45]")
        e("s_waitcnt lgkmcnt(0)")
        e(f"v_writelane_b32 {vr(V_TS)}, s44, 62")
    e(f"s_cmp_ge_u32 {sr(S_WAVE)}, 4")
    e("s_cbranch_scc1 L_HELPER")

    A.vm = ["code"]
    e(f"s_setprio {opts.get('cprio', 2)}")
    e(f"s_and_b32 {sr(S_A)}, {sr(S_WAVE)}, 1")
    e(f"s_lshr_b32 {sr(S_B)}, {sr(S_WAVE)}, 1")
    FS = [16, 36]
    V_XR, V_WR, V_XR2, V_WR2 = 56, 60, 66, 70
    ACC = 160
    e(f"v_and_b32 {vr(t0)}, 31, {L}")
    e(f"v_lshrrev_b32 {vr(t1)}, 5, {L}")
    e(f"v_bfe_u32 {vr(t2)}, {vr(t0)}, 1, 3")
    e(f"v_xor_b32 {vr(t2)}, {vr(t2)}, {vr(t1)}")
    e(f"s_lshl_b32 {sr(S_T0)}, {sr(S_A)}, 1")
    e(f"v_xor_b32 {vr(t2)}, {sr(S_T0)}, {vr(t2)}")
    e(f"s_lshl_b32 {sr(S_T0)}, {sr(S_A)}, 6")
    e(f"v_add_u32 {vr(t0)}, {sr(S_T0)}, {vr(t0)}")
    e(f"v_lshlrev_b32 {vr(t0)}, 7, {vr(t0)}")
    for ks in range(4):
        e(f"v_xor_b32 {vr(t3)}, {2*ks}, {vr(t2)}")
        e(f"v_lshl_add_u32 {vr(V_XR+ks)}, {vr(t3)}, 4, {vr(t0)}")
    e(f"v_bfe_u32 {vr(t0)}, {L}, 4, 1")
    e(f"v_lshrrev_b32 {vr(t1)}, 5, {L}")
    e(f"v_bfe_u32 {vr(t2)}, {L}, 2, 2")
    e(f"v_bfe_u32 {vr(t3)}, {L}, 1, 1")
    e(f"v_and_b32 {vr(t4)}, 1, {L}")
    e(f"s_lshl_b32 {sr(S_T0)}, {sr(S_B)}, 1")
    e(f"v_add_u32 {vr(t3)}, {sr(S_T0)}, {vr(t3)}")
    e(f"v_lshlrev_b32 {vr(t5)}, 1, {vr(t0)}")
    e(f"v_xor_b32 {vr(t3)}, {vr(t3)}, {vr(t5)}")
    e(f"v_lshlrev_b32 {vr(t3)}, 4, {vr(t3)}")
    e(f"v_lshl_add_u32 {vr(t3)}, {vr(t4)}, 3, {vr(t3)}")
    e(f"v_lshl_add_u32 {vr(t3)}, {vr(t2)}, 6, {vr(t3)}")
    e(f"v_mul_u32_u24 {vr(t1)}, 1536, {vr(t1)}")
    e(f"v_mul_u32_u24 {vr(t0)}, 12288, {vr(t0)}")
    e(f"v_add3_u32 {vr(t3)}, {vr(t3)}, {vr(t1)}, {vr(t0)}")
    e(f"v_add_u32 {vr(t3)}, 16384, {vr(t3)}")
    e(f"s_mul_i32 {sr(S_T1)}, {sr(S_A)}, 3072")
    for i in range(3):
        e(f"s_cmp_eq_u32 {sr(S_A)}, 0")
        e(f"s_cselect_b32 {sr(S_T0)}, {i*256}, {(2-i)*256}")
        e(f"s_add_u32 {sr(S_T2)}, {sr(S_T0)}, {sr(S_T1)}")
        e(f"v_add_u32 {vr(V_WR+i)}, {sr(S_T2)}, {vr(t3)}")
        e(f"s_sub_u32 {sr(S_T2)}, {sr(S_T0)}, {sr(S_T1)}")
        e(f"v_add_u32 {vr(V_WR+3+i)}, {sr(S_T2)}, {vr(t3)}")
    for ks in range(4): e(f"v_add_u32 {vr(V_XR2+ks)}, {2*STAGE}, {vr(V_XR+ks)}")
    for i in range(6): e(f"v_add_u32 {vr(V_WR2+i)}, {2*STAGE}, {vr(V_WR+i)}")
    loader_setup(S_WAVE, 94, 96, S_X0, S_X1)
    for r in range(96): e(f"v_mov_b32 {vr(ACC+r)}, 0")
    for r in range(12): e(f"v_mov_b32 {vr(80+r)}, 0")
    e(f"v_and_b32 {vr(t0)}, 15, {L}")
    e(f"v_bfe_u32 {vr(t1)}, {L}, 4, 1")
    e(f"v_cmp_eq_u32 vcc, {vr(t0)}, {vr(t1)}")
    e(f"v_mov_b32 {vr(t2)}, 0x3f803f80")
    e("s_nop 0")
    e(f"v_cndmask_b32 {vr(76)}, 0, {vr(t2)}, vcc")
    for r in range(1, 4): e(f"v_mov_b32 {vr(76+r)}, {vr(76)}")
    e("s_waitcnt lgkmcnt(0)")
    srd(SRD_Q, 0, 2 << 20); srd(SRD_WD, 9, WBYTES); srd(SRD_OUT, 10, 2 << 20); srd(SRD_WS, 12, 0x10000000)
    V_TX, V_TW, V_DUM = 100, 101, 92
    BAD = 0x7fffff00
    e(f"s_and_b32 {sr(S_T0)}, {sr(S_CP)}, 3")
    e(f"s_lshl_b32 {sr(S_T0)}, {sr(S_T0)}, 5")
    e(f"s_lshl_b32 {sr(S_T1)}, {sr(S_RB)}, 7")
    e(f"s_add_u32 {sr(S_T0)}, {sr(S_T0)}, {sr(S_T1)}")
    e(f"v_and_b32 {vr(t1)}, 31, {L}")
    e(f"v_add_u32 {vr(t1)}, {sr(S_T0)}, {vr(t1)}")
    e(f"v_lshlrev_b32 {vr(t1)}, 10, {vr(t1)}")
    e(f"v_lshrrev_b32 {vr(t0)}, 5, {L}")
    e(f"v_lshl_add_u32 {vr(V_TX)}, {vr(t0)}, 7, {vr(t1)}")
    e(f"v_cmp_gt_u32 vcc, 32, {L}")
    e(f"v_mov_b32 {vr(t2)}, {BAD}")
    e("s_nop 0")
    e(f"v_cndmask_b32 {vr(V_TX+2)}, {vr(t2)}, {vr(V_TX)}, vcc")
    e(f"s_and_b32 {sr(S_T0)}, {sr(S_RB)}, 7")
    e(f"s_lshl_b32 {sr(S_T0)}, {sr(S_T0)}, 3")
    e(f"v_lshrrev_b32 {vr(t0)}, 4, {L}")
    e(f"v_lshlrev_b32 {vr(t3)}, 6, {vr(t0)}")
    e(f"v_bfe_u32 {vr(t1)}, {L}, 1, 3")
    e(f"v_add3_u32 {vr(t3)}, {vr(t3)}, {vr(t1)}, {sr(S_T0)}")
    e(f"s_movk_i32 {sr(S_T1)}, {WROW}")
    e(f"v_mul_lo_u32 {vr(t1)}, {vr(t3)}, {sr(S_T1)}")
    e(f"v_and_b32 {vr(t2)}, 1, {L}")
    e(f"v_lshl_add_u32 {vr(t1)}, {vr(t2)}, 7, {vr(t1)}")
    e(f"s_lshl_b32 {sr(S_T1)}, {sr(S_F0)}, 1")
    e(f"v_add_u32 {vr(V_TW)}, {sr(S_T1)}, {vr(t1)}")
    e(f"v_mov_b32 {vr(t2)}, {BAD}")
    e(f"v_cmp_gt_u32 vcc, 48, {L}")
    e("s_nop 0")
    e(f"v_cndmask_b32 {vr(V_TW+2)}, {vr(t2)}, {vr(V_TW)}, vcc")
    e(f"v_cmp_gt_u32 vcc, 16, {L}")
    e("s_nop 1")
    e(f"v_cndmask_b32 {vr(V_TW+3)}, {vr(t2)}, {vr(V_TW)}, vcc")
    e(f"s_cmp_eq_u32 {sr(S_WAVE)}, 1")
    e(f"s_cselect_b32 {sr(SRD_K)}, {sr(P+14)}, {sr(P+16)}")
    e(f"s_cselect_b32 {sr(SRD_K+1)}, {sr(P+15)}, {sr(P+17)}")
    e(f"s_mov_b32 {sr(SRD_K+2)}, {WBYTES}")
    e(f"s_mov_b32 {sr(SRD_K+3)}, 0x20000")
    NPT = opts.get("npt", 3)
    def touch(stage_lo, nst):
        l1 = A.newlabel("TC"); l2 = A.newlabel("TC")
        e(f"s_cmp_eq_u32 {sr(S_WAVE)}, 0"); e(f"s_cbranch_scc0 {l1}")
        if nst == 1:
            e(f"s_movk_i32 {sr(S_T0)}, {stage_lo*128}")
            e(f"buffer_load_dword {vr(V_DUM)}, {vr(V_TX+2)}, {sr(SRD_Q,4)}, {sr(S_T0)} offen")
        else:
            e(f"s_movk_i32 {sr(S_T0)}, {stage_lo*128}")
            e(f"buffer_load_dword {vr(V_DUM)}, {vr(V_TX)}, {sr(SRD_Q,4)}, {sr(S_T0)} offen")
            e(f"s_movk_i32 {sr(S_T0)}, {(stage_lo+2)*128}")
            e(f"buffer_load_dword {vr(V_DUM)}, {vr(V_TX+2)}, {sr(SRD_Q,4)}, {sr(S_T0)} offen")
        e(f"s_branch {l2}")
        A.label(l1)
        e(f"s_mov_b32 {sr(S_T0)}, {stage_lo*64*WROW}")
        e(f"s_cmp_eq_u32 {sr(S_WAVE)}, 3")
        e(f"s_cselect_b32 {sr(S_T0)}, 0x40000000, {sr(S_T0)}")
        e(f"buffer_load_dword {vr(V_DUM)}, {vr(V_TW+3 if nst == 1 else V_TW+2)}, {sr(SRD_K,4)}, {sr(S_T0)} offen")
        A.label(l2)
    touch(1, 3)
    if opts.get("tlb"):
        ltl = A.newlabel("TLB")
        e(f"s_cmp_eq_u32 {sr(S_WAVE)}, 3"); e(f"s_cbranch_scc0 {ltl}")
        e(f"v_lshlrev_b32 {vr(t1)}, 18, {L}")
        e(f"s_lshl_b32 {sr(S_T0)}, {sr(S_WG)}, 7")
        e(f"buffer_load_dword {vr(V_DUM)}, {vr(t1)}, {sr(SRD_WS,4)}, {sr(S_T0)} offen")
        e(f"v_lshlrev_b32 {vr(t1)}, 15, {L}")
        e(f"buffer_load_dword {vr(V_DUM)}, {vr(t1)}, {sr(SRD_OUT,4)}, {sr(S_T0)} offen")
        A.label(ltl)
    TLEAD = opts.get("tlead", 4)
    for st_ in range(4, TLEAD): touch(st_, 1)
    if opts.get("tfirst", 1): e("s_barrier")
    srd_w_select(S_WAVE)
    dma_stage_g(1, 94, 96, S_X0, S_X1, S_X2, S_X3)
    TOUCH2 = []
    stamp(0)
    def reads(stage, ks, st):
        b = FS[st]; out = []
        slot = stage % 3
        xr, wr, o = (V_XR, V_WR, slot*STAGE) if slot < 2 else (V_XR2, V_WR2, 0)
        out.append(f"ds_read_b128 {vr(b,4)}, {vr(xr+ks)} offset:{o}")
        wa = wr + (3 if ks & 1 else 0)
        for h in range(2): out.append(f"ds_read_b64_tr_b16 {vr(b+8+2*h,2)}, {vr(wa)} offset:{o+ks*3072+h*768}")
        out.append(f"ds_read_b128 {vr(b+4,4)}, {vr(xr+ks)} offset:{o+4096}")
        for i in range(1, 3):
            for h in range(2): out.append(f"ds_read_b64_tr_b16 {vr(b+8+4*i+2*h,2)}, {vr(wa+i)} offset:{o+ks*3072+h*768}")
        return out
    V_SEL = 76; V_CSA = 80
    def kstep(ks, st, nxt, job=()):
        b = FS[st]; mf = []
        for i in range(3):
            for tt in range(2):
                a = ACC + 16*(2*i+tt)
                mf.append((f"v_mfma_f32_32x32x16_bf16 {vr(a,16)}, {vr(b+8+4*i,4)}, {vr(b+4*tt,4)}, {vr(a,16)}", 4))
            if ks % 2 == 0 and not opts.get("nocs"):
                mf.append((f"v_mfma_f32_16x16x32_bf16 {vr(V_CSA+4*i,4)}, {vr(V_SEL,4)}, {vr(b+8+4*i,4)}, {vr(V_CSA+4*i,4)}", 2))
        fill = list(nxt) + list(job)
        cap = sum(c for _, c in mf)
        k = 0; done = 0
        for m, c in mf:
            e(m)
            done += c
            upto = (len(fill) * done + cap - 1) // cap
            for x in fill[k:upto]: e(x)
            k = max(k, upto)
    job_at = {}
    e("s_barrier")
    stamp(1)
    for x in reads(0, 0, 0): e(x)
    for it in range(8):
        for ks in range(4):
            g = 4*it + ks
            if ks == 3 and it < 7:
                e("s_waitcnt vmcnt(1) lgkmcnt(0)" if it == 0 else "s_waitcnt lgkmcnt(0)")
                if opts.get("barstamp"): stamp(24 + it)
                e("s_barrier")
                if opts.get("barstamp"): stamp(32 + it)
            else:
                e("s_waitcnt lgkmcnt(0)")
            if ks == 1 and it + TLEAD <= 7: touch(it + TLEAD, 1)
            if ks < 3: nxt = reads(it, ks + 1, (g + 1) & 1)
            elif it < 7: nxt = reads(it + 1, 0, (g + 1) & 1)
            else: nxt = []
            kstep(ks, g & 1, nxt, job_at.get(g, []))
        if opts.get("itstamp"): stamp(16 + it)
    stamp(2)
    e("s_nop 7")
    e(f"s_lshl_b32 {sr(S_T0)}, {sr(S_B)}, 1")
    e(f"s_add_u32 {sr(S_T0)}, {sr(S_T0)}, {sr(S_A)}")
    e(f"s_mul_i32 {sr(S_T0)}, {sr(S_T0)}, 384")
    e(f"s_add_u32 {sr(S_T0)}, {sr(S_T0)}, {L_CS}")
    e(f"v_lshlrev_b32 {vr(t0)}, 2, {L}")
    e(f"v_add_u32 {vr(t0)}, {sr(S_T0)}, {vr(t0)}")
    e(f"s_mov_b64 {sr(S_EX,2)}, exec")
    e("s_mov_b64 exec, 0xffff")
    for i in range(3):
        e(f"s_cmp_eq_u32 {sr(S_A)}, 0")
        e(f"s_cselect_b32 {sr(S_T1)}, {i*128}, {(2-i)*128}")
        e(f"v_add_u32 {vr(t1)}, {sr(S_T1)}, {vr(t0)}")
        e(f"ds_write_b32 {vr(t1)}, {vr(80+4*i)}")
        e(f"ds_write_b32 {vr(t1)}, {vr(80+4*i+1)} offset:64")
    e(f"s_mov_b64 exec, {sr(S_EX,2)}")
    e("s_waitcnt lgkmcnt(0)")
    e("s_barrier")
    stamp(3)
    if opts.get("g1only"):
        stamp_flush()
        e("s_endpgm")
    e("s_setprio 2")
    e(f"v_mov_b32 {vr(t0)}, {L_FLAG+32}")
    e(f"ds_read_b32 {vr(t1)}, {vr(t0)}")
    ST = 84
    e(f"v_and_b32 {vr(t2)}, 31, {L}")
    e(f"v_lshlrev_b32 {vr(t2)}, 3, {vr(t2)}")
    e(f"s_lshl_b32 {sr(S_T0)}, {sr(S_A)}, 9")
    e(f"s_add_u32 {sr(S_T0)}, {sr(S_T0)}, {L_STAT}")
    e(f"v_add_u32 {vr(t2)}, {sr(S_T0)}, {vr(t2)}")
    e(f"ds_read_b64 {vr(ST,2)}, {vr(t2)}")
    e(f"ds_read_b64 {vr(ST+2,2)}, {vr(t2)} offset:256")
    CGS = [16, 32, 48]; CG2 = [64, 96, 112]
    e(f"v_lshrrev_b32 {vr(t5)}, 5, {L}")
    e(f"v_lshlrev_b32 {vr(t5)}, 4, {vr(t5)}")
    e(f"s_mul_i32 {sr(S_T0)}, {sr(S_B)}, 768")
    e(f"s_add_u32 {sr(S_T0)}, {sr(S_T0)}, {L_CS}")
    e(f"v_add_u32 {vr(t5)}, {sr(S_T0)}, {vr(t5)}")
    for i in range(3):
        e(f"s_cmp_eq_u32 {sr(S_A)}, 0")
        e(f"s_cselect_b32 {sr(S_T1)}, {i*128}, {(2-i)*128}")
        e(f"v_add_u32 {vr(t0)}, {sr(S_T1)}, {vr(t5)}")
        for rp in range(4): e(f"ds_read_b128 {vr(CGS[i]+4*rp,4)}, {vr(t0)} offset:{32*rp}")
        for rp in range(4): e(f"ds_read_b128 {vr(CG2[i]+4*rp,4)}, {vr(t0)} offset:{384+32*rp}")
    e("s_waitcnt lgkmcnt(0)")
    e(f"v_readfirstlane_b32 {sr(S_NONCE)}, {vr(t1)}")
    C1 = -2.0 * 0.7978845608028654 * 0.044715 * 1.4426950408889634
    C0 = -2.0 * 0.7978845608028654 * 1.4426950408889634
    NMp, K1p, K0p, IRp = [144, 146], [148, 150], [152, 154], [156, 158]
    e(f"s_mov_b32 {sr(S_T4)}, {f2u(C1):#x}")
    e(f"s_mov_b32 {sr(S_T5)}, {f2u(C0):#x}")
    for tt in range(2):
        m, r = ST + 2*tt, ST + 2*tt + 1
        e(f"v_sub_f32 {vr(NMp[tt])}, 0, {vr(m)}")
        e(f"v_mul_f32 {vr(K0p[tt])}, {sr(S_T5)}, {vr(r)}")
        e(f"v_mul_f32 {vr(t3)}, {vr(r)}, {vr(r)}")
        e(f"v_mul_f32 {vr(t4)}, {vr(t3)}, {vr(r)}")
        e(f"v_mul_f32 {vr(K1p[tt])}, {sr(S_T4)}, {vr(t4)}")
        e(f"v_rcp_f32 {vr(IRp[tt])}, {vr(t3)}")
        e("s_nop 1")
        for rr in (NMp, K0p, K1p, IRp): e(f"v_mov_b32 {vr(rr[tt]+1)}, {vr(rr[tt])}")
    for i in range(3):
        for k in range(0, 16, 2): e(f"v_pk_add_f32 {vr(CGS[i]+k,2)}, {vr(CGS[i]+k,2)}, {vr(CG2[i]+k,2)}")
    TT = 128; HP = [136, 140]
    e(f"v_lshlrev_b32 {vr(t4)}, 4, {L}")
    e(f"s_lshl_b32 {sr(S_T1)}, {sr(S_RB)}, 2")
    e(f"s_lshl_b32 {sr(S_T2)}, {sr(S_A)}, 1")
    e(f"s_add_u32 {sr(S_T1)}, {sr(S_T1)}, {sr(S_T2)}")
    e(f"s_mul_i32 {sr(S_T1)}, {sr(S_T1)}, 86")
    e(f"s_lshr_b32 {sr(S_T2)}, {sr(S_F0)}, 4")
    e(f"s_add_u32 {sr(S_T1)}, {sr(S_T1)}, {sr(S_T2)}")
    e(f"s_add_u32 {sr(S_T1)}, {sr(S_T1)}, {sr(S_B)}")
    e(f"s_lshl_b32 {sr(S_T1)}, {sr(S_T1)}, 10")
    e(f"s_add_u32 {sr(S_G2)}, {sr(S_T1)}, {WS_HF}")
    for i in range(3):
        lsk = A.newlabel("EP")
        if i == 1: e(f"s_mov_b32 {sr(S_T0)}, 1")
        else:
            e(f"s_cmp_eq_u32 {sr(S_A)}, 0")
            e(f"s_cselect_b32 {sr(S_T0)}, {i}, {2-i}")
        e(f"s_cmp_ge_u32 {sr(S_T0)}, {sr(S_N32)}")
        e(f"s_cbranch_scc1 {lsk}")
        e(f"s_lshl_b32 {sr(S_T0)}, {sr(S_T0)}, 11")
        e(f"s_add_u32 {sr(S_T1)}, {sr(S_G2)}, {sr(S_T0)}")
        e(f"s_add_u32 {sr(S_T2)}, {sr(S_T1)}, {86*1024}")
        CG = CGS[i]
        for tt in range(2):
            a = ACC + 16*(2*i+tt)
            NM, K1, K0, IR = NMp[tt], K1p[tt], K0p[tt], IRp[tt]
            G = [a+2*k for k in range(4)]; U = [a+8+2*k for k in range(4)]
            cg = [CG+2*k for k in range(4)]; cu = [CG+8+2*k for k in range(4)]
            T = [TT+2*k for k in range(4)]
            for k in range(4): e(f"v_pk_fma_f32 {vr(G[k],2)}, {vr(NM,2)}, {vr(cg[k],2)}, {vr(G[k],2)}")
            for k in range(4): e(f"v_pk_mul_f32 {vr(T[k],2)}, {vr(G[k],2)}, {vr(G[k],2)}")
            for k in range(4): e(f"v_pk_fma_f32 {vr(T[k],2)}, {vr(T[k],2)}, {vr(K1,2)}, {vr(K0,2)}")
            for k in range(4): e(f"v_pk_mul_f32 {vr(T[k],2)}, {vr(T[k],2)}, {vr(G[k],2)}")
            for k in range(4):
                e(f"v_exp_f32 {vr(TT+2*k)}, {vr(TT+2*k)}")
                e(f"v_exp_f32 {vr(TT+2*k+1)}, {vr(TT+2*k+1)}")
                e(f"v_pk_fma_f32 {vr(U[k],2)}, {vr(NM,2)}, {vr(cu[k],2)}, {vr(U[k],2)}")
            for k in range(4): e(f"v_pk_fma_f32 {vr(T[k],2)}, {vr(T[k],2)}, {vr(IR,2)}, {vr(IR,2)}")
            for k in range(4):
                e(f"v_rcp_f32 {vr(TT+2*k)}, {vr(TT+2*k)}")
                e(f"v_rcp_f32 {vr(TT+2*k+1)}, {vr(TT+2*k+1)}")
                e(f"v_pk_mul_f32 {vr(G[k],2)}, {vr(G[k],2)}, {vr(U[k],2)}")
            for k in range(4): e(f"v_pk_mul_f32 {vr(G[k],2)}, {vr(G[k],2)}, {vr(T[k],2)}")
            for k in range(4): e(f"v_cvt_pk_bf16_f32 {vr(HP[tt]+k)}, {vr(G[k])}, {vr(G[k]+1)}")
            A.vmem(f"buffer_store_dwordx4 {vr(HP[tt],4)}, {vr(t4)}, {sr(SRD_WS,4)}, {sr(S_T1 if tt == 0 else S_T2)} offen sc0 sc1", "hst")
        A.label(lsk)
    stamp(4)
    e(f"s_lshl_b32 {sr(S_T0)}, {sr(S_WAVE)}, 2")
    e(f"s_add_u32 {sr(S_T0)}, {sr(S_T0)}, {L_FLAG+48}")
    e(f"v_mov_b32 {vr(t0)}, {sr(S_T0)}")
    e(f"v_mov_b32 {vr(t1)}, 1")
    e(f"ds_write_b32 {vr(t0)}, {vr(t1)}")
    GACC = 160; PH = opts.get('ph', 8); GH = 16; GW = 80
    GACC = 176
    GW = 80
    GA = [168, 240]
    V_AR = 248
    V_HL, V_DO = 254, 255
    S_KU0, S_KUN, S_RA, S_RBB, S_RC, S_H0 = S_G0, S_G1, S_G2, S_G3, S_G4, S_G5
    S_H1, S_OOB, S_DSO, S_ROT, S_HB = S_C0, S_C1, S_X0, S_X1, S_X2
    e(f"s_mul_i32 {sr(S_ROT)}, {sr(S_J)}, {opts.get('rot', 3)}")
    ku_start(S_KU0, S_WAVE)
    e(f"s_cmp_lt_u32 {sr(S_WAVE)}, 2")
    e(f"s_cselect_b32 {sr(S_KUN)}, 22, 21")
    ring_bases(S_WAVE, S_RA, S_RBB, S_RC)
    wd_voffset(V_DO)
    e(f"v_lshrrev_b32 {vr(t0)}, 5, {L}")
    e(f"v_bfe_u32 {vr(t1)}, {L}, 2, 2")
    e(f"v_lshl_add_u32 {vr(t0)}, {vr(t0)}, 2, {vr(t1)}")
    e(f"v_lshlrev_b32 {vr(t0)}, 7, {vr(t0)}")
    e(f"v_bfe_u32 {vr(t2)}, {L}, 4, 1")
    e(f"v_bfe_u32 {vr(t3)}, {L}, 1, 1")
    e(f"v_lshl_add_u32 {vr(t2)}, {vr(t2)}, 1, {vr(t3)}")
    e(f"v_lshlrev_b32 {vr(t2)}, 4, {vr(t2)}")
    e(f"v_and_b32 {vr(t3)}, 1, {L}")
    e(f"v_lshl_add_u32 {vr(t2)}, {vr(t3)}, 3, {vr(t2)}")
    e(f"v_add_u32 {vr(t0)}, {vr(t0)}, {vr(t2)}")
    e(f"v_bfe_u32 {vr(t1)}, {L}, 3, 1")
    e(f"v_lshlrev_b32 {vr(t1)}, 6, {vr(t1)}")
    e(f"v_add_u32 {vr(t2)}, {vr(t0)}, {vr(t1)}")
    e(f"v_xor_b32 {vr(t1)}, 64, {vr(t1)}")
    e(f"v_add_u32 {vr(t3)}, {vr(t0)}, {vr(t1)}")
    for bi, sb in enumerate((S_RA, S_RBB, S_RC)):
        e(f"v_add_u32 {vr(V_AR+2*bi)}, {sr(sb)}, {vr(t2)}")
        e(f"v_add_u32 {vr(V_AR+2*bi+1)}, {sr(sb)}, {vr(t3)}")
    e(f"v_lshlrev_b32 {vr(V_HL)}, 4, {L}")
    e(f"s_mov_b32 {sr(S_OOB)}, 0x20000000")
    e("s_waitcnt vmcnt(0)")
    e(f"s_lshl_b32 {sr(S_T0)}, {sr(S_RB)}, 8")
    e(f"s_lshl_b32 {sr(S_T1)}, {sr(S_CP)}, 4")
    e(f"s_lshl_b32 {sr(S_T2)}, {sr(S_WAVE)}, 2")
    e(f"s_add_u32 {sr(S_T0)}, {sr(S_T0)}, {sr(S_T1)}")
    e(f"s_add_u32 {sr(S_T0)}, {sr(S_T0)}, {sr(S_T2)}")
    e(f"s_add_u32 {sr(S_T0)}, {sr(S_T0)}, {WS_FL+FL_H}")
    flag_set(S_T0, t0)
    stamp(5)
    e(f"s_lshl_b32 {sr(S_T0)}, {sr(S_WAVE)}, 2")
    e(f"s_add_u32 {sr(S_T0)}, {sr(S_T0)}, {L_FLAG+16}")
    lds_spin(S_T0, t0, t1)
    def afrag_reads(n, dst):
        bi, off = ring_off(n); out = []
        for dt in range(2):
            for h in range(2):
                out.append(f"ds_read_b64_tr_b16 {vr(dst+4*dt+2*h,2)}, {vr(V_AR+2*bi+dt)} offset:{off+1024*h}")
        return out
    for n in range(NR):
        for x in afrag_reads(n, GW+8*n): e(x)
        if n % 3 == 2: e("s_waitcnt lgkmcnt(4)")
    e("s_waitcnt lgkmcnt(0)")
    for n in range(NR):
        bi, off = ring_off(n)
        sb = (S_RA, S_RBB, S_RC)[bi]
        wd_soff(NR + n, S_DSO, S_ROT, S_KUN, S_KU0, S_OOB)
        for a in range(2):
            e(f"s_add_u32 m0, {sr(sb)}, {off + 1024*a}")
            if a == 1: e(f"s_add_u32 {sr(S_DSO)}, {sr(S_DSO)}, 8192")
            else: e("s_nop 0")
            A.vmem(f"buffer_load_dwordx4 {vr(V_DO)}, {sr(SRD_WD,4)}, {sr(S_DSO)} offen lds", "WR2")
    for r in range(64): e(f"v_mov_b32 {vr(GACC+r)}, 0")
    stamp(6)
    e(f"s_lshr_b32 {sr(S_T0)}, {sr(S_I2)}, 1")
    e(f"s_lshl_b32 {sr(S_T0)}, {sr(S_T0)}, 8")
    e(f"s_add_u32 {sr(S_T0)}, {sr(S_T0)}, {WS_FL+FL_H}")
    lh1 = A.newlabel("HP"); lh2 = A.newlabel("HP")
    e(f"s_cmp_lg_u32 {sr(S_WAVE)}, 0")
    e(f"s_cbranch_scc1 {lh1}")
    flag_wait_blocking(t1, 1, S_T0, sleep=opts.get('hsleep', 2))
    e(f"v_mov_b32 {vr(t0)}, {L_FLAG+72}")
    e(f"v_mov_b32 {vr(t1)}, 1")
    e(f"ds_write_b32 {vr(t0)}, {vr(t1)}")
    e(f"s_branch {lh2}")
    A.label(lh1)
    e(f"s_mov_b32 {sr(S_T0)}, {L_FLAG+72}")
    lds_spin(S_T0, t1, t0, sleep=1)
    e("s_waitcnt vmcnt(0)")
    A.label(lh2)
    stamp(7)
    e(f"s_lshl_b32 {sr(S_T0)}, {sr(S_I2)}, 1")
    e(f"s_mul_i32 {sr(S_T0)}, {sr(S_T0)}, 86")
    e(f"s_add_u32 {sr(S_T0)}, {sr(S_T0)}, {sr(S_KU0)}")
    e(f"s_lshl_b32 {sr(S_T0)}, {sr(S_T0)}, 10")
    e(f"s_add_u32 {sr(S_HB)}, {sr(S_T0)}, {WS_HF}")
    A.vm = []
    def hload(n):
        hb = GH + 8*(n % PH)
        unit_at(n, S_H0, S_ROT, S_KUN)
        e(f"s_cselect_b32 {sr(S_T5)}, 1, 0")
        e(f"s_lshl_b32 {sr(S_H0)}, {sr(S_H0)}, 10")
        e(f"s_add_u32 {sr(S_H0)}, {sr(S_H0)}, {sr(S_HB)}")
        e(f"s_cmp_eq_u32 {sr(S_T5)}, 1")
        e(f"s_cselect_b32 {sr(S_H0)}, {sr(S_H0)}, {sr(S_OOB)}")
        e(f"s_add_u32 {sr(S_H1)}, {sr(S_H0)}, {86*1024}")
        A.vmem(f"buffer_load_dwordx4 {vr(hb,4)}, {vr(V_HL)}, {sr(SRD_WS,4)}, {sr(S_H0)} offen{HSC}", f"H{n}")
        A.vmem(f"buffer_load_dwordx4 {vr(hb+4,4)}, {vr(V_HL)}, {sr(SRD_WS,4)}, {sr(S_H1)} offen{HSC}", f"H{n}")
    for n in range(PH): hload(n)
    for n in range(22):
        hb = GH + 8*(n % PH)
        if n < NR: aw = GW + 8*n
        else: aw = GA[n & 1]
        if n + 1 >= NR and n + 1 < 22:
            for x in afrag_reads(n + 1 - NR, GA[(n+1) & 1]): e(x)
        A.wait_vm(f"H{n}")
        if n >= NR: e("s_waitcnt lgkmcnt(4)" if n + 1 < 22 else "s_waitcnt lgkmcnt(0)")
        e(f"v_mfma_f32_32x32x16_bf16 {vr(GACC,16)}, {vr(aw,4)}, {vr(hb,4)}, {vr(GACC,16)}")
        e(f"v_mfma_f32_32x32x16_bf16 {vr(GACC+16,16)}, {vr(aw,4)}, {vr(hb+4,4)}, {vr(GACC+16,16)}")
        e(f"v_mfma_f32_32x32x16_bf16 {vr(GACC+32,16)}, {vr(aw+4,4)}, {vr(hb,4)}, {vr(GACC+32,16)}")
        e(f"v_mfma_f32_32x32x16_bf16 {vr(GACC+48,16)}, {vr(aw+4,4)}, {vr(hb+4,4)}, {vr(GACC+48,16)}")
        if n + PH < 22: hload(n + PH)
        if n == opts.get("yun", 12):
            e(f"v_mov_b32 {vr(t0)}, {L_FLAG+64}")
            e(f"v_mov_b32 {vr(t1)}, 1")
            e(f"ds_write_b32 {vr(t0)}, {vr(t1)}")
        if opts.get("g2stamp") and n % 2 == 1: stamp(32 + n // 2)
    stamp(8)
    e("s_nop 7")
    e(f"v_and_b32 {vr(t0)}, 31, {L}")
    e(f"v_lshrrev_b32 {vr(t1)}, 5, {L}")
    e(f"v_mul_u32_u24 {vr(t0)}, 272, {vr(t0)}")
    e(f"v_lshl_add_u32 {vr(t0)}, {vr(t1)}, 4, {vr(t0)}")
    e(f"v_add_u32 {vr(t1)}, {sr(S_RBB)}, {vr(t0)}")
    e(f"v_add_u32 {vr(t0)}, {sr(S_RA)}, {vr(t0)}")
    for dt in range(2):
        for tt in range(2):
            for rp in range(4):
                a = GACC + 16*(2*dt+tt) + 4*rp
                e(f"ds_write_b128 {vr(t0 if tt == 0 else t1)}, {vr(a,4)} offset:{dt*128 + rp*32}")
    e("s_branch L_FINAL")

    A.label("L_HELPER")
    A.vm = ["code"]
    if opts.get("g1only"):
        for _ in range(10): e("s_barrier")
        e("s_endpgm")
    S_LW = S_A
    e(f"s_sub_u32 {sr(S_LW)}, {sr(S_WAVE)}, 4")
    V_XO, V_WO, V_L16, V_TO, V_DO2 = 16, 18, 21, 22, 23
    S_XSO, S_WSO, S_M0X, S_M0W = S_G0, S_G1, S_G3, S_G4
    BAD = 0x7fffff00
    e(f"v_lshlrev_b32 {vr(V_L16)}, 4, {L}")
    loader_setup(S_LW, V_XO, V_WO, S_M0X, S_M0W)
    S_ROW = S_G5
    e(f"s_lshl_b32 {sr(S_ROW)}, {sr(S_RB)}, 7")
    e(f"s_lshl_b32 {sr(S_T0)}, {sr(S_CP)}, 3")
    e(f"s_add_u32 {sr(S_ROW)}, {sr(S_ROW)}, {sr(S_T0)}")
    e(f"s_lshl_b32 {sr(S_T0)}, {sr(S_LW)}, 1")
    e(f"s_add_u32 {sr(S_ROW)}, {sr(S_ROW)}, {sr(S_T0)}")
    e(f"v_lshrrev_b32 {vr(t0)}, 3, {L}")
    e(f"v_and_b32 {vr(t1)}, 7, {L}")
    e(f"v_lshrrev_b32 {vr(t2)}, 4, {L}")
    e(f"s_and_b32 {sr(S_T1)}, {sr(S_LW)}, 1")
    e(f"s_lshl_b32 {sr(S_T1)}, {sr(S_T1)}, 2")
    e(f"v_add_u32 {vr(t2)}, {sr(S_T1)}, {vr(t2)}")
    e(f"v_xor_b32 {vr(t1)}, {vr(t1)}, {vr(t2)}")
    e(f"v_lshlrev_b32 {vr(t1)}, 4, {vr(t1)}")
    e(f"v_lshl_add_u32 {vr(t1)}, {vr(t0)}, 10, {vr(t1)}")
    e(f"s_lshl_b32 {sr(S_T1)}, {sr(S_J)}, 7")
    e(f"v_add_u32 {vr(V_TO)}, {sr(S_T1)}, {vr(t1)}")
    wd_voffset(V_DO2)
    e("s_waitcnt lgkmcnt(0)")
    srd(SRD_Q, 0, 2 << 20)
    srd_w_select(S_LW)
    stamp(0)
    def dma_stage(s): dma_stage_g(s, V_XO, V_WO, S_M0X, S_M0W, S_XSO, S_WSO)
    SX = 24; V_NL = 33; V_SL = 116; V_SLA = 34; V_FL = 114; V_DUM = 32
    e(f"s_lshl_b32 {sr(S_T0)}, {sr(S_ROW)}, 10")
    A.vmem(f"buffer_load_dwordx4 {vr(SX,4)}, {vr(V_L16)}, {sr(SRD_Q,4)}, {sr(S_T0)} offen", "SX")
    A.vmem(f"buffer_load_dwordx4 {vr(SX+4,4)}, {vr(V_L16)}, {sr(SRD_Q,4)}, {sr(S_T0)} offen offset:1024", "SX")
    srd(SRD_DBG, 11, 256)
    lnn = A.newlabel("NN")
    e(f"s_cmp_lg_u32 {sr(S_WG)}, 0")
    e(f"s_cbranch_scc1 {lnn}")
    e(f"s_cmp_lg_u32 {sr(S_WAVE)}, 4")
    e(f"s_cbranch_scc1 {lnn}")
    e(f"s_memrealtime {sr(S_T0,2)}")
    e("s_waitcnt lgkmcnt(0)")
    e(f"s_or_b32 {sr(S_T0)}, {sr(S_T0)}, 1")
    e(f"v_mov_b32 {vr(t0)}, {sr(S_T0)}")
    e(f"buffer_store_dword {vr(t0)}, off, {sr(SRD_DBG,4)}, 0 sc0 sc1")
    A.label(lnn)
    if opts.get("tfirst", 1): e("s_barrier")
    dma_stage(0)
    if not opts.get("tfirst", 1): e("s_barrier")
    srd(SRD_K, 1, 2 << 20); srd(SRD_V, 2, 2 << 20)
    srd(SRD_WS, 12, 0x10000000); srd(SRD_WD, 9, WBYTES)
    def tiles():
        e(f"s_lshl_b32 {sr(S_T0)}, {sr(S_I2)}, 16")
        for srd_, base in ((SRD_K, L_KT), (SRD_V, L_VT)):
            for gi in range(2):
                e(f"s_add_u32 {sr(S_T1)}, {sr(S_LW)}, {4*gi}")
                e(f"s_lshl_b32 {sr(S_T2)}, {sr(S_T1)}, 13")
                e(f"s_add_u32 {sr(S_T2)}, {sr(S_T2)}, {sr(S_T0)}")
                e(f"s_lshl_b32 {sr(S_T1)}, {sr(S_T1)}, 10")
                e(f"s_add_u32 m0, {sr(S_T1)}, {base}")
                e("s_nop 0")
                A.vmem(f"buffer_load_dwordx4 {vr(V_TO)}, {sr(srd_,4)}, {sr(S_T2)} offen lds", "P")
    S_CIDX = S_C1
    HK = [88, 96]; HPB = 112
    def hk_loads():
        e(f"s_lshl_b32 {sr(S_T0)}, {sr(S_WG)}, 1")
        e(f"s_add_u32 {sr(S_T0)}, {sr(S_T0)}, {sr(S_CIDX)}")
        e(f"s_lshl_b32 {sr(S_T0)}, {sr(S_T0)}, 12")
        e(f"s_add_u32 {sr(SRD_SK)}, {sr(P+8)}, {sr(S_T0)}")
        e(f"s_addc_u32 {sr(SRD_SK+1)}, {sr(P+9)}, 0")
        e(f"s_mov_b32 {sr(SRD_SK+2)}, 4096")
        e(f"s_mov_b32 {sr(SRD_SK+3)}, 0x20000")
        e(f"s_and_b32 {sr(S_T1)}, {sr(S_LW)}, 1")
        e(f"s_lshl_b32 {sr(S_T1)}, {sr(S_T1)}, 11")
        for y in range(2):
            e(f"s_add_u32 {sr(S_T2)}, {sr(S_T1)}, {1024*y}")
            A.vmem(f"buffer_load_dwordx4 {vr(HK[y],4)}, {vr(V_L16)}, {sr(SRD_SK,4)}, {sr(S_T2)} offen", "HK")
            A.vmem(f"buffer_load_dwordx2 {vr(HK[y]+4,2)}, {vr(V_L16)}, {sr(SRD_SK,4)}, {sr(S_T2)} offen offset:16", "HK")
        e(f"v_cmp_eq_u32 vcc, 1, {L}")
        e(f"v_mov_b32 {vr(t5)}, 0x10000")
        e("s_nop 0")
        e(f"v_cndmask_b32 {vr(t5)}, {vr(t5)}, 0, vcc")
        A.vmem(f"buffer_load_dwordx2 {vr(HPB,2)}, {vr(t5)}, {sr(SRD_SK,4)}, 0 offen", "HK")
    def wd_touch():
        e(f"s_mul_i32 {sr(S_T0)}, {sr(S_WG)}, {43*128}")
        e(f"s_mul_i32 {sr(S_T1)}, {sr(S_LW)}, 11")
        e(f"v_add_u32 {vr(t4)}, {sr(S_T1)}, {L}")
        e(f"v_cmp_gt_u32 vcc, 11, {L}")
        e(f"v_lshlrev_b32 {vr(t4)}, 7, {vr(t4)}")
        e(f"v_add_u32 {vr(t4)}, {sr(S_T0)}, {vr(t4)}")
        e(f"v_mov_b32 {vr(t5)}, {BAD}")
        e(f"v_cndmask_b32 {vr(t4)}, {vr(t5)}, {vr(t4)}, vcc")
        A.vmem(f"buffer_load_dword {vr(V_DUM)}, {vr(t4)}, {sr(SRD_WD,4)}, 0 offen", "T2")
    e(f"s_lshr_b32 {sr(S_CIDX)}, {sr(S_LW)}, 1")
    PPOS = opts.get("ppos", -1)
    if PPOS < 0: tiles()
    A.vmem(f"buffer_load_dword {vr(V_NL)}, off, {sr(SRD_DBG,4)}, 0 sc1", "NL")
    e(f"v_lshlrev_b32 {vr(t0)}, 2, {L}")
    e(f"v_add_u32 {vr(t0)}, {L_FLAG}, {vr(t0)}")
    e(f"v_mov_b32 {vr(t1)}, 0")
    e(f"s_mov_b64 {sr(S_EX,2)}, exec")
    e("s_mov_b64 exec, 0xfffffff")
    e(f"ds_write_b32 {vr(t0)}, {vr(t1)}")
    e(f"s_mov_b64 exec, {sr(S_EX,2)}")
    A.wait_vm("SX")
    XU = 120; SA = 136
    for rr in range(2):
        for k in range(4):
            e(f"v_lshlrev_b32 {vr(XU+8*rr+2*k)}, 16, {vr(SX+4*rr+k)}")
            e(f"v_and_b32 {vr(XU+8*rr+2*k+1)}, 0xffff0000, {vr(SX+4*rr+k)}")
    def wave_reduce(regs):
        for sh in ("row_shr:1", "row_shr:2", "row_shr:4", "row_shr:8"):
            for r in regs: e(f"v_add_f32_dpp {vr(r)}, {vr(r)}, {vr(r)} {sh} row_mask:0xf bank_mask:0xf bound_ctrl:0")
            e("s_nop 0")
        for r in regs: e(f"v_add_f32_dpp {vr(r)}, {vr(r)}, {vr(r)} row_bcast:15 row_mask:0xa bank_mask:0xf")
        e("s_nop 0")
        for r in regs: e(f"v_add_f32_dpp {vr(r)}, {vr(r)}, {vr(r)} row_bcast:31 row_mask:0xc bank_mask:0xf")
        e("s_nop 1")
    for k in range(1, 8):
        for rr in range(2):
            b = XU + 8*rr
            if k == 1: e(f"v_add_f32 {vr(SA+rr)}, {vr(b)}, {vr(b+1)}")
            else: e(f"v_add_f32 {vr(SA+rr)}, {vr(SA+rr)}, {vr(b+k)}")
    e("s_nop 1")
    wave_reduce([SA, SA+1])
    e(f"v_readlane_b32 {sr(S_T0)}, {vr(SA)}, 63")
    e(f"v_readlane_b32 {sr(S_T1)}, {vr(SA+1)}, 63")
    e(f"v_mov_b32 {vr(SA+2)}, 0x3b000000")
    e("s_nop 0")
    e(f"v_mul_f32 {vr(SA+4)}, {sr(S_T0)}, {vr(SA+2)}")
    e(f"v_mul_f32 {vr(SA+5)}, {sr(S_T1)}, {vr(SA+2)}")
    for k in range(8):
        for rr in range(2): e(f"v_sub_f32 {vr(XU+8*rr+k)}, {vr(XU+8*rr+k)}, {vr(SA+4+rr)}")
    for k in range(8):
        for rr in range(2):
            b = XU + 8*rr
            if k == 0: e(f"v_mul_f32 {vr(SA+rr)}, {vr(b)}, {vr(b)}")
            else: e(f"v_fma_f32 {vr(SA+rr)}, {vr(b+k)}, {vr(b+k)}, {vr(SA+rr)}")
    e("s_nop 1")
    wave_reduce([SA, SA+1])
    e(f"v_readlane_b32 {sr(S_T0)}, {vr(SA)}, 63")
    e(f"v_readlane_b32 {sr(S_T1)}, {vr(SA+1)}, 63")
    e(f"v_cmp_eq_u32 vcc, 1, {L}")
    e("s_nop 0")
    e(f"v_mov_b32 {vr(SA)}, {sr(S_T0)}")
    e(f"v_mov_b32 {vr(SA+1)}, {sr(S_T1)}")
    e(f"v_cndmask_b32 {vr(SA)}, {vr(SA)}, {vr(SA+1)}, vcc")
    e(f"v_cndmask_b32 {vr(SA+4)}, {vr(SA+4)}, {vr(SA+5)}, vcc")
    e(f"v_mul_f32 {vr(SA)}, {vr(SA)}, {vr(SA+2)}")
    e(f"v_cvt_pk_bf16_f32 {vr(SA)}, {vr(SA)}, {vr(SA)}")
    e(f"v_lshlrev_b32 {vr(SA)}, 16, {vr(SA)}")
    e(f"v_add_f32 {vr(SA)}, 0x3727c5ac, {vr(SA)}")
    e(f"v_cvt_pk_bf16_f32 {vr(SA)}, {vr(SA)}, {vr(SA)}")
    e(f"v_lshlrev_b32 {vr(SA)}, 16, {vr(SA)}")
    e(f"v_sqrt_f32 {vr(SA)}, {vr(SA)}")
    e("s_nop 0")
    V_STP = 110
    e(f"v_cvt_pk_bf16_f32 {vr(V_STP)}, {vr(SA+4)}, {vr(SA)}")
    A.wait_vm("S0")
    e("s_waitcnt lgkmcnt(0)")
    e("s_barrier")
    stamp(1)
    def it_end(it, stages, waits=()):
        if opts.get("barstamp"): stamp(24 + it)
        if waits: A.wait_vm(*waits)
        e("s_waitcnt lgkmcnt(0)")
        if opts.get("barstamp"): stamp(32 + it)
        e("s_barrier")
        if opts.get("barstamp"): stamp(40 + it)
        for st_ in stages: st_()
        if opts.get("barstamp"): stamp(48 + it)
    def job_nonce_sts():
        lok = A.newlabel("NOK"); lre = A.newlabel("NRE")
        e(f"s_mov_b32 {sr(S_T3)}, 0x40000")
        A.label(lre)
        e(f"v_readfirstlane_b32 {sr(S_NONCE)}, {vr(V_NL)}")
        e("s_nop 3")
        e(f"s_cmp_lg_u32 {sr(S_NONCE)}, 0")
        e(f"s_cbranch_scc1 {lok}")
        e(f"s_sub_u32 {sr(S_T3)}, {sr(S_T3)}, 1")
        e(f"s_cmp_eq_u32 {sr(S_T3)}, 0")
        e(f"s_cbranch_scc1 {lok}")
        e("s_sleep 2")
        e(f"buffer_load_dword {vr(V_NL)}, off, {sr(SRD_DBG,4)}, 0 sc1")
        e("s_waitcnt vmcnt(0)")
        e(f"s_branch {lre}")
        A.label(lok)
        e(f"v_mov_b32 {vr(t0)}, {L_FLAG+32}")
        e(f"v_mov_b32 {vr(V_STP+1)}, {sr(S_NONCE)}")
        e(f"ds_write_b32 {vr(t0)}, {vr(V_STP+1)}")
        e(f"s_lshl_b32 {sr(S_T0)}, {sr(S_ROW)}, 3")
        e(f"s_add_u32 {sr(S_T0)}, {sr(S_T0)}, {WS_ST}")
        e(f"v_lshlrev_b32 {vr(t0)}, 3, {L}")
        e(f"s_mov_b64 {sr(S_EX,2)}, exec")
        e("s_mov_b64 exec, 3")
        A.vmem(f"buffer_store_dwordx2 {vr(V_STP,2)}, {vr(t0)}, {sr(SRD_WS,4)}, {sr(S_T0)} offen sc0 sc1", "STS")
        e(f"s_mov_b64 exec, {sr(S_EX,2)}")
    T = 128
    def job_tr_store():
        e(f"v_and_b32 {vr(t0)}, 3, {L}")
        e(f"v_bfe_u32 {vr(t1)}, {L}, 4, 1")
        e(f"v_lshl_add_u32 {vr(t0)}, {vr(t1)}, 2, {vr(t0)}")
        e(f"v_lshlrev_b32 {vr(t0)}, 3, {vr(t0)}")
        e(f"v_bfe_u32 {vr(t1)}, {L}, 2, 2")
        e(f"v_sub_u32 {vr(t0)}, {vr(t0)}, {vr(t1)}")
        e(f"v_add_u32 {vr(t0)}, 7, {vr(t0)}")
        e(f"v_lshrrev_b32 {vr(t3)}, 5, {L}")
        e(f"v_lshlrev_b32 {vr(t3)}, 3, {vr(t3)}")
        e(f"s_lshl_b32 {sr(S_T0)}, {sr(S_LW)}, 1")
        for h in range(2):
            if h == 1: e(f"v_subrev_u32 {vr(t0)}, 4, {vr(t0)}")
            e(f"v_bfe_u32 {vr(t1)}, {vr(t0)}, 1, 3")
            e(f"v_xor_b32 {vr(t1)}, {sr(S_T0)}, {vr(t1)}")
            e(f"v_lshlrev_b32 {vr(t1)}, 4, {vr(t1)}")
            e(f"v_lshl_add_u32 {vr(t1)}, {vr(t0)}, 7, {vr(t1)}")
            e(f"v_add_u32 {vr(t1)}, {vr(t1)}, {vr(t3)}")
            e(f"v_add_u32 {vr(t1)}, {L_KT}, {vr(t1)}")
            e(f"v_xor_b32 {vr(t2)}, 16, {vr(t1)}")
            for x, a in ((0, t1), (1, t2)):
                e(f"ds_read_b64_tr_b16 {vr(T+4*x+2*h,2)}, {vr(a)}")
                e(f"ds_read_b64_tr_b16 {vr(T+8+4*x+2*h,2)}, {vr(a)} offset:{L_VT-L_KT}")
        e(f"v_and_b32 {vr(t1)}, 3, {L}")
        e(f"v_lshrrev_b32 {vr(t2)}, 5, {L}")
        e(f"v_lshl_add_u32 {vr(t1)}, {vr(t2)}, 2, {vr(t1)}")
        e(f"v_lshlrev_b32 {vr(t1)}, 12, {vr(t1)}")
        e(f"v_bfe_u32 {vr(t2)}, {L}, 2, 3")
        e(f"v_lshlrev_b32 {vr(t2)}, 4, {vr(t2)}")
        e(f"v_sub_u32 {vr(t1)}, {vr(t1)}, {vr(t2)}")
        e(f"v_add_u32 {vr(t1)}, 4080, {vr(t1)}")
        e(f"s_lshl_b32 {sr(S_T0)}, {sr(S_J)}, 6")
        e(f"s_lshl_b32 {sr(S_T1)}, {sr(S_LW)}, 4")
        e(f"s_add_u32 {sr(S_T0)}, {sr(S_T0)}, {sr(S_T1)}")
        e(f"s_lshl_b32 {sr(S_T0)}, {sr(S_T0)}, 12")
        e(f"s_lshl_b32 {sr(S_T1)}, {sr(S_I2)}, 7")
        e(f"s_sub_u32 {sr(S_T0)}, {sr(S_T0)}, {sr(S_T1)}")
        e(f"v_add_u32 {vr(t1)}, {sr(S_T0)}, {vr(t1)}")
        e(f"v_add_u32 {vr(t2)}, {8*4096}, {vr(t1)}")
        e(f"s_mov_b32 {sr(S_T0)}, {WS_VT}")
        e("s_waitcnt lgkmcnt(0)")
        A.vmem(f"buffer_store_dwordx4 {vr(T,4)}, {vr(t1)}, {sr(SRD_WS,4)}, 0 offen sc0 sc1", "KVS")
        A.vmem(f"buffer_store_dwordx4 {vr(T+4,4)}, {vr(t2)}, {sr(SRD_WS,4)}, 0 offen sc0 sc1", "KVS")
        A.vmem(f"buffer_store_dwordx4 {vr(T+8,4)}, {vr(t1)}, {sr(SRD_WS,4)}, {sr(S_T0)} offen sc0 sc1", "KVS")
        A.vmem(f"buffer_store_dwordx4 {vr(T+12,4)}, {vr(t2)}, {sr(SRD_WS,4)}, {sr(S_T0)} offen sc0 sc1", "KVS")
    S_STO = S_X3
    def job_sl():
        e(f"s_lshl_b32 {sr(S_STO)}, {sr(S_RB)}, 7")
        e(f"s_lshl_b32 {sr(S_T1)}, {sr(S_LW)}, 5")
        e(f"s_add_u32 {sr(S_STO)}, {sr(S_STO)}, {sr(S_T1)}")
        e(f"s_lshl_b32 {sr(S_STO)}, {sr(S_STO)}, 3")
        e(f"s_add_u32 {sr(S_STO)}, {sr(S_STO)}, {WS_ST}")
        e(f"v_and_b32 {vr(V_SLA)}, 31, {L}")
        e(f"v_lshlrev_b32 {vr(V_SLA)}, 3, {vr(V_SLA)}")
        A.vmem(f"buffer_load_dwordx2 {vr(V_SL,2)}, {vr(V_SLA)}, {sr(SRD_WS,4)}, {sr(S_STO)} offen sc1", "SL")
    def job_kvf():
        A.wait_vm("KVS")
        e(f"s_lshl_b32 {sr(S_T0)}, {sr(S_J)}, 9")
        e(f"s_lshl_b32 {sr(S_T1)}, {sr(S_I2)}, 4")
        e(f"s_lshl_b32 {sr(S_T2)}, {sr(S_LW)}, 2")
        e(f"s_add_u32 {sr(S_T0)}, {sr(S_T0)}, {sr(S_T1)}")
        e(f"s_add_u32 {sr(S_T0)}, {sr(S_T0)}, {sr(S_T2)}")
        e(f"s_add_u32 {sr(S_T0)}, {sr(S_T0)}, {WS_FL+FL_KV}")
        flag_set(S_T0, t0)
    S_C, S_KVO, S_W, S_OKF = 62, 63, 64, 70
    def job_conv_scalars():
        e(f"s_lshl_b32 {sr(S_C)}, {sr(S_WG)}, 1")
        e(f"s_add_u32 {sr(S_C)}, {sr(S_C)}, {sr(S_CIDX)}")
        e(f"s_lshr_b32 {sr(S_KVO)}, {sr(S_C)}, 6")
        e(f"s_lshl_b32 {sr(S_KVO)}, {sr(S_KVO)}, 9")
        e(f"s_add_u32 {sr(S_KVO)}, {sr(S_KVO)}, {WS_FL+FL_KV}")
        e(f"s_lshl_b32 {sr(S_T0)}, {sr(S_C)}, 3")
        e(f"s_load_dwordx2 {sr(S_W,2)}, {sr(P+6,2)}, {sr(S_T0)}")
        e("s_waitcnt lgkmcnt(0)")
        e(f"s_and_b32 {sr(S_W+3)}, {sr(S_W+1)}, 0xffff0000")
        e(f"s_lshl_b32 {sr(S_W+2)}, {sr(S_W+1)}, 16")
        e(f"s_and_b32 {sr(S_W+1)}, {sr(S_W)}, 0xffff0000")
        e(f"s_lshl_b32 {sr(S_W)}, {sr(S_W)}, 16")
    def job_statchk():
        A.wait_vm("SL")
        lsr = A.newlabel("SR"); lso = A.newlabel("SO")
        e(f"s_mov_b32 {sr(S_T3)}, 0x40000")
        A.label(lsr)
        e(f"v_cmp_eq_u32 vcc, {sr(S_NONCE)}, {vr(V_SL+1)}")
        e("s_nop 1")
        e("s_cmp_eq_u64 vcc, -1")
        e(f"s_cbranch_scc1 {lso}")
        e(f"s_sub_u32 {sr(S_T3)}, {sr(S_T3)}, 1")
        e(f"s_cmp_eq_u32 {sr(S_T3)}, 0")
        e(f"s_cbranch_scc1 {lso}")
        e("s_sleep 2")
        e(f"buffer_load_dwordx2 {vr(V_SL,2)}, {vr(V_SLA)}, {sr(SRD_WS,4)}, {sr(S_STO)} offen sc1")
        e("s_waitcnt vmcnt(0)")
        e(f"s_branch {lsr}")
        A.label(lso)
        e(f"v_and_b32 {vr(t1)}, 0xffff0000, {vr(V_SL)}")
        e(f"v_lshlrev_b32 {vr(V_SL)}, 16, {vr(V_SL)}")
        e(f"v_rcp_f32 {vr(V_SL+1)}, {vr(t1)}")
        e(f"s_lshl_b32 {sr(S_T0)}, {sr(S_LW)}, 8")
        e(f"s_add_u32 {sr(S_T0)}, {sr(S_T0)}, {L_STAT}")
        e(f"v_add_u32 {vr(t0)}, {sr(S_T0)}, {vr(V_SLA)}")
        e("s_nop 0")
        e(f"ds_write_b64 {vr(t0)}, {vr(V_SL,2)}")
    KR, VR = 128, 160
    def job_row_srds():
        e(f"s_lshl_b32 {sr(S_T0)}, {sr(S_C)}, 12")
        e(f"s_add_u32 {sr(SRD_K)}, {sr(P+24)}, {sr(S_T0)}")
        e(f"s_addc_u32 {sr(SRD_K+1)}, {sr(P+25)}, 0")
        e(f"s_mov_b32 {sr(SRD_K+2)}, 4096")
        e(f"s_mov_b32 {sr(SRD_K+3)}, 0x20000")
        e(f"s_add_u32 {sr(S_T0)}, {sr(S_T0)}, {WS_VT}")
        e(f"s_add_u32 {sr(SRD_V)}, {sr(P+24)}, {sr(S_T0)}")
        e(f"s_addc_u32 {sr(SRD_V+1)}, {sr(P+25)}, 0")
        e(f"s_mov_b32 {sr(SRD_V+2)}, 4096")
        e(f"s_mov_b32 {sr(SRD_V+3)}, 0x20000")
    def uk_loads(track):
        for q in range(4):
            if track:
                e(f"s_cmp_eq_u32 {sr(S_OKF)}, 1")
                e(f"s_cselect_b32 {sr(S_T2)}, {1024*q}, 0x40000000" if q == 0 else f"s_cselect_b32 {sr(S_T2)}, {sr(S_T1)}, {sr(S_T3)}")
                if q < 3:
                    e(f"s_movk_i32 {sr(S_T1)}, {1024*(q+1)}")
                    e(f"s_mov_b32 {sr(S_T3)}, 0x40000000")
            else:
                e(f"s_movk_i32 {sr(S_T2)}, {1024*q}")
            for txt in (f"buffer_load_dwordx4 {vr(KR+8*q,4)}, {vr(V_L16)}, {sr(SRD_K,4)}, {sr(S_T2)} offen{USC}",
                        f"buffer_load_dwordx2 {vr(KR+8*q+4,2)}, {vr(V_L16)}, {sr(SRD_K,4)}, {sr(S_T2)} offen offset:16{USC}",
                        f"buffer_load_dwordx4 {vr(VR+4*q,4)}, {vr(V_L16)}, {sr(SRD_V,4)}, {sr(S_T2)} offen{USC}"):
                if track: A.vmem(txt, "UK")
                else: e(txt)
    def job_pkv_check():
        A.wait_vm("PKV")
        flag_check_scc(V_FL, 2)
        e(f"s_cselect_b32 {sr(S_OKF)}, 1, 0")
        uk_loads(True)
    E = 36
    def kv_chunk(q):
        D = KR + 8*q; V = VR + 4*q
        for i in range(11):
            src = D + (i >> 1)
            e(f"v_and_b32 {vr(E+i)}, 0xffff0000, {vr(src)}" if i & 1 else f"v_lshlrev_b32 {vr(E+i)}, 16, {vr(src)}")
        for i in range(8):
            src = V + (i >> 1)
            e(f"v_and_b32 {vr(E+11+i)}, 0xffff0000, {vr(src)}" if i & 1 else f"v_lshlrev_b32 {vr(E+11+i)}, 16, {vr(src)}")
        for i in range(8): e(f"v_mul_f32 {vr(56+i)}, {sr(S_W+3)}, {vr(E+i+3)}")
        for i in range(8): e(f"v_fma_f32 {vr(56+i)}, {vr(E+i+2)}, {sr(S_W+2)}, {vr(56+i)}")
        for i in range(8): e(f"v_fma_f32 {vr(56+i)}, {vr(E+i+1)}, {sr(S_W+1)}, {vr(56+i)}")
        for i in range(8): e(f"v_fma_f32 {vr(56+i)}, {vr(E+i)}, {sr(S_W)}, {vr(56+i)}")
        for i in range(8): e(f"v_mul_f32 {vr(56+i)}, {vr(56+i)}, {vr(E+11+i)}")
        for k in range(4): e(f"v_cvt_pk_bf16_f32 {vr(D+k)}, {vr(56+2*k)}, {vr(56+2*k+1)}")
    S_DSO2, S_RA, S_RBB, S_RC = S_G4, S_X0, S_X1, S_X2
    S_KU2, S_KUN2, S_ROT2, S_OOB2 = 61, S_C0, S_G5, 60
    def job_wd_setup():
        ku_start(S_KU2, S_LW)
        e(f"s_cmp_lt_u32 {sr(S_LW)}, 2")
        e(f"s_cselect_b32 {sr(S_KUN2)}, 22, 21")
        e(f"s_mul_i32 {sr(S_ROT2)}, {sr(S_J)}, {opts.get('rot', 3)}")
        e(f"s_mov_b32 {sr(S_OOB2)}, 0x20000000")
        ring_bases(S_LW, S_RA, S_RBB, S_RC)
    def wd_dma(n):
        bi, off = ring_off(n); sb = (S_RA, S_RBB, S_RC)[bi]
        wd_soff(n, S_DSO2, S_ROT2, S_KUN2, S_KU2, S_OOB2)
        for a in range(2):
            e(f"s_add_u32 m0, {sr(sb)}, {off + 1024*a}")
            if a == 1: e(f"s_add_u32 {sr(S_DSO2)}, {sr(S_DSO2)}, 8192")
            else: e("s_nop 0")
            A.vmem(f"buffer_load_dwordx4 {vr(V_DO2)}, {sr(SRD_WD,4)}, {sr(S_DSO2)} offen lds", "WDP")
    def hk(w, addr, extra):
        O1, O2, O3 = 116, 120, 124
        for j in range(4):
            e(f"v_alignbit_b32 {vr(O1+j)}, {vr(w+j+1)}, {vr(w+j)}, 16")
            e(f"v_mov_b32 {vr(O2+j)}, {vr(w+j+1)}")
            e(f"v_alignbit_b32 {vr(O3+j)}, {vr(w+j+2)}, {vr(w+j+1)}, 16")
        e(f"ds_write_b128 {vr(addr)}, {vr(w,4)} offset:{extra}")
        e(f"ds_write_b128 {vr(addr)}, {vr(O1,4)} offset:{extra+HCOPY}")
        e(f"ds_write_b128 {vr(addr)}, {vr(O2,4)} offset:{extra+2*HCOPY}")
        e(f"ds_write_b128 {vr(addr)}, {vr(O3,4)} offset:{extra+3*HCOPY}")
        e("s_nop 1")
    S_RH, S_UB = 71, 3
    V_PF = 30
    def job_hankel():
        e(f"s_and_b32 {sr(S_RH)}, {sr(S_LW)}, 1")
        e(f"s_mul_i32 {sr(S_T0)}, {sr(S_CIDX)}, {HCH}")
        e(f"s_add_u32 {sr(S_T0)}, {sr(S_T0)}, {L_HANK}")
        e(f"s_lshl_b32 {sr(S_T1)}, {sr(S_RH)}, 11")
        e(f"s_add_u32 {sr(S_T1)}, {sr(S_T1)}, {sr(S_T0)}")
        e(f"v_add_u32 {vr(27)}, {sr(S_T0)}, {vr(V_L16)}")
        e(f"v_add_u32 {vr(28)}, {sr(S_T1)}, {vr(V_L16)}")
        for y in range(2): hk(HK[y], 28, 32 + 1024*y)
        lpb = A.newlabel("PB")
        e(f"s_cmp_lg_u32 {sr(S_RH)}, 0")
        e(f"s_cbranch_scc1 {lpb}")
        e(f"s_mov_b64 {sr(S_EX,2)}, exec")
        e("s_mov_b64 exec, 3")
        w = HK[0]
        for r in range(4): e(f"v_mov_b32 {vr(w+r)}, 0")
        e(f"v_mov_b32 {vr(w+4)}, {vr(HPB)}"); e(f"v_mov_b32 {vr(w+5)}, {vr(HPB+1)}")
        hk(w, 27, 0)
        e(f"s_mov_b64 exec, {sr(S_EX,2)}")
        A.label(lpb)
    V_DD = 32; V_CA = 35; V_CB = 29
    CACC = 192; CSET = [64, 128]
    def conv_addr():
        e(f"s_and_b32 {sr(S_RH)}, {sr(S_LW)}, 1")
        e(f"s_mul_i32 {sr(S_UB)}, {sr(S_LW)}, {UBSZ}")
        e(f"s_add_u32 {sr(S_UB)}, {sr(S_UB)}, {L_UB}")
        e(f"v_and_b32 {vr(t0)}, 15, {L}")
        e(f"v_lshrrev_b32 {vr(t1)}, 4, {L}")
        e(f"v_lshl_add_u32 {vr(t2)}, {vr(t1)}, 3, {vr(t0)}")
        e(f"v_add_u32 {vr(t2)}, 1, {vr(t2)}")
        e(f"v_and_b32 {vr(t3)}, 3, {vr(t2)}")
        e(f"v_sub_u32 {vr(t2)}, {vr(t2)}, {vr(t3)}")
        e(f"v_lshlrev_b32 {vr(t2)}, 1, {vr(t2)}")
        e(f"v_mul_u32_u24 {vr(t3)}, {HCOPY}, {vr(t3)}")
        e(f"v_add_u32 {vr(t2)}, {vr(t2)}, {vr(t3)}")
        e(f"s_mul_i32 {sr(S_T0)}, {sr(S_CIDX)}, {HCH}")
        e(f"s_lshl_b32 {sr(S_T1)}, {sr(S_RH)}, 8")
        e(f"s_add_u32 {sr(S_T0)}, {sr(S_T0)}, {sr(S_T1)}")
        e(f"s_add_u32 {sr(S_T0)}, {sr(S_T0)}, {L_HANK}")
        e(f"v_add_u32 {vr(V_CA)}, {sr(S_T0)}, {vr(t2)}")
        e(f"v_lshlrev_b32 {vr(t2)}, 1, {vr(t0)}")
        e(f"v_sub_u32 {vr(t2)}, {vr(t1)}, {vr(t2)}")
        e(f"v_add_u32 {vr(t2)}, 254, {vr(t2)}")
        e(f"v_lshlrev_b32 {vr(t2)}, 4, {vr(t2)}")
        e(f"s_add_u32 {sr(S_T0)}, {sr(S_UB)}, {sr(S_T1)}")
        e(f"s_sub_u32 {sr(S_T0)}, {sr(S_T0)}, 3584")
        e(f"v_add_u32 {vr(V_CB)}, {sr(S_T0)}, {vr(t2)}")
        for r in range(32): e(f"v_mov_b32 {vr(CACC+r)}, 0")
    def pt(it): return [tiles] if PPOS == it else []
    dma_stage(2)
    it_end(0, [lambda: dma_stage(3)] + pt(0), waits=())
    it_end(1, [lambda: dma_stage(4)] + pt(1), waits=("S2", "NL"))
    job_nonce_sts()
    TRI = {-1: 2, 0: 4, 1: 5}[PPOS]
    for it in range(2, 8):
        if it == TRI: job_tr_store()
        if it == 3: job_sl()
        if it == TRI + 2: job_kvf()
        if it == 4: job_conv_scalars(); job_row_srds() if False else None
        if it == 5: job_wd_setup()
        if it == 6: job_statchk(); conv_addr()
        if it == TRI + 3 and it <= 7:
            job_row_srds(); flag_issue(V_FL, 2, S_KVO, "PKV")
        if it == TRI + 4 and it <= 7: job_pkv_check()
        if it == TRI + 5 and it <= 7:
            lk7 = A.newlabel("K7")
            e(f"s_cmp_eq_u32 {sr(S_OKF)}, 1")
            e(f"s_cbranch_scc0 {lk7}")
            A.wait_vm("UK")
            kv_chunk(0); kv_chunk(1)
            A.label(lk7)
        if it == opts.get("hankit", 7): job_hankel()
        if it == 7: break
        st = []
        if it + 3 <= 7: st.append(lambda it=it: dma_stage(it + 3))
        if it == opts.get('hkit', 2): st.append(hk_loads)
        if it == opts.get('wtit', 3): st.append(wd_touch)
        if it == 5: st.append(lambda: [wd_dma(n) for n in range(0, 5)])
        if it == 6: st.append(lambda: [wd_dma(n) for n in range(5, 10)])
        w_ = [f"S{it+1}"]
        if it + 1 == TRI: w_.append("P")
        it_end(it, st, waits=tuple(w_))
    done_chunks01 = (TRI + 5 <= 7); done_check = (TRI + 4 <= 7); done_pkv = (TRI + 3 <= 7)
    e("s_waitcnt lgkmcnt(0)")
    e("s_barrier")
    stamp(3)
    wd_dma(10)
    if not done_pkv:
        job_row_srds(); flag_issue(V_FL, 2, S_KVO, "PKV")
    srd(SRD_AUX, 5, 1024)
    e(f"s_lshl_b32 {sr(S_T0)}, {sr(S_C)}, 1")
    A.vmem(f"buffer_load_ushort {vr(V_DD)}, off, {sr(SRD_AUX,4)}, {sr(S_T0)}", "DD")
    if not done_check: job_pkv_check()
    if opts.get("hankit", 7) > 7: job_hankel()
    e("s_waitcnt lgkmcnt(0)")
    e(f"s_lshl_b32 {sr(S_T0)}, {sr(S_LW)}, 2")
    e(f"s_add_u32 {sr(S_T0)}, {sr(S_T0)}, {L_FLAG}")
    e(f"v_mov_b32 {vr(V_PF)}, {sr(S_T0)}")
    e(f"v_mov_b32 {vr(V_PF+1)}, 1")
    e(f"ds_write_b32 {vr(V_PF)}, {vr(V_PF+1)} offset:96")
    A.wait_vm("WDP")
    e(f"ds_write_b32 {vr(V_PF)}, {vr(V_PF+1)} offset:16")
    lko2 = A.newlabel("KO2"); lko3 = A.newlabel("KO3")
    e(f"s_cmp_eq_u32 {sr(S_OKF)}, 1")
    e(f"s_cbranch_scc1 {lko2}")
    flag_wait_blocking(V_FL, 2, S_KVO, sleep=4)
    uk_loads(False)
    e("s_waitcnt vmcnt(0)")
    if done_chunks01:
        kv_chunk(0); kv_chunk(1)
    A.label(lko2)
    A.wait_vm("UK", "DD")
    if not done_chunks01:
        kv_chunk(0); kv_chunk(1)
    kv_chunk(2); kv_chunk(3)
    e(f"v_add_u32 {vr(26)}, {sr(S_UB)}, {vr(V_L16)}")
    for q in range(4): e(f"ds_write_b128 {vr(26)}, {vr(KR+8*q,4)} offset:{1024*q}")
    for r in range(4): e(f"v_mov_b32 {vr(52+r)}, 0")
    e(f"v_and_b32 {vr(t0)}, 31, {L}")
    e(f"v_lshlrev_b32 {vr(t0)}, 4, {vr(t0)}")
    e(f"v_add_u32 {vr(t0)}, {sr(S_UB)}, {vr(t0)}")
    e(f"ds_write_b128 {vr(t0)}, {vr(52,4)} offset:4096")
    e(f"v_lshlrev_b32 {vr(V_DD)}, 16, {vr(V_DD)}")
    e(f"s_lshl_b32 {sr(S_T0)}, {sr(S_LW)}, 2")
    e(f"s_xor_b32 {sr(S_T0)}, {sr(S_T0)}, 4")
    e(f"s_add_u32 {sr(S_T0)}, {sr(S_T0)}, {L_FLAG+96}")
    lds_spin(S_T0, t1, t0)
    e("s_waitcnt lgkmcnt(0)")
    if opts.get("gate", 1):
        e(f"s_lshl_b32 {sr(S_T0)}, {sr(S_LW)}, 2")
        e(f"s_add_u32 {sr(S_T0)}, {sr(S_T0)}, {L_FLAG+48}")
        lds_spin(S_T0, t1, t0)
    stamp(4)
    def creads(r, st):
        out = []; b = CSET[st]
        for sp in range(8):
            out.append(f"ds_read_b64 {vr(b+4*sp,2)}, {vr(V_CA)} offset:{512*sp+64*r}")
            out.append(f"ds_read_b64 {vr(b+4*sp+2,2)}, {vr(V_CA)} offset:{512*sp+64*r+8}")
            out.append(f"ds_read_b128 {vr(b+32+4*sp,4)}, {vr(V_CB)} offset:{512*(7-sp)+64*r}")
        return out
    def cmfmas(st):
        out = []; b = CSET[st]
        for t in range(8):
            for sp in range(t + 1):
                out.append(f"v_mfma_f32_16x16x32_bf16 {vr(CACC+4*t,4)}, {vr(b+4*sp,4)}, {vr(b+32+4*(t-sp),4)}, {vr(CACC+4*t,4)}")
        return out
    for x in creads(0, 0): e(x)
    for r in range(4):
        e("s_waitcnt lgkmcnt(0)")
        mf = cmfmas(r & 1)
        rd = creads(r + 1, (r + 1) & 1) if r < 3 else []
        for idx, m in enumerate(mf):
            e(m)
            if idx < len(rd): e(rd[idx])
    stamp(5)
    V_UU = 64
    e("s_nop 7")
    e(f"v_and_b32 {vr(t0)}, 15, {L}")
    e(f"v_lshrrev_b32 {vr(t1)}, 4, {L}")
    e(f"v_lshlrev_b32 {vr(t2)}, 2, {vr(t0)}")
    e(f"v_add_u32 {vr(t2)}, {vr(t2)}, {vr(t1)}")
    e(f"v_lshlrev_b32 {vr(t2)}, 3, {vr(t2)}")
    e(f"s_lshl_b32 {sr(S_T1)}, {sr(S_RH)}, 11")
    e(f"s_sub_u32 {sr(S_T0)}, {sr(S_UB)}, {sr(S_T1)}")
    e(f"s_add_u32 {sr(S_T0)}, {sr(S_T0)}, {4088 - 1536}")
    e(f"v_sub_u32 {vr(t3)}, {sr(S_T0)}, {vr(t2)}")
    for tt in range(4): e(f"ds_read_b64 {vr(V_UU+2*tt,2)}, {vr(t3)} offset:{512*(3-tt)}")
    e("s_waitcnt lgkmcnt(0)")
    e(f"v_add_u32 {vr(t3)}, {sr(S_UB)}, {vr(V_L16)}")
    l1 = A.newlabel("PR"); l2 = A.newlabel("PR")
    e(f"s_cmp_eq_u32 {sr(S_RH)}, 0")
    e(f"s_cbranch_scc1 {l1}")
    for tt in range(4): e(f"ds_write_b128 {vr(t3)}, {vr(CACC+4*tt,4)} offset:{1024*tt}")
    e("s_nop 1")
    for r in range(16): e(f"v_mov_b32 {vr(CACC+r)}, {vr(CACC+16+r)}")
    e(f"s_branch {l2}")
    A.label(l1)
    for tt in range(4): e(f"ds_write_b128 {vr(t3)}, {vr(CACC+16+4*tt,4)} offset:{1024*tt}")
    A.label(l2)
    e("s_waitcnt lgkmcnt(0)")
    e(f"ds_write_b32 {vr(V_PF)}, {vr(V_PF+1)}")
    e(f"s_lshl_b32 {sr(S_T0)}, {sr(S_LW)}, 2")
    e(f"s_add_u32 {sr(S_T0)}, {sr(S_T0)}, {L_FLAG}")
    e(f"s_xor_b32 {sr(S_T0)}, {sr(S_T0)}, 4")
    lds_spin(S_T0, t1, t0)
    e(f"s_xor_b32 {sr(S_T0)}, {sr(S_LW)}, 1")
    e(f"s_mul_i32 {sr(S_T0)}, {sr(S_T0)}, {UBSZ}")
    e(f"s_add_u32 {sr(S_T0)}, {sr(S_T0)}, {L_UB}")
    e(f"v_add_u32 {vr(t3)}, {sr(S_T0)}, {vr(V_L16)}")
    V_PP = 80
    for tt in range(4): e(f"ds_read_b128 {vr(V_PP+4*tt,4)}, {vr(t3)} offset:{1024*tt}")
    e("s_waitcnt lgkmcnt(0)")
    for r in range(16): e(f"v_add_f32 {vr(CACC+r)}, {vr(CACC+r)}, {vr(V_PP+r)}")
    V_YP = 96
    for tt in range(4):
        y = CACC + 4*tt; u0, u1 = V_UU + 2*tt, V_UU + 2*tt + 1; U = 112
        e(f"v_and_b32 {vr(U+0)}, 0xffff0000, {vr(u1)}")
        e(f"v_lshlrev_b32 {vr(U+1)}, 16, {vr(u1)}")
        e(f"v_and_b32 {vr(U+2)}, 0xffff0000, {vr(u0)}")
        e(f"v_lshlrev_b32 {vr(U+3)}, 16, {vr(u0)}")
        for k in range(4): e(f"v_mul_f32 {vr(U+k)}, {vr(U+k)}, {vr(V_DD)}")
        e(f"v_cvt_pk_bf16_f32 {vr(U+4)}, {vr(U+0)}, {vr(U+1)}")
        e(f"v_cvt_pk_bf16_f32 {vr(U+5)}, {vr(U+2)}, {vr(U+3)}")
        e(f"v_cvt_pk_bf16_f32 {vr(U+6)}, {vr(y+0)}, {vr(y+1)}")
        e(f"v_cvt_pk_bf16_f32 {vr(U+7)}, {vr(y+2)}, {vr(y+3)}")
        for h in range(2):
            e(f"v_lshlrev_b32 {vr(U+2*h)}, 16, {vr(U+4+h)}")
            e(f"v_and_b32 {vr(U+2*h+1)}, 0xffff0000, {vr(U+4+h)}")
            e(f"v_lshlrev_b32 {vr(y+2*h)}, 16, {vr(U+6+h)}")
            e(f"v_and_b32 {vr(y+2*h+1)}, 0xffff0000, {vr(U+6+h)}")
        for k in range(4): e(f"v_add_f32 {vr(y+k)}, {vr(y+k)}, {vr(U+k)}")
        e(f"v_cvt_pk_bf16_f32 {vr(V_YP+2*tt)}, {vr(y+0)}, {vr(y+1)}")
        e(f"v_cvt_pk_bf16_f32 {vr(V_YP+2*tt+1)}, {vr(y+2)}, {vr(y+3)}")
    e("s_nop 1")
    for p in range(2):
        e(f"v_permlane16_swap_b32 {vr(V_YP+4*p)}, {vr(V_YP+4*p+2)}")
        e(f"v_permlane16_swap_b32 {vr(V_YP+4*p+1)}, {vr(V_YP+4*p+3)}")
    e(f"v_and_b32 {vr(t0)}, 15, {L}")
    e(f"v_lshrrev_b32 {vr(t1)}, 4, {L}")
    e(f"v_and_b32 {vr(t2)}, 1, {vr(t1)}")
    e(f"v_lshlrev_b32 {vr(t2)}, 9, {vr(t2)}")
    e(f"v_and_b32 {vr(t1)}, 2, {vr(t1)}")
    e(f"v_lshlrev_b32 {vr(t1)}, 3, {vr(t1)}")
    e(f"v_lshlrev_b32 {vr(t0)}, 5, {vr(t0)}")
    e(f"v_add3_u32 {vr(t0)}, {vr(t0)}, {vr(t1)}, {vr(t2)}")
    e(f"s_lshl_b32 {sr(S_T0)}, {sr(S_C)}, 12")
    e(f"s_lshl_b32 {sr(S_T1)}, {sr(S_RH)}, 11")
    e(f"s_add_u32 {sr(S_T0)}, {sr(S_T0)}, {sr(S_T1)}")
    e(f"s_add_u32 {sr(S_T0)}, {sr(S_T0)}, {WS_YYT}")
    for p in range(2):
        e(f"buffer_store_dwordx4 {vr(V_YP+4*p,4)}, {vr(t0)}, {sr(SRD_WS,4)}, {sr(S_T0)} offen offset:{1024*p} sc0 sc1")
    e("s_waitcnt vmcnt(0)")
    e(f"s_lshr_b32 {sr(S_T0)}, {sr(S_C)}, 6")
    e(f"s_lshl_b32 {sr(S_T0)}, {sr(S_T0)}, 9")
    e(f"s_and_b32 {sr(S_T1)}, {sr(S_WG)}, 31")
    e(f"s_lshl_b32 {sr(S_T1)}, {sr(S_T1)}, 4")
    e(f"s_lshl_b32 {sr(S_T2)}, {sr(S_LW)}, 2")
    e(f"s_add_u32 {sr(S_T0)}, {sr(S_T0)}, {sr(S_T1)}")
    e(f"s_add_u32 {sr(S_T0)}, {sr(S_T0)}, {sr(S_T2)}")
    e(f"s_add_u32 {sr(S_T0)}, {sr(S_T0)}, {WS_FL+FL_Y}")
    flag_set(S_T0, t0)
    stamp(6)
    ly1 = A.newlabel("YP"); ly2 = A.newlabel("YP")
    e(f"s_cmp_lg_u32 {sr(S_LW)}, 0")
    e(f"s_cbranch_scc1 {ly1}")
    if opts.get("ygate"):
        e(f"s_mov_b32 {sr(S_T0)}, {L_FLAG+64}")
        lds_spin(S_T0, t1, t0, sleep=4)
    e(f"s_lshl_b32 {sr(S_T0)}, {sr(S_J)}, 9")
    e(f"s_add_u32 {sr(S_T0)}, {sr(S_T0)}, {WS_FL+FL_Y}")
    flag_wait_blocking(V_FL, 2, S_T0, sleep=opts.get('ysleep', 8))
    e(f"v_mov_b32 {vr(t0)}, {L_FLAG+68}")
    e(f"v_mov_b32 {vr(t1)}, 1")
    e(f"ds_write_b32 {vr(t0)}, {vr(t1)}")
    e(f"s_branch {ly2}")
    A.label(ly1)
    e(f"s_mov_b32 {sr(S_T0)}, {L_FLAG+68}")
    lds_spin(S_T0, t1, t0, sleep=4)
    A.label(ly2)
    stamp(7)
    e(f"v_lshrrev_b32 {vr(t0)}, 3, {L}")
    e(f"v_and_b32 {vr(t1)}, 7, {L}")
    e(f"s_lshl_b32 {sr(S_T0)}, {sr(S_LW)}, 4")
    e(f"v_add_u32 {vr(t0)}, {sr(S_T0)}, {vr(t0)}")
    e(f"v_lshlrev_b32 {vr(t2)}, 12, {vr(t0)}")
    e(f"v_lshl_add_u32 {vr(t2)}, {vr(t1)}, 4, {vr(t2)}")
    e(f"s_lshl_b32 {sr(S_T0)}, {sr(S_J)}, 18")
    e(f"s_lshl_b32 {sr(S_T1)}, {sr(S_I2)}, 7")
    e(f"s_add_u32 {sr(S_T0)}, {sr(S_T0)}, {sr(S_T1)}")
    e(f"s_add_u32 {sr(S_T0)}, {sr(S_T0)}, {WS_YYT}")
    e(f"buffer_load_dwordx4 {vr(64,4)}, {vr(t2)}, {sr(SRD_WS,4)}, {sr(S_T0)} offen sc1")
    e(f"v_add_u32 {vr(t2)}, {8*4096}, {vr(t2)}")
    e(f"buffer_load_dwordx4 {vr(68,4)}, {vr(t2)}, {sr(SRD_WS,4)}, {sr(S_T0)} offen sc1")
    e(f"v_mul_u32_u24 {vr(t3)}, {YTROW}, {vr(t0)}")
    e(f"v_lshl_add_u32 {vr(t3)}, {vr(t1)}, 4, {vr(t3)}")
    e(f"v_add_u32 {vr(t3)}, {L_YT}, {vr(t3)}")
    e("s_waitcnt vmcnt(1)")
    e(f"ds_write_b128 {vr(t3)}, {vr(64,4)}")
    e("s_waitcnt vmcnt(0)")
    e(f"ds_write_b128 {vr(t3)}, {vr(68,4)} offset:{8*YTROW}")
    srd(SRD_OUT, 10, 2 << 20)

    A.label("L_FINAL")
    e("s_setprio 0")
    FT, FD, FO = 28, 29, 30
    e(f"v_lshrrev_b32 {vr(t0)}, 5, {L}")
    e(f"v_and_b32 {vr(t1)}, 3, {L}")
    e(f"v_lshl_add_u32 {vr(FT)}, {vr(t0)}, 2, {vr(t1)}")
    e(f"s_lshl_b32 {sr(S_T0)}, {sr(S_WAVE)}, 3")
    e(f"v_add_u32 {vr(FT)}, {sr(S_T0)}, {vr(FT)}")
    e(f"v_bfe_u32 {vr(FD)}, {L}, 2, 3")
    e(f"s_lshl_b32 {sr(S_T0)}, {sr(S_I2)}, 16")
    e(f"s_lshl_b32 {sr(S_T1)}, {sr(S_J)}, 7")
    e(f"s_add_u32 {sr(S_T0)}, {sr(S_T0)}, {sr(S_T1)}")
    e(f"v_lshlrev_b32 {vr(FO)}, 10, {vr(FT)}")
    e(f"v_lshl_add_u32 {vr(FO)}, {vr(FD)}, 4, {vr(FO)}")
    e(f"v_add_u32 {vr(FO)}, {sr(S_T0)}, {vr(FO)}")
    FX_, FS_ = 32, 36
    e(f"buffer_load_dwordx4 {vr(FX_,4)}, {vr(FO)}, {sr(SRD_Q,4)}, 0 offen")
    S_FSO = S_G5
    e(f"s_lshl_b32 {sr(S_FSO)}, {sr(S_I2)}, 9")
    e(f"s_add_u32 {sr(S_FSO)}, {sr(S_FSO)}, {WS_ST}")
    V_FSA = 31
    e(f"v_lshlrev_b32 {vr(V_FSA)}, 3, {vr(FT)}")
    e(f"buffer_load_dwordx2 {vr(FS_,2)}, {vr(V_FSA)}, {sr(SRD_WS,4)}, {sr(S_FSO)} offen sc1")
    e("s_waitcnt lgkmcnt(0)")
    e("s_barrier")
    stamp(9)
    FP = 40
    e(f"v_and_b32 {vr(t0)}, 31, {vr(FT)}")
    e(f"v_mul_u32_u24 {vr(t0)}, 272, {vr(t0)}")
    e(f"v_lshl_add_u32 {vr(t0)}, {vr(FD)}, 5, {vr(t0)}")
    e(f"s_cmp_lt_u32 {sr(S_WAVE)}, 4")
    e(f"s_cselect_b32 {sr(S_T0)}, {RA}, {RB_}")
    e(f"v_add_u32 {vr(t0)}, {sr(S_T0)}, {vr(t0)}")
    for kg in range(4):
        e(f"ds_read_b128 {vr(FP+8*kg,4)}, {vr(t0)} offset:{kg*10240}")
        e(f"ds_read_b128 {vr(FP+8*kg+4,4)}, {vr(t0)} offset:{kg*10240+16}")
    FY = 72
    e(f"v_bfe_u32 {vr(t2)}, {L}, 2, 2")
    e(f"v_and_b32 {vr(t3)}, 3, {L}")
    e(f"v_bfe_u32 {vr(t4)}, {L}, 4, 1")
    e(f"v_lshl_add_u32 {vr(t3)}, {vr(t4)}, 2, {vr(t3)}")
    e(f"v_lshl_add_u32 {vr(t2)}, {vr(t3)}, 3, {vr(t2)}")
    e(f"v_mul_u32_u24 {vr(t2)}, {YTROW}, {vr(t2)}")
    e(f"v_lshrrev_b32 {vr(t3)}, 5, {L}")
    e(f"v_lshlrev_b32 {vr(t3)}, 3, {vr(t3)}")
    e(f"s_lshl_b32 {sr(S_T0)}, {sr(S_WAVE)}, 4")
    e(f"s_add_u32 {sr(S_T0)}, {sr(S_T0)}, {L_YT}")
    e(f"v_add3_u32 {vr(t2)}, {vr(t2)}, {vr(t3)}, {sr(S_T0)}")
    e(f"ds_read_b64_tr_b16 {vr(FY,2)}, {vr(t2)}")
    e(f"ds_read_b64_tr_b16 {vr(FY+2,2)}, {vr(t2)} offset:{4*YTROW}")
    e("s_waitcnt lgkmcnt(2)")
    for kg in range(1, 4):
        for k in range(8): e(f"v_add_f32 {vr(FP+k)}, {vr(FP+k)}, {vr(FP+8*kg+k)}")
    O = FP; T = 48; XV = 56; YV = 64
    for k in range(0, 8, 2): e(f"v_cvt_pk_bf16_f32 {vr(T+k)}, {vr(O+k)}, {vr(O+k+1)}")
    for k in range(0, 8, 2):
        e(f"v_and_b32 {vr(O+k+1)}, 0xffff0000, {vr(T+k)}")
        e(f"v_lshlrev_b32 {vr(O+k)}, 16, {vr(T+k)}")
    e(f"s_mov_b32 {sr(S_T0)}, 0xbfb8aa3b")
    for k in range(8): e(f"v_mul_f32 {vr(T+k)}, {sr(S_T0)}, {vr(O+k)}")
    for k in range(8): e(f"v_exp_f32 {vr(T+k)}, {vr(T+k)}")
    for k in range(8): e(f"v_add_f32 {vr(T+k)}, 1.0, {vr(T+k)}")
    for k in range(8): e(f"v_rcp_f32 {vr(T+k)}, {vr(T+k)}")
    e("s_nop 0")
    for k in range(8): e(f"v_mul_f32 {vr(O+k)}, {vr(O+k)}, {vr(T+k)}")
    e("s_waitcnt vmcnt(0) lgkmcnt(0)")
    lf1 = A.newlabel("FS"); lf2 = A.newlabel("FS")
    e(f"s_mov_b32 {sr(S_T3)}, 0x40000")
    A.label(lf1)
    e(f"v_cmp_eq_u32 vcc, {sr(S_NONCE)}, {vr(FS_+1)}")
    e("s_nop 1")
    e("s_cmp_eq_u64 vcc, -1")
    e(f"s_cbranch_scc1 {lf2}")
    e(f"s_sub_u32 {sr(S_T3)}, {sr(S_T3)}, 1")
    e(f"s_cmp_eq_u32 {sr(S_T3)}, 0")
    e(f"s_cbranch_scc1 {lf2}")
    e(f"buffer_load_dwordx2 {vr(FS_,2)}, {vr(V_FSA)}, {sr(SRD_WS,4)}, {sr(S_FSO)} offen sc1")
    e("s_waitcnt vmcnt(0)")
    e(f"s_branch {lf1}")
    A.label(lf2)
    for k in range(4):
        e(f"v_lshlrev_b32 {vr(XV+2*k)}, 16, {vr(FX_+k)}")
        e(f"v_and_b32 {vr(XV+2*k+1)}, 0xffff0000, {vr(FX_+k)}")
        e(f"v_lshlrev_b32 {vr(YV+2*k)}, 16, {vr(FY+k)}")
        e(f"v_and_b32 {vr(YV+2*k+1)}, 0xffff0000, {vr(FY+k)}")
    e(f"v_and_b32 {vr(FS_+1)}, 0xffff0000, {vr(FS_)}")
    e(f"v_lshlrev_b32 {vr(FS_)}, 16, {vr(FS_)}")
    e(f"v_rcp_f32 {vr(FS_+1)}, {vr(FS_+1)}")
    for k in range(8): e(f"v_sub_f32 {vr(T+k)}, {vr(XV+k)}, {vr(FS_)}")
    def round8(b):
        for k in range(0, 8, 2): e(f"v_cvt_pk_bf16_f32 {vr(b+k)}, {vr(b+k)}, {vr(b+k+1)}")
        for k in range(0, 8, 2):
            e(f"v_and_b32 {vr(b+k+1)}, 0xffff0000, {vr(b+k)}")
            e(f"v_lshlrev_b32 {vr(b+k)}, 16, {vr(b+k)}")
    if not opts.get("lightfinal"): round8(T)
    for k in range(8): e(f"v_mul_f32 {vr(T+k)}, {vr(T+k)}, {vr(FS_+1)}")
    round8(T)
    for k in range(8): e(f"v_mul_f32 {vr(T+k)}, {vr(T+k)}, {vr(YV+k)}")
    if not opts.get("lightfinal"):
        round8(T); round8(O)
    for k in range(8): e(f"v_mul_f32 {vr(T+k)}, {vr(T+k)}, {vr(O+k)}")
    if not opts.get("lightfinal"): round8(T)
    for k in range(8): e(f"v_add_f32 {vr(T+k)}, {vr(T+k)}, {vr(XV+k)}")
    for k in range(4): e(f"v_cvt_pk_bf16_f32 {vr(FY+k)}, {vr(T+2*k)}, {vr(T+2*k+1)}")
    e(f"buffer_store_dwordx4 {vr(FY,4)}, {vr(FO)}, {sr(SRD_OUT,4)}, 0 offen" + (" sc0 sc1" if opts.get("outwt") else (" nt" if opts.get("outnt") else "")))
    stamp(10)
    stamp_flush()
    A.label("L_END")
    e("s_endpgm")
    A.label("L_CODE_END")

    body = A.text()
    hdr = open("cdna_kernels/" + NAME + ".s.ref").read().split("; Override launch geometry")[0]
    out = hdr + "; Override launch geometry by editing the next line.\n"
    out += f"; @launch grid=(256,1,1) block=(512,1,1) lds={LDS_TOTAL}\n"
    out += f""".amdgcn_target "amdgcn-amd-amdhsa--gfx950"
.text
.globl {NAME}_kernel
.p2align 8
.type {NAME}_kernel,@function
{NAME}_kernel:
"""
    out += body
    out += f""".section .rodata,"a"
.p2align 6
.amdhsa_kernel {NAME}_kernel
  .amdhsa_next_free_vgpr 256
  .amdhsa_next_free_sgpr 102
  .amdhsa_accum_offset 256
  .amdhsa_group_segment_fixed_size 0
  .amdhsa_kernarg_size 104
  .amdhsa_user_sgpr_count 2
  .amdhsa_user_sgpr_kernarg_segment_ptr 1
  .amdhsa_system_sgpr_workgroup_id_x 1
.end_amdhsa_kernel
"""
    return out

if __name__ == "__main__":
    opts = {}
    outp = sys.argv[1]
    for a in sys.argv[2:]:
        k, _, v = a.partition("=")
        opts[k] = (int(v) if v.lstrip("-").isdigit() else (v or True))
    open(outp, "w").write(gen(opts))
```

```python
import sys, struct

NAME = "recurrent_scan__ssm_conv_h3__glu_gated_geglu__prompt"
f2u = lambda x: struct.unpack("<I", struct.pack("<f", x))[0]

class Asm:
    def __init__(self):
        self.lines = []; self.nlabel = 0; self.vm = []; self.cap = None
    def e(self, s):
        if self.cap is not None: self.cap.append(("  " + s, None))
        else: self.lines.append("  " + s)
    def label(self, l):
        assert self.cap is None, l
        self.lines.append(l + ":")
    def newlabel(self, p="L"):
        self.nlabel += 1; return f"{p}_{self.nlabel}"
    def text(self): return "\n".join(self.lines) + "\n"
    def vmem(self, s, tag):
        if self.cap is not None:
            self.cap.append(("  " + s, tag)); return
        self.e(s); self.vm.append(tag)
    def capture(self, fn):
        assert self.cap is None
        self.cap = []
        fn()
        out = self.cap; self.cap = None
        return out
    def emit_list(self, lst):
        for line, tag in lst:
            self.lines.append(line)
            if tag is not None: self.vm.append(tag)
    def merge(self, a, b):
        groups = []; cur = []
        for it in a:
            cur.append(it)
            if it[1] is not None: groups.append(cur); cur = []
        if cur: groups.append(cur)
        n = len(groups); out = []; k = 0
        for gi, g in enumerate(groups):
            out += g
            upto = (len(b) * (gi + 1)) // n
            out += b[k:upto]; k = upto
        out += b[k:]
        return out
    def wait_vm(self, *tags):
        assert self.cap is None
        last = -1
        for i, t in enumerate(self.vm):
            if t in tags: last = i
        assert last >= 0, tags
        n = len(self.vm) - 1 - last
        n = min(n, 63)
        self.e(f"s_waitcnt vmcnt({n})")
        return n

def vr(a, n=1): return f"v{a}" if n == 1 else f"v[{a}:{a+n-1}]"
def sr(a, n=1): return f"s{a}" if n == 1 else f"s[{a}:{a+n-1}]"

S, D, F = 2048, 512, 1376
WROW = F * 2
WBYTES = 512 * WROW
WS_KVT, WS_YYT, WS_HF, WS_ST, WS_FL, WS_TS = 0, 2 << 20, 4 << 20, 12 << 20, 13 << 20, 16 << 20
WS_VT = 14 << 20
FL_KV, FL_ST, FL_H, FL_Y = 0, 4096, 8192, 12288
STAGE = 40960
L_HANK = 122880
HCOPY = 4160
HCH = 4 * HCOPY
L_MISC = L_HANK + 2 * HCH
L_CS = L_MISC
L_STAT = L_MISC + 1536
L_FLAG = L_MISC + 2560
LDS_TOTAL = 163840
L_KT, L_VT = L_HANK, L_HANK + 8192
RA, RB_ = 2 * STAGE, 0
L_UB = STAGE
UBSZ = 4608
L_YT = L_UB + 4 * UBSZ
YTROW = 144
RC = L_YT + 64 * YTROW
NR = 11
def ring_off(n):
    if n < 5: return (0, n * 2048)
    if n < 10: return (1, (n - 5) * 2048)
    return (2, 0)

SRD_Q, SRD_K, SRD_V, SRD_W, SRD_WD, SRD_WS, SRD_DBG, SRD_OUT, SRD_SK, SRD_AUX = 4, 8, 12, 16, 20, 24, 28, 32, 36, 40
P = 48
S_WG = 2
S_WAVE, S_RB, S_CP, S_I2, S_J, S_F0, S_N32, S_A, S_B = 76, 77, 78, 79, 80, 81, 82, 83, 84
S_NONCE = 85
S_T0, S_T1, S_T2, S_T3, S_T4, S_T5 = 86, 87, 88, 89, 90, 91
S_G0, S_G1, S_G2, S_G3, S_G4, S_G5 = 92, 93, 94, 95, 96, 97
S_C0, S_C1 = 98, 99
S_EX = 100
S_TSP = 74
S_X0, S_X1, S_X2, S_X3 = 44, 45, 46, 47

def gen(opts):
    A = Asm(); e = A.e
    TS = opts.get("ts", False)
    HSC = "" if opts.get("hplain", 1) else " sc1"
    USC = "" if opts.get("uplain", 1) else " sc1"
    t0, t1, t2, t3, t4, t5 = 8, 9, 10, 11, 12, 13
    V_LANE = 3; L = vr(V_LANE)
    V_TS = 15

    def stamp(idx, dyn=None):
        if not TS: return
        e(f"{'s_memtime' if opts.get('cyc') else 's_memrealtime'} {sr(S_TSP,2)}")
        e("s_waitcnt lgkmcnt(0)")
        if dyn is None:
            e(f"v_writelane_b32 {vr(V_TS)}, {sr(S_TSP)}, {idx}")
        else:
            e(f"s_add_u32 m0, {sr(dyn)}, {idx}")
            e("s_nop 0")
            e(f"v_writelane_b32 {vr(V_TS)}, {sr(S_TSP)}, m0")
    def stamp_flush():
        if not TS: return
        e(f"s_lshl_b32 {sr(S_TSP+1)}, {sr(S_WG)}, 3")
        e(f"s_add_u32 {sr(S_TSP+1)}, {sr(S_TSP+1)}, {sr(S_WAVE)}")
        e(f"s_lshl_b32 {sr(S_TSP+1)}, {sr(S_TSP+1)}, 8")
        e(f"s_add_u32 {sr(S_TSP+1)}, {sr(S_TSP+1)}, {WS_TS}")
        e(f"v_lshlrev_b32 v14, 2, {L}")
        e(f"buffer_store_dword {vr(V_TS)}, v14, {sr(SRD_WS,4)}, {sr(S_TSP+1)} offen")

    def srd(dst, pidx, nbytes):
        e(f"s_mov_b32 {sr(dst)}, {sr(P+2*pidx)}")
        e(f"s_mov_b32 {sr(dst+1)}, {sr(P+2*pidx+1)}")
        e(f"s_mov_b32 {sr(dst+2)}, {nbytes}")
        e(f"s_mov_b32 {sr(dst+3)}, 0x20000")

    def flag_issue(vdst, nw, soff_sgpr, tag):
        e(f"v_lshlrev_b32 {vr(t5)}, {1 + nw}, {L}")
        op = "buffer_load_dword" if nw == 1 else "buffer_load_dwordx2"
        A.vmem(f"{op} {vr(vdst,nw)}, {vr(t5)}, {sr(SRD_WS,4)}, {sr(soff_sgpr)} offen sc1", tag)
    def flag_check_scc(vdst, nw):
        e(f"v_cmp_eq_u32 vcc, {sr(S_NONCE)}, {vr(vdst)}")
        if nw == 2:
            e(f"v_cmp_eq_u32 {sr(S_T4,2)}, {sr(S_NONCE)}, {vr(vdst+1)}")
            e("s_nop 1")
            e(f"s_and_b64 vcc, vcc, {sr(S_T4,2)}")
        else:
            e("s_nop 1")
        e("s_cmp_eq_u64 vcc, -1")
    def flag_wait_blocking(vdst, nw, soff_sgpr, sleep=4):
        l = A.newlabel("POLL"); d = A.newlabel("POLLD")
        n0 = len(A.vm)
        e(f"s_mov_b32 {sr(S_T3)}, 0x40000")
        A.label(l)
        flag_issue(vdst, nw, soff_sgpr, "poll")
        e("s_waitcnt vmcnt(0)")
        flag_check_scc(vdst, nw)
        e(f"s_cbranch_scc1 {d}")
        e(f"s_sub_u32 {sr(S_T3)}, {sr(S_T3)}, 1")
        e(f"s_cmp_eq_u32 {sr(S_T3)}, 0")
        e(f"s_cbranch_scc1 {d}")
        e(f"s_sleep {sleep}")
        e(f"s_branch {l}")
        A.label(d)
        del A.vm[n0:]
    def flag_set(soff_sgpr, vtmp):
        e(f"v_mov_b32 {vr(vtmp)}, {sr(S_NONCE)}")
        e(f"s_mov_b64 {sr(S_EX,2)}, exec")
        e("s_mov_b64 exec, 1")
        A.vmem(f"buffer_store_dword {vr(vtmp)}, off, {sr(SRD_WS,4)}, {sr(soff_sgpr)} sc0 sc1", "flag")
        e(f"s_mov_b64 exec, {sr(S_EX,2)}")
    def lds_spin(addr_sgpr, vt, va, sleep=1):
        l = A.newlabel("LS"); d = A.newlabel("LSD")
        e(f"v_mov_b32 {vr(va)}, {sr(addr_sgpr)}")
        e(f"s_mov_b32 {sr(S_T3)}, 0x200000")
        A.label(l)
        e(f"ds_read_b32 {vr(vt)}, {vr(va)}")
        e("s_waitcnt lgkmcnt(0)")
        e(f"v_readfirstlane_b32 {sr(S_T2)}, {vr(vt)}")
        e("s_nop 3")
        e(f"s_cmp_eq_u32 {sr(S_T2)}, 1")
        e(f"s_cbranch_scc1 {d}")
        e(f"s_sub_u32 {sr(S_T3)}, {sr(S_T3)}, 1")
        e(f"s_cmp_eq_u32 {sr(S_T3)}, 0")
        e(f"s_cbranch_scc1 {d}")
        e(f"s_sleep {sleep}")
        e(f"s_branch {l}")
        A.label(d)
    def wd_voffset(dst):
        e(f"v_lshrrev_b32 {vr(t0)}, 3, {L}")
        e(f"v_and_b32 {vr(t1)}, 7, {L}")
        e(f"v_bfe_u32 {vr(t2)}, {L}, 4, 1")
        e(f"v_lshlrev_b32 {vr(t2)}, 2, {vr(t2)}")
        e(f"v_xor_b32 {vr(t1)}, {vr(t1)}, {vr(t2)}")
        e(f"v_lshlrev_b32 {vr(t1)}, 4, {vr(t1)}")
        e(f"v_lshl_add_u32 {vr(t1)}, {vr(t0)}, 10, {vr(t1)}")
        e(f"s_lshl_b32 {sr(S_T1)}, {sr(S_J)}, 7")
        e(f"v_add_u32 {vr(dst)}, {sr(S_T1)}, {vr(t1)}")
    def ku_start(dst, kg):
        e(f"s_mul_i32 {sr(dst)}, {sr(kg)}, 22")
        e(f"s_cmp_eq_u32 {sr(kg)}, 3")
        e(f"s_cselect_b32 {sr(S_T1)}, 1, 0")
        e(f"s_sub_u32 {sr(dst)}, {sr(dst)}, {sr(S_T1)}")
    def unit_at(n, dst, rot, kun):
        e(f"s_add_u32 {sr(dst)}, {sr(rot)}, {n}")
        e(f"s_cmp_ge_u32 {sr(dst)}, 22")
        e(f"s_cselect_b32 {sr(S_T5)}, 22, 0")
        e(f"s_sub_u32 {sr(dst)}, {sr(dst)}, {sr(S_T5)}")
        e(f"s_cmp_lt_u32 {sr(dst)}, {sr(kun)}")
    def wd_soff(n, dst, rot, kun, ku0, oob):
        unit_at(n, dst, rot, kun)
        e(f"s_cselect_b32 {sr(S_T5)}, 1, 0")
        e(f"s_add_u32 {sr(dst)}, {sr(dst)}, {sr(ku0)}")
        e(f"s_lshl_b32 {sr(dst)}, {sr(dst)}, 14")
        e(f"s_cmp_eq_u32 {sr(S_T5)}, 1")
        e(f"s_cselect_b32 {sr(dst)}, {sr(dst)}, {sr(oob)}")
    def ring_bases(kg, ra, rb, rc):
        e(f"s_mul_i32 {sr(ra)}, {sr(kg)}, 10240")
        e(f"s_add_u32 {sr(rb)}, {sr(ra)}, {RB_}")
        e(f"s_add_u32 {sr(ra)}, {sr(ra)}, {RA}")
        e(f"s_lshl_b32 {sr(rc)}, {sr(kg)}, 11")
        e(f"s_add_u32 {sr(rc)}, {sr(rc)}, {RC}")

    def loader_setup(lw, V_XO, V_WO, S_M0X, S_M0W):
        e(f"v_lshrrev_b32 {vr(t0)}, 3, {L}")
        e(f"v_lshrrev_b32 {vr(t1)}, 4, {L}")
        e(f"v_and_b32 {vr(t2)}, 7, {L}")
        e(f"s_lshl_b32 {sr(S_T2)}, {sr(S_RB)}, 7")
        e(f"s_lshl_b32 {sr(S_T3)}, {sr(lw)}, 5")
        e(f"s_add_u32 {sr(S_T2)}, {sr(S_T2)}, {sr(S_T3)}")
        for a in range(2):
            e(f"v_add_u32 {vr(t3)}, {4*a}, {vr(t1)}")
            e(f"v_xor_b32 {vr(t3)}, {vr(t3)}, {vr(t2)}")
            e(f"v_lshlrev_b32 {vr(t3)}, 4, {vr(t3)}")
            e(f"v_add_u32 {vr(t4)}, {sr(S_T2)}, {vr(t0)}")
            e(f"v_add_u32 {vr(t4)}, {8*a}, {vr(t4)}")
            e(f"v_lshl_add_u32 {vr(V_XO+a)}, {vr(t4)}, 10, {vr(t3)}")
        e(f"s_and_b32 {sr(S_T1)}, {sr(lw)}, 1")
        e(f"s_lshl_b32 {sr(S_T3)}, {sr(S_T1)}, 1")
        e(f"s_lshr_b32 {sr(S_T4)}, {sr(lw)}, 1")
        e(f"s_lshl_b32 {sr(S_T4)}, {sr(S_T4)}, 5")
        e(f"s_lshl_b32 {sr(S_T5)}, {sr(S_F0)}, 1")
        e(f"s_movk_i32 {sr(S_T0)}, {WROW}")
        for i in range(3):
            e(f"v_add_u32 {vr(t0)}, {64*i}, {L}")
            e(f"v_lshrrev_b32 {vr(t1)}, 4, {vr(t0)}")
            e(f"v_mul_u32_u24 {vr(t1)}, 43, {vr(t1)}")
            e(f"v_lshrrev_b32 {vr(t1)}, 7, {vr(t1)}")
            e(f"v_mul_u32_u24 {vr(t2)}, 48, {vr(t1)}")
            e(f"v_sub_u32 {vr(t2)}, {vr(t0)}, {vr(t2)}")
            e(f"v_lshrrev_b32 {vr(t3)}, 4, {vr(t2)}")
            e(f"v_bfe_u32 {vr(t4)}, {vr(t2)}, 2, 2")
            e(f"v_and_b32 {vr(t2)}, 3, {vr(t2)}")
            e(f"v_xor_b32 {vr(t2)}, {sr(S_T3)}, {vr(t2)}")
            e(f"v_lshl_add_u32 {vr(t2)}, {vr(t3)}, 2, {vr(t2)}")
            e(f"v_lshl_add_u32 {vr(t1)}, {vr(t1)}, 2, {vr(t4)}")
            e(f"v_add_u32 {vr(t1)}, {sr(S_T4)}, {vr(t1)}")
            e(f"v_mul_u32_u24 {vr(t1)}, {sr(S_T0)}, {vr(t1)}")
            e(f"v_lshl_add_u32 {vr(t2)}, {vr(t2)}, 4, {vr(t1)}")
            e(f"v_add_u32 {vr(V_WO+i)}, {sr(S_T5)}, {vr(t2)}")
        e(f"s_lshl_b32 {sr(S_M0X)}, {sr(lw)}, 12")
        e(f"s_mul_i32 {sr(S_M0W)}, {sr(S_T1)}, 12288")
        e(f"s_lshr_b32 {sr(S_T4)}, {sr(lw)}, 1")
        e(f"s_mul_i32 {sr(S_T4)}, {sr(S_T4)}, 6144")
        e(f"s_add_u32 {sr(S_M0W)}, {sr(S_M0W)}, {sr(S_T4)}")
        e(f"s_add_u32 {sr(S_M0W)}, {sr(S_M0W)}, 16384")
    def srd_w_select(lw):
        e(f"s_and_b32 {sr(S_T0)}, {sr(lw)}, 1")
        e(f"s_cmp_eq_u32 {sr(S_T0)}, 0")
        e(f"s_cselect_b32 {sr(SRD_W)}, {sr(P+14)}, {sr(P+16)}")
        e(f"s_cselect_b32 {sr(SRD_W+1)}, {sr(P+15)}, {sr(P+17)}")
        e(f"s_mov_b32 {sr(SRD_W+2)}, {WBYTES}")
        e(f"s_mov_b32 {sr(SRD_W+3)}, 0x20000")
    def dma_stage_g(s, V_XO, V_WO, S_M0X, S_M0W, S_XSO, S_WSO):
        slot = (s % 3) * STAGE
        e(f"s_mov_b32 {sr(S_XSO)}, {s*128}")
        e(f"s_add_u32 m0, {sr(S_M0X)}, {slot}")
        for a in range(4):
            if a == 2: e(f"s_mov_b32 {sr(S_XSO)}, {s*128+16384}")
            else: e("s_nop 0")
            A.vmem(f"buffer_load_dwordx4 {vr(V_XO+(a&1))}, {sr(SRD_Q,4)}, {sr(S_XSO)} offen lds", f"S{s}")
            if a < 3: e("s_add_u32 m0, m0, 1024")
        e(f"s_mov_b32 {sr(S_WSO)}, {s*64*WROW}")
        e(f"s_add_u32 m0, {sr(S_M0W)}, {slot}")
        for blk in range(2):
            for i in range(3):
                if blk == 1 and i == 0: e(f"s_mov_b32 {sr(S_WSO)}, {s*64*WROW+16*WROW}")
                else: e("s_nop 0")
                A.vmem(f"buffer_load_dwordx4 {vr(V_WO+i)}, {sr(SRD_W,4)}, {sr(S_WSO)} offen lds", f"S{s}")
                if not (blk == 1 and i == 2): e("s_add_u32 m0, m0, 1024")

    if TS: e("s_memrealtime s[44:45]")
    e(f"s_cmp_ge_u32 {sr(S_WG)}, 256")
    e("s_cbranch_scc1 L_END")
    e(f"s_load_dwordx16 {sr(P,16)}, s[0:1], 0")
    e(f"s_load_dwordx8 {sr(P+16,8)}, s[0:1], 64")
    e(f"s_load_dwordx2 {sr(P+24,2)}, s[0:1], 96")
    e(f"s_getpc_b64 {sr(S_T0,2)}")
    e("v_lshlrev_b32 v1, 6, v0")
    e(f"v_cmp_gt_u32 vcc, L_CODE_END-{NAME}_kernel, v1")
    e(f"s_and_saveexec_b64 {sr(S_EX,2)}, vcc")
    e(f"global_load_dword v2, v1, {sr(S_T0,2)}")
    e(f"s_mov_b64 exec, {sr(S_EX,2)}")
    e(f"v_and_b32 {L}, 63, v0")
    e("v_lshrrev_b32 v4, 6, v0")
    e(f"s_and_b32 {sr(S_T0)}, {sr(S_WG)}, 7")
    e(f"v_readfirstlane_b32 {sr(S_WAVE)}, v4")
    e(f"s_lshr_b32 {sr(S_T1)}, {sr(S_WG)}, 3")
    e(f"s_and_b32 {sr(S_T2)}, {sr(S_T0)}, 1")
    e(f"s_lshl_b32 {sr(S_T2)}, {sr(S_T2)}, 3")
    e(f"s_and_b32 {sr(S_T3)}, {sr(S_T1)}, 7")
    e(f"s_add_u32 {sr(S_RB)}, {sr(S_T2)}, {sr(S_T3)}")
    e(f"s_lshr_b32 {sr(S_T2)}, {sr(S_T0)}, 1")
    e(f"s_lshl_b32 {sr(S_T2)}, {sr(S_T2)}, 2")
    e(f"s_lshr_b32 {sr(S_T3)}, {sr(S_T1)}, 3")
    e(f"s_add_u32 {sr(S_CP)}, {sr(S_T2)}, {sr(S_T3)}")
    e(f"s_lshl_b32 {sr(S_T2)}, {sr(S_T0)}, 2")
    e(f"s_and_b32 {sr(S_T3)}, {sr(S_T1)}, 3")
    e(f"s_add_u32 {sr(S_I2)}, {sr(S_T2)}, {sr(S_T3)}")
    e(f"s_lshr_b32 {sr(S_J)}, {sr(S_T1)}, 2")
    e(f"s_mul_i32 {sr(S_T2)}, {sr(S_CP)}, 96")
    e(f"s_lshl_b32 {sr(S_T3)}, {sr(S_CP)}, 6")
    e(f"s_add_u32 {sr(S_T3)}, {sr(S_T3)}, 352")
    e(f"s_cmp_lt_u32 {sr(S_CP)}, 11")
    e(f"s_cselect_b32 {sr(S_F0)}, {sr(S_T2)}, {sr(S_T3)}")
    e(f"s_cselect_b32 {sr(S_N32)}, 3, 2")
    if TS:
        e(f"v_mov_b32 {vr(V_TS)}, 0")
        e("s_waitcnt lgkmcnt(0)")
        e(f"v_writelane_b32 {vr(V_TS)}, s44, 63")
        e(f"s_memrealtime s[44:45]")
        e("s_waitcnt lgkmcnt(0)")
        e(f"v_writelane_b32 {vr(V_TS)}, s44, 62")
    e(f"s_cmp_ge_u32 {sr(S_WAVE)}, 4")
    e("s_cbranch_scc1 L_HELPER")

    A.vm = ["code"]
    e(f"s_setprio {opts.get('cprio', 2)}")
    e(f"s_and_b32 {sr(S_A)}, {sr(S_WAVE)}, 1")
    e(f"s_lshr_b32 {sr(S_B)}, {sr(S_WAVE)}, 1")
    FS = [16, 36]
    V_XR, V_WR, V_XR2, V_WR2 = 56, 60, 66, 70
    ACC = 160
    e(f"v_and_b32 {vr(t0)}, 31, {L}")
    e(f"v_lshrrev_b32 {vr(t1)}, 5, {L}")
    e(f"v_bfe_u32 {vr(t2)}, {vr(t0)}, 1, 3")
    e(f"v_xor_b32 {vr(t2)}, {vr(t2)}, {vr(t1)}")
    e(f"s_lshl_b32 {sr(S_T0)}, {sr(S_A)}, 1")
    e(f"v_xor_b32 {vr(t2)}, {sr(S_T0)}, {vr(t2)}")
    e(f"s_lshl_b32 {sr(S_T0)}, {sr(S_A)}, 6")
    e(f"v_add_u32 {vr(t0)}, {sr(S_T0)}, {vr(t0)}")
    e(f"v_lshlrev_b32 {vr(t0)}, 7, {vr(t0)}")
    for ks in range(4):
        e(f"v_xor_b32 {vr(t3)}, {2*ks}, {vr(t2)}")
        e(f"v_lshl_add_u32 {vr(V_XR+ks)}, {vr(t3)}, 4, {vr(t0)}")
    e(f"v_bfe_u32 {vr(t0)}, {L}, 4, 1")
    e(f"v_lshrrev_b32 {vr(t1)}, 5, {L}")
    e(f"v_bfe_u32 {vr(t2)}, {L}, 2, 2")
    e(f"v_bfe_u32 {vr(t3)}, {L}, 1, 1")
    e(f"v_and_b32 {vr(t4)}, 1, {L}")
    e(f"s_lshl_b32 {sr(S_T0)}, {sr(S_B)}, 1")
    e(f"v_add_u32 {vr(t3)}, {sr(S_T0)}, {vr(t3)}")
    e(f"v_lshlrev_b32 {vr(t5)}, 1, {vr(t0)}")
    e(f"v_xor_b32 {vr(t3)}, {vr(t3)}, {vr(t5)}")
    e(f"v_lshlrev_b32 {vr(t3)}, 4, {vr(t3)}")
    e(f"v_lshl_add_u32 {vr(t3)}, {vr(t4)}, 3, {vr(t3)}")
    e(f"v_lshl_add_u32 {vr(t3)}, {vr(t2)}, 6, {vr(t3)}")
    e(f"v_mul_u32_u24 {vr(t1)}, 1536, {vr(t1)}")
    e(f"v_mul_u32_u24 {vr(t0)}, 12288, {vr(t0)}")
    e(f"v_add3_u32 {vr(t3)}, {vr(t3)}, {vr(t1)}, {vr(t0)}")
    e(f"v_add_u32 {vr(t3)}, 16384, {vr(t3)}")
    e(f"s_mul_i32 {sr(S_T1)}, {sr(S_A)}, 3072")
    for i in range(3):
        e(f"s_cmp_eq_u32 {sr(S_A)}, 0")
        e(f"s_cselect_b32 {sr(S_T0)}, {i*256}, {(2-i)*256}")
        e(f"s_add_u32 {sr(S_T2)}, {sr(S_T0)}, {sr(S_T1)}")
        e(f"v_add_u32 {vr(V_WR+i)}, {sr(S_T2)}, {vr(t3)}")
        e(f"s_sub_u32 {sr(S_T2)}, {sr(S_T0)}, {sr(S_T1)}")
        e(f"v_add_u32 {vr(V_WR+3+i)}, {sr(S_T2)}, {vr(t3)}")
    for ks in range(4): e(f"v_add_u32 {vr(V_XR2+ks)}, {2*STAGE}, {vr(V_XR+ks)}")
    for i in range(6): e(f"v_add_u32 {vr(V_WR2+i)}, {2*STAGE}, {vr(V_WR+i)}")
    loader_setup(S_WAVE, 94, 96, S_X0, S_X1)
    for r in range(96): e(f"v_mov_b32 {vr(ACC+r)}, 0")
    for r in range(12): e(f"v_mov_b32 {vr(80+r)}, 0")
    e(f"v_and_b32 {vr(t0)}, 15, {L}")
    e(f"v_bfe_u32 {vr(t1)}, {L}, 4, 1")
    e(f"v_cmp_eq_u32 vcc, {vr(t0)}, {vr(t1)}")
    e(f"v_mov_b32 {vr(t2)}, 0x3f803f80")
    e("s_nop 0")
    e(f"v_cndmask_b32 {vr(76)}, 0, {vr(t2)}, vcc")
    for r in range(1, 4): e(f"v_mov_b32 {vr(76+r)}, {vr(76)}")
    e("s_waitcnt lgkmcnt(0)")
    srd(SRD_Q, 0, 2 << 20); srd(SRD_WD, 9, WBYTES); srd(SRD_OUT, 10, 2 << 20); srd(SRD_WS, 12, 0x10000000)
    V_TX, V_TW, V_DUM = 100, 101, 92
    BAD = 0x7fffff00
    e(f"s_and_b32 {sr(S_T0)}, {sr(S_CP)}, 3")
    e(f"s_lshl_b32 {sr(S_T0)}, {sr(S_T0)}, 5")
    e(f"s_lshl_b32 {sr(S_T1)}, {sr(S_RB)}, 7")
    e(f"s_add_u32 {sr(S_T0)}, {sr(S_T0)}, {sr(S_T1)}")
    e(f"v_and_b32 {vr(t1)}, 31, {L}")
    e(f"v_add_u32 {vr(t1)}, {sr(S_T0)}, {vr(t1)}")
    e(f"v_lshlrev_b32 {vr(t1)}, 10, {vr(t1)}")
    e(f"v_lshrrev_b32 {vr(t0)}, 5, {L}")
    e(f"v_lshl_add_u32 {vr(V_TX)}, {vr(t0)}, 7, {vr(t1)}")
    e(f"v_cmp_gt_u32 vcc, 32, {L}")
    e(f"v_mov_b32 {vr(t2)}, {BAD}")
    e("s_nop 0")
    e(f"v_cndmask_b32 {vr(V_TX+2)}, {vr(t2)}, {vr(V_TX)}, vcc")
    e(f"s_and_b32 {sr(S_T0)}, {sr(S_RB)}, 7")
    e(f"s_lshl_b32 {sr(S_T0)}, {sr(S_T0)}, 3")
    e(f"v_lshrrev_b32 {vr(t0)}, 4, {L}")
    e(f"v_lshlrev_b32 {vr(t3)}, 6, {vr(t0)}")
    e(f"v_bfe_u32 {vr(t1)}, {L}, 1, 3")
    e(f"v_add3_u32 {vr(t3)}, {vr(t3)}, {vr(t1)}, {sr(S_T0)}")
    e(f"s_movk_i32 {sr(S_T1)}, {WROW}")
    e(f"v_mul_lo_u32 {vr(t1)}, {vr(t3)}, {sr(S_T1)}")
    e(f"v_and_b32 {vr(t2)}, 1, {L}")
    e(f"v_lshl_add_u32 {vr(t1)}, {vr(t2)}, 7, {vr(t1)}")
    e(f"s_lshl_b32 {sr(S_T1)}, {sr(S_F0)}, 1")
    e(f"v_add_u32 {vr(V_TW)}, {sr(S_T1)}, {vr(t1)}")
    e(f"v_mov_b32 {vr(t2)}, {BAD}")
    e(f"v_cmp_gt_u32 vcc, 48, {L}")
    e("s_nop 0")
    e(f"v_cndmask_b32 {vr(V_TW+2)}, {vr(t2)}, {vr(V_TW)}, vcc")
    e(f"v_cmp_gt_u32 vcc, 16, {L}")
    e("s_nop 1")
    e(f"v_cndmask_b32 {vr(V_TW+3)}, {vr(t2)}, {vr(V_TW)}, vcc")
    e(f"s_cmp_eq_u32 {sr(S_WAVE)}, 1")
    e(f"s_cselect_b32 {sr(SRD_K)}, {sr(P+14)}, {sr(P+16)}")
    e(f"s_cselect_b32 {sr(SRD_K+1)}, {sr(P+15)}, {sr(P+17)}")
    e(f"s_mov_b32 {sr(SRD_K+2)}, {WBYTES}")
    e(f"s_mov_b32 {sr(SRD_K+3)}, 0x20000")
    NPT = opts.get("npt", 3)
    def touch(stage_lo, nst):
        l1 = A.newlabel("TC"); l2 = A.newlabel("TC")
        e(f"s_cmp_eq_u32 {sr(S_WAVE)}, 0"); e(f"s_cbranch_scc0 {l1}")
        if nst == 1:
            e(f"s_movk_i32 {sr(S_T0)}, {stage_lo*128}")
            e(f"buffer_load_dword {vr(V_DUM)}, {vr(V_TX+2)}, {sr(SRD_Q,4)}, {sr(S_T0)} offen")
        else:
            e(f"s_movk_i32 {sr(S_T0)}, {stage_lo*128}")
            e(f"buffer_load_dword {vr(V_DUM)}, {vr(V_TX)}, {sr(SRD_Q,4)}, {sr(S_T0)} offen")
            e(f"s_movk_i32 {sr(S_T0)}, {(stage_lo+2)*128}")
            e(f"buffer_load_dword {vr(V_DUM)}, {vr(V_TX+2)}, {sr(SRD_Q,4)}, {sr(S_T0)} offen")
        e(f"s_branch {l2}")
        A.label(l1)
        e(f"s_mov_b32 {sr(S_T0)}, {stage_lo*64*WROW}")
        e(f"s_cmp_eq_u32 {sr(S_WAVE)}, 3")
        e(f"s_cselect_b32 {sr(S_T0)}, 0x40000000, {sr(S_T0)}")
        e(f"buffer_load_dword {vr(V_DUM)}, {vr(V_TW+3 if nst == 1 else V_TW+2)}, {sr(SRD_K,4)}, {sr(S_T0)} offen")
        A.label(l2)
    touch(1, 3)
    if opts.get("tlb"):
        ltl = A.newlabel("TLB")
        e(f"s_cmp_eq_u32 {sr(S_WAVE)}, 3"); e(f"s_cbranch_scc0 {ltl}")
        e(f"v_lshlrev_b32 {vr(t1)}, 18, {L}")
        e(f"s_lshl_b32 {sr(S_T0)}, {sr(S_WG)}, 7")
        e(f"buffer_load_dword {vr(V_DUM)}, {vr(t1)}, {sr(SRD_WS,4)}, {sr(S_T0)} offen")
        e(f"v_lshlrev_b32 {vr(t1)}, 15, {L}")
        e(f"buffer_load_dword {vr(V_DUM)}, {vr(t1)}, {sr(SRD_OUT,4)}, {sr(S_T0)} offen")
        A.label(ltl)
    TLEAD = opts.get("tlead", 4)
    for st_ in range(4, TLEAD): touch(st_, 1)
    if opts.get("tfirst", 1): e("s_barrier")
    srd_w_select(S_WAVE)
    dma_stage_g(1, 94, 96, S_X0, S_X1, S_X2, S_X3)
    TOUCH2 = []
    stamp(0)
    def reads(stage, ks, st):
        b = FS[st]; out = []
        slot = stage % 3
        xr, wr, o = (V_XR, V_WR, slot*STAGE) if slot < 2 else (V_XR2, V_WR2, 0)
        out.append(f"ds_read_b128 {vr(b,4)}, {vr(xr+ks)} offset:{o}")
        wa = wr + (3 if ks & 1 else 0)
        for h in range(2): out.append(f"ds_read_b64_tr_b16 {vr(b+8+2*h,2)}, {vr(wa)} offset:{o+ks*3072+h*768}")
        out.append(f"ds_read_b128 {vr(b+4,4)}, {vr(xr+ks)} offset:{o+4096}")
        for i in range(1, 3):
            for h in range(2): out.append(f"ds_read_b64_tr_b16 {vr(b+8+4*i+2*h,2)}, {vr(wa+i)} offset:{o+ks*3072+h*768}")
        return out
    V_SEL = 76; V_CSA = 80
    def kstep(ks, st, nxt, job=()):
        b = FS[st]; mf = []
        for i in range(3):
            for tt in range(2):
                a = ACC + 16*(2*i+tt)
                mf.append((f"v_mfma_f32_32x32x16_bf16 {vr(a,16)}, {vr(b+8+4*i,4)}, {vr(b+4*tt,4)}, {vr(a,16)}", 4))
            if ks % 2 == 0 and not opts.get("nocs"):
                mf.append((f"v_mfma_f32_16x16x32_bf16 {vr(V_CSA+4*i,4)}, {vr(V_SEL,4)}, {vr(b+8+4*i,4)}, {vr(V_CSA+4*i,4)}", 2))
        fill = list(nxt) + list(job)
        cap = sum(c for _, c in mf)
        k = 0; done = 0
        for m, c in mf:
            e(m)
            done += c
            upto = (len(fill) * done + cap - 1) // cap
            for x in fill[k:upto]: e(x)
            k = max(k, upto)
    job_at = {}
    e("s_barrier")
    stamp(1)
    for x in reads(0, 0, 0): e(x)
    for it in range(8):
        for ks in range(4):
            g = 4*it + ks
            if ks == 3 and it < 7:
                e("s_waitcnt vmcnt(1) lgkmcnt(0)" if it == 0 else "s_waitcnt lgkmcnt(0)")
                if opts.get("barstamp"): stamp(24 + it)
                e("s_barrier")
                if opts.get("barstamp"): stamp(32 + it)
            else:
                e("s_waitcnt lgkmcnt(0)")
            if ks == 1 and it + TLEAD <= 7: touch(it + TLEAD, 1)
            if ks < 3: nxt = reads(it, ks + 1, (g + 1) & 1)
            elif it < 7: nxt = reads(it + 1, 0, (g + 1) & 1)
            else: nxt = []
            kstep(ks, g & 1, nxt, job_at.get(g, []))
        if opts.get("itstamp"): stamp(16 + it)
    stamp(2)
    e("s_nop 7")
    e(f"s_lshl_b32 {sr(S_T0)}, {sr(S_B)}, 1")
    e(f"s_add_u32 {sr(S_T0)}, {sr(S_T0)}, {sr(S_A)}")
    e(f"s_mul_i32 {sr(S_T0)}, {sr(S_T0)}, 384")
    e(f"s_add_u32 {sr(S_T0)}, {sr(S_T0)}, {L_CS}")
    e(f"v_lshlrev_b32 {vr(t0)}, 2, {L}")
    e(f"v_add_u32 {vr(t0)}, {sr(S_T0)}, {vr(t0)}")
    e(f"s_mov_b64 {sr(S_EX,2)}, exec")
    e("s_mov_b64 exec, 0xffff")
    for i in range(3):
        e(f"s_cmp_eq_u32 {sr(S_A)}, 0")
        e(f"s_cselect_b32 {sr(S_T1)}, {i*128}, {(2-i)*128}")
        e(f"v_add_u32 {vr(t1)}, {sr(S_T1)}, {vr(t0)}")
        e(f"ds_write_b32 {vr(t1)}, {vr(80+4*i)}")
        e(f"ds_write_b32 {vr(t1)}, {vr(80+4*i+1)} offset:64")
    e(f"s_mov_b64 exec, {sr(S_EX,2)}")
    e("s_waitcnt lgkmcnt(0)")
    e("s_barrier")
    stamp(3)
    if opts.get("g1only"):
        stamp_flush()
        e("s_endpgm")
    e("s_setprio 2")
    e(f"v_mov_b32 {vr(t0)}, {L_FLAG+32}")
    e(f"ds_read_b32 {vr(t1)}, {vr(t0)}")
    ST = 84
    e(f"v_and_b32 {vr(t2)}, 31, {L}")
    e(f"v_lshlrev_b32 {vr(t2)}, 3, {vr(t2)}")
    e(f"s_lshl_b32 {sr(S_T0)}, {sr(S_A)}, 9")
    e(f"s_add_u32 {sr(S_T0)}, {sr(S_T0)}, {L_STAT}")
    e(f"v_add_u32 {vr(t2)}, {sr(S_T0)}, {vr(t2)}")
    e(f"ds_read_b64 {vr(ST,2)}, {vr(t2)}")
    e(f"ds_read_b64 {vr(ST+2,2)}, {vr(t2)} offset:256")
    CGS = [16, 32, 48]; CG2 = [64, 96, 112]
    e(f"v_lshrrev_b32 {vr(t5)}, 5, {L}")
    e(f"v_lshlrev_b32 {vr(t5)}, 4, {vr(t5)}")
    e(f"s_mul_i32 {sr(S_T0)}, {sr(S_B)}, 768")
    e(f"s_add_u32 {sr(S_T0)}, {sr(S_T0)}, {L_CS}")
    e(f"v_add_u32 {vr(t5)}, {sr(S_T0)}, {vr(t5)}")
    for i in range(3):
        e(f"s_cmp_eq_u32 {sr(S_A)}, 0")
        e(f"s_cselect_b32 {sr(S_T1)}, {i*128}, {(2-i)*128}")
        e(f"v_add_u32 {vr(t0)}, {sr(S_T1)}, {vr(t5)}")
        for rp in range(4): e(f"ds_read_b128 {vr(CGS[i]+4*rp,4)}, {vr(t0)} offset:{32*rp}")
        for rp in range(4): e(f"ds_read_b128 {vr(CG2[i]+4*rp,4)}, {vr(t0)} offset:{384+32*rp}")
    e("s_waitcnt lgkmcnt(0)")
    e(f"v_readfirstlane_b32 {sr(S_NONCE)}, {vr(t1)}")
    C1 = -2.0 * 0.7978845608028654 * 0.044715 * 1.4426950408889634
    C0 = -2.0 * 0.7978845608028654 * 1.4426950408889634
    NMp, K1p, K0p, IRp = [144, 146], [148, 150], [152, 154], [156, 158]
    e(f"s_mov_b32 {sr(S_T4)}, {f2u(C1):#x}")
    e(f"s_mov_b32 {sr(S_T5)}, {f2u(C0):#x}")
    for tt in range(2):
        m, r = ST + 2*tt, ST + 2*tt + 1
        e(f"v_sub_f32 {vr(NMp[tt])}, 0, {vr(m)}")
        e(f"v_mul_f32 {vr(K0p[tt])}, {sr(S_T5)}, {vr(r)}")
        e(f"v_mul_f32 {vr(t3)}, {vr(r)}, {vr(r)}")
        e(f"v_mul_f32 {vr(t4)}, {vr(t3)}, {vr(r)}")
        e(f"v_mul_f32 {vr(K1p[tt])}, {sr(S_T4)}, {vr(t4)}")
        e(f"v_rcp_f32 {vr(IRp[tt])}, {vr(t3)}")
        e("s_nop 1")
        for rr in (NMp, K0p, K1p, IRp): e(f"v_mov_b32 {vr(rr[tt]+1)}, {vr(rr[tt])}")
    for i in range(3):
        for k in range(0, 16, 2): e(f"v_pk_add_f32 {vr(CGS[i]+k,2)}, {vr(CGS[i]+k,2)}, {vr(CG2[i]+k,2)}")
    TT = 128; HP = [136, 140]
    e(f"v_lshlrev_b32 {vr(t4)}, 4, {L}")
    e(f"s_lshl_b32 {sr(S_T1)}, {sr(S_RB)}, 2")
    e(f"s_lshl_b32 {sr(S_T2)}, {sr(S_A)}, 1")
    e(f"s_add_u32 {sr(S_T1)}, {sr(S_T1)}, {sr(S_T2)}")
    e(f"s_mul_i32 {sr(S_T1)}, {sr(S_T1)}, 86")
    e(f"s_lshr_b32 {sr(S_T2)}, {sr(S_F0)}, 4")
    e(f"s_add_u32 {sr(S_T1)}, {sr(S_T1)}, {sr(S_T2)}")
    e(f"s_add_u32 {sr(S_T1)}, {sr(S_T1)}, {sr(S_B)}")
    e(f"s_lshl_b32 {sr(S_T1)}, {sr(S_T1)}, 10")
    e(f"s_add_u32 {sr(S_G2)}, {sr(S_T1)}, {WS_HF}")
    for i in range(3):
        lsk = A.newlabel("EP")
        if i == 1: e(f"s_mov_b32 {sr(S_T0)}, 1")
        else:
            e(f"s_cmp_eq_u32 {sr(S_A)}, 0")
            e(f"s_cselect_b32 {sr(S_T0)}, {i}, {2-i}")
        e(f"s_cmp_ge_u32 {sr(S_T0)}, {sr(S_N32)}")
        e(f"s_cbranch_scc1 {lsk}")
        e(f"s_lshl_b32 {sr(S_T0)}, {sr(S_T0)}, 11")
        e(f"s_add_u32 {sr(S_T1)}, {sr(S_G2)}, {sr(S_T0)}")
        e(f"s_add_u32 {sr(S_T2)}, {sr(S_T1)}, {86*1024}")
        CG = CGS[i]
        for tt in range(2):
            a = ACC + 16*(2*i+tt)
            NM, K1, K0, IR = NMp[tt], K1p[tt], K0p[tt], IRp[tt]
            G = [a+2*k for k in range(4)]; U = [a+8+2*k for k in range(4)]
            cg = [CG+2*k for k in range(4)]; cu = [CG+8+2*k for k in range(4)]
            T = [TT+2*k for k in range(4)]
            for k in range(4): e(f"v_pk_fma_f32 {vr(G[k],2)}, {vr(NM,2)}, {vr(cg[k],2)}, {vr(G[k],2)}")
            for k in range(4): e(f"v_pk_mul_f32 {vr(T[k],2)}, {vr(G[k],2)}, {vr(G[k],2)}")
            for k in range(4): e(f"v_pk_fma_f32 {vr(T[k],2)}, {vr(T[k],2)}, {vr(K1,2)}, {vr(K0,2)}")
            for k in range(4): e(f"v_pk_mul_f32 {vr(T[k],2)}, {vr(T[k],2)}, {vr(G[k],2)}")
            for k in range(4):
                e(f"v_exp_f32 {vr(TT+2*k)}, {vr(TT+2*k)}")
                e(f"v_exp_f32 {vr(TT+2*k+1)}, {vr(TT+2*k+1)}")
                e(f"v_pk_fma_f32 {vr(U[k],2)}, {vr(NM,2)}, {vr(cu[k],2)}, {vr(U[k],2)}")
            for k in range(4): e(f"v_pk_fma_f32 {vr(T[k],2)}, {vr(T[k],2)}, {vr(IR,2)}, {vr(IR,2)}")
            for k in range(4):
                e(f"v_rcp_f32 {vr(TT+2*k)}, {vr(TT+2*k)}")
                e(f"v_rcp_f32 {vr(TT+2*k+1)}, {vr(TT+2*k+1)}")
                e(f"v_pk_mul_f32 {vr(G[k],2)}, {vr(G[k],2)}, {vr(U[k],2)}")
            for k in range(4): e(f"v_pk_mul_f32 {vr(G[k],2)}, {vr(G[k],2)}, {vr(T[k],2)}")
            for k in range(4): e(f"v_cvt_pk_bf16_f32 {vr(HP[tt]+k)}, {vr(G[k])}, {vr(G[k]+1)}")
            A.vmem(f"buffer_store_dwordx4 {vr(HP[tt],4)}, {vr(t4)}, {sr(SRD_WS,4)}, {sr(S_T1 if tt == 0 else S_T2)} offen sc0 sc1", "hst")
        A.label(lsk)
    stamp(4)
    e(f"s_lshl_b32 {sr(S_T0)}, {sr(S_WAVE)}, 2")
    e(f"s_add_u32 {sr(S_T0)}, {sr(S_T0)}, {L_FLAG+48}")
    e(f"v_mov_b32 {vr(t0)}, {sr(S_T0)}")
    e(f"v_mov_b32 {vr(t1)}, 1")
    e(f"ds_write_b32 {vr(t0)}, {vr(t1)}")
    GACC = 160; PH = opts.get('ph', 8); GH = 16; GW = 80
    GACC = 176
    GW = 80
    GA = [168, 240]
    V_AR = 248
    V_HL, V_DO = 254, 255
    S_KU0, S_KUN, S_RA, S_RBB, S_RC, S_H0 = S_G0, S_G1, S_G2, S_G3, S_G4, S_G5
    S_H1, S_OOB, S_DSO, S_ROT, S_HB = S_C0, S_C1, S_X0, S_X1, S_X2
    e(f"s_mul_i32 {sr(S_ROT)}, {sr(S_J)}, {opts.get('rot', 3)}")
    ku_start(S_KU0, S_WAVE)
    e(f"s_cmp_lt_u32 {sr(S_WAVE)}, 2")
    e(f"s_cselect_b32 {sr(S_KUN)}, 22, 21")
    ring_bases(S_WAVE, S_RA, S_RBB, S_RC)
    wd_voffset(V_DO)
    e(f"v_lshrrev_b32 {vr(t0)}, 5, {L}")
    e(f"v_bfe_u32 {vr(t1)}, {L}, 2, 2")
    e(f"v_lshl_add_u32 {vr(t0)}, {vr(t0)}, 2, {vr(t1)}")
    e(f"v_lshlrev_b32 {vr(t0)}, 7, {vr(t0)}")
    e(f"v_bfe_u32 {vr(t2)}, {L}, 4, 1")
    e(f"v_bfe_u32 {vr(t3)}, {L}, 1, 1")
    e(f"v_lshl_add_u32 {vr(t2)}, {vr(t2)}, 1, {vr(t3)}")
    e(f"v_lshlrev_b32 {vr(t2)}, 4, {vr(t2)}")
    e(f"v_and_b32 {vr(t3)}, 1, {L}")
    e(f"v_lshl_add_u32 {vr(t2)}, {vr(t3)}, 3, {vr(t2)}")
    e(f"v_add_u32 {vr(t0)}, {vr(t0)}, {vr(t2)}")
    e(f"v_bfe_u32 {vr(t1)}, {L}, 3, 1")
    e(f"v_lshlrev_b32 {vr(t1)}, 6, {vr(t1)}")
    e(f"v_add_u32 {vr(t2)}, {vr(t0)}, {vr(t1)}")
    e(f"v_xor_b32 {vr(t1)}, 64, {vr(t1)}")
    e(f"v_add_u32 {vr(t3)}, {vr(t0)}, {vr(t1)}")
    for bi, sb in enumerate((S_RA, S_RBB, S_RC)):
        e(f"v_add_u32 {vr(V_AR+2*bi)}, {sr(sb)}, {vr(t2)}")
        e(f"v_add_u32 {vr(V_AR+2*bi+1)}, {sr(sb)}, {vr(t3)}")
    e(f"v_lshlrev_b32 {vr(V_HL)}, 4, {L}")
    e(f"s_mov_b32 {sr(S_OOB)}, 0x20000000")
    e("s_waitcnt vmcnt(0)")
    e(f"s_lshl_b32 {sr(S_T0)}, {sr(S_RB)}, 8")
    e(f"s_lshl_b32 {sr(S_T1)}, {sr(S_CP)}, 4")
    e(f"s_lshl_b32 {sr(S_T2)}, {sr(S_WAVE)}, 2")
    e(f"s_add_u32 {sr(S_T0)}, {sr(S_T0)}, {sr(S_T1)}")
    e(f"s_add_u32 {sr(S_T0)}, {sr(S_T0)}, {sr(S_T2)}")
    e(f"s_add_u32 {sr(S_T0)}, {sr(S_T0)}, {WS_FL+FL_H}")
    flag_set(S_T0, t0)
    stamp(5)
    e(f"s_lshl_b32 {sr(S_T0)}, {sr(S_WAVE)}, 2")
    e(f"s_add_u32 {sr(S_T0)}, {sr(S_T0)}, {L_FLAG+16}")
    lds_spin(S_T0, t0, t1)
    def afrag_reads(n, dst):
        bi, off = ring_off(n); out = []
        for dt in range(2):
            for h in range(2):
                out.append(f"ds_read_b64_tr_b16 {vr(dst+4*dt+2*h,2)}, {vr(V_AR+2*bi+dt)} offset:{off+1024*h}")
        return out
    for n in range(NR):
        for x in afrag_reads(n, GW+8*n): e(x)
        if n % 3 == 2: e("s_waitcnt lgkmcnt(4)")
    e("s_waitcnt lgkmcnt(0)")
    for n in range(NR):
        bi, off = ring_off(n)
        sb = (S_RA, S_RBB, S_RC)[bi]
        wd_soff(NR + n, S_DSO, S_ROT, S_KUN, S_KU0, S_OOB)
        for a in range(2):
            e(f"s_add_u32 m0, {sr(sb)}, {off + 1024*a}")
            if a == 1: e(f"s_add_u32 {sr(S_DSO)}, {sr(S_DSO)}, 8192")
            else: e("s_nop 0")
            A.vmem(f"buffer_load_dwordx4 {vr(V_DO)}, {sr(SRD_WD,4)}, {sr(S_DSO)} offen lds", "WR2")
    for r in range(64): e(f"v_mov_b32 {vr(GACC+r)}, 0")
    stamp(6)
    e(f"s_lshr_b32 {sr(S_T0)}, {sr(S_I2)}, 1")
    e(f"s_lshl_b32 {sr(S_T0)}, {sr(S_T0)}, 8")
    e(f"s_add_u32 {sr(S_T0)}, {sr(S_T0)}, {WS_FL+FL_H}")
    lh1 = A.newlabel("HP"); lh2 = A.newlabel("HP")
    e(f"s_cmp_lg_u32 {sr(S_WAVE)}, 0")
    e(f"s_cbranch_scc1 {lh1}")
    flag_wait_blocking(t1, 1, S_T0, sleep=opts.get('hsleep', 2))
    e(f"v_mov_b32 {vr(t0)}, {L_FLAG+72}")
    e(f"v_mov_b32 {vr(t1)}, 1")
    e(f"ds_write_b32 {vr(t0)}, {vr(t1)}")
    e(f"s_branch {lh2}")
    A.label(lh1)
    e(f"s_mov_b32 {sr(S_T0)}, {L_FLAG+72}")
    lds_spin(S_T0, t1, t0, sleep=1)
    e("s_waitcnt vmcnt(0)")
    A.label(lh2)
    stamp(7)
    e(f"s_lshl_b32 {sr(S_T0)}, {sr(S_I2)}, 1")
    e(f"s_mul_i32 {sr(S_T0)}, {sr(S_T0)}, 86")
    e(f"s_add_u32 {sr(S_T0)}, {sr(S_T0)}, {sr(S_KU0)}")
    e(f"s_lshl_b32 {sr(S_T0)}, {sr(S_T0)}, 10")
    e(f"s_add_u32 {sr(S_HB)}, {sr(S_T0)}, {WS_HF}")
    A.vm = []
    def hload(n):
        hb = GH + 8*(n % PH)
        unit_at(n, S_H0, S_ROT, S_KUN)
        e(f"s_cselect_b32 {sr(S_T5)}, 1, 0")
        e(f"s_lshl_b32 {sr(S_H0)}, {sr(S_H0)}, 10")
        e(f"s_add_u32 {sr(S_H0)}, {sr(S_H0)}, {sr(S_HB)}")
        e(f"s_cmp_eq_u32 {sr(S_T5)}, 1")
        e(f"s_cselect_b32 {sr(S_H0)}, {sr(S_H0)}, {sr(S_OOB)}")
        e(f"s_add_u32 {sr(S_H1)}, {sr(S_H0)}, {86*1024}")
        A.vmem(f"buffer_load_dwordx4 {vr(hb,4)}, {vr(V_HL)}, {sr(SRD_WS,4)}, {sr(S_H0)} offen{HSC}", f"H{n}")
        A.vmem(f"buffer_load_dwordx4 {vr(hb+4,4)}, {vr(V_HL)}, {sr(SRD_WS,4)}, {sr(S_H1)} offen{HSC}", f"H{n}")
    for n in range(PH): hload(n)
    for n in range(22):
        hb = GH + 8*(n % PH)
        if n < NR: aw = GW + 8*n
        else: aw = GA[n & 1]
        if n + 1 >= NR and n + 1 < 22:
            for x in afrag_reads(n + 1 - NR, GA[(n+1) & 1]): e(x)
        A.wait_vm(f"H{n}")
        if n >= NR: e("s_waitcnt lgkmcnt(4)" if n + 1 < 22 else "s_waitcnt lgkmcnt(0)")
        e(f"v_mfma_f32_32x32x16_bf16 {vr(GACC,16)}, {vr(aw,4)}, {vr(hb,4)}, {vr(GACC,16)}")
        e(f"v_mfma_f32_32x32x16_bf16 {vr(GACC+16,16)}, {vr(aw,4)}, {vr(hb+4,4)}, {vr(GACC+16,16)}")
        e(f"v_mfma_f32_32x32x16_bf16 {vr(GACC+32,16)}, {vr(aw+4,4)}, {vr(hb,4)}, {vr(GACC+32,16)}")
        e(f"v_mfma_f32_32x32x16_bf16 {vr(GACC+48,16)}, {vr(aw+4,4)}, {vr(hb+4,4)}, {vr(GACC+48,16)}")
        if n + PH < 22: hload(n + PH)
        if n == opts.get("yun", 12):
            e(f"v_mov_b32 {vr(t0)}, {L_FLAG+64}")
            e(f"v_mov_b32 {vr(t1)}, 1")
            e(f"ds_write_b32 {vr(t0)}, {vr(t1)}")
        if opts.get("g2stamp") and n % 2 == 1: stamp(32 + n // 2)
    stamp(8)
    e("s_nop 7")
    e(f"v_and_b32 {vr(t0)}, 31, {L}")
    e(f"v_lshrrev_b32 {vr(t1)}, 5, {L}")
    e(f"v_mul_u32_u24 {vr(t0)}, 272, {vr(t0)}")
    e(f"v_lshl_add_u32 {vr(t0)}, {vr(t1)}, 4, {vr(t0)}")
    e(f"v_add_u32 {vr(t1)}, {sr(S_RBB)}, {vr(t0)}")
    e(f"v_add_u32 {vr(t0)}, {sr(S_RA)}, {vr(t0)}")
    for dt in range(2):
        for tt in range(2):
            for rp in range(4):
                a = GACC + 16*(2*dt+tt) + 4*rp
                e(f"ds_write_b128 {vr(t0 if tt == 0 else t1)}, {vr(a,4)} offset:{dt*128 + rp*32}")
    e("s_branch L_FINAL")

    A.label("L_HELPER")
    A.vm = ["code"]
    if opts.get("g1only"):
        for _ in range(10): e("s_barrier")
        e("s_endpgm")
    S_LW = S_A
    e(f"s_sub_u32 {sr(S_LW)}, {sr(S_WAVE)}, 4")
    V_XO, V_WO, V_L16, V_TO, V_DO2 = 16, 18, 21, 22, 23
    S_XSO, S_WSO, S_M0X, S_M0W = S_G0, S_G1, S_G3, S_G4
    BAD = 0x7fffff00
    e(f"v_lshlrev_b32 {vr(V_L16)}, 4, {L}")
    loader_setup(S_LW, V_XO, V_WO, S_M0X, S_M0W)
    S_ROW = S_G5
    e(f"s_lshl_b32 {sr(S_ROW)}, {sr(S_RB)}, 7")
    e(f"s_lshl_b32 {sr(S_T0)}, {sr(S_CP)}, 3")
    e(f"s_add_u32 {sr(S_ROW)}, {sr(S_ROW)}, {sr(S_T0)}")
    e(f"s_lshl_b32 {sr(S_T0)}, {sr(S_LW)}, 1")
    e(f"s_add_u32 {sr(S_ROW)}, {sr(S_ROW)}, {sr(S_T0)}")
    e(f"v_lshrrev_b32 {vr(t0)}, 3, {L}")
    e(f"v_and_b32 {vr(t1)}, 7, {L}")
    e(f"v_lshrrev_b32 {vr(t2)}, 4, {L}")
    e(f"s_and_b32 {sr(S_T1)}, {sr(S_LW)}, 1")
    e(f"s_lshl_b32 {sr(S_T1)}, {sr(S_T1)}, 2")
    e(f"v_add_u32 {vr(t2)}, {sr(S_T1)}, {vr(t2)}")
    e(f"v_xor_b32 {vr(t1)}, {vr(t1)}, {vr(t2)}")
    e(f"v_lshlrev_b32 {vr(t1)}, 4, {vr(t1)}")
    e(f"v_lshl_add_u32 {vr(t1)}, {vr(t0)}, 10, {vr(t1)}")
    e(f"s_lshl_b32 {sr(S_T1)}, {sr(S_J)}, 7")
    e(f"v_add_u32 {vr(V_TO)}, {sr(S_T1)}, {vr(t1)}")
    wd_voffset(V_DO2)
    e("s_waitcnt lgkmcnt(0)")
    srd(SRD_Q, 0, 2 << 20)
    srd_w_select(S_LW)
    stamp(0)
    def dma_stage(s): dma_stage_g(s, V_XO, V_WO, S_M0X, S_M0W, S_XSO, S_WSO)
    SX = 24; V_NL = 33; V_SL = 116; V_SLA = 34; V_FL = 114; V_DUM = 32
    e(f"s_lshl_b32 {sr(S_T0)}, {sr(S_ROW)}, 10")
    A.vmem(f"buffer_load_dwordx4 {vr(SX,4)}, {vr(V_L16)}, {sr(SRD_Q,4)}, {sr(S_T0)} offen", "SX")
    A.vmem(f"buffer_load_dwordx4 {vr(SX+4,4)}, {vr(V_L16)}, {sr(SRD_Q,4)}, {sr(S_T0)} offen offset:1024", "SX")
    srd(SRD_DBG, 11, 256)
    lnn = A.newlabel("NN")
    e(f"s_cmp_lg_u32 {sr(S_WG)}, 0")
    e(f"s_cbranch_scc1 {lnn}")
    e(f"s_cmp_lg_u32 {sr(S_WAVE)}, 4")
    e(f"s_cbranch_scc1 {lnn}")
    e(f"s_memrealtime {sr(S_T0,2)}")
    e("s_waitcnt lgkmcnt(0)")
    e(f"s_or_b32 {sr(S_T0)}, {sr(S_T0)}, 1")
    e(f"v_mov_b32 {vr(t0)}, {sr(S_T0)}")
    e(f"buffer_store_dword {vr(t0)}, off, {sr(SRD_DBG,4)}, 0 sc0 sc1")
    A.label(lnn)
    if opts.get("tfirst", 1): e("s_barrier")
    dma_stage(0)
    if not opts.get("tfirst", 1): e("s_barrier")
    srd(SRD_K, 1, 2 << 20); srd(SRD_V, 2, 2 << 20)
    srd(SRD_WS, 12, 0x10000000); srd(SRD_WD, 9, WBYTES)
    def tiles():
        e(f"s_lshl_b32 {sr(S_T0)}, {sr(S_I2)}, 16")
        for srd_, base in ((SRD_K, L_KT), (SRD_V, L_VT)):
            for gi in range(2):
                e(f"s_add_u32 {sr(S_T1)}, {sr(S_LW)}, {4*gi}")
                e(f"s_lshl_b32 {sr(S_T2)}, {sr(S_T1)}, 13")
                e(f"s_add_u32 {sr(S_T2)}, {sr(S_T2)}, {sr(S_T0)}")
                e(f"s_lshl_b32 {sr(S_T1)}, {sr(S_T1)}, 10")
                e(f"s_add_u32 m0, {sr(S_T1)}, {base}")
                e("s_nop 0")
                A.vmem(f"buffer_load_dwordx4 {vr(V_TO)}, {sr(srd_,4)}, {sr(S_T2)} offen lds", "P")
    S_CIDX = S_C1
    HK = [88, 96]; HPB = 112
    def hk_loads():
        e(f"s_lshl_b32 {sr(S_T0)}, {sr(S_WG)}, 1")
        e(f"s_add_u32 {sr(S_T0)}, {sr(S_T0)}, {sr(S_CIDX)}")
        e(f"s_lshl_b32 {sr(S_T0)}, {sr(S_T0)}, 12")
        e(f"s_add_u32 {sr(SRD_SK)}, {sr(P+8)}, {sr(S_T0)}")
        e(f"s_addc_u32 {sr(SRD_SK+1)}, {sr(P+9)}, 0")
        e(f"s_mov_b32 {sr(SRD_SK+2)}, 4096")
        e(f"s_mov_b32 {sr(SRD_SK+3)}, 0x20000")
        e(f"s_and_b32 {sr(S_T1)}, {sr(S_LW)}, 1")
        e(f"s_lshl_b32 {sr(S_T1)}, {sr(S_T1)}, 11")
        for y in range(2):
            e(f"s_add_u32 {sr(S_T2)}, {sr(S_T1)}, {1024*y}")
            A.vmem(f"buffer_load_dwordx4 {vr(HK[y],4)}, {vr(V_L16)}, {sr(SRD_SK,4)}, {sr(S_T2)} offen", "HK")
            A.vmem(f"buffer_load_dwordx2 {vr(HK[y]+4,2)}, {vr(V_L16)}, {sr(SRD_SK,4)}, {sr(S_T2)} offen offset:16", "HK")
        e(f"v_cmp_eq_u32 vcc, 1, {L}")
        e(f"v_mov_b32 {vr(t5)}, 0x10000")
        e("s_nop 0")
        e(f"v_cndmask_b32 {vr(t5)}, {vr(t5)}, 0, vcc")
        A.vmem(f"buffer_load_dwordx2 {vr(HPB,2)}, {vr(t5)}, {sr(SRD_SK,4)}, 0 offen", "HK")
    def wd_touch():
        e(f"s_mul_i32 {sr(S_T0)}, {sr(S_WG)}, {43*128}")
        e(f"s_mul_i32 {sr(S_T1)}, {sr(S_LW)}, 11")
        e(f"v_add_u32 {vr(t4)}, {sr(S_T1)}, {L}")
        e(f"v_cmp_gt_u32 vcc, 11, {L}")
        e(f"v_lshlrev_b32 {vr(t4)}, 7, {vr(t4)}")
        e(f"v_add_u32 {vr(t4)}, {sr(S_T0)}, {vr(t4)}")
        e(f"v_mov_b32 {vr(t5)}, {BAD}")
        e(f"v_cndmask_b32 {vr(t4)}, {vr(t5)}, {vr(t4)}, vcc")
        A.vmem(f"buffer_load_dword {vr(V_DUM)}, {vr(t4)}, {sr(SRD_WD,4)}, 0 offen", "T2")
    e(f"s_lshr_b32 {sr(S_CIDX)}, {sr(S_LW)}, 1")
    PPOS = opts.get("ppos", -1)
    if PPOS < 0: tiles()
    A.vmem(f"buffer_load_dword {vr(V_NL)}, off, {sr(SRD_DBG,4)}, 0 sc1", "NL")
    e(f"v_lshlrev_b32 {vr(t0)}, 2, {L}")
    e(f"v_add_u32 {vr(t0)}, {L_FLAG}, {vr(t0)}")
    e(f"v_mov_b32 {vr(t1)}, 0")
    e(f"s_mov_b64 {sr(S_EX,2)}, exec")
    e("s_mov_b64 exec, 0xfffffff")
    e(f"ds_write_b32 {vr(t0)}, {vr(t1)}")
    e(f"s_mov_b64 exec, {sr(S_EX,2)}")
    A.wait_vm("SX")
    XU = 120; SA = 136
    for rr in range(2):
        for k in range(4):
            e(f"v_lshlrev_b32 {vr(XU+8*rr+2*k)}, 16, {vr(SX+4*rr+k)}")
            e(f"v_and_b32 {vr(XU+8*rr+2*k+1)}, 0xffff0000, {vr(SX+4*rr+k)}")
    def wave_reduce(regs):
        for sh in ("row_shr:1", "row_shr:2", "row_shr:4", "row_shr:8"):
            for r in regs: e(f"v_add_f32_dpp {vr(r)}, {vr(r)}, {vr(r)} {sh} row_mask:0xf bank_mask:0xf bound_ctrl:0")
            e("s_nop 0")
        for r in regs: e(f"v_add_f32_dpp {vr(r)}, {vr(r)}, {vr(r)} row_bcast:15 row_mask:0xa bank_mask:0xf")
        e("s_nop 0")
        for r in regs: e(f"v_add_f32_dpp {vr(r)}, {vr(r)}, {vr(r)} row_bcast:31 row_mask:0xc bank_mask:0xf")
        e("s_nop 1")
    for k in range(1, 8):
        for rr in range(2):
            b = XU + 8*rr
            if k == 1: e(f"v_add_f32 {vr(SA+rr)}, {vr(b)}, {vr(b+1)}")
            else: e(f"v_add_f32 {vr(SA+rr)}, {vr(SA+rr)}, {vr(b+k)}")
    e("s_nop 1")
    wave_reduce([SA, SA+1])
    e(f"v_readlane_b32 {sr(S_T0)}, {vr(SA)}, 63")
    e(f"v_readlane_b32 {sr(S_T1)}, {vr(SA+1)}, 63")
    e(f"v_mov_b32 {vr(SA+2)}, 0x3b000000")
    e("s_nop 0")
    e(f"v_mul_f32 {vr(SA+4)}, {sr(S_T0)}, {vr(SA+2)}")
    e(f"v_mul_f32 {vr(SA+5)}, {sr(S_T1)}, {vr(SA+2)}")
    for k in range(8):
        for rr in range(2): e(f"v_sub_f32 {vr(XU+8*rr+k)}, {vr(XU+8*rr+k)}, {vr(SA+4+rr)}")
    for k in range(8):
        for rr in range(2):
            b = XU + 8*rr
            if k == 0: e(f"v_mul_f32 {vr(SA+rr)}, {vr(b)}, {vr(b)}")
            else: e(f"v_fma_f32 {vr(SA+rr)}, {vr(b+k)}, {vr(b+k)}, {vr(SA+rr)}")
    e("s_nop 1")
    wave_reduce([SA, SA+1])
    e(f"v_readlane_b32 {sr(S_T0)}, {vr(SA)}, 63")
    e(f"v_readlane_b32 {sr(S_T1)}, {vr(SA+1)}, 63")
    e(f"v_cmp_eq_u32 vcc, 1, {L}")
    e("s_nop 0")
    e(f"v_mov_b32 {vr(SA)}, {sr(S_T0)}")
    e(f"v_mov_b32 {vr(SA+1)}, {sr(S_T1)}")
    e(f"v_cndmask_b32 {vr(SA)}, {vr(SA)}, {vr(SA+1)}, vcc")
    e(f"v_cndmask_b32 {vr(SA+4)}, {vr(SA+4)}, {vr(SA+5)}, vcc")
    e(f"v_mul_f32 {vr(SA)}, {vr(SA)}, {vr(SA+2)}")
    e(f"v_cvt_pk_bf16_f32 {vr(SA)}, {vr(SA)}, {vr(SA)}")
    e(f"v_lshlrev_b32 {vr(SA)}, 16, {vr(SA)}")
    e(f"v_add_f32 {vr(SA)}, 0x3727c5ac, {vr(SA)}")
    e(f"v_cvt_pk_bf16_f32 {vr(SA)}, {vr(SA)}, {vr(SA)}")
    e(f"v_lshlrev_b32 {vr(SA)}, 16, {vr(SA)}")
    e(f"v_sqrt_f32 {vr(SA)}, {vr(SA)}")
    e("s_nop 0")
    V_STP = 110
    e(f"v_cvt_pk_bf16_f32 {vr(V_STP)}, {vr(SA+4)}, {vr(SA)}")
    A.wait_vm("S0")
    e("s_waitcnt lgkmcnt(0)")
    e("s_barrier")
    stamp(1)
    def it_end(it, stages, waits=()):
        if opts.get("barstamp"): stamp(24 + it)
        if waits: A.wait_vm(*waits)
        e("s_waitcnt lgkmcnt(0)")
        if opts.get("barstamp"): stamp(32 + it)
        e("s_barrier")
        if opts.get("barstamp"): stamp(40 + it)
        for st_ in stages: st_()
        if opts.get("barstamp"): stamp(48 + it)
    def job_nonce_sts():
        lok = A.newlabel("NOK"); lre = A.newlabel("NRE")
        e(f"s_mov_b32 {sr(S_T3)}, 0x40000")
        A.label(lre)
        e(f"v_readfirstlane_b32 {sr(S_NONCE)}, {vr(V_NL)}")
        e("s_nop 3")
        e(f"s_cmp_lg_u32 {sr(S_NONCE)}, 0")
        e(f"s_cbranch_scc1 {lok}")
        e(f"s_sub_u32 {sr(S_T3)}, {sr(S_T3)}, 1")
        e(f"s_cmp_eq_u32 {sr(S_T3)}, 0")
        e(f"s_cbranch_scc1 {lok}")
        e("s_sleep 2")
        e(f"buffer_load_dword {vr(V_NL)}, off, {sr(SRD_DBG,4)}, 0 sc1")
        e("s_waitcnt vmcnt(0)")
        e(f"s_branch {lre}")
        A.label(lok)
        e(f"v_mov_b32 {vr(t0)}, {L_FLAG+32}")
        e(f"v_mov_b32 {vr(V_STP+1)}, {sr(S_NONCE)}")
        e(f"ds_write_b32 {vr(t0)}, {vr(V_STP+1)}")
        e(f"s_lshl_b32 {sr(S_T0)}, {sr(S_ROW)}, 3")
        e(f"s_add_u32 {sr(S_T0)}, {sr(S_T0)}, {WS_ST}")
        e(f"v_lshlrev_b32 {vr(t0)}, 3, {L}")
        e(f"s_mov_b64 {sr(S_EX,2)}, exec")
        e("s_mov_b64 exec, 3")
        A.vmem(f"buffer_store_dwordx2 {vr(V_STP,2)}, {vr(t0)}, {sr(SRD_WS,4)}, {sr(S_T0)} offen sc0 sc1", "STS")
        e(f"s_mov_b64 exec, {sr(S_EX,2)}")
    T = 128
    def job_tr_store():
        e(f"v_and_b32 {vr(t0)}, 3, {L}")
        e(f"v_bfe_u32 {vr(t1)}, {L}, 4, 1")
        e(f"v_lshl_add_u32 {vr(t0)}, {vr(t1)}, 2, {vr(t0)}")
        e(f"v_lshlrev_b32 {vr(t0)}, 3, {vr(t0)}")
        e(f"v_bfe_u32 {vr(t1)}, {L}, 2, 2")
        e(f"v_sub_u32 {vr(t0)}, {vr(t0)}, {vr(t1)}")
        e(f"v_add_u32 {vr(t0)}, 7, {vr(t0)}")
        e(f"v_lshrrev_b32 {vr(t3)}, 5, {L}")
        e(f"v_lshlrev_b32 {vr(t3)}, 3, {vr(t3)}")
        e(f"s_lshl_b32 {sr(S_T0)}, {sr(S_LW)}, 1")
        for h in range(2):
            if h == 1: e(f"v_subrev_u32 {vr(t0)}, 4, {vr(t0)}")
            e(f"v_bfe_u32 {vr(t1)}, {vr(t0)}, 1, 3")
            e(f"v_xor_b32 {vr(t1)}, {sr(S_T0)}, {vr(t1)}")
            e(f"v_lshlrev_b32 {vr(t1)}, 4, {vr(t1)}")
            e(f"v_lshl_add_u32 {vr(t1)}, {vr(t0)}, 7, {vr(t1)}")
            e(f"v_add_u32 {vr(t1)}, {vr(t1)}, {vr(t3)}")
            e(f"v_add_u32 {vr(t1)}, {L_KT}, {vr(t1)}")
            e(f"v_xor_b32 {vr(t2)}, 16, {vr(t1)}")
            for x, a in ((0, t1), (1, t2)):
                e(f"ds_read_b64_tr_b16 {vr(T+4*x+2*h,2)}, {vr(a)}")
                e(f"ds_read_b64_tr_b16 {vr(T+8+4*x+2*h,2)}, {vr(a)} offset:{L_VT-L_KT}")
        e(f"v_and_b32 {vr(t1)}, 3, {L}")
        e(f"v_lshrrev_b32 {vr(t2)}, 5, {L}")
        e(f"v_lshl_add_u32 {vr(t1)}, {vr(t2)}, 2, {vr(t1)}")
        e(f"v_lshlrev_b32 {vr(t1)}, 12, {vr(t1)}")
        e(f"v_bfe_u32 {vr(t2)}, {L}, 2, 3")
        e(f"v_lshlrev_b32 {vr(t2)}, 4, {vr(t2)}")
        e(f"v_sub_u32 {vr(t1)}, {vr(t1)}, {vr(t2)}")
        e(f"v_add_u32 {vr(t1)}, 4080, {vr(t1)}")
        e(f"s_lshl_b32 {sr(S_T0)}, {sr(S_J)}, 6")
        e(f"s_lshl_b32 {sr(S_T1)}, {sr(S_LW)}, 4")
        e(f"s_add_u32 {sr(S_T0)}, {sr(S_T0)}, {sr(S_T1)}")
        e(f"s_lshl_b32 {sr(S_T0)}, {sr(S_T0)}, 12")
        e(f"s_lshl_b32 {sr(S_T1)}, {sr(S_I2)}, 7")
        e(f"s_sub_u32 {sr(S_T0)}, {sr(S_T0)}, {sr(S_T1)}")
        e(f"v_add_u32 {vr(t1)}, {sr(S_T0)}, {vr(t1)}")
        e(f"v_add_u32 {vr(t2)}, {8*4096}, {vr(t1)}")
        e(f"s_mov_b32 {sr(S_T0)}, {WS_VT}")
        e("s_waitcnt lgkmcnt(0)")
        A.vmem(f"buffer_store_dwordx4 {vr(T,4)}, {vr(t1)}, {sr(SRD_WS,4)}, 0 offen sc0 sc1", "KVS")
        A.vmem(f"buffer_store_dwordx4 {vr(T+4,4)}, {vr(t2)}, {sr(SRD_WS,4)}, 0 offen sc0 sc1", "KVS")
        A.vmem(f"buffer_store_dwordx4 {vr(T+8,4)}, {vr(t1)}, {sr(SRD_WS,4)}, {sr(S_T0)} offen sc0 sc1", "KVS")
        A.vmem(f"buffer_store_dwordx4 {vr(T+12,4)}, {vr(t2)}, {sr(SRD_WS,4)}, {sr(S_T0)} offen sc0 sc1", "KVS")
    S_STO = S_X3
    def job_sl():
        e(f"s_lshl_b32 {sr(S_STO)}, {sr(S_RB)}, 7")
        e(f"s_lshl_b32 {sr(S_T1)}, {sr(S_LW)}, 5")
        e(f"s_add_u32 {sr(S_STO)}, {sr(S_STO)}, {sr(S_T1)}")
        e(f"s_lshl_b32 {sr(S_STO)}, {sr(S_STO)}, 3")
        e(f"s_add_u32 {sr(S_STO)}, {sr(S_STO)}, {WS_ST}")
        e(f"v_and_b32 {vr(V_SLA)}, 31, {L}")
        e(f"v_lshlrev_b32 {vr(V_SLA)}, 3, {vr(V_SLA)}")
        A.vmem(f"buffer_load_dwordx2 {vr(V_SL,2)}, {vr(V_SLA)}, {sr(SRD_WS,4)}, {sr(S_STO)} offen sc1", "SL")
    def job_kvf():
        A.wait_vm("KVS")
        e(f"s_lshl_b32 {sr(S_T0)}, {sr(S_J)}, 9")
        e(f"s_lshl_b32 {sr(S_T1)}, {sr(S_I2)}, 4")
        e(f"s_lshl_b32 {sr(S_T2)}, {sr(S_LW)}, 2")
        e(f"s_add_u32 {sr(S_T0)}, {sr(S_T0)}, {sr(S_T1)}")
        e(f"s_add_u32 {sr(S_T0)}, {sr(S_T0)}, {sr(S_T2)}")
        e(f"s_add_u32 {sr(S_T0)}, {sr(S_T0)}, {WS_FL+FL_KV}")
        flag_set(S_T0, t0)
    S_C, S_KVO, S_W, S_OKF = 62, 63, 64, 70
    def job_conv_scalars():
        e(f"s_lshl_b32 {sr(S_C)}, {sr(S_WG)}, 1")
        e(f"s_add_u32 {sr(S_C)}, {sr(S_C)}, {sr(S_CIDX)}")
        e(f"s_lshr_b32 {sr(S_KVO)}, {sr(S_C)}, 6")
        e(f"s_lshl_b32 {sr(S_KVO)}, {sr(S_KVO)}, 9")
        e(f"s_add_u32 {sr(S_KVO)}, {sr(S_KVO)}, {WS_FL+FL_KV}")
        e(f"s_lshl_b32 {sr(S_T0)}, {sr(S_C)}, 3")
        e(f"s_load_dwordx2 {sr(S_W,2)}, {sr(P+6,2)}, {sr(S_T0)}")
        e("s_waitcnt lgkmcnt(0)")
        e(f"s_and_b32 {sr(S_W+3)}, {sr(S_W+1)}, 0xffff0000")
        e(f"s_lshl_b32 {sr(S_W+2)}, {sr(S_W+1)}, 16")
        e(f"s_and_b32 {sr(S_W+1)}, {sr(S_W)}, 0xffff0000")
        e(f"s_lshl_b32 {sr(S_W)}, {sr(S_W)}, 16")
    def job_statchk():
        A.wait_vm("SL")
        lsr = A.newlabel("SR"); lso = A.newlabel("SO")
        e(f"s_mov_b32 {sr(S_T3)}, 0x40000")
        A.label(lsr)
        e(f"v_cmp_eq_u32 vcc, {sr(S_NONCE)}, {vr(V_SL+1)}")
        e("s_nop 1")
        e("s_cmp_eq_u64 vcc, -1")
        e(f"s_cbranch_scc1 {lso}")
        e(f"s_sub_u32 {sr(S_T3)}, {sr(S_T3)}, 1")
        e(f"s_cmp_eq_u32 {sr(S_T3)}, 0")
        e(f"s_cbranch_scc1 {lso}")
        e("s_sleep 2")
        e(f"buffer_load_dwordx2 {vr(V_SL,2)}, {vr(V_SLA)}, {sr(SRD_WS,4)}, {sr(S_STO)} offen sc1")
        e("s_waitcnt vmcnt(0)")
        e(f"s_branch {lsr}")
        A.label(lso)
        if TS:
            e(f"s_sub_u32 {sr(S_T0)}, 0x40064, {sr(S_T3)}")
            e("s_nop 0")
            e(f"v_writelane_b32 {vr(V_TS)}, {sr(S_T0)}, 41")
        e(f"v_and_b32 {vr(t1)}, 0xffff0000, {vr(V_SL)}")
        e(f"v_lshlrev_b32 {vr(V_SL)}, 16, {vr(V_SL)}")
        e(f"v_rcp_f32 {vr(V_SL+1)}, {vr(t1)}")
        e(f"s_lshl_b32 {sr(S_T0)}, {sr(S_LW)}, 8")
        e(f"s_add_u32 {sr(S_T0)}, {sr(S_T0)}, {L_STAT}")
        e(f"v_add_u32 {vr(t0)}, {sr(S_T0)}, {vr(V_SLA)}")
        e("s_nop 0")
        e(f"ds_write_b64 {vr(t0)}, {vr(V_SL,2)}")
    KR, VR = 128, 160
    def job_row_srds():
        e(f"s_lshl_b32 {sr(S_T0)}, {sr(S_C)}, 12")
        e(f"s_add_u32 {sr(SRD_K)}, {sr(P+24)}, {sr(S_T0)}")
        e(f"s_addc_u32 {sr(SRD_K+1)}, {sr(P+25)}, 0")
        e(f"s_mov_b32 {sr(SRD_K+2)}, 4096")
        e(f"s_mov_b32 {sr(SRD_K+3)}, 0x20000")
        e(f"s_add_u32 {sr(S_T0)}, {sr(S_T0)}, {WS_VT}")
        e(f"s_add_u32 {sr(SRD_V)}, {sr(P+24)}, {sr(S_T0)}")
        e(f"s_addc_u32 {sr(SRD_V+1)}, {sr(P+25)}, 0")
        e(f"s_mov_b32 {sr(SRD_V+2)}, 4096")
        e(f"s_mov_b32 {sr(SRD_V+3)}, 0x20000")
    def uk_loads(track):
        for q in range(4):
            if track:
                e(f"s_cmp_eq_u32 {sr(S_OKF)}, 1")
                e(f"s_cselect_b32 {sr(S_T2)}, {1024*q}, 0x40000000" if q == 0 else f"s_cselect_b32 {sr(S_T2)}, {sr(S_T1)}, {sr(S_T3)}")
                if q < 3:
                    e(f"s_movk_i32 {sr(S_T1)}, {1024*(q+1)}")
                    e(f"s_mov_b32 {sr(S_T3)}, 0x40000000")
            else:
                e(f"s_movk_i32 {sr(S_T2)}, {1024*q}")
            for txt in (f"buffer_load_dwordx4 {vr(KR+8*q,4)}, {vr(V_L16)}, {sr(SRD_K,4)}, {sr(S_T2)} offen{USC}",
                        f"buffer_load_dwordx2 {vr(KR+8*q+4,2)}, {vr(V_L16)}, {sr(SRD_K,4)}, {sr(S_T2)} offen offset:16{USC}",
                        f"buffer_load_dwordx4 {vr(VR+4*q,4)}, {vr(V_L16)}, {sr(SRD_V,4)}, {sr(S_T2)} offen{USC}"):
                if track: A.vmem(txt, "UK")
                else: e(txt)
    def job_pkv_check():
        A.wait_vm("PKV")
        flag_check_scc(V_FL, 2)
        e(f"s_cselect_b32 {sr(S_OKF)}, 1, 0")
        if TS:
            e(f"s_add_u32 {sr(S_T0)}, {sr(S_OKF)}, 100")
            e("s_nop 0")
            e(f"v_writelane_b32 {vr(V_TS)}, {sr(S_T0)}, 40")
        uk_loads(True)
    E = 36
    def kv_chunk(q):
        D = KR + 8*q; V = VR + 4*q
        for i in range(11):
            src = D + (i >> 1)
            e(f"v_and_b32 {vr(E+i)}, 0xffff0000, {vr(src)}" if i & 1 else f"v_lshlrev_b32 {vr(E+i)}, 16, {vr(src)}")
        for i in range(8):
            src = V + (i >> 1)
            e(f"v_and_b32 {vr(E+11+i)}, 0xffff0000, {vr(src)}" if i & 1 else f"v_lshlrev_b32 {vr(E+11+i)}, 16, {vr(src)}")
        for i in range(8): e(f"v_mul_f32 {vr(56+i)}, {sr(S_W+3)}, {vr(E+i+3)}")
        for i in range(8): e(f"v_fma_f32 {vr(56+i)}, {vr(E+i+2)}, {sr(S_W+2)}, {vr(56+i)}")
        for i in range(8): e(f"v_fma_f32 {vr(56+i)}, {vr(E+i+1)}, {sr(S_W+1)}, {vr(56+i)}")
        for i in range(8): e(f"v_fma_f32 {vr(56+i)}, {vr(E+i)}, {sr(S_W)}, {vr(56+i)}")
        for i in range(8): e(f"v_mul_f32 {vr(56+i)}, {vr(56+i)}, {vr(E+11+i)}")
        for k in range(4): e(f"v_cvt_pk_bf16_f32 {vr(D+k)}, {vr(56+2*k)}, {vr(56+2*k+1)}")
    S_DSO2, S_RA, S_RBB, S_RC = S_G4, S_X0, S_X1, S_X2
    S_KU2, S_KUN2, S_ROT2, S_OOB2 = 61, S_C0, S_G5, 60
    def job_wd_setup():
        ku_start(S_KU2, S_LW)
        e(f"s_cmp_lt_u32 {sr(S_LW)}, 2")
        e(f"s_cselect_b32 {sr(S_KUN2)}, 22, 21")
        e(f"s_mul_i32 {sr(S_ROT2)}, {sr(S_J)}, {opts.get('rot', 3)}")
        e(f"s_mov_b32 {sr(S_OOB2)}, 0x20000000")
        ring_bases(S_LW, S_RA, S_RBB, S_RC)
    def wd_dma(n):
        bi, off = ring_off(n); sb = (S_RA, S_RBB, S_RC)[bi]
        wd_soff(n, S_DSO2, S_ROT2, S_KUN2, S_KU2, S_OOB2)
        for a in range(2):
            e(f"s_add_u32 m0, {sr(sb)}, {off + 1024*a}")
            if a == 1: e(f"s_add_u32 {sr(S_DSO2)}, {sr(S_DSO2)}, 8192")
            else: e("s_nop 0")
            A.vmem(f"buffer_load_dwordx4 {vr(V_DO2)}, {sr(SRD_WD,4)}, {sr(S_DSO2)} offen lds", "WDP")
    def hk(w, addr, extra):
        O1, O2, O3 = 116, 120, 124
        for j in range(4):
            e(f"v_alignbit_b32 {vr(O1+j)}, {vr(w+j+1)}, {vr(w+j)}, 16")
            e(f"v_mov_b32 {vr(O2+j)}, {vr(w+j+1)}")
            e(f"v_alignbit_b32 {vr(O3+j)}, {vr(w+j+2)}, {vr(w+j+1)}, 16")
        e(f"ds_write_b128 {vr(addr)}, {vr(w,4)} offset:{extra}")
        e(f"ds_write_b128 {vr(addr)}, {vr(O1,4)} offset:{extra+HCOPY}")
        e(f"ds_write_b128 {vr(addr)}, {vr(O2,4)} offset:{extra+2*HCOPY}")
        e(f"ds_write_b128 {vr(addr)}, {vr(O3,4)} offset:{extra+3*HCOPY}")
        e("s_nop 1")
    S_RH, S_UB = 71, 3
    V_PF = 30
    def job_hankel():
        e(f"s_and_b32 {sr(S_RH)}, {sr(S_LW)}, 1")
        e(f"s_mul_i32 {sr(S_T0)}, {sr(S_CIDX)}, {HCH}")
        e(f"s_add_u32 {sr(S_T0)}, {sr(S_T0)}, {L_HANK}")
        e(f"s_lshl_b32 {sr(S_T1)}, {sr(S_RH)}, 11")
        e(f"s_add_u32 {sr(S_T1)}, {sr(S_T1)}, {sr(S_T0)}")
        e(f"v_add_u32 {vr(27)}, {sr(S_T0)}, {vr(V_L16)}")
        e(f"v_add_u32 {vr(28)}, {sr(S_T1)}, {vr(V_L16)}")
        for y in range(2): hk(HK[y], 28, 32 + 1024*y)
        lpb = A.newlabel("PB")
        e(f"s_cmp_lg_u32 {sr(S_RH)}, 0")
        e(f"s_cbranch_scc1 {lpb}")
        e(f"s_mov_b64 {sr(S_EX,2)}, exec")
        e("s_mov_b64 exec, 3")
        w = HK[0]
        for r in range(4): e(f"v_mov_b32 {vr(w+r)}, 0")
        e(f"v_mov_b32 {vr(w+4)}, {vr(HPB)}"); e(f"v_mov_b32 {vr(w+5)}, {vr(HPB+1)}")
        hk(w, 27, 0)
        e(f"s_mov_b64 exec, {sr(S_EX,2)}")
        A.label(lpb)
    V_DD = 32; V_CA = 35; V_CB = 29
    CACC = 192; CSET = [64, 128]
    def conv_addr():
        e(f"s_and_b32 {sr(S_RH)}, {sr(S_LW)}, 1")
        e(f"s_mul_i32 {sr(S_UB)}, {sr(S_LW)}, {UBSZ}")
        e(f"s_add_u32 {sr(S_UB)}, {sr(S_UB)}, {L_UB}")
        e(f"v_and_b32 {vr(t0)}, 15, {L}")
        e(f"v_lshrrev_b32 {vr(t1)}, 4, {L}")
        e(f"v_lshl_add_u32 {vr(t2)}, {vr(t1)}, 3, {vr(t0)}")
        e(f"v_add_u32 {vr(t2)}, 1, {vr(t2)}")
        e(f"v_and_b32 {vr(t3)}, 3, {vr(t2)}")
        e(f"v_sub_u32 {vr(t2)}, {vr(t2)}, {vr(t3)}")
        e(f"v_lshlrev_b32 {vr(t2)}, 1, {vr(t2)}")
        e(f"v_mul_u32_u24 {vr(t3)}, {HCOPY}, {vr(t3)}")
        e(f"v_add_u32 {vr(t2)}, {vr(t2)}, {vr(t3)}")
        e(f"s_mul_i32 {sr(S_T0)}, {sr(S_CIDX)}, {HCH}")
        e(f"s_lshl_b32 {sr(S_T1)}, {sr(S_RH)}, 8")
        e(f"s_add_u32 {sr(S_T0)}, {sr(S_T0)}, {sr(S_T1)}")
        e(f"s_add_u32 {sr(S_T0)}, {sr(S_T0)}, {L_HANK}")
        e(f"v_add_u32 {vr(V_CA)}, {sr(S_T0)}, {vr(t2)}")
        e(f"v_lshlrev_b32 {vr(t2)}, 1, {vr(t0)}")
        e(f"v_sub_u32 {vr(t2)}, {vr(t1)}, {vr(t2)}")
        e(f"v_add_u32 {vr(t2)}, 254, {vr(t2)}")
        e(f"v_lshlrev_b32 {vr(t2)}, 4, {vr(t2)}")
        e(f"s_add_u32 {sr(S_T0)}, {sr(S_UB)}, {sr(S_T1)}")
        e(f"s_sub_u32 {sr(S_T0)}, {sr(S_T0)}, 3584")
        e(f"v_add_u32 {vr(V_CB)}, {sr(S_T0)}, {vr(t2)}")
        for r in range(32): e(f"v_mov_b32 {vr(CACC+r)}, 0")
    def pt(it): return [tiles] if PPOS == it else []
    dma_stage(2)
    it_end(0, [lambda: dma_stage(3)] + pt(0), waits=())
    it_end(1, [lambda: dma_stage(4)] + pt(1), waits=("S2", "NL"))
    job_nonce_sts()
    TRI = {-1: 2, 0: 4, 1: 5}[PPOS]
    for it in range(2, 8):
        if it == TRI: job_tr_store()
        if it == opts.get('slit', 3): job_sl()
        if it == TRI + opts.get('kvfd', 2): job_kvf()
        if it == 4: job_conv_scalars(); job_row_srds() if False else None
        if it == 5: job_wd_setup()
        if it == 6: job_statchk(); conv_addr()
        if it == TRI + 3 and it <= 7:
            job_row_srds(); flag_issue(V_FL, 2, S_KVO, "PKV")
        if it == TRI + 4 and it <= 7: job_pkv_check()
        if it == TRI + 5 and it <= 7:
            lk7 = A.newlabel("K7")
            e(f"s_cmp_eq_u32 {sr(S_OKF)}, 1")
            e(f"s_cbranch_scc0 {lk7}")
            A.wait_vm("UK")
            kv_chunk(0); kv_chunk(1)
            A.label(lk7)
        if it == opts.get("hankit", 7): job_hankel()
        if it == 7: break
        st = []
        if it + 3 <= 7: st.append(lambda it=it: dma_stage(it + 3))
        if it == opts.get('hkit', 2): st.append(hk_loads)
        if it == opts.get('wtit', 3): st.append(wd_touch)
        if it == 5: st.append(lambda: [wd_dma(n) for n in range(0, 5)])
        if it == 6: st.append(lambda: [wd_dma(n) for n in range(5, 10)])
        w_ = [f"S{it+1}"]
        if it + 1 == TRI: w_.append("P")
        it_end(it, st, waits=tuple(w_))
    done_chunks01 = (TRI + 5 <= 7); done_check = (TRI + 4 <= 7); done_pkv = (TRI + 3 <= 7)
    e("s_waitcnt lgkmcnt(0)")
    e("s_barrier")
    stamp(3)
    wd_dma(10)
    if not done_pkv:
        job_row_srds(); flag_issue(V_FL, 2, S_KVO, "PKV")
    srd(SRD_AUX, 5, 1024)
    e(f"s_lshl_b32 {sr(S_T0)}, {sr(S_C)}, 1")
    A.vmem(f"buffer_load_ushort {vr(V_DD)}, off, {sr(SRD_AUX,4)}, {sr(S_T0)}", "DD")
    if not done_check: job_pkv_check()
    if opts.get("hankit", 7) > 7: job_hankel()
    e("s_waitcnt lgkmcnt(0)")
    e(f"s_lshl_b32 {sr(S_T0)}, {sr(S_LW)}, 2")
    e(f"s_add_u32 {sr(S_T0)}, {sr(S_T0)}, {L_FLAG}")
    e(f"v_mov_b32 {vr(V_PF)}, {sr(S_T0)}")
    e(f"v_mov_b32 {vr(V_PF+1)}, 1")
    e(f"ds_write_b32 {vr(V_PF)}, {vr(V_PF+1)} offset:96")
    A.wait_vm("WDP")
    e(f"ds_write_b32 {vr(V_PF)}, {vr(V_PF+1)} offset:16")
    lko2 = A.newlabel("KO2"); lko3 = A.newlabel("KO3")
    e(f"s_cmp_eq_u32 {sr(S_OKF)}, 1")
    e(f"s_cbranch_scc1 {lko2}")
    flag_wait_blocking(V_FL, 2, S_KVO, sleep=4)
    uk_loads(False)
    e("s_waitcnt vmcnt(0)")
    if done_chunks01:
        kv_chunk(0); kv_chunk(1)
    A.label(lko2)
    A.wait_vm("UK", "DD")
    if not done_chunks01:
        kv_chunk(0); kv_chunk(1)
    kv_chunk(2); kv_chunk(3)
    e(f"v_add_u32 {vr(26)}, {sr(S_UB)}, {vr(V_L16)}")
    for q in range(4): e(f"ds_write_b128 {vr(26)}, {vr(KR+8*q,4)} offset:{1024*q}")
    for r in range(4): e(f"v_mov_b32 {vr(52+r)}, 0")
    e(f"v_and_b32 {vr(t0)}, 31, {L}")
    e(f"v_lshlrev_b32 {vr(t0)}, 4, {vr(t0)}")
    e(f"v_add_u32 {vr(t0)}, {sr(S_UB)}, {vr(t0)}")
    e(f"ds_write_b128 {vr(t0)}, {vr(52,4)} offset:4096")
    e(f"v_lshlrev_b32 {vr(V_DD)}, 16, {vr(V_DD)}")
    e(f"s_lshl_b32 {sr(S_T0)}, {sr(S_LW)}, 2")
    e(f"s_xor_b32 {sr(S_T0)}, {sr(S_T0)}, 4")
    e(f"s_add_u32 {sr(S_T0)}, {sr(S_T0)}, {L_FLAG+96}")
    lds_spin(S_T0, t1, t0)
    e("s_waitcnt lgkmcnt(0)")
    if opts.get("gate", 1):
        e(f"s_lshl_b32 {sr(S_T0)}, {sr(S_LW)}, 2")
        e(f"s_add_u32 {sr(S_T0)}, {sr(S_T0)}, {L_FLAG+48}")
        lds_spin(S_T0, t1, t0)
    stamp(4)
    def creads(r, st):
        out = []; b = CSET[st]
        for sp in range(8):
            out.append(f"ds_read_b64 {vr(b+4*sp,2)}, {vr(V_CA)} offset:{512*sp+64*r}")
            out.append(f"ds_read_b64 {vr(b+4*sp+2,2)}, {vr(V_CA)} offset:{512*sp+64*r+8}")
            out.append(f"ds_read_b128 {vr(b+32+4*sp,4)}, {vr(V_CB)} offset:{512*(7-sp)+64*r}")
        return out
    def cmfmas(st):
        out = []; b = CSET[st]
        for t in range(8):
            for sp in range(t + 1):
                out.append(f"v_mfma_f32_16x16x32_bf16 {vr(CACC+4*t,4)}, {vr(b+4*sp,4)}, {vr(b+32+4*(t-sp),4)}, {vr(CACC+4*t,4)}")
        return out
    for x in creads(0, 0): e(x)
    for r in range(4):
        e("s_waitcnt lgkmcnt(0)")
        mf = cmfmas(r & 1)
        rd = creads(r + 1, (r + 1) & 1) if r < 3 else []
        for idx, m in enumerate(mf):
            e(m)
            if idx < len(rd): e(rd[idx])
    stamp(5)
    V_UU = 64
    e("s_nop 7")
    e(f"v_and_b32 {vr(t0)}, 15, {L}")
    e(f"v_lshrrev_b32 {vr(t1)}, 4, {L}")
    e(f"v_lshlrev_b32 {vr(t2)}, 2, {vr(t0)}")
    e(f"v_add_u32 {vr(t2)}, {vr(t2)}, {vr(t1)}")
    e(f"v_lshlrev_b32 {vr(t2)}, 3, {vr(t2)}")
    e(f"s_lshl_b32 {sr(S_T1)}, {sr(S_RH)}, 11")
    e(f"s_sub_u32 {sr(S_T0)}, {sr(S_UB)}, {sr(S_T1)}")
    e(f"s_add_u32 {sr(S_T0)}, {sr(S_T0)}, {4088 - 1536}")
    e(f"v_sub_u32 {vr(t3)}, {sr(S_T0)}, {vr(t2)}")
    for tt in range(4): e(f"ds_read_b64 {vr(V_UU+2*tt,2)}, {vr(t3)} offset:{512*(3-tt)}")
    e("s_waitcnt lgkmcnt(0)")
    e(f"v_add_u32 {vr(t3)}, {sr(S_UB)}, {vr(V_L16)}")
    l1 = A.newlabel("PR"); l2 = A.newlabel("PR")
    e(f"s_cmp_eq_u32 {sr(S_RH)}, 0")
    e(f"s_cbranch_scc1 {l1}")
    for tt in range(4): e(f"ds_write_b128 {vr(t3)}, {vr(CACC+4*tt,4)} offset:{1024*tt}")
    e("s_nop 1")
    for r in range(16): e(f"v_mov_b32 {vr(CACC+r)}, {vr(CACC+16+r)}")
    e(f"s_branch {l2}")
    A.label(l1)
    for tt in range(4): e(f"ds_write_b128 {vr(t3)}, {vr(CACC+16+4*tt,4)} offset:{1024*tt}")
    A.label(l2)
    e("s_waitcnt lgkmcnt(0)")
    e(f"ds_write_b32 {vr(V_PF)}, {vr(V_PF+1)}")
    e(f"s_lshl_b32 {sr(S_T0)}, {sr(S_LW)}, 2")
    e(f"s_add_u32 {sr(S_T0)}, {sr(S_T0)}, {L_FLAG}")
    e(f"s_xor_b32 {sr(S_T0)}, {sr(S_T0)}, 4")
    lds_spin(S_T0, t1, t0)
    e(f"s_xor_b32 {sr(S_T0)}, {sr(S_LW)}, 1")
    e(f"s_mul_i32 {sr(S_T0)}, {sr(S_T0)}, {UBSZ}")
    e(f"s_add_u32 {sr(S_T0)}, {sr(S_T0)}, {L_UB}")
    e(f"v_add_u32 {vr(t3)}, {sr(S_T0)}, {vr(V_L16)}")
    V_PP = 80
    for tt in range(4): e(f"ds_read_b128 {vr(V_PP+4*tt,4)}, {vr(t3)} offset:{1024*tt}")
    e("s_waitcnt lgkmcnt(0)")
    for r in range(16): e(f"v_add_f32 {vr(CACC+r)}, {vr(CACC+r)}, {vr(V_PP+r)}")
    V_YP = 96
    for tt in range(4):
        y = CACC + 4*tt; u0, u1 = V_UU + 2*tt, V_UU + 2*tt + 1; U = 112
        e(f"v_and_b32 {vr(U+0)}, 0xffff0000, {vr(u1)}")
        e(f"v_lshlrev_b32 {vr(U+1)}, 16, {vr(u1)}")
        e(f"v_and_b32 {vr(U+2)}, 0xffff0000, {vr(u0)}")
        e(f"v_lshlrev_b32 {vr(U+3)}, 16, {vr(u0)}")
        for k in range(4): e(f"v_mul_f32 {vr(U+k)}, {vr(U+k)}, {vr(V_DD)}")
        e(f"v_cvt_pk_bf16_f32 {vr(U+4)}, {vr(U+0)}, {vr(U+1)}")
        e(f"v_cvt_pk_bf16_f32 {vr(U+5)}, {vr(U+2)}, {vr(U+3)}")
        e(f"v_cvt_pk_bf16_f32 {vr(U+6)}, {vr(y+0)}, {vr(y+1)}")
        e(f"v_cvt_pk_bf16_f32 {vr(U+7)}, {vr(y+2)}, {vr(y+3)}")
        for h in range(2):
            e(f"v_lshlrev_b32 {vr(U+2*h)}, 16, {vr(U+4+h)}")
            e(f"v_and_b32 {vr(U+2*h+1)}, 0xffff0000, {vr(U+4+h)}")
            e(f"v_lshlrev_b32 {vr(y+2*h)}, 16, {vr(U+6+h)}")
            e(f"v_and_b32 {vr(y+2*h+1)}, 0xffff0000, {vr(U+6+h)}")
        for k in range(4): e(f"v_add_f32 {vr(y+k)}, {vr(y+k)}, {vr(U+k)}")
        e(f"v_cvt_pk_bf16_f32 {vr(V_YP+2*tt)}, {vr(y+0)}, {vr(y+1)}")
        e(f"v_cvt_pk_bf16_f32 {vr(V_YP+2*tt+1)}, {vr(y+2)}, {vr(y+3)}")
    e("s_nop 1")
    for p in range(2):
        e(f"v_permlane16_swap_b32 {vr(V_YP+4*p)}, {vr(V_YP+4*p+2)}")
        e(f"v_permlane16_swap_b32 {vr(V_YP+4*p+1)}, {vr(V_YP+4*p+3)}")
    e(f"v_and_b32 {vr(t0)}, 15, {L}")
    e(f"v_lshrrev_b32 {vr(t1)}, 4, {L}")
    e(f"v_and_b32 {vr(t2)}, 1, {vr(t1)}")
    e(f"v_lshlrev_b32 {vr(t2)}, 9, {vr(t2)}")
    e(f"v_and_b32 {vr(t1)}, 2, {vr(t1)}")
    e(f"v_lshlrev_b32 {vr(t1)}, 3, {vr(t1)}")
    e(f"v_lshlrev_b32 {vr(t0)}, 5, {vr(t0)}")
    e(f"v_add3_u32 {vr(t0)}, {vr(t0)}, {vr(t1)}, {vr(t2)}")
    e(f"s_lshl_b32 {sr(S_T0)}, {sr(S_C)}, 12")
    e(f"s_lshl_b32 {sr(S_T1)}, {sr(S_RH)}, 11")
    e(f"s_add_u32 {sr(S_T0)}, {sr(S_T0)}, {sr(S_T1)}")
    e(f"s_add_u32 {sr(S_T0)}, {sr(S_T0)}, {WS_YYT}")
    for p in range(2):
        e(f"buffer_store_dwordx4 {vr(V_YP+4*p,4)}, {vr(t0)}, {sr(SRD_WS,4)}, {sr(S_T0)} offen offset:{1024*p} sc0 sc1")
    e("s_waitcnt vmcnt(0)")
    e(f"s_lshr_b32 {sr(S_T0)}, {sr(S_C)}, 6")
    e(f"s_lshl_b32 {sr(S_T0)}, {sr(S_T0)}, 9")
    e(f"s_and_b32 {sr(S_T1)}, {sr(S_WG)}, 31")
    e(f"s_lshl_b32 {sr(S_T1)}, {sr(S_T1)}, 4")
    e(f"s_lshl_b32 {sr(S_T2)}, {sr(S_LW)}, 2")
    e(f"s_add_u32 {sr(S_T0)}, {sr(S_T0)}, {sr(S_T1)}")
    e(f"s_add_u32 {sr(S_T0)}, {sr(S_T0)}, {sr(S_T2)}")
    e(f"s_add_u32 {sr(S_T0)}, {sr(S_T0)}, {WS_FL+FL_Y}")
    flag_set(S_T0, t0)
    stamp(6)
    ly1 = A.newlabel("YP"); ly2 = A.newlabel("YP")
    e(f"s_cmp_lg_u32 {sr(S_LW)}, 0")
    e(f"s_cbranch_scc1 {ly1}")
    if opts.get("ygate"):
        e(f"s_mov_b32 {sr(S_T0)}, {L_FLAG+64}")
        lds_spin(S_T0, t1, t0, sleep=4)
    e(f"s_lshl_b32 {sr(S_T0)}, {sr(S_J)}, 9")
    e(f"s_add_u32 {sr(S_T0)}, {sr(S_T0)}, {WS_FL+FL_Y}")
    flag_wait_blocking(V_FL, 2, S_T0, sleep=opts.get('ysleep', 8))
    e(f"v_mov_b32 {vr(t0)}, {L_FLAG+68}")
    e(f"v_mov_b32 {vr(t1)}, 1")
    e(f"ds_write_b32 {vr(t0)}, {vr(t1)}")
    e(f"s_branch {ly2}")
    A.label(ly1)
    e(f"s_mov_b32 {sr(S_T0)}, {L_FLAG+68}")
    lds_spin(S_T0, t1, t0, sleep=4)
    A.label(ly2)
    stamp(7)
    e(f"v_lshrrev_b32 {vr(t0)}, 3, {L}")
    e(f"v_and_b32 {vr(t1)}, 7, {L}")
    e(f"s_lshl_b32 {sr(S_T0)}, {sr(S_LW)}, 4")
    e(f"v_add_u32 {vr(t0)}, {sr(S_T0)}, {vr(t0)}")
    e(f"v_lshlrev_b32 {vr(t2)}, 12, {vr(t0)}")
    e(f"v_lshl_add_u32 {vr(t2)}, {vr(t1)}, 4, {vr(t2)}")
    e(f"s_lshl_b32 {sr(S_T0)}, {sr(S_J)}, 18")
    e(f"s_lshl_b32 {sr(S_T1)}, {sr(S_I2)}, 7")
    e(f"s_add_u32 {sr(S_T0)}, {sr(S_T0)}, {sr(S_T1)}")
    e(f"s_add_u32 {sr(S_T0)}, {sr(S_T0)}, {WS_YYT}")
    e(f"buffer_load_dwordx4 {vr(64,4)}, {vr(t2)}, {sr(SRD_WS,4)}, {sr(S_T0)} offen sc1")
    e(f"v_add_u32 {vr(t2)}, {8*4096}, {vr(t2)}")
    e(f"buffer_load_dwordx4 {vr(68,4)}, {vr(t2)}, {sr(SRD_WS,4)}, {sr(S_T0)} offen sc1")
    e(f"v_mul_u32_u24 {vr(t3)}, {YTROW}, {vr(t0)}")
    e(f"v_lshl_add_u32 {vr(t3)}, {vr(t1)}, 4, {vr(t3)}")
    e(f"v_add_u32 {vr(t3)}, {L_YT}, {vr(t3)}")
    e("s_waitcnt vmcnt(1)")
    e(f"ds_write_b128 {vr(t3)}, {vr(64,4)}")
    e("s_waitcnt vmcnt(0)")
    e(f"ds_write_b128 {vr(t3)}, {vr(68,4)} offset:{8*YTROW}")
    srd(SRD_OUT, 10, 2 << 20)

    A.label("L_FINAL")
    e("s_setprio 0")
    FT, FD, FO = 28, 29, 30
    e(f"v_lshrrev_b32 {vr(t0)}, 5, {L}")
    e(f"v_and_b32 {vr(t1)}, 3, {L}")
    e(f"v_lshl_add_u32 {vr(FT)}, {vr(t0)}, 2, {vr(t1)}")
    e(f"s_lshl_b32 {sr(S_T0)}, {sr(S_WAVE)}, 3")
    e(f"v_add_u32 {vr(FT)}, {sr(S_T0)}, {vr(FT)}")
    e(f"v_bfe_u32 {vr(FD)}, {L}, 2, 3")
    e(f"s_lshl_b32 {sr(S_T0)}, {sr(S_I2)}, 16")
    e(f"s_lshl_b32 {sr(S_T1)}, {sr(S_J)}, 7")
    e(f"s_add_u32 {sr(S_T0)}, {sr(S_T0)}, {sr(S_T1)}")
    e(f"v_lshlrev_b32 {vr(FO)}, 10, {vr(FT)}")
    e(f"v_lshl_add_u32 {vr(FO)}, {vr(FD)}, 4, {vr(FO)}")
    e(f"v_add_u32 {vr(FO)}, {sr(S_T0)}, {vr(FO)}")
    FX_, FS_ = 32, 36
    e(f"buffer_load_dwordx4 {vr(FX_,4)}, {vr(FO)}, {sr(SRD_Q,4)}, 0 offen")
    S_FSO = S_G5
    e(f"s_lshl_b32 {sr(S_FSO)}, {sr(S_I2)}, 9")
    e(f"s_add_u32 {sr(S_FSO)}, {sr(S_FSO)}, {WS_ST}")
    V_FSA = 31
    e(f"v_lshlrev_b32 {vr(V_FSA)}, 3, {vr(FT)}")
    e(f"buffer_load_dwordx2 {vr(FS_,2)}, {vr(V_FSA)}, {sr(SRD_WS,4)}, {sr(S_FSO)} offen sc1")
    e("s_waitcnt lgkmcnt(0)")
    e("s_barrier")
    stamp(9)
    FP = 40
    e(f"v_and_b32 {vr(t0)}, 31, {vr(FT)}")
    e(f"v_mul_u32_u24 {vr(t0)}, 272, {vr(t0)}")
    e(f"v_lshl_add_u32 {vr(t0)}, {vr(FD)}, 5, {vr(t0)}")
    e(f"s_cmp_lt_u32 {sr(S_WAVE)}, 4")
    e(f"s_cselect_b32 {sr(S_T0)}, {RA}, {RB_}")
    e(f"v_add_u32 {vr(t0)}, {sr(S_T0)}, {vr(t0)}")
    for kg in range(4):
        e(f"ds_read_b128 {vr(FP+8*kg,4)}, {vr(t0)} offset:{kg*10240}")
        e(f"ds_read_b128 {vr(FP+8*kg+4,4)}, {vr(t0)} offset:{kg*10240+16}")
    FY = 72
    e(f"v_bfe_u32 {vr(t2)}, {L}, 2, 2")
    e(f"v_and_b32 {vr(t3)}, 3, {L}")
    e(f"v_bfe_u32 {vr(t4)}, {L}, 4, 1")
    e(f"v_lshl_add_u32 {vr(t3)}, {vr(t4)}, 2, {vr(t3)}")
    e(f"v_lshl_add_u32 {vr(t2)}, {vr(t3)}, 3, {vr(t2)}")
    e(f"v_mul_u32_u24 {vr(t2)}, {YTROW}, {vr(t2)}")
    e(f"v_lshrrev_b32 {vr(t3)}, 5, {L}")
    e(f"v_lshlrev_b32 {vr(t3)}, 3, {vr(t3)}")
    e(f"s_lshl_b32 {sr(S_T0)}, {sr(S_WAVE)}, 4")
    e(f"s_add_u32 {sr(S_T0)}, {sr(S_T0)}, {L_YT}")
    e(f"v_add3_u32 {vr(t2)}, {vr(t2)}, {vr(t3)}, {sr(S_T0)}")
    e(f"ds_read_b64_tr_b16 {vr(FY,2)}, {vr(t2)}")
    e(f"ds_read_b64_tr_b16 {vr(FY+2,2)}, {vr(t2)} offset:{4*YTROW}")
    e("s_waitcnt lgkmcnt(2)")
    for kg in range(1, 4):
        for k in range(8): e(f"v_add_f32 {vr(FP+k)}, {vr(FP+k)}, {vr(FP+8*kg+k)}")
    O = FP; T = 48; XV = 56; YV = 64
    for k in range(0, 8, 2): e(f"v_cvt_pk_bf16_f32 {vr(T+k)}, {vr(O+k)}, {vr(O+k+1)}")
    for k in range(0, 8, 2):
        e(f"v_and_b32 {vr(O+k+1)}, 0xffff0000, {vr(T+k)}")
        e(f"v_lshlrev_b32 {vr(O+k)}, 16, {vr(T+k)}")
    e(f"s_mov_b32 {sr(S_T0)}, 0xbfb8aa3b")
    for k in range(8): e(f"v_mul_f32 {vr(T+k)}, {sr(S_T0)}, {vr(O+k)}")
    for k in range(8): e(f"v_exp_f32 {vr(T+k)}, {vr(T+k)}")
    for k in range(8): e(f"v_add_f32 {vr(T+k)}, 1.0, {vr(T+k)}")
    for k in range(8): e(f"v_rcp_f32 {vr(T+k)}, {vr(T+k)}")
    e("s_nop 0")
    for k in range(8): e(f"v_mul_f32 {vr(O+k)}, {vr(O+k)}, {vr(T+k)}")
    e("s_waitcnt vmcnt(0) lgkmcnt(0)")
    lf1 = A.newlabel("FS"); lf2 = A.newlabel("FS")
    e(f"s_mov_b32 {sr(S_T3)}, 0x40000")
    A.label(lf1)
    e(f"v_cmp_eq_u32 vcc, {sr(S_NONCE)}, {vr(FS_+1)}")
    e("s_nop 1")
    e("s_cmp_eq_u64 vcc, -1")
    e(f"s_cbranch_scc1 {lf2}")
    e(f"s_sub_u32 {sr(S_T3)}, {sr(S_T3)}, 1")
    e(f"s_cmp_eq_u32 {sr(S_T3)}, 0")
    e(f"s_cbranch_scc1 {lf2}")
    e(f"buffer_load_dwordx2 {vr(FS_,2)}, {vr(V_FSA)}, {sr(SRD_WS,4)}, {sr(S_FSO)} offen sc1")
    e("s_waitcnt vmcnt(0)")
    e(f"s_branch {lf1}")
    A.label(lf2)
    for k in range(4):
        e(f"v_lshlrev_b32 {vr(XV+2*k)}, 16, {vr(FX_+k)}")
        e(f"v_and_b32 {vr(XV+2*k+1)}, 0xffff0000, {vr(FX_+k)}")
        e(f"v_lshlrev_b32 {vr(YV+2*k)}, 16, {vr(FY+k)}")
        e(f"v_and_b32 {vr(YV+2*k+1)}, 0xffff0000, {vr(FY+k)}")
    e(f"v_and_b32 {vr(FS_+1)}, 0xffff0000, {vr(FS_)}")
    e(f"v_lshlrev_b32 {vr(FS_)}, 16, {vr(FS_)}")
    e(f"v_rcp_f32 {vr(FS_+1)}, {vr(FS_+1)}")
    for k in range(8): e(f"v_sub_f32 {vr(T+k)}, {vr(XV+k)}, {vr(FS_)}")
    def round8(b):
        for k in range(0, 8, 2): e(f"v_cvt_pk_bf16_f32 {vr(b+k)}, {vr(b+k)}, {vr(b+k+1)}")
        for k in range(0, 8, 2):
            e(f"v_and_b32 {vr(b+k+1)}, 0xffff0000, {vr(b+k)}")
            e(f"v_lshlrev_b32 {vr(b+k)}, 16, {vr(b+k)}")
    if not opts.get("lightfinal"): round8(T)
    for k in range(8): e(f"v_mul_f32 {vr(T+k)}, {vr(T+k)}, {vr(FS_+1)}")
    round8(T)
    for k in range(8): e(f"v_mul_f32 {vr(T+k)}, {vr(T+k)}, {vr(YV+k)}")
    if not opts.get("lightfinal"):
        round8(T); round8(O)
    for k in range(8): e(f"v_mul_f32 {vr(T+k)}, {vr(T+k)}, {vr(O+k)}")
    if not opts.get("lightfinal"): round8(T)
    for k in range(8): e(f"v_add_f32 {vr(T+k)}, {vr(T+k)}, {vr(XV+k)}")
    for k in range(4): e(f"v_cvt_pk_bf16_f32 {vr(FY+k)}, {vr(T+2*k)}, {vr(T+2*k+1)}")
    e(f"buffer_store_dwordx4 {vr(FY,4)}, {vr(FO)}, {sr(SRD_OUT,4)}, 0 offen" + (" sc0 sc1" if opts.get("outwt") else (" nt" if opts.get("outnt") else "")))
    stamp(10)
    stamp_flush()
    A.label("L_END")
    e("s_endpgm")
    A.label("L_CODE_END")

    body = A.text()
    hdr = open("cdna_kernels/" + NAME + ".s.ref").read().split("; Override launch geometry")[0]
    out = hdr + "; Override launch geometry by editing the next line.\n"
    out += f"; @launch grid=(256,1,1) block=(512,1,1) lds={LDS_TOTAL}\n"
    out += f""".amdgcn_target "amdgcn-amd-amdhsa--gfx950"
.text
.globl {NAME}_kernel
.p2align 8
.type {NAME}_kernel,@function
{NAME}_kernel:
"""
    out += body
    out += f""".section .rodata,"a"
.p2align 6
.amdhsa_kernel {NAME}_kernel
  .amdhsa_next_free_vgpr 256
  .amdhsa_next_free_sgpr 102
  .amdhsa_accum_offset 256
  .amdhsa_group_segment_fixed_size 0
  .amdhsa_kernarg_size 104
  .amdhsa_user_sgpr_count 2
  .amdhsa_user_sgpr_kernarg_segment_ptr 1
  .amdhsa_system_sgpr_workgroup_id_x 1
.end_amdhsa_kernel
"""
    return out

if __name__ == "__main__":
    opts = {}
    outp = sys.argv[1]
    for a in sys.argv[2:]:
        k, _, v = a.partition("=")
        opts[k] = (int(v) if v.lstrip("-").isdigit() else (v or True))
    open(outp, "w").write(gen(opts))
```

```python
import sys, struct

NAME = "recurrent_scan__ssm_conv_h3__glu_gated_geglu__prompt"
f2u = lambda x: struct.unpack("<I", struct.pack("<f", x))[0]

class Asm:
    def __init__(self):
        self.lines = []; self.nlabel = 0; self.vm = []; self.cap = None
    def e(self, s):
        if self.cap is not None: self.cap.append(("  " + s, None))
        else: self.lines.append("  " + s)
    def label(self, l):
        assert self.cap is None, l
        self.lines.append(l + ":")
    def newlabel(self, p="L"):
        self.nlabel += 1; return f"{p}_{self.nlabel}"
    def text(self): return "\n".join(self.lines) + "\n"
    def vmem(self, s, tag):
        if self.cap is not None:
            self.cap.append(("  " + s, tag)); return
        self.e(s); self.vm.append(tag)
    def capture(self, fn):
        assert self.cap is None
        self.cap = []
        fn()
        out = self.cap; self.cap = None
        return out
    def emit_list(self, lst):
        for line, tag in lst:
            self.lines.append(line)
            if tag is not None: self.vm.append(tag)
    def merge(self, a, b):
        groups = []; cur = []
        for it in a:
            cur.append(it)
            if it[1] is not None: groups.append(cur); cur = []
        if cur: groups.append(cur)
        n = len(groups); out = []; k = 0
        for gi, g in enumerate(groups):
            out += g
            upto = (len(b) * (gi + 1)) // n
            out += b[k:upto]; k = upto
        out += b[k:]
        return out
    def wait_vm(self, *tags):
        assert self.cap is None
        last = -1
        for i, t in enumerate(self.vm):
            if t in tags: last = i
        assert last >= 0, tags
        n = len(self.vm) - 1 - last
        n = min(n, 63)
        self.e(f"s_waitcnt vmcnt({n})")
        return n

def vr(a, n=1): return f"v{a}" if n == 1 else f"v[{a}:{a+n-1}]"
def sr(a, n=1): return f"s{a}" if n == 1 else f"s[{a}:{a+n-1}]"

S, D, F = 2048, 512, 1376
WROW = F * 2
WBYTES = 512 * WROW
WS_KVT, WS_YYT, WS_HF, WS_ST, WS_FL, WS_TS = 0, 2 << 20, 4 << 20, 12 << 20, 13 << 20, 16 << 20
WS_VT = 14 << 20
FL_KV, FL_ST, FL_H, FL_Y = 0, 4096, 8192, 12288
STAGE = 40960
L_HANK = 122880
HCOPY = 4160
HCH = 4 * HCOPY
L_MISC = L_HANK + 2 * HCH
L_CS = L_MISC
L_STAT = L_MISC + 1536
L_FLAG = L_MISC + 2560
LDS_TOTAL = 163840
L_KT, L_VT = L_HANK, L_HANK + 8192
RA, RB_ = 2 * STAGE, 0
L_UB = STAGE
UBSZ = 4608
L_YT = L_UB + 4 * UBSZ
YTROW = 144
RC = L_YT + 64 * YTROW
NR = 11
def ring_off(n):
    if n < 5: return (0, n * 2048)
    if n < 10: return (1, (n - 5) * 2048)
    return (2, 0)

SRD_Q, SRD_K, SRD_V, SRD_W, SRD_WD, SRD_WS, SRD_DBG, SRD_OUT, SRD_SK, SRD_AUX = 4, 8, 12, 16, 20, 24, 28, 32, 36, 40
P = 48
S_WG = 2
S_WAVE, S_RB, S_CP, S_I2, S_J, S_F0, S_N32, S_A, S_B = 76, 77, 78, 79, 80, 81, 82, 83, 84
S_NONCE = 85
S_T0, S_T1, S_T2, S_T3, S_T4, S_T5 = 86, 87, 88, 89, 90, 91
S_G0, S_G1, S_G2, S_G3, S_G4, S_G5 = 92, 93, 94, 95, 96, 97
S_C0, S_C1 = 98, 99
S_EX = 100
S_TSP = 74
S_X0, S_X1, S_X2, S_X3 = 44, 45, 46, 47

def gen(opts):
    A = Asm(); e = A.e
    TS = opts.get("ts", False)
    HSC = "" if opts.get("hplain", 1) else " sc1"
    USC = "" if opts.get("uplain", 1) else " sc1"
    t0, t1, t2, t3, t4, t5 = 8, 9, 10, 11, 12, 13
    V_LANE = 3; L = vr(V_LANE)
    V_TS = 15

    def stamp(idx, dyn=None):
        if not TS: return
        e(f"{'s_memtime' if opts.get('cyc') else 's_memrealtime'} {sr(S_TSP,2)}")
        e("s_waitcnt lgkmcnt(0)")
        if dyn is None:
            e(f"v_writelane_b32 {vr(V_TS)}, {sr(S_TSP)}, {idx}")
        else:
            e(f"s_add_u32 m0, {sr(dyn)}, {idx}")
            e("s_nop 0")
            e(f"v_writelane_b32 {vr(V_TS)}, {sr(S_TSP)}, m0")
    def stamp_flush():
        if not TS: return
        e(f"s_lshl_b32 {sr(S_TSP+1)}, {sr(S_WG)}, 3")
        e(f"s_add_u32 {sr(S_TSP+1)}, {sr(S_TSP+1)}, {sr(S_WAVE)}")
        e(f"s_lshl_b32 {sr(S_TSP+1)}, {sr(S_TSP+1)}, 8")
        e(f"s_add_u32 {sr(S_TSP+1)}, {sr(S_TSP+1)}, {WS_TS}")
        e(f"v_lshlrev_b32 v14, 2, {L}")
        e(f"buffer_store_dword {vr(V_TS)}, v14, {sr(SRD_WS,4)}, {sr(S_TSP+1)} offen")

    def srd(dst, pidx, nbytes):
        e(f"s_mov_b32 {sr(dst)}, {sr(P+2*pidx)}")
        e(f"s_mov_b32 {sr(dst+1)}, {sr(P+2*pidx+1)}")
        e(f"s_mov_b32 {sr(dst+2)}, {nbytes}")
        e(f"s_mov_b32 {sr(dst+3)}, 0x20000")

    def flag_issue(vdst, nw, soff_sgpr, tag):
        e(f"v_lshlrev_b32 {vr(t5)}, {1 + nw}, {L}")
        op = "buffer_load_dword" if nw == 1 else "buffer_load_dwordx2"
        A.vmem(f"{op} {vr(vdst,nw)}, {vr(t5)}, {sr(SRD_WS,4)}, {sr(soff_sgpr)} offen sc1", tag)
    def flag_check_scc(vdst, nw):
        e(f"v_cmp_eq_u32 vcc, {sr(S_NONCE)}, {vr(vdst)}")
        if nw == 2:
            e(f"v_cmp_eq_u32 {sr(S_T4,2)}, {sr(S_NONCE)}, {vr(vdst+1)}")
            e("s_nop 1")
            e(f"s_and_b64 vcc, vcc, {sr(S_T4,2)}")
        else:
            e("s_nop 1")
        e("s_cmp_eq_u64 vcc, -1")
    def flag_wait_blocking(vdst, nw, soff_sgpr, sleep=4):
        l = A.newlabel("POLL"); d = A.newlabel("POLLD")
        n0 = len(A.vm)
        e(f"s_mov_b32 {sr(S_T3)}, 0x40000")
        A.label(l)
        flag_issue(vdst, nw, soff_sgpr, "poll")
        e("s_waitcnt vmcnt(0)")
        flag_check_scc(vdst, nw)
        e(f"s_cbranch_scc1 {d}")
        e(f"s_sub_u32 {sr(S_T3)}, {sr(S_T3)}, 1")
        e(f"s_cmp_eq_u32 {sr(S_T3)}, 0")
        e(f"s_cbranch_scc1 {d}")
        e(f"s_sleep {sleep}")
        e(f"s_branch {l}")
        A.label(d)
        del A.vm[n0:]
    def flag_set(soff_sgpr, vtmp):
        e(f"v_mov_b32 {vr(vtmp)}, {sr(S_NONCE)}")
        e(f"s_mov_b64 {sr(S_EX,2)}, exec")
        e("s_mov_b64 exec, 1")
        A.vmem(f"buffer_store_dword {vr(vtmp)}, off, {sr(SRD_WS,4)}, {sr(soff_sgpr)} sc0 sc1", "flag")
        e(f"s_mov_b64 exec, {sr(S_EX,2)}")
    def lds_spin(addr_sgpr, vt, va, sleep=1):
        l = A.newlabel("LS"); d = A.newlabel("LSD")
        e(f"v_mov_b32 {vr(va)}, {sr(addr_sgpr)}")
        e(f"s_mov_b32 {sr(S_T3)}, 0x200000")
        A.label(l)
        e(f"ds_read_b32 {vr(vt)}, {vr(va)}")
        e("s_waitcnt lgkmcnt(0)")
        e(f"v_readfirstlane_b32 {sr(S_T2)}, {vr(vt)}")
        e("s_nop 3")
        e(f"s_cmp_eq_u32 {sr(S_T2)}, 1")
        e(f"s_cbranch_scc1 {d}")
        e(f"s_sub_u32 {sr(S_T3)}, {sr(S_T3)}, 1")
        e(f"s_cmp_eq_u32 {sr(S_T3)}, 0")
        e(f"s_cbranch_scc1 {d}")
        e(f"s_sleep {sleep}")
        e(f"s_branch {l}")
        A.label(d)
    def wd_voffset(dst):
        e(f"v_lshrrev_b32 {vr(t0)}, 3, {L}")
        e(f"v_and_b32 {vr(t1)}, 7, {L}")
        e(f"v_bfe_u32 {vr(t2)}, {L}, 4, 1")
        e(f"v_lshlrev_b32 {vr(t2)}, 2, {vr(t2)}")
        e(f"v_xor_b32 {vr(t1)}, {vr(t1)}, {vr(t2)}")
        e(f"v_lshlrev_b32 {vr(t1)}, 4, {vr(t1)}")
        e(f"v_lshl_add_u32 {vr(t1)}, {vr(t0)}, 10, {vr(t1)}")
        e(f"s_lshl_b32 {sr(S_T1)}, {sr(S_J)}, 7")
        e(f"v_add_u32 {vr(dst)}, {sr(S_T1)}, {vr(t1)}")
    def ku_start(dst, kg):
        e(f"s_mul_i32 {sr(dst)}, {sr(kg)}, 22")
        e(f"s_cmp_eq_u32 {sr(kg)}, 3")
        e(f"s_cselect_b32 {sr(S_T1)}, 1, 0")
        e(f"s_sub_u32 {sr(dst)}, {sr(dst)}, {sr(S_T1)}")
    def unit_at(n, dst, rot, kun):
        e(f"s_add_u32 {sr(dst)}, {sr(rot)}, {n}")
        e(f"s_cmp_ge_u32 {sr(dst)}, 22")
        e(f"s_cselect_b32 {sr(S_T5)}, 22, 0")
        e(f"s_sub_u32 {sr(dst)}, {sr(dst)}, {sr(S_T5)}")
        e(f"s_cmp_lt_u32 {sr(dst)}, {sr(kun)}")
    def wd_soff(n, dst, rot, kun, ku0, oob):
        unit_at(n, dst, rot, kun)
        e(f"s_cselect_b32 {sr(S_T5)}, 1, 0")
        e(f"s_add_u32 {sr(dst)}, {sr(dst)}, {sr(ku0)}")
        e(f"s_lshl_b32 {sr(dst)}, {sr(dst)}, 14")
        e(f"s_cmp_eq_u32 {sr(S_T5)}, 1")
        e(f"s_cselect_b32 {sr(dst)}, {sr(dst)}, {sr(oob)}")
    def ring_bases(kg, ra, rb, rc):
        e(f"s_mul_i32 {sr(ra)}, {sr(kg)}, 10240")
        e(f"s_add_u32 {sr(rb)}, {sr(ra)}, {RB_}")
        e(f"s_add_u32 {sr(ra)}, {sr(ra)}, {RA}")
        e(f"s_lshl_b32 {sr(rc)}, {sr(kg)}, 11")
        e(f"s_add_u32 {sr(rc)}, {sr(rc)}, {RC}")

    def loader_setup(lw, V_XO, V_WO, S_M0X, S_M0W):
        e(f"v_lshrrev_b32 {vr(t0)}, 3, {L}")
        e(f"v_lshrrev_b32 {vr(t1)}, 4, {L}")
        e(f"v_and_b32 {vr(t2)}, 7, {L}")
        e(f"s_lshl_b32 {sr(S_T2)}, {sr(S_RB)}, 7")
        e(f"s_lshl_b32 {sr(S_T3)}, {sr(lw)}, 5")
        e(f"s_add_u32 {sr(S_T2)}, {sr(S_T2)}, {sr(S_T3)}")
        for a in range(2):
            e(f"v_add_u32 {vr(t3)}, {4*a}, {vr(t1)}")
            e(f"v_xor_b32 {vr(t3)}, {vr(t3)}, {vr(t2)}")
            e(f"v_lshlrev_b32 {vr(t3)}, 4, {vr(t3)}")
            e(f"v_add_u32 {vr(t4)}, {sr(S_T2)}, {vr(t0)}")
            e(f"v_add_u32 {vr(t4)}, {8*a}, {vr(t4)}")
            e(f"v_lshl_add_u32 {vr(V_XO+a)}, {vr(t4)}, 10, {vr(t3)}")
        e(f"s_and_b32 {sr(S_T1)}, {sr(lw)}, 1")
        e(f"s_lshl_b32 {sr(S_T3)}, {sr(S_T1)}, 1")
        e(f"s_lshr_b32 {sr(S_T4)}, {sr(lw)}, 1")
        e(f"s_lshl_b32 {sr(S_T4)}, {sr(S_T4)}, 5")
        e(f"s_lshl_b32 {sr(S_T5)}, {sr(S_F0)}, 1")
        e(f"s_movk_i32 {sr(S_T0)}, {WROW}")
        for i in range(3):
            e(f"v_add_u32 {vr(t0)}, {64*i}, {L}")
            e(f"v_lshrrev_b32 {vr(t1)}, 4, {vr(t0)}")
            e(f"v_mul_u32_u24 {vr(t1)}, 43, {vr(t1)}")
            e(f"v_lshrrev_b32 {vr(t1)}, 7, {vr(t1)}")
            e(f"v_mul_u32_u24 {vr(t2)}, 48, {vr(t1)}")
            e(f"v_sub_u32 {vr(t2)}, {vr(t0)}, {vr(t2)}")
            e(f"v_lshrrev_b32 {vr(t3)}, 4, {vr(t2)}")
            e(f"v_bfe_u32 {vr(t4)}, {vr(t2)}, 2, 2")
            e(f"v_and_b32 {vr(t2)}, 3, {vr(t2)}")
            e(f"v_xor_b32 {vr(t2)}, {sr(S_T3)}, {vr(t2)}")
            e(f"v_lshl_add_u32 {vr(t2)}, {vr(t3)}, 2, {vr(t2)}")
            e(f"v_lshl_add_u32 {vr(t1)}, {vr(t1)}, 2, {vr(t4)}")
            e(f"v_add_u32 {vr(t1)}, {sr(S_T4)}, {vr(t1)}")
            e(f"v_mul_u32_u24 {vr(t1)}, {sr(S_T0)}, {vr(t1)}")
            e(f"v_lshl_add_u32 {vr(t2)}, {vr(t2)}, 4, {vr(t1)}")
            e(f"v_add_u32 {vr(V_WO+i)}, {sr(S_T5)}, {vr(t2)}")
        e(f"s_lshl_b32 {sr(S_M0X)}, {sr(lw)}, 12")
        e(f"s_mul_i32 {sr(S_M0W)}, {sr(S_T1)}, 12288")
        e(f"s_lshr_b32 {sr(S_T4)}, {sr(lw)}, 1")
        e(f"s_mul_i32 {sr(S_T4)}, {sr(S_T4)}, 6144")
        e(f"s_add_u32 {sr(S_M0W)}, {sr(S_M0W)}, {sr(S_T4)}")
        e(f"s_add_u32 {sr(S_M0W)}, {sr(S_M0W)}, 16384")
    def srd_w_select(lw):
        e(f"s_and_b32 {sr(S_T0)}, {sr(lw)}, 1")
        e(f"s_cmp_eq_u32 {sr(S_T0)}, 0")
        e(f"s_cselect_b32 {sr(SRD_W)}, {sr(P+14)}, {sr(P+16)}")
        e(f"s_cselect_b32 {sr(SRD_W+1)}, {sr(P+15)}, {sr(P+17)}")
        e(f"s_mov_b32 {sr(SRD_W+2)}, {WBYTES}")
        e(f"s_mov_b32 {sr(SRD_W+3)}, 0x20000")
    def dma_stage_g(s, V_XO, V_WO, S_M0X, S_M0W, S_XSO, S_WSO):
        slot = (s % 3) * STAGE
        e(f"s_mov_b32 {sr(S_XSO)}, {s*128}")
        e(f"s_add_u32 m0, {sr(S_M0X)}, {slot}")
        for a in range(4):
            if a == 2: e(f"s_mov_b32 {sr(S_XSO)}, {s*128+16384}")
            else: e("s_nop 0")
            A.vmem(f"buffer_load_dwordx4 {vr(V_XO+(a&1))}, {sr(SRD_Q,4)}, {sr(S_XSO)} offen lds", f"S{s}")
            if a < 3: e("s_add_u32 m0, m0, 1024")
        e(f"s_mov_b32 {sr(S_WSO)}, {s*64*WROW}")
        e(f"s_add_u32 m0, {sr(S_M0W)}, {slot}")
        for blk in range(2):
            for i in range(3):
                if blk == 1 and i == 0: e(f"s_mov_b32 {sr(S_WSO)}, {s*64*WROW+16*WROW}")
                else: e("s_nop 0")
                A.vmem(f"buffer_load_dwordx4 {vr(V_WO+i)}, {sr(SRD_W,4)}, {sr(S_WSO)} offen lds", f"S{s}")
                if not (blk == 1 and i == 2): e("s_add_u32 m0, m0, 1024")

    if TS: e("s_memrealtime s[44:45]")
    e(f"s_cmp_ge_u32 {sr(S_WG)}, 256")
    e("s_cbranch_scc1 L_END")
    e(f"s_load_dwordx16 {sr(P,16)}, s[0:1], 0")
    e(f"s_load_dwordx8 {sr(P+16,8)}, s[0:1], 64")
    e(f"s_load_dwordx2 {sr(P+24,2)}, s[0:1], 96")
    e(f"s_getpc_b64 {sr(S_T0,2)}")
    e("v_lshlrev_b32 v1, 6, v0")
    e(f"v_cmp_gt_u32 vcc, L_CODE_END-{NAME}_kernel, v1")
    e(f"s_and_saveexec_b64 {sr(S_EX,2)}, vcc")
    e(f"global_load_dword v2, v1, {sr(S_T0,2)}")
    e(f"s_mov_b64 exec, {sr(S_EX,2)}")
    e(f"v_and_b32 {L}, 63, v0")
    e("v_lshrrev_b32 v4, 6, v0")
    e(f"s_and_b32 {sr(S_T0)}, {sr(S_WG)}, 7")
    e(f"v_readfirstlane_b32 {sr(S_WAVE)}, v4")
    e(f"s_lshr_b32 {sr(S_T1)}, {sr(S_WG)}, 3")
    e(f"s_and_b32 {sr(S_T2)}, {sr(S_T0)}, 1")
    e(f"s_lshl_b32 {sr(S_T2)}, {sr(S_T2)}, 3")
    e(f"s_and_b32 {sr(S_T3)}, {sr(S_T1)}, 7")
    e(f"s_add_u32 {sr(S_RB)}, {sr(S_T2)}, {sr(S_T3)}")
    e(f"s_lshr_b32 {sr(S_T2)}, {sr(S_T0)}, 1")
    e(f"s_lshl_b32 {sr(S_T2)}, {sr(S_T2)}, 2")
    e(f"s_lshr_b32 {sr(S_T3)}, {sr(S_T1)}, 3")
    e(f"s_add_u32 {sr(S_CP)}, {sr(S_T2)}, {sr(S_T3)}")
    e(f"s_lshl_b32 {sr(S_T2)}, {sr(S_T0)}, 2")
    e(f"s_and_b32 {sr(S_T3)}, {sr(S_T1)}, 3")
    e(f"s_add_u32 {sr(S_I2)}, {sr(S_T2)}, {sr(S_T3)}")
    e(f"s_lshr_b32 {sr(S_J)}, {sr(S_T1)}, 2")
    e(f"s_mul_i32 {sr(S_T2)}, {sr(S_CP)}, 96")
    e(f"s_lshl_b32 {sr(S_T3)}, {sr(S_CP)}, 6")
    e(f"s_add_u32 {sr(S_T3)}, {sr(S_T3)}, 352")
    e(f"s_cmp_lt_u32 {sr(S_CP)}, 11")
    e(f"s_cselect_b32 {sr(S_F0)}, {sr(S_T2)}, {sr(S_T3)}")
    e(f"s_cselect_b32 {sr(S_N32)}, 3, 2")
    if TS:
        e(f"v_mov_b32 {vr(V_TS)}, 0")
        e("s_waitcnt lgkmcnt(0)")
        e(f"v_writelane_b32 {vr(V_TS)}, s44, 63")
        e(f"s_memrealtime s[44:45]")
        e("s_waitcnt lgkmcnt(0)")
        e(f"v_writelane_b32 {vr(V_TS)}, s44, 62")
    e(f"s_cmp_ge_u32 {sr(S_WAVE)}, 4")
    e("s_cbranch_scc1 L_HELPER")

    A.vm = ["code"]
    e(f"s_setprio {opts.get('cprio', 2)}")
    e(f"s_and_b32 {sr(S_A)}, {sr(S_WAVE)}, 1")
    e(f"s_lshr_b32 {sr(S_B)}, {sr(S_WAVE)}, 1")
    FS = [16, 36]
    V_XR, V_WR, V_XR2, V_WR2 = 56, 60, 66, 70
    ACC = 160
    e(f"v_and_b32 {vr(t0)}, 31, {L}")
    e(f"v_lshrrev_b32 {vr(t1)}, 5, {L}")
    e(f"v_bfe_u32 {vr(t2)}, {vr(t0)}, 1, 3")
    e(f"v_xor_b32 {vr(t2)}, {vr(t2)}, {vr(t1)}")
    e(f"s_lshl_b32 {sr(S_T0)}, {sr(S_A)}, 1")
    e(f"v_xor_b32 {vr(t2)}, {sr(S_T0)}, {vr(t2)}")
    e(f"s_lshl_b32 {sr(S_T0)}, {sr(S_A)}, 6")
    e(f"v_add_u32 {vr(t0)}, {sr(S_T0)}, {vr(t0)}")
    e(f"v_lshlrev_b32 {vr(t0)}, 7, {vr(t0)}")
    for ks in range(4):
        e(f"v_xor_b32 {vr(t3)}, {2*ks}, {vr(t2)}")
        e(f"v_lshl_add_u32 {vr(V_XR+ks)}, {vr(t3)}, 4, {vr(t0)}")
    e(f"v_bfe_u32 {vr(t0)}, {L}, 4, 1")
    e(f"v_lshrrev_b32 {vr(t1)}, 5, {L}")
    e(f"v_bfe_u32 {vr(t2)}, {L}, 2, 2")
    e(f"v_bfe_u32 {vr(t3)}, {L}, 1, 1")
    e(f"v_and_b32 {vr(t4)}, 1, {L}")
    e(f"s_lshl_b32 {sr(S_T0)}, {sr(S_B)}, 1")
    e(f"v_add_u32 {vr(t3)}, {sr(S_T0)}, {vr(t3)}")
    e(f"v_lshlrev_b32 {vr(t5)}, 1, {vr(t0)}")
    e(f"v_xor_b32 {vr(t3)}, {vr(t3)}, {vr(t5)}")
    e(f"v_lshlrev_b32 {vr(t3)}, 4, {vr(t3)}")
    e(f"v_lshl_add_u32 {vr(t3)}, {vr(t4)}, 3, {vr(t3)}")
    e(f"v_lshl_add_u32 {vr(t3)}, {vr(t2)}, 6, {vr(t3)}")
    e(f"v_mul_u32_u24 {vr(t1)}, 1536, {vr(t1)}")
    e(f"v_mul_u32_u24 {vr(t0)}, 12288, {vr(t0)}")
    e(f"v_add3_u32 {vr(t3)}, {vr(t3)}, {vr(t1)}, {vr(t0)}")
    e(f"v_add_u32 {vr(t3)}, 16384, {vr(t3)}")
    e(f"s_mul_i32 {sr(S_T1)}, {sr(S_A)}, 3072")
    for i in range(3):
        e(f"s_cmp_eq_u32 {sr(S_A)}, 0")
        e(f"s_cselect_b32 {sr(S_T0)}, {i*256}, {(2-i)*256}")
        e(f"s_add_u32 {sr(S_T2)}, {sr(S_T0)}, {sr(S_T1)}")
        e(f"v_add_u32 {vr(V_WR+i)}, {sr(S_T2)}, {vr(t3)}")
        e(f"s_sub_u32 {sr(S_T2)}, {sr(S_T0)}, {sr(S_T1)}")
        e(f"v_add_u32 {vr(V_WR+3+i)}, {sr(S_T2)}, {vr(t3)}")
    for ks in range(4): e(f"v_add_u32 {vr(V_XR2+ks)}, {2*STAGE}, {vr(V_XR+ks)}")
    for i in range(6): e(f"v_add_u32 {vr(V_WR2+i)}, {2*STAGE}, {vr(V_WR+i)}")
    loader_setup(S_WAVE, 94, 96, S_X0, S_X1)
    for r in range(96): e(f"v_mov_b32 {vr(ACC+r)}, 0")
    for r in range(12): e(f"v_mov_b32 {vr(80+r)}, 0")
    e(f"v_and_b32 {vr(t0)}, 15, {L}")
    e(f"v_bfe_u32 {vr(t1)}, {L}, 4, 1")
    e(f"v_cmp_eq_u32 vcc, {vr(t0)}, {vr(t1)}")
    e(f"v_mov_b32 {vr(t2)}, 0x3f803f80")
    e("s_nop 0")
    e(f"v_cndmask_b32 {vr(76)}, 0, {vr(t2)}, vcc")
    for r in range(1, 4): e(f"v_mov_b32 {vr(76+r)}, {vr(76)}")
    e("s_waitcnt lgkmcnt(0)")
    srd(SRD_Q, 0, 2 << 20); srd(SRD_WD, 9, WBYTES); srd(SRD_OUT, 10, 2 << 20); srd(SRD_WS, 12, 0x10000000)
    V_TX, V_TW, V_DUM = 100, 101, 92
    BAD = 0x7fffff00
    e(f"s_and_b32 {sr(S_T0)}, {sr(S_CP)}, 3")
    e(f"s_lshl_b32 {sr(S_T0)}, {sr(S_T0)}, 5")
    e(f"s_lshl_b32 {sr(S_T1)}, {sr(S_RB)}, 7")
    e(f"s_add_u32 {sr(S_T0)}, {sr(S_T0)}, {sr(S_T1)}")
    e(f"v_and_b32 {vr(t1)}, 31, {L}")
    e(f"v_add_u32 {vr(t1)}, {sr(S_T0)}, {vr(t1)}")
    e(f"v_lshlrev_b32 {vr(t1)}, 10, {vr(t1)}")
    e(f"v_lshrrev_b32 {vr(t0)}, 5, {L}")
    e(f"v_lshl_add_u32 {vr(V_TX)}, {vr(t0)}, 7, {vr(t1)}")
    e(f"v_cmp_gt_u32 vcc, 32, {L}")
    e(f"v_mov_b32 {vr(t2)}, {BAD}")
    e("s_nop 0")
    e(f"v_cndmask_b32 {vr(V_TX+2)}, {vr(t2)}, {vr(V_TX)}, vcc")
    e(f"s_and_b32 {sr(S_T0)}, {sr(S_RB)}, 7")
    e(f"s_lshl_b32 {sr(S_T0)}, {sr(S_T0)}, 3")
    e(f"v_lshrrev_b32 {vr(t0)}, 4, {L}")
    e(f"v_lshlrev_b32 {vr(t3)}, 6, {vr(t0)}")
    e(f"v_bfe_u32 {vr(t1)}, {L}, 1, 3")
    e(f"v_add3_u32 {vr(t3)}, {vr(t3)}, {vr(t1)}, {sr(S_T0)}")
    e(f"s_movk_i32 {sr(S_T1)}, {WROW}")
    e(f"v_mul_lo_u32 {vr(t1)}, {vr(t3)}, {sr(S_T1)}")
    e(f"v_and_b32 {vr(t2)}, 1, {L}")
    e(f"v_lshl_add_u32 {vr(t1)}, {vr(t2)}, 7, {vr(t1)}")
    e(f"s_lshl_b32 {sr(S_T1)}, {sr(S_F0)}, 1")
    e(f"v_add_u32 {vr(V_TW)}, {sr(S_T1)}, {vr(t1)}")
    e(f"v_mov_b32 {vr(t2)}, {BAD}")
    e(f"v_cmp_gt_u32 vcc, 48, {L}")
    e("s_nop 0")
    e(f"v_cndmask_b32 {vr(V_TW+2)}, {vr(t2)}, {vr(V_TW)}, vcc")
    e(f"v_cmp_gt_u32 vcc, 16, {L}")
    e("s_nop 1")
    e(f"v_cndmask_b32 {vr(V_TW+3)}, {vr(t2)}, {vr(V_TW)}, vcc")
    e(f"s_cmp_eq_u32 {sr(S_WAVE)}, 1")
    e(f"s_cselect_b32 {sr(SRD_K)}, {sr(P+14)}, {sr(P+16)}")
    e(f"s_cselect_b32 {sr(SRD_K+1)}, {sr(P+15)}, {sr(P+17)}")
    e(f"s_mov_b32 {sr(SRD_K+2)}, {WBYTES}")
    e(f"s_mov_b32 {sr(SRD_K+3)}, 0x20000")
    NPT = opts.get("npt", 3)
    def touch(stage_lo, nst):
        l1 = A.newlabel("TC"); l2 = A.newlabel("TC")
        e(f"s_cmp_eq_u32 {sr(S_WAVE)}, 0"); e(f"s_cbranch_scc0 {l1}")
        if nst == 1:
            e(f"s_movk_i32 {sr(S_T0)}, {stage_lo*128}")
            e(f"buffer_load_dword {vr(V_DUM)}, {vr(V_TX+2)}, {sr(SRD_Q,4)}, {sr(S_T0)} offen")
        else:
            e(f"s_movk_i32 {sr(S_T0)}, {stage_lo*128}")
            e(f"buffer_load_dword {vr(V_DUM)}, {vr(V_TX)}, {sr(SRD_Q,4)}, {sr(S_T0)} offen")
            e(f"s_movk_i32 {sr(S_T0)}, {(stage_lo+2)*128}")
            e(f"buffer_load_dword {vr(V_DUM)}, {vr(V_TX+2)}, {sr(SRD_Q,4)}, {sr(S_T0)} offen")
        e(f"s_branch {l2}")
        A.label(l1)
        e(f"s_mov_b32 {sr(S_T0)}, {stage_lo*64*WROW}")
        e(f"s_cmp_eq_u32 {sr(S_WAVE)}, 3")
        e(f"s_cselect_b32 {sr(S_T0)}, 0x40000000, {sr(S_T0)}")
        e(f"buffer_load_dword {vr(V_DUM)}, {vr(V_TW+3 if nst == 1 else V_TW+2)}, {sr(SRD_K,4)}, {sr(S_T0)} offen")
        A.label(l2)
    touch(1, 3)
    if opts.get("tlb"):
        ltl = A.newlabel("TLB")
        e(f"s_cmp_eq_u32 {sr(S_WAVE)}, 3"); e(f"s_cbranch_scc0 {ltl}")
        e(f"v_lshlrev_b32 {vr(t1)}, 18, {L}")
        e(f"s_lshl_b32 {sr(S_T0)}, {sr(S_WG)}, 7")
        e(f"buffer_load_dword {vr(V_DUM)}, {vr(t1)}, {sr(SRD_WS,4)}, {sr(S_T0)} offen")
        e(f"v_lshlrev_b32 {vr(t1)}, 15, {L}")
        e(f"buffer_load_dword {vr(V_DUM)}, {vr(t1)}, {sr(SRD_OUT,4)}, {sr(S_T0)} offen")
        A.label(ltl)
    TLEAD = opts.get("tlead", 4)
    for st_ in range(4, TLEAD): touch(st_, 1)
    if opts.get("tfirst", 1): e("s_barrier")
    srd_w_select(S_WAVE)
    dma_stage_g(1, 94, 96, S_X0, S_X1, S_X2, S_X3)
    TOUCH2 = []
    stamp(0)
    def reads(stage, ks, st):
        b = FS[st]; out = []
        slot = stage % 3
        xr, wr, o = (V_XR, V_WR, slot*STAGE) if slot < 2 else (V_XR2, V_WR2, 0)
        out.append(f"ds_read_b128 {vr(b,4)}, {vr(xr+ks)} offset:{o}")
        wa = wr + (3 if ks & 1 else 0)
        for h in range(2): out.append(f"ds_read_b64_tr_b16 {vr(b+8+2*h,2)}, {vr(wa)} offset:{o+ks*3072+h*768}")
        out.append(f"ds_read_b128 {vr(b+4,4)}, {vr(xr+ks)} offset:{o+4096}")
        for i in range(1, 3):
            for h in range(2): out.append(f"ds_read_b64_tr_b16 {vr(b+8+4*i+2*h,2)}, {vr(wa+i)} offset:{o+ks*3072+h*768}")
        return out
    V_SEL = 76; V_CSA = 80
    def kstep(ks, st, nxt, job=()):
        b = FS[st]; mf = []
        for i in range(3):
            for tt in range(2):
                a = ACC + 16*(2*i+tt)
                mf.append((f"v_mfma_f32_32x32x16_bf16 {vr(a,16)}, {vr(b+8+4*i,4)}, {vr(b+4*tt,4)}, {vr(a,16)}", 4))
            if ks % 2 == 0 and not opts.get("nocs"):
                mf.append((f"v_mfma_f32_16x16x32_bf16 {vr(V_CSA+4*i,4)}, {vr(V_SEL,4)}, {vr(b+8+4*i,4)}, {vr(V_CSA+4*i,4)}", 2))
        fill = list(nxt) + list(job)
        cap = sum(c for _, c in mf)
        k = 0; done = 0
        for m, c in mf:
            e(m)
            done += c
            upto = (len(fill) * done + cap - 1) // cap
            for x in fill[k:upto]: e(x)
            k = max(k, upto)
    job_at = {}
    e("s_barrier")
    stamp(1)
    for x in reads(0, 0, 0): e(x)
    for it in range(8):
        for ks in range(4):
            g = 4*it + ks
            if ks == 3 and it < 7:
                e("s_waitcnt vmcnt(1) lgkmcnt(0)" if it == 0 else "s_waitcnt lgkmcnt(0)")
                if opts.get("barstamp"): stamp(24 + it)
                e("s_barrier")
                if opts.get("barstamp"): stamp(32 + it)
            else:
                e("s_waitcnt lgkmcnt(0)")
            if ks == 1 and it + TLEAD <= 7: touch(it + TLEAD, 1)
            if ks < 3: nxt = reads(it, ks + 1, (g + 1) & 1)
            elif it < 7: nxt = reads(it + 1, 0, (g + 1) & 1)
            else: nxt = []
            kstep(ks, g & 1, nxt, job_at.get(g, []))
        if opts.get("itstamp"): stamp(16 + it)
    stamp(2)
    e("s_nop 7")
    e(f"s_lshl_b32 {sr(S_T0)}, {sr(S_B)}, 1")
    e(f"s_add_u32 {sr(S_T0)}, {sr(S_T0)}, {sr(S_A)}")
    e(f"s_mul_i32 {sr(S_T0)}, {sr(S_T0)}, 384")
    e(f"s_add_u32 {sr(S_T0)}, {sr(S_T0)}, {L_CS}")
    e(f"v_lshlrev_b32 {vr(t0)}, 2, {L}")
    e(f"v_add_u32 {vr(t0)}, {sr(S_T0)}, {vr(t0)}")
    e(f"s_mov_b64 {sr(S_EX,2)}, exec")
    e("s_mov_b64 exec, 0xffff")
    for i in range(3):
        e(f"s_cmp_eq_u32 {sr(S_A)}, 0")
        e(f"s_cselect_b32 {sr(S_T1)}, {i*128}, {(2-i)*128}")
        e(f"v_add_u32 {vr(t1)}, {sr(S_T1)}, {vr(t0)}")
        e(f"ds_write_b32 {vr(t1)}, {vr(80+4*i)}")
        e(f"ds_write_b32 {vr(t1)}, {vr(80+4*i+1)} offset:64")
    e(f"s_mov_b64 exec, {sr(S_EX,2)}")
    e("s_waitcnt lgkmcnt(0)")
    e("s_barrier")
    stamp(3)
    if opts.get("g1only"):
        stamp_flush()
        e("s_endpgm")
    e("s_setprio 2")
    e(f"v_mov_b32 {vr(t0)}, {L_FLAG+32}")
    e(f"ds_read_b32 {vr(t1)}, {vr(t0)}")
    ST = 84
    e(f"v_and_b32 {vr(t2)}, 31, {L}")
    e(f"v_lshlrev_b32 {vr(t2)}, 3, {vr(t2)}")
    e(f"s_lshl_b32 {sr(S_T0)}, {sr(S_A)}, 9")
    e(f"s_add_u32 {sr(S_T0)}, {sr(S_T0)}, {L_STAT}")
    e(f"v_add_u32 {vr(t2)}, {sr(S_T0)}, {vr(t2)}")
    e(f"ds_read_b64 {vr(ST,2)}, {vr(t2)}")
    e(f"ds_read_b64 {vr(ST+2,2)}, {vr(t2)} offset:256")
    CGS = [16, 32, 48]; CG2 = [64, 96, 112]
    e(f"v_lshrrev_b32 {vr(t5)}, 5, {L}")
    e(f"v_lshlrev_b32 {vr(t5)}, 4, {vr(t5)}")
    e(f"s_mul_i32 {sr(S_T0)}, {sr(S_B)}, 768")
    e(f"s_add_u32 {sr(S_T0)}, {sr(S_T0)}, {L_CS}")
    e(f"v_add_u32 {vr(t5)}, {sr(S_T0)}, {vr(t5)}")
    for i in range(3):
        e(f"s_cmp_eq_u32 {sr(S_A)}, 0")
        e(f"s_cselect_b32 {sr(S_T1)}, {i*128}, {(2-i)*128}")
        e(f"v_add_u32 {vr(t0)}, {sr(S_T1)}, {vr(t5)}")
        for rp in range(4): e(f"ds_read_b128 {vr(CGS[i]+4*rp,4)}, {vr(t0)} offset:{32*rp}")
        for rp in range(4): e(f"ds_read_b128 {vr(CG2[i]+4*rp,4)}, {vr(t0)} offset:{384+32*rp}")
    e("s_waitcnt lgkmcnt(0)")
    e(f"v_readfirstlane_b32 {sr(S_NONCE)}, {vr(t1)}")
    C1 = -2.0 * 0.7978845608028654 * 0.044715 * 1.4426950408889634
    C0 = -2.0 * 0.7978845608028654 * 1.4426950408889634
    NMp, K1p, K0p, IRp = [144, 146], [148, 150], [152, 154], [156, 158]
    e(f"s_mov_b32 {sr(S_T4)}, {f2u(C1):#x}")
    e(f"s_mov_b32 {sr(S_T5)}, {f2u(C0):#x}")
    for tt in range(2):
        m, r = ST + 2*tt, ST + 2*tt + 1
        e(f"v_sub_f32 {vr(NMp[tt])}, 0, {vr(m)}")
        e(f"v_mul_f32 {vr(K0p[tt])}, {sr(S_T5)}, {vr(r)}")
        e(f"v_mul_f32 {vr(t3)}, {vr(r)}, {vr(r)}")
        e(f"v_mul_f32 {vr(t4)}, {vr(t3)}, {vr(r)}")
        e(f"v_mul_f32 {vr(K1p[tt])}, {sr(S_T4)}, {vr(t4)}")
        e(f"v_rcp_f32 {vr(IRp[tt])}, {vr(t3)}")
        e("s_nop 1")
        for rr in (NMp, K0p, K1p, IRp): e(f"v_mov_b32 {vr(rr[tt]+1)}, {vr(rr[tt])}")
    for i in range(3):
        for k in range(0, 16, 2): e(f"v_pk_add_f32 {vr(CGS[i]+k,2)}, {vr(CGS[i]+k,2)}, {vr(CG2[i]+k,2)}")
    TT = 128; HP = [136, 140]
    e(f"v_lshlrev_b32 {vr(t4)}, 4, {L}")
    e(f"s_lshl_b32 {sr(S_T1)}, {sr(S_RB)}, 2")
    e(f"s_lshl_b32 {sr(S_T2)}, {sr(S_A)}, 1")
    e(f"s_add_u32 {sr(S_T1)}, {sr(S_T1)}, {sr(S_T2)}")
    e(f"s_mul_i32 {sr(S_T1)}, {sr(S_T1)}, 86")
    e(f"s_lshr_b32 {sr(S_T2)}, {sr(S_F0)}, 4")
    e(f"s_add_u32 {sr(S_T1)}, {sr(S_T1)}, {sr(S_T2)}")
    e(f"s_add_u32 {sr(S_T1)}, {sr(S_T1)}, {sr(S_B)}")
    e(f"s_lshl_b32 {sr(S_T1)}, {sr(S_T1)}, 10")
    e(f"s_add_u32 {sr(S_G2)}, {sr(S_T1)}, {WS_HF}")
    for i in range(3):
        lsk = A.newlabel("EP")
        if i == 1: e(f"s_mov_b32 {sr(S_T0)}, 1")
        else:
            e(f"s_cmp_eq_u32 {sr(S_A)}, 0")
            e(f"s_cselect_b32 {sr(S_T0)}, {i}, {2-i}")
        e(f"s_cmp_ge_u32 {sr(S_T0)}, {sr(S_N32)}")
        e(f"s_cbranch_scc1 {lsk}")
        e(f"s_lshl_b32 {sr(S_T0)}, {sr(S_T0)}, 11")
        e(f"s_add_u32 {sr(S_T1)}, {sr(S_G2)}, {sr(S_T0)}")
        e(f"s_add_u32 {sr(S_T2)}, {sr(S_T1)}, {86*1024}")
        CG = CGS[i]
        for tt in range(2):
            a = ACC + 16*(2*i+tt)
            NM, K1, K0, IR = NMp[tt], K1p[tt], K0p[tt], IRp[tt]
            G = [a+2*k for k in range(4)]; U = [a+8+2*k for k in range(4)]
            cg = [CG+2*k for k in range(4)]; cu = [CG+8+2*k for k in range(4)]
            T = [TT+2*k for k in range(4)]
            for k in range(4): e(f"v_pk_fma_f32 {vr(G[k],2)}, {vr(NM,2)}, {vr(cg[k],2)}, {vr(G[k],2)}")
            for k in range(4): e(f"v_pk_mul_f32 {vr(T[k],2)}, {vr(G[k],2)}, {vr(G[k],2)}")
            for k in range(4): e(f"v_pk_fma_f32 {vr(T[k],2)}, {vr(T[k],2)}, {vr(K1,2)}, {vr(K0,2)}")
            for k in range(4): e(f"v_pk_mul_f32 {vr(T[k],2)}, {vr(T[k],2)}, {vr(G[k],2)}")
            for k in range(4):
                e(f"v_exp_f32 {vr(TT+2*k)}, {vr(TT+2*k)}")
                e(f"v_exp_f32 {vr(TT+2*k+1)}, {vr(TT+2*k+1)}")
                e(f"v_pk_fma_f32 {vr(U[k],2)}, {vr(NM,2)}, {vr(cu[k],2)}, {vr(U[k],2)}")
            for k in range(4): e(f"v_pk_fma_f32 {vr(T[k],2)}, {vr(T[k],2)}, {vr(IR,2)}, {vr(IR,2)}")
            for k in range(4):
                e(f"v_rcp_f32 {vr(TT+2*k)}, {vr(TT+2*k)}")
                e(f"v_rcp_f32 {vr(TT+2*k+1)}, {vr(TT+2*k+1)}")
                e(f"v_pk_mul_f32 {vr(G[k],2)}, {vr(G[k],2)}, {vr(U[k],2)}")
            for k in range(4): e(f"v_pk_mul_f32 {vr(G[k],2)}, {vr(G[k],2)}, {vr(T[k],2)}")
            for k in range(4): e(f"v_cvt_pk_bf16_f32 {vr(HP[tt]+k)}, {vr(G[k])}, {vr(G[k]+1)}")
            A.vmem(f"buffer_store_dwordx4 {vr(HP[tt],4)}, {vr(t4)}, {sr(SRD_WS,4)}, {sr(S_T1 if tt == 0 else S_T2)} offen sc0 sc1", "hst")
        A.label(lsk)
    stamp(4)
    e(f"s_lshl_b32 {sr(S_T0)}, {sr(S_WAVE)}, 2")
    e(f"s_add_u32 {sr(S_T0)}, {sr(S_T0)}, {L_FLAG+48}")
    e(f"v_mov_b32 {vr(t0)}, {sr(S_T0)}")
    e(f"v_mov_b32 {vr(t1)}, 1")
    e(f"ds_write_b32 {vr(t0)}, {vr(t1)}")
    GACC = 160; PH = opts.get('ph', 8); GH = 16; GW = 80
    GACC = 176
    GW = 80
    GA = [168, 240]
    V_AR = 248
    V_HL, V_DO = 254, 255
    S_KU0, S_KUN, S_RA, S_RBB, S_RC, S_H0 = S_G0, S_G1, S_G2, S_G3, S_G4, S_G5
    S_H1, S_OOB, S_DSO, S_ROT, S_HB = S_C0, S_C1, S_X0, S_X1, S_X2
    e(f"s_mul_i32 {sr(S_ROT)}, {sr(S_J)}, {opts.get('rot', 3)}")
    ku_start(S_KU0, S_WAVE)
    e(f"s_cmp_lt_u32 {sr(S_WAVE)}, 2")
    e(f"s_cselect_b32 {sr(S_KUN)}, 22, 21")
    ring_bases(S_WAVE, S_RA, S_RBB, S_RC)
    wd_voffset(V_DO)
    e(f"v_lshrrev_b32 {vr(t0)}, 5, {L}")
    e(f"v_bfe_u32 {vr(t1)}, {L}, 2, 2")
    e(f"v_lshl_add_u32 {vr(t0)}, {vr(t0)}, 2, {vr(t1)}")
    e(f"v_lshlrev_b32 {vr(t0)}, 7, {vr(t0)}")
    e(f"v_bfe_u32 {vr(t2)}, {L}, 4, 1")
    e(f"v_bfe_u32 {vr(t3)}, {L}, 1, 1")
    e(f"v_lshl_add_u32 {vr(t2)}, {vr(t2)}, 1, {vr(t3)}")
    e(f"v_lshlrev_b32 {vr(t2)}, 4, {vr(t2)}")
    e(f"v_and_b32 {vr(t3)}, 1, {L}")
    e(f"v_lshl_add_u32 {vr(t2)}, {vr(t3)}, 3, {vr(t2)}")
    e(f"v_add_u32 {vr(t0)}, {vr(t0)}, {vr(t2)}")
    e(f"v_bfe_u32 {vr(t1)}, {L}, 3, 1")
    e(f"v_lshlrev_b32 {vr(t1)}, 6, {vr(t1)}")
    e(f"v_add_u32 {vr(t2)}, {vr(t0)}, {vr(t1)}")
    e(f"v_xor_b32 {vr(t1)}, 64, {vr(t1)}")
    e(f"v_add_u32 {vr(t3)}, {vr(t0)}, {vr(t1)}")
    for bi, sb in enumerate((S_RA, S_RBB, S_RC)):
        e(f"v_add_u32 {vr(V_AR+2*bi)}, {sr(sb)}, {vr(t2)}")
        e(f"v_add_u32 {vr(V_AR+2*bi+1)}, {sr(sb)}, {vr(t3)}")
    e(f"v_lshlrev_b32 {vr(V_HL)}, 4, {L}")
    e(f"s_mov_b32 {sr(S_OOB)}, 0x20000000")
    e("s_waitcnt vmcnt(0)")
    e(f"s_lshl_b32 {sr(S_T0)}, {sr(S_RB)}, 8")
    e(f"s_lshl_b32 {sr(S_T1)}, {sr(S_CP)}, 4")
    e(f"s_lshl_b32 {sr(S_T2)}, {sr(S_WAVE)}, 2")
    e(f"s_add_u32 {sr(S_T0)}, {sr(S_T0)}, {sr(S_T1)}")
    e(f"s_add_u32 {sr(S_T0)}, {sr(S_T0)}, {sr(S_T2)}")
    e(f"s_add_u32 {sr(S_T0)}, {sr(S_T0)}, {WS_FL+FL_H}")
    flag_set(S_T0, t0)
    stamp(5)
    e(f"s_lshl_b32 {sr(S_T0)}, {sr(S_WAVE)}, 2")
    e(f"s_add_u32 {sr(S_T0)}, {sr(S_T0)}, {L_FLAG+16}")
    lds_spin(S_T0, t0, t1)
    def afrag_reads(n, dst):
        bi, off = ring_off(n); out = []
        for dt in range(2):
            for h in range(2):
                out.append(f"ds_read_b64_tr_b16 {vr(dst+4*dt+2*h,2)}, {vr(V_AR+2*bi+dt)} offset:{off+1024*h}")
        return out
    for n in range(NR):
        for x in afrag_reads(n, GW+8*n): e(x)
        if n % 3 == 2: e("s_waitcnt lgkmcnt(4)")
    e("s_waitcnt lgkmcnt(0)")
    for n in range(NR):
        bi, off = ring_off(n)
        sb = (S_RA, S_RBB, S_RC)[bi]
        wd_soff(NR + n, S_DSO, S_ROT, S_KUN, S_KU0, S_OOB)
        for a in range(2):
            e(f"s_add_u32 m0, {sr(sb)}, {off + 1024*a}")
            if a == 1: e(f"s_add_u32 {sr(S_DSO)}, {sr(S_DSO)}, 8192")
            else: e("s_nop 0")
            A.vmem(f"buffer_load_dwordx4 {vr(V_DO)}, {sr(SRD_WD,4)}, {sr(S_DSO)} offen lds", "WR2")
    for r in range(64): e(f"v_mov_b32 {vr(GACC+r)}, 0")
    stamp(6)
    e(f"s_lshr_b32 {sr(S_T0)}, {sr(S_I2)}, 1")
    e(f"s_lshl_b32 {sr(S_T0)}, {sr(S_T0)}, 8")
    e(f"s_add_u32 {sr(S_T0)}, {sr(S_T0)}, {WS_FL+FL_H}")
    lh1 = A.newlabel("HP"); lh2 = A.newlabel("HP")
    e(f"s_cmp_lg_u32 {sr(S_WAVE)}, 0")
    e(f"s_cbranch_scc1 {lh1}")
    flag_wait_blocking(t1, 1, S_T0, sleep=opts.get('hsleep', 2))
    e(f"v_mov_b32 {vr(t0)}, {L_FLAG+72}")
    e(f"v_mov_b32 {vr(t1)}, 1")
    e(f"ds_write_b32 {vr(t0)}, {vr(t1)}")
    e(f"s_branch {lh2}")
    A.label(lh1)
    e(f"s_mov_b32 {sr(S_T0)}, {L_FLAG+72}")
    lds_spin(S_T0, t1, t0, sleep=1)
    e("s_waitcnt vmcnt(0)")
    A.label(lh2)
    stamp(7)
    e(f"s_lshl_b32 {sr(S_T0)}, {sr(S_I2)}, 1")
    e(f"s_mul_i32 {sr(S_T0)}, {sr(S_T0)}, 86")
    e(f"s_add_u32 {sr(S_T0)}, {sr(S_T0)}, {sr(S_KU0)}")
    e(f"s_lshl_b32 {sr(S_T0)}, {sr(S_T0)}, 10")
    e(f"s_add_u32 {sr(S_HB)}, {sr(S_T0)}, {WS_HF}")
    A.vm = []
    def hload(n):
        hb = GH + 8*(n % PH)
        unit_at(n, S_H0, S_ROT, S_KUN)
        e(f"s_cselect_b32 {sr(S_T5)}, 1, 0")
        e(f"s_lshl_b32 {sr(S_H0)}, {sr(S_H0)}, 10")
        e(f"s_add_u32 {sr(S_H0)}, {sr(S_H0)}, {sr(S_HB)}")
        e(f"s_cmp_eq_u32 {sr(S_T5)}, 1")
        e(f"s_cselect_b32 {sr(S_H0)}, {sr(S_H0)}, {sr(S_OOB)}")
        e(f"s_add_u32 {sr(S_H1)}, {sr(S_H0)}, {86*1024}")
        A.vmem(f"buffer_load_dwordx4 {vr(hb,4)}, {vr(V_HL)}, {sr(SRD_WS,4)}, {sr(S_H0)} offen{HSC}", f"H{n}")
        A.vmem(f"buffer_load_dwordx4 {vr(hb+4,4)}, {vr(V_HL)}, {sr(SRD_WS,4)}, {sr(S_H1)} offen{HSC}", f"H{n}")
    for n in range(PH): hload(n)
    for n in range(22):
        hb = GH + 8*(n % PH)
        if n < NR: aw = GW + 8*n
        else: aw = GA[n & 1]
        if n + 1 >= NR and n + 1 < 22:
            for x in afrag_reads(n + 1 - NR, GA[(n+1) & 1]): e(x)
        A.wait_vm(f"H{n}")
        if n >= NR: e("s_waitcnt lgkmcnt(4)" if n + 1 < 22 else "s_waitcnt lgkmcnt(0)")
        e(f"v_mfma_f32_32x32x16_bf16 {vr(GACC,16)}, {vr(aw,4)}, {vr(hb,4)}, {vr(GACC,16)}")
        e(f"v_mfma_f32_32x32x16_bf16 {vr(GACC+16,16)}, {vr(aw,4)}, {vr(hb+4,4)}, {vr(GACC+16,16)}")
        e(f"v_mfma_f32_32x32x16_bf16 {vr(GACC+32,16)}, {vr(aw+4,4)}, {vr(hb,4)}, {vr(GACC+32,16)}")
        e(f"v_mfma_f32_32x32x16_bf16 {vr(GACC+48,16)}, {vr(aw+4,4)}, {vr(hb+4,4)}, {vr(GACC+48,16)}")
        if n + PH < 22: hload(n + PH)
        if n == opts.get("yun", 12):
            e(f"v_mov_b32 {vr(t0)}, {L_FLAG+64}")
            e(f"v_mov_b32 {vr(t1)}, 1")
            e(f"ds_write_b32 {vr(t0)}, {vr(t1)}")
        if opts.get("g2stamp") and n % 2 == 1: stamp(32 + n // 2)
    stamp(8)
    e("s_nop 7")
    e(f"v_and_b32 {vr(t0)}, 31, {L}")
    e(f"v_lshrrev_b32 {vr(t1)}, 5, {L}")
    e(f"v_mul_u32_u24 {vr(t0)}, 272, {vr(t0)}")
    e(f"v_lshl_add_u32 {vr(t0)}, {vr(t1)}, 4, {vr(t0)}")
    e(f"v_add_u32 {vr(t1)}, {sr(S_RBB)}, {vr(t0)}")
    e(f"v_add_u32 {vr(t0)}, {sr(S_RA)}, {vr(t0)}")
    for dt in range(2):
        for tt in range(2):
            for rp in range(4):
                a = GACC + 16*(2*dt+tt) + 4*rp
                e(f"ds_write_b128 {vr(t0 if tt == 0 else t1)}, {vr(a,4)} offset:{dt*128 + rp*32}")
    e("s_branch L_FINAL")

    A.label("L_HELPER")
    A.vm = ["code"]
    if opts.get("g1only"):
        for _ in range(10): e("s_barrier")
        e("s_endpgm")
    S_LW = S_A
    e(f"s_sub_u32 {sr(S_LW)}, {sr(S_WAVE)}, 4")
    V_XO, V_WO, V_L16, V_TO, V_DO2 = 16, 18, 21, 22, 23
    S_XSO, S_WSO, S_M0X, S_M0W = S_G0, S_G1, S_G3, S_G4
    BAD = 0x7fffff00
    e(f"v_lshlrev_b32 {vr(V_L16)}, 4, {L}")
    loader_setup(S_LW, V_XO, V_WO, S_M0X, S_M0W)
    S_ROW = S_G5
    e(f"s_lshl_b32 {sr(S_ROW)}, {sr(S_RB)}, 7")
    e(f"s_lshl_b32 {sr(S_T0)}, {sr(S_CP)}, 3")
    e(f"s_add_u32 {sr(S_ROW)}, {sr(S_ROW)}, {sr(S_T0)}")
    e(f"s_lshl_b32 {sr(S_T0)}, {sr(S_LW)}, 1")
    e(f"s_add_u32 {sr(S_ROW)}, {sr(S_ROW)}, {sr(S_T0)}")
    e(f"v_lshrrev_b32 {vr(t0)}, 3, {L}")
    e(f"v_and_b32 {vr(t1)}, 7, {L}")
    e(f"v_lshrrev_b32 {vr(t2)}, 4, {L}")
    e(f"s_and_b32 {sr(S_T1)}, {sr(S_LW)}, 1")
    e(f"s_lshl_b32 {sr(S_T1)}, {sr(S_T1)}, 2")
    e(f"v_add_u32 {vr(t2)}, {sr(S_T1)}, {vr(t2)}")
    e(f"v_xor_b32 {vr(t1)}, {vr(t1)}, {vr(t2)}")
    e(f"v_lshlrev_b32 {vr(t1)}, 4, {vr(t1)}")
    e(f"v_lshl_add_u32 {vr(t1)}, {vr(t0)}, 10, {vr(t1)}")
    e(f"s_lshl_b32 {sr(S_T1)}, {sr(S_J)}, 7")
    e(f"v_add_u32 {vr(V_TO)}, {sr(S_T1)}, {vr(t1)}")
    wd_voffset(V_DO2)
    e("s_waitcnt lgkmcnt(0)")
    srd(SRD_Q, 0, 2 << 20)
    srd_w_select(S_LW)
    stamp(0)
    def dma_stage(s): dma_stage_g(s, V_XO, V_WO, S_M0X, S_M0W, S_XSO, S_WSO)
    SX = 24; V_NL = 33; V_SL = 116; V_SLA = 34; V_FL = 114; V_DUM = 32
    e(f"s_lshl_b32 {sr(S_T0)}, {sr(S_ROW)}, 10")
    A.vmem(f"buffer_load_dwordx4 {vr(SX,4)}, {vr(V_L16)}, {sr(SRD_Q,4)}, {sr(S_T0)} offen", "SX")
    A.vmem(f"buffer_load_dwordx4 {vr(SX+4,4)}, {vr(V_L16)}, {sr(SRD_Q,4)}, {sr(S_T0)} offen offset:1024", "SX")
    srd(SRD_DBG, 11, 256)
    lnn = A.newlabel("NN")
    e(f"s_cmp_lg_u32 {sr(S_WG)}, 0")
    e(f"s_cbranch_scc1 {lnn}")
    e(f"s_cmp_lg_u32 {sr(S_WAVE)}, 4")
    e(f"s_cbranch_scc1 {lnn}")
    e(f"s_memrealtime {sr(S_T0,2)}")
    e("s_waitcnt lgkmcnt(0)")
    e(f"s_or_b32 {sr(S_T0)}, {sr(S_T0)}, 1")
    e(f"v_mov_b32 {vr(t0)}, {sr(S_T0)}")
    e(f"buffer_store_dword {vr(t0)}, off, {sr(SRD_DBG,4)}, 0 sc0 sc1")
    A.label(lnn)
    if opts.get("tfirst", 1): e("s_barrier")
    dma_stage(0)
    if not opts.get("tfirst", 1): e("s_barrier")
    srd(SRD_K, 1, 2 << 20); srd(SRD_V, 2, 2 << 20)
    srd(SRD_WS, 12, 0x10000000); srd(SRD_WD, 9, WBYTES)
    def tiles():
        e(f"s_lshl_b32 {sr(S_T0)}, {sr(S_I2)}, 16")
        for srd_, base in ((SRD_K, L_KT), (SRD_V, L_VT)):
            for gi in range(2):
                e(f"s_add_u32 {sr(S_T1)}, {sr(S_LW)}, {4*gi}")
                e(f"s_lshl_b32 {sr(S_T2)}, {sr(S_T1)}, 13")
                e(f"s_add_u32 {sr(S_T2)}, {sr(S_T2)}, {sr(S_T0)}")
                e(f"s_lshl_b32 {sr(S_T1)}, {sr(S_T1)}, 10")
                e(f"s_add_u32 m0, {sr(S_T1)}, {base}")
                e("s_nop 0")
                A.vmem(f"buffer_load_dwordx4 {vr(V_TO)}, {sr(srd_,4)}, {sr(S_T2)} offen lds", "P")
    S_CIDX = S_C1
    HK = [88, 96]; HPB = 112
    def hk_loads():
        e(f"s_lshl_b32 {sr(S_T0)}, {sr(S_WG)}, 1")
        e(f"s_add_u32 {sr(S_T0)}, {sr(S_T0)}, {sr(S_CIDX)}")
        e(f"s_lshl_b32 {sr(S_T0)}, {sr(S_T0)}, 12")
        e(f"s_add_u32 {sr(SRD_SK)}, {sr(P+8)}, {sr(S_T0)}")
        e(f"s_addc_u32 {sr(SRD_SK+1)}, {sr(P+9)}, 0")
        e(f"s_mov_b32 {sr(SRD_SK+2)}, 4096")
        e(f"s_mov_b32 {sr(SRD_SK+3)}, 0x20000")
        e(f"s_and_b32 {sr(S_T1)}, {sr(S_LW)}, 1")
        e(f"s_lshl_b32 {sr(S_T1)}, {sr(S_T1)}, 11")
        for y in range(2):
            e(f"s_add_u32 {sr(S_T2)}, {sr(S_T1)}, {1024*y}")
            A.vmem(f"buffer_load_dwordx4 {vr(HK[y],4)}, {vr(V_L16)}, {sr(SRD_SK,4)}, {sr(S_T2)} offen", "HK")
            A.vmem(f"buffer_load_dwordx2 {vr(HK[y]+4,2)}, {vr(V_L16)}, {sr(SRD_SK,4)}, {sr(S_T2)} offen offset:16", "HK")
        e(f"v_cmp_eq_u32 vcc, 1, {L}")
        e(f"v_mov_b32 {vr(t5)}, 0x10000")
        e("s_nop 0")
        e(f"v_cndmask_b32 {vr(t5)}, {vr(t5)}, 0, vcc")
        A.vmem(f"buffer_load_dwordx2 {vr(HPB,2)}, {vr(t5)}, {sr(SRD_SK,4)}, 0 offen", "HK")
    def wd_touch():
        e(f"s_mul_i32 {sr(S_T0)}, {sr(S_WG)}, {43*128}")
        e(f"s_mul_i32 {sr(S_T1)}, {sr(S_LW)}, 11")
        e(f"v_add_u32 {vr(t4)}, {sr(S_T1)}, {L}")
        e(f"v_cmp_gt_u32 vcc, 11, {L}")
        e(f"v_lshlrev_b32 {vr(t4)}, 7, {vr(t4)}")
        e(f"v_add_u32 {vr(t4)}, {sr(S_T0)}, {vr(t4)}")
        e(f"v_mov_b32 {vr(t5)}, {BAD}")
        e(f"v_cndmask_b32 {vr(t4)}, {vr(t5)}, {vr(t4)}, vcc")
        A.vmem(f"buffer_load_dword {vr(V_DUM)}, {vr(t4)}, {sr(SRD_WD,4)}, 0 offen", "T2")
    e(f"s_lshr_b32 {sr(S_CIDX)}, {sr(S_LW)}, 1")
    PPOS = opts.get("ppos", -1)
    if PPOS < 0: tiles()
    A.vmem(f"buffer_load_dword {vr(V_NL)}, off, {sr(SRD_DBG,4)}, 0 sc1", "NL")
    e(f"v_lshlrev_b32 {vr(t0)}, 2, {L}")
    e(f"v_add_u32 {vr(t0)}, {L_FLAG}, {vr(t0)}")
    e(f"v_mov_b32 {vr(t1)}, 0")
    e(f"s_mov_b64 {sr(S_EX,2)}, exec")
    e("s_mov_b64 exec, 0xfffffff")
    e(f"ds_write_b32 {vr(t0)}, {vr(t1)}")
    e(f"s_mov_b64 exec, {sr(S_EX,2)}")
    A.wait_vm("SX")
    XU = 120; SA = 136
    for rr in range(2):
        for k in range(4):
            e(f"v_lshlrev_b32 {vr(XU+8*rr+2*k)}, 16, {vr(SX+4*rr+k)}")
            e(f"v_and_b32 {vr(XU+8*rr+2*k+1)}, 0xffff0000, {vr(SX+4*rr+k)}")
    def wave_reduce(regs):
        for sh in ("row_shr:1", "row_shr:2", "row_shr:4", "row_shr:8"):
            for r in regs: e(f"v_add_f32_dpp {vr(r)}, {vr(r)}, {vr(r)} {sh} row_mask:0xf bank_mask:0xf bound_ctrl:0")
            e("s_nop 0")
        for r in regs: e(f"v_add_f32_dpp {vr(r)}, {vr(r)}, {vr(r)} row_bcast:15 row_mask:0xa bank_mask:0xf")
        e("s_nop 0")
        for r in regs: e(f"v_add_f32_dpp {vr(r)}, {vr(r)}, {vr(r)} row_bcast:31 row_mask:0xc bank_mask:0xf")
        e("s_nop 1")
    for k in range(1, 8):
        for rr in range(2):
            b = XU + 8*rr
            if k == 1: e(f"v_add_f32 {vr(SA+rr)}, {vr(b)}, {vr(b+1)}")
            else: e(f"v_add_f32 {vr(SA+rr)}, {vr(SA+rr)}, {vr(b+k)}")
    e("s_nop 1")
    wave_reduce([SA, SA+1])
    e(f"v_readlane_b32 {sr(S_T0)}, {vr(SA)}, 63")
    e(f"v_readlane_b32 {sr(S_T1)}, {vr(SA+1)}, 63")
    e(f"v_mov_b32 {vr(SA+2)}, 0x3b000000")
    e("s_nop 0")
    e(f"v_mul_f32 {vr(SA+4)}, {sr(S_T0)}, {vr(SA+2)}")
    e(f"v_mul_f32 {vr(SA+5)}, {sr(S_T1)}, {vr(SA+2)}")
    for k in range(8):
        for rr in range(2): e(f"v_sub_f32 {vr(XU+8*rr+k)}, {vr(XU+8*rr+k)}, {vr(SA+4+rr)}")
    for k in range(8):
        for rr in range(2):
            b = XU + 8*rr
            if k == 0: e(f"v_mul_f32 {vr(SA+rr)}, {vr(b)}, {vr(b)}")
            else: e(f"v_fma_f32 {vr(SA+rr)}, {vr(b+k)}, {vr(b+k)}, {vr(SA+rr)}")
    e("s_nop 1")
    wave_reduce([SA, SA+1])
    e(f"v_readlane_b32 {sr(S_T0)}, {vr(SA)}, 63")
    e(f"v_readlane_b32 {sr(S_T1)}, {vr(SA+1)}, 63")
    e(f"v_cmp_eq_u32 vcc, 1, {L}")
    e("s_nop 0")
    e(f"v_mov_b32 {vr(SA)}, {sr(S_T0)}")
    e(f"v_mov_b32 {vr(SA+1)}, {sr(S_T1)}")
    e(f"v_cndmask_b32 {vr(SA)}, {vr(SA)}, {vr(SA+1)}, vcc")
    e(f"v_cndmask_b32 {vr(SA+4)}, {vr(SA+4)}, {vr(SA+5)}, vcc")
    e(f"v_mul_f32 {vr(SA)}, {vr(SA)}, {vr(SA+2)}")
    e(f"v_cvt_pk_bf16_f32 {vr(SA)}, {vr(SA)}, {vr(SA)}")
    e(f"v_lshlrev_b32 {vr(SA)}, 16, {vr(SA)}")
    e(f"v_add_f32 {vr(SA)}, 0x3727c5ac, {vr(SA)}")
    e(f"v_cvt_pk_bf16_f32 {vr(SA)}, {vr(SA)}, {vr(SA)}")
    e(f"v_lshlrev_b32 {vr(SA)}, 16, {vr(SA)}")
    e(f"v_sqrt_f32 {vr(SA)}, {vr(SA)}")
    e("s_nop 0")
    V_STP = 110
    e(f"v_cvt_pk_bf16_f32 {vr(V_STP)}, {vr(SA+4)}, {vr(SA)}")
    A.wait_vm("S0")
    e("s_waitcnt lgkmcnt(0)")
    e("s_barrier")
    stamp(1)
    def it_end(it, stages, waits=()):
        if opts.get("barstamp"): stamp(24 + it)
        if waits: A.wait_vm(*waits)
        e("s_waitcnt lgkmcnt(0)")
        if opts.get("barstamp"): stamp(32 + it)
        e("s_barrier")
        if opts.get("barstamp"): stamp(40 + it)
        for st_ in stages: st_()
        if opts.get("barstamp"): stamp(48 + it)
    def job_nonce_sts():
        lok = A.newlabel("NOK"); lre = A.newlabel("NRE")
        e(f"s_mov_b32 {sr(S_T3)}, 0x40000")
        A.label(lre)
        e(f"v_readfirstlane_b32 {sr(S_NONCE)}, {vr(V_NL)}")
        e("s_nop 3")
        e(f"s_cmp_lg_u32 {sr(S_NONCE)}, 0")
        e(f"s_cbranch_scc1 {lok}")
        e(f"s_sub_u32 {sr(S_T3)}, {sr(S_T3)}, 1")
        e(f"s_cmp_eq_u32 {sr(S_T3)}, 0")
        e(f"s_cbranch_scc1 {lok}")
        e("s_sleep 2")
        e(f"buffer_load_dword {vr(V_NL)}, off, {sr(SRD_DBG,4)}, 0 sc1")
        e("s_waitcnt vmcnt(0)")
        e(f"s_branch {lre}")
        A.label(lok)
        e(f"v_mov_b32 {vr(t0)}, {L_FLAG+32}")
        e(f"v_mov_b32 {vr(V_STP+1)}, {sr(S_NONCE)}")
        e(f"ds_write_b32 {vr(t0)}, {vr(V_STP+1)}")
        e(f"s_lshl_b32 {sr(S_T0)}, {sr(S_ROW)}, 3")
        e(f"s_add_u32 {sr(S_T0)}, {sr(S_T0)}, {WS_ST}")
        e(f"v_lshlrev_b32 {vr(t0)}, 3, {L}")
        e(f"s_mov_b64 {sr(S_EX,2)}, exec")
        e("s_mov_b64 exec, 3")
        A.vmem(f"buffer_store_dwordx2 {vr(V_STP,2)}, {vr(t0)}, {sr(SRD_WS,4)}, {sr(S_T0)} offen sc0 sc1", "STS")
        e(f"s_mov_b64 exec, {sr(S_EX,2)}")
    T = 128
    def job_tr_store():
        e(f"v_and_b32 {vr(t0)}, 3, {L}")
        e(f"v_bfe_u32 {vr(t1)}, {L}, 4, 1")
        e(f"v_lshl_add_u32 {vr(t0)}, {vr(t1)}, 2, {vr(t0)}")
        e(f"v_lshlrev_b32 {vr(t0)}, 3, {vr(t0)}")
        e(f"v_bfe_u32 {vr(t1)}, {L}, 2, 2")
        e(f"v_sub_u32 {vr(t0)}, {vr(t0)}, {vr(t1)}")
        e(f"v_add_u32 {vr(t0)}, 7, {vr(t0)}")
        e(f"v_lshrrev_b32 {vr(t3)}, 5, {L}")
        e(f"v_lshlrev_b32 {vr(t3)}, 3, {vr(t3)}")
        e(f"s_lshl_b32 {sr(S_T0)}, {sr(S_LW)}, 1")
        for h in range(2):
            if h == 1: e(f"v_subrev_u32 {vr(t0)}, 4, {vr(t0)}")
            e(f"v_bfe_u32 {vr(t1)}, {vr(t0)}, 1, 3")
            e(f"v_xor_b32 {vr(t1)}, {sr(S_T0)}, {vr(t1)}")
            e(f"v_lshlrev_b32 {vr(t1)}, 4, {vr(t1)}")
            e(f"v_lshl_add_u32 {vr(t1)}, {vr(t0)}, 7, {vr(t1)}")
            e(f"v_add_u32 {vr(t1)}, {vr(t1)}, {vr(t3)}")
            e(f"v_add_u32 {vr(t1)}, {L_KT}, {vr(t1)}")
            e(f"v_xor_b32 {vr(t2)}, 16, {vr(t1)}")
            for x, a in ((0, t1), (1, t2)):
                e(f"ds_read_b64_tr_b16 {vr(T+4*x+2*h,2)}, {vr(a)}")
                e(f"ds_read_b64_tr_b16 {vr(T+8+4*x+2*h,2)}, {vr(a)} offset:{L_VT-L_KT}")
        e(f"v_and_b32 {vr(t1)}, 3, {L}")
        e(f"v_lshrrev_b32 {vr(t2)}, 5, {L}")
        e(f"v_lshl_add_u32 {vr(t1)}, {vr(t2)}, 2, {vr(t1)}")
        e(f"v_lshlrev_b32 {vr(t1)}, 12, {vr(t1)}")
        e(f"v_bfe_u32 {vr(t2)}, {L}, 2, 3")
        e(f"v_lshlrev_b32 {vr(t2)}, 4, {vr(t2)}")
        e(f"v_sub_u32 {vr(t1)}, {vr(t1)}, {vr(t2)}")
        e(f"v_add_u32 {vr(t1)}, 4080, {vr(t1)}")
        e(f"s_lshl_b32 {sr(S_T0)}, {sr(S_J)}, 6")
        e(f"s_lshl_b32 {sr(S_T1)}, {sr(S_LW)}, 4")
        e(f"s_add_u32 {sr(S_T0)}, {sr(S_T0)}, {sr(S_T1)}")
        e(f"s_lshl_b32 {sr(S_T0)}, {sr(S_T0)}, 12")
        e(f"s_lshl_b32 {sr(S_T1)}, {sr(S_I2)}, 7")
        e(f"s_sub_u32 {sr(S_T0)}, {sr(S_T0)}, {sr(S_T1)}")
        e(f"v_add_u32 {vr(t1)}, {sr(S_T0)}, {vr(t1)}")
        e(f"v_add_u32 {vr(t2)}, {8*4096}, {vr(t1)}")
        e(f"s_mov_b32 {sr(S_T0)}, {WS_VT}")
        e("s_waitcnt lgkmcnt(0)")
        A.vmem(f"buffer_store_dwordx4 {vr(T,4)}, {vr(t1)}, {sr(SRD_WS,4)}, 0 offen sc0 sc1", "KVS")
        A.vmem(f"buffer_store_dwordx4 {vr(T+4,4)}, {vr(t2)}, {sr(SRD_WS,4)}, 0 offen sc0 sc1", "KVS")
        A.vmem(f"buffer_store_dwordx4 {vr(T+8,4)}, {vr(t1)}, {sr(SRD_WS,4)}, {sr(S_T0)} offen sc0 sc1", "KVS")
        A.vmem(f"buffer_store_dwordx4 {vr(T+12,4)}, {vr(t2)}, {sr(SRD_WS,4)}, {sr(S_T0)} offen sc0 sc1", "KVS")
    S_STO = S_X3
    def job_sl():
        e(f"s_lshl_b32 {sr(S_STO)}, {sr(S_RB)}, 7")
        e(f"s_lshl_b32 {sr(S_T1)}, {sr(S_LW)}, 5")
        e(f"s_add_u32 {sr(S_STO)}, {sr(S_STO)}, {sr(S_T1)}")
        e(f"s_lshl_b32 {sr(S_STO)}, {sr(S_STO)}, 3")
        e(f"s_add_u32 {sr(S_STO)}, {sr(S_STO)}, {WS_ST}")
        e(f"v_and_b32 {vr(V_SLA)}, 31, {L}")
        e(f"v_lshlrev_b32 {vr(V_SLA)}, 3, {vr(V_SLA)}")
        A.vmem(f"buffer_load_dwordx2 {vr(V_SL,2)}, {vr(V_SLA)}, {sr(SRD_WS,4)}, {sr(S_STO)} offen sc1", "SL")
    def job_kvf():
        A.wait_vm("KVS")
        e(f"s_lshl_b32 {sr(S_T0)}, {sr(S_J)}, 9")
        e(f"s_lshl_b32 {sr(S_T1)}, {sr(S_I2)}, 4")
        e(f"s_lshl_b32 {sr(S_T2)}, {sr(S_LW)}, 2")
        e(f"s_add_u32 {sr(S_T0)}, {sr(S_T0)}, {sr(S_T1)}")
        e(f"s_add_u32 {sr(S_T0)}, {sr(S_T0)}, {sr(S_T2)}")
        e(f"s_add_u32 {sr(S_T0)}, {sr(S_T0)}, {WS_FL+FL_KV}")
        flag_set(S_T0, t0)
    S_C, S_KVO, S_W, S_OKF = 62, 63, 64, 70
    def job_conv_scalars():
        e(f"s_lshl_b32 {sr(S_C)}, {sr(S_WG)}, 1")
        e(f"s_add_u32 {sr(S_C)}, {sr(S_C)}, {sr(S_CIDX)}")
        e(f"s_lshr_b32 {sr(S_KVO)}, {sr(S_C)}, 6")
        e(f"s_lshl_b32 {sr(S_KVO)}, {sr(S_KVO)}, 9")
        e(f"s_add_u32 {sr(S_KVO)}, {sr(S_KVO)}, {WS_FL+FL_KV}")
        e(f"s_lshl_b32 {sr(S_T0)}, {sr(S_C)}, 3")
        e(f"s_load_dwordx2 {sr(S_W,2)}, {sr(P+6,2)}, {sr(S_T0)}")
        e("s_waitcnt lgkmcnt(0)")
        e(f"s_and_b32 {sr(S_W+3)}, {sr(S_W+1)}, 0xffff0000")
        e(f"s_lshl_b32 {sr(S_W+2)}, {sr(S_W+1)}, 16")
        e(f"s_and_b32 {sr(S_W+1)}, {sr(S_W)}, 0xffff0000")
        e(f"s_lshl_b32 {sr(S_W)}, {sr(S_W)}, 16")
    def job_statchk():
        A.wait_vm("SL")
        lsr = A.newlabel("SR"); lso = A.newlabel("SO")
        e(f"s_mov_b32 {sr(S_T3)}, 0x40000")
        A.label(lsr)
        e(f"v_cmp_eq_u32 vcc, {sr(S_NONCE)}, {vr(V_SL+1)}")
        e("s_nop 1")
        e("s_cmp_eq_u64 vcc, -1")
        e(f"s_cbranch_scc1 {lso}")
        e(f"s_sub_u32 {sr(S_T3)}, {sr(S_T3)}, 1")
        e(f"s_cmp_eq_u32 {sr(S_T3)}, 0")
        e(f"s_cbranch_scc1 {lso}")
        e("s_sleep 2")
        e(f"buffer_load_dwordx2 {vr(V_SL,2)}, {vr(V_SLA)}, {sr(SRD_WS,4)}, {sr(S_STO)} offen sc1")
        e("s_waitcnt vmcnt(0)")
        e(f"s_branch {lsr}")
        A.label(lso)
        if TS:
            e(f"s_sub_u32 {sr(S_T0)}, 0x40064, {sr(S_T3)}")
            e("s_nop 0")
            e(f"v_writelane_b32 {vr(V_TS)}, {sr(S_T0)}, 41")
        e(f"v_and_b32 {vr(t1)}, 0xffff0000, {vr(V_SL)}")
        e(f"v_lshlrev_b32 {vr(V_SL)}, 16, {vr(V_SL)}")
        e(f"v_rcp_f32 {vr(V_SL+1)}, {vr(t1)}")
        e(f"s_lshl_b32 {sr(S_T0)}, {sr(S_LW)}, 8")
        e(f"s_add_u32 {sr(S_T0)}, {sr(S_T0)}, {L_STAT}")
        e(f"v_add_u32 {vr(t0)}, {sr(S_T0)}, {vr(V_SLA)}")
        e("s_nop 0")
        e(f"ds_write_b64 {vr(t0)}, {vr(V_SL,2)}")
    KR, VR = 128, 160
    def job_row_srds():
        e(f"s_lshl_b32 {sr(S_T0)}, {sr(S_C)}, 12")
        e(f"s_add_u32 {sr(SRD_K)}, {sr(P+24)}, {sr(S_T0)}")
        e(f"s_addc_u32 {sr(SRD_K+1)}, {sr(P+25)}, 0")
        e(f"s_mov_b32 {sr(SRD_K+2)}, 4096")
        e(f"s_mov_b32 {sr(SRD_K+3)}, 0x20000")
        e(f"s_add_u32 {sr(S_T0)}, {sr(S_T0)}, {WS_VT}")
        e(f"s_add_u32 {sr(SRD_V)}, {sr(P+24)}, {sr(S_T0)}")
        e(f"s_addc_u32 {sr(SRD_V+1)}, {sr(P+25)}, 0")
        e(f"s_mov_b32 {sr(SRD_V+2)}, 4096")
        e(f"s_mov_b32 {sr(SRD_V+3)}, 0x20000")
    def uk_loads(track):
        for q in range(4):
            if track:
                e(f"s_cmp_eq_u32 {sr(S_OKF)}, 1")
                e(f"s_cselect_b32 {sr(S_T2)}, {1024*q}, 0x40000000" if q == 0 else f"s_cselect_b32 {sr(S_T2)}, {sr(S_T1)}, {sr(S_T3)}")
                if q < 3:
                    e(f"s_movk_i32 {sr(S_T1)}, {1024*(q+1)}")
                    e(f"s_mov_b32 {sr(S_T3)}, 0x40000000")
            else:
                e(f"s_movk_i32 {sr(S_T2)}, {1024*q}")
            for txt in (f"buffer_load_dwordx4 {vr(KR+8*q,4)}, {vr(V_L16)}, {sr(SRD_K,4)}, {sr(S_T2)} offen{USC}",
                        f"buffer_load_dwordx2 {vr(KR+8*q+4,2)}, {vr(V_L16)}, {sr(SRD_K,4)}, {sr(S_T2)} offen offset:16{USC}",
                        f"buffer_load_dwordx4 {vr(VR+4*q,4)}, {vr(V_L16)}, {sr(SRD_V,4)}, {sr(S_T2)} offen{USC}"):
                if track: A.vmem(txt, "UK")
                else: e(txt)
    def job_pkv_check():
        A.wait_vm("PKV")
        flag_check_scc(V_FL, 2)
        e(f"s_cselect_b32 {sr(S_OKF)}, 1, 0")
        if TS:
            e(f"s_add_u32 {sr(S_T0)}, {sr(S_OKF)}, 100")
            e("s_nop 0")
            e(f"v_writelane_b32 {vr(V_TS)}, {sr(S_T0)}, 40")
        uk_loads(True)
    E = 36
    def kv_chunk(q):
        D = KR + 8*q; V = VR + 4*q
        for i in range(11):
            src = D + (i >> 1)
            e(f"v_and_b32 {vr(E+i)}, 0xffff0000, {vr(src)}" if i & 1 else f"v_lshlrev_b32 {vr(E+i)}, 16, {vr(src)}")
        for i in range(8):
            src = V + (i >> 1)
            e(f"v_and_b32 {vr(E+11+i)}, 0xffff0000, {vr(src)}" if i & 1 else f"v_lshlrev_b32 {vr(E+11+i)}, 16, {vr(src)}")
        for i in range(8): e(f"v_mul_f32 {vr(56+i)}, {sr(S_W+3)}, {vr(E+i+3)}")
        for i in range(8): e(f"v_fma_f32 {vr(56+i)}, {vr(E+i+2)}, {sr(S_W+2)}, {vr(56+i)}")
        for i in range(8): e(f"v_fma_f32 {vr(56+i)}, {vr(E+i+1)}, {sr(S_W+1)}, {vr(56+i)}")
        for i in range(8): e(f"v_fma_f32 {vr(56+i)}, {vr(E+i)}, {sr(S_W)}, {vr(56+i)}")
        for i in range(8): e(f"v_mul_f32 {vr(56+i)}, {vr(56+i)}, {vr(E+11+i)}")
        for k in range(4): e(f"v_cvt_pk_bf16_f32 {vr(D+k)}, {vr(56+2*k)}, {vr(56+2*k+1)}")
    S_DSO2, S_RA, S_RBB, S_RC = S_G4, S_X0, S_X1, S_X2
    S_KU2, S_KUN2, S_ROT2, S_OOB2 = 61, S_C0, S_G5, 60
    def job_wd_setup():
        ku_start(S_KU2, S_LW)
        e(f"s_cmp_lt_u32 {sr(S_LW)}, 2")
        e(f"s_cselect_b32 {sr(S_KUN2)}, 22, 21")
        e(f"s_mul_i32 {sr(S_ROT2)}, {sr(S_J)}, {opts.get('rot', 3)}")
        e(f"s_mov_b32 {sr(S_OOB2)}, 0x20000000")
        ring_bases(S_LW, S_RA, S_RBB, S_RC)
    def wd_dma(n):
        bi, off = ring_off(n); sb = (S_RA, S_RBB, S_RC)[bi]
        wd_soff(n, S_DSO2, S_ROT2, S_KUN2, S_KU2, S_OOB2)
        for a in range(2):
            e(f"s_add_u32 m0, {sr(sb)}, {off + 1024*a}")
            if a == 1: e(f"s_add_u32 {sr(S_DSO2)}, {sr(S_DSO2)}, 8192")
            else: e("s_nop 0")
            A.vmem(f"buffer_load_dwordx4 {vr(V_DO2)}, {sr(SRD_WD,4)}, {sr(S_DSO2)} offen lds", "WDP")
    def hk(w, addr, extra):
        O1, O2, O3 = 116, 120, 124
        for j in range(4):
            e(f"v_alignbit_b32 {vr(O1+j)}, {vr(w+j+1)}, {vr(w+j)}, 16")
            e(f"v_mov_b32 {vr(O2+j)}, {vr(w+j+1)}")
            e(f"v_alignbit_b32 {vr(O3+j)}, {vr(w+j+2)}, {vr(w+j+1)}, 16")
        e(f"ds_write_b128 {vr(addr)}, {vr(w,4)} offset:{extra}")
        e(f"ds_write_b128 {vr(addr)}, {vr(O1,4)} offset:{extra+HCOPY}")
        e(f"ds_write_b128 {vr(addr)}, {vr(O2,4)} offset:{extra+2*HCOPY}")
        e(f"ds_write_b128 {vr(addr)}, {vr(O3,4)} offset:{extra+3*HCOPY}")
        e("s_nop 1")
    S_RH, S_UB = 71, 3
    V_PF = 30
    def job_hankel():
        e(f"s_and_b32 {sr(S_RH)}, {sr(S_LW)}, 1")
        e(f"s_mul_i32 {sr(S_T0)}, {sr(S_CIDX)}, {HCH}")
        e(f"s_add_u32 {sr(S_T0)}, {sr(S_T0)}, {L_HANK}")
        e(f"s_lshl_b32 {sr(S_T1)}, {sr(S_RH)}, 11")
        e(f"s_add_u32 {sr(S_T1)}, {sr(S_T1)}, {sr(S_T0)}")
        e(f"v_add_u32 {vr(27)}, {sr(S_T0)}, {vr(V_L16)}")
        e(f"v_add_u32 {vr(28)}, {sr(S_T1)}, {vr(V_L16)}")
        for y in range(2): hk(HK[y], 28, 32 + 1024*y)
        lpb = A.newlabel("PB")
        e(f"s_cmp_lg_u32 {sr(S_RH)}, 0")
        e(f"s_cbranch_scc1 {lpb}")
        e(f"s_mov_b64 {sr(S_EX,2)}, exec")
        e("s_mov_b64 exec, 3")
        w = HK[0]
        for r in range(4): e(f"v_mov_b32 {vr(w+r)}, 0")
        e(f"v_mov_b32 {vr(w+4)}, {vr(HPB)}"); e(f"v_mov_b32 {vr(w+5)}, {vr(HPB+1)}")
        hk(w, 27, 0)
        e(f"s_mov_b64 exec, {sr(S_EX,2)}")
        A.label(lpb)
    V_DD = 32; V_CA = 35; V_CB = 29
    CACC = 192; CSET = [64, 128]
    def conv_addr():
        e(f"s_and_b32 {sr(S_RH)}, {sr(S_LW)}, 1")
        e(f"s_mul_i32 {sr(S_UB)}, {sr(S_LW)}, {UBSZ}")
        e(f"s_add_u32 {sr(S_UB)}, {sr(S_UB)}, {L_UB}")
        e(f"v_and_b32 {vr(t0)}, 15, {L}")
        e(f"v_lshrrev_b32 {vr(t1)}, 4, {L}")
        e(f"v_lshl_add_u32 {vr(t2)}, {vr(t1)}, 3, {vr(t0)}")
        e(f"v_add_u32 {vr(t2)}, 1, {vr(t2)}")
        e(f"v_and_b32 {vr(t3)}, 3, {vr(t2)}")
        e(f"v_sub_u32 {vr(t2)}, {vr(t2)}, {vr(t3)}")
        e(f"v_lshlrev_b32 {vr(t2)}, 1, {vr(t2)}")
        e(f"v_mul_u32_u24 {vr(t3)}, {HCOPY}, {vr(t3)}")
        e(f"v_add_u32 {vr(t2)}, {vr(t2)}, {vr(t3)}")
        e(f"s_mul_i32 {sr(S_T0)}, {sr(S_CIDX)}, {HCH}")
        e(f"s_lshl_b32 {sr(S_T1)}, {sr(S_RH)}, 8")
        e(f"s_add_u32 {sr(S_T0)}, {sr(S_T0)}, {sr(S_T1)}")
        e(f"s_add_u32 {sr(S_T0)}, {sr(S_T0)}, {L_HANK}")
        e(f"v_add_u32 {vr(V_CA)}, {sr(S_T0)}, {vr(t2)}")
        e(f"v_lshlrev_b32 {vr(t2)}, 1, {vr(t0)}")
        e(f"v_sub_u32 {vr(t2)}, {vr(t1)}, {vr(t2)}")
        e(f"v_add_u32 {vr(t2)}, 254, {vr(t2)}")
        e(f"v_lshlrev_b32 {vr(t2)}, 4, {vr(t2)}")
        e(f"s_add_u32 {sr(S_T0)}, {sr(S_UB)}, {sr(S_T1)}")
        e(f"s_sub_u32 {sr(S_T0)}, {sr(S_T0)}, 3584")
        e(f"v_add_u32 {vr(V_CB)}, {sr(S_T0)}, {vr(t2)}")
        for r in range(32): e(f"v_mov_b32 {vr(CACC+r)}, 0")
    def pt(it): return [tiles] if PPOS == it else []
    dma_stage(2)
    it_end(0, [lambda: dma_stage(3)] + pt(0), waits=())
    it_end(1, [lambda: dma_stage(4)] + pt(1), waits=("S2", "NL"))
    job_nonce_sts()
    TRI = {-1: 2, 0: 4, 1: 5}[PPOS]
    for it in range(2, 8):
        if it == TRI: job_tr_store()
        if it == opts.get('slit', 3): job_sl()
        if it == TRI + opts.get('kvfd', 2): job_kvf()
        if it == 4: job_conv_scalars(); job_row_srds() if False else None
        if it == 5: job_wd_setup()
        if it == 6: job_statchk(); conv_addr()
        if it == TRI + 3 and it <= 7:
            job_row_srds(); flag_issue(V_FL, 2, S_KVO, "PKV")
        if it == TRI + 4 and it <= 7: job_pkv_check()
        if it == TRI + 5 and it <= 7:
            lk7 = A.newlabel("K7")
            e(f"s_cmp_eq_u32 {sr(S_OKF)}, 1")
            e(f"s_cbranch_scc0 {lk7}")
            A.wait_vm("UK")
            kv_chunk(0); kv_chunk(1)
            A.label(lk7)
        if it == opts.get("hankit", 7): job_hankel()
        if it == 7: break
        st = []
        if it + 3 <= 7: st.append(lambda it=it: dma_stage(it + 3))
        if it == opts.get('hkit', 2): st.append(hk_loads)
        if it == opts.get('wtit', 3): st.append(wd_touch)
        if it == 5: st.append(lambda: [wd_dma(n) for n in range(0, 5)])
        if it == 6: st.append(lambda: [wd_dma(n) for n in range(5, 10)])
        w_ = [f"S{it+1}"]
        if it + 1 == TRI: w_.append("P")
        it_end(it, st, waits=tuple(w_))
    done_chunks01 = (TRI + 5 <= 7); done_check = (TRI + 4 <= 7); done_pkv = (TRI + 3 <= 7)
    e("s_waitcnt lgkmcnt(0)")
    e("s_barrier")
    stamp(3)
    wd_dma(10)
    if not done_pkv:
        job_row_srds(); flag_issue(V_FL, 2, S_KVO, "PKV")
    srd(SRD_AUX, 5, 1024)
    e(f"s_lshl_b32 {sr(S_T0)}, {sr(S_C)}, 1")
    A.vmem(f"buffer_load_ushort {vr(V_DD)}, off, {sr(SRD_AUX,4)}, {sr(S_T0)}", "DD")
    if not done_check: job_pkv_check()
    if opts.get("hankit", 7) > 7: job_hankel()
    e("s_waitcnt lgkmcnt(0)")
    e(f"s_lshl_b32 {sr(S_T0)}, {sr(S_LW)}, 2")
    e(f"s_add_u32 {sr(S_T0)}, {sr(S_T0)}, {L_FLAG}")
    e(f"v_mov_b32 {vr(V_PF)}, {sr(S_T0)}")
    e(f"v_mov_b32 {vr(V_PF+1)}, 1")
    e(f"ds_write_b32 {vr(V_PF)}, {vr(V_PF+1)} offset:96")
    A.wait_vm("WDP")
    e(f"ds_write_b32 {vr(V_PF)}, {vr(V_PF+1)} offset:16")
    lko2 = A.newlabel("KO2"); lko3 = A.newlabel("KO3")
    e(f"s_cmp_eq_u32 {sr(S_OKF)}, 1")
    e(f"s_cbranch_scc1 {lko2}")
    flag_wait_blocking(V_FL, 2, S_KVO, sleep=4)
    uk_loads(False)
    e("s_waitcnt vmcnt(0)")
    if done_chunks01:
        kv_chunk(0); kv_chunk(1)
    A.label(lko2)
    A.wait_vm("UK", "DD")
    if not done_chunks01:
        kv_chunk(0); kv_chunk(1)
    kv_chunk(2); kv_chunk(3)
    e(f"v_add_u32 {vr(26)}, {sr(S_UB)}, {vr(V_L16)}")
    for q in range(4): e(f"ds_write_b128 {vr(26)}, {vr(KR+8*q,4)} offset:{1024*q}")
    for r in range(4): e(f"v_mov_b32 {vr(52+r)}, 0")
    e(f"v_and_b32 {vr(t0)}, 31, {L}")
    e(f"v_lshlrev_b32 {vr(t0)}, 4, {vr(t0)}")
    e(f"v_add_u32 {vr(t0)}, {sr(S_UB)}, {vr(t0)}")
    e(f"ds_write_b128 {vr(t0)}, {vr(52,4)} offset:4096")
    e(f"v_lshlrev_b32 {vr(V_DD)}, 16, {vr(V_DD)}")
    e(f"s_lshl_b32 {sr(S_T0)}, {sr(S_LW)}, 2")
    e(f"s_xor_b32 {sr(S_T0)}, {sr(S_T0)}, 4")
    e(f"s_add_u32 {sr(S_T0)}, {sr(S_T0)}, {L_FLAG+96}")
    lds_spin(S_T0, t1, t0)
    e("s_waitcnt lgkmcnt(0)")
    if opts.get("gate", 1):
        e(f"s_lshl_b32 {sr(S_T0)}, {sr(S_LW)}, 2")
        e(f"s_add_u32 {sr(S_T0)}, {sr(S_T0)}, {L_FLAG+48}")
        lds_spin(S_T0, t1, t0)
    stamp(4)
    def creads(r, st):
        out = []; b = CSET[st]
        for sp in range(8):
            out.append(f"ds_read_b64 {vr(b+4*sp,2)}, {vr(V_CA)} offset:{512*sp+64*r}")
            out.append(f"ds_read_b64 {vr(b+4*sp+2,2)}, {vr(V_CA)} offset:{512*sp+64*r+8}")
            out.append(f"ds_read_b128 {vr(b+32+4*sp,4)}, {vr(V_CB)} offset:{512*(7-sp)+64*r}")
        return out
    def cmfmas(st):
        out = []; b = CSET[st]
        for t in range(8):
            for sp in range(t + 1):
                out.append(f"v_mfma_f32_16x16x32_bf16 {vr(CACC+4*t,4)}, {vr(b+4*sp,4)}, {vr(b+32+4*(t-sp),4)}, {vr(CACC+4*t,4)}")
        return out
    V_UU = 224
    e(f"v_and_b32 {vr(t0)}, 15, {L}")
    e(f"v_lshrrev_b32 {vr(t1)}, 4, {L}")
    e(f"v_lshlrev_b32 {vr(t2)}, 2, {vr(t0)}")
    e(f"v_add_u32 {vr(t2)}, {vr(t2)}, {vr(t1)}")
    e(f"v_lshlrev_b32 {vr(t2)}, 3, {vr(t2)}")
    e(f"s_lshl_b32 {sr(S_T1)}, {sr(S_RH)}, 11")
    e(f"s_sub_u32 {sr(S_T0)}, {sr(S_UB)}, {sr(S_T1)}")
    e(f"s_add_u32 {sr(S_T0)}, {sr(S_T0)}, {4088 - 1536}")
    e(f"v_sub_u32 {vr(t3)}, {sr(S_T0)}, {vr(t2)}")
    for tt in range(4): e(f"ds_read_b64 {vr(V_UU+2*tt,2)}, {vr(t3)} offset:{512*(3-tt)}")
    for x in creads(0, 0): e(x)
    for r in range(4):
        e("s_waitcnt lgkmcnt(0)")
        mf = cmfmas(r & 1)
        rd = creads(r + 1, (r + 1) & 1) if r < 3 else []
        for idx, m in enumerate(mf):
            e(m)
            if idx < len(rd): e(rd[idx])
    stamp(5)
    e("s_nop 7")
    e(f"v_add_u32 {vr(t3)}, {sr(S_UB)}, {vr(V_L16)}")
    l1 = A.newlabel("PR"); l2 = A.newlabel("PR")
    e(f"s_cmp_eq_u32 {sr(S_RH)}, 0")
    e(f"s_cbranch_scc1 {l1}")
    for tt in range(4): e(f"ds_write_b128 {vr(t3)}, {vr(CACC+4*tt,4)} offset:{1024*tt}")
    e("s_nop 1")
    for r in range(16): e(f"v_mov_b32 {vr(CACC+r)}, {vr(CACC+16+r)}")
    e(f"s_branch {l2}")
    A.label(l1)
    for tt in range(4): e(f"ds_write_b128 {vr(t3)}, {vr(CACC+16+4*tt,4)} offset:{1024*tt}")
    A.label(l2)
    e("s_waitcnt lgkmcnt(0)")
    e(f"ds_write_b32 {vr(V_PF)}, {vr(V_PF+1)}")
    e(f"s_lshl_b32 {sr(S_T0)}, {sr(S_LW)}, 2")
    e(f"s_add_u32 {sr(S_T0)}, {sr(S_T0)}, {L_FLAG}")
    e(f"s_xor_b32 {sr(S_T0)}, {sr(S_T0)}, 4")
    lds_spin(S_T0, t1, t0)
    e(f"s_xor_b32 {sr(S_T0)}, {sr(S_LW)}, 1")
    e(f"s_mul_i32 {sr(S_T0)}, {sr(S_T0)}, {UBSZ}")
    e(f"s_add_u32 {sr(S_T0)}, {sr(S_T0)}, {L_UB}")
    e(f"v_add_u32 {vr(t3)}, {sr(S_T0)}, {vr(V_L16)}")
    V_PP = 80
    for tt in range(4): e(f"ds_read_b128 {vr(V_PP+4*tt,4)}, {vr(t3)} offset:{1024*tt}")
    e("s_waitcnt lgkmcnt(0)")
    for r in range(16): e(f"v_add_f32 {vr(CACC+r)}, {vr(CACC+r)}, {vr(V_PP+r)}")
    V_YP = 96
    for tt in range(4):
        y = CACC + 4*tt; u0, u1 = V_UU + 2*tt, V_UU + 2*tt + 1; U = 112 + 4*(tt & 1)
        e(f"v_and_b32 {vr(U+0)}, 0xffff0000, {vr(u1)}")
        e(f"v_lshlrev_b32 {vr(U+1)}, 16, {vr(u1)}")
        e(f"v_and_b32 {vr(U+2)}, 0xffff0000, {vr(u0)}")
        e(f"v_lshlrev_b32 {vr(U+3)}, 16, {vr(u0)}")
        for k in range(4): e(f"v_fma_f32 {vr(y+k)}, {vr(U+k)}, {vr(V_DD)}, {vr(y+k)}")
        e(f"v_cvt_pk_bf16_f32 {vr(V_YP+2*tt)}, {vr(y+0)}, {vr(y+1)}")
        e(f"v_cvt_pk_bf16_f32 {vr(V_YP+2*tt+1)}, {vr(y+2)}, {vr(y+3)}")
    e("s_nop 1")
    for p in range(2):
        e(f"v_permlane16_swap_b32 {vr(V_YP+4*p)}, {vr(V_YP+4*p+2)}")
        e(f"v_permlane16_swap_b32 {vr(V_YP+4*p+1)}, {vr(V_YP+4*p+3)}")
    e(f"v_and_b32 {vr(t0)}, 15, {L}")
    e(f"v_lshrrev_b32 {vr(t1)}, 4, {L}")
    e(f"v_and_b32 {vr(t2)}, 1, {vr(t1)}")
    e(f"v_lshlrev_b32 {vr(t2)}, 9, {vr(t2)}")
    e(f"v_and_b32 {vr(t1)}, 2, {vr(t1)}")
    e(f"v_lshlrev_b32 {vr(t1)}, 3, {vr(t1)}")
    e(f"v_lshlrev_b32 {vr(t0)}, 5, {vr(t0)}")
    e(f"v_add3_u32 {vr(t0)}, {vr(t0)}, {vr(t1)}, {vr(t2)}")
    e(f"s_lshl_b32 {sr(S_T0)}, {sr(S_C)}, 12")
    e(f"s_lshl_b32 {sr(S_T1)}, {sr(S_RH)}, 11")
    e(f"s_add_u32 {sr(S_T0)}, {sr(S_T0)}, {sr(S_T1)}")
    e(f"s_add_u32 {sr(S_T0)}, {sr(S_T0)}, {WS_YYT}")
    for p in range(2):
        e(f"buffer_store_dwordx4 {vr(V_YP+4*p,4)}, {vr(t0)}, {sr(SRD_WS,4)}, {sr(S_T0)} offen offset:{1024*p} sc0 sc1")
    e("s_waitcnt vmcnt(0)")
    e(f"s_lshr_b32 {sr(S_T0)}, {sr(S_C)}, 6")
    e(f"s_lshl_b32 {sr(S_T0)}, {sr(S_T0)}, 9")
    e(f"s_and_b32 {sr(S_T1)}, {sr(S_WG)}, 31")
    e(f"s_lshl_b32 {sr(S_T1)}, {sr(S_T1)}, 4")
    e(f"s_lshl_b32 {sr(S_T2)}, {sr(S_LW)}, 2")
    e(f"s_add_u32 {sr(S_T0)}, {sr(S_T0)}, {sr(S_T1)}")
    e(f"s_add_u32 {sr(S_T0)}, {sr(S_T0)}, {sr(S_T2)}")
    e(f"s_add_u32 {sr(S_T0)}, {sr(S_T0)}, {WS_FL+FL_Y}")
    flag_set(S_T0, t0)
    stamp(6)
    ly1 = A.newlabel("YP"); ly2 = A.newlabel("YP")
    e(f"s_cmp_lg_u32 {sr(S_LW)}, 0")
    e(f"s_cbranch_scc1 {ly1}")
    if opts.get("ygate"):
        e(f"s_mov_b32 {sr(S_T0)}, {L_FLAG+64}")
        lds_spin(S_T0, t1, t0, sleep=4)
    e(f"s_lshl_b32 {sr(S_T0)}, {sr(S_J)}, 9")
    e(f"s_add_u32 {sr(S_T0)}, {sr(S_T0)}, {WS_FL+FL_Y}")
    flag_wait_blocking(V_FL, 2, S_T0, sleep=opts.get('ysleep', 8))
    e(f"v_mov_b32 {vr(t0)}, {L_FLAG+68}")
    e(f"v_mov_b32 {vr(t1)}, 1")
    e(f"ds_write_b32 {vr(t0)}, {vr(t1)}")
    e(f"s_branch {ly2}")
    A.label(ly1)
    e(f"s_mov_b32 {sr(S_T0)}, {L_FLAG+68}")
    lds_spin(S_T0, t1, t0, sleep=4)
    A.label(ly2)
    stamp(7)
    e(f"v_lshrrev_b32 {vr(t0)}, 3, {L}")
    e(f"v_and_b32 {vr(t1)}, 7, {L}")
    e(f"s_lshl_b32 {sr(S_T0)}, {sr(S_LW)}, 4")
    e(f"v_add_u32 {vr(t0)}, {sr(S_T0)}, {vr(t0)}")
    e(f"v_lshlrev_b32 {vr(t2)}, 12, {vr(t0)}")
    e(f"v_lshl_add_u32 {vr(t2)}, {vr(t1)}, 4, {vr(t2)}")
    e(f"s_lshl_b32 {sr(S_T0)}, {sr(S_J)}, 18")
    e(f"s_lshl_b32 {sr(S_T1)}, {sr(S_I2)}, 7")
    e(f"s_add_u32 {sr(S_T0)}, {sr(S_T0)}, {sr(S_T1)}")
    e(f"s_add_u32 {sr(S_T0)}, {sr(S_T0)}, {WS_YYT}")
    e(f"buffer_load_dwordx4 {vr(64,4)}, {vr(t2)}, {sr(SRD_WS,4)}, {sr(S_T0)} offen sc1")
    e(f"v_add_u32 {vr(t2)}, {8*4096}, {vr(t2)}")
    e(f"buffer_load_dwordx4 {vr(68,4)}, {vr(t2)}, {sr(SRD_WS,4)}, {sr(S_T0)} offen sc1")
    e(f"v_mul_u32_u24 {vr(t3)}, {YTROW}, {vr(t0)}")
    e(f"v_lshl_add_u32 {vr(t3)}, {vr(t1)}, 4, {vr(t3)}")
    e(f"v_add_u32 {vr(t3)}, {L_YT}, {vr(t3)}")
    e("s_waitcnt vmcnt(1)")
    e(f"ds_write_b128 {vr(t3)}, {vr(64,4)}")
    e("s_waitcnt vmcnt(0)")
    e(f"ds_write_b128 {vr(t3)}, {vr(68,4)} offset:{8*YTROW}")
    srd(SRD_OUT, 10, 2 << 20)

    A.label("L_FINAL")
    e("s_setprio 0")
    FT, FD, FO = 28, 29, 30
    e(f"v_lshrrev_b32 {vr(t0)}, 5, {L}")
    e(f"v_and_b32 {vr(t1)}, 3, {L}")
    e(f"v_lshl_add_u32 {vr(FT)}, {vr(t0)}, 2, {vr(t1)}")
    e(f"s_lshl_b32 {sr(S_T0)}, {sr(S_WAVE)}, 3")
    e(f"v_add_u32 {vr(FT)}, {sr(S_T0)}, {vr(FT)}")
    e(f"v_bfe_u32 {vr(FD)}, {L}, 2, 3")
    e(f"s_lshl_b32 {sr(S_T0)}, {sr(S_I2)}, 16")
    e(f"s_lshl_b32 {sr(S_T1)}, {sr(S_J)}, 7")
    e(f"s_add_u32 {sr(S_T0)}, {sr(S_T0)}, {sr(S_T1)}")
    e(f"v_lshlrev_b32 {vr(FO)}, 10, {vr(FT)}")
    e(f"v_lshl_add_u32 {vr(FO)}, {vr(FD)}, 4, {vr(FO)}")
    e(f"v_add_u32 {vr(FO)}, {sr(S_T0)}, {vr(FO)}")
    FX_, FS_ = 32, 36
    e(f"buffer_load_dwordx4 {vr(FX_,4)}, {vr(FO)}, {sr(SRD_Q,4)}, 0 offen")
    S_FSO = S_G5
    e(f"s_lshl_b32 {sr(S_FSO)}, {sr(S_I2)}, 9")
    e(f"s_add_u32 {sr(S_FSO)}, {sr(S_FSO)}, {WS_ST}")
    V_FSA = 31
    e(f"v_lshlrev_b32 {vr(V_FSA)}, 3, {vr(FT)}")
    e(f"buffer_load_dwordx2 {vr(FS_,2)}, {vr(V_FSA)}, {sr(SRD_WS,4)}, {sr(S_FSO)} offen sc1")
    e("s_waitcnt lgkmcnt(0)")
    e("s_barrier")
    stamp(9)
    FP = 40
    e(f"v_and_b32 {vr(t0)}, 31, {vr(FT)}")
    e(f"v_mul_u32_u24 {vr(t0)}, 272, {vr(t0)}")
    e(f"v_lshl_add_u32 {vr(t0)}, {vr(FD)}, 5, {vr(t0)}")
    e(f"s_cmp_lt_u32 {sr(S_WAVE)}, 4")
    e(f"s_cselect_b32 {sr(S_T0)}, {RA}, {RB_}")
    e(f"v_add_u32 {vr(t0)}, {sr(S_T0)}, {vr(t0)}")
    for kg in range(4):
        e(f"ds_read_b128 {vr(FP+8*kg,4)}, {vr(t0)} offset:{kg*10240}")
        e(f"ds_read_b128 {vr(FP+8*kg+4,4)}, {vr(t0)} offset:{kg*10240+16}")
    FY = 72
    e(f"v_bfe_u32 {vr(t2)}, {L}, 2, 2")
    e(f"v_and_b32 {vr(t3)}, 3, {L}")
    e(f"v_bfe_u32 {vr(t4)}, {L}, 4, 1")
    e(f"v_lshl_add_u32 {vr(t3)}, {vr(t4)}, 2, {vr(t3)}")
    e(f"v_lshl_add_u32 {vr(t2)}, {vr(t3)}, 3, {vr(t2)}")
    e(f"v_mul_u32_u24 {vr(t2)}, {YTROW}, {vr(t2)}")
    e(f"v_lshrrev_b32 {vr(t3)}, 5, {L}")
    e(f"v_lshlrev_b32 {vr(t3)}, 3, {vr(t3)}")
    e(f"s_lshl_b32 {sr(S_T0)}, {sr(S_WAVE)}, 4")
    e(f"s_add_u32 {sr(S_T0)}, {sr(S_T0)}, {L_YT}")
    e(f"v_add3_u32 {vr(t2)}, {vr(t2)}, {vr(t3)}, {sr(S_T0)}")
    e(f"ds_read_b64_tr_b16 {vr(FY,2)}, {vr(t2)}")
    e(f"ds_read_b64_tr_b16 {vr(FY+2,2)}, {vr(t2)} offset:{4*YTROW}")
    e("s_waitcnt lgkmcnt(2)")
    for kg in range(1, 4):
        for k in range(8): e(f"v_add_f32 {vr(FP+k)}, {vr(FP+k)}, {vr(FP+8*kg+k)}")
    O = FP; T = 48; XV = 56; YV = 64
    for k in range(0, 8, 2): e(f"v_cvt_pk_bf16_f32 {vr(T+k)}, {vr(O+k)}, {vr(O+k+1)}")
    for k in range(0, 8, 2):
        e(f"v_and_b32 {vr(O+k+1)}, 0xffff0000, {vr(T+k)}")
        e(f"v_lshlrev_b32 {vr(O+k)}, 16, {vr(T+k)}")
    e(f"s_mov_b32 {sr(S_T0)}, 0xbfb8aa3b")
    for k in range(8): e(f"v_mul_f32 {vr(T+k)}, {sr(S_T0)}, {vr(O+k)}")
    for k in range(8): e(f"v_exp_f32 {vr(T+k)}, {vr(T+k)}")
    for k in range(8): e(f"v_add_f32 {vr(T+k)}, 1.0, {vr(T+k)}")
    for k in range(8): e(f"v_rcp_f32 {vr(T+k)}, {vr(T+k)}")
    e("s_nop 0")
    for k in range(8): e(f"v_mul_f32 {vr(O+k)}, {vr(O+k)}, {vr(T+k)}")
    e("s_waitcnt vmcnt(0) lgkmcnt(0)")
    lf1 = A.newlabel("FS"); lf2 = A.newlabel("FS")
    e(f"s_mov_b32 {sr(S_T3)}, 0x40000")
    A.label(lf1)
    e(f"v_cmp_eq_u32 vcc, {sr(S_NONCE)}, {vr(FS_+1)}")
    e("s_nop 1")
    e("s_cmp_eq_u64 vcc, -1")
    e(f"s_cbranch_scc1 {lf2}")
    e(f"s_sub_u32 {sr(S_T3)}, {sr(S_T3)}, 1")
    e(f"s_cmp_eq_u32 {sr(S_T3)}, 0")
    e(f"s_cbranch_scc1 {lf2}")
    e(f"buffer_load_dwordx2 {vr(FS_,2)}, {vr(V_FSA)}, {sr(SRD_WS,4)}, {sr(S_FSO)} offen sc1")
    e("s_waitcnt vmcnt(0)")
    e(f"s_branch {lf1}")
    A.label(lf2)
    for k in range(4):
        e(f"v_lshlrev_b32 {vr(XV+2*k)}, 16, {vr(FX_+k)}")
        e(f"v_and_b32 {vr(XV+2*k+1)}, 0xffff0000, {vr(FX_+k)}")
        e(f"v_lshlrev_b32 {vr(YV+2*k)}, 16, {vr(FY+k)}")
        e(f"v_and_b32 {vr(YV+2*k+1)}, 0xffff0000, {vr(FY+k)}")
    e(f"v_and_b32 {vr(FS_+1)}, 0xffff0000, {vr(FS_)}")
    e(f"v_lshlrev_b32 {vr(FS_)}, 16, {vr(FS_)}")
    e(f"v_rcp_f32 {vr(FS_+1)}, {vr(FS_+1)}")
    for k in range(8): e(f"v_sub_f32 {vr(T+k)}, {vr(XV+k)}, {vr(FS_)}")
    def round8(b):
        for k in range(0, 8, 2): e(f"v_cvt_pk_bf16_f32 {vr(b+k)}, {vr(b+k)}, {vr(b+k+1)}")
        for k in range(0, 8, 2):
            e(f"v_and_b32 {vr(b+k+1)}, 0xffff0000, {vr(b+k)}")
            e(f"v_lshlrev_b32 {vr(b+k)}, 16, {vr(b+k)}")
    if not opts.get("lightfinal"): round8(T)
    for k in range(8): e(f"v_mul_f32 {vr(T+k)}, {vr(T+k)}, {vr(FS_+1)}")
    round8(T)
    for k in range(8): e(f"v_mul_f32 {vr(T+k)}, {vr(T+k)}, {vr(YV+k)}")
    if not opts.get("lightfinal"):
        round8(T); round8(O)
    for k in range(8): e(f"v_mul_f32 {vr(T+k)}, {vr(T+k)}, {vr(O+k)}")
    if not opts.get("lightfinal"): round8(T)
    for k in range(8): e(f"v_add_f32 {vr(T+k)}, {vr(T+k)}, {vr(XV+k)}")
    for k in range(4): e(f"v_cvt_pk_bf16_f32 {vr(FY+k)}, {vr(T+2*k)}, {vr(T+2*k+1)}")
    e(f"buffer_store_dwordx4 {vr(FY,4)}, {vr(FO)}, {sr(SRD_OUT,4)}, 0 offen" + (" sc0 sc1" if opts.get("outwt") else (" nt" if opts.get("outnt") else "")))
    stamp(10)
    stamp_flush()
    A.label("L_END")
    e("s_endpgm")
    A.label("L_CODE_END")

    body = A.text()
    hdr = open("cdna_kernels/" + NAME + ".s.ref").read().split("; Override launch geometry")[0]
    out = hdr + "; Override launch geometry by editing the next line.\n"
    out += f"; @launch grid=(256,1,1) block=(512,1,1) lds={LDS_TOTAL}\n"
    out += f""".amdgcn_target "amdgcn-amd-amdhsa--gfx950"
.text
.globl {NAME}_kernel
.p2align 8
.type {NAME}_kernel,@function
{NAME}_kernel:
"""
    out += body
    out += f""".section .rodata,"a"
.p2align 6
.amdhsa_kernel {NAME}_kernel
  .amdhsa_next_free_vgpr 256
  .amdhsa_next_free_sgpr 102
  .amdhsa_accum_offset 256
  .amdhsa_group_segment_fixed_size 0
  .amdhsa_kernarg_size 104
  .amdhsa_user_sgpr_count 2
  .amdhsa_user_sgpr_kernarg_segment_ptr 1
  .amdhsa_system_sgpr_workgroup_id_x 1
.end_amdhsa_kernel
"""
    return out

if __name__ == "__main__":
    opts = {}
    outp = sys.argv[1]
    for a in sys.argv[2:]:
        k, _, v = a.partition("=")
        opts[k] = (int(v) if v.lstrip("-").isdigit() else (v or True))
    open(outp, "w").write(gen(opts))
```

```python
import sys, struct

NAME = "recurrent_scan__ssm_conv_h3__glu_gated_geglu__prompt"
f2u = lambda x: struct.unpack("<I", struct.pack("<f", x))[0]

class Asm:
    def __init__(self):
        self.lines = []; self.nlabel = 0; self.vm = []; self.cap = None
    def e(self, s):
        if self.cap is not None: self.cap.append(("  " + s, None))
        else: self.lines.append("  " + s)
    def label(self, l):
        assert self.cap is None, l
        self.lines.append(l + ":")
    def newlabel(self, p="L"):
        self.nlabel += 1; return f"{p}_{self.nlabel}"
    def text(self): return "\n".join(self.lines) + "\n"
    def vmem(self, s, tag):
        if self.cap is not None:
            self.cap.append(("  " + s, tag)); return
        self.e(s); self.vm.append(tag)
    def capture(self, fn):
        assert self.cap is None
        self.cap = []
        fn()
        out = self.cap; self.cap = None
        return out
    def emit_list(self, lst):
        for line, tag in lst:
            self.lines.append(line)
            if tag is not None: self.vm.append(tag)
    def merge(self, a, b):
        groups = []; cur = []
        for it in a:
            cur.append(it)
            if it[1] is not None: groups.append(cur); cur = []
        if cur: groups.append(cur)
        n = len(groups); out = []; k = 0
        for gi, g in enumerate(groups):
            out += g
            upto = (len(b) * (gi + 1)) // n
            out += b[k:upto]; k = upto
        out += b[k:]
        return out
    def wait_vm(self, *tags):
        assert self.cap is None
        last = -1
        for i, t in enumerate(self.vm):
            if t in tags: last = i
        assert last >= 0, tags
        n = len(self.vm) - 1 - last
        n = min(n, 63)
        self.e(f"s_waitcnt vmcnt({n})")
        return n

def vr(a, n=1): return f"v{a}" if n == 1 else f"v[{a}:{a+n-1}]"
def sr(a, n=1): return f"s{a}" if n == 1 else f"s[{a}:{a+n-1}]"

S, D, F = 2048, 512, 1376
WROW = F * 2
WBYTES = 512 * WROW
WS_KVT, WS_YYT, WS_HF, WS_ST, WS_FL, WS_TS = 0, 2 << 20, 4 << 20, 12 << 20, 13 << 20, 16 << 20
WS_VT = 14 << 20
FL_KV, FL_ST, FL_H, FL_Y = 0, 4096, 8192, 12288
STAGE = 40960
L_HANK = 122880
HCOPY = 4160
HCH = 4 * HCOPY
L_MISC = L_HANK + 2 * HCH
L_CS = L_MISC
L_STAT = L_MISC + 1536
L_FLAG = L_MISC + 2560
LDS_TOTAL = 163840
L_KT, L_VT = L_HANK, L_HANK + 8192
RA, RB_ = 2 * STAGE, 0
L_UB = STAGE
UBSZ = 4608
L_YT = L_UB + 4 * UBSZ
YTROW = 144
RC = L_YT + 64 * YTROW
NR = 11
def ring_off(n):
    if n < 5: return (0, n * 2048)
    if n < 10: return (1, (n - 5) * 2048)
    return (2, 0)

SRD_Q, SRD_K, SRD_V, SRD_W, SRD_WD, SRD_WS, SRD_DBG, SRD_OUT, SRD_SK, SRD_AUX = 4, 8, 12, 16, 20, 24, 28, 32, 36, 40
P = 48
S_WG = 2
S_WAVE, S_RB, S_CP, S_I2, S_J, S_F0, S_N32, S_A, S_B = 76, 77, 78, 79, 80, 81, 82, 83, 84
S_NONCE = 85
S_T0, S_T1, S_T2, S_T3, S_T4, S_T5 = 86, 87, 88, 89, 90, 91
S_G0, S_G1, S_G2, S_G3, S_G4, S_G5 = 92, 93, 94, 95, 96, 97
S_C0, S_C1 = 98, 99
S_EX = 100
S_TSP = 74
S_X0, S_X1, S_X2, S_X3 = 44, 45, 46, 47

def gen(opts):
    A = Asm(); e = A.e
    TS = opts.get("ts", False)
    HSC = "" if opts.get("hplain", 1) else " sc1"
    USC = "" if opts.get("uplain", 1) else " sc1"
    t0, t1, t2, t3, t4, t5 = 8, 9, 10, 11, 12, 13
    V_LANE = 3; L = vr(V_LANE)
    V_TS = 15

    def stamp(idx, dyn=None):
        if not TS: return
        e(f"{'s_memtime' if opts.get('cyc') else 's_memrealtime'} {sr(S_TSP,2)}")
        e("s_waitcnt lgkmcnt(0)")
        if dyn is None:
            e(f"v_writelane_b32 {vr(V_TS)}, {sr(S_TSP)}, {idx}")
        else:
            e(f"s_add_u32 m0, {sr(dyn)}, {idx}")
            e("s_nop 0")
            e(f"v_writelane_b32 {vr(V_TS)}, {sr(S_TSP)}, m0")
    def stamp_flush():
        if not TS: return
        e(f"s_lshl_b32 {sr(S_TSP+1)}, {sr(S_WG)}, 3")
        e(f"s_add_u32 {sr(S_TSP+1)}, {sr(S_TSP+1)}, {sr(S_WAVE)}")
        e(f"s_lshl_b32 {sr(S_TSP+1)}, {sr(S_TSP+1)}, 8")
        e(f"s_add_u32 {sr(S_TSP+1)}, {sr(S_TSP+1)}, {WS_TS}")
        e(f"v_lshlrev_b32 v14, 2, {L}")
        e(f"buffer_store_dword {vr(V_TS)}, v14, {sr(SRD_WS,4)}, {sr(S_TSP+1)} offen")

    def srd(dst, pidx, nbytes):
        e(f"s_mov_b32 {sr(dst)}, {sr(P+2*pidx)}")
        e(f"s_mov_b32 {sr(dst+1)}, {sr(P+2*pidx+1)}")
        e(f"s_mov_b32 {sr(dst+2)}, {nbytes}")
        e(f"s_mov_b32 {sr(dst+3)}, 0x20000")

    def flag_issue(vdst, nw, soff_sgpr, tag):
        e(f"v_lshlrev_b32 {vr(t5)}, {1 + nw}, {L}")
        op = "buffer_load_dword" if nw == 1 else "buffer_load_dwordx2"
        A.vmem(f"{op} {vr(vdst,nw)}, {vr(t5)}, {sr(SRD_WS,4)}, {sr(soff_sgpr)} offen sc1", tag)
    def flag_check_scc(vdst, nw):
        e(f"v_cmp_eq_u32 vcc, {sr(S_NONCE)}, {vr(vdst)}")
        if nw == 2:
            e(f"v_cmp_eq_u32 {sr(S_T4,2)}, {sr(S_NONCE)}, {vr(vdst+1)}")
            e("s_nop 1")
            e(f"s_and_b64 vcc, vcc, {sr(S_T4,2)}")
        else:
            e("s_nop 1")
        e("s_cmp_eq_u64 vcc, -1")
    def flag_wait_blocking(vdst, nw, soff_sgpr, sleep=4):
        l = A.newlabel("POLL"); d = A.newlabel("POLLD")
        n0 = len(A.vm)
        e(f"s_mov_b32 {sr(S_T3)}, 0x40000")
        A.label(l)
        flag_issue(vdst, nw, soff_sgpr, "poll")
        e("s_waitcnt vmcnt(0)")
        flag_check_scc(vdst, nw)
        e(f"s_cbranch_scc1 {d}")
        e(f"s_sub_u32 {sr(S_T3)}, {sr(S_T3)}, 1")
        e(f"s_cmp_eq_u32 {sr(S_T3)}, 0")
        e(f"s_cbranch_scc1 {d}")
        e(f"s_sleep {sleep}")
        e(f"s_branch {l}")
        A.label(d)
        del A.vm[n0:]
    def flag_set(soff_sgpr, vtmp):
        e(f"v_mov_b32 {vr(vtmp)}, {sr(S_NONCE)}")
        e(f"s_mov_b64 {sr(S_EX,2)}, exec")
        e("s_mov_b64 exec, 1")
        A.vmem(f"buffer_store_dword {vr(vtmp)}, off, {sr(SRD_WS,4)}, {sr(soff_sgpr)} sc0 sc1", "flag")
        e(f"s_mov_b64 exec, {sr(S_EX,2)}")
    def lds_spin(addr_sgpr, vt, va, sleep=1):
        l = A.newlabel("LS"); d = A.newlabel("LSD")
        e(f"v_mov_b32 {vr(va)}, {sr(addr_sgpr)}")
        e(f"s_mov_b32 {sr(S_T3)}, 0x200000")
        A.label(l)
        e(f"ds_read_b32 {vr(vt)}, {vr(va)}")
        e("s_waitcnt lgkmcnt(0)")
        e(f"v_readfirstlane_b32 {sr(S_T2)}, {vr(vt)}")
        e("s_nop 3")
        e(f"s_cmp_eq_u32 {sr(S_T2)}, 1")
        e(f"s_cbranch_scc1 {d}")
        e(f"s_sub_u32 {sr(S_T3)}, {sr(S_T3)}, 1")
        e(f"s_cmp_eq_u32 {sr(S_T3)}, 0")
        e(f"s_cbranch_scc1 {d}")
        e(f"s_sleep {sleep}")
        e(f"s_branch {l}")
        A.label(d)
    def wd_voffset(dst):
        e(f"v_lshrrev_b32 {vr(t0)}, 3, {L}")
        e(f"v_and_b32 {vr(t1)}, 7, {L}")
        e(f"v_bfe_u32 {vr(t2)}, {L}, 4, 1")
        e(f"v_lshlrev_b32 {vr(t2)}, 2, {vr(t2)}")
        e(f"v_xor_b32 {vr(t1)}, {vr(t1)}, {vr(t2)}")
        e(f"v_lshlrev_b32 {vr(t1)}, 4, {vr(t1)}")
        e(f"v_lshl_add_u32 {vr(t1)}, {vr(t0)}, 10, {vr(t1)}")
        e(f"s_lshl_b32 {sr(S_T1)}, {sr(S_J)}, 7")
        e(f"v_add_u32 {vr(dst)}, {sr(S_T1)}, {vr(t1)}")
    def ku_start(dst, kg):
        e(f"s_mul_i32 {sr(dst)}, {sr(kg)}, 22")
        e(f"s_cmp_eq_u32 {sr(kg)}, 3")
        e(f"s_cselect_b32 {sr(S_T1)}, 1, 0")
        e(f"s_sub_u32 {sr(dst)}, {sr(dst)}, {sr(S_T1)}")
    def unit_at(n, dst, rot, kun):
        e(f"s_add_u32 {sr(dst)}, {sr(rot)}, {n}")
        e(f"s_cmp_ge_u32 {sr(dst)}, 22")
        e(f"s_cselect_b32 {sr(S_T5)}, 22, 0")
        e(f"s_sub_u32 {sr(dst)}, {sr(dst)}, {sr(S_T5)}")
        e(f"s_cmp_lt_u32 {sr(dst)}, {sr(kun)}")
    def wd_soff(n, dst, rot, kun, ku0, oob):
        unit_at(n, dst, rot, kun)
        e(f"s_cselect_b32 {sr(S_T5)}, 1, 0")
        e(f"s_add_u32 {sr(dst)}, {sr(dst)}, {sr(ku0)}")
        e(f"s_lshl_b32 {sr(dst)}, {sr(dst)}, 14")
        e(f"s_cmp_eq_u32 {sr(S_T5)}, 1")
        e(f"s_cselect_b32 {sr(dst)}, {sr(dst)}, {sr(oob)}")
    def ring_bases(kg, ra, rb, rc):
        e(f"s_mul_i32 {sr(ra)}, {sr(kg)}, 10240")
        e(f"s_add_u32 {sr(rb)}, {sr(ra)}, {RB_}")
        e(f"s_add_u32 {sr(ra)}, {sr(ra)}, {RA}")
        e(f"s_lshl_b32 {sr(rc)}, {sr(kg)}, 11")
        e(f"s_add_u32 {sr(rc)}, {sr(rc)}, {RC}")

    def loader_setup(lw, V_XO, V_WO, S_M0X, S_M0W):
        e(f"v_lshrrev_b32 {vr(t0)}, 3, {L}")
        e(f"v_lshrrev_b32 {vr(t1)}, 4, {L}")
        e(f"v_and_b32 {vr(t2)}, 7, {L}")
        e(f"s_lshl_b32 {sr(S_T2)}, {sr(S_RB)}, 7")
        e(f"s_lshl_b32 {sr(S_T3)}, {sr(lw)}, 5")
        e(f"s_add_u32 {sr(S_T2)}, {sr(S_T2)}, {sr(S_T3)}")
        for a in range(2):
            e(f"v_add_u32 {vr(t3)}, {4*a}, {vr(t1)}")
            e(f"v_xor_b32 {vr(t3)}, {vr(t3)}, {vr(t2)}")
            e(f"v_lshlrev_b32 {vr(t3)}, 4, {vr(t3)}")
            e(f"v_add_u32 {vr(t4)}, {sr(S_T2)}, {vr(t0)}")
            e(f"v_add_u32 {vr(t4)}, {8*a}, {vr(t4)}")
            e(f"v_lshl_add_u32 {vr(V_XO+a)}, {vr(t4)}, 10, {vr(t3)}")
        e(f"s_and_b32 {sr(S_T1)}, {sr(lw)}, 1")
        e(f"s_lshl_b32 {sr(S_T3)}, {sr(S_T1)}, 1")
        e(f"s_lshr_b32 {sr(S_T4)}, {sr(lw)}, 1")
        e(f"s_lshl_b32 {sr(S_T4)}, {sr(S_T4)}, 5")
        e(f"s_lshl_b32 {sr(S_T5)}, {sr(S_F0)}, 1")
        e(f"s_movk_i32 {sr(S_T0)}, {WROW}")
        for i in range(3):
            e(f"v_add_u32 {vr(t0)}, {64*i}, {L}")
            e(f"v_lshrrev_b32 {vr(t1)}, 4, {vr(t0)}")
            e(f"v_mul_u32_u24 {vr(t1)}, 43, {vr(t1)}")
            e(f"v_lshrrev_b32 {vr(t1)}, 7, {vr(t1)}")
            e(f"v_mul_u32_u24 {vr(t2)}, 48, {vr(t1)}")
            e(f"v_sub_u32 {vr(t2)}, {vr(t0)}, {vr(t2)}")
            e(f"v_lshrrev_b32 {vr(t3)}, 4, {vr(t2)}")
            e(f"v_bfe_u32 {vr(t4)}, {vr(t2)}, 2, 2")
            e(f"v_and_b32 {vr(t2)}, 3, {vr(t2)}")
            e(f"v_xor_b32 {vr(t2)}, {sr(S_T3)}, {vr(t2)}")
            e(f"v_lshl_add_u32 {vr(t2)}, {vr(t3)}, 2, {vr(t2)}")
            e(f"v_lshl_add_u32 {vr(t1)}, {vr(t1)}, 2, {vr(t4)}")
            e(f"v_add_u32 {vr(t1)}, {sr(S_T4)}, {vr(t1)}")
            e(f"v_mul_u32_u24 {vr(t1)}, {sr(S_T0)}, {vr(t1)}")
            e(f"v_lshl_add_u32 {vr(t2)}, {vr(t2)}, 4, {vr(t1)}")
            e(f"v_add_u32 {vr(V_WO+i)}, {sr(S_T5)}, {vr(t2)}")
        e(f"s_lshl_b32 {sr(S_M0X)}, {sr(lw)}, 12")
        e(f"s_mul_i32 {sr(S_M0W)}, {sr(S_T1)}, 12288")
        e(f"s_lshr_b32 {sr(S_T4)}, {sr(lw)}, 1")
        e(f"s_mul_i32 {sr(S_T4)}, {sr(S_T4)}, 6144")
        e(f"s_add_u32 {sr(S_M0W)}, {sr(S_M0W)}, {sr(S_T4)}")
        e(f"s_add_u32 {sr(S_M0W)}, {sr(S_M0W)}, 16384")
    def srd_w_select(lw):
        e(f"s_and_b32 {sr(S_T0)}, {sr(lw)}, 1")
        e(f"s_cmp_eq_u32 {sr(S_T0)}, 0")
        e(f"s_cselect_b32 {sr(SRD_W)}, {sr(P+14)}, {sr(P+16)}")
        e(f"s_cselect_b32 {sr(SRD_W+1)}, {sr(P+15)}, {sr(P+17)}")
        e(f"s_mov_b32 {sr(SRD_W+2)}, {WBYTES}")
        e(f"s_mov_b32 {sr(SRD_W+3)}, 0x20000")
    def dma_stage_g(s, V_XO, V_WO, S_M0X, S_M0W, S_XSO, S_WSO):
        slot = (s % 3) * STAGE
        e(f"s_mov_b32 {sr(S_XSO)}, {s*128}")
        e(f"s_add_u32 m0, {sr(S_M0X)}, {slot}")
        for a in range(4):
            if a == 2: e(f"s_mov_b32 {sr(S_XSO)}, {s*128+16384}")
            else: e("s_nop 0")
            A.vmem(f"buffer_load_dwordx4 {vr(V_XO+(a&1))}, {sr(SRD_Q,4)}, {sr(S_XSO)} offen lds", f"S{s}")
            if a < 3: e("s_add_u32 m0, m0, 1024")
        e(f"s_mov_b32 {sr(S_WSO)}, {s*64*WROW}")
        e(f"s_add_u32 m0, {sr(S_M0W)}, {slot}")
        for blk in range(2):
            for i in range(3):
                if blk == 1 and i == 0: e(f"s_mov_b32 {sr(S_WSO)}, {s*64*WROW+16*WROW}")
                else: e("s_nop 0")
                A.vmem(f"buffer_load_dwordx4 {vr(V_WO+i)}, {sr(SRD_W,4)}, {sr(S_WSO)} offen lds", f"S{s}")
                if not (blk == 1 and i == 2): e("s_add_u32 m0, m0, 1024")

    if TS: e("s_memrealtime s[44:45]")
    e(f"s_cmp_ge_u32 {sr(S_WG)}, 256")
    e("s_cbranch_scc1 L_END")
    e(f"s_load_dwordx16 {sr(P,16)}, s[0:1], 0")
    e(f"s_load_dwordx8 {sr(P+16,8)}, s[0:1], 64")
    e(f"s_load_dwordx2 {sr(P+24,2)}, s[0:1], 96")
    e(f"s_getpc_b64 {sr(S_T0,2)}")
    e("v_lshlrev_b32 v1, 6, v0")
    e(f"v_cmp_gt_u32 vcc, L_CODE_END-{NAME}_kernel, v1")
    e(f"s_and_saveexec_b64 {sr(S_EX,2)}, vcc")
    e(f"global_load_dword v2, v1, {sr(S_T0,2)}")
    e(f"s_mov_b64 exec, {sr(S_EX,2)}")
    e(f"v_and_b32 {L}, 63, v0")
    e("v_lshrrev_b32 v4, 6, v0")
    e(f"s_and_b32 {sr(S_T0)}, {sr(S_WG)}, 7")
    e(f"v_readfirstlane_b32 {sr(S_WAVE)}, v4")
    e(f"s_lshr_b32 {sr(S_T1)}, {sr(S_WG)}, 3")
    e(f"s_and_b32 {sr(S_T2)}, {sr(S_T0)}, 1")
    e(f"s_lshl_b32 {sr(S_T2)}, {sr(S_T2)}, 3")
    e(f"s_and_b32 {sr(S_T3)}, {sr(S_T1)}, 7")
    e(f"s_add_u32 {sr(S_RB)}, {sr(S_T2)}, {sr(S_T3)}")
    e(f"s_lshr_b32 {sr(S_T2)}, {sr(S_T0)}, 1")
    e(f"s_lshl_b32 {sr(S_T2)}, {sr(S_T2)}, 2")
    e(f"s_lshr_b32 {sr(S_T3)}, {sr(S_T1)}, 3")
    e(f"s_add_u32 {sr(S_CP)}, {sr(S_T2)}, {sr(S_T3)}")
    e(f"s_lshl_b32 {sr(S_T2)}, {sr(S_T0)}, 2")
    e(f"s_and_b32 {sr(S_T3)}, {sr(S_T1)}, 3")
    e(f"s_add_u32 {sr(S_I2)}, {sr(S_T2)}, {sr(S_T3)}")
    e(f"s_lshr_b32 {sr(S_J)}, {sr(S_T1)}, 2")
    e(f"s_mul_i32 {sr(S_T2)}, {sr(S_CP)}, 96")
    e(f"s_lshl_b32 {sr(S_T3)}, {sr(S_CP)}, 6")
    e(f"s_add_u32 {sr(S_T3)}, {sr(S_T3)}, 352")
    e(f"s_cmp_lt_u32 {sr(S_CP)}, 11")
    e(f"s_cselect_b32 {sr(S_F0)}, {sr(S_T2)}, {sr(S_T3)}")
    e(f"s_cselect_b32 {sr(S_N32)}, 3, 2")
    if TS:
        e(f"v_mov_b32 {vr(V_TS)}, 0")
        e("s_waitcnt lgkmcnt(0)")
        e(f"v_writelane_b32 {vr(V_TS)}, s44, 63")
        e(f"s_memrealtime s[44:45]")
        e("s_waitcnt lgkmcnt(0)")
        e(f"v_writelane_b32 {vr(V_TS)}, s44, 62")
    e(f"s_cmp_ge_u32 {sr(S_WAVE)}, 4")
    e("s_cbranch_scc1 L_HELPER")

    A.vm = ["code"]
    e(f"s_setprio {opts.get('cprio', 2)}")
    e(f"s_and_b32 {sr(S_A)}, {sr(S_WAVE)}, 1")
    e(f"s_lshr_b32 {sr(S_B)}, {sr(S_WAVE)}, 1")
    FS = [16, 36]
    V_XR, V_WR, V_XR2, V_WR2 = 56, 60, 66, 70
    ACC = 160
    e(f"v_and_b32 {vr(t0)}, 31, {L}")
    e(f"v_lshrrev_b32 {vr(t1)}, 5, {L}")
    e(f"v_bfe_u32 {vr(t2)}, {vr(t0)}, 1, 3")
    e(f"v_xor_b32 {vr(t2)}, {vr(t2)}, {vr(t1)}")
    e(f"s_lshl_b32 {sr(S_T0)}, {sr(S_A)}, 1")
    e(f"v_xor_b32 {vr(t2)}, {sr(S_T0)}, {vr(t2)}")
    e(f"s_lshl_b32 {sr(S_T0)}, {sr(S_A)}, 6")
    e(f"v_add_u32 {vr(t0)}, {sr(S_T0)}, {vr(t0)}")
    e(f"v_lshlrev_b32 {vr(t0)}, 7, {vr(t0)}")
    for ks in range(4):
        e(f"v_xor_b32 {vr(t3)}, {2*ks}, {vr(t2)}")
        e(f"v_lshl_add_u32 {vr(V_XR+ks)}, {vr(t3)}, 4, {vr(t0)}")
    e(f"v_bfe_u32 {vr(t0)}, {L}, 4, 1")
    e(f"v_lshrrev_b32 {vr(t1)}, 5, {L}")
    e(f"v_bfe_u32 {vr(t2)}, {L}, 2, 2")
    e(f"v_bfe_u32 {vr(t3)}, {L}, 1, 1")
    e(f"v_and_b32 {vr(t4)}, 1, {L}")
    e(f"s_lshl_b32 {sr(S_T0)}, {sr(S_B)}, 1")
    e(f"v_add_u32 {vr(t3)}, {sr(S_T0)}, {vr(t3)}")
    e(f"v_lshlrev_b32 {vr(t5)}, 1, {vr(t0)}")
    e(f"v_xor_b32 {vr(t3)}, {vr(t3)}, {vr(t5)}")
    e(f"v_lshlrev_b32 {vr(t3)}, 4, {vr(t3)}")
    e(f"v_lshl_add_u32 {vr(t3)}, {vr(t4)}, 3, {vr(t3)}")
    e(f"v_lshl_add_u32 {vr(t3)}, {vr(t2)}, 6, {vr(t3)}")
    e(f"v_mul_u32_u24 {vr(t1)}, 1536, {vr(t1)}")
    e(f"v_mul_u32_u24 {vr(t0)}, 12288, {vr(t0)}")
    e(f"v_add3_u32 {vr(t3)}, {vr(t3)}, {vr(t1)}, {vr(t0)}")
    e(f"v_add_u32 {vr(t3)}, 16384, {vr(t3)}")
    e(f"s_mul_i32 {sr(S_T1)}, {sr(S_A)}, 3072")
    for i in range(3):
        e(f"s_cmp_eq_u32 {sr(S_A)}, 0")
        e(f"s_cselect_b32 {sr(S_T0)}, {i*256}, {(2-i)*256}")
        e(f"s_add_u32 {sr(S_T2)}, {sr(S_T0)}, {sr(S_T1)}")
        e(f"v_add_u32 {vr(V_WR+i)}, {sr(S_T2)}, {vr(t3)}")
        e(f"s_sub_u32 {sr(S_T2)}, {sr(S_T0)}, {sr(S_T1)}")
        e(f"v_add_u32 {vr(V_WR+3+i)}, {sr(S_T2)}, {vr(t3)}")
    for ks in range(4): e(f"v_add_u32 {vr(V_XR2+ks)}, {2*STAGE}, {vr(V_XR+ks)}")
    for i in range(6): e(f"v_add_u32 {vr(V_WR2+i)}, {2*STAGE}, {vr(V_WR+i)}")
    loader_setup(S_WAVE, 94, 96, S_X0, S_X1)
    for r in range(96): e(f"v_mov_b32 {vr(ACC+r)}, 0")
    for r in range(12): e(f"v_mov_b32 {vr(80+r)}, 0")
    e(f"v_and_b32 {vr(t0)}, 15, {L}")
    e(f"v_bfe_u32 {vr(t1)}, {L}, 4, 1")
    e(f"v_cmp_eq_u32 vcc, {vr(t0)}, {vr(t1)}")
    e(f"v_mov_b32 {vr(t2)}, 0x3f803f80")
    e("s_nop 0")
    e(f"v_cndmask_b32 {vr(76)}, 0, {vr(t2)}, vcc")
    for r in range(1, 4): e(f"v_mov_b32 {vr(76+r)}, {vr(76)}")
    e("s_waitcnt lgkmcnt(0)")
    srd(SRD_Q, 0, 2 << 20); srd(SRD_WD, 9, WBYTES); srd(SRD_OUT, 10, 2 << 20); srd(SRD_WS, 12, 0x10000000)
    V_TX, V_TW, V_DUM = 100, 101, 92
    BAD = 0x7fffff00
    e(f"s_and_b32 {sr(S_T0)}, {sr(S_CP)}, 3")
    e(f"s_lshl_b32 {sr(S_T0)}, {sr(S_T0)}, 5")
    e(f"s_lshl_b32 {sr(S_T1)}, {sr(S_RB)}, 7")
    e(f"s_add_u32 {sr(S_T0)}, {sr(S_T0)}, {sr(S_T1)}")
    e(f"v_and_b32 {vr(t1)}, 31, {L}")
    e(f"v_add_u32 {vr(t1)}, {sr(S_T0)}, {vr(t1)}")
    e(f"v_lshlrev_b32 {vr(t1)}, 10, {vr(t1)}")
    e(f"v_lshrrev_b32 {vr(t0)}, 5, {L}")
    e(f"v_lshl_add_u32 {vr(V_TX)}, {vr(t0)}, 7, {vr(t1)}")
    e(f"v_cmp_gt_u32 vcc, 32, {L}")
    e(f"v_mov_b32 {vr(t2)}, {BAD}")
    e("s_nop 0")
    e(f"v_cndmask_b32 {vr(V_TX+2)}, {vr(t2)}, {vr(V_TX)}, vcc")
    e(f"s_and_b32 {sr(S_T0)}, {sr(S_RB)}, 7")
    e(f"s_lshl_b32 {sr(S_T0)}, {sr(S_T0)}, 3")
    e(f"v_lshrrev_b32 {vr(t0)}, 4, {L}")
    e(f"v_lshlrev_b32 {vr(t3)}, 6, {vr(t0)}")
    e(f"v_bfe_u32 {vr(t1)}, {L}, 1, 3")
    e(f"v_add3_u32 {vr(t3)}, {vr(t3)}, {vr(t1)}, {sr(S_T0)}")
    e(f"s_movk_i32 {sr(S_T1)}, {WROW}")
    e(f"v_mul_lo_u32 {vr(t1)}, {vr(t3)}, {sr(S_T1)}")
    e(f"v_and_b32 {vr(t2)}, 1, {L}")
    e(f"v_lshl_add_u32 {vr(t1)}, {vr(t2)}, 7, {vr(t1)}")
    e(f"s_lshl_b32 {sr(S_T1)}, {sr(S_F0)}, 1")
    e(f"v_add_u32 {vr(V_TW)}, {sr(S_T1)}, {vr(t1)}")
    e(f"v_mov_b32 {vr(t2)}, {BAD}")
    e(f"v_cmp_gt_u32 vcc, 48, {L}")
    e("s_nop 0")
    e(f"v_cndmask_b32 {vr(V_TW+2)}, {vr(t2)}, {vr(V_TW)}, vcc")
    e(f"v_cmp_gt_u32 vcc, 16, {L}")
    e("s_nop 1")
    e(f"v_cndmask_b32 {vr(V_TW+3)}, {vr(t2)}, {vr(V_TW)}, vcc")
    e(f"s_cmp_eq_u32 {sr(S_WAVE)}, 1")
    e(f"s_cselect_b32 {sr(SRD_K)}, {sr(P+14)}, {sr(P+16)}")
    e(f"s_cselect_b32 {sr(SRD_K+1)}, {sr(P+15)}, {sr(P+17)}")
    e(f"s_mov_b32 {sr(SRD_K+2)}, {WBYTES}")
    e(f"s_mov_b32 {sr(SRD_K+3)}, 0x20000")
    NPT = opts.get("npt", 3)
    def touch(stage_lo, nst):
        l1 = A.newlabel("TC"); l2 = A.newlabel("TC")
        e(f"s_cmp_eq_u32 {sr(S_WAVE)}, 0"); e(f"s_cbranch_scc0 {l1}")
        if nst == 1:
            e(f"s_movk_i32 {sr(S_T0)}, {stage_lo*128}")
            e(f"buffer_load_dword {vr(V_DUM)}, {vr(V_TX+2)}, {sr(SRD_Q,4)}, {sr(S_T0)} offen")
        else:
            e(f"s_movk_i32 {sr(S_T0)}, {stage_lo*128}")
            e(f"buffer_load_dword {vr(V_DUM)}, {vr(V_TX)}, {sr(SRD_Q,4)}, {sr(S_T0)} offen")
            e(f"s_movk_i32 {sr(S_T0)}, {(stage_lo+2)*128}")
            e(f"buffer_load_dword {vr(V_DUM)}, {vr(V_TX+2)}, {sr(SRD_Q,4)}, {sr(S_T0)} offen")
        e(f"s_branch {l2}")
        A.label(l1)
        e(f"s_mov_b32 {sr(S_T0)}, {stage_lo*64*WROW}")
        e(f"s_cmp_eq_u32 {sr(S_WAVE)}, 3")
        e(f"s_cselect_b32 {sr(S_T0)}, 0x40000000, {sr(S_T0)}")
        e(f"buffer_load_dword {vr(V_DUM)}, {vr(V_TW+3 if nst == 1 else V_TW+2)}, {sr(SRD_K,4)}, {sr(S_T0)} offen")
        A.label(l2)
    touch(1, 3)
    if opts.get("tlb"):
        ltl = A.newlabel("TLB")
        e(f"s_cmp_eq_u32 {sr(S_WAVE)}, 3"); e(f"s_cbranch_scc0 {ltl}")
        e(f"v_lshlrev_b32 {vr(t1)}, 18, {L}")
        e(f"s_lshl_b32 {sr(S_T0)}, {sr(S_WG)}, 7")
        e(f"buffer_load_dword {vr(V_DUM)}, {vr(t1)}, {sr(SRD_WS,4)}, {sr(S_T0)} offen")
        e(f"v_lshlrev_b32 {vr(t1)}, 15, {L}")
        e(f"buffer_load_dword {vr(V_DUM)}, {vr(t1)}, {sr(SRD_OUT,4)}, {sr(S_T0)} offen")
        A.label(ltl)
    TLEAD = opts.get("tlead", 4)
    for st_ in range(4, TLEAD): touch(st_, 1)
    if opts.get("tfirst", 1): e("s_barrier")
    srd_w_select(S_WAVE)
    dma_stage_g(1, 94, 96, S_X0, S_X1, S_X2, S_X3)
    TOUCH2 = []
    stamp(0)
    def reads(stage, ks, st):
        b = FS[st]; out = []
        slot = stage % 3
        xr, wr, o = (V_XR, V_WR, slot*STAGE) if slot < 2 else (V_XR2, V_WR2, 0)
        out.append(f"ds_read_b128 {vr(b,4)}, {vr(xr+ks)} offset:{o}")
        wa = wr + (3 if ks & 1 else 0)
        for h in range(2): out.append(f"ds_read_b64_tr_b16 {vr(b+8+2*h,2)}, {vr(wa)} offset:{o+ks*3072+h*768}")
        out.append(f"ds_read_b128 {vr(b+4,4)}, {vr(xr+ks)} offset:{o+4096}")
        for i in range(1, 3):
            for h in range(2): out.append(f"ds_read_b64_tr_b16 {vr(b+8+4*i+2*h,2)}, {vr(wa+i)} offset:{o+ks*3072+h*768}")
        return out
    V_SEL = 76; V_CSA = 80
    def kstep(ks, st, nxt, job=()):
        b = FS[st]; mf = []
        for i in range(3):
            for tt in range(2):
                a = ACC + 16*(2*i+tt)
                mf.append((f"v_mfma_f32_32x32x16_bf16 {vr(a,16)}, {vr(b+8+4*i,4)}, {vr(b+4*tt,4)}, {vr(a,16)}", 4))
            if ks % 2 == 0 and not opts.get("nocs"):
                mf.append((f"v_mfma_f32_16x16x32_bf16 {vr(V_CSA+4*i,4)}, {vr(V_SEL,4)}, {vr(b+8+4*i,4)}, {vr(V_CSA+4*i,4)}", 2))
        fill = list(nxt) + list(job)
        cap = sum(c for _, c in mf)
        k = 0; done = 0
        for m, c in mf:
            e(m)
            done += c
            upto = (len(fill) * done + cap - 1) // cap
            for x in fill[k:upto]: e(x)
            k = max(k, upto)
    job_at = {}
    e("s_barrier")
    stamp(1)
    for x in reads(0, 0, 0): e(x)
    for it in range(8):
        for ks in range(4):
            g = 4*it + ks
            if ks == 3 and it < 7:
                e("s_waitcnt vmcnt(1) lgkmcnt(0)" if it == 0 else "s_waitcnt lgkmcnt(0)")
                if opts.get("barstamp"): stamp(24 + it)
                e("s_barrier")
                if opts.get("barstamp"): stamp(32 + it)
            else:
                e("s_waitcnt lgkmcnt(0)")
            if ks == 1 and it + TLEAD <= 7: touch(it + TLEAD, 1)
            if ks < 3: nxt = reads(it, ks + 1, (g + 1) & 1)
            elif it < 7: nxt = reads(it + 1, 0, (g + 1) & 1)
            else: nxt = []
            kstep(ks, g & 1, nxt, job_at.get(g, []))
        if opts.get("itstamp"): stamp(16 + it)
    stamp(2)
    e("s_nop 7")
    e(f"s_lshl_b32 {sr(S_T0)}, {sr(S_B)}, 1")
    e(f"s_add_u32 {sr(S_T0)}, {sr(S_T0)}, {sr(S_A)}")
    e(f"s_mul_i32 {sr(S_T0)}, {sr(S_T0)}, 384")
    e(f"s_add_u32 {sr(S_T0)}, {sr(S_T0)}, {L_CS}")
    e(f"v_lshlrev_b32 {vr(t0)}, 2, {L}")
    e(f"v_add_u32 {vr(t0)}, {sr(S_T0)}, {vr(t0)}")
    e(f"s_mov_b64 {sr(S_EX,2)}, exec")
    e("s_mov_b64 exec, 0xffff")
    for i in range(3):
        e(f"s_cmp_eq_u32 {sr(S_A)}, 0")
        e(f"s_cselect_b32 {sr(S_T1)}, {i*128}, {(2-i)*128}")
        e(f"v_add_u32 {vr(t1)}, {sr(S_T1)}, {vr(t0)}")
        e(f"ds_write_b32 {vr(t1)}, {vr(80+4*i)}")
        e(f"ds_write_b32 {vr(t1)}, {vr(80+4*i+1)} offset:64")
    e(f"s_mov_b64 exec, {sr(S_EX,2)}")
    e("s_waitcnt lgkmcnt(0)")
    e("s_barrier")
    stamp(3)
    if opts.get("g1only"):
        stamp_flush()
        e("s_endpgm")
    e("s_setprio 2")
    e(f"v_mov_b32 {vr(t0)}, {L_FLAG+32}")
    e(f"ds_read_b32 {vr(t1)}, {vr(t0)}")
    ST = 84
    e(f"v_and_b32 {vr(t2)}, 31, {L}")
    e(f"v_lshlrev_b32 {vr(t2)}, 3, {vr(t2)}")
    e(f"s_lshl_b32 {sr(S_T0)}, {sr(S_A)}, 9")
    e(f"s_add_u32 {sr(S_T0)}, {sr(S_T0)}, {L_STAT}")
    e(f"v_add_u32 {vr(t2)}, {sr(S_T0)}, {vr(t2)}")
    e(f"ds_read_b64 {vr(ST,2)}, {vr(t2)}")
    e(f"ds_read_b64 {vr(ST+2,2)}, {vr(t2)} offset:256")
    CGS = [16, 32, 48]; CG2 = [64, 96, 112]
    e(f"v_lshrrev_b32 {vr(t5)}, 5, {L}")
    e(f"v_lshlrev_b32 {vr(t5)}, 4, {vr(t5)}")
    e(f"s_mul_i32 {sr(S_T0)}, {sr(S_B)}, 768")
    e(f"s_add_u32 {sr(S_T0)}, {sr(S_T0)}, {L_CS}")
    e(f"v_add_u32 {vr(t5)}, {sr(S_T0)}, {vr(t5)}")
    for i in range(3):
        e(f"s_cmp_eq_u32 {sr(S_A)}, 0")
        e(f"s_cselect_b32 {sr(S_T1)}, {i*128}, {(2-i)*128}")
        e(f"v_add_u32 {vr(t0)}, {sr(S_T1)}, {vr(t5)}")
        for rp in range(4): e(f"ds_read_b128 {vr(CGS[i]+4*rp,4)}, {vr(t0)} offset:{32*rp}")
        for rp in range(4): e(f"ds_read_b128 {vr(CG2[i]+4*rp,4)}, {vr(t0)} offset:{384+32*rp}")
    e("s_waitcnt lgkmcnt(0)")
    e(f"v_readfirstlane_b32 {sr(S_NONCE)}, {vr(t1)}")
    C1 = -2.0 * 0.7978845608028654 * 0.044715 * 1.4426950408889634
    C0 = -2.0 * 0.7978845608028654 * 1.4426950408889634
    NMp, K1p, K0p, IRp = [144, 146], [148, 150], [152, 154], [156, 158]
    e(f"s_mov_b32 {sr(S_T4)}, {f2u(C1):#x}")
    e(f"s_mov_b32 {sr(S_T5)}, {f2u(C0):#x}")
    for tt in range(2):
        m, r = ST + 2*tt, ST + 2*tt + 1
        e(f"v_sub_f32 {vr(NMp[tt])}, 0, {vr(m)}")
        e(f"v_mul_f32 {vr(K0p[tt])}, {sr(S_T5)}, {vr(r)}")
        e(f"v_mul_f32 {vr(t3)}, {vr(r)}, {vr(r)}")
        e(f"v_mul_f32 {vr(t4)}, {vr(t3)}, {vr(r)}")
        e(f"v_mul_f32 {vr(K1p[tt])}, {sr(S_T4)}, {vr(t4)}")
        e(f"v_rcp_f32 {vr(IRp[tt])}, {vr(t3)}")
        e("s_nop 1")
        for rr in (NMp, K0p, K1p, IRp): e(f"v_mov_b32 {vr(rr[tt]+1)}, {vr(rr[tt])}")
    for i in range(3):
        for k in range(0, 16, 2): e(f"v_pk_add_f32 {vr(CGS[i]+k,2)}, {vr(CGS[i]+k,2)}, {vr(CG2[i]+k,2)}")
    TT = 128; HP = [136, 140]
    e(f"v_lshlrev_b32 {vr(t4)}, 4, {L}")
    e(f"s_lshl_b32 {sr(S_T1)}, {sr(S_RB)}, 2")
    e(f"s_lshl_b32 {sr(S_T2)}, {sr(S_A)}, 1")
    e(f"s_add_u32 {sr(S_T1)}, {sr(S_T1)}, {sr(S_T2)}")
    e(f"s_mul_i32 {sr(S_T1)}, {sr(S_T1)}, 86")
    e(f"s_lshr_b32 {sr(S_T2)}, {sr(S_F0)}, 4")
    e(f"s_add_u32 {sr(S_T1)}, {sr(S_T1)}, {sr(S_T2)}")
    e(f"s_add_u32 {sr(S_T1)}, {sr(S_T1)}, {sr(S_B)}")
    e(f"s_lshl_b32 {sr(S_T1)}, {sr(S_T1)}, 10")
    e(f"s_add_u32 {sr(S_G2)}, {sr(S_T1)}, {WS_HF}")
    for i in range(3):
        lsk = A.newlabel("EP")
        if i == 1: e(f"s_mov_b32 {sr(S_T0)}, 1")
        else:
            e(f"s_cmp_eq_u32 {sr(S_A)}, 0")
            e(f"s_cselect_b32 {sr(S_T0)}, {i}, {2-i}")
        e(f"s_cmp_ge_u32 {sr(S_T0)}, {sr(S_N32)}")
        e(f"s_cbranch_scc1 {lsk}")
        e(f"s_lshl_b32 {sr(S_T0)}, {sr(S_T0)}, 11")
        e(f"s_add_u32 {sr(S_T1)}, {sr(S_G2)}, {sr(S_T0)}")
        e(f"s_add_u32 {sr(S_T2)}, {sr(S_T1)}, {86*1024}")
        CG = CGS[i]
        for tt in range(2):
            a = ACC + 16*(2*i+tt)
            NM, K1, K0, IR = NMp[tt], K1p[tt], K0p[tt], IRp[tt]
            G = [a+2*k for k in range(4)]; U = [a+8+2*k for k in range(4)]
            cg = [CG+2*k for k in range(4)]; cu = [CG+8+2*k for k in range(4)]
            T = [TT+2*k for k in range(4)]
            for k in range(4): e(f"v_pk_fma_f32 {vr(G[k],2)}, {vr(NM,2)}, {vr(cg[k],2)}, {vr(G[k],2)}")
            for k in range(4): e(f"v_pk_mul_f32 {vr(T[k],2)}, {vr(G[k],2)}, {vr(G[k],2)}")
            for k in range(4): e(f"v_pk_fma_f32 {vr(T[k],2)}, {vr(T[k],2)}, {vr(K1,2)}, {vr(K0,2)}")
            for k in range(4): e(f"v_pk_mul_f32 {vr(T[k],2)}, {vr(T[k],2)}, {vr(G[k],2)}")
            for k in range(4):
                e(f"v_exp_f32 {vr(TT+2*k)}, {vr(TT+2*k)}")
                e(f"v_exp_f32 {vr(TT+2*k+1)}, {vr(TT+2*k+1)}")
                e(f"v_pk_fma_f32 {vr(U[k],2)}, {vr(NM,2)}, {vr(cu[k],2)}, {vr(U[k],2)}")
            for k in range(4): e(f"v_pk_fma_f32 {vr(T[k],2)}, {vr(T[k],2)}, {vr(IR,2)}, {vr(IR,2)}")
            for k in range(4):
                e(f"v_rcp_f32 {vr(TT+2*k)}, {vr(TT+2*k)}")
                e(f"v_rcp_f32 {vr(TT+2*k+1)}, {vr(TT+2*k+1)}")
                e(f"v_pk_mul_f32 {vr(G[k],2)}, {vr(G[k],2)}, {vr(U[k],2)}")
            for k in range(4): e(f"v_pk_mul_f32 {vr(G[k],2)}, {vr(G[k],2)}, {vr(T[k],2)}")
            for k in range(4): e(f"v_cvt_pk_bf16_f32 {vr(HP[tt]+k)}, {vr(G[k])}, {vr(G[k]+1)}")
            A.vmem(f"buffer_store_dwordx4 {vr(HP[tt],4)}, {vr(t4)}, {sr(SRD_WS,4)}, {sr(S_T1 if tt == 0 else S_T2)} offen sc0 sc1", "hst")
        A.label(lsk)
    stamp(4)
    e(f"s_lshl_b32 {sr(S_T0)}, {sr(S_WAVE)}, 2")
    e(f"s_add_u32 {sr(S_T0)}, {sr(S_T0)}, {L_FLAG+48}")
    e(f"v_mov_b32 {vr(t0)}, {sr(S_T0)}")
    e(f"v_mov_b32 {vr(t1)}, 1")
    e(f"ds_write_b32 {vr(t0)}, {vr(t1)}")
    GACC = 160; PH = opts.get('ph', 8); GH = 16; GW = 80
    GACC = 176
    GW = 80
    GA = [168, 240]
    V_AR = 248
    V_HL, V_DO = 254, 255
    S_KU0, S_KUN, S_RA, S_RBB, S_RC, S_H0 = S_G0, S_G1, S_G2, S_G3, S_G4, S_G5
    S_H1, S_OOB, S_DSO, S_ROT, S_HB = S_C0, S_C1, S_X0, S_X1, S_X2
    e(f"s_mul_i32 {sr(S_ROT)}, {sr(S_J)}, {opts.get('rot', 3)}")
    ku_start(S_KU0, S_WAVE)
    e(f"s_cmp_lt_u32 {sr(S_WAVE)}, 2")
    e(f"s_cselect_b32 {sr(S_KUN)}, 22, 21")
    ring_bases(S_WAVE, S_RA, S_RBB, S_RC)
    wd_voffset(V_DO)
    e(f"v_lshrrev_b32 {vr(t0)}, 5, {L}")
    e(f"v_bfe_u32 {vr(t1)}, {L}, 2, 2")
    e(f"v_lshl_add_u32 {vr(t0)}, {vr(t0)}, 2, {vr(t1)}")
    e(f"v_lshlrev_b32 {vr(t0)}, 7, {vr(t0)}")
    e(f"v_bfe_u32 {vr(t2)}, {L}, 4, 1")
    e(f"v_bfe_u32 {vr(t3)}, {L}, 1, 1")
    e(f"v_lshl_add_u32 {vr(t2)}, {vr(t2)}, 1, {vr(t3)}")
    e(f"v_lshlrev_b32 {vr(t2)}, 4, {vr(t2)}")
    e(f"v_and_b32 {vr(t3)}, 1, {L}")
    e(f"v_lshl_add_u32 {vr(t2)}, {vr(t3)}, 3, {vr(t2)}")
    e(f"v_add_u32 {vr(t0)}, {vr(t0)}, {vr(t2)}")
    e(f"v_bfe_u32 {vr(t1)}, {L}, 3, 1")
    e(f"v_lshlrev_b32 {vr(t1)}, 6, {vr(t1)}")
    e(f"v_add_u32 {vr(t2)}, {vr(t0)}, {vr(t1)}")
    e(f"v_xor_b32 {vr(t1)}, 64, {vr(t1)}")
    e(f"v_add_u32 {vr(t3)}, {vr(t0)}, {vr(t1)}")
    for bi, sb in enumerate((S_RA, S_RBB, S_RC)):
        e(f"v_add_u32 {vr(V_AR+2*bi)}, {sr(sb)}, {vr(t2)}")
        e(f"v_add_u32 {vr(V_AR+2*bi+1)}, {sr(sb)}, {vr(t3)}")
    e(f"v_lshlrev_b32 {vr(V_HL)}, 4, {L}")
    e(f"s_mov_b32 {sr(S_OOB)}, 0x20000000")
    e("s_waitcnt vmcnt(0)")
    e(f"s_lshl_b32 {sr(S_T0)}, {sr(S_RB)}, 8")
    e(f"s_lshl_b32 {sr(S_T1)}, {sr(S_CP)}, 4")
    e(f"s_lshl_b32 {sr(S_T2)}, {sr(S_WAVE)}, 2")
    e(f"s_add_u32 {sr(S_T0)}, {sr(S_T0)}, {sr(S_T1)}")
    e(f"s_add_u32 {sr(S_T0)}, {sr(S_T0)}, {sr(S_T2)}")
    e(f"s_add_u32 {sr(S_T0)}, {sr(S_T0)}, {WS_FL+FL_H}")
    flag_set(S_T0, t0)
    stamp(5)
    e(f"s_lshl_b32 {sr(S_T0)}, {sr(S_WAVE)}, 2")
    e(f"s_add_u32 {sr(S_T0)}, {sr(S_T0)}, {L_FLAG+16}")
    lds_spin(S_T0, t0, t1)
    def afrag_reads(n, dst):
        bi, off = ring_off(n); out = []
        for dt in range(2):
            for h in range(2):
                out.append(f"ds_read_b64_tr_b16 {vr(dst+4*dt+2*h,2)}, {vr(V_AR+2*bi+dt)} offset:{off+1024*h}")
        return out
    for n in range(NR):
        for x in afrag_reads(n, GW+8*n): e(x)
        if n % 3 == 2: e("s_waitcnt lgkmcnt(4)")
    e("s_waitcnt lgkmcnt(0)")
    for n in range(NR):
        bi, off = ring_off(n)
        sb = (S_RA, S_RBB, S_RC)[bi]
        wd_soff(NR + n, S_DSO, S_ROT, S_KUN, S_KU0, S_OOB)
        for a in range(2):
            e(f"s_add_u32 m0, {sr(sb)}, {off + 1024*a}")
            if a == 1: e(f"s_add_u32 {sr(S_DSO)}, {sr(S_DSO)}, 8192")
            else: e("s_nop 0")
            A.vmem(f"buffer_load_dwordx4 {vr(V_DO)}, {sr(SRD_WD,4)}, {sr(S_DSO)} offen lds", "WR2")
    for r in range(64): e(f"v_mov_b32 {vr(GACC+r)}, 0")
    stamp(6)
    e(f"s_lshr_b32 {sr(S_T0)}, {sr(S_I2)}, 1")
    e(f"s_lshl_b32 {sr(S_T0)}, {sr(S_T0)}, 8")
    e(f"s_add_u32 {sr(S_T0)}, {sr(S_T0)}, {WS_FL+FL_H}")
    lh1 = A.newlabel("HP"); lh2 = A.newlabel("HP")
    e(f"s_cmp_lg_u32 {sr(S_WAVE)}, 0")
    e(f"s_cbranch_scc1 {lh1}")
    flag_wait_blocking(t1, 1, S_T0, sleep=opts.get('hsleep', 2))
    e(f"v_mov_b32 {vr(t0)}, {L_FLAG+72}")
    e(f"v_mov_b32 {vr(t1)}, 1")
    e(f"ds_write_b32 {vr(t0)}, {vr(t1)}")
    e(f"s_branch {lh2}")
    A.label(lh1)
    e(f"s_mov_b32 {sr(S_T0)}, {L_FLAG+72}")
    lds_spin(S_T0, t1, t0, sleep=1)
    e("s_waitcnt vmcnt(0)")
    A.label(lh2)
    stamp(7)
    e(f"s_lshl_b32 {sr(S_T0)}, {sr(S_I2)}, 1")
    e(f"s_mul_i32 {sr(S_T0)}, {sr(S_T0)}, 86")
    e(f"s_add_u32 {sr(S_T0)}, {sr(S_T0)}, {sr(S_KU0)}")
    e(f"s_lshl_b32 {sr(S_T0)}, {sr(S_T0)}, 10")
    e(f"s_add_u32 {sr(S_HB)}, {sr(S_T0)}, {WS_HF}")
    A.vm = []
    def hload(n):
        hb = GH + 8*(n % PH)
        unit_at(n, S_H0, S_ROT, S_KUN)
        e(f"s_cselect_b32 {sr(S_T5)}, 1, 0")
        e(f"s_lshl_b32 {sr(S_H0)}, {sr(S_H0)}, 10")
        e(f"s_add_u32 {sr(S_H0)}, {sr(S_H0)}, {sr(S_HB)}")
        e(f"s_cmp_eq_u32 {sr(S_T5)}, 1")
        e(f"s_cselect_b32 {sr(S_H0)}, {sr(S_H0)}, {sr(S_OOB)}")
        e(f"s_add_u32 {sr(S_H1)}, {sr(S_H0)}, {86*1024}")
        A.vmem(f"buffer_load_dwordx4 {vr(hb,4)}, {vr(V_HL)}, {sr(SRD_WS,4)}, {sr(S_H0)} offen{HSC}", f"H{n}")
        A.vmem(f"buffer_load_dwordx4 {vr(hb+4,4)}, {vr(V_HL)}, {sr(SRD_WS,4)}, {sr(S_H1)} offen{HSC}", f"H{n}")
    for n in range(PH): hload(n)
    for n in range(22):
        hb = GH + 8*(n % PH)
        if n < NR: aw = GW + 8*n
        else: aw = GA[n & 1]
        if n + 1 >= NR and n + 1 < 22:
            for x in afrag_reads(n + 1 - NR, GA[(n+1) & 1]): e(x)
        A.wait_vm(f"H{n}")
        if n >= NR: e("s_waitcnt lgkmcnt(4)" if n + 1 < 22 else "s_waitcnt lgkmcnt(0)")
        e(f"v_mfma_f32_32x32x16_bf16 {vr(GACC,16)}, {vr(aw,4)}, {vr(hb,4)}, {vr(GACC,16)}")
        e(f"v_mfma_f32_32x32x16_bf16 {vr(GACC+16,16)}, {vr(aw,4)}, {vr(hb+4,4)}, {vr(GACC+16,16)}")
        e(f"v_mfma_f32_32x32x16_bf16 {vr(GACC+32,16)}, {vr(aw+4,4)}, {vr(hb,4)}, {vr(GACC+32,16)}")
        e(f"v_mfma_f32_32x32x16_bf16 {vr(GACC+48,16)}, {vr(aw+4,4)}, {vr(hb+4,4)}, {vr(GACC+48,16)}")
        if n + PH < 22: hload(n + PH)
        if n == opts.get("yun", 12):
            e(f"v_mov_b32 {vr(t0)}, {L_FLAG+64}")
            e(f"v_mov_b32 {vr(t1)}, 1")
            e(f"ds_write_b32 {vr(t0)}, {vr(t1)}")
        if opts.get("g2stamp") and n % 2 == 1: stamp(32 + n // 2)
    stamp(8)
    e("s_nop 7")
    e(f"v_and_b32 {vr(t0)}, 31, {L}")
    e(f"v_lshrrev_b32 {vr(t1)}, 5, {L}")
    e(f"v_mul_u32_u24 {vr(t0)}, 272, {vr(t0)}")
    e(f"v_lshl_add_u32 {vr(t0)}, {vr(t1)}, 4, {vr(t0)}")
    e(f"v_add_u32 {vr(t1)}, {sr(S_RBB)}, {vr(t0)}")
    e(f"v_add_u32 {vr(t0)}, {sr(S_RA)}, {vr(t0)}")
    for dt in range(2):
        for tt in range(2):
            for rp in range(4):
                a = GACC + 16*(2*dt+tt) + 4*rp
                e(f"ds_write_b128 {vr(t0 if tt == 0 else t1)}, {vr(a,4)} offset:{dt*128 + rp*32}")
    e("s_branch L_FINAL")

    A.label("L_HELPER")
    A.vm = ["code"]
    if opts.get("g1only"):
        for _ in range(10): e("s_barrier")
        e("s_endpgm")
    S_LW = S_A
    e(f"s_sub_u32 {sr(S_LW)}, {sr(S_WAVE)}, 4")
    V_XO, V_WO, V_L16, V_TO, V_DO2 = 16, 18, 21, 22, 23
    S_XSO, S_WSO, S_M0X, S_M0W = S_G0, S_G1, S_G3, S_G4
    BAD = 0x7fffff00
    e(f"v_lshlrev_b32 {vr(V_L16)}, 4, {L}")
    loader_setup(S_LW, V_XO, V_WO, S_M0X, S_M0W)
    S_ROW = S_G5
    e(f"s_lshl_b32 {sr(S_ROW)}, {sr(S_RB)}, 7")
    e(f"s_lshl_b32 {sr(S_T0)}, {sr(S_CP)}, 3")
    e(f"s_add_u32 {sr(S_ROW)}, {sr(S_ROW)}, {sr(S_T0)}")
    e(f"s_lshl_b32 {sr(S_T0)}, {sr(S_LW)}, 1")
    e(f"s_add_u32 {sr(S_ROW)}, {sr(S_ROW)}, {sr(S_T0)}")
    e(f"v_lshrrev_b32 {vr(t0)}, 3, {L}")
    e(f"v_and_b32 {vr(t1)}, 7, {L}")
    e(f"v_lshrrev_b32 {vr(t2)}, 4, {L}")
    e(f"s_and_b32 {sr(S_T1)}, {sr(S_LW)}, 1")
    e(f"s_lshl_b32 {sr(S_T1)}, {sr(S_T1)}, 2")
    e(f"v_add_u32 {vr(t2)}, {sr(S_T1)}, {vr(t2)}")
    e(f"v_xor_b32 {vr(t1)}, {vr(t1)}, {vr(t2)}")
    e(f"v_lshlrev_b32 {vr(t1)}, 4, {vr(t1)}")
    e(f"v_lshl_add_u32 {vr(t1)}, {vr(t0)}, 10, {vr(t1)}")
    e(f"s_lshl_b32 {sr(S_T1)}, {sr(S_J)}, 7")
    e(f"v_add_u32 {vr(V_TO)}, {sr(S_T1)}, {vr(t1)}")
    wd_voffset(V_DO2)
    e("s_waitcnt lgkmcnt(0)")
    srd(SRD_Q, 0, 2 << 20)
    srd_w_select(S_LW)
    stamp(0)
    def dma_stage(s): dma_stage_g(s, V_XO, V_WO, S_M0X, S_M0W, S_XSO, S_WSO)
    SX = 24; V_NL = 33; V_SL = 116; V_SLA = 34; V_FL = 114; V_DUM = 32
    e(f"s_lshl_b32 {sr(S_T0)}, {sr(S_ROW)}, 10")
    A.vmem(f"buffer_load_dwordx4 {vr(SX,4)}, {vr(V_L16)}, {sr(SRD_Q,4)}, {sr(S_T0)} offen", "SX")
    A.vmem(f"buffer_load_dwordx4 {vr(SX+4,4)}, {vr(V_L16)}, {sr(SRD_Q,4)}, {sr(S_T0)} offen offset:1024", "SX")
    srd(SRD_DBG, 11, 256)
    lnn = A.newlabel("NN")
    e(f"s_cmp_lg_u32 {sr(S_WG)}, 0")
    e(f"s_cbranch_scc1 {lnn}")
    e(f"s_cmp_lg_u32 {sr(S_WAVE)}, 4")
    e(f"s_cbranch_scc1 {lnn}")
    e(f"s_memrealtime {sr(S_T0,2)}")
    e("s_waitcnt lgkmcnt(0)")
    e(f"s_or_b32 {sr(S_T0)}, {sr(S_T0)}, 1")
    e(f"v_mov_b32 {vr(t0)}, {sr(S_T0)}")
    e(f"buffer_store_dword {vr(t0)}, off, {sr(SRD_DBG,4)}, 0 sc0 sc1")
    A.label(lnn)
    if opts.get("tfirst", 1): e("s_barrier")
    dma_stage(0)
    if not opts.get("tfirst", 1): e("s_barrier")
    srd(SRD_K, 1, 2 << 20); srd(SRD_V, 2, 2 << 20)
    srd(SRD_WS, 12, 0x10000000); srd(SRD_WD, 9, WBYTES)
    def tiles():
        e(f"s_lshl_b32 {sr(S_T0)}, {sr(S_I2)}, 16")
        for srd_, base in ((SRD_K, L_KT), (SRD_V, L_VT)):
            for gi in range(2):
                e(f"s_add_u32 {sr(S_T1)}, {sr(S_LW)}, {4*gi}")
                e(f"s_lshl_b32 {sr(S_T2)}, {sr(S_T1)}, 13")
                e(f"s_add_u32 {sr(S_T2)}, {sr(S_T2)}, {sr(S_T0)}")
                e(f"s_lshl_b32 {sr(S_T1)}, {sr(S_T1)}, 10")
                e(f"s_add_u32 m0, {sr(S_T1)}, {base}")
                e("s_nop 0")
                A.vmem(f"buffer_load_dwordx4 {vr(V_TO)}, {sr(srd_,4)}, {sr(S_T2)} offen lds", "P")
    S_CIDX = S_C1
    HK = [88, 96]; HPB = 112
    def hk_loads():
        e(f"s_lshl_b32 {sr(S_T0)}, {sr(S_WG)}, 1")
        e(f"s_add_u32 {sr(S_T0)}, {sr(S_T0)}, {sr(S_CIDX)}")
        e(f"s_lshl_b32 {sr(S_T0)}, {sr(S_T0)}, 12")
        e(f"s_add_u32 {sr(SRD_SK)}, {sr(P+8)}, {sr(S_T0)}")
        e(f"s_addc_u32 {sr(SRD_SK+1)}, {sr(P+9)}, 0")
        e(f"s_mov_b32 {sr(SRD_SK+2)}, 4096")
        e(f"s_mov_b32 {sr(SRD_SK+3)}, 0x20000")
        e(f"s_and_b32 {sr(S_T1)}, {sr(S_LW)}, 1")
        e(f"s_lshl_b32 {sr(S_T1)}, {sr(S_T1)}, 11")
        for y in range(2):
            e(f"s_add_u32 {sr(S_T2)}, {sr(S_T1)}, {1024*y}")
            A.vmem(f"buffer_load_dwordx4 {vr(HK[y],4)}, {vr(V_L16)}, {sr(SRD_SK,4)}, {sr(S_T2)} offen", "HK")
            A.vmem(f"buffer_load_dwordx2 {vr(HK[y]+4,2)}, {vr(V_L16)}, {sr(SRD_SK,4)}, {sr(S_T2)} offen offset:16", "HK")
        e(f"v_cmp_eq_u32 vcc, 1, {L}")
        e(f"v_mov_b32 {vr(t5)}, 0x10000")
        e("s_nop 0")
        e(f"v_cndmask_b32 {vr(t5)}, {vr(t5)}, 0, vcc")
        A.vmem(f"buffer_load_dwordx2 {vr(HPB,2)}, {vr(t5)}, {sr(SRD_SK,4)}, 0 offen", "HK")
    def wd_touch():
        e(f"s_mul_i32 {sr(S_T0)}, {sr(S_WG)}, {43*128}")
        e(f"s_mul_i32 {sr(S_T1)}, {sr(S_LW)}, 11")
        e(f"v_add_u32 {vr(t4)}, {sr(S_T1)}, {L}")
        e(f"v_cmp_gt_u32 vcc, 11, {L}")
        e(f"v_lshlrev_b32 {vr(t4)}, 7, {vr(t4)}")
        e(f"v_add_u32 {vr(t4)}, {sr(S_T0)}, {vr(t4)}")
        e(f"v_mov_b32 {vr(t5)}, {BAD}")
        e(f"v_cndmask_b32 {vr(t4)}, {vr(t5)}, {vr(t4)}, vcc")
        A.vmem(f"buffer_load_dword {vr(V_DUM)}, {vr(t4)}, {sr(SRD_WD,4)}, 0 offen", "T2")
    e(f"s_lshr_b32 {sr(S_CIDX)}, {sr(S_LW)}, 1")
    PPOS = opts.get("ppos", -1)
    if PPOS < 0: tiles()
    A.vmem(f"buffer_load_dword {vr(V_NL)}, off, {sr(SRD_DBG,4)}, 0 sc1", "NL")
    e(f"v_lshlrev_b32 {vr(t0)}, 2, {L}")
    e(f"v_add_u32 {vr(t0)}, {L_FLAG}, {vr(t0)}")
    e(f"v_mov_b32 {vr(t1)}, 0")
    e(f"s_mov_b64 {sr(S_EX,2)}, exec")
    e("s_mov_b64 exec, 0xfffffff")
    e(f"ds_write_b32 {vr(t0)}, {vr(t1)}")
    e(f"s_mov_b64 exec, {sr(S_EX,2)}")
    A.wait_vm("SX")
    XU = 120; SA = 136
    for rr in range(2):
        for k in range(4):
            e(f"v_lshlrev_b32 {vr(XU+8*rr+2*k)}, 16, {vr(SX+4*rr+k)}")
            e(f"v_and_b32 {vr(XU+8*rr+2*k+1)}, 0xffff0000, {vr(SX+4*rr+k)}")
    def wave_reduce(regs):
        for sh in ("row_shr:1", "row_shr:2", "row_shr:4", "row_shr:8"):
            for r in regs: e(f"v_add_f32_dpp {vr(r)}, {vr(r)}, {vr(r)} {sh} row_mask:0xf bank_mask:0xf bound_ctrl:0")
            e("s_nop 0")
        for r in regs: e(f"v_add_f32_dpp {vr(r)}, {vr(r)}, {vr(r)} row_bcast:15 row_mask:0xa bank_mask:0xf")
        e("s_nop 0")
        for r in regs: e(f"v_add_f32_dpp {vr(r)}, {vr(r)}, {vr(r)} row_bcast:31 row_mask:0xc bank_mask:0xf")
        e("s_nop 1")
    for k in range(1, 8):
        for rr in range(2):
            b = XU + 8*rr
            if k == 1: e(f"v_add_f32 {vr(SA+rr)}, {vr(b)}, {vr(b+1)}")
            else: e(f"v_add_f32 {vr(SA+rr)}, {vr(SA+rr)}, {vr(b+k)}")
    e("s_nop 1")
    wave_reduce([SA, SA+1])
    e(f"v_readlane_b32 {sr(S_T0)}, {vr(SA)}, 63")
    e(f"v_readlane_b32 {sr(S_T1)}, {vr(SA+1)}, 63")
    e(f"v_mov_b32 {vr(SA+2)}, 0x3b000000")
    e("s_nop 0")
    e(f"v_mul_f32 {vr(SA+4)}, {sr(S_T0)}, {vr(SA+2)}")
    e(f"v_mul_f32 {vr(SA+5)}, {sr(S_T1)}, {vr(SA+2)}")
    for k in range(8):
        for rr in range(2): e(f"v_sub_f32 {vr(XU+8*rr+k)}, {vr(XU+8*rr+k)}, {vr(SA+4+rr)}")
    for k in range(8):
        for rr in range(2):
            b = XU + 8*rr
            if k == 0: e(f"v_mul_f32 {vr(SA+rr)}, {vr(b)}, {vr(b)}")
            else: e(f"v_fma_f32 {vr(SA+rr)}, {vr(b+k)}, {vr(b+k)}, {vr(SA+rr)}")
    e("s_nop 1")
    wave_reduce([SA, SA+1])
    e(f"v_readlane_b32 {sr(S_T0)}, {vr(SA)}, 63")
    e(f"v_readlane_b32 {sr(S_T1)}, {vr(SA+1)}, 63")
    e(f"v_cmp_eq_u32 vcc, 1, {L}")
    e("s_nop 0")
    e(f"v_mov_b32 {vr(SA)}, {sr(S_T0)}")
    e(f"v_mov_b32 {vr(SA+1)}, {sr(S_T1)}")
    e(f"v_cndmask_b32 {vr(SA)}, {vr(SA)}, {vr(SA+1)}, vcc")
    e(f"v_cndmask_b32 {vr(SA+4)}, {vr(SA+4)}, {vr(SA+5)}, vcc")
    e(f"v_mul_f32 {vr(SA)}, {vr(SA)}, {vr(SA+2)}")
    e(f"v_cvt_pk_bf16_f32 {vr(SA)}, {vr(SA)}, {vr(SA)}")
    e(f"v_lshlrev_b32 {vr(SA)}, 16, {vr(SA)}")
    e(f"v_add_f32 {vr(SA)}, 0x3727c5ac, {vr(SA)}")
    e(f"v_cvt_pk_bf16_f32 {vr(SA)}, {vr(SA)}, {vr(SA)}")
    e(f"v_lshlrev_b32 {vr(SA)}, 16, {vr(SA)}")
    e(f"v_sqrt_f32 {vr(SA)}, {vr(SA)}")
    e("s_nop 0")
    V_STP = 110
    e(f"v_cvt_pk_bf16_f32 {vr(V_STP)}, {vr(SA+4)}, {vr(SA)}")
    A.wait_vm("S0")
    e("s_waitcnt lgkmcnt(0)")
    e("s_barrier")
    stamp(1)
    def it_end(it, stages, waits=()):
        if opts.get("barstamp"): stamp(24 + it)
        if waits: A.wait_vm(*waits)
        e("s_waitcnt lgkmcnt(0)")
        if opts.get("barstamp"): stamp(32 + it)
        e("s_barrier")
        if opts.get("barstamp"): stamp(40 + it)
        for st_ in stages: st_()
        if opts.get("barstamp"): stamp(48 + it)
    def job_nonce_sts():
        lok = A.newlabel("NOK"); lre = A.newlabel("NRE")
        e(f"s_mov_b32 {sr(S_T3)}, 0x40000")
        A.label(lre)
        e(f"v_readfirstlane_b32 {sr(S_NONCE)}, {vr(V_NL)}")
        e("s_nop 3")
        e(f"s_cmp_lg_u32 {sr(S_NONCE)}, 0")
        e(f"s_cbranch_scc1 {lok}")
        e(f"s_sub_u32 {sr(S_T3)}, {sr(S_T3)}, 1")
        e(f"s_cmp_eq_u32 {sr(S_T3)}, 0")
        e(f"s_cbranch_scc1 {lok}")
        e("s_sleep 2")
        e(f"buffer_load_dword {vr(V_NL)}, off, {sr(SRD_DBG,4)}, 0 sc1")
        e("s_waitcnt vmcnt(0)")
        e(f"s_branch {lre}")
        A.label(lok)
        e(f"v_mov_b32 {vr(t0)}, {L_FLAG+32}")
        e(f"v_mov_b32 {vr(V_STP+1)}, {sr(S_NONCE)}")
        e(f"ds_write_b32 {vr(t0)}, {vr(V_STP+1)}")
        e(f"s_lshl_b32 {sr(S_T0)}, {sr(S_ROW)}, 3")
        e(f"s_add_u32 {sr(S_T0)}, {sr(S_T0)}, {WS_ST}")
        e(f"v_lshlrev_b32 {vr(t0)}, 3, {L}")
        e(f"s_mov_b64 {sr(S_EX,2)}, exec")
        e("s_mov_b64 exec, 3")
        A.vmem(f"buffer_store_dwordx2 {vr(V_STP,2)}, {vr(t0)}, {sr(SRD_WS,4)}, {sr(S_T0)} offen sc0 sc1", "STS")
        e(f"s_mov_b64 exec, {sr(S_EX,2)}")
    T = 128
    def job_tr_store():
        e(f"v_and_b32 {vr(t0)}, 3, {L}")
        e(f"v_bfe_u32 {vr(t1)}, {L}, 4, 1")
        e(f"v_lshl_add_u32 {vr(t0)}, {vr(t1)}, 2, {vr(t0)}")
        e(f"v_lshlrev_b32 {vr(t0)}, 3, {vr(t0)}")
        e(f"v_bfe_u32 {vr(t1)}, {L}, 2, 2")
        e(f"v_sub_u32 {vr(t0)}, {vr(t0)}, {vr(t1)}")
        e(f"v_add_u32 {vr(t0)}, 7, {vr(t0)}")
        e(f"v_lshrrev_b32 {vr(t3)}, 5, {L}")
        e(f"v_lshlrev_b32 {vr(t3)}, 3, {vr(t3)}")
        e(f"s_lshl_b32 {sr(S_T0)}, {sr(S_LW)}, 1")
        for h in range(2):
            if h == 1: e(f"v_subrev_u32 {vr(t0)}, 4, {vr(t0)}")
            e(f"v_bfe_u32 {vr(t1)}, {vr(t0)}, 1, 3")
            e(f"v_xor_b32 {vr(t1)}, {sr(S_T0)}, {vr(t1)}")
            e(f"v_lshlrev_b32 {vr(t1)}, 4, {vr(t1)}")
            e(f"v_lshl_add_u32 {vr(t1)}, {vr(t0)}, 7, {vr(t1)}")
            e(f"v_add_u32 {vr(t1)}, {vr(t1)}, {vr(t3)}")
            e(f"v_add_u32 {vr(t1)}, {L_KT}, {vr(t1)}")
            e(f"v_xor_b32 {vr(t2)}, 16, {vr(t1)}")
            for x, a in ((0, t1), (1, t2)):
                e(f"ds_read_b64_tr_b16 {vr(T+4*x+2*h,2)}, {vr(a)}")
                e(f"ds_read_b64_tr_b16 {vr(T+8+4*x+2*h,2)}, {vr(a)} offset:{L_VT-L_KT}")
        e(f"v_and_b32 {vr(t1)}, 3, {L}")
        e(f"v_lshrrev_b32 {vr(t2)}, 5, {L}")
        e(f"v_lshl_add_u32 {vr(t1)}, {vr(t2)}, 2, {vr(t1)}")
        e(f"v_lshlrev_b32 {vr(t1)}, 12, {vr(t1)}")
        e(f"v_bfe_u32 {vr(t2)}, {L}, 2, 3")
        e(f"v_lshlrev_b32 {vr(t2)}, 4, {vr(t2)}")
        e(f"v_sub_u32 {vr(t1)}, {vr(t1)}, {vr(t2)}")
        e(f"v_add_u32 {vr(t1)}, 4080, {vr(t1)}")
        e(f"s_lshl_b32 {sr(S_T0)}, {sr(S_J)}, 6")
        e(f"s_lshl_b32 {sr(S_T1)}, {sr(S_LW)}, 4")
        e(f"s_add_u32 {sr(S_T0)}, {sr(S_T0)}, {sr(S_T1)}")
        e(f"s_lshl_b32 {sr(S_T0)}, {sr(S_T0)}, 12")
        e(f"s_lshl_b32 {sr(S_T1)}, {sr(S_I2)}, 7")
        e(f"s_sub_u32 {sr(S_T0)}, {sr(S_T0)}, {sr(S_T1)}")
        e(f"v_add_u32 {vr(t1)}, {sr(S_T0)}, {vr(t1)}")
        e(f"v_add_u32 {vr(t2)}, {8*4096}, {vr(t1)}")
        e(f"s_mov_b32 {sr(S_T0)}, {WS_VT}")
        e("s_waitcnt lgkmcnt(0)")
        A.vmem(f"buffer_store_dwordx4 {vr(T,4)}, {vr(t1)}, {sr(SRD_WS,4)}, 0 offen sc0 sc1", "KVS")
        A.vmem(f"buffer_store_dwordx4 {vr(T+4,4)}, {vr(t2)}, {sr(SRD_WS,4)}, 0 offen sc0 sc1", "KVS")
        A.vmem(f"buffer_store_dwordx4 {vr(T+8,4)}, {vr(t1)}, {sr(SRD_WS,4)}, {sr(S_T0)} offen sc0 sc1", "KVS")
        A.vmem(f"buffer_store_dwordx4 {vr(T+12,4)}, {vr(t2)}, {sr(SRD_WS,4)}, {sr(S_T0)} offen sc0 sc1", "KVS")
    S_STO = S_X3
    def job_sl():
        e(f"s_lshl_b32 {sr(S_STO)}, {sr(S_RB)}, 7")
        e(f"s_lshl_b32 {sr(S_T1)}, {sr(S_LW)}, 5")
        e(f"s_add_u32 {sr(S_STO)}, {sr(S_STO)}, {sr(S_T1)}")
        e(f"s_lshl_b32 {sr(S_STO)}, {sr(S_STO)}, 3")
        e(f"s_add_u32 {sr(S_STO)}, {sr(S_STO)}, {WS_ST}")
        e(f"v_and_b32 {vr(V_SLA)}, 31, {L}")
        e(f"v_lshlrev_b32 {vr(V_SLA)}, 3, {vr(V_SLA)}")
        A.vmem(f"buffer_load_dwordx2 {vr(V_SL,2)}, {vr(V_SLA)}, {sr(SRD_WS,4)}, {sr(S_STO)} offen sc1", "SL")
    def job_kvf():
        A.wait_vm("KVS")
        e(f"s_lshl_b32 {sr(S_T0)}, {sr(S_J)}, 9")
        e(f"s_lshl_b32 {sr(S_T1)}, {sr(S_I2)}, 4")
        e(f"s_lshl_b32 {sr(S_T2)}, {sr(S_LW)}, 2")
        e(f"s_add_u32 {sr(S_T0)}, {sr(S_T0)}, {sr(S_T1)}")
        e(f"s_add_u32 {sr(S_T0)}, {sr(S_T0)}, {sr(S_T2)}")
        e(f"s_add_u32 {sr(S_T0)}, {sr(S_T0)}, {WS_FL+FL_KV}")
        flag_set(S_T0, t0)
    S_C, S_KVO, S_W, S_OKF = 62, 63, 64, 70
    def job_conv_scalars():
        e(f"s_lshl_b32 {sr(S_C)}, {sr(S_WG)}, 1")
        e(f"s_add_u32 {sr(S_C)}, {sr(S_C)}, {sr(S_CIDX)}")
        e(f"s_lshr_b32 {sr(S_KVO)}, {sr(S_C)}, 6")
        e(f"s_lshl_b32 {sr(S_KVO)}, {sr(S_KVO)}, 9")
        e(f"s_add_u32 {sr(S_KVO)}, {sr(S_KVO)}, {WS_FL+FL_KV}")
        e(f"s_lshl_b32 {sr(S_T0)}, {sr(S_C)}, 3")
        e(f"s_load_dwordx2 {sr(S_W,2)}, {sr(P+6,2)}, {sr(S_T0)}")
        e("s_waitcnt lgkmcnt(0)")
        e(f"s_and_b32 {sr(S_W+3)}, {sr(S_W+1)}, 0xffff0000")
        e(f"s_lshl_b32 {sr(S_W+2)}, {sr(S_W+1)}, 16")
        e(f"s_and_b32 {sr(S_W+1)}, {sr(S_W)}, 0xffff0000")
        e(f"s_lshl_b32 {sr(S_W)}, {sr(S_W)}, 16")
    def job_statchk():
        A.wait_vm("SL")
        lsr = A.newlabel("SR"); lso = A.newlabel("SO")
        e(f"s_mov_b32 {sr(S_T3)}, 0x40000")
        A.label(lsr)
        e(f"v_cmp_eq_u32 vcc, {sr(S_NONCE)}, {vr(V_SL+1)}")
        e("s_nop 1")
        e("s_cmp_eq_u64 vcc, -1")
        e(f"s_cbranch_scc1 {lso}")
        e(f"s_sub_u32 {sr(S_T3)}, {sr(S_T3)}, 1")
        e(f"s_cmp_eq_u32 {sr(S_T3)}, 0")
        e(f"s_cbranch_scc1 {lso}")
        e("s_sleep 2")
        e(f"buffer_load_dwordx2 {vr(V_SL,2)}, {vr(V_SLA)}, {sr(SRD_WS,4)}, {sr(S_STO)} offen sc1")
        e("s_waitcnt vmcnt(0)")
        e(f"s_branch {lsr}")
        A.label(lso)
        if TS:
            e(f"s_sub_u32 {sr(S_T0)}, 0x40064, {sr(S_T3)}")
            e("s_nop 0")
            e(f"v_writelane_b32 {vr(V_TS)}, {sr(S_T0)}, 41")
        e(f"v_and_b32 {vr(t1)}, 0xffff0000, {vr(V_SL)}")
        e(f"v_lshlrev_b32 {vr(V_SL)}, 16, {vr(V_SL)}")
        e(f"v_rcp_f32 {vr(V_SL+1)}, {vr(t1)}")
        e(f"s_lshl_b32 {sr(S_T0)}, {sr(S_LW)}, 8")
        e(f"s_add_u32 {sr(S_T0)}, {sr(S_T0)}, {L_STAT}")
        e(f"v_add_u32 {vr(t0)}, {sr(S_T0)}, {vr(V_SLA)}")
        e("s_nop 0")
        e(f"ds_write_b64 {vr(t0)}, {vr(V_SL,2)}")
    KR, VR = 128, 160
    def job_row_srds():
        e(f"s_lshl_b32 {sr(S_T0)}, {sr(S_C)}, 12")
        e(f"s_add_u32 {sr(SRD_K)}, {sr(P+24)}, {sr(S_T0)}")
        e(f"s_addc_u32 {sr(SRD_K+1)}, {sr(P+25)}, 0")
        e(f"s_mov_b32 {sr(SRD_K+2)}, 4096")
        e(f"s_mov_b32 {sr(SRD_K+3)}, 0x20000")
        e(f"s_add_u32 {sr(S_T0)}, {sr(S_T0)}, {WS_VT}")
        e(f"s_add_u32 {sr(SRD_V)}, {sr(P+24)}, {sr(S_T0)}")
        e(f"s_addc_u32 {sr(SRD_V+1)}, {sr(P+25)}, 0")
        e(f"s_mov_b32 {sr(SRD_V+2)}, 4096")
        e(f"s_mov_b32 {sr(SRD_V+3)}, 0x20000")
    def uk_loads(track):
        for q in range(4):
            if track:
                e(f"s_cmp_eq_u32 {sr(S_OKF)}, 1")
                e(f"s_cselect_b32 {sr(S_T2)}, {1024*q}, 0x40000000" if q == 0 else f"s_cselect_b32 {sr(S_T2)}, {sr(S_T1)}, {sr(S_T3)}")
                if q < 3:
                    e(f"s_movk_i32 {sr(S_T1)}, {1024*(q+1)}")
                    e(f"s_mov_b32 {sr(S_T3)}, 0x40000000")
            else:
                e(f"s_movk_i32 {sr(S_T2)}, {1024*q}")
            for txt in (f"buffer_load_dwordx4 {vr(KR+8*q,4)}, {vr(V_L16)}, {sr(SRD_K,4)}, {sr(S_T2)} offen{USC}",
                        f"buffer_load_dwordx2 {vr(KR+8*q+4,2)}, {vr(V_L16)}, {sr(SRD_K,4)}, {sr(S_T2)} offen offset:16{USC}",
                        f"buffer_load_dwordx4 {vr(VR+4*q,4)}, {vr(V_L16)}, {sr(SRD_V,4)}, {sr(S_T2)} offen{USC}"):
                if track: A.vmem(txt, "UK")
                else: e(txt)
    def job_pkv_check():
        A.wait_vm("PKV")
        flag_check_scc(V_FL, 2)
        e(f"s_cselect_b32 {sr(S_OKF)}, 1, 0")
        if TS:
            e(f"s_add_u32 {sr(S_T0)}, {sr(S_OKF)}, 100")
            e("s_nop 0")
            e(f"v_writelane_b32 {vr(V_TS)}, {sr(S_T0)}, 40")
        uk_loads(True)
    E = 36
    def kv_chunk(q):
        D = KR + 8*q; V = VR + 4*q
        for i in range(11):
            src = D + (i >> 1)
            e(f"v_and_b32 {vr(E+i)}, 0xffff0000, {vr(src)}" if i & 1 else f"v_lshlrev_b32 {vr(E+i)}, 16, {vr(src)}")
        for i in range(8):
            src = V + (i >> 1)
            e(f"v_and_b32 {vr(E+11+i)}, 0xffff0000, {vr(src)}" if i & 1 else f"v_lshlrev_b32 {vr(E+11+i)}, 16, {vr(src)}")
        for i in range(8): e(f"v_mul_f32 {vr(56+i)}, {sr(S_W+3)}, {vr(E+i+3)}")
        for i in range(8): e(f"v_fma_f32 {vr(56+i)}, {vr(E+i+2)}, {sr(S_W+2)}, {vr(56+i)}")
        for i in range(8): e(f"v_fma_f32 {vr(56+i)}, {vr(E+i+1)}, {sr(S_W+1)}, {vr(56+i)}")
        for i in range(8): e(f"v_fma_f32 {vr(56+i)}, {vr(E+i)}, {sr(S_W)}, {vr(56+i)}")
        for i in range(8): e(f"v_mul_f32 {vr(56+i)}, {vr(56+i)}, {vr(E+11+i)}")
        for k in range(4): e(f"v_cvt_pk_bf16_f32 {vr(D+k)}, {vr(56+2*k)}, {vr(56+2*k+1)}")
    S_DSO2, S_RA, S_RBB, S_RC = S_G4, S_X0, S_X1, S_X2
    S_KU2, S_KUN2, S_ROT2, S_OOB2 = 61, S_C0, S_G5, 60
    def job_wd_setup():
        ku_start(S_KU2, S_LW)
        e(f"s_cmp_lt_u32 {sr(S_LW)}, 2")
        e(f"s_cselect_b32 {sr(S_KUN2)}, 22, 21")
        e(f"s_mul_i32 {sr(S_ROT2)}, {sr(S_J)}, {opts.get('rot', 3)}")
        e(f"s_mov_b32 {sr(S_OOB2)}, 0x20000000")
        ring_bases(S_LW, S_RA, S_RBB, S_RC)
    def wd_dma(n):
        bi, off = ring_off(n); sb = (S_RA, S_RBB, S_RC)[bi]
        wd_soff(n, S_DSO2, S_ROT2, S_KUN2, S_KU2, S_OOB2)
        for a in range(2):
            e(f"s_add_u32 m0, {sr(sb)}, {off + 1024*a}")
            if a == 1: e(f"s_add_u32 {sr(S_DSO2)}, {sr(S_DSO2)}, 8192")
            else: e("s_nop 0")
            A.vmem(f"buffer_load_dwordx4 {vr(V_DO2)}, {sr(SRD_WD,4)}, {sr(S_DSO2)} offen lds", "WDP")
    def hk(w, addr, extra):
        O1, O2, O3 = 116, 120, 124
        for j in range(4):
            e(f"v_alignbit_b32 {vr(O1+j)}, {vr(w+j+1)}, {vr(w+j)}, 16")
            e(f"v_mov_b32 {vr(O2+j)}, {vr(w+j+1)}")
            e(f"v_alignbit_b32 {vr(O3+j)}, {vr(w+j+2)}, {vr(w+j+1)}, 16")
        e(f"ds_write_b128 {vr(addr)}, {vr(w,4)} offset:{extra}")
        e(f"ds_write_b128 {vr(addr)}, {vr(O1,4)} offset:{extra+HCOPY}")
        e(f"ds_write_b128 {vr(addr)}, {vr(O2,4)} offset:{extra+2*HCOPY}")
        e(f"ds_write_b128 {vr(addr)}, {vr(O3,4)} offset:{extra+3*HCOPY}")
        e("s_nop 1")
    S_RH, S_UB = 71, 3
    V_PF = 30
    def job_hankel():
        e(f"s_and_b32 {sr(S_RH)}, {sr(S_LW)}, 1")
        e(f"s_mul_i32 {sr(S_T0)}, {sr(S_CIDX)}, {HCH}")
        e(f"s_add_u32 {sr(S_T0)}, {sr(S_T0)}, {L_HANK}")
        e(f"s_lshl_b32 {sr(S_T1)}, {sr(S_RH)}, 11")
        e(f"s_add_u32 {sr(S_T1)}, {sr(S_T1)}, {sr(S_T0)}")
        e(f"v_add_u32 {vr(27)}, {sr(S_T0)}, {vr(V_L16)}")
        e(f"v_add_u32 {vr(28)}, {sr(S_T1)}, {vr(V_L16)}")
        for y in range(2): hk(HK[y], 28, 32 + 1024*y)
        lpb = A.newlabel("PB")
        e(f"s_cmp_lg_u32 {sr(S_RH)}, 0")
        e(f"s_cbranch_scc1 {lpb}")
        e(f"s_mov_b64 {sr(S_EX,2)}, exec")
        e("s_mov_b64 exec, 3")
        w = HK[0]
        for r in range(4): e(f"v_mov_b32 {vr(w+r)}, 0")
        e(f"v_mov_b32 {vr(w+4)}, {vr(HPB)}"); e(f"v_mov_b32 {vr(w+5)}, {vr(HPB+1)}")
        hk(w, 27, 0)
        e(f"s_mov_b64 exec, {sr(S_EX,2)}")
        A.label(lpb)
    V_DD = 32; V_CA = 35; V_CB = 29
    CACC = 192; CSET = [64, 128]
    def conv_addr():
        e(f"s_and_b32 {sr(S_RH)}, {sr(S_LW)}, 1")
        e(f"s_mul_i32 {sr(S_UB)}, {sr(S_LW)}, {UBSZ}")
        e(f"s_add_u32 {sr(S_UB)}, {sr(S_UB)}, {L_UB}")
        e(f"v_and_b32 {vr(t0)}, 15, {L}")
        e(f"v_lshrrev_b32 {vr(t1)}, 4, {L}")
        e(f"v_lshl_add_u32 {vr(t2)}, {vr(t1)}, 3, {vr(t0)}")
        e(f"v_add_u32 {vr(t2)}, 1, {vr(t2)}")
        e(f"v_and_b32 {vr(t3)}, 3, {vr(t2)}")
        e(f"v_sub_u32 {vr(t2)}, {vr(t2)}, {vr(t3)}")
        e(f"v_lshlrev_b32 {vr(t2)}, 1, {vr(t2)}")
        e(f"v_mul_u32_u24 {vr(t3)}, {HCOPY}, {vr(t3)}")
        e(f"v_add_u32 {vr(t2)}, {vr(t2)}, {vr(t3)}")
        e(f"s_mul_i32 {sr(S_T0)}, {sr(S_CIDX)}, {HCH}")
        e(f"s_lshl_b32 {sr(S_T1)}, {sr(S_RH)}, 8")
        e(f"s_add_u32 {sr(S_T0)}, {sr(S_T0)}, {sr(S_T1)}")
        e(f"s_add_u32 {sr(S_T0)}, {sr(S_T0)}, {L_HANK}")
        e(f"v_add_u32 {vr(V_CA)}, {sr(S_T0)}, {vr(t2)}")
        e(f"v_lshlrev_b32 {vr(t2)}, 1, {vr(t0)}")
        e(f"v_sub_u32 {vr(t2)}, {vr(t1)}, {vr(t2)}")
        e(f"v_add_u32 {vr(t2)}, 254, {vr(t2)}")
        e(f"v_lshlrev_b32 {vr(t2)}, 4, {vr(t2)}")
        e(f"s_add_u32 {sr(S_T0)}, {sr(S_UB)}, {sr(S_T1)}")
        e(f"s_sub_u32 {sr(S_T0)}, {sr(S_T0)}, 3584")
        e(f"v_add_u32 {vr(V_CB)}, {sr(S_T0)}, {vr(t2)}")
        for r in range(32): e(f"v_mov_b32 {vr(CACC+r)}, 0")
    def pt(it): return [tiles] if PPOS == it else []
    dma_stage(2)
    it_end(0, [lambda: dma_stage(3)] + pt(0), waits=())
    if opts.get("nearly", 1):
        A.wait_vm("NL"); job_nonce_sts()
    it_end(1, [lambda: dma_stage(4)] + pt(1), waits=("S2", "NL"))
    if not opts.get("nearly", 1): job_nonce_sts()
    TRI = {-1: 2, 0: 4, 1: 5}[PPOS]
    for it in range(2, 8):
        if it == TRI: job_tr_store()
        if it == opts.get('slit', 3): job_sl()
        if it == TRI + opts.get('kvfd', 2): job_kvf()
        if it == 4: job_conv_scalars(); job_row_srds() if False else None
        if it == 5: job_wd_setup()
        if it == 6: job_statchk()
        if it == opts.get("cait", 6): conv_addr()
        if it == TRI + 3 and it <= 7:
            job_row_srds(); flag_issue(V_FL, 2, S_KVO, "PKV")
        if it == TRI + 4 and it <= 7: job_pkv_check()
        if it == TRI + 5 and it <= 7:
            lk7 = A.newlabel("K7")
            e(f"s_cmp_eq_u32 {sr(S_OKF)}, 1")
            e(f"s_cbranch_scc0 {lk7}")
            A.wait_vm("UK")
            kv_chunk(0); kv_chunk(1)
            A.label(lk7)
        if it == opts.get("hankit", 7): job_hankel()
        if it == 7: break
        st = []
        if it + 3 <= 7: st.append(lambda it=it: dma_stage(it + 3))
        if it == opts.get('hkit', 2): st.append(hk_loads)
        if it == opts.get('wtit', 3): st.append(wd_touch)
        if it == 5: st.append(lambda: [wd_dma(n) for n in range(0, 5)])
        if it == 6: st.append(lambda: [wd_dma(n) for n in range(5, 10)])
        w_ = [f"S{it+1}"]
        if it + 1 == TRI: w_.append("P")
        it_end(it, st, waits=tuple(w_))
    done_chunks01 = (TRI + 5 <= 7); done_check = (TRI + 4 <= 7); done_pkv = (TRI + 3 <= 7)
    e("s_waitcnt lgkmcnt(0)")
    e("s_barrier")
    stamp(3)
    wd_dma(10)
    if not done_pkv:
        job_row_srds(); flag_issue(V_FL, 2, S_KVO, "PKV")
    srd(SRD_AUX, 5, 1024)
    e(f"s_lshl_b32 {sr(S_T0)}, {sr(S_C)}, 1")
    A.vmem(f"buffer_load_ushort {vr(V_DD)}, off, {sr(SRD_AUX,4)}, {sr(S_T0)}", "DD")
    if not done_check: job_pkv_check()
    if opts.get("hankit", 7) > 7: job_hankel()
    e("s_waitcnt lgkmcnt(0)")
    e(f"s_lshl_b32 {sr(S_T0)}, {sr(S_LW)}, 2")
    e(f"s_add_u32 {sr(S_T0)}, {sr(S_T0)}, {L_FLAG}")
    e(f"v_mov_b32 {vr(V_PF)}, {sr(S_T0)}")
    e(f"v_mov_b32 {vr(V_PF+1)}, 1")
    e(f"ds_write_b32 {vr(V_PF)}, {vr(V_PF+1)} offset:96")
    A.wait_vm("WDP")
    e(f"ds_write_b32 {vr(V_PF)}, {vr(V_PF+1)} offset:16")
    lko2 = A.newlabel("KO2"); lko3 = A.newlabel("KO3")
    e(f"s_cmp_eq_u32 {sr(S_OKF)}, 1")
    e(f"s_cbranch_scc1 {lko2}")
    flag_wait_blocking(V_FL, 2, S_KVO, sleep=4)
    uk_loads(False)
    e("s_waitcnt vmcnt(0)")
    if done_chunks01:
        kv_chunk(0); kv_chunk(1)
    A.label(lko2)
    A.wait_vm("UK", "DD")
    if not done_chunks01:
        kv_chunk(0); kv_chunk(1)
    kv_chunk(2); kv_chunk(3)
    e(f"v_add_u32 {vr(26)}, {sr(S_UB)}, {vr(V_L16)}")
    for q in range(4): e(f"ds_write_b128 {vr(26)}, {vr(KR+8*q,4)} offset:{1024*q}")
    for r in range(4): e(f"v_mov_b32 {vr(52+r)}, 0")
    e(f"v_and_b32 {vr(t0)}, 31, {L}")
    e(f"v_lshlrev_b32 {vr(t0)}, 4, {vr(t0)}")
    e(f"v_add_u32 {vr(t0)}, {sr(S_UB)}, {vr(t0)}")
    e(f"ds_write_b128 {vr(t0)}, {vr(52,4)} offset:4096")
    e(f"v_lshlrev_b32 {vr(V_DD)}, 16, {vr(V_DD)}")
    e(f"s_lshl_b32 {sr(S_T0)}, {sr(S_LW)}, 2")
    e(f"s_xor_b32 {sr(S_T0)}, {sr(S_T0)}, 4")
    e(f"s_add_u32 {sr(S_T0)}, {sr(S_T0)}, {L_FLAG+96}")
    lds_spin(S_T0, t1, t0)
    e("s_waitcnt lgkmcnt(0)")
    if opts.get("gate", 1):
        e(f"s_lshl_b32 {sr(S_T0)}, {sr(S_LW)}, 2")
        e(f"s_add_u32 {sr(S_T0)}, {sr(S_T0)}, {L_FLAG+48}")
        lds_spin(S_T0, t1, t0)
    stamp(4)
    def creads(r, st):
        out = []; b = CSET[st]
        for sp in range(8):
            out.append(f"ds_read_b64 {vr(b+4*sp,2)}, {vr(V_CA)} offset:{512*sp+64*r}")
            out.append(f"ds_read_b64 {vr(b+4*sp+2,2)}, {vr(V_CA)} offset:{512*sp+64*r+8}")
            out.append(f"ds_read_b128 {vr(b+32+4*sp,4)}, {vr(V_CB)} offset:{512*(7-sp)+64*r}")
        return out
    def cmfmas(st):
        out = []; b = CSET[st]
        for t in range(8):
            for sp in range(t + 1):
                out.append(f"v_mfma_f32_16x16x32_bf16 {vr(CACC+4*t,4)}, {vr(b+4*sp,4)}, {vr(b+32+4*(t-sp),4)}, {vr(CACC+4*t,4)}")
        return out
    V_UU = 224
    e(f"v_and_b32 {vr(t0)}, 15, {L}")
    e(f"v_lshrrev_b32 {vr(t1)}, 4, {L}")
    e(f"v_lshlrev_b32 {vr(t2)}, 2, {vr(t0)}")
    e(f"v_add_u32 {vr(t2)}, {vr(t2)}, {vr(t1)}")
    e(f"v_lshlrev_b32 {vr(t2)}, 3, {vr(t2)}")
    e(f"s_lshl_b32 {sr(S_T1)}, {sr(S_RH)}, 11")
    e(f"s_sub_u32 {sr(S_T0)}, {sr(S_UB)}, {sr(S_T1)}")
    e(f"s_add_u32 {sr(S_T0)}, {sr(S_T0)}, {4088 - 1536}")
    e(f"v_sub_u32 {vr(t3)}, {sr(S_T0)}, {vr(t2)}")
    for tt in range(4): e(f"ds_read_b64 {vr(V_UU+2*tt,2)}, {vr(t3)} offset:{512*(3-tt)}")
    for x in creads(0, 0): e(x)
    for r in range(4):
        e("s_waitcnt lgkmcnt(0)")
        mf = cmfmas(r & 1)
        rd = creads(r + 1, (r + 1) & 1) if r < 3 else []
        for idx, m in enumerate(mf):
            e(m)
            if idx < len(rd): e(rd[idx])
    stamp(5)
    e("s_nop 7")
    e(f"v_add_u32 {vr(t3)}, {sr(S_UB)}, {vr(V_L16)}")
    l1 = A.newlabel("PR"); l2 = A.newlabel("PR")
    e(f"s_cmp_eq_u32 {sr(S_RH)}, 0")
    e(f"s_cbranch_scc1 {l1}")
    for tt in range(4): e(f"ds_write_b128 {vr(t3)}, {vr(CACC+4*tt,4)} offset:{1024*tt}")
    e("s_nop 1")
    for r in range(16): e(f"v_mov_b32 {vr(CACC+r)}, {vr(CACC+16+r)}")
    e(f"s_branch {l2}")
    A.label(l1)
    for tt in range(4): e(f"ds_write_b128 {vr(t3)}, {vr(CACC+16+4*tt,4)} offset:{1024*tt}")
    A.label(l2)
    e("s_waitcnt lgkmcnt(0)")
    e(f"ds_write_b32 {vr(V_PF)}, {vr(V_PF+1)}")
    e(f"s_lshl_b32 {sr(S_T0)}, {sr(S_LW)}, 2")
    e(f"s_add_u32 {sr(S_T0)}, {sr(S_T0)}, {L_FLAG}")
    e(f"s_xor_b32 {sr(S_T0)}, {sr(S_T0)}, 4")
    lds_spin(S_T0, t1, t0)
    e(f"s_xor_b32 {sr(S_T0)}, {sr(S_LW)}, 1")
    e(f"s_mul_i32 {sr(S_T0)}, {sr(S_T0)}, {UBSZ}")
    e(f"s_add_u32 {sr(S_T0)}, {sr(S_T0)}, {L_UB}")
    e(f"v_add_u32 {vr(t3)}, {sr(S_T0)}, {vr(V_L16)}")
    V_PP = 80
    for tt in range(4): e(f"ds_read_b128 {vr(V_PP+4*tt,4)}, {vr(t3)} offset:{1024*tt}")
    e("s_waitcnt lgkmcnt(0)")
    for r in range(16): e(f"v_add_f32 {vr(CACC+r)}, {vr(CACC+r)}, {vr(V_PP+r)}")
    V_YP = 96
    for tt in range(4):
        y = CACC + 4*tt; u0, u1 = V_UU + 2*tt, V_UU + 2*tt + 1; U = 112 + 4*(tt & 1)
        e(f"v_and_b32 {vr(U+0)}, 0xffff0000, {vr(u1)}")
        e(f"v_lshlrev_b32 {vr(U+1)}, 16, {vr(u1)}")
        e(f"v_and_b32 {vr(U+2)}, 0xffff0000, {vr(u0)}")
        e(f"v_lshlrev_b32 {vr(U+3)}, 16, {vr(u0)}")
        for k in range(4): e(f"v_fma_f32 {vr(y+k)}, {vr(U+k)}, {vr(V_DD)}, {vr(y+k)}")
        e(f"v_cvt_pk_bf16_f32 {vr(V_YP+2*tt)}, {vr(y+0)}, {vr(y+1)}")
        e(f"v_cvt_pk_bf16_f32 {vr(V_YP+2*tt+1)}, {vr(y+2)}, {vr(y+3)}")
    e("s_nop 1")
    for p in range(2):
        e(f"v_permlane16_swap_b32 {vr(V_YP+4*p)}, {vr(V_YP+4*p+2)}")
        e(f"v_permlane16_swap_b32 {vr(V_YP+4*p+1)}, {vr(V_YP+4*p+3)}")
    e(f"v_and_b32 {vr(t0)}, 15, {L}")
    e(f"v_lshrrev_b32 {vr(t1)}, 4, {L}")
    e(f"v_and_b32 {vr(t2)}, 1, {vr(t1)}")
    e(f"v_lshlrev_b32 {vr(t2)}, 9, {vr(t2)}")
    e(f"v_and_b32 {vr(t1)}, 2, {vr(t1)}")
    e(f"v_lshlrev_b32 {vr(t1)}, 3, {vr(t1)}")
    e(f"v_lshlrev_b32 {vr(t0)}, 5, {vr(t0)}")
    e(f"v_add3_u32 {vr(t0)}, {vr(t0)}, {vr(t1)}, {vr(t2)}")
    e(f"s_lshl_b32 {sr(S_T0)}, {sr(S_C)}, 12")
    e(f"s_lshl_b32 {sr(S_T1)}, {sr(S_RH)}, 11")
    e(f"s_add_u32 {sr(S_T0)}, {sr(S_T0)}, {sr(S_T1)}")
    e(f"s_add_u32 {sr(S_T0)}, {sr(S_T0)}, {WS_YYT}")
    for p in range(2):
        e(f"buffer_store_dwordx4 {vr(V_YP+4*p,4)}, {vr(t0)}, {sr(SRD_WS,4)}, {sr(S_T0)} offen offset:{1024*p} sc0 sc1")
    e("s_waitcnt vmcnt(0)")
    e(f"s_lshr_b32 {sr(S_T0)}, {sr(S_C)}, 6")
    e(f"s_lshl_b32 {sr(S_T0)}, {sr(S_T0)}, 9")
    e(f"s_and_b32 {sr(S_T1)}, {sr(S_WG)}, 31")
    e(f"s_lshl_b32 {sr(S_T1)}, {sr(S_T1)}, 4")
    e(f"s_lshl_b32 {sr(S_T2)}, {sr(S_LW)}, 2")
    e(f"s_add_u32 {sr(S_T0)}, {sr(S_T0)}, {sr(S_T1)}")
    e(f"s_add_u32 {sr(S_T0)}, {sr(S_T0)}, {sr(S_T2)}")
    e(f"s_add_u32 {sr(S_T0)}, {sr(S_T0)}, {WS_FL+FL_Y}")
    flag_set(S_T0, t0)
    stamp(6)
    ly1 = A.newlabel("YP"); ly2 = A.newlabel("YP")
    e(f"s_cmp_lg_u32 {sr(S_LW)}, 0")
    e(f"s_cbranch_scc1 {ly1}")
    if opts.get("ygate"):
        e(f"s_mov_b32 {sr(S_T0)}, {L_FLAG+64}")
        lds_spin(S_T0, t1, t0, sleep=4)
    e(f"s_lshl_b32 {sr(S_T0)}, {sr(S_J)}, 9")
    e(f"s_add_u32 {sr(S_T0)}, {sr(S_T0)}, {WS_FL+FL_Y}")
    flag_wait_blocking(V_FL, 2, S_T0, sleep=opts.get('ysleep', 8))
    e(f"v_mov_b32 {vr(t0)}, {L_FLAG+68}")
    e(f"v_mov_b32 {vr(t1)}, 1")
    e(f"ds_write_b32 {vr(t0)}, {vr(t1)}")
    e(f"s_branch {ly2}")
    A.label(ly1)
    e(f"s_mov_b32 {sr(S_T0)}, {L_FLAG+68}")
    lds_spin(S_T0, t1, t0, sleep=4)
    A.label(ly2)
    stamp(7)
    e(f"v_lshrrev_b32 {vr(t0)}, 3, {L}")
    e(f"v_and_b32 {vr(t1)}, 7, {L}")
    e(f"s_lshl_b32 {sr(S_T0)}, {sr(S_LW)}, 4")
    e(f"v_add_u32 {vr(t0)}, {sr(S_T0)}, {vr(t0)}")
    e(f"v_lshlrev_b32 {vr(t2)}, 12, {vr(t0)}")
    e(f"v_lshl_add_u32 {vr(t2)}, {vr(t1)}, 4, {vr(t2)}")
    e(f"s_lshl_b32 {sr(S_T0)}, {sr(S_J)}, 18")
    e(f"s_lshl_b32 {sr(S_T1)}, {sr(S_I2)}, 7")
    e(f"s_add_u32 {sr(S_T0)}, {sr(S_T0)}, {sr(S_T1)}")
    e(f"s_add_u32 {sr(S_T0)}, {sr(S_T0)}, {WS_YYT}")
    e(f"buffer_load_dwordx4 {vr(64,4)}, {vr(t2)}, {sr(SRD_WS,4)}, {sr(S_T0)} offen sc1")
    e(f"v_add_u32 {vr(t2)}, {8*4096}, {vr(t2)}")
    e(f"buffer_load_dwordx4 {vr(68,4)}, {vr(t2)}, {sr(SRD_WS,4)}, {sr(S_T0)} offen sc1")
    e(f"v_mul_u32_u24 {vr(t3)}, {YTROW}, {vr(t0)}")
    e(f"v_lshl_add_u32 {vr(t3)}, {vr(t1)}, 4, {vr(t3)}")
    e(f"v_add_u32 {vr(t3)}, {L_YT}, {vr(t3)}")
    e("s_waitcnt vmcnt(1)")
    e(f"ds_write_b128 {vr(t3)}, {vr(64,4)}")
    e("s_waitcnt vmcnt(0)")
    e(f"ds_write_b128 {vr(t3)}, {vr(68,4)} offset:{8*YTROW}")
    srd(SRD_OUT, 10, 2 << 20)

    A.label("L_FINAL")
    e("s_setprio 0")
    FT, FD, FO = 28, 29, 30
    e(f"v_lshrrev_b32 {vr(t0)}, 5, {L}")
    e(f"v_and_b32 {vr(t1)}, 3, {L}")
    e(f"v_lshl_add_u32 {vr(FT)}, {vr(t0)}, 2, {vr(t1)}")
    e(f"s_lshl_b32 {sr(S_T0)}, {sr(S_WAVE)}, 3")
    e(f"v_add_u32 {vr(FT)}, {sr(S_T0)}, {vr(FT)}")
    e(f"v_bfe_u32 {vr(FD)}, {L}, 2, 3")
    e(f"s_lshl_b32 {sr(S_T0)}, {sr(S_I2)}, 16")
    e(f"s_lshl_b32 {sr(S_T1)}, {sr(S_J)}, 7")
    e(f"s_add_u32 {sr(S_T0)}, {sr(S_T0)}, {sr(S_T1)}")
    e(f"v_lshlrev_b32 {vr(FO)}, 10, {vr(FT)}")
    e(f"v_lshl_add_u32 {vr(FO)}, {vr(FD)}, 4, {vr(FO)}")
    e(f"v_add_u32 {vr(FO)}, {sr(S_T0)}, {vr(FO)}")
    FX_, FS_ = 32, 36
    e(f"buffer_load_dwordx4 {vr(FX_,4)}, {vr(FO)}, {sr(SRD_Q,4)}, 0 offen")
    S_FSO = S_G5
    e(f"s_lshl_b32 {sr(S_FSO)}, {sr(S_I2)}, 9")
    e(f"s_add_u32 {sr(S_FSO)}, {sr(S_FSO)}, {WS_ST}")
    V_FSA = 31
    e(f"v_lshlrev_b32 {vr(V_FSA)}, 3, {vr(FT)}")
    e(f"buffer_load_dwordx2 {vr(FS_,2)}, {vr(V_FSA)}, {sr(SRD_WS,4)}, {sr(S_FSO)} offen sc1")
    e("s_waitcnt lgkmcnt(0)")
    e("s_barrier")
    stamp(9)
    FP = 40
    e(f"v_and_b32 {vr(t0)}, 31, {vr(FT)}")
    e(f"v_mul_u32_u24 {vr(t0)}, 272, {vr(t0)}")
    e(f"v_lshl_add_u32 {vr(t0)}, {vr(FD)}, 5, {vr(t0)}")
    e(f"s_cmp_lt_u32 {sr(S_WAVE)}, 4")
    e(f"s_cselect_b32 {sr(S_T0)}, {RA}, {RB_}")
    e(f"v_add_u32 {vr(t0)}, {sr(S_T0)}, {vr(t0)}")
    for kg in range(4):
        e(f"ds_read_b128 {vr(FP+8*kg,4)}, {vr(t0)} offset:{kg*10240}")
        e(f"ds_read_b128 {vr(FP+8*kg+4,4)}, {vr(t0)} offset:{kg*10240+16}")
    FY = 72
    e(f"v_bfe_u32 {vr(t2)}, {L}, 2, 2")
    e(f"v_and_b32 {vr(t3)}, 3, {L}")
    e(f"v_bfe_u32 {vr(t4)}, {L}, 4, 1")
    e(f"v_lshl_add_u32 {vr(t3)}, {vr(t4)}, 2, {vr(t3)}")
    e(f"v_lshl_add_u32 {vr(t2)}, {vr(t3)}, 3, {vr(t2)}")
    e(f"v_mul_u32_u24 {vr(t2)}, {YTROW}, {vr(t2)}")
    e(f"v_lshrrev_b32 {vr(t3)}, 5, {L}")
    e(f"v_lshlrev_b32 {vr(t3)}, 3, {vr(t3)}")
    e(f"s_lshl_b32 {sr(S_T0)}, {sr(S_WAVE)}, 4")
    e(f"s_add_u32 {sr(S_T0)}, {sr(S_T0)}, {L_YT}")
    e(f"v_add3_u32 {vr(t2)}, {vr(t2)}, {vr(t3)}, {sr(S_T0)}")
    e(f"ds_read_b64_tr_b16 {vr(FY,2)}, {vr(t2)}")
    e(f"ds_read_b64_tr_b16 {vr(FY+2,2)}, {vr(t2)} offset:{4*YTROW}")
    e("s_waitcnt lgkmcnt(2)")
    for kg in range(1, 4):
        for k in range(8): e(f"v_add_f32 {vr(FP+k)}, {vr(FP+k)}, {vr(FP+8*kg+k)}")
    O = FP; T = 48; XV = 56; YV = 64
    for k in range(0, 8, 2): e(f"v_cvt_pk_bf16_f32 {vr(T+k)}, {vr(O+k)}, {vr(O+k+1)}")
    for k in range(0, 8, 2):
        e(f"v_and_b32 {vr(O+k+1)}, 0xffff0000, {vr(T+k)}")
        e(f"v_lshlrev_b32 {vr(O+k)}, 16, {vr(T+k)}")
    e(f"s_mov_b32 {sr(S_T0)}, 0xbfb8aa3b")
    for k in range(8): e(f"v_mul_f32 {vr(T+k)}, {sr(S_T0)}, {vr(O+k)}")
    for k in range(8): e(f"v_exp_f32 {vr(T+k)}, {vr(T+k)}")
    for k in range(8): e(f"v_add_f32 {vr(T+k)}, 1.0, {vr(T+k)}")
    for k in range(8): e(f"v_rcp_f32 {vr(T+k)}, {vr(T+k)}")
    e("s_nop 0")
    for k in range(8): e(f"v_mul_f32 {vr(O+k)}, {vr(O+k)}, {vr(T+k)}")
    e("s_waitcnt vmcnt(0) lgkmcnt(0)")
    lf1 = A.newlabel("FS"); lf2 = A.newlabel("FS")
    e(f"s_mov_b32 {sr(S_T3)}, 0x40000")
    A.label(lf1)
    e(f"v_cmp_eq_u32 vcc, {sr(S_NONCE)}, {vr(FS_+1)}")
    e("s_nop 1")
    e("s_cmp_eq_u64 vcc, -1")
    e(f"s_cbranch_scc1 {lf2}")
    e(f"s_sub_u32 {sr(S_T3)}, {sr(S_T3)}, 1")
    e(f"s_cmp_eq_u32 {sr(S_T3)}, 0")
    e(f"s_cbranch_scc1 {lf2}")
    e(f"buffer_load_dwordx2 {vr(FS_,2)}, {vr(V_FSA)}, {sr(SRD_WS,4)}, {sr(S_FSO)} offen sc1")
    e("s_waitcnt vmcnt(0)")
    e(f"s_branch {lf1}")
    A.label(lf2)
    for k in range(4):
        e(f"v_lshlrev_b32 {vr(XV+2*k)}, 16, {vr(FX_+k)}")
        e(f"v_and_b32 {vr(XV+2*k+1)}, 0xffff0000, {vr(FX_+k)}")
        e(f"v_lshlrev_b32 {vr(YV+2*k)}, 16, {vr(FY+k)}")
        e(f"v_and_b32 {vr(YV+2*k+1)}, 0xffff0000, {vr(FY+k)}")
    e(f"v_and_b32 {vr(FS_+1)}, 0xffff0000, {vr(FS_)}")
    e(f"v_lshlrev_b32 {vr(FS_)}, 16, {vr(FS_)}")
    e(f"v_rcp_f32 {vr(FS_+1)}, {vr(FS_+1)}")
    for k in range(8): e(f"v_sub_f32 {vr(T+k)}, {vr(XV+k)}, {vr(FS_)}")
    def round8(b):
        for k in range(0, 8, 2): e(f"v_cvt_pk_bf16_f32 {vr(b+k)}, {vr(b+k)}, {vr(b+k+1)}")
        for k in range(0, 8, 2):
            e(f"v_and_b32 {vr(b+k+1)}, 0xffff0000, {vr(b+k)}")
            e(f"v_lshlrev_b32 {vr(b+k)}, 16, {vr(b+k)}")
    if not opts.get("lightfinal"): round8(T)
    for k in range(8): e(f"v_mul_f32 {vr(T+k)}, {vr(T+k)}, {vr(FS_+1)}")
    round8(T)
    for k in range(8): e(f"v_mul_f32 {vr(T+k)}, {vr(T+k)}, {vr(YV+k)}")
    if not opts.get("lightfinal"):
        round8(T); round8(O)
    for k in range(8): e(f"v_mul_f32 {vr(T+k)}, {vr(T+k)}, {vr(O+k)}")
    if not opts.get("lightfinal"): round8(T)
    for k in range(8): e(f"v_add_f32 {vr(T+k)}, {vr(T+k)}, {vr(XV+k)}")
    for k in range(4): e(f"v_cvt_pk_bf16_f32 {vr(FY+k)}, {vr(T+2*k)}, {vr(T+2*k+1)}")
    e(f"buffer_store_dwordx4 {vr(FY,4)}, {vr(FO)}, {sr(SRD_OUT,4)}, 0 offen" + (" sc0 sc1" if opts.get("outwt") else (" nt" if opts.get("outnt") else "")))
    stamp(10)
    stamp_flush()
    A.label("L_END")
    e("s_endpgm")
    A.label("L_CODE_END")

    body = A.text()
    hdr = open("cdna_kernels/" + NAME + ".s.ref").read().split("; Override launch geometry")[0]
    out = hdr + "; Override launch geometry by editing the next line.\n"
    out += f"; @launch grid=(256,1,1) block=(512,1,1) lds={LDS_TOTAL}\n"
    out += f""".amdgcn_target "amdgcn-amd-amdhsa--gfx950"
.text
.globl {NAME}_kernel
.p2align 8
.type {NAME}_kernel,@function
{NAME}_kernel:
"""
    out += body
    out += f""".section .rodata,"a"
.p2align 6
.amdhsa_kernel {NAME}_kernel
  .amdhsa_next_free_vgpr 256
  .amdhsa_next_free_sgpr 102
  .amdhsa_accum_offset 256
  .amdhsa_group_segment_fixed_size 0
  .amdhsa_kernarg_size 104
  .amdhsa_user_sgpr_count 2
  .amdhsa_user_sgpr_kernarg_segment_ptr 1
  .amdhsa_system_sgpr_workgroup_id_x 1
.end_amdhsa_kernel
"""
    return out

if __name__ == "__main__":
    opts = {}
    outp = sys.argv[1]
    for a in sys.argv[2:]:
        k, _, v = a.partition("=")
        opts[k] = (int(v) if v.lstrip("-").isdigit() else (v or True))
    open(outp, "w").write(gen(opts))
```

```python
import sys, struct

NAME = "recurrent_scan__ssm_conv_h3__glu_gated_geglu__prompt"
f2u = lambda x: struct.unpack("<I", struct.pack("<f", x))[0]

class Asm:
    def __init__(self):
        self.lines = []; self.nlabel = 0; self.vm = []; self.cap = None
    def e(self, s):
        if self.cap is not None: self.cap.append(("  " + s, None))
        else: self.lines.append("  " + s)
    def label(self, l):
        assert self.cap is None, l
        self.lines.append(l + ":")
    def newlabel(self, p="L"):
        self.nlabel += 1; return f"{p}_{self.nlabel}"
    def text(self): return "\n".join(self.lines) + "\n"
    def vmem(self, s, tag):
        if self.cap is not None:
            self.cap.append(("  " + s, tag)); return
        self.e(s); self.vm.append(tag)
    def capture(self, fn):
        assert self.cap is None
        self.cap = []
        fn()
        out = self.cap; self.cap = None
        return out
    def emit_list(self, lst):
        for line, tag in lst:
            self.lines.append(line)
            if tag is not None: self.vm.append(tag)
    def merge(self, a, b):
        groups = []; cur = []
        for it in a:
            cur.append(it)
            if it[1] is not None: groups.append(cur); cur = []
        if cur: groups.append(cur)
        n = len(groups); out = []; k = 0
        for gi, g in enumerate(groups):
            out += g
            upto = (len(b) * (gi + 1)) // n
            out += b[k:upto]; k = upto
        out += b[k:]
        return out
    def wait_vm(self, *tags):
        assert self.cap is None
        last = -1
        for i, t in enumerate(self.vm):
            if t in tags: last = i
        assert last >= 0, tags
        n = len(self.vm) - 1 - last
        n = min(n, 63)
        self.e(f"s_waitcnt vmcnt({n})")
        return n

def vr(a, n=1): return f"v{a}" if n == 1 else f"v[{a}:{a+n-1}]"
def sr(a, n=1): return f"s{a}" if n == 1 else f"s[{a}:{a+n-1}]"

S, D, F = 2048, 512, 1376
WROW = F * 2
WBYTES = 512 * WROW
WS_KVT, WS_YYT, WS_HF, WS_ST, WS_FL, WS_TS = 0, 2 << 20, 4 << 20, 12 << 20, 13 << 20, 16 << 20
WS_VT = 14 << 20
FL_KV, FL_ST, FL_H, FL_Y = 0, 4096, 8192, 12288
STAGE = 40960
L_HANK = 122880
HCOPY = 4160
HCH = 4 * HCOPY
L_MISC = L_HANK + 2 * HCH
L_CS = L_MISC
L_STAT = L_MISC + 1536
L_FLAG = L_MISC + 2560
LDS_TOTAL = 163840
L_KT, L_VT = L_HANK, L_HANK + 8192
RA, RB_ = 2 * STAGE, 0
L_UB = STAGE
UBSZ = 4608
L_YT = L_UB + 4 * UBSZ
YTROW = 144
RC = L_YT + 64 * YTROW
NR = 11
def ring_off(n):
    if n < 5: return (0, n * 2048)
    if n < 10: return (1, (n - 5) * 2048)
    return (2, 0)

SRD_Q, SRD_K, SRD_V, SRD_W, SRD_WD, SRD_WS, SRD_DBG, SRD_OUT, SRD_SK, SRD_AUX = 4, 8, 12, 16, 20, 24, 28, 32, 36, 40
P = 48
S_WG = 2
S_WAVE, S_RB, S_CP, S_I2, S_J, S_F0, S_N32, S_A, S_B = 76, 77, 78, 79, 80, 81, 82, 83, 84
S_NONCE = 85
S_T0, S_T1, S_T2, S_T3, S_T4, S_T5 = 86, 87, 88, 89, 90, 91
S_G0, S_G1, S_G2, S_G3, S_G4, S_G5 = 92, 93, 94, 95, 96, 97
S_C0, S_C1 = 98, 99
S_EX = 100
S_TSP = 74
S_X0, S_X1, S_X2, S_X3 = 44, 45, 46, 47

def gen(opts):
    A = Asm(); e = A.e
    TS = opts.get("ts", False)
    HSC = "" if opts.get("hplain", 1) else " sc1"
    USC = "" if opts.get("uplain", 1) else " sc1"
    t0, t1, t2, t3, t4, t5 = 8, 9, 10, 11, 12, 13
    V_LANE = 3; L = vr(V_LANE)
    V_TS = 15

    def stamp(idx, dyn=None):
        if not TS: return
        e(f"{'s_memtime' if opts.get('cyc') else 's_memrealtime'} {sr(S_TSP,2)}")
        e("s_waitcnt lgkmcnt(0)")
        if dyn is None:
            e(f"v_writelane_b32 {vr(V_TS)}, {sr(S_TSP)}, {idx}")
        else:
            e(f"s_add_u32 m0, {sr(dyn)}, {idx}")
            e("s_nop 0")
            e(f"v_writelane_b32 {vr(V_TS)}, {sr(S_TSP)}, m0")
    def stamp_flush():
        if not TS: return
        e(f"s_lshl_b32 {sr(S_TSP+1)}, {sr(S_WG)}, 3")
        e(f"s_add_u32 {sr(S_TSP+1)}, {sr(S_TSP+1)}, {sr(S_WAVE)}")
        e(f"s_lshl_b32 {sr(S_TSP+1)}, {sr(S_TSP+1)}, 8")
        e(f"s_add_u32 {sr(S_TSP+1)}, {sr(S_TSP+1)}, {WS_TS}")
        e(f"v_lshlrev_b32 v14, 2, {L}")
        e(f"buffer_store_dword {vr(V_TS)}, v14, {sr(SRD_WS,4)}, {sr(S_TSP+1)} offen")

    def srd(dst, pidx, nbytes):
        e(f"s_mov_b32 {sr(dst)}, {sr(P+2*pidx)}")
        e(f"s_mov_b32 {sr(dst+1)}, {sr(P+2*pidx+1)}")
        e(f"s_mov_b32 {sr(dst+2)}, {nbytes}")
        e(f"s_mov_b32 {sr(dst+3)}, 0x20000")

    def flag_issue(vdst, nw, soff_sgpr, tag):
        e(f"v_lshlrev_b32 {vr(t5)}, {1 + nw}, {L}")
        op = "buffer_load_dword" if nw == 1 else "buffer_load_dwordx2"
        A.vmem(f"{op} {vr(vdst,nw)}, {vr(t5)}, {sr(SRD_WS,4)}, {sr(soff_sgpr)} offen sc1", tag)
    def flag_check_scc(vdst, nw):
        e(f"v_cmp_eq_u32 vcc, {sr(S_NONCE)}, {vr(vdst)}")
        if nw == 2:
            e(f"v_cmp_eq_u32 {sr(S_T4,2)}, {sr(S_NONCE)}, {vr(vdst+1)}")
            e("s_nop 1")
            e(f"s_and_b64 vcc, vcc, {sr(S_T4,2)}")
        else:
            e("s_nop 1")
        e("s_cmp_eq_u64 vcc, -1")
    def flag_wait_blocking(vdst, nw, soff_sgpr, sleep=4, rec=None):
        l = A.newlabel("POLL"); d = A.newlabel("POLLD")
        n0 = len(A.vm)
        e(f"s_mov_b32 {sr(S_T3)}, 0x40000")
        A.label(l)
        flag_issue(vdst, nw, soff_sgpr, "poll")
        e("s_waitcnt vmcnt(0)")
        flag_check_scc(vdst, nw)
        e(f"s_cbranch_scc1 {d}")
        e(f"s_sub_u32 {sr(S_T3)}, {sr(S_T3)}, 1")
        e(f"s_cmp_eq_u32 {sr(S_T3)}, 0")
        e(f"s_cbranch_scc1 {d}")
        e(f"s_sleep {sleep}")
        e(f"s_branch {l}")
        A.label(d)
        if TS and rec is not None:
            e(f"s_sub_u32 {sr(S_T2)}, 0x40064, {sr(S_T3)}")
            e("s_nop 0")
            e(f"v_writelane_b32 {vr(V_TS)}, {sr(S_T2)}, {rec}")
        del A.vm[n0:]
    def flag_set(soff_sgpr, vtmp):
        e(f"v_mov_b32 {vr(vtmp)}, {sr(S_NONCE)}")
        e(f"s_mov_b64 {sr(S_EX,2)}, exec")
        e("s_mov_b64 exec, 1")
        A.vmem(f"buffer_store_dword {vr(vtmp)}, off, {sr(SRD_WS,4)}, {sr(soff_sgpr)} sc0 sc1", "flag")
        e(f"s_mov_b64 exec, {sr(S_EX,2)}")
    def lds_spin(addr_sgpr, vt, va, sleep=1):
        l = A.newlabel("LS"); d = A.newlabel("LSD")
        e(f"v_mov_b32 {vr(va)}, {sr(addr_sgpr)}")
        e(f"s_mov_b32 {sr(S_T3)}, 0x200000")
        A.label(l)
        e(f"ds_read_b32 {vr(vt)}, {vr(va)}")
        e("s_waitcnt lgkmcnt(0)")
        e(f"v_readfirstlane_b32 {sr(S_T2)}, {vr(vt)}")
        e("s_nop 3")
        e(f"s_cmp_eq_u32 {sr(S_T2)}, 1")
        e(f"s_cbranch_scc1 {d}")
        e(f"s_sub_u32 {sr(S_T3)}, {sr(S_T3)}, 1")
        e(f"s_cmp_eq_u32 {sr(S_T3)}, 0")
        e(f"s_cbranch_scc1 {d}")
        e(f"s_sleep {sleep}")
        e(f"s_branch {l}")
        A.label(d)
    def wd_voffset(dst):
        e(f"v_lshrrev_b32 {vr(t0)}, 3, {L}")
        e(f"v_and_b32 {vr(t1)}, 7, {L}")
        e(f"v_bfe_u32 {vr(t2)}, {L}, 4, 1")
        e(f"v_lshlrev_b32 {vr(t2)}, 2, {vr(t2)}")
        e(f"v_xor_b32 {vr(t1)}, {vr(t1)}, {vr(t2)}")
        e(f"v_lshlrev_b32 {vr(t1)}, 4, {vr(t1)}")
        e(f"v_lshl_add_u32 {vr(t1)}, {vr(t0)}, 10, {vr(t1)}")
        e(f"s_lshl_b32 {sr(S_T1)}, {sr(S_J)}, 7")
        e(f"v_add_u32 {vr(dst)}, {sr(S_T1)}, {vr(t1)}")
    def ku_start(dst, kg):
        e(f"s_mul_i32 {sr(dst)}, {sr(kg)}, 22")
        e(f"s_cmp_eq_u32 {sr(kg)}, 3")
        e(f"s_cselect_b32 {sr(S_T1)}, 1, 0")
        e(f"s_sub_u32 {sr(dst)}, {sr(dst)}, {sr(S_T1)}")
    def unit_at(n, dst, rot, kun):
        e(f"s_add_u32 {sr(dst)}, {sr(rot)}, {n}")
        e(f"s_cmp_ge_u32 {sr(dst)}, 22")
        e(f"s_cselect_b32 {sr(S_T5)}, 22, 0")
        e(f"s_sub_u32 {sr(dst)}, {sr(dst)}, {sr(S_T5)}")
        e(f"s_cmp_lt_u32 {sr(dst)}, {sr(kun)}")
    def wd_soff(n, dst, rot, kun, ku0, oob):
        unit_at(n, dst, rot, kun)
        e(f"s_cselect_b32 {sr(S_T5)}, 1, 0")
        e(f"s_add_u32 {sr(dst)}, {sr(dst)}, {sr(ku0)}")
        e(f"s_lshl_b32 {sr(dst)}, {sr(dst)}, 14")
        e(f"s_cmp_eq_u32 {sr(S_T5)}, 1")
        e(f"s_cselect_b32 {sr(dst)}, {sr(dst)}, {sr(oob)}")
    def ring_bases(kg, ra, rb, rc):
        e(f"s_mul_i32 {sr(ra)}, {sr(kg)}, 10240")
        e(f"s_add_u32 {sr(rb)}, {sr(ra)}, {RB_}")
        e(f"s_add_u32 {sr(ra)}, {sr(ra)}, {RA}")
        e(f"s_lshl_b32 {sr(rc)}, {sr(kg)}, 11")
        e(f"s_add_u32 {sr(rc)}, {sr(rc)}, {RC}")

    def loader_setup(lw, V_XO, V_WO, S_M0X, S_M0W):
        e(f"v_lshrrev_b32 {vr(t0)}, 3, {L}")
        e(f"v_lshrrev_b32 {vr(t1)}, 4, {L}")
        e(f"v_and_b32 {vr(t2)}, 7, {L}")
        e(f"s_lshl_b32 {sr(S_T2)}, {sr(S_RB)}, 7")
        e(f"s_lshl_b32 {sr(S_T3)}, {sr(lw)}, 5")
        e(f"s_add_u32 {sr(S_T2)}, {sr(S_T2)}, {sr(S_T3)}")
        for a in range(2):
            e(f"v_add_u32 {vr(t3)}, {4*a}, {vr(t1)}")
            e(f"v_xor_b32 {vr(t3)}, {vr(t3)}, {vr(t2)}")
            e(f"v_lshlrev_b32 {vr(t3)}, 4, {vr(t3)}")
            e(f"v_add_u32 {vr(t4)}, {sr(S_T2)}, {vr(t0)}")
            e(f"v_add_u32 {vr(t4)}, {8*a}, {vr(t4)}")
            e(f"v_lshl_add_u32 {vr(V_XO+a)}, {vr(t4)}, 10, {vr(t3)}")
        e(f"s_and_b32 {sr(S_T1)}, {sr(lw)}, 1")
        e(f"s_lshl_b32 {sr(S_T3)}, {sr(S_T1)}, 1")
        e(f"s_lshr_b32 {sr(S_T4)}, {sr(lw)}, 1")
        e(f"s_lshl_b32 {sr(S_T4)}, {sr(S_T4)}, 5")
        e(f"s_lshl_b32 {sr(S_T5)}, {sr(S_F0)}, 1")
        e(f"s_movk_i32 {sr(S_T0)}, {WROW}")
        for i in range(3):
            e(f"v_add_u32 {vr(t0)}, {64*i}, {L}")
            e(f"v_lshrrev_b32 {vr(t1)}, 4, {vr(t0)}")
            e(f"v_mul_u32_u24 {vr(t1)}, 43, {vr(t1)}")
            e(f"v_lshrrev_b32 {vr(t1)}, 7, {vr(t1)}")
            e(f"v_mul_u32_u24 {vr(t2)}, 48, {vr(t1)}")
            e(f"v_sub_u32 {vr(t2)}, {vr(t0)}, {vr(t2)}")
            e(f"v_lshrrev_b32 {vr(t3)}, 4, {vr(t2)}")
            e(f"v_bfe_u32 {vr(t4)}, {vr(t2)}, 2, 2")
            e(f"v_and_b32 {vr(t2)}, 3, {vr(t2)}")
            e(f"v_xor_b32 {vr(t2)}, {sr(S_T3)}, {vr(t2)}")
            e(f"v_lshl_add_u32 {vr(t2)}, {vr(t3)}, 2, {vr(t2)}")
            e(f"v_lshl_add_u32 {vr(t1)}, {vr(t1)}, 2, {vr(t4)}")
            e(f"v_add_u32 {vr(t1)}, {sr(S_T4)}, {vr(t1)}")
            e(f"v_mul_u32_u24 {vr(t1)}, {sr(S_T0)}, {vr(t1)}")
            e(f"v_lshl_add_u32 {vr(t2)}, {vr(t2)}, 4, {vr(t1)}")
            e(f"v_add_u32 {vr(V_WO+i)}, {sr(S_T5)}, {vr(t2)}")
        e(f"s_lshl_b32 {sr(S_M0X)}, {sr(lw)}, 12")
        e(f"s_mul_i32 {sr(S_M0W)}, {sr(S_T1)}, 12288")
        e(f"s_lshr_b32 {sr(S_T4)}, {sr(lw)}, 1")
        e(f"s_mul_i32 {sr(S_T4)}, {sr(S_T4)}, 6144")
        e(f"s_add_u32 {sr(S_M0W)}, {sr(S_M0W)}, {sr(S_T4)}")
        e(f"s_add_u32 {sr(S_M0W)}, {sr(S_M0W)}, 16384")
    def srd_w_select(lw):
        e(f"s_and_b32 {sr(S_T0)}, {sr(lw)}, 1")
        e(f"s_cmp_eq_u32 {sr(S_T0)}, 0")
        e(f"s_cselect_b32 {sr(SRD_W)}, {sr(P+14)}, {sr(P+16)}")
        e(f"s_cselect_b32 {sr(SRD_W+1)}, {sr(P+15)}, {sr(P+17)}")
        e(f"s_mov_b32 {sr(SRD_W+2)}, {WBYTES}")
        e(f"s_mov_b32 {sr(SRD_W+3)}, 0x20000")
    def dma_stage_g(s, V_XO, V_WO, S_M0X, S_M0W, S_XSO, S_WSO):
        slot = (s % 3) * STAGE
        e(f"s_mov_b32 {sr(S_XSO)}, {s*128}")
        e(f"s_add_u32 m0, {sr(S_M0X)}, {slot}")
        for a in range(4):
            if a == 2: e(f"s_mov_b32 {sr(S_XSO)}, {s*128+16384}")
            else: e("s_nop 0")
            A.vmem(f"buffer_load_dwordx4 {vr(V_XO+(a&1))}, {sr(SRD_Q,4)}, {sr(S_XSO)} offen lds", f"S{s}")
            if a < 3: e("s_add_u32 m0, m0, 1024")
        e(f"s_mov_b32 {sr(S_WSO)}, {s*64*WROW}")
        e(f"s_add_u32 m0, {sr(S_M0W)}, {slot}")
        for blk in range(2):
            for i in range(3):
                if blk == 1 and i == 0: e(f"s_mov_b32 {sr(S_WSO)}, {s*64*WROW+16*WROW}")
                else: e("s_nop 0")
                A.vmem(f"buffer_load_dwordx4 {vr(V_WO+i)}, {sr(SRD_W,4)}, {sr(S_WSO)} offen lds", f"S{s}")
                if not (blk == 1 and i == 2): e("s_add_u32 m0, m0, 1024")

    if TS: e("s_memrealtime s[44:45]")
    e(f"s_cmp_ge_u32 {sr(S_WG)}, 256")
    e("s_cbranch_scc1 L_END")
    e(f"s_load_dwordx16 {sr(P,16)}, s[0:1], 0")
    e(f"s_load_dwordx8 {sr(P+16,8)}, s[0:1], 64")
    e(f"s_load_dwordx2 {sr(P+24,2)}, s[0:1], 96")
    e(f"s_getpc_b64 {sr(S_T0,2)}")
    e("v_lshlrev_b32 v1, 6, v0")
    e(f"v_cmp_gt_u32 vcc, L_CODE_END-{NAME}_kernel, v1")
    e(f"s_and_saveexec_b64 {sr(S_EX,2)}, vcc")
    e(f"global_load_dword v2, v1, {sr(S_T0,2)}")
    e(f"s_mov_b64 exec, {sr(S_EX,2)}")
    e(f"v_and_b32 {L}, 63, v0")
    e("v_lshrrev_b32 v4, 6, v0")
    e(f"s_and_b32 {sr(S_T0)}, {sr(S_WG)}, 7")
    e(f"v_readfirstlane_b32 {sr(S_WAVE)}, v4")
    e(f"s_lshr_b32 {sr(S_T1)}, {sr(S_WG)}, 3")
    e(f"s_and_b32 {sr(S_T2)}, {sr(S_T0)}, 1")
    e(f"s_lshl_b32 {sr(S_T2)}, {sr(S_T2)}, 3")
    e(f"s_and_b32 {sr(S_T3)}, {sr(S_T1)}, 7")
    e(f"s_add_u32 {sr(S_RB)}, {sr(S_T2)}, {sr(S_T3)}")
    e(f"s_lshr_b32 {sr(S_T2)}, {sr(S_T0)}, 1")
    e(f"s_lshl_b32 {sr(S_T2)}, {sr(S_T2)}, 2")
    e(f"s_lshr_b32 {sr(S_T3)}, {sr(S_T1)}, 3")
    e(f"s_add_u32 {sr(S_CP)}, {sr(S_T2)}, {sr(S_T3)}")
    e(f"s_lshl_b32 {sr(S_T2)}, {sr(S_T0)}, 2")
    e(f"s_and_b32 {sr(S_T3)}, {sr(S_T1)}, 3")
    e(f"s_add_u32 {sr(S_I2)}, {sr(S_T2)}, {sr(S_T3)}")
    e(f"s_lshr_b32 {sr(S_J)}, {sr(S_T1)}, 2")
    e(f"s_mul_i32 {sr(S_T2)}, {sr(S_CP)}, 96")
    e(f"s_lshl_b32 {sr(S_T3)}, {sr(S_CP)}, 6")
    e(f"s_add_u32 {sr(S_T3)}, {sr(S_T3)}, 352")
    e(f"s_cmp_lt_u32 {sr(S_CP)}, 11")
    e(f"s_cselect_b32 {sr(S_F0)}, {sr(S_T2)}, {sr(S_T3)}")
    e(f"s_cselect_b32 {sr(S_N32)}, 3, 2")
    if TS:
        e(f"v_mov_b32 {vr(V_TS)}, 0")
        e("s_waitcnt lgkmcnt(0)")
        e(f"v_writelane_b32 {vr(V_TS)}, s44, 63")
        e(f"s_memrealtime s[44:45]")
        e("s_waitcnt lgkmcnt(0)")
        e(f"v_writelane_b32 {vr(V_TS)}, s44, 62")
    e(f"s_cmp_ge_u32 {sr(S_WAVE)}, 4")
    e("s_cbranch_scc1 L_HELPER")

    A.vm = ["code"]
    e(f"s_setprio {opts.get('cprio', 2)}")
    e(f"s_and_b32 {sr(S_A)}, {sr(S_WAVE)}, 1")
    e(f"s_lshr_b32 {sr(S_B)}, {sr(S_WAVE)}, 1")
    FS = [16, 36]
    V_XR, V_WR, V_XR2, V_WR2 = 56, 60, 66, 70
    ACC = 160
    e(f"v_and_b32 {vr(t0)}, 31, {L}")
    e(f"v_lshrrev_b32 {vr(t1)}, 5, {L}")
    e(f"v_bfe_u32 {vr(t2)}, {vr(t0)}, 1, 3")
    e(f"v_xor_b32 {vr(t2)}, {vr(t2)}, {vr(t1)}")
    e(f"s_lshl_b32 {sr(S_T0)}, {sr(S_A)}, 1")
    e(f"v_xor_b32 {vr(t2)}, {sr(S_T0)}, {vr(t2)}")
    e(f"s_lshl_b32 {sr(S_T0)}, {sr(S_A)}, 6")
    e(f"v_add_u32 {vr(t0)}, {sr(S_T0)}, {vr(t0)}")
    e(f"v_lshlrev_b32 {vr(t0)}, 7, {vr(t0)}")
    for ks in range(4):
        e(f"v_xor_b32 {vr(t3)}, {2*ks}, {vr(t2)}")
        e(f"v_lshl_add_u32 {vr(V_XR+ks)}, {vr(t3)}, 4, {vr(t0)}")
    e(f"v_bfe_u32 {vr(t0)}, {L}, 4, 1")
    e(f"v_lshrrev_b32 {vr(t1)}, 5, {L}")
    e(f"v_bfe_u32 {vr(t2)}, {L}, 2, 2")
    e(f"v_bfe_u32 {vr(t3)}, {L}, 1, 1")
    e(f"v_and_b32 {vr(t4)}, 1, {L}")
    e(f"s_lshl_b32 {sr(S_T0)}, {sr(S_B)}, 1")
    e(f"v_add_u32 {vr(t3)}, {sr(S_T0)}, {vr(t3)}")
    e(f"v_lshlrev_b32 {vr(t5)}, 1, {vr(t0)}")
    e(f"v_xor_b32 {vr(t3)}, {vr(t3)}, {vr(t5)}")
    e(f"v_lshlrev_b32 {vr(t3)}, 4, {vr(t3)}")
    e(f"v_lshl_add_u32 {vr(t3)}, {vr(t4)}, 3, {vr(t3)}")
    e(f"v_lshl_add_u32 {vr(t3)}, {vr(t2)}, 6, {vr(t3)}")
    e(f"v_mul_u32_u24 {vr(t1)}, 1536, {vr(t1)}")
    e(f"v_mul_u32_u24 {vr(t0)}, 12288, {vr(t0)}")
    e(f"v_add3_u32 {vr(t3)}, {vr(t3)}, {vr(t1)}, {vr(t0)}")
    e(f"v_add_u32 {vr(t3)}, 16384, {vr(t3)}")
    e(f"s_mul_i32 {sr(S_T1)}, {sr(S_A)}, 3072")
    for i in range(3):
        e(f"s_cmp_eq_u32 {sr(S_A)}, 0")
        e(f"s_cselect_b32 {sr(S_T0)}, {i*256}, {(2-i)*256}")
        e(f"s_add_u32 {sr(S_T2)}, {sr(S_T0)}, {sr(S_T1)}")
        e(f"v_add_u32 {vr(V_WR+i)}, {sr(S_T2)}, {vr(t3)}")
        e(f"s_sub_u32 {sr(S_T2)}, {sr(S_T0)}, {sr(S_T1)}")
        e(f"v_add_u32 {vr(V_WR+3+i)}, {sr(S_T2)}, {vr(t3)}")
    for ks in range(4): e(f"v_add_u32 {vr(V_XR2+ks)}, {2*STAGE}, {vr(V_XR+ks)}")
    for i in range(6): e(f"v_add_u32 {vr(V_WR2+i)}, {2*STAGE}, {vr(V_WR+i)}")
    loader_setup(S_WAVE, 94, 96, S_X0, S_X1)
    for r in range(96): e(f"v_mov_b32 {vr(ACC+r)}, 0")
    for r in range(12): e(f"v_mov_b32 {vr(80+r)}, 0")
    e(f"v_and_b32 {vr(t0)}, 15, {L}")
    e(f"v_bfe_u32 {vr(t1)}, {L}, 4, 1")
    e(f"v_cmp_eq_u32 vcc, {vr(t0)}, {vr(t1)}")
    e(f"v_mov_b32 {vr(t2)}, 0x3f803f80")
    e("s_nop 0")
    e(f"v_cndmask_b32 {vr(76)}, 0, {vr(t2)}, vcc")
    for r in range(1, 4): e(f"v_mov_b32 {vr(76+r)}, {vr(76)}")
    e("s_waitcnt lgkmcnt(0)")
    srd(SRD_Q, 0, 2 << 20); srd(SRD_WD, 9, WBYTES); srd(SRD_OUT, 10, 2 << 20); srd(SRD_WS, 12, 0x10000000)
    V_TX, V_TW, V_DUM = 100, 101, 92
    BAD = 0x7fffff00
    e(f"s_and_b32 {sr(S_T0)}, {sr(S_CP)}, 3")
    e(f"s_lshl_b32 {sr(S_T0)}, {sr(S_T0)}, 5")
    e(f"s_lshl_b32 {sr(S_T1)}, {sr(S_RB)}, 7")
    e(f"s_add_u32 {sr(S_T0)}, {sr(S_T0)}, {sr(S_T1)}")
    e(f"v_and_b32 {vr(t1)}, 31, {L}")
    e(f"v_add_u32 {vr(t1)}, {sr(S_T0)}, {vr(t1)}")
    e(f"v_lshlrev_b32 {vr(t1)}, 10, {vr(t1)}")
    e(f"v_lshrrev_b32 {vr(t0)}, 5, {L}")
    e(f"v_lshl_add_u32 {vr(V_TX)}, {vr(t0)}, 7, {vr(t1)}")
    e(f"v_cmp_gt_u32 vcc, 32, {L}")
    e(f"v_mov_b32 {vr(t2)}, {BAD}")
    e("s_nop 0")
    e(f"v_cndmask_b32 {vr(V_TX+2)}, {vr(t2)}, {vr(V_TX)}, vcc")
    e(f"s_and_b32 {sr(S_T0)}, {sr(S_RB)}, 7")
    e(f"s_lshl_b32 {sr(S_T0)}, {sr(S_T0)}, 3")
    e(f"v_lshrrev_b32 {vr(t0)}, 4, {L}")
    e(f"v_lshlrev_b32 {vr(t3)}, 6, {vr(t0)}")
    e(f"v_bfe_u32 {vr(t1)}, {L}, 1, 3")
    e(f"v_add3_u32 {vr(t3)}, {vr(t3)}, {vr(t1)}, {sr(S_T0)}")
    e(f"s_movk_i32 {sr(S_T1)}, {WROW}")
    e(f"v_mul_lo_u32 {vr(t1)}, {vr(t3)}, {sr(S_T1)}")
    e(f"v_and_b32 {vr(t2)}, 1, {L}")
    e(f"v_lshl_add_u32 {vr(t1)}, {vr(t2)}, 7, {vr(t1)}")
    e(f"s_lshl_b32 {sr(S_T1)}, {sr(S_F0)}, 1")
    e(f"v_add_u32 {vr(V_TW)}, {sr(S_T1)}, {vr(t1)}")
    e(f"v_mov_b32 {vr(t2)}, {BAD}")
    e(f"v_cmp_gt_u32 vcc, 48, {L}")
    e("s_nop 0")
    e(f"v_cndmask_b32 {vr(V_TW+2)}, {vr(t2)}, {vr(V_TW)}, vcc")
    e(f"v_cmp_gt_u32 vcc, 16, {L}")
    e("s_nop 1")
    e(f"v_cndmask_b32 {vr(V_TW+3)}, {vr(t2)}, {vr(V_TW)}, vcc")
    e(f"s_cmp_eq_u32 {sr(S_WAVE)}, 1")
    e(f"s_cselect_b32 {sr(SRD_K)}, {sr(P+14)}, {sr(P+16)}")
    e(f"s_cselect_b32 {sr(SRD_K+1)}, {sr(P+15)}, {sr(P+17)}")
    e(f"s_mov_b32 {sr(SRD_K+2)}, {WBYTES}")
    e(f"s_mov_b32 {sr(SRD_K+3)}, 0x20000")
    NPT = opts.get("npt", 3)
    def touch(stage_lo, nst):
        l1 = A.newlabel("TC"); l2 = A.newlabel("TC")
        e(f"s_cmp_eq_u32 {sr(S_WAVE)}, 0"); e(f"s_cbranch_scc0 {l1}")
        if nst == 1:
            e(f"s_movk_i32 {sr(S_T0)}, {stage_lo*128}")
            e(f"buffer_load_dword {vr(V_DUM)}, {vr(V_TX+2)}, {sr(SRD_Q,4)}, {sr(S_T0)} offen")
        else:
            e(f"s_movk_i32 {sr(S_T0)}, {stage_lo*128}")
            e(f"buffer_load_dword {vr(V_DUM)}, {vr(V_TX)}, {sr(SRD_Q,4)}, {sr(S_T0)} offen")
            e(f"s_movk_i32 {sr(S_T0)}, {(stage_lo+2)*128}")
            e(f"buffer_load_dword {vr(V_DUM)}, {vr(V_TX+2)}, {sr(SRD_Q,4)}, {sr(S_T0)} offen")
        e(f"s_branch {l2}")
        A.label(l1)
        e(f"s_mov_b32 {sr(S_T0)}, {stage_lo*64*WROW}")
        e(f"s_cmp_eq_u32 {sr(S_WAVE)}, 3")
        e(f"s_cselect_b32 {sr(S_T0)}, 0x40000000, {sr(S_T0)}")
        e(f"buffer_load_dword {vr(V_DUM)}, {vr(V_TW+3 if nst == 1 else V_TW+2)}, {sr(SRD_K,4)}, {sr(S_T0)} offen")
        A.label(l2)
    touch(1, 3)
    if opts.get("tlb"):
        ltl = A.newlabel("TLB")
        e(f"s_cmp_eq_u32 {sr(S_WAVE)}, 3"); e(f"s_cbranch_scc0 {ltl}")
        e(f"v_lshlrev_b32 {vr(t1)}, 18, {L}")
        e(f"s_lshl_b32 {sr(S_T0)}, {sr(S_WG)}, 7")
        e(f"buffer_load_dword {vr(V_DUM)}, {vr(t1)}, {sr(SRD_WS,4)}, {sr(S_T0)} offen")
        e(f"v_lshlrev_b32 {vr(t1)}, 15, {L}")
        e(f"buffer_load_dword {vr(V_DUM)}, {vr(t1)}, {sr(SRD_OUT,4)}, {sr(S_T0)} offen")
        A.label(ltl)
    TLEAD = opts.get("tlead", 4)
    for st_ in range(4, TLEAD): touch(st_, 1)
    if opts.get("tfirst", 1): e("s_barrier")
    srd_w_select(S_WAVE)
    dma_stage_g(1, 94, 96, S_X0, S_X1, S_X2, S_X3)
    TOUCH2 = []
    stamp(0)
    def reads(stage, ks, st):
        b = FS[st]; out = []
        slot = stage % 3
        xr, wr, o = (V_XR, V_WR, slot*STAGE) if slot < 2 else (V_XR2, V_WR2, 0)
        out.append(f"ds_read_b128 {vr(b,4)}, {vr(xr+ks)} offset:{o}")
        wa = wr + (3 if ks & 1 else 0)
        for h in range(2): out.append(f"ds_read_b64_tr_b16 {vr(b+8+2*h,2)}, {vr(wa)} offset:{o+ks*3072+h*768}")
        out.append(f"ds_read_b128 {vr(b+4,4)}, {vr(xr+ks)} offset:{o+4096}")
        for i in range(1, 3):
            for h in range(2): out.append(f"ds_read_b64_tr_b16 {vr(b+8+4*i+2*h,2)}, {vr(wa+i)} offset:{o+ks*3072+h*768}")
        return out
    V_SEL = 76; V_CSA = 80
    def kstep(ks, st, nxt, job=()):
        b = FS[st]; mf = []
        for i in range(3):
            for tt in range(2):
                a = ACC + 16*(2*i+tt)
                mf.append((f"v_mfma_f32_32x32x16_bf16 {vr(a,16)}, {vr(b+8+4*i,4)}, {vr(b+4*tt,4)}, {vr(a,16)}", 4))
            if ks % 2 == 0 and not opts.get("nocs"):
                mf.append((f"v_mfma_f32_16x16x32_bf16 {vr(V_CSA+4*i,4)}, {vr(V_SEL,4)}, {vr(b+8+4*i,4)}, {vr(V_CSA+4*i,4)}", 2))
        fill = list(nxt) + list(job)
        cap = sum(c for _, c in mf)
        k = 0; done = 0
        for m, c in mf:
            e(m)
            done += c
            upto = (len(fill) * done + cap - 1) // cap
            for x in fill[k:upto]: e(x)
            k = max(k, upto)
    job_at = {}
    e("s_barrier")
    stamp(1)
    for x in reads(0, 0, 0): e(x)
    for it in range(8):
        for ks in range(4):
            g = 4*it + ks
            if ks == 3 and it < 7:
                e("s_waitcnt vmcnt(1) lgkmcnt(0)" if it == 0 else "s_waitcnt lgkmcnt(0)")
                if opts.get("barstamp"): stamp(24 + it)
                e("s_barrier")
                if opts.get("barstamp"): stamp(32 + it)
            else:
                e("s_waitcnt lgkmcnt(0)")
            if ks == 1 and it + TLEAD <= 7: touch(it + TLEAD, 1)
            if ks < 3: nxt = reads(it, ks + 1, (g + 1) & 1)
            elif it < 7: nxt = reads(it + 1, 0, (g + 1) & 1)
            else: nxt = []
            kstep(ks, g & 1, nxt, job_at.get(g, []))
        if opts.get("itstamp"): stamp(16 + it)
    stamp(2)
    e("s_nop 7")
    e(f"s_lshl_b32 {sr(S_T0)}, {sr(S_B)}, 1")
    e(f"s_add_u32 {sr(S_T0)}, {sr(S_T0)}, {sr(S_A)}")
    e(f"s_mul_i32 {sr(S_T0)}, {sr(S_T0)}, 384")
    e(f"s_add_u32 {sr(S_T0)}, {sr(S_T0)}, {L_CS}")
    e(f"v_lshlrev_b32 {vr(t0)}, 2, {L}")
    e(f"v_add_u32 {vr(t0)}, {sr(S_T0)}, {vr(t0)}")
    e(f"s_mov_b64 {sr(S_EX,2)}, exec")
    e("s_mov_b64 exec, 0xffff")
    for i in range(3):
        e(f"s_cmp_eq_u32 {sr(S_A)}, 0")
        e(f"s_cselect_b32 {sr(S_T1)}, {i*128}, {(2-i)*128}")
        e(f"v_add_u32 {vr(t1)}, {sr(S_T1)}, {vr(t0)}")
        e(f"ds_write_b32 {vr(t1)}, {vr(80+4*i)}")
        e(f"ds_write_b32 {vr(t1)}, {vr(80+4*i+1)} offset:64")
    e(f"s_mov_b64 exec, {sr(S_EX,2)}")
    e("s_waitcnt lgkmcnt(0)")
    e("s_barrier")
    stamp(3)
    if opts.get("g1only"):
        stamp_flush()
        e("s_endpgm")
    e("s_setprio 2")
    e(f"v_mov_b32 {vr(t0)}, {L_FLAG+32}")
    e(f"ds_read_b32 {vr(t1)}, {vr(t0)}")
    ST = 84
    e(f"v_and_b32 {vr(t2)}, 31, {L}")
    e(f"v_lshlrev_b32 {vr(t2)}, 3, {vr(t2)}")
    e(f"s_lshl_b32 {sr(S_T0)}, {sr(S_A)}, 9")
    e(f"s_add_u32 {sr(S_T0)}, {sr(S_T0)}, {L_STAT}")
    e(f"v_add_u32 {vr(t2)}, {sr(S_T0)}, {vr(t2)}")
    e(f"ds_read_b64 {vr(ST,2)}, {vr(t2)}")
    e(f"ds_read_b64 {vr(ST+2,2)}, {vr(t2)} offset:256")
    CGS = [16, 32, 48]; CG2 = [64, 96, 112]
    e(f"v_lshrrev_b32 {vr(t5)}, 5, {L}")
    e(f"v_lshlrev_b32 {vr(t5)}, 4, {vr(t5)}")
    e(f"s_mul_i32 {sr(S_T0)}, {sr(S_B)}, 768")
    e(f"s_add_u32 {sr(S_T0)}, {sr(S_T0)}, {L_CS}")
    e(f"v_add_u32 {vr(t5)}, {sr(S_T0)}, {vr(t5)}")
    for i in range(3):
        e(f"s_cmp_eq_u32 {sr(S_A)}, 0")
        e(f"s_cselect_b32 {sr(S_T1)}, {i*128}, {(2-i)*128}")
        e(f"v_add_u32 {vr(t0)}, {sr(S_T1)}, {vr(t5)}")
        for rp in range(4): e(f"ds_read_b128 {vr(CGS[i]+4*rp,4)}, {vr(t0)} offset:{32*rp}")
        for rp in range(4): e(f"ds_read_b128 {vr(CG2[i]+4*rp,4)}, {vr(t0)} offset:{384+32*rp}")
    e("s_waitcnt lgkmcnt(0)")
    e(f"v_readfirstlane_b32 {sr(S_NONCE)}, {vr(t1)}")
    C1 = -2.0 * 0.7978845608028654 * 0.044715 * 1.4426950408889634
    C0 = -2.0 * 0.7978845608028654 * 1.4426950408889634
    NMp, K1p, K0p, IRp = [144, 146], [148, 150], [152, 154], [156, 158]
    e(f"s_mov_b32 {sr(S_T4)}, {f2u(C1):#x}")
    e(f"s_mov_b32 {sr(S_T5)}, {f2u(C0):#x}")
    for tt in range(2):
        m, r = ST + 2*tt, ST + 2*tt + 1
        e(f"v_sub_f32 {vr(NMp[tt])}, 0, {vr(m)}")
        e(f"v_mul_f32 {vr(K0p[tt])}, {sr(S_T5)}, {vr(r)}")
        e(f"v_mul_f32 {vr(t3)}, {vr(r)}, {vr(r)}")
        e(f"v_mul_f32 {vr(t4)}, {vr(t3)}, {vr(r)}")
        e(f"v_mul_f32 {vr(K1p[tt])}, {sr(S_T4)}, {vr(t4)}")
        e(f"v_rcp_f32 {vr(IRp[tt])}, {vr(t3)}")
        e("s_nop 1")
        for rr in (NMp, K0p, K1p, IRp): e(f"v_mov_b32 {vr(rr[tt]+1)}, {vr(rr[tt])}")
    for i in range(3):
        for k in range(0, 16, 2): e(f"v_pk_add_f32 {vr(CGS[i]+k,2)}, {vr(CGS[i]+k,2)}, {vr(CG2[i]+k,2)}")
    TT = 128; HP = [136, 140]
    e(f"v_lshlrev_b32 {vr(t4)}, 4, {L}")
    e(f"s_lshl_b32 {sr(S_T1)}, {sr(S_RB)}, 2")
    e(f"s_lshl_b32 {sr(S_T2)}, {sr(S_A)}, 1")
    e(f"s_add_u32 {sr(S_T1)}, {sr(S_T1)}, {sr(S_T2)}")
    e(f"s_mul_i32 {sr(S_T1)}, {sr(S_T1)}, 86")
    e(f"s_lshr_b32 {sr(S_T2)}, {sr(S_F0)}, 4")
    e(f"s_add_u32 {sr(S_T1)}, {sr(S_T1)}, {sr(S_T2)}")
    e(f"s_add_u32 {sr(S_T1)}, {sr(S_T1)}, {sr(S_B)}")
    e(f"s_lshl_b32 {sr(S_T1)}, {sr(S_T1)}, 10")
    e(f"s_add_u32 {sr(S_G2)}, {sr(S_T1)}, {WS_HF}")
    for i in range(3):
        lsk = A.newlabel("EP")
        if i == 1: e(f"s_mov_b32 {sr(S_T0)}, 1")
        else:
            e(f"s_cmp_eq_u32 {sr(S_A)}, 0")
            e(f"s_cselect_b32 {sr(S_T0)}, {i}, {2-i}")
        e(f"s_cmp_ge_u32 {sr(S_T0)}, {sr(S_N32)}")
        e(f"s_cbranch_scc1 {lsk}")
        e(f"s_lshl_b32 {sr(S_T0)}, {sr(S_T0)}, 11")
        e(f"s_add_u32 {sr(S_T1)}, {sr(S_G2)}, {sr(S_T0)}")
        e(f"s_add_u32 {sr(S_T2)}, {sr(S_T1)}, {86*1024}")
        CG = CGS[i]
        for tt in range(2):
            a = ACC + 16*(2*i+tt)
            NM, K1, K0, IR = NMp[tt], K1p[tt], K0p[tt], IRp[tt]
            G = [a+2*k for k in range(4)]; U = [a+8+2*k for k in range(4)]
            cg = [CG+2*k for k in range(4)]; cu = [CG+8+2*k for k in range(4)]
            T = [TT+2*k for k in range(4)]
            for k in range(4): e(f"v_pk_fma_f32 {vr(G[k],2)}, {vr(NM,2)}, {vr(cg[k],2)}, {vr(G[k],2)}")
            for k in range(4): e(f"v_pk_mul_f32 {vr(T[k],2)}, {vr(G[k],2)}, {vr(G[k],2)}")
            for k in range(4): e(f"v_pk_fma_f32 {vr(T[k],2)}, {vr(T[k],2)}, {vr(K1,2)}, {vr(K0,2)}")
            for k in range(4): e(f"v_pk_mul_f32 {vr(T[k],2)}, {vr(T[k],2)}, {vr(G[k],2)}")
            for k in range(4):
                e(f"v_exp_f32 {vr(TT+2*k)}, {vr(TT+2*k)}")
                e(f"v_exp_f32 {vr(TT+2*k+1)}, {vr(TT+2*k+1)}")
                e(f"v_pk_fma_f32 {vr(U[k],2)}, {vr(NM,2)}, {vr(cu[k],2)}, {vr(U[k],2)}")
            for k in range(4): e(f"v_pk_fma_f32 {vr(T[k],2)}, {vr(T[k],2)}, {vr(IR,2)}, {vr(IR,2)}")
            for k in range(4):
                e(f"v_rcp_f32 {vr(TT+2*k)}, {vr(TT+2*k)}")
                e(f"v_rcp_f32 {vr(TT+2*k+1)}, {vr(TT+2*k+1)}")
                e(f"v_pk_mul_f32 {vr(G[k],2)}, {vr(G[k],2)}, {vr(U[k],2)}")
            for k in range(4): e(f"v_pk_mul_f32 {vr(G[k],2)}, {vr(G[k],2)}, {vr(T[k],2)}")
            for k in range(4): e(f"v_cvt_pk_bf16_f32 {vr(HP[tt]+k)}, {vr(G[k])}, {vr(G[k]+1)}")
            A.vmem(f"buffer_store_dwordx4 {vr(HP[tt],4)}, {vr(t4)}, {sr(SRD_WS,4)}, {sr(S_T1 if tt == 0 else S_T2)} offen sc0 sc1", "hst")
        A.label(lsk)
    stamp(4)
    e(f"s_lshl_b32 {sr(S_T0)}, {sr(S_WAVE)}, 2")
    e(f"s_add_u32 {sr(S_T0)}, {sr(S_T0)}, {L_FLAG+48}")
    e(f"v_mov_b32 {vr(t0)}, {sr(S_T0)}")
    e(f"v_mov_b32 {vr(t1)}, 1")
    e(f"ds_write_b32 {vr(t0)}, {vr(t1)}")
    GACC = 160; PH = opts.get('ph', 8); GH = 16; GW = 80
    GACC = 176
    GW = 80
    GA = [168, 240]
    V_AR = 248
    V_HL, V_DO = 254, 255
    S_KU0, S_KUN, S_RA, S_RBB, S_RC, S_H0 = S_G0, S_G1, S_G2, S_G3, S_G4, S_G5
    S_H1, S_OOB, S_DSO, S_ROT, S_HB = S_C0, S_C1, S_X0, S_X1, S_X2
    e(f"s_mul_i32 {sr(S_ROT)}, {sr(S_J)}, {opts.get('rot', 3)}")
    ku_start(S_KU0, S_WAVE)
    e(f"s_cmp_lt_u32 {sr(S_WAVE)}, 2")
    e(f"s_cselect_b32 {sr(S_KUN)}, 22, 21")
    ring_bases(S_WAVE, S_RA, S_RBB, S_RC)
    wd_voffset(V_DO)
    e(f"v_lshrrev_b32 {vr(t0)}, 5, {L}")
    e(f"v_bfe_u32 {vr(t1)}, {L}, 2, 2")
    e(f"v_lshl_add_u32 {vr(t0)}, {vr(t0)}, 2, {vr(t1)}")
    e(f"v_lshlrev_b32 {vr(t0)}, 7, {vr(t0)}")
    e(f"v_bfe_u32 {vr(t2)}, {L}, 4, 1")
    e(f"v_bfe_u32 {vr(t3)}, {L}, 1, 1")
    e(f"v_lshl_add_u32 {vr(t2)}, {vr(t2)}, 1, {vr(t3)}")
    e(f"v_lshlrev_b32 {vr(t2)}, 4, {vr(t2)}")
    e(f"v_and_b32 {vr(t3)}, 1, {L}")
    e(f"v_lshl_add_u32 {vr(t2)}, {vr(t3)}, 3, {vr(t2)}")
    e(f"v_add_u32 {vr(t0)}, {vr(t0)}, {vr(t2)}")
    e(f"v_bfe_u32 {vr(t1)}, {L}, 3, 1")
    e(f"v_lshlrev_b32 {vr(t1)}, 6, {vr(t1)}")
    e(f"v_add_u32 {vr(t2)}, {vr(t0)}, {vr(t1)}")
    e(f"v_xor_b32 {vr(t1)}, 64, {vr(t1)}")
    e(f"v_add_u32 {vr(t3)}, {vr(t0)}, {vr(t1)}")
    for bi, sb in enumerate((S_RA, S_RBB, S_RC)):
        e(f"v_add_u32 {vr(V_AR+2*bi)}, {sr(sb)}, {vr(t2)}")
        e(f"v_add_u32 {vr(V_AR+2*bi+1)}, {sr(sb)}, {vr(t3)}")
    e(f"v_lshlrev_b32 {vr(V_HL)}, 4, {L}")
    e(f"s_mov_b32 {sr(S_OOB)}, 0x20000000")
    e("s_waitcnt vmcnt(0)")
    e(f"s_lshl_b32 {sr(S_T0)}, {sr(S_RB)}, 8")
    e(f"s_lshl_b32 {sr(S_T1)}, {sr(S_CP)}, 4")
    e(f"s_lshl_b32 {sr(S_T2)}, {sr(S_WAVE)}, 2")
    e(f"s_add_u32 {sr(S_T0)}, {sr(S_T0)}, {sr(S_T1)}")
    e(f"s_add_u32 {sr(S_T0)}, {sr(S_T0)}, {sr(S_T2)}")
    e(f"s_add_u32 {sr(S_T0)}, {sr(S_T0)}, {WS_FL+FL_H}")
    flag_set(S_T0, t0)
    stamp(5)
    e(f"s_lshl_b32 {sr(S_T0)}, {sr(S_WAVE)}, 2")
    e(f"s_add_u32 {sr(S_T0)}, {sr(S_T0)}, {L_FLAG+16}")
    lds_spin(S_T0, t0, t1)
    def afrag_reads(n, dst):
        bi, off = ring_off(n); out = []
        for dt in range(2):
            for h in range(2):
                out.append(f"ds_read_b64_tr_b16 {vr(dst+4*dt+2*h,2)}, {vr(V_AR+2*bi+dt)} offset:{off+1024*h}")
        return out
    for n in range(NR):
        for x in afrag_reads(n, GW+8*n): e(x)
        if n % 3 == 2: e("s_waitcnt lgkmcnt(4)")
    e("s_waitcnt lgkmcnt(0)")
    def refill(n):
        bi, off = ring_off(n)
        sb = (S_RA, S_RBB, S_RC)[bi]
        wd_soff(NR + n, S_DSO, S_ROT, S_KUN, S_KU0, S_OOB)
        for a in range(2):
            e(f"s_add_u32 m0, {sr(sb)}, {off + 1024*a}")
            if a == 1: e(f"s_add_u32 {sr(S_DSO)}, {sr(S_DSO)}, 8192")
            else: e("s_nop 0")
            A.vmem(f"buffer_load_dwordx4 {vr(V_DO)}, {sr(SRD_WD,4)}, {sr(S_DSO)} offen lds", f"R{n}")
    PRE = opts.get("preref", NR)
    for n in range(PRE): refill(n)
    for r in range(64): e(f"v_mov_b32 {vr(GACC+r)}, 0")
    stamp(6)
    e(f"s_lshr_b32 {sr(S_T0)}, {sr(S_I2)}, 1")
    e(f"s_lshl_b32 {sr(S_T0)}, {sr(S_T0)}, 8")
    e(f"s_add_u32 {sr(S_T0)}, {sr(S_T0)}, {WS_FL+FL_H}")
    lh1 = A.newlabel("HP"); lh2 = A.newlabel("HP")
    e(f"s_cmp_lg_u32 {sr(S_WAVE)}, 0")
    e(f"s_cbranch_scc1 {lh1}")
    flag_wait_blocking(t1, 1, S_T0, sleep=opts.get('hsleep', 2), rec=44)
    e(f"v_mov_b32 {vr(t0)}, {L_FLAG+72}")
    e(f"v_mov_b32 {vr(t1)}, 1")
    e(f"ds_write_b32 {vr(t0)}, {vr(t1)}")
    e(f"s_branch {lh2}")
    A.label(lh1)
    e(f"s_mov_b32 {sr(S_T0)}, {L_FLAG+72}")
    lds_spin(S_T0, t1, t0, sleep=1)
    e("s_waitcnt vmcnt(0)")
    A.label(lh2)
    stamp(7)
    e(f"s_lshl_b32 {sr(S_T0)}, {sr(S_I2)}, 1")
    e(f"s_mul_i32 {sr(S_T0)}, {sr(S_T0)}, 86")
    e(f"s_add_u32 {sr(S_T0)}, {sr(S_T0)}, {sr(S_KU0)}")
    e(f"s_lshl_b32 {sr(S_T0)}, {sr(S_T0)}, 10")
    e(f"s_add_u32 {sr(S_HB)}, {sr(S_T0)}, {WS_HF}")
    A.vm = []
    def hload(n):
        hb = GH + 8*(n % PH)
        unit_at(n, S_H0, S_ROT, S_KUN)
        e(f"s_cselect_b32 {sr(S_T5)}, 1, 0")
        e(f"s_lshl_b32 {sr(S_H0)}, {sr(S_H0)}, 10")
        e(f"s_add_u32 {sr(S_H0)}, {sr(S_H0)}, {sr(S_HB)}")
        e(f"s_cmp_eq_u32 {sr(S_T5)}, 1")
        e(f"s_cselect_b32 {sr(S_H0)}, {sr(S_H0)}, {sr(S_OOB)}")
        e(f"s_add_u32 {sr(S_H1)}, {sr(S_H0)}, {86*1024}")
        A.vmem(f"buffer_load_dwordx4 {vr(hb,4)}, {vr(V_HL)}, {sr(SRD_WS,4)}, {sr(S_H0)} offen{HSC}", f"H{n}")
        A.vmem(f"buffer_load_dwordx4 {vr(hb+4,4)}, {vr(V_HL)}, {sr(SRD_WS,4)}, {sr(S_H1)} offen{HSC}", f"H{n}")
    for n in range(PH): hload(n)
    for n in range(22):
        hb = GH + 8*(n % PH)
        if n < NR: aw = GW + 8*n
        else: aw = GA[n & 1]
        if n + 1 >= NR and n + 1 < 22:
            if n + 1 - NR >= PRE: A.wait_vm(f"R{n + 1 - NR}")
            for x in afrag_reads(n + 1 - NR, GA[(n+1) & 1]): e(x)
        A.wait_vm(f"H{n}")
        if n >= NR: e("s_waitcnt lgkmcnt(4)" if n + 1 < 22 else "s_waitcnt lgkmcnt(0)")
        e(f"v_mfma_f32_32x32x16_bf16 {vr(GACC,16)}, {vr(aw,4)}, {vr(hb,4)}, {vr(GACC,16)}")
        e(f"v_mfma_f32_32x32x16_bf16 {vr(GACC+16,16)}, {vr(aw,4)}, {vr(hb+4,4)}, {vr(GACC+16,16)}")
        e(f"v_mfma_f32_32x32x16_bf16 {vr(GACC+32,16)}, {vr(aw+4,4)}, {vr(hb,4)}, {vr(GACC+32,16)}")
        e(f"v_mfma_f32_32x32x16_bf16 {vr(GACC+48,16)}, {vr(aw+4,4)}, {vr(hb+4,4)}, {vr(GACC+48,16)}")
        if n + PH < 22: hload(n + PH)
        if PRE + n < NR: refill(PRE + n)
        if n == opts.get("yun", 12):
            e(f"v_mov_b32 {vr(t0)}, {L_FLAG+64}")
            e(f"v_mov_b32 {vr(t1)}, 1")
            e(f"ds_write_b32 {vr(t0)}, {vr(t1)}")
        if opts.get("g2stamp") and n % 2 == 1: stamp(32 + n // 2)
    stamp(8)
    e("s_nop 7")
    e(f"v_and_b32 {vr(t0)}, 31, {L}")
    e(f"v_lshrrev_b32 {vr(t1)}, 5, {L}")
    e(f"v_mul_u32_u24 {vr(t0)}, 272, {vr(t0)}")
    e(f"v_lshl_add_u32 {vr(t0)}, {vr(t1)}, 4, {vr(t0)}")
    e(f"v_add_u32 {vr(t1)}, {sr(S_RBB)}, {vr(t0)}")
    e(f"v_add_u32 {vr(t0)}, {sr(S_RA)}, {vr(t0)}")
    for dt in range(2):
        for tt in range(2):
            for rp in range(4):
                a = GACC + 16*(2*dt+tt) + 4*rp
                e(f"ds_write_b128 {vr(t0 if tt == 0 else t1)}, {vr(a,4)} offset:{dt*128 + rp*32}")
    e("s_branch L_FINAL")

    A.label("L_HELPER")
    A.vm = ["code"]
    if opts.get("g1only"):
        for _ in range(10): e("s_barrier")
        e("s_endpgm")
    S_LW = S_A
    e(f"s_sub_u32 {sr(S_LW)}, {sr(S_WAVE)}, 4")
    V_XO, V_WO, V_L16, V_TO, V_DO2 = 16, 18, 21, 22, 23
    S_XSO, S_WSO, S_M0X, S_M0W = S_G0, S_G1, S_G3, S_G4
    BAD = 0x7fffff00
    e(f"v_lshlrev_b32 {vr(V_L16)}, 4, {L}")
    loader_setup(S_LW, V_XO, V_WO, S_M0X, S_M0W)
    S_ROW = S_G5
    e(f"s_lshl_b32 {sr(S_ROW)}, {sr(S_RB)}, 7")
    e(f"s_lshl_b32 {sr(S_T0)}, {sr(S_CP)}, 3")
    e(f"s_add_u32 {sr(S_ROW)}, {sr(S_ROW)}, {sr(S_T0)}")
    e(f"s_lshl_b32 {sr(S_T0)}, {sr(S_LW)}, 1")
    e(f"s_add_u32 {sr(S_ROW)}, {sr(S_ROW)}, {sr(S_T0)}")
    e(f"v_lshrrev_b32 {vr(t0)}, 3, {L}")
    e(f"v_and_b32 {vr(t1)}, 7, {L}")
    e(f"v_lshrrev_b32 {vr(t2)}, 4, {L}")
    e(f"s_and_b32 {sr(S_T1)}, {sr(S_LW)}, 1")
    e(f"s_lshl_b32 {sr(S_T1)}, {sr(S_T1)}, 2")
    e(f"v_add_u32 {vr(t2)}, {sr(S_T1)}, {vr(t2)}")
    e(f"v_xor_b32 {vr(t1)}, {vr(t1)}, {vr(t2)}")
    e(f"v_lshlrev_b32 {vr(t1)}, 4, {vr(t1)}")
    e(f"v_lshl_add_u32 {vr(t1)}, {vr(t0)}, 10, {vr(t1)}")
    e(f"s_lshl_b32 {sr(S_T1)}, {sr(S_J)}, 7")
    e(f"v_add_u32 {vr(V_TO)}, {sr(S_T1)}, {vr(t1)}")
    wd_voffset(V_DO2)
    e("s_waitcnt lgkmcnt(0)")
    srd(SRD_Q, 0, 2 << 20)
    srd_w_select(S_LW)
    stamp(0)
    def dma_stage(s): dma_stage_g(s, V_XO, V_WO, S_M0X, S_M0W, S_XSO, S_WSO)
    SX = 24; V_NL = 33; V_SL = 116; V_SLA = 34; V_FL = 114; V_DUM = 32
    e(f"s_lshl_b32 {sr(S_T0)}, {sr(S_ROW)}, 10")
    A.vmem(f"buffer_load_dwordx4 {vr(SX,4)}, {vr(V_L16)}, {sr(SRD_Q,4)}, {sr(S_T0)} offen", "SX")
    A.vmem(f"buffer_load_dwordx4 {vr(SX+4,4)}, {vr(V_L16)}, {sr(SRD_Q,4)}, {sr(S_T0)} offen offset:1024", "SX")
    srd(SRD_DBG, 11, 256)
    lnn = A.newlabel("NN")
    e(f"s_cmp_lg_u32 {sr(S_WG)}, 0")
    e(f"s_cbranch_scc1 {lnn}")
    e(f"s_cmp_lg_u32 {sr(S_WAVE)}, 4")
    e(f"s_cbranch_scc1 {lnn}")
    e(f"s_memrealtime {sr(S_T0,2)}")
    e("s_waitcnt lgkmcnt(0)")
    e(f"s_or_b32 {sr(S_T0)}, {sr(S_T0)}, 1")
    e(f"v_mov_b32 {vr(t0)}, {sr(S_T0)}")
    e(f"buffer_store_dword {vr(t0)}, off, {sr(SRD_DBG,4)}, 0 sc0 sc1")
    A.label(lnn)
    if opts.get("tfirst", 1): e("s_barrier")
    dma_stage(0)
    if not opts.get("tfirst", 1): e("s_barrier")
    srd(SRD_K, 1, 2 << 20); srd(SRD_V, 2, 2 << 20)
    srd(SRD_WS, 12, 0x10000000); srd(SRD_WD, 9, WBYTES)
    def tiles():
        e(f"s_lshl_b32 {sr(S_T0)}, {sr(S_I2)}, 16")
        for srd_, base in ((SRD_K, L_KT), (SRD_V, L_VT)):
            for gi in range(2):
                e(f"s_add_u32 {sr(S_T1)}, {sr(S_LW)}, {4*gi}")
                e(f"s_lshl_b32 {sr(S_T2)}, {sr(S_T1)}, 13")
                e(f"s_add_u32 {sr(S_T2)}, {sr(S_T2)}, {sr(S_T0)}")
                e(f"s_lshl_b32 {sr(S_T1)}, {sr(S_T1)}, 10")
                e(f"s_add_u32 m0, {sr(S_T1)}, {base}")
                e("s_nop 0")
                A.vmem(f"buffer_load_dwordx4 {vr(V_TO)}, {sr(srd_,4)}, {sr(S_T2)} offen lds", "P")
    S_CIDX = S_C1
    HK = [88, 96]; HPB = 112
    def hk_loads():
        e(f"s_lshl_b32 {sr(S_T0)}, {sr(S_WG)}, 1")
        e(f"s_add_u32 {sr(S_T0)}, {sr(S_T0)}, {sr(S_CIDX)}")
        e(f"s_lshl_b32 {sr(S_T0)}, {sr(S_T0)}, 12")
        e(f"s_add_u32 {sr(SRD_SK)}, {sr(P+8)}, {sr(S_T0)}")
        e(f"s_addc_u32 {sr(SRD_SK+1)}, {sr(P+9)}, 0")
        e(f"s_mov_b32 {sr(SRD_SK+2)}, 4096")
        e(f"s_mov_b32 {sr(SRD_SK+3)}, 0x20000")
        e(f"s_and_b32 {sr(S_T1)}, {sr(S_LW)}, 1")
        e(f"s_lshl_b32 {sr(S_T1)}, {sr(S_T1)}, 11")
        for y in range(2):
            e(f"s_add_u32 {sr(S_T2)}, {sr(S_T1)}, {1024*y}")
            A.vmem(f"buffer_load_dwordx4 {vr(HK[y],4)}, {vr(V_L16)}, {sr(SRD_SK,4)}, {sr(S_T2)} offen", "HK")
            A.vmem(f"buffer_load_dwordx2 {vr(HK[y]+4,2)}, {vr(V_L16)}, {sr(SRD_SK,4)}, {sr(S_T2)} offen offset:16", "HK")
        e(f"v_cmp_eq_u32 vcc, 1, {L}")
        e(f"v_mov_b32 {vr(t5)}, 0x10000")
        e("s_nop 0")
        e(f"v_cndmask_b32 {vr(t5)}, {vr(t5)}, 0, vcc")
        A.vmem(f"buffer_load_dwordx2 {vr(HPB,2)}, {vr(t5)}, {sr(SRD_SK,4)}, 0 offen", "HK")
    def wd_touch():
        e(f"s_mul_i32 {sr(S_T0)}, {sr(S_WG)}, {43*128}")
        e(f"s_mul_i32 {sr(S_T1)}, {sr(S_LW)}, 11")
        e(f"v_add_u32 {vr(t4)}, {sr(S_T1)}, {L}")
        e(f"v_cmp_gt_u32 vcc, 11, {L}")
        e(f"v_lshlrev_b32 {vr(t4)}, 7, {vr(t4)}")
        e(f"v_add_u32 {vr(t4)}, {sr(S_T0)}, {vr(t4)}")
        e(f"v_mov_b32 {vr(t5)}, {BAD}")
        e(f"v_cndmask_b32 {vr(t4)}, {vr(t5)}, {vr(t4)}, vcc")
        A.vmem(f"buffer_load_dword {vr(V_DUM)}, {vr(t4)}, {sr(SRD_WD,4)}, 0 offen", "T2")
    e(f"s_lshr_b32 {sr(S_CIDX)}, {sr(S_LW)}, 1")
    PPOS = opts.get("ppos", -1)
    if PPOS < 0: tiles()
    A.vmem(f"buffer_load_dword {vr(V_NL)}, off, {sr(SRD_DBG,4)}, 0 sc1", "NL")
    e(f"v_lshlrev_b32 {vr(t0)}, 2, {L}")
    e(f"v_add_u32 {vr(t0)}, {L_FLAG}, {vr(t0)}")
    e(f"v_mov_b32 {vr(t1)}, 0")
    e(f"s_mov_b64 {sr(S_EX,2)}, exec")
    e("s_mov_b64 exec, 0xfffffff")
    e(f"ds_write_b32 {vr(t0)}, {vr(t1)}")
    e(f"s_mov_b64 exec, {sr(S_EX,2)}")
    A.wait_vm("SX")
    XU = 120; SA = 136
    for rr in range(2):
        for k in range(4):
            e(f"v_lshlrev_b32 {vr(XU+8*rr+2*k)}, 16, {vr(SX+4*rr+k)}")
            e(f"v_and_b32 {vr(XU+8*rr+2*k+1)}, 0xffff0000, {vr(SX+4*rr+k)}")
    def wave_reduce(regs):
        for sh in ("row_shr:1", "row_shr:2", "row_shr:4", "row_shr:8"):
            for r in regs: e(f"v_add_f32_dpp {vr(r)}, {vr(r)}, {vr(r)} {sh} row_mask:0xf bank_mask:0xf bound_ctrl:0")
            e("s_nop 0")
        for r in regs: e(f"v_add_f32_dpp {vr(r)}, {vr(r)}, {vr(r)} row_bcast:15 row_mask:0xa bank_mask:0xf")
        e("s_nop 0")
        for r in regs: e(f"v_add_f32_dpp {vr(r)}, {vr(r)}, {vr(r)} row_bcast:31 row_mask:0xc bank_mask:0xf")
        e("s_nop 1")
    for k in range(1, 8):
        for rr in range(2):
            b = XU + 8*rr
            if k == 1: e(f"v_add_f32 {vr(SA+rr)}, {vr(b)}, {vr(b+1)}")
            else: e(f"v_add_f32 {vr(SA+rr)}, {vr(SA+rr)}, {vr(b+k)}")
    e("s_nop 1")
    wave_reduce([SA, SA+1])
    e(f"v_readlane_b32 {sr(S_T0)}, {vr(SA)}, 63")
    e(f"v_readlane_b32 {sr(S_T1)}, {vr(SA+1)}, 63")
    e(f"v_mov_b32 {vr(SA+2)}, 0x3b000000")
    e("s_nop 0")
    e(f"v_mul_f32 {vr(SA+4)}, {sr(S_T0)}, {vr(SA+2)}")
    e(f"v_mul_f32 {vr(SA+5)}, {sr(S_T1)}, {vr(SA+2)}")
    for k in range(8):
        for rr in range(2): e(f"v_sub_f32 {vr(XU+8*rr+k)}, {vr(XU+8*rr+k)}, {vr(SA+4+rr)}")
    for k in range(8):
        for rr in range(2):
            b = XU + 8*rr
            if k == 0: e(f"v_mul_f32 {vr(SA+rr)}, {vr(b)}, {vr(b)}")
            else: e(f"v_fma_f32 {vr(SA+rr)}, {vr(b+k)}, {vr(b+k)}, {vr(SA+rr)}")
    e("s_nop 1")
    wave_reduce([SA, SA+1])
    e(f"v_readlane_b32 {sr(S_T0)}, {vr(SA)}, 63")
    e(f"v_readlane_b32 {sr(S_T1)}, {vr(SA+1)}, 63")
    e(f"v_cmp_eq_u32 vcc, 1, {L}")
    e("s_nop 0")
    e(f"v_mov_b32 {vr(SA)}, {sr(S_T0)}")
    e(f"v_mov_b32 {vr(SA+1)}, {sr(S_T1)}")
    e(f"v_cndmask_b32 {vr(SA)}, {vr(SA)}, {vr(SA+1)}, vcc")
    e(f"v_cndmask_b32 {vr(SA+4)}, {vr(SA+4)}, {vr(SA+5)}, vcc")
    e(f"v_mul_f32 {vr(SA)}, {vr(SA)}, {vr(SA+2)}")
    e(f"v_cvt_pk_bf16_f32 {vr(SA)}, {vr(SA)}, {vr(SA)}")
    e(f"v_lshlrev_b32 {vr(SA)}, 16, {vr(SA)}")
    e(f"v_add_f32 {vr(SA)}, 0x3727c5ac, {vr(SA)}")
    e(f"v_cvt_pk_bf16_f32 {vr(SA)}, {vr(SA)}, {vr(SA)}")
    e(f"v_lshlrev_b32 {vr(SA)}, 16, {vr(SA)}")
    e(f"v_sqrt_f32 {vr(SA)}, {vr(SA)}")
    e("s_nop 0")
    V_STP = 110
    e(f"v_cvt_pk_bf16_f32 {vr(V_STP)}, {vr(SA+4)}, {vr(SA)}")
    A.wait_vm("S0")
    e("s_waitcnt lgkmcnt(0)")
    e("s_barrier")
    stamp(1)
    def it_end(it, stages, waits=()):
        if opts.get("barstamp"): stamp(24 + it)
        if waits: A.wait_vm(*waits)
        e("s_waitcnt lgkmcnt(0)")
        if opts.get("barstamp"): stamp(32 + it)
        e("s_barrier")
        if opts.get("barstamp"): stamp(40 + it)
        for st_ in stages: st_()
        if opts.get("barstamp"): stamp(48 + it)
    def job_nonce_sts():
        lok = A.newlabel("NOK"); lre = A.newlabel("NRE")
        e(f"s_mov_b32 {sr(S_T3)}, 0x40000")
        A.label(lre)
        e(f"v_readfirstlane_b32 {sr(S_NONCE)}, {vr(V_NL)}")
        e("s_nop 3")
        e(f"s_cmp_lg_u32 {sr(S_NONCE)}, 0")
        e(f"s_cbranch_scc1 {lok}")
        e(f"s_sub_u32 {sr(S_T3)}, {sr(S_T3)}, 1")
        e(f"s_cmp_eq_u32 {sr(S_T3)}, 0")
        e(f"s_cbranch_scc1 {lok}")
        e("s_sleep 2")
        e(f"buffer_load_dword {vr(V_NL)}, off, {sr(SRD_DBG,4)}, 0 sc1")
        e("s_waitcnt vmcnt(0)")
        e(f"s_branch {lre}")
        A.label(lok)
        if TS:
            e(f"s_sub_u32 {sr(S_T0)}, 0x40064, {sr(S_T3)}")
            e("s_nop 0")
            e(f"v_writelane_b32 {vr(V_TS)}, {sr(S_T0)}, 42")
        e(f"v_mov_b32 {vr(t0)}, {L_FLAG+32}")
        e(f"v_mov_b32 {vr(V_STP+1)}, {sr(S_NONCE)}")
        e(f"ds_write_b32 {vr(t0)}, {vr(V_STP+1)}")
        e(f"s_lshl_b32 {sr(S_T0)}, {sr(S_ROW)}, 3")
        e(f"s_add_u32 {sr(S_T0)}, {sr(S_T0)}, {WS_ST}")
        e(f"v_lshlrev_b32 {vr(t0)}, 3, {L}")
        e(f"s_mov_b64 {sr(S_EX,2)}, exec")
        e("s_mov_b64 exec, 3")
        A.vmem(f"buffer_store_dwordx2 {vr(V_STP,2)}, {vr(t0)}, {sr(SRD_WS,4)}, {sr(S_T0)} offen sc0 sc1", "STS")
        e(f"s_mov_b64 exec, {sr(S_EX,2)}")
    T = 128
    def job_tr_store():
        e(f"v_and_b32 {vr(t0)}, 3, {L}")
        e(f"v_bfe_u32 {vr(t1)}, {L}, 4, 1")
        e(f"v_lshl_add_u32 {vr(t0)}, {vr(t1)}, 2, {vr(t0)}")
        e(f"v_lshlrev_b32 {vr(t0)}, 3, {vr(t0)}")
        e(f"v_bfe_u32 {vr(t1)}, {L}, 2, 2")
        e(f"v_sub_u32 {vr(t0)}, {vr(t0)}, {vr(t1)}")
        e(f"v_add_u32 {vr(t0)}, 7, {vr(t0)}")
        e(f"v_lshrrev_b32 {vr(t3)}, 5, {L}")
        e(f"v_lshlrev_b32 {vr(t3)}, 3, {vr(t3)}")
        e(f"s_lshl_b32 {sr(S_T0)}, {sr(S_LW)}, 1")
        for h in range(2):
            if h == 1: e(f"v_subrev_u32 {vr(t0)}, 4, {vr(t0)}")
            e(f"v_bfe_u32 {vr(t1)}, {vr(t0)}, 1, 3")
            e(f"v_xor_b32 {vr(t1)}, {sr(S_T0)}, {vr(t1)}")
            e(f"v_lshlrev_b32 {vr(t1)}, 4, {vr(t1)}")
            e(f"v_lshl_add_u32 {vr(t1)}, {vr(t0)}, 7, {vr(t1)}")
            e(f"v_add_u32 {vr(t1)}, {vr(t1)}, {vr(t3)}")
            e(f"v_add_u32 {vr(t1)}, {L_KT}, {vr(t1)}")
            e(f"v_xor_b32 {vr(t2)}, 16, {vr(t1)}")
            for x, a in ((0, t1), (1, t2)):
                e(f"ds_read_b64_tr_b16 {vr(T+4*x+2*h,2)}, {vr(a)}")
                e(f"ds_read_b64_tr_b16 {vr(T+8+4*x+2*h,2)}, {vr(a)} offset:{L_VT-L_KT}")
        e(f"v_and_b32 {vr(t1)}, 3, {L}")
        e(f"v_lshrrev_b32 {vr(t2)}, 5, {L}")
        e(f"v_lshl_add_u32 {vr(t1)}, {vr(t2)}, 2, {vr(t1)}")
        e(f"v_lshlrev_b32 {vr(t1)}, 12, {vr(t1)}")
        e(f"v_bfe_u32 {vr(t2)}, {L}, 2, 3")
        e(f"v_lshlrev_b32 {vr(t2)}, 4, {vr(t2)}")
        e(f"v_sub_u32 {vr(t1)}, {vr(t1)}, {vr(t2)}")
        e(f"v_add_u32 {vr(t1)}, 4080, {vr(t1)}")
        e(f"s_lshl_b32 {sr(S_T0)}, {sr(S_J)}, 6")
        e(f"s_lshl_b32 {sr(S_T1)}, {sr(S_LW)}, 4")
        e(f"s_add_u32 {sr(S_T0)}, {sr(S_T0)}, {sr(S_T1)}")
        e(f"s_lshl_b32 {sr(S_T0)}, {sr(S_T0)}, 12")
        e(f"s_lshl_b32 {sr(S_T1)}, {sr(S_I2)}, 7")
        e(f"s_sub_u32 {sr(S_T0)}, {sr(S_T0)}, {sr(S_T1)}")
        e(f"v_add_u32 {vr(t1)}, {sr(S_T0)}, {vr(t1)}")
        e(f"v_add_u32 {vr(t2)}, {8*4096}, {vr(t1)}")
        e(f"s_mov_b32 {sr(S_T0)}, {WS_VT}")
        e("s_waitcnt lgkmcnt(0)")
        A.vmem(f"buffer_store_dwordx4 {vr(T,4)}, {vr(t1)}, {sr(SRD_WS,4)}, 0 offen sc0 sc1", "KVS")
        A.vmem(f"buffer_store_dwordx4 {vr(T+4,4)}, {vr(t2)}, {sr(SRD_WS,4)}, 0 offen sc0 sc1", "KVS")
        A.vmem(f"buffer_store_dwordx4 {vr(T+8,4)}, {vr(t1)}, {sr(SRD_WS,4)}, {sr(S_T0)} offen sc0 sc1", "KVS")
        A.vmem(f"buffer_store_dwordx4 {vr(T+12,4)}, {vr(t2)}, {sr(SRD_WS,4)}, {sr(S_T0)} offen sc0 sc1", "KVS")
    S_STO = S_X3
    def job_sl():
        e(f"s_lshl_b32 {sr(S_STO)}, {sr(S_RB)}, 7")
        e(f"s_lshl_b32 {sr(S_T1)}, {sr(S_LW)}, 5")
        e(f"s_add_u32 {sr(S_STO)}, {sr(S_STO)}, {sr(S_T1)}")
        e(f"s_lshl_b32 {sr(S_STO)}, {sr(S_STO)}, 3")
        e(f"s_add_u32 {sr(S_STO)}, {sr(S_STO)}, {WS_ST}")
        e(f"v_and_b32 {vr(V_SLA)}, 31, {L}")
        e(f"v_lshlrev_b32 {vr(V_SLA)}, 3, {vr(V_SLA)}")
        A.vmem(f"buffer_load_dwordx2 {vr(V_SL,2)}, {vr(V_SLA)}, {sr(SRD_WS,4)}, {sr(S_STO)} offen sc1", "SL")
    def job_kvf():
        A.wait_vm("KVS")
        e(f"s_lshl_b32 {sr(S_T0)}, {sr(S_J)}, 9")
        e(f"s_lshl_b32 {sr(S_T1)}, {sr(S_I2)}, 4")
        e(f"s_lshl_b32 {sr(S_T2)}, {sr(S_LW)}, 2")
        e(f"s_add_u32 {sr(S_T0)}, {sr(S_T0)}, {sr(S_T1)}")
        e(f"s_add_u32 {sr(S_T0)}, {sr(S_T0)}, {sr(S_T2)}")
        e(f"s_add_u32 {sr(S_T0)}, {sr(S_T0)}, {WS_FL+FL_KV}")
        flag_set(S_T0, t0)
    S_C, S_KVO, S_W, S_OKF = 62, 63, 64, 70
    def job_conv_scalars():
        e(f"s_lshl_b32 {sr(S_C)}, {sr(S_WG)}, 1")
        e(f"s_add_u32 {sr(S_C)}, {sr(S_C)}, {sr(S_CIDX)}")
        e(f"s_lshr_b32 {sr(S_KVO)}, {sr(S_C)}, 6")
        e(f"s_lshl_b32 {sr(S_KVO)}, {sr(S_KVO)}, 9")
        e(f"s_add_u32 {sr(S_KVO)}, {sr(S_KVO)}, {WS_FL+FL_KV}")
        e(f"s_lshl_b32 {sr(S_T0)}, {sr(S_C)}, 3")
        e(f"s_load_dwordx2 {sr(S_W,2)}, {sr(P+6,2)}, {sr(S_T0)}")
        e("s_waitcnt lgkmcnt(0)")
        e(f"s_and_b32 {sr(S_W+3)}, {sr(S_W+1)}, 0xffff0000")
        e(f"s_lshl_b32 {sr(S_W+2)}, {sr(S_W+1)}, 16")
        e(f"s_and_b32 {sr(S_W+1)}, {sr(S_W)}, 0xffff0000")
        e(f"s_lshl_b32 {sr(S_W)}, {sr(S_W)}, 16")
    def job_statchk():
        A.wait_vm("SL")
        lsr = A.newlabel("SR"); lso = A.newlabel("SO")
        e(f"s_mov_b32 {sr(S_T3)}, 0x40000")
        A.label(lsr)
        e(f"v_cmp_eq_u32 vcc, {sr(S_NONCE)}, {vr(V_SL+1)}")
        e("s_nop 1")
        e("s_cmp_eq_u64 vcc, -1")
        e(f"s_cbranch_scc1 {lso}")
        e(f"s_sub_u32 {sr(S_T3)}, {sr(S_T3)}, 1")
        e(f"s_cmp_eq_u32 {sr(S_T3)}, 0")
        e(f"s_cbranch_scc1 {lso}")
        e("s_sleep 2")
        e(f"buffer_load_dwordx2 {vr(V_SL,2)}, {vr(V_SLA)}, {sr(SRD_WS,4)}, {sr(S_STO)} offen sc1")
        e("s_waitcnt vmcnt(0)")
        e(f"s_branch {lsr}")
        A.label(lso)
        if TS:
            e(f"s_sub_u32 {sr(S_T0)}, 0x40064, {sr(S_T3)}")
            e("s_nop 0")
            e(f"v_writelane_b32 {vr(V_TS)}, {sr(S_T0)}, 41")
        e(f"v_and_b32 {vr(t1)}, 0xffff0000, {vr(V_SL)}")
        e(f"v_lshlrev_b32 {vr(V_SL)}, 16, {vr(V_SL)}")
        e(f"v_rcp_f32 {vr(V_SL+1)}, {vr(t1)}")
        e(f"s_lshl_b32 {sr(S_T0)}, {sr(S_LW)}, 8")
        e(f"s_add_u32 {sr(S_T0)}, {sr(S_T0)}, {L_STAT}")
        e(f"v_add_u32 {vr(t0)}, {sr(S_T0)}, {vr(V_SLA)}")
        e("s_nop 0")
        e(f"ds_write_b64 {vr(t0)}, {vr(V_SL,2)}")
    KR, VR = 128, 160
    def job_row_srds():
        e(f"s_lshl_b32 {sr(S_T0)}, {sr(S_C)}, 12")
        e(f"s_add_u32 {sr(SRD_K)}, {sr(P+24)}, {sr(S_T0)}")
        e(f"s_addc_u32 {sr(SRD_K+1)}, {sr(P+25)}, 0")
        e(f"s_mov_b32 {sr(SRD_K+2)}, 4096")
        e(f"s_mov_b32 {sr(SRD_K+3)}, 0x20000")
        e(f"s_add_u32 {sr(S_T0)}, {sr(S_T0)}, {WS_VT}")
        e(f"s_add_u32 {sr(SRD_V)}, {sr(P+24)}, {sr(S_T0)}")
        e(f"s_addc_u32 {sr(SRD_V+1)}, {sr(P+25)}, 0")
        e(f"s_mov_b32 {sr(SRD_V+2)}, 4096")
        e(f"s_mov_b32 {sr(SRD_V+3)}, 0x20000")
    def uk_loads(track):
        for q in range(4):
            if track:
                e(f"s_cmp_eq_u32 {sr(S_OKF)}, 1")
                e(f"s_cselect_b32 {sr(S_T2)}, {1024*q}, 0x40000000" if q == 0 else f"s_cselect_b32 {sr(S_T2)}, {sr(S_T1)}, {sr(S_T3)}")
                if q < 3:
                    e(f"s_movk_i32 {sr(S_T1)}, {1024*(q+1)}")
                    e(f"s_mov_b32 {sr(S_T3)}, 0x40000000")
            else:
                e(f"s_movk_i32 {sr(S_T2)}, {1024*q}")
            for txt in (f"buffer_load_dwordx4 {vr(KR+8*q,4)}, {vr(V_L16)}, {sr(SRD_K,4)}, {sr(S_T2)} offen{USC}",
                        f"buffer_load_dwordx2 {vr(KR+8*q+4,2)}, {vr(V_L16)}, {sr(SRD_K,4)}, {sr(S_T2)} offen offset:16{USC}",
                        f"buffer_load_dwordx4 {vr(VR+4*q,4)}, {vr(V_L16)}, {sr(SRD_V,4)}, {sr(S_T2)} offen{USC}"):
                if track: A.vmem(txt, "UK")
                else: e(txt)
    def job_pkv_check():
        A.wait_vm("PKV")
        flag_check_scc(V_FL, 2)
        e(f"s_cselect_b32 {sr(S_OKF)}, 1, 0")
        if TS:
            e(f"s_add_u32 {sr(S_T0)}, {sr(S_OKF)}, 100")
            e("s_nop 0")
            e(f"v_writelane_b32 {vr(V_TS)}, {sr(S_T0)}, 40")
        uk_loads(True)
    E = 36
    def kv_chunk(q):
        D = KR + 8*q; V = VR + 4*q
        for i in range(11):
            src = D + (i >> 1)
            e(f"v_and_b32 {vr(E+i)}, 0xffff0000, {vr(src)}" if i & 1 else f"v_lshlrev_b32 {vr(E+i)}, 16, {vr(src)}")
        for i in range(8):
            src = V + (i >> 1)
            e(f"v_and_b32 {vr(E+11+i)}, 0xffff0000, {vr(src)}" if i & 1 else f"v_lshlrev_b32 {vr(E+11+i)}, 16, {vr(src)}")
        for i in range(8): e(f"v_mul_f32 {vr(56+i)}, {sr(S_W+3)}, {vr(E+i+3)}")
        for i in range(8): e(f"v_fma_f32 {vr(56+i)}, {vr(E+i+2)}, {sr(S_W+2)}, {vr(56+i)}")
        for i in range(8): e(f"v_fma_f32 {vr(56+i)}, {vr(E+i+1)}, {sr(S_W+1)}, {vr(56+i)}")
        for i in range(8): e(f"v_fma_f32 {vr(56+i)}, {vr(E+i)}, {sr(S_W)}, {vr(56+i)}")
        for i in range(8): e(f"v_mul_f32 {vr(56+i)}, {vr(56+i)}, {vr(E+11+i)}")
        for k in range(4): e(f"v_cvt_pk_bf16_f32 {vr(D+k)}, {vr(56+2*k)}, {vr(56+2*k+1)}")
    S_DSO2, S_RA, S_RBB, S_RC = S_G4, S_X0, S_X1, S_X2
    S_KU2, S_KUN2, S_ROT2, S_OOB2 = 61, S_C0, S_G5, 60
    def job_wd_setup():
        ku_start(S_KU2, S_LW)
        e(f"s_cmp_lt_u32 {sr(S_LW)}, 2")
        e(f"s_cselect_b32 {sr(S_KUN2)}, 22, 21")
        e(f"s_mul_i32 {sr(S_ROT2)}, {sr(S_J)}, {opts.get('rot', 3)}")
        e(f"s_mov_b32 {sr(S_OOB2)}, 0x20000000")
        ring_bases(S_LW, S_RA, S_RBB, S_RC)
    def wd_dma(n):
        bi, off = ring_off(n); sb = (S_RA, S_RBB, S_RC)[bi]
        wd_soff(n, S_DSO2, S_ROT2, S_KUN2, S_KU2, S_OOB2)
        for a in range(2):
            e(f"s_add_u32 m0, {sr(sb)}, {off + 1024*a}")
            if a == 1: e(f"s_add_u32 {sr(S_DSO2)}, {sr(S_DSO2)}, 8192")
            else: e("s_nop 0")
            A.vmem(f"buffer_load_dwordx4 {vr(V_DO2)}, {sr(SRD_WD,4)}, {sr(S_DSO2)} offen lds", "WDP")
    def hk(w, addr, extra):
        O1, O2, O3 = 116, 120, 124
        for j in range(4):
            e(f"v_alignbit_b32 {vr(O1+j)}, {vr(w+j+1)}, {vr(w+j)}, 16")
            e(f"v_mov_b32 {vr(O2+j)}, {vr(w+j+1)}")
            e(f"v_alignbit_b32 {vr(O3+j)}, {vr(w+j+2)}, {vr(w+j+1)}, 16")
        e(f"ds_write_b128 {vr(addr)}, {vr(w,4)} offset:{extra}")
        e(f"ds_write_b128 {vr(addr)}, {vr(O1,4)} offset:{extra+HCOPY}")
        e(f"ds_write_b128 {vr(addr)}, {vr(O2,4)} offset:{extra+2*HCOPY}")
        e(f"ds_write_b128 {vr(addr)}, {vr(O3,4)} offset:{extra+3*HCOPY}")
        e("s_nop 1")
    S_RH, S_UB = 71, 3
    V_PF = 30
    def job_hankel():
        e(f"s_and_b32 {sr(S_RH)}, {sr(S_LW)}, 1")
        e(f"s_mul_i32 {sr(S_T0)}, {sr(S_CIDX)}, {HCH}")
        e(f"s_add_u32 {sr(S_T0)}, {sr(S_T0)}, {L_HANK}")
        e(f"s_lshl_b32 {sr(S_T1)}, {sr(S_RH)}, 11")
        e(f"s_add_u32 {sr(S_T1)}, {sr(S_T1)}, {sr(S_T0)}")
        e(f"v_add_u32 {vr(27)}, {sr(S_T0)}, {vr(V_L16)}")
        e(f"v_add_u32 {vr(28)}, {sr(S_T1)}, {vr(V_L16)}")
        for y in range(2): hk(HK[y], 28, 32 + 1024*y)
        lpb = A.newlabel("PB")
        e(f"s_cmp_lg_u32 {sr(S_RH)}, 0")
        e(f"s_cbranch_scc1 {lpb}")
        e(f"s_mov_b64 {sr(S_EX,2)}, exec")
        e("s_mov_b64 exec, 3")
        w = HK[0]
        for r in range(4): e(f"v_mov_b32 {vr(w+r)}, 0")
        e(f"v_mov_b32 {vr(w+4)}, {vr(HPB)}"); e(f"v_mov_b32 {vr(w+5)}, {vr(HPB+1)}")
        hk(w, 27, 0)
        e(f"s_mov_b64 exec, {sr(S_EX,2)}")
        A.label(lpb)
    V_DD = 32; V_CA = 35; V_CB = 29
    CACC = 192; CSET = [64, 128]
    def conv_addr():
        e(f"s_and_b32 {sr(S_RH)}, {sr(S_LW)}, 1")
        e(f"s_mul_i32 {sr(S_UB)}, {sr(S_LW)}, {UBSZ}")
        e(f"s_add_u32 {sr(S_UB)}, {sr(S_UB)}, {L_UB}")
        e(f"v_and_b32 {vr(t0)}, 15, {L}")
        e(f"v_lshrrev_b32 {vr(t1)}, 4, {L}")
        e(f"v_lshl_add_u32 {vr(t2)}, {vr(t1)}, 3, {vr(t0)}")
        e(f"v_add_u32 {vr(t2)}, 1, {vr(t2)}")
        e(f"v_and_b32 {vr(t3)}, 3, {vr(t2)}")
        e(f"v_sub_u32 {vr(t2)}, {vr(t2)}, {vr(t3)}")
        e(f"v_lshlrev_b32 {vr(t2)}, 1, {vr(t2)}")
        e(f"v_mul_u32_u24 {vr(t3)}, {HCOPY}, {vr(t3)}")
        e(f"v_add_u32 {vr(t2)}, {vr(t2)}, {vr(t3)}")
        e(f"s_mul_i32 {sr(S_T0)}, {sr(S_CIDX)}, {HCH}")
        e(f"s_lshl_b32 {sr(S_T1)}, {sr(S_RH)}, 8")
        e(f"s_add_u32 {sr(S_T0)}, {sr(S_T0)}, {sr(S_T1)}")
        e(f"s_add_u32 {sr(S_T0)}, {sr(S_T0)}, {L_HANK}")
        e(f"v_add_u32 {vr(V_CA)}, {sr(S_T0)}, {vr(t2)}")
        e(f"v_lshlrev_b32 {vr(t2)}, 1, {vr(t0)}")
        e(f"v_sub_u32 {vr(t2)}, {vr(t1)}, {vr(t2)}")
        e(f"v_add_u32 {vr(t2)}, 254, {vr(t2)}")
        e(f"v_lshlrev_b32 {vr(t2)}, 4, {vr(t2)}")
        e(f"s_add_u32 {sr(S_T0)}, {sr(S_UB)}, {sr(S_T1)}")
        e(f"s_sub_u32 {sr(S_T0)}, {sr(S_T0)}, 3584")
        e(f"v_add_u32 {vr(V_CB)}, {sr(S_T0)}, {vr(t2)}")
        for r in range(32): e(f"v_mov_b32 {vr(CACC+r)}, 0")
    def pt(it): return [tiles] if PPOS == it else []
    dma_stage(2)
    it_end(0, [lambda: dma_stage(3)] + pt(0), waits=())
    if opts.get("nearly", 1):
        A.wait_vm("NL"); job_nonce_sts()
    it_end(1, [lambda: dma_stage(4)] + pt(1), waits=("S2", "NL"))
    if not opts.get("nearly", 1): job_nonce_sts()
    TRI = {-1: 2, 0: 4, 1: 5}[PPOS]
    for it in range(2, 8):
        if it == TRI: job_tr_store()
        if it == opts.get('slit', 3): job_sl()
        if it == TRI + opts.get('kvfd', 2): job_kvf()
        if it == 4: job_conv_scalars(); job_row_srds() if False else None
        if it == 5: job_wd_setup()
        if it == 6: job_statchk()
        if it == opts.get("cait", 6): conv_addr()
        if it == TRI + 3 and it <= 7:
            job_row_srds(); flag_issue(V_FL, 2, S_KVO, "PKV")
        if it == TRI + 4 and it <= 7: job_pkv_check()
        if it == TRI + 5 and it <= 7:
            lk7 = A.newlabel("K7")
            e(f"s_cmp_eq_u32 {sr(S_OKF)}, 1")
            e(f"s_cbranch_scc0 {lk7}")
            A.wait_vm("UK")
            kv_chunk(0); kv_chunk(1)
            A.label(lk7)
        if it == opts.get("hankit", 7): job_hankel()
        if it == 7: break
        st = []
        if it + 3 <= 7: st.append(lambda it=it: dma_stage(it + 3))
        if it == opts.get('hkit', 2): st.append(hk_loads)
        if it == opts.get('wtit', 3): st.append(wd_touch)
        if it == 5: st.append(lambda: [wd_dma(n) for n in range(0, 5)])
        if it == 6: st.append(lambda: [wd_dma(n) for n in range(5, 10)])
        w_ = [f"S{it+1}"]
        if it + 1 == TRI: w_.append("P")
        it_end(it, st, waits=tuple(w_))
    done_chunks01 = (TRI + 5 <= 7); done_check = (TRI + 4 <= 7); done_pkv = (TRI + 3 <= 7)
    e("s_waitcnt lgkmcnt(0)")
    e("s_barrier")
    stamp(3)
    wd_dma(10)
    if not done_pkv:
        job_row_srds(); flag_issue(V_FL, 2, S_KVO, "PKV")
    srd(SRD_AUX, 5, 1024)
    e(f"s_lshl_b32 {sr(S_T0)}, {sr(S_C)}, 1")
    A.vmem(f"buffer_load_ushort {vr(V_DD)}, off, {sr(SRD_AUX,4)}, {sr(S_T0)}", "DD")
    if not done_check: job_pkv_check()
    if opts.get("hankit", 7) > 7: job_hankel()
    e("s_waitcnt lgkmcnt(0)")
    e(f"s_lshl_b32 {sr(S_T0)}, {sr(S_LW)}, 2")
    e(f"s_add_u32 {sr(S_T0)}, {sr(S_T0)}, {L_FLAG}")
    e(f"v_mov_b32 {vr(V_PF)}, {sr(S_T0)}")
    e(f"v_mov_b32 {vr(V_PF+1)}, 1")
    e(f"ds_write_b32 {vr(V_PF)}, {vr(V_PF+1)} offset:96")
    A.wait_vm("WDP")
    e(f"ds_write_b32 {vr(V_PF)}, {vr(V_PF+1)} offset:16")
    lko2 = A.newlabel("KO2"); lko3 = A.newlabel("KO3")
    e(f"s_cmp_eq_u32 {sr(S_OKF)}, 1")
    e(f"s_cbranch_scc1 {lko2}")
    flag_wait_blocking(V_FL, 2, S_KVO, sleep=4)
    uk_loads(False)
    e("s_waitcnt vmcnt(0)")
    if done_chunks01:
        kv_chunk(0); kv_chunk(1)
    A.label(lko2)
    A.wait_vm("UK", "DD")
    if not done_chunks01:
        kv_chunk(0); kv_chunk(1)
    kv_chunk(2); kv_chunk(3)
    e(f"v_add_u32 {vr(26)}, {sr(S_UB)}, {vr(V_L16)}")
    for q in range(4): e(f"ds_write_b128 {vr(26)}, {vr(KR+8*q,4)} offset:{1024*q}")
    for r in range(4): e(f"v_mov_b32 {vr(52+r)}, 0")
    e(f"v_and_b32 {vr(t0)}, 31, {L}")
    e(f"v_lshlrev_b32 {vr(t0)}, 4, {vr(t0)}")
    e(f"v_add_u32 {vr(t0)}, {sr(S_UB)}, {vr(t0)}")
    e(f"ds_write_b128 {vr(t0)}, {vr(52,4)} offset:4096")
    e(f"v_lshlrev_b32 {vr(V_DD)}, 16, {vr(V_DD)}")
    e(f"s_lshl_b32 {sr(S_T0)}, {sr(S_LW)}, 2")
    e(f"s_xor_b32 {sr(S_T0)}, {sr(S_T0)}, 4")
    e(f"s_add_u32 {sr(S_T0)}, {sr(S_T0)}, {L_FLAG+96}")
    lds_spin(S_T0, t1, t0)
    e("s_waitcnt lgkmcnt(0)")
    if opts.get("gate", 1):
        e(f"s_lshl_b32 {sr(S_T0)}, {sr(S_LW)}, 2")
        e(f"s_add_u32 {sr(S_T0)}, {sr(S_T0)}, {L_FLAG+48}")
        lds_spin(S_T0, t1, t0)
    stamp(4)
    def creads(r, st):
        out = []; b = CSET[st]
        for sp in range(8):
            out.append(f"ds_read_b64 {vr(b+4*sp,2)}, {vr(V_CA)} offset:{512*sp+64*r}")
            out.append(f"ds_read_b64 {vr(b+4*sp+2,2)}, {vr(V_CA)} offset:{512*sp+64*r+8}")
            out.append(f"ds_read_b128 {vr(b+32+4*sp,4)}, {vr(V_CB)} offset:{512*(7-sp)+64*r}")
        return out
    def cmfmas(st):
        out = []; b = CSET[st]
        for t in range(8):
            for sp in range(t + 1):
                out.append(f"v_mfma_f32_16x16x32_bf16 {vr(CACC+4*t,4)}, {vr(b+4*sp,4)}, {vr(b+32+4*(t-sp),4)}, {vr(CACC+4*t,4)}")
        return out
    V_UU = 224
    e(f"v_and_b32 {vr(t0)}, 15, {L}")
    e(f"v_lshrrev_b32 {vr(t1)}, 4, {L}")
    e(f"v_lshlrev_b32 {vr(t2)}, 2, {vr(t0)}")
    e(f"v_add_u32 {vr(t2)}, {vr(t2)}, {vr(t1)}")
    e(f"v_lshlrev_b32 {vr(t2)}, 3, {vr(t2)}")
    e(f"s_lshl_b32 {sr(S_T1)}, {sr(S_RH)}, 11")
    e(f"s_sub_u32 {sr(S_T0)}, {sr(S_UB)}, {sr(S_T1)}")
    e(f"s_add_u32 {sr(S_T0)}, {sr(S_T0)}, {4088 - 1536}")
    e(f"v_sub_u32 {vr(t3)}, {sr(S_T0)}, {vr(t2)}")
    for tt in range(4): e(f"ds_read_b64 {vr(V_UU+2*tt,2)}, {vr(t3)} offset:{512*(3-tt)}")
    for x in creads(0, 0): e(x)
    for r in range(4):
        e("s_waitcnt lgkmcnt(0)")
        mf = cmfmas(r & 1)
        rd = creads(r + 1, (r + 1) & 1) if r < 3 else []
        for idx, m in enumerate(mf):
            e(m)
            if idx < len(rd): e(rd[idx])
    stamp(5)
    e("s_nop 7")
    e(f"v_add_u32 {vr(t3)}, {sr(S_UB)}, {vr(V_L16)}")
    l1 = A.newlabel("PR"); l2 = A.newlabel("PR")
    e(f"s_cmp_eq_u32 {sr(S_RH)}, 0")
    e(f"s_cbranch_scc1 {l1}")
    for tt in range(4): e(f"ds_write_b128 {vr(t3)}, {vr(CACC+4*tt,4)} offset:{1024*tt}")
    e("s_nop 1")
    for r in range(16): e(f"v_mov_b32 {vr(CACC+r)}, {vr(CACC+16+r)}")
    e(f"s_branch {l2}")
    A.label(l1)
    for tt in range(4): e(f"ds_write_b128 {vr(t3)}, {vr(CACC+16+4*tt,4)} offset:{1024*tt}")
    A.label(l2)
    e("s_waitcnt lgkmcnt(0)")
    e(f"ds_write_b32 {vr(V_PF)}, {vr(V_PF+1)}")
    e(f"s_lshl_b32 {sr(S_T0)}, {sr(S_LW)}, 2")
    e(f"s_add_u32 {sr(S_T0)}, {sr(S_T0)}, {L_FLAG}")
    e(f"s_xor_b32 {sr(S_T0)}, {sr(S_T0)}, 4")
    lds_spin(S_T0, t1, t0)
    e(f"s_xor_b32 {sr(S_T0)}, {sr(S_LW)}, 1")
    e(f"s_mul_i32 {sr(S_T0)}, {sr(S_T0)}, {UBSZ}")
    e(f"s_add_u32 {sr(S_T0)}, {sr(S_T0)}, {L_UB}")
    e(f"v_add_u32 {vr(t3)}, {sr(S_T0)}, {vr(V_L16)}")
    V_PP = 80
    for tt in range(4): e(f"ds_read_b128 {vr(V_PP+4*tt,4)}, {vr(t3)} offset:{1024*tt}")
    e("s_waitcnt lgkmcnt(0)")
    for r in range(16): e(f"v_add_f32 {vr(CACC+r)}, {vr(CACC+r)}, {vr(V_PP+r)}")
    V_YP = 96
    for tt in range(4):
        y = CACC + 4*tt; u0, u1 = V_UU + 2*tt, V_UU + 2*tt + 1; U = 112 + 4*(tt & 1)
        e(f"v_and_b32 {vr(U+0)}, 0xffff0000, {vr(u1)}")
        e(f"v_lshlrev_b32 {vr(U+1)}, 16, {vr(u1)}")
        e(f"v_and_b32 {vr(U+2)}, 0xffff0000, {vr(u0)}")
        e(f"v_lshlrev_b32 {vr(U+3)}, 16, {vr(u0)}")
        for k in range(4): e(f"v_fma_f32 {vr(y+k)}, {vr(U+k)}, {vr(V_DD)}, {vr(y+k)}")
        e(f"v_cvt_pk_bf16_f32 {vr(V_YP+2*tt)}, {vr(y+0)}, {vr(y+1)}")
        e(f"v_cvt_pk_bf16_f32 {vr(V_YP+2*tt+1)}, {vr(y+2)}, {vr(y+3)}")
    e("s_nop 1")
    for p in range(2):
        e(f"v_permlane16_swap_b32 {vr(V_YP+4*p)}, {vr(V_YP+4*p+2)}")
        e(f"v_permlane16_swap_b32 {vr(V_YP+4*p+1)}, {vr(V_YP+4*p+3)}")
    e(f"v_and_b32 {vr(t0)}, 15, {L}")
    e(f"v_lshrrev_b32 {vr(t1)}, 4, {L}")
    e(f"v_and_b32 {vr(t2)}, 1, {vr(t1)}")
    e(f"v_lshlrev_b32 {vr(t2)}, 9, {vr(t2)}")
    e(f"v_and_b32 {vr(t1)}, 2, {vr(t1)}")
    e(f"v_lshlrev_b32 {vr(t1)}, 3, {vr(t1)}")
    e(f"v_lshlrev_b32 {vr(t0)}, 5, {vr(t0)}")
    e(f"v_add3_u32 {vr(t0)}, {vr(t0)}, {vr(t1)}, {vr(t2)}")
    e(f"s_lshl_b32 {sr(S_T0)}, {sr(S_C)}, 12")
    e(f"s_lshl_b32 {sr(S_T1)}, {sr(S_RH)}, 11")
    e(f"s_add_u32 {sr(S_T0)}, {sr(S_T0)}, {sr(S_T1)}")
    e(f"s_add_u32 {sr(S_T0)}, {sr(S_T0)}, {WS_YYT}")
    for p in range(2):
        e(f"buffer_store_dwordx4 {vr(V_YP+4*p,4)}, {vr(t0)}, {sr(SRD_WS,4)}, {sr(S_T0)} offen offset:{1024*p} sc0 sc1")
    e("s_waitcnt vmcnt(0)")
    e(f"s_lshr_b32 {sr(S_T0)}, {sr(S_C)}, 6")
    e(f"s_lshl_b32 {sr(S_T0)}, {sr(S_T0)}, 9")
    e(f"s_and_b32 {sr(S_T1)}, {sr(S_WG)}, 31")
    e(f"s_lshl_b32 {sr(S_T1)}, {sr(S_T1)}, 4")
    e(f"s_lshl_b32 {sr(S_T2)}, {sr(S_LW)}, 2")
    e(f"s_add_u32 {sr(S_T0)}, {sr(S_T0)}, {sr(S_T1)}")
    e(f"s_add_u32 {sr(S_T0)}, {sr(S_T0)}, {sr(S_T2)}")
    e(f"s_add_u32 {sr(S_T0)}, {sr(S_T0)}, {WS_FL+FL_Y}")
    flag_set(S_T0, t0)
    stamp(6)
    ly1 = A.newlabel("YP"); ly2 = A.newlabel("YP")
    e(f"s_cmp_lg_u32 {sr(S_LW)}, 0")
    e(f"s_cbranch_scc1 {ly1}")
    if opts.get("ygate"):
        e(f"s_mov_b32 {sr(S_T0)}, {L_FLAG+64}")
        lds_spin(S_T0, t1, t0, sleep=4)
    e(f"s_lshl_b32 {sr(S_T0)}, {sr(S_J)}, 9")
    e(f"s_add_u32 {sr(S_T0)}, {sr(S_T0)}, {WS_FL+FL_Y}")
    flag_wait_blocking(V_FL, 2, S_T0, sleep=opts.get('ysleep', 8), rec=43)
    e(f"v_mov_b32 {vr(t0)}, {L_FLAG+68}")
    e(f"v_mov_b32 {vr(t1)}, 1")
    e(f"ds_write_b32 {vr(t0)}, {vr(t1)}")
    e(f"s_branch {ly2}")
    A.label(ly1)
    e(f"s_mov_b32 {sr(S_T0)}, {L_FLAG+68}")
    lds_spin(S_T0, t1, t0, sleep=4)
    A.label(ly2)
    stamp(7)
    e(f"v_lshrrev_b32 {vr(t0)}, 3, {L}")
    e(f"v_and_b32 {vr(t1)}, 7, {L}")
    e(f"s_lshl_b32 {sr(S_T0)}, {sr(S_LW)}, 4")
    e(f"v_add_u32 {vr(t0)}, {sr(S_T0)}, {vr(t0)}")
    e(f"v_lshlrev_b32 {vr(t2)}, 12, {vr(t0)}")
    e(f"v_lshl_add_u32 {vr(t2)}, {vr(t1)}, 4, {vr(t2)}")
    e(f"s_lshl_b32 {sr(S_T0)}, {sr(S_J)}, 18")
    e(f"s_lshl_b32 {sr(S_T1)}, {sr(S_I2)}, 7")
    e(f"s_add_u32 {sr(S_T0)}, {sr(S_T0)}, {sr(S_T1)}")
    e(f"s_add_u32 {sr(S_T0)}, {sr(S_T0)}, {WS_YYT}")
    e(f"buffer_load_dwordx4 {vr(64,4)}, {vr(t2)}, {sr(SRD_WS,4)}, {sr(S_T0)} offen sc1")
    e(f"v_add_u32 {vr(t2)}, {8*4096}, {vr(t2)}")
    e(f"buffer_load_dwordx4 {vr(68,4)}, {vr(t2)}, {sr(SRD_WS,4)}, {sr(S_T0)} offen sc1")
    e(f"v_mul_u32_u24 {vr(t3)}, {YTROW}, {vr(t0)}")
    e(f"v_lshl_add_u32 {vr(t3)}, {vr(t1)}, 4, {vr(t3)}")
    e(f"v_add_u32 {vr(t3)}, {L_YT}, {vr(t3)}")
    e("s_waitcnt vmcnt(1)")
    e(f"ds_write_b128 {vr(t3)}, {vr(64,4)}")
    e("s_waitcnt vmcnt(0)")
    e(f"ds_write_b128 {vr(t3)}, {vr(68,4)} offset:{8*YTROW}")
    srd(SRD_OUT, 10, 2 << 20)

    A.label("L_FINAL")
    e("s_setprio 0")
    FT, FD, FO = 28, 29, 30
    e(f"v_lshrrev_b32 {vr(t0)}, 5, {L}")
    e(f"v_and_b32 {vr(t1)}, 3, {L}")
    e(f"v_lshl_add_u32 {vr(FT)}, {vr(t0)}, 2, {vr(t1)}")
    e(f"s_lshl_b32 {sr(S_T0)}, {sr(S_WAVE)}, 3")
    e(f"v_add_u32 {vr(FT)}, {sr(S_T0)}, {vr(FT)}")
    e(f"v_bfe_u32 {vr(FD)}, {L}, 2, 3")
    e(f"s_lshl_b32 {sr(S_T0)}, {sr(S_I2)}, 16")
    e(f"s_lshl_b32 {sr(S_T1)}, {sr(S_J)}, 7")
    e(f"s_add_u32 {sr(S_T0)}, {sr(S_T0)}, {sr(S_T1)}")
    e(f"v_lshlrev_b32 {vr(FO)}, 10, {vr(FT)}")
    e(f"v_lshl_add_u32 {vr(FO)}, {vr(FD)}, 4, {vr(FO)}")
    e(f"v_add_u32 {vr(FO)}, {sr(S_T0)}, {vr(FO)}")
    FX_, FS_ = 32, 36
    e(f"buffer_load_dwordx4 {vr(FX_,4)}, {vr(FO)}, {sr(SRD_Q,4)}, 0 offen")
    S_FSO = S_G5
    e(f"s_lshl_b32 {sr(S_FSO)}, {sr(S_I2)}, 9")
    e(f"s_add_u32 {sr(S_FSO)}, {sr(S_FSO)}, {WS_ST}")
    V_FSA = 31
    e(f"v_lshlrev_b32 {vr(V_FSA)}, 3, {vr(FT)}")
    e(f"buffer_load_dwordx2 {vr(FS_,2)}, {vr(V_FSA)}, {sr(SRD_WS,4)}, {sr(S_FSO)} offen sc1")
    e("s_waitcnt lgkmcnt(0)")
    e("s_barrier")
    stamp(9)
    FP = 40
    e(f"v_and_b32 {vr(t0)}, 31, {vr(FT)}")
    e(f"v_mul_u32_u24 {vr(t0)}, 272, {vr(t0)}")
    e(f"v_lshl_add_u32 {vr(t0)}, {vr(FD)}, 5, {vr(t0)}")
    e(f"s_cmp_lt_u32 {sr(S_WAVE)}, 4")
    e(f"s_cselect_b32 {sr(S_T0)}, {RA}, {RB_}")
    e(f"v_add_u32 {vr(t0)}, {sr(S_T0)}, {vr(t0)}")
    for kg in range(4):
        e(f"ds_read_b128 {vr(FP+8*kg,4)}, {vr(t0)} offset:{kg*10240}")
        e(f"ds_read_b128 {vr(FP+8*kg+4,4)}, {vr(t0)} offset:{kg*10240+16}")
    FY = 72
    e(f"v_bfe_u32 {vr(t2)}, {L}, 2, 2")
    e(f"v_and_b32 {vr(t3)}, 3, {L}")
    e(f"v_bfe_u32 {vr(t4)}, {L}, 4, 1")
    e(f"v_lshl_add_u32 {vr(t3)}, {vr(t4)}, 2, {vr(t3)}")
    e(f"v_lshl_add_u32 {vr(t2)}, {vr(t3)}, 3, {vr(t2)}")
    e(f"v_mul_u32_u24 {vr(t2)}, {YTROW}, {vr(t2)}")
    e(f"v_lshrrev_b32 {vr(t3)}, 5, {L}")
    e(f"v_lshlrev_b32 {vr(t3)}, 3, {vr(t3)}")
    e(f"s_lshl_b32 {sr(S_T0)}, {sr(S_WAVE)}, 4")
    e(f"s_add_u32 {sr(S_T0)}, {sr(S_T0)}, {L_YT}")
    e(f"v_add3_u32 {vr(t2)}, {vr(t2)}, {vr(t3)}, {sr(S_T0)}")
    e(f"ds_read_b64_tr_b16 {vr(FY,2)}, {vr(t2)}")
    e(f"ds_read_b64_tr_b16 {vr(FY+2,2)}, {vr(t2)} offset:{4*YTROW}")
    e("s_waitcnt lgkmcnt(2)")
    for kg in range(1, 4):
        for k in range(8): e(f"v_add_f32 {vr(FP+k)}, {vr(FP+k)}, {vr(FP+8*kg+k)}")
    O = FP; T = 48; XV = 56; YV = 64
    for k in range(0, 8, 2): e(f"v_cvt_pk_bf16_f32 {vr(T+k)}, {vr(O+k)}, {vr(O+k+1)}")
    for k in range(0, 8, 2):
        e(f"v_and_b32 {vr(O+k+1)}, 0xffff0000, {vr(T+k)}")
        e(f"v_lshlrev_b32 {vr(O+k)}, 16, {vr(T+k)}")
    e(f"s_mov_b32 {sr(S_T0)}, 0xbfb8aa3b")
    for k in range(8): e(f"v_mul_f32 {vr(T+k)}, {sr(S_T0)}, {vr(O+k)}")
    for k in range(8): e(f"v_exp_f32 {vr(T+k)}, {vr(T+k)}")
    for k in range(8): e(f"v_add_f32 {vr(T+k)}, 1.0, {vr(T+k)}")
    for k in range(8): e(f"v_rcp_f32 {vr(T+k)}, {vr(T+k)}")
    e("s_nop 0")
    for k in range(8): e(f"v_mul_f32 {vr(O+k)}, {vr(O+k)}, {vr(T+k)}")
    e("s_waitcnt vmcnt(0) lgkmcnt(0)")
    lf1 = A.newlabel("FS"); lf2 = A.newlabel("FS")
    e(f"s_mov_b32 {sr(S_T3)}, 0x40000")
    A.label(lf1)
    e(f"v_cmp_eq_u32 vcc, {sr(S_NONCE)}, {vr(FS_+1)}")
    e("s_nop 1")
    e("s_cmp_eq_u64 vcc, -1")
    e(f"s_cbranch_scc1 {lf2}")
    e(f"s_sub_u32 {sr(S_T3)}, {sr(S_T3)}, 1")
    e(f"s_cmp_eq_u32 {sr(S_T3)}, 0")
    e(f"s_cbranch_scc1 {lf2}")
    e(f"buffer_load_dwordx2 {vr(FS_,2)}, {vr(V_FSA)}, {sr(SRD_WS,4)}, {sr(S_FSO)} offen sc1")
    e("s_waitcnt vmcnt(0)")
    e(f"s_branch {lf1}")
    A.label(lf2)
    for k in range(4):
        e(f"v_lshlrev_b32 {vr(XV+2*k)}, 16, {vr(FX_+k)}")
        e(f"v_and_b32 {vr(XV+2*k+1)}, 0xffff0000, {vr(FX_+k)}")
        e(f"v_lshlrev_b32 {vr(YV+2*k)}, 16, {vr(FY+k)}")
        e(f"v_and_b32 {vr(YV+2*k+1)}, 0xffff0000, {vr(FY+k)}")
    e(f"v_and_b32 {vr(FS_+1)}, 0xffff0000, {vr(FS_)}")
    e(f"v_lshlrev_b32 {vr(FS_)}, 16, {vr(FS_)}")
    e(f"v_rcp_f32 {vr(FS_+1)}, {vr(FS_+1)}")
    for k in range(8): e(f"v_sub_f32 {vr(T+k)}, {vr(XV+k)}, {vr(FS_)}")
    def round8(b):
        for k in range(0, 8, 2): e(f"v_cvt_pk_bf16_f32 {vr(b+k)}, {vr(b+k)}, {vr(b+k+1)}")
        for k in range(0, 8, 2):
            e(f"v_and_b32 {vr(b+k+1)}, 0xffff0000, {vr(b+k)}")
            e(f"v_lshlrev_b32 {vr(b+k)}, 16, {vr(b+k)}")
    if not opts.get("lightfinal"): round8(T)
    for k in range(8): e(f"v_mul_f32 {vr(T+k)}, {vr(T+k)}, {vr(FS_+1)}")
    round8(T)
    for k in range(8): e(f"v_mul_f32 {vr(T+k)}, {vr(T+k)}, {vr(YV+k)}")
    if not opts.get("lightfinal"):
        round8(T); round8(O)
    for k in range(8): e(f"v_mul_f32 {vr(T+k)}, {vr(T+k)}, {vr(O+k)}")
    if not opts.get("lightfinal"): round8(T)
    for k in range(8): e(f"v_add_f32 {vr(T+k)}, {vr(T+k)}, {vr(XV+k)}")
    for k in range(4): e(f"v_cvt_pk_bf16_f32 {vr(FY+k)}, {vr(T+2*k)}, {vr(T+2*k+1)}")
    e(f"buffer_store_dwordx4 {vr(FY,4)}, {vr(FO)}, {sr(SRD_OUT,4)}, 0 offen" + (" sc0 sc1" if opts.get("outwt") else (" nt" if opts.get("outnt") else "")))
    stamp(10)
    stamp_flush()
    A.label("L_END")
    e("s_endpgm")
    A.label("L_CODE_END")

    body = A.text()
    hdr = open("cdna_kernels/" + NAME + ".s.ref").read().split("; Override launch geometry")[0]
    out = hdr + "; Override launch geometry by editing the next line.\n"
    out += f"; @launch grid=(256,1,1) block=(512,1,1) lds={LDS_TOTAL}\n"
    out += f""".amdgcn_target "amdgcn-amd-amdhsa--gfx950"
.text
.globl {NAME}_kernel
.p2align 8
.type {NAME}_kernel,@function
{NAME}_kernel:
"""
    out += body
    out += f""".section .rodata,"a"
.p2align 6
.amdhsa_kernel {NAME}_kernel
  .amdhsa_next_free_vgpr 256
  .amdhsa_next_free_sgpr 102
  .amdhsa_accum_offset 256
  .amdhsa_group_segment_fixed_size 0
  .amdhsa_kernarg_size 104
  .amdhsa_user_sgpr_count 2
  .amdhsa_user_sgpr_kernarg_segment_ptr 1
  .amdhsa_system_sgpr_workgroup_id_x 1
.end_amdhsa_kernel
"""
    return out

if __name__ == "__main__":
    opts = {}
    outp = sys.argv[1]
    for a in sys.argv[2:]:
        k, _, v = a.partition("=")
        opts[k] = (int(v) if v.lstrip("-").isdigit() else (v or True))
    open(outp, "w").write(gen(opts))
```

```python
import sys, struct

NAME = "recurrent_scan__ssm_conv_h3__glu_gated_geglu__prompt"
f2u = lambda x: struct.unpack("<I", struct.pack("<f", x))[0]

class Asm:
    def __init__(self):
        self.lines = []; self.nlabel = 0; self.vm = []; self.cap = None
    def e(self, s):
        if self.cap is not None: self.cap.append(("  " + s, None))
        else: self.lines.append("  " + s)
    def label(self, l):
        assert self.cap is None, l
        self.lines.append(l + ":")
    def newlabel(self, p="L"):
        self.nlabel += 1; return f"{p}_{self.nlabel}"
    def text(self): return "\n".join(self.lines) + "\n"
    def vmem(self, s, tag):
        if self.cap is not None:
            self.cap.append(("  " + s, tag)); return
        self.e(s); self.vm.append(tag)
    def capture(self, fn):
        assert self.cap is None
        self.cap = []
        fn()
        out = self.cap; self.cap = None
        return out
    def emit_list(self, lst):
        for line, tag in lst:
            self.lines.append(line)
            if tag is not None: self.vm.append(tag)
    def merge(self, a, b):
        groups = []; cur = []
        for it in a:
            cur.append(it)
            if it[1] is not None: groups.append(cur); cur = []
        if cur: groups.append(cur)
        n = len(groups); out = []; k = 0
        for gi, g in enumerate(groups):
            out += g
            upto = (len(b) * (gi + 1)) // n
            out += b[k:upto]; k = upto
        out += b[k:]
        return out
    def wait_vm(self, *tags):
        assert self.cap is None
        last = -1
        for i, t in enumerate(self.vm):
            if t in tags: last = i
        assert last >= 0, tags
        n = len(self.vm) - 1 - last
        n = min(n, 63)
        self.e(f"s_waitcnt vmcnt({n})")
        return n

def vr(a, n=1): return f"v{a}" if n == 1 else f"v[{a}:{a+n-1}]"
def sr(a, n=1): return f"s{a}" if n == 1 else f"s[{a}:{a+n-1}]"

S, D, F = 2048, 512, 1376
WROW = F * 2
WBYTES = 512 * WROW
WS_KVT, WS_YYT, WS_HF, WS_ST, WS_FL, WS_TS = 0, 2 << 20, 4 << 20, 12 << 20, 13 << 20, 16 << 20
WS_VT = 14 << 20
FL_KV, FL_ST, FL_H, FL_Y = 0, 4096, 8192, 12288
STAGE = 40960
L_HANK = 122880
HCOPY = 4160
HCH = 4 * HCOPY
L_MISC = L_HANK + 2 * HCH
L_CS = L_MISC
L_STAT = L_MISC + 1536
L_FLAG = L_MISC + 2560
LDS_TOTAL = 163840
L_KT, L_VT = L_HANK, L_HANK + 8192
RA, RB_ = 2 * STAGE, 0
L_UB = STAGE
UBSZ = 4608
L_YT = L_UB + 4 * UBSZ
YTROW = 144
RC = L_YT + 64 * YTROW
NR = 11
def ring_off(n):
    if n < 5: return (0, n * 2048)
    if n < 10: return (1, (n - 5) * 2048)
    return (2, 0)

SRD_Q, SRD_K, SRD_V, SRD_W, SRD_WD, SRD_WS, SRD_DBG, SRD_OUT, SRD_SK, SRD_AUX = 4, 8, 12, 16, 20, 24, 28, 32, 36, 40
P = 48
S_WG = 2
S_WAVE, S_RB, S_CP, S_I2, S_J, S_F0, S_N32, S_A, S_B = 76, 77, 78, 79, 80, 81, 82, 83, 84
S_NONCE = 85
S_T0, S_T1, S_T2, S_T3, S_T4, S_T5 = 86, 87, 88, 89, 90, 91
S_G0, S_G1, S_G2, S_G3, S_G4, S_G5 = 92, 93, 94, 95, 96, 97
S_C0, S_C1 = 98, 99
S_EX = 100
S_TSP = 74
S_X0, S_X1, S_X2, S_X3 = 44, 45, 46, 47

def gen(opts):
    A = Asm(); e = A.e
    TS = opts.get("ts", False)
    HSC = "" if opts.get("hplain", 1) else " sc1"
    USC = "" if opts.get("uplain", 1) else " sc1"
    t0, t1, t2, t3, t4, t5 = 8, 9, 10, 11, 12, 13
    V_LANE = 3; L = vr(V_LANE)
    V_TS = 15

    def stamp(idx, dyn=None):
        if not TS: return
        e(f"{'s_memtime' if opts.get('cyc') else 's_memrealtime'} {sr(S_TSP,2)}")
        e("s_waitcnt lgkmcnt(0)")
        if dyn is None:
            e(f"v_writelane_b32 {vr(V_TS)}, {sr(S_TSP)}, {idx}")
        else:
            e(f"s_add_u32 m0, {sr(dyn)}, {idx}")
            e("s_nop 0")
            e(f"v_writelane_b32 {vr(V_TS)}, {sr(S_TSP)}, m0")
    def stamp_flush():
        if not TS: return
        e(f"s_lshl_b32 {sr(S_TSP+1)}, {sr(S_WG)}, 3")
        e(f"s_add_u32 {sr(S_TSP+1)}, {sr(S_TSP+1)}, {sr(S_WAVE)}")
        e(f"s_lshl_b32 {sr(S_TSP+1)}, {sr(S_TSP+1)}, 8")
        e(f"s_add_u32 {sr(S_TSP+1)}, {sr(S_TSP+1)}, {WS_TS}")
        e(f"v_lshlrev_b32 v14, 2, {L}")
        e(f"buffer_store_dword {vr(V_TS)}, v14, {sr(SRD_WS,4)}, {sr(S_TSP+1)} offen")

    def srd(dst, pidx, nbytes):
        e(f"s_mov_b32 {sr(dst)}, {sr(P+2*pidx)}")
        e(f"s_mov_b32 {sr(dst+1)}, {sr(P+2*pidx+1)}")
        e(f"s_mov_b32 {sr(dst+2)}, {nbytes}")
        e(f"s_mov_b32 {sr(dst+3)}, 0x20000")

    def flag_issue(vdst, nw, soff_sgpr, tag):
        e(f"v_lshlrev_b32 {vr(t5)}, {1 + nw}, {L}")
        op = "buffer_load_dword" if nw == 1 else "buffer_load_dwordx2"
        A.vmem(f"{op} {vr(vdst,nw)}, {vr(t5)}, {sr(SRD_WS,4)}, {sr(soff_sgpr)} offen sc1", tag)
    def flag_check_scc(vdst, nw):
        e(f"v_cmp_eq_u32 vcc, {sr(S_NONCE)}, {vr(vdst)}")
        if nw == 2:
            e(f"v_cmp_eq_u32 {sr(S_T4,2)}, {sr(S_NONCE)}, {vr(vdst+1)}")
            e("s_nop 1")
            e(f"s_and_b64 vcc, vcc, {sr(S_T4,2)}")
        else:
            e("s_nop 1")
        e("s_cmp_eq_u64 vcc, -1")
    def flag_wait_blocking(vdst, nw, soff_sgpr, sleep=4, rec=None):
        l = A.newlabel("POLL"); d = A.newlabel("POLLD")
        n0 = len(A.vm)
        e(f"s_mov_b32 {sr(S_T3)}, 0x40000")
        A.label(l)
        flag_issue(vdst, nw, soff_sgpr, "poll")
        e("s_waitcnt vmcnt(0)")
        flag_check_scc(vdst, nw)
        e(f"s_cbranch_scc1 {d}")
        e(f"s_sub_u32 {sr(S_T3)}, {sr(S_T3)}, 1")
        e(f"s_cmp_eq_u32 {sr(S_T3)}, 0")
        e(f"s_cbranch_scc1 {d}")
        e(f"s_sleep {sleep}")
        e(f"s_branch {l}")
        A.label(d)
        if TS and rec is not None:
            e(f"s_sub_u32 {sr(S_T2)}, 0x40064, {sr(S_T3)}")
            e("s_nop 0")
            e(f"v_writelane_b32 {vr(V_TS)}, {sr(S_T2)}, {rec}")
        del A.vm[n0:]
    def flag_set(soff_sgpr, vtmp):
        e(f"v_mov_b32 {vr(vtmp)}, {sr(S_NONCE)}")
        e(f"s_mov_b64 {sr(S_EX,2)}, exec")
        e("s_mov_b64 exec, 1")
        A.vmem(f"buffer_store_dword {vr(vtmp)}, off, {sr(SRD_WS,4)}, {sr(soff_sgpr)} sc0 sc1", "flag")
        e(f"s_mov_b64 exec, {sr(S_EX,2)}")
    def lds_spin(addr_sgpr, vt, va, sleep=1):
        l = A.newlabel("LS"); d = A.newlabel("LSD")
        e(f"v_mov_b32 {vr(va)}, {sr(addr_sgpr)}")
        e(f"s_mov_b32 {sr(S_T3)}, 0x200000")
        A.label(l)
        e(f"ds_read_b32 {vr(vt)}, {vr(va)}")
        e("s_waitcnt lgkmcnt(0)")
        e(f"v_readfirstlane_b32 {sr(S_T2)}, {vr(vt)}")
        e("s_nop 3")
        e(f"s_cmp_eq_u32 {sr(S_T2)}, 1")
        e(f"s_cbranch_scc1 {d}")
        e(f"s_sub_u32 {sr(S_T3)}, {sr(S_T3)}, 1")
        e(f"s_cmp_eq_u32 {sr(S_T3)}, 0")
        e(f"s_cbranch_scc1 {d}")
        e(f"s_sleep {sleep}")
        e(f"s_branch {l}")
        A.label(d)
    def wd_voffset(dst):
        e(f"v_lshrrev_b32 {vr(t0)}, 3, {L}")
        e(f"v_and_b32 {vr(t1)}, 7, {L}")
        e(f"v_bfe_u32 {vr(t2)}, {L}, 4, 1")
        e(f"v_lshlrev_b32 {vr(t2)}, 2, {vr(t2)}")
        e(f"v_xor_b32 {vr(t1)}, {vr(t1)}, {vr(t2)}")
        e(f"v_lshlrev_b32 {vr(t1)}, 4, {vr(t1)}")
        e(f"v_lshl_add_u32 {vr(t1)}, {vr(t0)}, 10, {vr(t1)}")
        e(f"s_lshl_b32 {sr(S_T1)}, {sr(S_J)}, 7")
        e(f"v_add_u32 {vr(dst)}, {sr(S_T1)}, {vr(t1)}")
    def ku_start(dst, kg):
        e(f"s_mul_i32 {sr(dst)}, {sr(kg)}, 22")
        e(f"s_cmp_eq_u32 {sr(kg)}, 3")
        e(f"s_cselect_b32 {sr(S_T1)}, 1, 0")
        e(f"s_sub_u32 {sr(dst)}, {sr(dst)}, {sr(S_T1)}")
    def unit_at(n, dst, rot, kun):
        e(f"s_add_u32 {sr(dst)}, {sr(rot)}, {n}")
        e(f"s_cmp_ge_u32 {sr(dst)}, 22")
        e(f"s_cselect_b32 {sr(S_T5)}, 22, 0")
        e(f"s_sub_u32 {sr(dst)}, {sr(dst)}, {sr(S_T5)}")
        e(f"s_cmp_lt_u32 {sr(dst)}, {sr(kun)}")
    def wd_soff(n, dst, rot, kun, ku0, oob):
        unit_at(n, dst, rot, kun)
        e(f"s_cselect_b32 {sr(S_T5)}, 1, 0")
        e(f"s_add_u32 {sr(dst)}, {sr(dst)}, {sr(ku0)}")
        e(f"s_lshl_b32 {sr(dst)}, {sr(dst)}, 14")
        e(f"s_cmp_eq_u32 {sr(S_T5)}, 1")
        e(f"s_cselect_b32 {sr(dst)}, {sr(dst)}, {sr(oob)}")
    def ring_bases(kg, ra, rb, rc):
        e(f"s_mul_i32 {sr(ra)}, {sr(kg)}, 10240")
        e(f"s_add_u32 {sr(rb)}, {sr(ra)}, {RB_}")
        e(f"s_add_u32 {sr(ra)}, {sr(ra)}, {RA}")
        e(f"s_lshl_b32 {sr(rc)}, {sr(kg)}, 11")
        e(f"s_add_u32 {sr(rc)}, {sr(rc)}, {RC}")

    def loader_setup(lw, V_XO, V_WO, S_M0X, S_M0W):
        e(f"v_lshrrev_b32 {vr(t0)}, 3, {L}")
        e(f"v_lshrrev_b32 {vr(t1)}, 4, {L}")
        e(f"v_and_b32 {vr(t2)}, 7, {L}")
        e(f"s_lshl_b32 {sr(S_T2)}, {sr(S_RB)}, 7")
        e(f"s_lshl_b32 {sr(S_T3)}, {sr(lw)}, 5")
        e(f"s_add_u32 {sr(S_T2)}, {sr(S_T2)}, {sr(S_T3)}")
        for a in range(2):
            e(f"v_add_u32 {vr(t3)}, {4*a}, {vr(t1)}")
            e(f"v_xor_b32 {vr(t3)}, {vr(t3)}, {vr(t2)}")
            e(f"v_lshlrev_b32 {vr(t3)}, 4, {vr(t3)}")
            e(f"v_add_u32 {vr(t4)}, {sr(S_T2)}, {vr(t0)}")
            e(f"v_add_u32 {vr(t4)}, {8*a}, {vr(t4)}")
            e(f"v_lshl_add_u32 {vr(V_XO+a)}, {vr(t4)}, 10, {vr(t3)}")
        e(f"s_and_b32 {sr(S_T1)}, {sr(lw)}, 1")
        e(f"s_lshl_b32 {sr(S_T3)}, {sr(S_T1)}, 1")
        e(f"s_lshr_b32 {sr(S_T4)}, {sr(lw)}, 1")
        e(f"s_lshl_b32 {sr(S_T4)}, {sr(S_T4)}, 5")
        e(f"s_lshl_b32 {sr(S_T5)}, {sr(S_F0)}, 1")
        e(f"s_movk_i32 {sr(S_T0)}, {WROW}")
        for i in range(3):
            e(f"v_add_u32 {vr(t0)}, {64*i}, {L}")
            e(f"v_lshrrev_b32 {vr(t1)}, 4, {vr(t0)}")
            e(f"v_mul_u32_u24 {vr(t1)}, 43, {vr(t1)}")
            e(f"v_lshrrev_b32 {vr(t1)}, 7, {vr(t1)}")
            e(f"v_mul_u32_u24 {vr(t2)}, 48, {vr(t1)}")
            e(f"v_sub_u32 {vr(t2)}, {vr(t0)}, {vr(t2)}")
            e(f"v_lshrrev_b32 {vr(t3)}, 4, {vr(t2)}")
            e(f"v_bfe_u32 {vr(t4)}, {vr(t2)}, 2, 2")
            e(f"v_and_b32 {vr(t2)}, 3, {vr(t2)}")
            e(f"v_xor_b32 {vr(t2)}, {sr(S_T3)}, {vr(t2)}")
            e(f"v_lshl_add_u32 {vr(t2)}, {vr(t3)}, 2, {vr(t2)}")
            e(f"v_lshl_add_u32 {vr(t1)}, {vr(t1)}, 2, {vr(t4)}")
            e(f"v_add_u32 {vr(t1)}, {sr(S_T4)}, {vr(t1)}")
            e(f"v_mul_u32_u24 {vr(t1)}, {sr(S_T0)}, {vr(t1)}")
            e(f"v_lshl_add_u32 {vr(t2)}, {vr(t2)}, 4, {vr(t1)}")
            e(f"v_add_u32 {vr(V_WO+i)}, {sr(S_T5)}, {vr(t2)}")
        e(f"s_lshl_b32 {sr(S_M0X)}, {sr(lw)}, 12")
        e(f"s_mul_i32 {sr(S_M0W)}, {sr(S_T1)}, 12288")
        e(f"s_lshr_b32 {sr(S_T4)}, {sr(lw)}, 1")
        e(f"s_mul_i32 {sr(S_T4)}, {sr(S_T4)}, 6144")
        e(f"s_add_u32 {sr(S_M0W)}, {sr(S_M0W)}, {sr(S_T4)}")
        e(f"s_add_u32 {sr(S_M0W)}, {sr(S_M0W)}, 16384")
    def srd_w_select(lw):
        e(f"s_and_b32 {sr(S_T0)}, {sr(lw)}, 1")
        e(f"s_cmp_eq_u32 {sr(S_T0)}, 0")
        e(f"s_cselect_b32 {sr(SRD_W)}, {sr(P+14)}, {sr(P+16)}")
        e(f"s_cselect_b32 {sr(SRD_W+1)}, {sr(P+15)}, {sr(P+17)}")
        e(f"s_mov_b32 {sr(SRD_W+2)}, {WBYTES}")
        e(f"s_mov_b32 {sr(SRD_W+3)}, 0x20000")
    def dma_stage_g(s, V_XO, V_WO, S_M0X, S_M0W, S_XSO, S_WSO):
        slot = (s % 3) * STAGE
        e(f"s_mov_b32 {sr(S_XSO)}, {s*128}")
        e(f"s_add_u32 m0, {sr(S_M0X)}, {slot}")
        for a in range(4):
            if a == 2: e(f"s_mov_b32 {sr(S_XSO)}, {s*128+16384}")
            else: e("s_nop 0")
            A.vmem(f"buffer_load_dwordx4 {vr(V_XO+(a&1))}, {sr(SRD_Q,4)}, {sr(S_XSO)} offen lds", f"S{s}")
            if a < 3: e("s_add_u32 m0, m0, 1024")
        e(f"s_mov_b32 {sr(S_WSO)}, {s*64*WROW}")
        e(f"s_add_u32 m0, {sr(S_M0W)}, {slot}")
        for blk in range(2):
            for i in range(3):
                if blk == 1 and i == 0: e(f"s_mov_b32 {sr(S_WSO)}, {s*64*WROW+16*WROW}")
                else: e("s_nop 0")
                A.vmem(f"buffer_load_dwordx4 {vr(V_WO+i)}, {sr(SRD_W,4)}, {sr(S_WSO)} offen lds", f"S{s}")
                if not (blk == 1 and i == 2): e("s_add_u32 m0, m0, 1024")

    if TS: e("s_memrealtime s[44:45]")
    e(f"s_cmp_ge_u32 {sr(S_WG)}, 256")
    e("s_cbranch_scc1 L_END")
    e(f"s_load_dwordx16 {sr(P,16)}, s[0:1], 0")
    e(f"s_load_dwordx8 {sr(P+16,8)}, s[0:1], 64")
    e(f"s_load_dwordx2 {sr(P+24,2)}, s[0:1], 96")
    e(f"s_getpc_b64 {sr(S_T0,2)}")
    e("v_lshlrev_b32 v1, 6, v0")
    e(f"v_cmp_gt_u32 vcc, L_CODE_END-{NAME}_kernel, v1")
    e(f"s_and_saveexec_b64 {sr(S_EX,2)}, vcc")
    e(f"global_load_dword v2, v1, {sr(S_T0,2)}")
    e(f"s_mov_b64 exec, {sr(S_EX,2)}")
    e(f"v_and_b32 {L}, 63, v0")
    e("v_lshrrev_b32 v4, 6, v0")
    e(f"s_and_b32 {sr(S_T0)}, {sr(S_WG)}, 7")
    e(f"v_readfirstlane_b32 {sr(S_WAVE)}, v4")
    e(f"s_lshr_b32 {sr(S_T1)}, {sr(S_WG)}, 3")
    e(f"s_and_b32 {sr(S_T2)}, {sr(S_T0)}, 1")
    e(f"s_lshl_b32 {sr(S_T2)}, {sr(S_T2)}, 3")
    e(f"s_and_b32 {sr(S_T3)}, {sr(S_T1)}, 7")
    e(f"s_add_u32 {sr(S_RB)}, {sr(S_T2)}, {sr(S_T3)}")
    e(f"s_lshr_b32 {sr(S_T2)}, {sr(S_T0)}, 1")
    e(f"s_lshl_b32 {sr(S_T2)}, {sr(S_T2)}, 2")
    e(f"s_lshr_b32 {sr(S_T3)}, {sr(S_T1)}, 3")
    e(f"s_add_u32 {sr(S_CP)}, {sr(S_T2)}, {sr(S_T3)}")
    e(f"s_lshl_b32 {sr(S_T2)}, {sr(S_T0)}, 2")
    e(f"s_and_b32 {sr(S_T3)}, {sr(S_T1)}, 3")
    e(f"s_add_u32 {sr(S_I2)}, {sr(S_T2)}, {sr(S_T3)}")
    e(f"s_lshr_b32 {sr(S_J)}, {sr(S_T1)}, 2")
    e(f"s_mul_i32 {sr(S_T2)}, {sr(S_CP)}, 96")
    e(f"s_lshl_b32 {sr(S_T3)}, {sr(S_CP)}, 6")
    e(f"s_add_u32 {sr(S_T3)}, {sr(S_T3)}, 352")
    e(f"s_cmp_lt_u32 {sr(S_CP)}, 11")
    e(f"s_cselect_b32 {sr(S_F0)}, {sr(S_T2)}, {sr(S_T3)}")
    e(f"s_cselect_b32 {sr(S_N32)}, 3, 2")
    if TS:
        e(f"v_mov_b32 {vr(V_TS)}, 0")
        e("s_waitcnt lgkmcnt(0)")
        e(f"v_writelane_b32 {vr(V_TS)}, s44, 63")
        e(f"s_memrealtime s[44:45]")
        e("s_waitcnt lgkmcnt(0)")
        e(f"v_writelane_b32 {vr(V_TS)}, s44, 62")
    e(f"s_cmp_ge_u32 {sr(S_WAVE)}, 4")
    e("s_cbranch_scc1 L_HELPER")

    A.vm = ["code"]
    e(f"s_setprio {opts.get('cprio', 2)}")
    e(f"s_and_b32 {sr(S_A)}, {sr(S_WAVE)}, 1")
    e(f"s_lshr_b32 {sr(S_B)}, {sr(S_WAVE)}, 1")
    FS = [16, 36]
    V_XR, V_WR, V_XR2, V_WR2 = 56, 60, 66, 70
    ACC = 160
    e(f"v_and_b32 {vr(t0)}, 31, {L}")
    e(f"v_lshrrev_b32 {vr(t1)}, 5, {L}")
    e(f"v_bfe_u32 {vr(t2)}, {vr(t0)}, 1, 3")
    e(f"v_xor_b32 {vr(t2)}, {vr(t2)}, {vr(t1)}")
    e(f"s_lshl_b32 {sr(S_T0)}, {sr(S_A)}, 1")
    e(f"v_xor_b32 {vr(t2)}, {sr(S_T0)}, {vr(t2)}")
    e(f"s_lshl_b32 {sr(S_T0)}, {sr(S_A)}, 6")
    e(f"v_add_u32 {vr(t0)}, {sr(S_T0)}, {vr(t0)}")
    e(f"v_lshlrev_b32 {vr(t0)}, 7, {vr(t0)}")
    for ks in range(4):
        e(f"v_xor_b32 {vr(t3)}, {2*ks}, {vr(t2)}")
        e(f"v_lshl_add_u32 {vr(V_XR+ks)}, {vr(t3)}, 4, {vr(t0)}")
    e(f"v_bfe_u32 {vr(t0)}, {L}, 4, 1")
    e(f"v_lshrrev_b32 {vr(t1)}, 5, {L}")
    e(f"v_bfe_u32 {vr(t2)}, {L}, 2, 2")
    e(f"v_bfe_u32 {vr(t3)}, {L}, 1, 1")
    e(f"v_and_b32 {vr(t4)}, 1, {L}")
    e(f"s_lshl_b32 {sr(S_T0)}, {sr(S_B)}, 1")
    e(f"v_add_u32 {vr(t3)}, {sr(S_T0)}, {vr(t3)}")
    e(f"v_lshlrev_b32 {vr(t5)}, 1, {vr(t0)}")
    e(f"v_xor_b32 {vr(t3)}, {vr(t3)}, {vr(t5)}")
    e(f"v_lshlrev_b32 {vr(t3)}, 4, {vr(t3)}")
    e(f"v_lshl_add_u32 {vr(t3)}, {vr(t4)}, 3, {vr(t3)}")
    e(f"v_lshl_add_u32 {vr(t3)}, {vr(t2)}, 6, {vr(t3)}")
    e(f"v_mul_u32_u24 {vr(t1)}, 1536, {vr(t1)}")
    e(f"v_mul_u32_u24 {vr(t0)}, 12288, {vr(t0)}")
    e(f"v_add3_u32 {vr(t3)}, {vr(t3)}, {vr(t1)}, {vr(t0)}")
    e(f"v_add_u32 {vr(t3)}, 16384, {vr(t3)}")
    e(f"s_mul_i32 {sr(S_T1)}, {sr(S_A)}, 3072")
    for i in range(3):
        e(f"s_cmp_eq_u32 {sr(S_A)}, 0")
        e(f"s_cselect_b32 {sr(S_T0)}, {i*256}, {(2-i)*256}")
        e(f"s_add_u32 {sr(S_T2)}, {sr(S_T0)}, {sr(S_T1)}")
        e(f"v_add_u32 {vr(V_WR+i)}, {sr(S_T2)}, {vr(t3)}")
        e(f"s_sub_u32 {sr(S_T2)}, {sr(S_T0)}, {sr(S_T1)}")
        e(f"v_add_u32 {vr(V_WR+3+i)}, {sr(S_T2)}, {vr(t3)}")
    for ks in range(4): e(f"v_add_u32 {vr(V_XR2+ks)}, {2*STAGE}, {vr(V_XR+ks)}")
    for i in range(6): e(f"v_add_u32 {vr(V_WR2+i)}, {2*STAGE}, {vr(V_WR+i)}")
    loader_setup(S_WAVE, 94, 96, S_X0, S_X1)
    for r in range(96): e(f"v_mov_b32 {vr(ACC+r)}, 0")
    for r in range(12): e(f"v_mov_b32 {vr(80+r)}, 0")
    e(f"v_and_b32 {vr(t0)}, 15, {L}")
    e(f"v_bfe_u32 {vr(t1)}, {L}, 4, 1")
    e(f"v_cmp_eq_u32 vcc, {vr(t0)}, {vr(t1)}")
    e(f"v_mov_b32 {vr(t2)}, 0x3f803f80")
    e("s_nop 0")
    e(f"v_cndmask_b32 {vr(76)}, 0, {vr(t2)}, vcc")
    for r in range(1, 4): e(f"v_mov_b32 {vr(76+r)}, {vr(76)}")
    e("s_waitcnt lgkmcnt(0)")
    srd(SRD_Q, 0, 2 << 20); srd(SRD_WD, 9, WBYTES); srd(SRD_OUT, 10, 2 << 20); srd(SRD_WS, 12, 0x10000000)
    V_TX, V_TW, V_DUM = 100, 101, 92
    BAD = 0x7fffff00
    e(f"s_and_b32 {sr(S_T0)}, {sr(S_CP)}, 3")
    e(f"s_lshl_b32 {sr(S_T0)}, {sr(S_T0)}, 5")
    e(f"s_lshl_b32 {sr(S_T1)}, {sr(S_RB)}, 7")
    e(f"s_add_u32 {sr(S_T0)}, {sr(S_T0)}, {sr(S_T1)}")
    e(f"v_and_b32 {vr(t1)}, 31, {L}")
    e(f"v_add_u32 {vr(t1)}, {sr(S_T0)}, {vr(t1)}")
    e(f"v_lshlrev_b32 {vr(t1)}, 10, {vr(t1)}")
    e(f"v_lshrrev_b32 {vr(t0)}, 5, {L}")
    e(f"v_lshl_add_u32 {vr(V_TX)}, {vr(t0)}, 7, {vr(t1)}")
    e(f"v_cmp_gt_u32 vcc, 32, {L}")
    e(f"v_mov_b32 {vr(t2)}, {BAD}")
    e("s_nop 0")
    e(f"v_cndmask_b32 {vr(V_TX+2)}, {vr(t2)}, {vr(V_TX)}, vcc")
    e(f"s_and_b32 {sr(S_T0)}, {sr(S_RB)}, 7")
    e(f"s_lshl_b32 {sr(S_T0)}, {sr(S_T0)}, 3")
    e(f"v_lshrrev_b32 {vr(t0)}, 4, {L}")
    e(f"v_lshlrev_b32 {vr(t3)}, 6, {vr(t0)}")
    e(f"v_bfe_u32 {vr(t1)}, {L}, 1, 3")
    e(f"v_add3_u32 {vr(t3)}, {vr(t3)}, {vr(t1)}, {sr(S_T0)}")
    e(f"s_movk_i32 {sr(S_T1)}, {WROW}")
    e(f"v_mul_lo_u32 {vr(t1)}, {vr(t3)}, {sr(S_T1)}")
    e(f"v_and_b32 {vr(t2)}, 1, {L}")
    e(f"v_lshl_add_u32 {vr(t1)}, {vr(t2)}, 7, {vr(t1)}")
    e(f"s_lshl_b32 {sr(S_T1)}, {sr(S_F0)}, 1")
    e(f"v_add_u32 {vr(V_TW)}, {sr(S_T1)}, {vr(t1)}")
    e(f"v_mov_b32 {vr(t2)}, {BAD}")
    e(f"v_cmp_gt_u32 vcc, 48, {L}")
    e("s_nop 0")
    e(f"v_cndmask_b32 {vr(V_TW+2)}, {vr(t2)}, {vr(V_TW)}, vcc")
    e(f"v_cmp_gt_u32 vcc, 16, {L}")
    e("s_nop 1")
    e(f"v_cndmask_b32 {vr(V_TW+3)}, {vr(t2)}, {vr(V_TW)}, vcc")
    e(f"s_cmp_eq_u32 {sr(S_WAVE)}, 1")
    e(f"s_cselect_b32 {sr(SRD_K)}, {sr(P+14)}, {sr(P+16)}")
    e(f"s_cselect_b32 {sr(SRD_K+1)}, {sr(P+15)}, {sr(P+17)}")
    e(f"s_mov_b32 {sr(SRD_K+2)}, {WBYTES}")
    e(f"s_mov_b32 {sr(SRD_K+3)}, 0x20000")
    NPT = opts.get("npt", 3)
    def touch(stage_lo, nst):
        l1 = A.newlabel("TC"); l2 = A.newlabel("TC")
        e(f"s_cmp_eq_u32 {sr(S_WAVE)}, 0"); e(f"s_cbranch_scc0 {l1}")
        if nst == 1:
            e(f"s_movk_i32 {sr(S_T0)}, {stage_lo*128}")
            e(f"buffer_load_dword {vr(V_DUM)}, {vr(V_TX+2)}, {sr(SRD_Q,4)}, {sr(S_T0)} offen")
        else:
            e(f"s_movk_i32 {sr(S_T0)}, {stage_lo*128}")
            e(f"buffer_load_dword {vr(V_DUM)}, {vr(V_TX)}, {sr(SRD_Q,4)}, {sr(S_T0)} offen")
            e(f"s_movk_i32 {sr(S_T0)}, {(stage_lo+2)*128}")
            e(f"buffer_load_dword {vr(V_DUM)}, {vr(V_TX+2)}, {sr(SRD_Q,4)}, {sr(S_T0)} offen")
        e(f"s_branch {l2}")
        A.label(l1)
        e(f"s_mov_b32 {sr(S_T0)}, {stage_lo*64*WROW}")
        e(f"s_cmp_eq_u32 {sr(S_WAVE)}, 3")
        e(f"s_cselect_b32 {sr(S_T0)}, 0x40000000, {sr(S_T0)}")
        e(f"buffer_load_dword {vr(V_DUM)}, {vr(V_TW+3 if nst == 1 else V_TW+2)}, {sr(SRD_K,4)}, {sr(S_T0)} offen")
        A.label(l2)
    touch(1, 3)
    if opts.get("tlb"):
        ltl = A.newlabel("TLB")
        e(f"s_cmp_eq_u32 {sr(S_WAVE)}, 3"); e(f"s_cbranch_scc0 {ltl}")
        e(f"v_lshlrev_b32 {vr(t1)}, 18, {L}")
        e(f"s_lshl_b32 {sr(S_T0)}, {sr(S_WG)}, 7")
        e(f"buffer_load_dword {vr(V_DUM)}, {vr(t1)}, {sr(SRD_WS,4)}, {sr(S_T0)} offen")
        e(f"v_lshlrev_b32 {vr(t1)}, 15, {L}")
        e(f"buffer_load_dword {vr(V_DUM)}, {vr(t1)}, {sr(SRD_OUT,4)}, {sr(S_T0)} offen")
        A.label(ltl)
    TLEAD = opts.get("tlead", 4)
    for st_ in range(4, TLEAD): touch(st_, 1)
    if opts.get("tfirst", 1): e("s_barrier")
    srd_w_select(S_WAVE)
    dma_stage_g(1, 94, 96, S_X0, S_X1, S_X2, S_X3)
    TOUCH2 = []
    stamp(0)
    def reads(stage, ks, st):
        b = FS[st]; out = []
        slot = stage % 3
        xr, wr, o = (V_XR, V_WR, slot*STAGE) if slot < 2 else (V_XR2, V_WR2, 0)
        out.append(f"ds_read_b128 {vr(b,4)}, {vr(xr+ks)} offset:{o}")
        wa = wr + (3 if ks & 1 else 0)
        for h in range(2): out.append(f"ds_read_b64_tr_b16 {vr(b+8+2*h,2)}, {vr(wa)} offset:{o+ks*3072+h*768}")
        out.append(f"ds_read_b128 {vr(b+4,4)}, {vr(xr+ks)} offset:{o+4096}")
        for i in range(1, 3):
            for h in range(2): out.append(f"ds_read_b64_tr_b16 {vr(b+8+4*i+2*h,2)}, {vr(wa+i)} offset:{o+ks*3072+h*768}")
        return out
    V_SEL = 76; V_CSA = 80
    def kstep(ks, st, nxt, job=()):
        b = FS[st]; mf = []
        for i in range(3):
            for tt in range(2):
                a = ACC + 16*(2*i+tt)
                mf.append((f"v_mfma_f32_32x32x16_bf16 {vr(a,16)}, {vr(b+8+4*i,4)}, {vr(b+4*tt,4)}, {vr(a,16)}", 4))
            if ks % 2 == 0 and not opts.get("nocs"):
                mf.append((f"v_mfma_f32_16x16x32_bf16 {vr(V_CSA+4*i,4)}, {vr(V_SEL,4)}, {vr(b+8+4*i,4)}, {vr(V_CSA+4*i,4)}", 2))
        fill = list(nxt) + list(job)
        cap = sum(c for _, c in mf)
        k = 0; done = 0
        for m, c in mf:
            e(m)
            done += c
            upto = (len(fill) * done + cap - 1) // cap
            for x in fill[k:upto]: e(x)
            k = max(k, upto)
    job_at = {}
    e("s_barrier")
    stamp(1)
    for x in reads(0, 0, 0): e(x)
    for it in range(8):
        for ks in range(4):
            g = 4*it + ks
            if ks == 3 and it < 7:
                e("s_waitcnt vmcnt(1) lgkmcnt(0)" if it == 0 else "s_waitcnt lgkmcnt(0)")
                if opts.get("barstamp"): stamp(24 + it)
                e("s_barrier")
                if opts.get("barstamp"): stamp(32 + it)
            else:
                e("s_waitcnt lgkmcnt(0)")
            if ks == 1 and it + TLEAD <= 7: touch(it + TLEAD, 1)
            if ks < 3: nxt = reads(it, ks + 1, (g + 1) & 1)
            elif it < 7: nxt = reads(it + 1, 0, (g + 1) & 1)
            else: nxt = []
            kstep(ks, g & 1, nxt, job_at.get(g, []))
        if opts.get("itstamp"): stamp(16 + it)
    stamp(2)
    e("s_nop 7")
    e(f"s_lshl_b32 {sr(S_T0)}, {sr(S_B)}, 1")
    e(f"s_add_u32 {sr(S_T0)}, {sr(S_T0)}, {sr(S_A)}")
    e(f"s_mul_i32 {sr(S_T0)}, {sr(S_T0)}, 384")
    e(f"s_add_u32 {sr(S_T0)}, {sr(S_T0)}, {L_CS}")
    e(f"v_lshlrev_b32 {vr(t0)}, 2, {L}")
    e(f"v_add_u32 {vr(t0)}, {sr(S_T0)}, {vr(t0)}")
    e(f"s_mov_b64 {sr(S_EX,2)}, exec")
    e("s_mov_b64 exec, 0xffff")
    for i in range(3):
        e(f"s_cmp_eq_u32 {sr(S_A)}, 0")
        e(f"s_cselect_b32 {sr(S_T1)}, {i*128}, {(2-i)*128}")
        e(f"v_add_u32 {vr(t1)}, {sr(S_T1)}, {vr(t0)}")
        e(f"ds_write_b32 {vr(t1)}, {vr(80+4*i)}")
        e(f"ds_write_b32 {vr(t1)}, {vr(80+4*i+1)} offset:64")
    e(f"s_mov_b64 exec, {sr(S_EX,2)}")
    e("s_waitcnt lgkmcnt(0)")
    e("s_barrier")
    stamp(3)
    if opts.get("g1only"):
        stamp_flush()
        e("s_endpgm")
    e("s_setprio 2")
    e(f"v_mov_b32 {vr(t0)}, {L_FLAG+32}")
    e(f"ds_read_b32 {vr(t1)}, {vr(t0)}")
    ST = 84
    e(f"v_and_b32 {vr(t2)}, 31, {L}")
    e(f"v_lshlrev_b32 {vr(t2)}, 3, {vr(t2)}")
    e(f"s_lshl_b32 {sr(S_T0)}, {sr(S_A)}, 9")
    e(f"s_add_u32 {sr(S_T0)}, {sr(S_T0)}, {L_STAT}")
    e(f"v_add_u32 {vr(t2)}, {sr(S_T0)}, {vr(t2)}")
    e(f"ds_read_b64 {vr(ST,2)}, {vr(t2)}")
    e(f"ds_read_b64 {vr(ST+2,2)}, {vr(t2)} offset:256")
    CGS = [16, 32, 48]; CG2 = [64, 96, 112]
    e(f"v_lshrrev_b32 {vr(t5)}, 5, {L}")
    e(f"v_lshlrev_b32 {vr(t5)}, 4, {vr(t5)}")
    e(f"s_mul_i32 {sr(S_T0)}, {sr(S_B)}, 768")
    e(f"s_add_u32 {sr(S_T0)}, {sr(S_T0)}, {L_CS}")
    e(f"v_add_u32 {vr(t5)}, {sr(S_T0)}, {vr(t5)}")
    for i in range(3):
        e(f"s_cmp_eq_u32 {sr(S_A)}, 0")
        e(f"s_cselect_b32 {sr(S_T1)}, {i*128}, {(2-i)*128}")
        e(f"v_add_u32 {vr(t0)}, {sr(S_T1)}, {vr(t5)}")
        for rp in range(4): e(f"ds_read_b128 {vr(CGS[i]+4*rp,4)}, {vr(t0)} offset:{32*rp}")
        for rp in range(4): e(f"ds_read_b128 {vr(CG2[i]+4*rp,4)}, {vr(t0)} offset:{384+32*rp}")
    e("s_waitcnt lgkmcnt(0)")
    e(f"v_readfirstlane_b32 {sr(S_NONCE)}, {vr(t1)}")
    C1 = -2.0 * 0.7978845608028654 * 0.044715 * 1.4426950408889634
    C0 = -2.0 * 0.7978845608028654 * 1.4426950408889634
    NMp, K1p, K0p, IRp = [144, 146], [148, 150], [152, 154], [156, 158]
    e(f"s_mov_b32 {sr(S_T4)}, {f2u(C1):#x}")
    e(f"s_mov_b32 {sr(S_T5)}, {f2u(C0):#x}")
    for tt in range(2):
        m, r = ST + 2*tt, ST + 2*tt + 1
        e(f"v_sub_f32 {vr(NMp[tt])}, 0, {vr(m)}")
        e(f"v_mul_f32 {vr(K0p[tt])}, {sr(S_T5)}, {vr(r)}")
        e(f"v_mul_f32 {vr(t3)}, {vr(r)}, {vr(r)}")
        e(f"v_mul_f32 {vr(t4)}, {vr(t3)}, {vr(r)}")
        e(f"v_mul_f32 {vr(K1p[tt])}, {sr(S_T4)}, {vr(t4)}")
        e(f"v_rcp_f32 {vr(IRp[tt])}, {vr(t3)}")
        e("s_nop 1")
        for rr in (NMp, K0p, K1p, IRp): e(f"v_mov_b32 {vr(rr[tt]+1)}, {vr(rr[tt])}")
    for i in range(3):
        for k in range(0, 16, 2): e(f"v_pk_add_f32 {vr(CGS[i]+k,2)}, {vr(CGS[i]+k,2)}, {vr(CG2[i]+k,2)}")
    TT = 128; HP = [136, 140]
    e(f"v_lshlrev_b32 {vr(t4)}, 4, {L}")
    e(f"s_lshl_b32 {sr(S_T1)}, {sr(S_RB)}, 2")
    e(f"s_lshl_b32 {sr(S_T2)}, {sr(S_A)}, 1")
    e(f"s_add_u32 {sr(S_T1)}, {sr(S_T1)}, {sr(S_T2)}")
    e(f"s_mul_i32 {sr(S_T1)}, {sr(S_T1)}, 86")
    e(f"s_lshr_b32 {sr(S_T2)}, {sr(S_F0)}, 4")
    e(f"s_add_u32 {sr(S_T1)}, {sr(S_T1)}, {sr(S_T2)}")
    e(f"s_add_u32 {sr(S_T1)}, {sr(S_T1)}, {sr(S_B)}")
    e(f"s_lshl_b32 {sr(S_T1)}, {sr(S_T1)}, 10")
    e(f"s_add_u32 {sr(S_G2)}, {sr(S_T1)}, {WS_HF}")
    for i in range(3):
        lsk = A.newlabel("EP")
        if i == 1: e(f"s_mov_b32 {sr(S_T0)}, 1")
        else:
            e(f"s_cmp_eq_u32 {sr(S_A)}, 0")
            e(f"s_cselect_b32 {sr(S_T0)}, {i}, {2-i}")
        e(f"s_cmp_ge_u32 {sr(S_T0)}, {sr(S_N32)}")
        e(f"s_cbranch_scc1 {lsk}")
        e(f"s_lshl_b32 {sr(S_T0)}, {sr(S_T0)}, 11")
        e(f"s_add_u32 {sr(S_T1)}, {sr(S_G2)}, {sr(S_T0)}")
        e(f"s_add_u32 {sr(S_T2)}, {sr(S_T1)}, {86*1024}")
        CG = CGS[i]
        for tt in range(2):
            a = ACC + 16*(2*i+tt)
            NM, K1, K0, IR = NMp[tt], K1p[tt], K0p[tt], IRp[tt]
            G = [a+2*k for k in range(4)]; U = [a+8+2*k for k in range(4)]
            cg = [CG+2*k for k in range(4)]; cu = [CG+8+2*k for k in range(4)]
            T = [TT+2*k for k in range(4)]
            for k in range(4): e(f"v_pk_fma_f32 {vr(G[k],2)}, {vr(NM,2)}, {vr(cg[k],2)}, {vr(G[k],2)}")
            for k in range(4): e(f"v_pk_mul_f32 {vr(T[k],2)}, {vr(G[k],2)}, {vr(G[k],2)}")
            for k in range(4): e(f"v_pk_fma_f32 {vr(T[k],2)}, {vr(T[k],2)}, {vr(K1,2)}, {vr(K0,2)}")
            for k in range(4): e(f"v_pk_mul_f32 {vr(T[k],2)}, {vr(T[k],2)}, {vr(G[k],2)}")
            for k in range(4):
                e(f"v_exp_f32 {vr(TT+2*k)}, {vr(TT+2*k)}")
                e(f"v_exp_f32 {vr(TT+2*k+1)}, {vr(TT+2*k+1)}")
                e(f"v_pk_fma_f32 {vr(U[k],2)}, {vr(NM,2)}, {vr(cu[k],2)}, {vr(U[k],2)}")
            for k in range(4): e(f"v_pk_fma_f32 {vr(T[k],2)}, {vr(T[k],2)}, {vr(IR,2)}, {vr(IR,2)}")
            for k in range(4):
                e(f"v_rcp_f32 {vr(TT+2*k)}, {vr(TT+2*k)}")
                e(f"v_rcp_f32 {vr(TT+2*k+1)}, {vr(TT+2*k+1)}")
                e(f"v_pk_mul_f32 {vr(G[k],2)}, {vr(G[k],2)}, {vr(U[k],2)}")
            for k in range(4): e(f"v_pk_mul_f32 {vr(G[k],2)}, {vr(G[k],2)}, {vr(T[k],2)}")
            for k in range(4): e(f"v_cvt_pk_bf16_f32 {vr(HP[tt]+k)}, {vr(G[k])}, {vr(G[k]+1)}")
            A.vmem(f"buffer_store_dwordx4 {vr(HP[tt],4)}, {vr(t4)}, {sr(SRD_WS,4)}, {sr(S_T1 if tt == 0 else S_T2)} offen sc0 sc1", "hst")
        A.label(lsk)
    stamp(4)
    e(f"s_lshl_b32 {sr(S_T0)}, {sr(S_WAVE)}, 2")
    e(f"s_add_u32 {sr(S_T0)}, {sr(S_T0)}, {L_FLAG+48}")
    e(f"v_mov_b32 {vr(t0)}, {sr(S_T0)}")
    e(f"v_mov_b32 {vr(t1)}, 1")
    e(f"ds_write_b32 {vr(t0)}, {vr(t1)}")
    GACC = 160; PH = opts.get('ph', 8); GH = 16; GW = 80
    GACC = 176
    GW = 80
    GA = [168, 240]
    V_AR = 248
    V_HL, V_DO = 254, 255
    S_KU0, S_KUN, S_RA, S_RBB, S_RC, S_H0 = S_G0, S_G1, S_G2, S_G3, S_G4, S_G5
    S_H1, S_OOB, S_DSO, S_ROT, S_HB = S_C0, S_C1, S_X0, S_X1, S_X2
    e(f"s_mul_i32 {sr(S_ROT)}, {sr(S_J)}, {opts.get('rot', 3)}")
    ku_start(S_KU0, S_WAVE)
    e(f"s_cmp_lt_u32 {sr(S_WAVE)}, 2")
    e(f"s_cselect_b32 {sr(S_KUN)}, 22, 21")
    ring_bases(S_WAVE, S_RA, S_RBB, S_RC)
    wd_voffset(V_DO)
    e(f"v_lshrrev_b32 {vr(t0)}, 5, {L}")
    e(f"v_bfe_u32 {vr(t1)}, {L}, 2, 2")
    e(f"v_lshl_add_u32 {vr(t0)}, {vr(t0)}, 2, {vr(t1)}")
    e(f"v_lshlrev_b32 {vr(t0)}, 7, {vr(t0)}")
    e(f"v_bfe_u32 {vr(t2)}, {L}, 4, 1")
    e(f"v_bfe_u32 {vr(t3)}, {L}, 1, 1")
    e(f"v_lshl_add_u32 {vr(t2)}, {vr(t2)}, 1, {vr(t3)}")
    e(f"v_lshlrev_b32 {vr(t2)}, 4, {vr(t2)}")
    e(f"v_and_b32 {vr(t3)}, 1, {L}")
    e(f"v_lshl_add_u32 {vr(t2)}, {vr(t3)}, 3, {vr(t2)}")
    e(f"v_add_u32 {vr(t0)}, {vr(t0)}, {vr(t2)}")
    e(f"v_bfe_u32 {vr(t1)}, {L}, 3, 1")
    e(f"v_lshlrev_b32 {vr(t1)}, 6, {vr(t1)}")
    e(f"v_add_u32 {vr(t2)}, {vr(t0)}, {vr(t1)}")
    e(f"v_xor_b32 {vr(t1)}, 64, {vr(t1)}")
    e(f"v_add_u32 {vr(t3)}, {vr(t0)}, {vr(t1)}")
    for bi, sb in enumerate((S_RA, S_RBB, S_RC)):
        e(f"v_add_u32 {vr(V_AR+2*bi)}, {sr(sb)}, {vr(t2)}")
        e(f"v_add_u32 {vr(V_AR+2*bi+1)}, {sr(sb)}, {vr(t3)}")
    e(f"v_lshlrev_b32 {vr(V_HL)}, 4, {L}")
    e(f"s_mov_b32 {sr(S_OOB)}, 0x20000000")
    e("s_waitcnt vmcnt(0)")
    e(f"s_lshl_b32 {sr(S_T0)}, {sr(S_RB)}, 8")
    e(f"s_lshl_b32 {sr(S_T1)}, {sr(S_CP)}, 4")
    e(f"s_lshl_b32 {sr(S_T2)}, {sr(S_WAVE)}, 2")
    e(f"s_add_u32 {sr(S_T0)}, {sr(S_T0)}, {sr(S_T1)}")
    e(f"s_add_u32 {sr(S_T0)}, {sr(S_T0)}, {sr(S_T2)}")
    e(f"s_add_u32 {sr(S_T0)}, {sr(S_T0)}, {WS_FL+FL_H}")
    flag_set(S_T0, t0)
    stamp(5)
    e(f"s_lshl_b32 {sr(S_T0)}, {sr(S_WAVE)}, 2")
    e(f"s_add_u32 {sr(S_T0)}, {sr(S_T0)}, {L_FLAG+16}")
    lds_spin(S_T0, t0, t1)
    def afrag_reads(n, dst):
        bi, off = ring_off(n); out = []
        for dt in range(2):
            for h in range(2):
                out.append(f"ds_read_b64_tr_b16 {vr(dst+4*dt+2*h,2)}, {vr(V_AR+2*bi+dt)} offset:{off+1024*h}")
        return out
    for n in range(NR):
        for x in afrag_reads(n, GW+8*n): e(x)
        if n % 3 == 2: e("s_waitcnt lgkmcnt(4)")
    e("s_waitcnt lgkmcnt(0)")
    def refill(n):
        bi, off = ring_off(n)
        sb = (S_RA, S_RBB, S_RC)[bi]
        wd_soff(NR + n, S_DSO, S_ROT, S_KUN, S_KU0, S_OOB)
        for a in range(2):
            e(f"s_add_u32 m0, {sr(sb)}, {off + 1024*a}")
            if a == 1: e(f"s_add_u32 {sr(S_DSO)}, {sr(S_DSO)}, 8192")
            else: e("s_nop 0")
            A.vmem(f"buffer_load_dwordx4 {vr(V_DO)}, {sr(SRD_WD,4)}, {sr(S_DSO)} offen lds", f"R{n}")
    PRE = opts.get("preref", NR)
    for n in range(PRE): refill(n)
    for r in range(64): e(f"v_mov_b32 {vr(GACC+r)}, 0")
    stamp(6)
    e(f"s_lshr_b32 {sr(S_T0)}, {sr(S_I2)}, 1")
    e(f"s_lshl_b32 {sr(S_T0)}, {sr(S_T0)}, 8")
    e(f"s_add_u32 {sr(S_T0)}, {sr(S_T0)}, {WS_FL+FL_H}")
    lh1 = A.newlabel("HP"); lh2 = A.newlabel("HP")
    e(f"s_cmp_lg_u32 {sr(S_WAVE)}, 0")
    e(f"s_cbranch_scc1 {lh1}")
    flag_wait_blocking(t1, 1, S_T0, sleep=opts.get('hsleep', 2), rec=44)
    e(f"v_mov_b32 {vr(t0)}, {L_FLAG+72}")
    e(f"v_mov_b32 {vr(t1)}, 1")
    e(f"ds_write_b32 {vr(t0)}, {vr(t1)}")
    e(f"s_branch {lh2}")
    A.label(lh1)
    e(f"s_mov_b32 {sr(S_T0)}, {L_FLAG+72}")
    lds_spin(S_T0, t1, t0, sleep=1)
    e("s_waitcnt vmcnt(0)")
    A.label(lh2)
    stamp(7)
    e(f"s_lshl_b32 {sr(S_T0)}, {sr(S_I2)}, 1")
    e(f"s_mul_i32 {sr(S_T0)}, {sr(S_T0)}, 86")
    e(f"s_add_u32 {sr(S_T0)}, {sr(S_T0)}, {sr(S_KU0)}")
    e(f"s_lshl_b32 {sr(S_T0)}, {sr(S_T0)}, 10")
    e(f"s_add_u32 {sr(S_HB)}, {sr(S_T0)}, {WS_HF}")
    A.vm = []
    def hload(n):
        hb = GH + 8*(n % PH)
        unit_at(n, S_H0, S_ROT, S_KUN)
        e(f"s_cselect_b32 {sr(S_T5)}, 1, 0")
        e(f"s_lshl_b32 {sr(S_H0)}, {sr(S_H0)}, 10")
        e(f"s_add_u32 {sr(S_H0)}, {sr(S_H0)}, {sr(S_HB)}")
        e(f"s_cmp_eq_u32 {sr(S_T5)}, 1")
        e(f"s_cselect_b32 {sr(S_H0)}, {sr(S_H0)}, {sr(S_OOB)}")
        e(f"s_add_u32 {sr(S_H1)}, {sr(S_H0)}, {86*1024}")
        A.vmem(f"buffer_load_dwordx4 {vr(hb,4)}, {vr(V_HL)}, {sr(SRD_WS,4)}, {sr(S_H0)} offen{HSC}", f"H{n}")
        A.vmem(f"buffer_load_dwordx4 {vr(hb+4,4)}, {vr(V_HL)}, {sr(SRD_WS,4)}, {sr(S_H1)} offen{HSC}", f"H{n}")
    for n in range(PH): hload(n)
    for n in range(22):
        hb = GH + 8*(n % PH)
        if n < NR: aw = GW + 8*n
        else: aw = GA[n & 1]
        if n + 1 >= NR and n + 1 < 22:
            if n + 1 - NR >= PRE: A.wait_vm(f"R{n + 1 - NR}")
            for x in afrag_reads(n + 1 - NR, GA[(n+1) & 1]): e(x)
        A.wait_vm(f"H{n}")
        if n >= NR: e("s_waitcnt lgkmcnt(4)" if n + 1 < 22 else "s_waitcnt lgkmcnt(0)")
        e(f"v_mfma_f32_32x32x16_bf16 {vr(GACC,16)}, {vr(aw,4)}, {vr(hb,4)}, {vr(GACC,16)}")
        e(f"v_mfma_f32_32x32x16_bf16 {vr(GACC+16,16)}, {vr(aw,4)}, {vr(hb+4,4)}, {vr(GACC+16,16)}")
        e(f"v_mfma_f32_32x32x16_bf16 {vr(GACC+32,16)}, {vr(aw+4,4)}, {vr(hb,4)}, {vr(GACC+32,16)}")
        e(f"v_mfma_f32_32x32x16_bf16 {vr(GACC+48,16)}, {vr(aw+4,4)}, {vr(hb+4,4)}, {vr(GACC+48,16)}")
        if n + PH < 22: hload(n + PH)
        if PRE + n < NR: refill(PRE + n)
        if n == opts.get("yun", 12):
            e(f"v_mov_b32 {vr(t0)}, {L_FLAG+64}")
            e(f"v_mov_b32 {vr(t1)}, 1")
            e(f"ds_write_b32 {vr(t0)}, {vr(t1)}")
        if opts.get("g2stamp") and n % 2 == 1: stamp(32 + n // 2)
    stamp(8)
    e("s_nop 7")
    e(f"v_and_b32 {vr(t0)}, 31, {L}")
    e(f"v_lshrrev_b32 {vr(t1)}, 5, {L}")
    e(f"v_mul_u32_u24 {vr(t0)}, 272, {vr(t0)}")
    e(f"v_lshl_add_u32 {vr(t0)}, {vr(t1)}, 4, {vr(t0)}")
    e(f"v_add_u32 {vr(t1)}, {sr(S_RBB)}, {vr(t0)}")
    e(f"v_add_u32 {vr(t0)}, {sr(S_RA)}, {vr(t0)}")
    for dt in range(2):
        for tt in range(2):
            for rp in range(4):
                a = GACC + 16*(2*dt+tt) + 4*rp
                e(f"ds_write_b128 {vr(t0 if tt == 0 else t1)}, {vr(a,4)} offset:{dt*128 + rp*32}")
    e("s_branch L_FINAL")

    A.label("L_HELPER")
    A.vm = ["code"]
    if opts.get("g1only"):
        for _ in range(10): e("s_barrier")
        e("s_endpgm")
    S_LW = S_A
    e(f"s_sub_u32 {sr(S_LW)}, {sr(S_WAVE)}, 4")
    V_XO, V_WO, V_L16, V_TO, V_DO2 = 16, 18, 21, 22, 23
    S_XSO, S_WSO, S_M0X, S_M0W = S_G0, S_G1, S_G3, S_G4
    BAD = 0x7fffff00
    e(f"v_lshlrev_b32 {vr(V_L16)}, 4, {L}")
    loader_setup(S_LW, V_XO, V_WO, S_M0X, S_M0W)
    S_ROW = S_G5
    e(f"s_lshl_b32 {sr(S_ROW)}, {sr(S_RB)}, 7")
    e(f"s_lshl_b32 {sr(S_T0)}, {sr(S_CP)}, 3")
    e(f"s_add_u32 {sr(S_ROW)}, {sr(S_ROW)}, {sr(S_T0)}")
    e(f"s_lshl_b32 {sr(S_T0)}, {sr(S_LW)}, 1")
    e(f"s_add_u32 {sr(S_ROW)}, {sr(S_ROW)}, {sr(S_T0)}")
    e(f"v_lshrrev_b32 {vr(t0)}, 3, {L}")
    e(f"v_and_b32 {vr(t1)}, 7, {L}")
    e(f"v_lshrrev_b32 {vr(t2)}, 4, {L}")
    e(f"s_and_b32 {sr(S_T1)}, {sr(S_LW)}, 1")
    e(f"s_lshl_b32 {sr(S_T1)}, {sr(S_T1)}, 2")
    e(f"v_add_u32 {vr(t2)}, {sr(S_T1)}, {vr(t2)}")
    e(f"v_xor_b32 {vr(t1)}, {vr(t1)}, {vr(t2)}")
    e(f"v_lshlrev_b32 {vr(t1)}, 4, {vr(t1)}")
    e(f"v_lshl_add_u32 {vr(t1)}, {vr(t0)}, 10, {vr(t1)}")
    e(f"s_lshl_b32 {sr(S_T1)}, {sr(S_J)}, 7")
    e(f"v_add_u32 {vr(V_TO)}, {sr(S_T1)}, {vr(t1)}")
    wd_voffset(V_DO2)
    e("s_waitcnt lgkmcnt(0)")
    srd(SRD_Q, 0, 2 << 20)
    srd_w_select(S_LW)
    stamp(0)
    def dma_stage(s): dma_stage_g(s, V_XO, V_WO, S_M0X, S_M0W, S_XSO, S_WSO)
    SX = 24; V_NL = 33; V_SL = 116; V_SLA = 34; V_FL = 114; V_DUM = 32
    e(f"s_lshl_b32 {sr(S_T0)}, {sr(S_ROW)}, 10")
    A.vmem(f"buffer_load_dwordx4 {vr(SX,4)}, {vr(V_L16)}, {sr(SRD_Q,4)}, {sr(S_T0)} offen", "SX")
    A.vmem(f"buffer_load_dwordx4 {vr(SX+4,4)}, {vr(V_L16)}, {sr(SRD_Q,4)}, {sr(S_T0)} offen offset:1024", "SX")
    srd(SRD_DBG, 11, 256)
    lnn = A.newlabel("NN")
    e(f"s_cmp_lg_u32 {sr(S_WG)}, 0")
    e(f"s_cbranch_scc1 {lnn}")
    e(f"s_cmp_lg_u32 {sr(S_WAVE)}, 4")
    e(f"s_cbranch_scc1 {lnn}")
    e(f"s_memrealtime {sr(S_T0,2)}")
    e("s_waitcnt lgkmcnt(0)")
    e(f"s_or_b32 {sr(S_T0)}, {sr(S_T0)}, 1")
    e(f"v_mov_b32 {vr(t0)}, {sr(S_T0)}")
    e(f"buffer_store_dword {vr(t0)}, off, {sr(SRD_DBG,4)}, 0 sc0 sc1")
    A.label(lnn)
    if opts.get("tfirst", 1): e("s_barrier")
    dma_stage(0)
    if not opts.get("tfirst", 1): e("s_barrier")
    srd(SRD_K, 1, 2 << 20); srd(SRD_V, 2, 2 << 20)
    srd(SRD_WS, 12, 0x10000000); srd(SRD_WD, 9, WBYTES)
    def tiles():
        e(f"s_lshl_b32 {sr(S_T0)}, {sr(S_I2)}, 16")
        for srd_, base in ((SRD_K, L_KT), (SRD_V, L_VT)):
            for gi in range(2):
                e(f"s_add_u32 {sr(S_T1)}, {sr(S_LW)}, {4*gi}")
                e(f"s_lshl_b32 {sr(S_T2)}, {sr(S_T1)}, 13")
                e(f"s_add_u32 {sr(S_T2)}, {sr(S_T2)}, {sr(S_T0)}")
                e(f"s_lshl_b32 {sr(S_T1)}, {sr(S_T1)}, 10")
                e(f"s_add_u32 m0, {sr(S_T1)}, {base}")
                e("s_nop 0")
                A.vmem(f"buffer_load_dwordx4 {vr(V_TO)}, {sr(srd_,4)}, {sr(S_T2)} offen lds", "P")
    S_CIDX = S_C1
    HK = [88, 96]; HPB = 112
    def hk_loads():
        e(f"s_lshl_b32 {sr(S_T0)}, {sr(S_WG)}, 1")
        e(f"s_add_u32 {sr(S_T0)}, {sr(S_T0)}, {sr(S_CIDX)}")
        e(f"s_lshl_b32 {sr(S_T0)}, {sr(S_T0)}, 12")
        e(f"s_add_u32 {sr(SRD_SK)}, {sr(P+8)}, {sr(S_T0)}")
        e(f"s_addc_u32 {sr(SRD_SK+1)}, {sr(P+9)}, 0")
        e(f"s_mov_b32 {sr(SRD_SK+2)}, 4096")
        e(f"s_mov_b32 {sr(SRD_SK+3)}, 0x20000")
        e(f"s_and_b32 {sr(S_T1)}, {sr(S_LW)}, 1")
        e(f"s_lshl_b32 {sr(S_T1)}, {sr(S_T1)}, 11")
        for y in range(2):
            e(f"s_add_u32 {sr(S_T2)}, {sr(S_T1)}, {1024*y}")
            A.vmem(f"buffer_load_dwordx4 {vr(HK[y],4)}, {vr(V_L16)}, {sr(SRD_SK,4)}, {sr(S_T2)} offen", "HK")
            A.vmem(f"buffer_load_dwordx2 {vr(HK[y]+4,2)}, {vr(V_L16)}, {sr(SRD_SK,4)}, {sr(S_T2)} offen offset:16", "HK")
        e(f"v_cmp_eq_u32 vcc, 1, {L}")
        e(f"v_mov_b32 {vr(t5)}, 0x10000")
        e("s_nop 0")
        e(f"v_cndmask_b32 {vr(t5)}, {vr(t5)}, 0, vcc")
        A.vmem(f"buffer_load_dwordx2 {vr(HPB,2)}, {vr(t5)}, {sr(SRD_SK,4)}, 0 offen", "HK")
    def wd_touch():
        e(f"s_mul_i32 {sr(S_T0)}, {sr(S_WG)}, {43*128}")
        e(f"s_mul_i32 {sr(S_T1)}, {sr(S_LW)}, 11")
        e(f"v_add_u32 {vr(t4)}, {sr(S_T1)}, {L}")
        e(f"v_cmp_gt_u32 vcc, 11, {L}")
        e(f"v_lshlrev_b32 {vr(t4)}, 7, {vr(t4)}")
        e(f"v_add_u32 {vr(t4)}, {sr(S_T0)}, {vr(t4)}")
        e(f"v_mov_b32 {vr(t5)}, {BAD}")
        e(f"v_cndmask_b32 {vr(t4)}, {vr(t5)}, {vr(t4)}, vcc")
        A.vmem(f"buffer_load_dword {vr(V_DUM)}, {vr(t4)}, {sr(SRD_WD,4)}, 0 offen", "T2")
    e(f"s_lshr_b32 {sr(S_CIDX)}, {sr(S_LW)}, 1")
    PPOS = opts.get("ppos", -1)
    if PPOS < 0: tiles()
    A.vmem(f"buffer_load_dword {vr(V_NL)}, off, {sr(SRD_DBG,4)}, 0 sc1", "NL")
    e(f"v_lshlrev_b32 {vr(t0)}, 2, {L}")
    e(f"v_add_u32 {vr(t0)}, {L_FLAG}, {vr(t0)}")
    e(f"v_mov_b32 {vr(t1)}, 0")
    e(f"s_mov_b64 {sr(S_EX,2)}, exec")
    e("s_mov_b64 exec, 0xffffffff")
    e(f"ds_write_b32 {vr(t0)}, {vr(t1)}")
    e(f"s_mov_b64 exec, {sr(S_EX,2)}")
    A.wait_vm("SX")
    XU = 120; SA = 136
    for rr in range(2):
        for k in range(4):
            e(f"v_lshlrev_b32 {vr(XU+8*rr+2*k)}, 16, {vr(SX+4*rr+k)}")
            e(f"v_and_b32 {vr(XU+8*rr+2*k+1)}, 0xffff0000, {vr(SX+4*rr+k)}")
    def wave_reduce(regs):
        for sh in ("row_shr:1", "row_shr:2", "row_shr:4", "row_shr:8"):
            for r in regs: e(f"v_add_f32_dpp {vr(r)}, {vr(r)}, {vr(r)} {sh} row_mask:0xf bank_mask:0xf bound_ctrl:0")
            e("s_nop 0")
        for r in regs: e(f"v_add_f32_dpp {vr(r)}, {vr(r)}, {vr(r)} row_bcast:15 row_mask:0xa bank_mask:0xf")
        e("s_nop 0")
        for r in regs: e(f"v_add_f32_dpp {vr(r)}, {vr(r)}, {vr(r)} row_bcast:31 row_mask:0xc bank_mask:0xf")
        e("s_nop 1")
    for k in range(1, 8):
        for rr in range(2):
            b = XU + 8*rr
            if k == 1: e(f"v_add_f32 {vr(SA+rr)}, {vr(b)}, {vr(b+1)}")
            else: e(f"v_add_f32 {vr(SA+rr)}, {vr(SA+rr)}, {vr(b+k)}")
    e("s_nop 1")
    wave_reduce([SA, SA+1])
    e(f"v_readlane_b32 {sr(S_T0)}, {vr(SA)}, 63")
    e(f"v_readlane_b32 {sr(S_T1)}, {vr(SA+1)}, 63")
    e(f"v_mov_b32 {vr(SA+2)}, 0x3b000000")
    e("s_nop 0")
    e(f"v_mul_f32 {vr(SA+4)}, {sr(S_T0)}, {vr(SA+2)}")
    e(f"v_mul_f32 {vr(SA+5)}, {sr(S_T1)}, {vr(SA+2)}")
    for k in range(8):
        for rr in range(2): e(f"v_sub_f32 {vr(XU+8*rr+k)}, {vr(XU+8*rr+k)}, {vr(SA+4+rr)}")
    for k in range(8):
        for rr in range(2):
            b = XU + 8*rr
            if k == 0: e(f"v_mul_f32 {vr(SA+rr)}, {vr(b)}, {vr(b)}")
            else: e(f"v_fma_f32 {vr(SA+rr)}, {vr(b+k)}, {vr(b+k)}, {vr(SA+rr)}")
    e("s_nop 1")
    wave_reduce([SA, SA+1])
    e(f"v_readlane_b32 {sr(S_T0)}, {vr(SA)}, 63")
    e(f"v_readlane_b32 {sr(S_T1)}, {vr(SA+1)}, 63")
    e(f"v_cmp_eq_u32 vcc, 1, {L}")
    e("s_nop 0")
    e(f"v_mov_b32 {vr(SA)}, {sr(S_T0)}")
    e(f"v_mov_b32 {vr(SA+1)}, {sr(S_T1)}")
    e(f"v_cndmask_b32 {vr(SA)}, {vr(SA)}, {vr(SA+1)}, vcc")
    e(f"v_cndmask_b32 {vr(SA+4)}, {vr(SA+4)}, {vr(SA+5)}, vcc")
    e(f"v_mul_f32 {vr(SA)}, {vr(SA)}, {vr(SA+2)}")
    e(f"v_cvt_pk_bf16_f32 {vr(SA)}, {vr(SA)}, {vr(SA)}")
    e(f"v_lshlrev_b32 {vr(SA)}, 16, {vr(SA)}")
    e(f"v_add_f32 {vr(SA)}, 0x3727c5ac, {vr(SA)}")
    e(f"v_cvt_pk_bf16_f32 {vr(SA)}, {vr(SA)}, {vr(SA)}")
    e(f"v_lshlrev_b32 {vr(SA)}, 16, {vr(SA)}")
    e(f"v_sqrt_f32 {vr(SA)}, {vr(SA)}")
    e("s_nop 0")
    V_STP = 110
    e(f"v_cvt_pk_bf16_f32 {vr(V_STP)}, {vr(SA+4)}, {vr(SA)}")
    A.wait_vm("S0")
    e("s_waitcnt lgkmcnt(0)")
    e("s_barrier")
    stamp(1)
    def it_end(it, stages, waits=()):
        if opts.get("barstamp"): stamp(24 + it)
        if waits: A.wait_vm(*waits)
        e("s_waitcnt lgkmcnt(0)")
        if opts.get("barstamp"): stamp(32 + it)
        e("s_barrier")
        if opts.get("barstamp"): stamp(40 + it)
        for st_ in stages: st_()
        if opts.get("barstamp"): stamp(48 + it)
    def job_nonce_sts():
        lok = A.newlabel("NOK"); lre = A.newlabel("NRE")
        e(f"s_mov_b32 {sr(S_T3)}, 0x40000")
        A.label(lre)
        e(f"v_readfirstlane_b32 {sr(S_NONCE)}, {vr(V_NL)}")
        e("s_nop 3")
        e(f"s_cmp_lg_u32 {sr(S_NONCE)}, 0")
        e(f"s_cbranch_scc1 {lok}")
        e(f"s_sub_u32 {sr(S_T3)}, {sr(S_T3)}, 1")
        e(f"s_cmp_eq_u32 {sr(S_T3)}, 0")
        e(f"s_cbranch_scc1 {lok}")
        e("s_sleep 2")
        e(f"buffer_load_dword {vr(V_NL)}, off, {sr(SRD_DBG,4)}, 0 sc1")
        e("s_waitcnt vmcnt(0)")
        e(f"s_branch {lre}")
        A.label(lok)
        if TS:
            e(f"s_sub_u32 {sr(S_T0)}, 0x40064, {sr(S_T3)}")
            e("s_nop 0")
            e(f"v_writelane_b32 {vr(V_TS)}, {sr(S_T0)}, 42")
        e(f"v_mov_b32 {vr(t0)}, {L_FLAG+32}")
        e(f"v_mov_b32 {vr(V_STP+1)}, {sr(S_NONCE)}")
        e(f"ds_write_b32 {vr(t0)}, {vr(V_STP+1)}")
        e(f"s_lshl_b32 {sr(S_T0)}, {sr(S_ROW)}, 3")
        e(f"s_add_u32 {sr(S_T0)}, {sr(S_T0)}, {WS_ST}")
        e(f"v_lshlrev_b32 {vr(t0)}, 3, {L}")
        e(f"s_mov_b64 {sr(S_EX,2)}, exec")
        e("s_mov_b64 exec, 3")
        A.vmem(f"buffer_store_dwordx2 {vr(V_STP,2)}, {vr(t0)}, {sr(SRD_WS,4)}, {sr(S_T0)} offen sc0 sc1", "STS")
        e(f"s_mov_b64 exec, {sr(S_EX,2)}")
    T = 128
    def job_tr_store():
        e(f"v_and_b32 {vr(t0)}, 3, {L}")
        e(f"v_bfe_u32 {vr(t1)}, {L}, 4, 1")
        e(f"v_lshl_add_u32 {vr(t0)}, {vr(t1)}, 2, {vr(t0)}")
        e(f"v_lshlrev_b32 {vr(t0)}, 3, {vr(t0)}")
        e(f"v_bfe_u32 {vr(t1)}, {L}, 2, 2")
        e(f"v_sub_u32 {vr(t0)}, {vr(t0)}, {vr(t1)}")
        e(f"v_add_u32 {vr(t0)}, 7, {vr(t0)}")
        e(f"v_lshrrev_b32 {vr(t3)}, 5, {L}")
        e(f"v_lshlrev_b32 {vr(t3)}, 3, {vr(t3)}")
        e(f"s_lshl_b32 {sr(S_T0)}, {sr(S_LW)}, 1")
        for h in range(2):
            if h == 1: e(f"v_subrev_u32 {vr(t0)}, 4, {vr(t0)}")
            e(f"v_bfe_u32 {vr(t1)}, {vr(t0)}, 1, 3")
            e(f"v_xor_b32 {vr(t1)}, {sr(S_T0)}, {vr(t1)}")
            e(f"v_lshlrev_b32 {vr(t1)}, 4, {vr(t1)}")
            e(f"v_lshl_add_u32 {vr(t1)}, {vr(t0)}, 7, {vr(t1)}")
            e(f"v_add_u32 {vr(t1)}, {vr(t1)}, {vr(t3)}")
            e(f"v_add_u32 {vr(t1)}, {L_KT}, {vr(t1)}")
            e(f"v_xor_b32 {vr(t2)}, 16, {vr(t1)}")
            for x, a in ((0, t1), (1, t2)):
                e(f"ds_read_b64_tr_b16 {vr(T+4*x+2*h,2)}, {vr(a)}")
                e(f"ds_read_b64_tr_b16 {vr(T+8+4*x+2*h,2)}, {vr(a)} offset:{L_VT-L_KT}")
        e(f"v_and_b32 {vr(t1)}, 3, {L}")
        e(f"v_lshrrev_b32 {vr(t2)}, 5, {L}")
        e(f"v_lshl_add_u32 {vr(t1)}, {vr(t2)}, 2, {vr(t1)}")
        e(f"v_lshlrev_b32 {vr(t1)}, 12, {vr(t1)}")
        e(f"v_bfe_u32 {vr(t2)}, {L}, 2, 3")
        e(f"v_lshlrev_b32 {vr(t2)}, 4, {vr(t2)}")
        e(f"v_sub_u32 {vr(t1)}, {vr(t1)}, {vr(t2)}")
        e(f"v_add_u32 {vr(t1)}, 4080, {vr(t1)}")
        e(f"s_lshl_b32 {sr(S_T0)}, {sr(S_J)}, 6")
        e(f"s_lshl_b32 {sr(S_T1)}, {sr(S_LW)}, 4")
        e(f"s_add_u32 {sr(S_T0)}, {sr(S_T0)}, {sr(S_T1)}")
        e(f"s_lshl_b32 {sr(S_T0)}, {sr(S_T0)}, 12")
        e(f"s_lshl_b32 {sr(S_T1)}, {sr(S_I2)}, 7")
        e(f"s_sub_u32 {sr(S_T0)}, {sr(S_T0)}, {sr(S_T1)}")
        e(f"v_add_u32 {vr(t1)}, {sr(S_T0)}, {vr(t1)}")
        e(f"v_add_u32 {vr(t2)}, {8*4096}, {vr(t1)}")
        e(f"s_mov_b32 {sr(S_T0)}, {WS_VT}")
        e("s_waitcnt lgkmcnt(0)")
        A.vmem(f"buffer_store_dwordx4 {vr(T,4)}, {vr(t1)}, {sr(SRD_WS,4)}, 0 offen sc0 sc1", "KVS")
        A.vmem(f"buffer_store_dwordx4 {vr(T+4,4)}, {vr(t2)}, {sr(SRD_WS,4)}, 0 offen sc0 sc1", "KVS")
        A.vmem(f"buffer_store_dwordx4 {vr(T+8,4)}, {vr(t1)}, {sr(SRD_WS,4)}, {sr(S_T0)} offen sc0 sc1", "KVS")
        A.vmem(f"buffer_store_dwordx4 {vr(T+12,4)}, {vr(t2)}, {sr(SRD_WS,4)}, {sr(S_T0)} offen sc0 sc1", "KVS")
    S_STO = S_X3
    def job_sl():
        e(f"s_lshl_b32 {sr(S_STO)}, {sr(S_RB)}, 7")
        e(f"s_lshl_b32 {sr(S_T1)}, {sr(S_LW)}, 5")
        e(f"s_add_u32 {sr(S_STO)}, {sr(S_STO)}, {sr(S_T1)}")
        e(f"s_lshl_b32 {sr(S_STO)}, {sr(S_STO)}, 3")
        e(f"s_add_u32 {sr(S_STO)}, {sr(S_STO)}, {WS_ST}")
        e(f"v_and_b32 {vr(V_SLA)}, 31, {L}")
        e(f"v_lshlrev_b32 {vr(V_SLA)}, 3, {vr(V_SLA)}")
        A.vmem(f"buffer_load_dwordx2 {vr(V_SL,2)}, {vr(V_SLA)}, {sr(SRD_WS,4)}, {sr(S_STO)} offen sc1", "SL")
    def job_kvf():
        A.wait_vm("KVS")
        e(f"s_lshl_b32 {sr(S_T0)}, {sr(S_J)}, 9")
        e(f"s_lshl_b32 {sr(S_T1)}, {sr(S_I2)}, 4")
        e(f"s_lshl_b32 {sr(S_T2)}, {sr(S_LW)}, 2")
        e(f"s_add_u32 {sr(S_T0)}, {sr(S_T0)}, {sr(S_T1)}")
        e(f"s_add_u32 {sr(S_T0)}, {sr(S_T0)}, {sr(S_T2)}")
        e(f"s_add_u32 {sr(S_T0)}, {sr(S_T0)}, {WS_FL+FL_KV}")
        flag_set(S_T0, t0)
    S_C, S_KVO, S_W, S_OKF = 62, 63, 64, 70
    def job_conv_scalars():
        e(f"s_lshl_b32 {sr(S_C)}, {sr(S_WG)}, 1")
        e(f"s_add_u32 {sr(S_C)}, {sr(S_C)}, {sr(S_CIDX)}")
        e(f"s_lshr_b32 {sr(S_KVO)}, {sr(S_C)}, 6")
        e(f"s_lshl_b32 {sr(S_KVO)}, {sr(S_KVO)}, 9")
        e(f"s_add_u32 {sr(S_KVO)}, {sr(S_KVO)}, {WS_FL+FL_KV}")
        e(f"s_lshl_b32 {sr(S_T0)}, {sr(S_C)}, 3")
        e(f"s_load_dwordx2 {sr(S_W,2)}, {sr(P+6,2)}, {sr(S_T0)}")
        e("s_waitcnt lgkmcnt(0)")
        e(f"s_and_b32 {sr(S_W+3)}, {sr(S_W+1)}, 0xffff0000")
        e(f"s_lshl_b32 {sr(S_W+2)}, {sr(S_W+1)}, 16")
        e(f"s_and_b32 {sr(S_W+1)}, {sr(S_W)}, 0xffff0000")
        e(f"s_lshl_b32 {sr(S_W)}, {sr(S_W)}, 16")
    def job_statchk():
        A.wait_vm("SL")
        lsr = A.newlabel("SR"); lso = A.newlabel("SO")
        e(f"s_mov_b32 {sr(S_T3)}, 0x40000")
        A.label(lsr)
        e(f"v_cmp_eq_u32 vcc, {sr(S_NONCE)}, {vr(V_SL+1)}")
        e("s_nop 1")
        e("s_cmp_eq_u64 vcc, -1")
        e(f"s_cbranch_scc1 {lso}")
        e(f"s_sub_u32 {sr(S_T3)}, {sr(S_T3)}, 1")
        e(f"s_cmp_eq_u32 {sr(S_T3)}, 0")
        e(f"s_cbranch_scc1 {lso}")
        e("s_sleep 2")
        e(f"buffer_load_dwordx2 {vr(V_SL,2)}, {vr(V_SLA)}, {sr(SRD_WS,4)}, {sr(S_STO)} offen sc1")
        e("s_waitcnt vmcnt(0)")
        e(f"s_branch {lsr}")
        A.label(lso)
        if TS:
            e(f"s_sub_u32 {sr(S_T0)}, 0x40064, {sr(S_T3)}")
            e("s_nop 0")
            e(f"v_writelane_b32 {vr(V_TS)}, {sr(S_T0)}, 41")
        e(f"v_and_b32 {vr(t1)}, 0xffff0000, {vr(V_SL)}")
        e(f"v_lshlrev_b32 {vr(V_SL)}, 16, {vr(V_SL)}")
        e(f"v_rcp_f32 {vr(V_SL+1)}, {vr(t1)}")
        e(f"s_lshl_b32 {sr(S_T0)}, {sr(S_LW)}, 8")
        e(f"s_add_u32 {sr(S_T0)}, {sr(S_T0)}, {L_STAT}")
        e(f"v_add_u32 {vr(t0)}, {sr(S_T0)}, {vr(V_SLA)}")
        e("s_nop 0")
        e(f"ds_write_b64 {vr(t0)}, {vr(V_SL,2)}")
    KR, VR = 128, 160
    def job_row_srds():
        e(f"s_lshl_b32 {sr(S_T0)}, {sr(S_C)}, 12")
        e(f"s_add_u32 {sr(SRD_K)}, {sr(P+24)}, {sr(S_T0)}")
        e(f"s_addc_u32 {sr(SRD_K+1)}, {sr(P+25)}, 0")
        e(f"s_mov_b32 {sr(SRD_K+2)}, 4096")
        e(f"s_mov_b32 {sr(SRD_K+3)}, 0x20000")
        e(f"s_add_u32 {sr(S_T0)}, {sr(S_T0)}, {WS_VT}")
        e(f"s_add_u32 {sr(SRD_V)}, {sr(P+24)}, {sr(S_T0)}")
        e(f"s_addc_u32 {sr(SRD_V+1)}, {sr(P+25)}, 0")
        e(f"s_mov_b32 {sr(SRD_V+2)}, 4096")
        e(f"s_mov_b32 {sr(SRD_V+3)}, 0x20000")
    def uk_loads(track):
        for qq in range(2):
            e(f"s_and_b32 {sr(S_T2)}, {sr(S_LW)}, 1")
            e(f"s_lshl_b32 {sr(S_T2)}, {sr(S_T2)}, 11")
            e(f"s_add_u32 {sr(S_T2)}, {sr(S_T2)}, {1024*qq}")
            if track:
                e(f"s_cmp_eq_u32 {sr(S_OKF)}, 1")
                e(f"s_cselect_b32 {sr(S_T2)}, {sr(S_T2)}, 0x40000000")
            for txt in (f"buffer_load_dwordx4 {vr(KR+8*qq,4)}, {vr(V_L16)}, {sr(SRD_K,4)}, {sr(S_T2)} offen{USC}",
                        f"buffer_load_dwordx2 {vr(KR+8*qq+4,2)}, {vr(V_L16)}, {sr(SRD_K,4)}, {sr(S_T2)} offen offset:16{USC}",
                        f"buffer_load_dwordx4 {vr(VR+4*qq,4)}, {vr(V_L16)}, {sr(SRD_V,4)}, {sr(S_T2)} offen{USC}"):
                if track: A.vmem(txt, "UK")
                else: e(txt)
    def job_pkv_check():
        A.wait_vm("PKV")
        flag_check_scc(V_FL, 2)
        e(f"s_cselect_b32 {sr(S_OKF)}, 1, 0")
        if TS:
            e(f"s_add_u32 {sr(S_T0)}, {sr(S_OKF)}, 100")
            e("s_nop 0")
            e(f"v_writelane_b32 {vr(V_TS)}, {sr(S_T0)}, 40")
        uk_loads(True)
    E = 36
    def kv_chunk(q):
        D = KR + 8*q; V = VR + 4*q
        for i in range(11):
            src = D + (i >> 1)
            e(f"v_and_b32 {vr(E+i)}, 0xffff0000, {vr(src)}" if i & 1 else f"v_lshlrev_b32 {vr(E+i)}, 16, {vr(src)}")
        for i in range(8):
            src = V + (i >> 1)
            e(f"v_and_b32 {vr(E+11+i)}, 0xffff0000, {vr(src)}" if i & 1 else f"v_lshlrev_b32 {vr(E+11+i)}, 16, {vr(src)}")
        for i in range(8): e(f"v_mul_f32 {vr(56+i)}, {sr(S_W+3)}, {vr(E+i+3)}")
        for i in range(8): e(f"v_fma_f32 {vr(56+i)}, {vr(E+i+2)}, {sr(S_W+2)}, {vr(56+i)}")
        for i in range(8): e(f"v_fma_f32 {vr(56+i)}, {vr(E+i+1)}, {sr(S_W+1)}, {vr(56+i)}")
        for i in range(8): e(f"v_fma_f32 {vr(56+i)}, {vr(E+i)}, {sr(S_W)}, {vr(56+i)}")
        for i in range(8): e(f"v_mul_f32 {vr(56+i)}, {vr(56+i)}, {vr(E+11+i)}")
        for k in range(4): e(f"v_cvt_pk_bf16_f32 {vr(D+k)}, {vr(56+2*k)}, {vr(56+2*k+1)}")
    S_DSO2, S_RA, S_RBB, S_RC = S_G4, S_X0, S_X1, S_X2
    S_KU2, S_KUN2, S_ROT2, S_OOB2 = 61, S_C0, S_G5, 60
    def job_wd_setup():
        ku_start(S_KU2, S_LW)
        e(f"s_cmp_lt_u32 {sr(S_LW)}, 2")
        e(f"s_cselect_b32 {sr(S_KUN2)}, 22, 21")
        e(f"s_mul_i32 {sr(S_ROT2)}, {sr(S_J)}, {opts.get('rot', 3)}")
        e(f"s_mov_b32 {sr(S_OOB2)}, 0x20000000")
        ring_bases(S_LW, S_RA, S_RBB, S_RC)
    def wd_dma(n):
        bi, off = ring_off(n); sb = (S_RA, S_RBB, S_RC)[bi]
        wd_soff(n, S_DSO2, S_ROT2, S_KUN2, S_KU2, S_OOB2)
        for a in range(2):
            e(f"s_add_u32 m0, {sr(sb)}, {off + 1024*a}")
            if a == 1: e(f"s_add_u32 {sr(S_DSO2)}, {sr(S_DSO2)}, 8192")
            else: e("s_nop 0")
            A.vmem(f"buffer_load_dwordx4 {vr(V_DO2)}, {sr(SRD_WD,4)}, {sr(S_DSO2)} offen lds", "WDP")
    def hk(w, addr, extra):
        O1, O2, O3 = 116, 120, 124
        for j in range(4):
            e(f"v_alignbit_b32 {vr(O1+j)}, {vr(w+j+1)}, {vr(w+j)}, 16")
            e(f"v_mov_b32 {vr(O2+j)}, {vr(w+j+1)}")
            e(f"v_alignbit_b32 {vr(O3+j)}, {vr(w+j+2)}, {vr(w+j+1)}, 16")
        e(f"ds_write_b128 {vr(addr)}, {vr(w,4)} offset:{extra}")
        e(f"ds_write_b128 {vr(addr)}, {vr(O1,4)} offset:{extra+HCOPY}")
        e(f"ds_write_b128 {vr(addr)}, {vr(O2,4)} offset:{extra+2*HCOPY}")
        e(f"ds_write_b128 {vr(addr)}, {vr(O3,4)} offset:{extra+3*HCOPY}")
        e("s_nop 1")
    S_RH, S_UB = 71, 3
    V_PF = 30
    def job_hankel():
        e(f"s_and_b32 {sr(S_RH)}, {sr(S_LW)}, 1")
        e(f"s_mul_i32 {sr(S_T0)}, {sr(S_CIDX)}, {HCH}")
        e(f"s_add_u32 {sr(S_T0)}, {sr(S_T0)}, {L_HANK}")
        e(f"s_lshl_b32 {sr(S_T1)}, {sr(S_RH)}, 11")
        e(f"s_add_u32 {sr(S_T1)}, {sr(S_T1)}, {sr(S_T0)}")
        e(f"v_add_u32 {vr(27)}, {sr(S_T0)}, {vr(V_L16)}")
        e(f"v_add_u32 {vr(28)}, {sr(S_T1)}, {vr(V_L16)}")
        for y in range(2): hk(HK[y], 28, 32 + 1024*y)
        lpb = A.newlabel("PB")
        e(f"s_cmp_lg_u32 {sr(S_RH)}, 0")
        e(f"s_cbranch_scc1 {lpb}")
        e(f"s_mov_b64 {sr(S_EX,2)}, exec")
        e("s_mov_b64 exec, 3")
        w = HK[0]
        for r in range(4): e(f"v_mov_b32 {vr(w+r)}, 0")
        e(f"v_mov_b32 {vr(w+4)}, {vr(HPB)}"); e(f"v_mov_b32 {vr(w+5)}, {vr(HPB+1)}")
        hk(w, 27, 0)
        e(f"s_mov_b64 exec, {sr(S_EX,2)}")
        A.label(lpb)
    V_DD = 32; V_CA = 35; V_CB = 29
    CACC = 192; CSET = [64, 128]
    def conv_addr():
        e(f"s_and_b32 {sr(S_RH)}, {sr(S_LW)}, 1")
        e(f"s_mul_i32 {sr(S_UB)}, {sr(S_CIDX)}, {2*UBSZ}")
        e(f"s_add_u32 {sr(S_UB)}, {sr(S_UB)}, {L_UB}")
        e(f"v_and_b32 {vr(t0)}, 15, {L}")
        e(f"v_lshrrev_b32 {vr(t1)}, 4, {L}")
        e(f"v_lshl_add_u32 {vr(t2)}, {vr(t1)}, 3, {vr(t0)}")
        e(f"v_add_u32 {vr(t2)}, 1, {vr(t2)}")
        e(f"v_and_b32 {vr(t3)}, 3, {vr(t2)}")
        e(f"v_sub_u32 {vr(t2)}, {vr(t2)}, {vr(t3)}")
        e(f"v_lshlrev_b32 {vr(t2)}, 1, {vr(t2)}")
        e(f"v_mul_u32_u24 {vr(t3)}, {HCOPY}, {vr(t3)}")
        e(f"v_add_u32 {vr(t2)}, {vr(t2)}, {vr(t3)}")
        e(f"s_mul_i32 {sr(S_T0)}, {sr(S_CIDX)}, {HCH}")
        e(f"s_lshl_b32 {sr(S_T1)}, {sr(S_RH)}, 8")
        e(f"s_add_u32 {sr(S_T0)}, {sr(S_T0)}, {sr(S_T1)}")
        e(f"s_add_u32 {sr(S_T0)}, {sr(S_T0)}, {L_HANK}")
        e(f"v_add_u32 {vr(V_CA)}, {sr(S_T0)}, {vr(t2)}")
        e(f"v_lshlrev_b32 {vr(t2)}, 1, {vr(t0)}")
        e(f"v_sub_u32 {vr(t2)}, {vr(t1)}, {vr(t2)}")
        e(f"v_add_u32 {vr(t2)}, 254, {vr(t2)}")
        e(f"v_lshlrev_b32 {vr(t2)}, 4, {vr(t2)}")
        e(f"s_add_u32 {sr(S_T0)}, {sr(S_UB)}, {sr(S_T1)}")
        e(f"s_sub_u32 {sr(S_T0)}, {sr(S_T0)}, 3584")
        e(f"v_add_u32 {vr(V_CB)}, {sr(S_T0)}, {vr(t2)}")
        for r in range(32): e(f"v_mov_b32 {vr(CACC+r)}, 0")
    def xb_addr(dst, lw_sgpr_is_partner):
        e(f"s_mul_i32 {sr(S_T4)}, {sr(S_CIDX)}, {2*UBSZ}")
        e(f"s_add_u32 {sr(S_T4)}, {sr(S_T4)}, {L_UB + UBSZ}")
        e(f"s_mul_i32 {sr(S_T5)}, {sr(S_CIDX)}, {UBSZ}")
        e(f"s_add_u32 {sr(S_T5)}, {sr(S_T5)}, {L_YT}")
        e(f"s_cmp_eq_u32 {sr(S_RH)}, {1 if lw_sgpr_is_partner else 0}")
        e(f"s_cselect_b32 {sr(dst)}, {sr(S_T4)}, {sr(S_T5)}")
    def pt(it): return [tiles] if PPOS == it else []
    dma_stage(2)
    it_end(0, [lambda: dma_stage(3)] + pt(0), waits=())
    if opts.get("nearly", 1):
        A.wait_vm("NL"); job_nonce_sts()
    it_end(1, [lambda: dma_stage(4)] + pt(1), waits=("S2", "NL"))
    if not opts.get("nearly", 1): job_nonce_sts()
    TRI = {-1: 2, 0: 4, 1: 5}[PPOS]
    for it in range(2, 8):
        if it == TRI: job_tr_store()
        if it == opts.get('slit', 3): job_sl()
        if it == TRI + opts.get('kvfd', 2): job_kvf()
        if it == 4: job_conv_scalars(); job_row_srds() if False else None
        if it == 5: job_wd_setup()
        if it == 6: job_statchk()
        if it == opts.get("cait", 6): conv_addr()
        if it == TRI + 3 and it <= 7:
            job_row_srds(); flag_issue(V_FL, 2, S_KVO, "PKV")
        if it == TRI + 4 and it <= 7: job_pkv_check()
        if it == TRI + 5 and it <= 7:
            lk7 = A.newlabel("K7")
            e(f"s_cmp_eq_u32 {sr(S_OKF)}, 1")
            e(f"s_cbranch_scc0 {lk7}")
            A.wait_vm("UK")
            kv_chunk(0); kv_chunk(1)
            A.label(lk7)
        if it == opts.get("hankit", 7): job_hankel()
        if it == 7: break
        st = []
        if it + 3 <= 7: st.append(lambda it=it: dma_stage(it + 3))
        if it == opts.get('hkit', 2): st.append(hk_loads)
        if it == opts.get('wtit', 3): st.append(wd_touch)
        if it == 5: st.append(lambda: [wd_dma(n) for n in range(0, 5)])
        if it == 6: st.append(lambda: [wd_dma(n) for n in range(5, 10)])
        w_ = [f"S{it+1}"]
        if it + 1 == TRI: w_.append("P")
        it_end(it, st, waits=tuple(w_))
    done_chunks01 = (TRI + 5 <= 7); done_check = (TRI + 4 <= 7); done_pkv = (TRI + 3 <= 7)
    e("s_waitcnt lgkmcnt(0)")
    e("s_barrier")
    stamp(3)
    wd_dma(10)
    if not done_pkv:
        job_row_srds(); flag_issue(V_FL, 2, S_KVO, "PKV")
    srd(SRD_AUX, 5, 1024)
    e(f"s_lshl_b32 {sr(S_T0)}, {sr(S_C)}, 1")
    A.vmem(f"buffer_load_ushort {vr(V_DD)}, off, {sr(SRD_AUX,4)}, {sr(S_T0)}", "DD")
    if not done_check: job_pkv_check()
    if opts.get("hankit", 7) > 7: job_hankel()
    e("s_waitcnt lgkmcnt(0)")
    e(f"s_lshl_b32 {sr(S_T0)}, {sr(S_LW)}, 2")
    e(f"s_add_u32 {sr(S_T0)}, {sr(S_T0)}, {L_FLAG}")
    e(f"v_mov_b32 {vr(V_PF)}, {sr(S_T0)}")
    e(f"v_mov_b32 {vr(V_PF+1)}, 1")
    A.wait_vm("WDP")
    e(f"ds_write_b32 {vr(V_PF)}, {vr(V_PF+1)} offset:16")
    lko2 = A.newlabel("KO2"); lko3 = A.newlabel("KO3")
    e(f"s_cmp_eq_u32 {sr(S_OKF)}, 1")
    e(f"s_cbranch_scc1 {lko2}")
    flag_wait_blocking(V_FL, 2, S_KVO, sleep=4)
    uk_loads(False)
    e("s_waitcnt vmcnt(0)")
    if done_chunks01:
        kv_chunk(0); kv_chunk(1)
    A.label(lko2)
    A.wait_vm("UK", "DD")
    if not done_chunks01:
        kv_chunk(0); kv_chunk(1)
    e(f"s_lshl_b32 {sr(S_T0)}, {sr(S_RH)}, 11")
    e(f"s_add_u32 {sr(S_T0)}, {sr(S_T0)}, {sr(S_UB)}")
    e(f"v_add_u32 {vr(26)}, {sr(S_T0)}, {vr(V_L16)}")
    for qq in range(2): e(f"ds_write_b128 {vr(26)}, {vr(KR+8*qq,4)} offset:{1024*qq}")
    for r in range(4): e(f"v_mov_b32 {vr(52+r)}, 0")
    e(f"v_and_b32 {vr(t0)}, 31, {L}")
    e(f"v_lshlrev_b32 {vr(t0)}, 4, {vr(t0)}")
    e(f"v_add_u32 {vr(t0)}, {sr(S_UB)}, {vr(t0)}")
    e(f"ds_write_b128 {vr(t0)}, {vr(52,4)} offset:4096")
    e("s_waitcnt lgkmcnt(0)")
    e(f"ds_write_b32 {vr(V_PF)}, {vr(V_PF+1)} offset:96")
    e(f"v_lshlrev_b32 {vr(V_DD)}, 16, {vr(V_DD)}")
    e(f"s_lshl_b32 {sr(S_T0)}, {sr(S_LW)}, 2")
    e(f"s_xor_b32 {sr(S_T0)}, {sr(S_T0)}, 4")
    e(f"s_add_u32 {sr(S_T0)}, {sr(S_T0)}, {L_FLAG+96}")
    lds_spin(S_T0, t1, t0)
    e("s_waitcnt lgkmcnt(0)")
    if opts.get("gate", 1):
        e(f"s_lshl_b32 {sr(S_T0)}, {sr(S_LW)}, 2")
        e(f"s_add_u32 {sr(S_T0)}, {sr(S_T0)}, {L_FLAG+48}")
        lds_spin(S_T0, t1, t0)
    stamp(4)
    def creads(r, st):
        out = []; b = CSET[st]
        for sp in range(8):
            out.append(f"ds_read_b64 {vr(b+4*sp,2)}, {vr(V_CA)} offset:{512*sp+64*r}")
            out.append(f"ds_read_b64 {vr(b+4*sp+2,2)}, {vr(V_CA)} offset:{512*sp+64*r+8}")
            out.append(f"ds_read_b128 {vr(b+32+4*sp,4)}, {vr(V_CB)} offset:{512*(7-sp)+64*r}")
        return out
    def cmfmas(st):
        out = []; b = CSET[st]
        for t in range(8):
            for sp in range(t + 1):
                out.append(f"v_mfma_f32_16x16x32_bf16 {vr(CACC+4*t,4)}, {vr(b+4*sp,4)}, {vr(b+32+4*(t-sp),4)}, {vr(CACC+4*t,4)}")
        return out
    V_UU = 224
    e(f"v_and_b32 {vr(t0)}, 15, {L}")
    e(f"v_lshrrev_b32 {vr(t1)}, 4, {L}")
    e(f"v_lshlrev_b32 {vr(t2)}, 2, {vr(t0)}")
    e(f"v_add_u32 {vr(t2)}, {vr(t2)}, {vr(t1)}")
    e(f"v_lshlrev_b32 {vr(t2)}, 3, {vr(t2)}")
    e(f"s_lshl_b32 {sr(S_T1)}, {sr(S_RH)}, 11")
    e(f"s_sub_u32 {sr(S_T0)}, {sr(S_UB)}, {sr(S_T1)}")
    e(f"s_add_u32 {sr(S_T0)}, {sr(S_T0)}, {4088 - 1536}")
    e(f"v_sub_u32 {vr(t3)}, {sr(S_T0)}, {vr(t2)}")
    for tt in range(4): e(f"ds_read_b64 {vr(V_UU+2*tt,2)}, {vr(t3)} offset:{512*(3-tt)}")
    for x in creads(0, 0): e(x)
    for r in range(4):
        e("s_waitcnt lgkmcnt(0)")
        mf = cmfmas(r & 1)
        rd = creads(r + 1, (r + 1) & 1) if r < 3 else []
        for idx, m in enumerate(mf):
            e(m)
            if idx < len(rd): e(rd[idx])
    stamp(5)
    e("s_nop 7")
    xb_addr(S_T0, False)
    e(f"v_add_u32 {vr(t3)}, {sr(S_T0)}, {vr(V_L16)}")
    l1 = A.newlabel("PR"); l2 = A.newlabel("PR")
    e(f"s_cmp_eq_u32 {sr(S_RH)}, 0")
    e(f"s_cbranch_scc1 {l1}")
    for tt in range(4): e(f"ds_write_b128 {vr(t3)}, {vr(CACC+4*tt,4)} offset:{1024*tt}")
    e("s_nop 1")
    for r in range(16): e(f"v_mov_b32 {vr(CACC+r)}, {vr(CACC+16+r)}")
    e(f"s_branch {l2}")
    A.label(l1)
    for tt in range(4): e(f"ds_write_b128 {vr(t3)}, {vr(CACC+16+4*tt,4)} offset:{1024*tt}")
    A.label(l2)
    e("s_waitcnt lgkmcnt(0)")
    e(f"ds_write_b32 {vr(V_PF)}, {vr(V_PF+1)}")
    e(f"s_lshl_b32 {sr(S_T0)}, {sr(S_LW)}, 2")
    e(f"s_add_u32 {sr(S_T0)}, {sr(S_T0)}, {L_FLAG}")
    e(f"s_xor_b32 {sr(S_T0)}, {sr(S_T0)}, 4")
    lds_spin(S_T0, t1, t0)
    xb_addr(S_T0, True)
    e(f"v_add_u32 {vr(t3)}, {sr(S_T0)}, {vr(V_L16)}")
    V_PP = 80
    for tt in range(4): e(f"ds_read_b128 {vr(V_PP+4*tt,4)}, {vr(t3)} offset:{1024*tt}")
    e("s_waitcnt lgkmcnt(0)")
    e(f"ds_write_b32 {vr(V_PF)}, {vr(V_PF+1)} offset:112")
    for r in range(16): e(f"v_add_f32 {vr(CACC+r)}, {vr(CACC+r)}, {vr(V_PP+r)}")
    V_YP = 96
    for tt in range(4):
        y = CACC + 4*tt; u0, u1 = V_UU + 2*tt, V_UU + 2*tt + 1; U = 112 + 4*(tt & 1)
        e(f"v_and_b32 {vr(U+0)}, 0xffff0000, {vr(u1)}")
        e(f"v_lshlrev_b32 {vr(U+1)}, 16, {vr(u1)}")
        e(f"v_and_b32 {vr(U+2)}, 0xffff0000, {vr(u0)}")
        e(f"v_lshlrev_b32 {vr(U+3)}, 16, {vr(u0)}")
        for k in range(4): e(f"v_fma_f32 {vr(y+k)}, {vr(U+k)}, {vr(V_DD)}, {vr(y+k)}")
        e(f"v_cvt_pk_bf16_f32 {vr(V_YP+2*tt)}, {vr(y+0)}, {vr(y+1)}")
        e(f"v_cvt_pk_bf16_f32 {vr(V_YP+2*tt+1)}, {vr(y+2)}, {vr(y+3)}")
    e("s_nop 1")
    for p in range(2):
        e(f"v_permlane16_swap_b32 {vr(V_YP+4*p)}, {vr(V_YP+4*p+2)}")
        e(f"v_permlane16_swap_b32 {vr(V_YP+4*p+1)}, {vr(V_YP+4*p+3)}")
    e(f"v_and_b32 {vr(t0)}, 15, {L}")
    e(f"v_lshrrev_b32 {vr(t1)}, 4, {L}")
    e(f"v_and_b32 {vr(t2)}, 1, {vr(t1)}")
    e(f"v_lshlrev_b32 {vr(t2)}, 9, {vr(t2)}")
    e(f"v_and_b32 {vr(t1)}, 2, {vr(t1)}")
    e(f"v_lshlrev_b32 {vr(t1)}, 3, {vr(t1)}")
    e(f"v_lshlrev_b32 {vr(t0)}, 5, {vr(t0)}")
    e(f"v_add3_u32 {vr(t0)}, {vr(t0)}, {vr(t1)}, {vr(t2)}")
    e(f"s_lshl_b32 {sr(S_T0)}, {sr(S_C)}, 12")
    e(f"s_lshl_b32 {sr(S_T1)}, {sr(S_RH)}, 11")
    e(f"s_add_u32 {sr(S_T0)}, {sr(S_T0)}, {sr(S_T1)}")
    e(f"s_add_u32 {sr(S_T0)}, {sr(S_T0)}, {WS_YYT}")
    for p in range(2):
        e(f"buffer_store_dwordx4 {vr(V_YP+4*p,4)}, {vr(t0)}, {sr(SRD_WS,4)}, {sr(S_T0)} offen offset:{1024*p} sc0 sc1")
    e("s_waitcnt vmcnt(0)")
    e(f"s_lshr_b32 {sr(S_T0)}, {sr(S_C)}, 6")
    e(f"s_lshl_b32 {sr(S_T0)}, {sr(S_T0)}, 9")
    e(f"s_and_b32 {sr(S_T1)}, {sr(S_WG)}, 31")
    e(f"s_lshl_b32 {sr(S_T1)}, {sr(S_T1)}, 4")
    e(f"s_lshl_b32 {sr(S_T2)}, {sr(S_LW)}, 2")
    e(f"s_add_u32 {sr(S_T0)}, {sr(S_T0)}, {sr(S_T1)}")
    e(f"s_add_u32 {sr(S_T0)}, {sr(S_T0)}, {sr(S_T2)}")
    e(f"s_add_u32 {sr(S_T0)}, {sr(S_T0)}, {WS_FL+FL_Y}")
    flag_set(S_T0, t0)
    stamp(6)
    ly1 = A.newlabel("YP"); ly2 = A.newlabel("YP")
    e(f"s_cmp_lg_u32 {sr(S_LW)}, 0")
    e(f"s_cbranch_scc1 {ly1}")
    if opts.get("ygate"):
        e(f"s_mov_b32 {sr(S_T0)}, {L_FLAG+64}")
        lds_spin(S_T0, t1, t0, sleep=4)
    e(f"s_lshl_b32 {sr(S_T0)}, {sr(S_J)}, 9")
    e(f"s_add_u32 {sr(S_T0)}, {sr(S_T0)}, {WS_FL+FL_Y}")
    flag_wait_blocking(V_FL, 2, S_T0, sleep=opts.get('ysleep', 8), rec=43)
    e(f"v_mov_b32 {vr(t0)}, {L_FLAG+68}")
    e(f"v_mov_b32 {vr(t1)}, 1")
    e(f"ds_write_b32 {vr(t0)}, {vr(t1)}")
    e(f"s_branch {ly2}")
    A.label(ly1)
    e(f"s_mov_b32 {sr(S_T0)}, {L_FLAG+68}")
    lds_spin(S_T0, t1, t0, sleep=4)
    A.label(ly2)
    stamp(7)
    e(f"v_lshrrev_b32 {vr(t0)}, 3, {L}")
    e(f"v_and_b32 {vr(t1)}, 7, {L}")
    e(f"s_lshl_b32 {sr(S_T0)}, {sr(S_LW)}, 4")
    e(f"v_add_u32 {vr(t0)}, {sr(S_T0)}, {vr(t0)}")
    e(f"v_lshlrev_b32 {vr(t2)}, 12, {vr(t0)}")
    e(f"v_lshl_add_u32 {vr(t2)}, {vr(t1)}, 4, {vr(t2)}")
    e(f"s_lshl_b32 {sr(S_T0)}, {sr(S_J)}, 18")
    e(f"s_lshl_b32 {sr(S_T1)}, {sr(S_I2)}, 7")
    e(f"s_add_u32 {sr(S_T0)}, {sr(S_T0)}, {sr(S_T1)}")
    e(f"s_add_u32 {sr(S_T0)}, {sr(S_T0)}, {WS_YYT}")
    e(f"buffer_load_dwordx4 {vr(64,4)}, {vr(t2)}, {sr(SRD_WS,4)}, {sr(S_T0)} offen sc1")
    e(f"v_add_u32 {vr(t2)}, {8*4096}, {vr(t2)}")
    e(f"buffer_load_dwordx4 {vr(68,4)}, {vr(t2)}, {sr(SRD_WS,4)}, {sr(S_T0)} offen sc1")
    e(f"v_mul_u32_u24 {vr(t3)}, {YTROW}, {vr(t0)}")
    e(f"v_lshl_add_u32 {vr(t3)}, {vr(t1)}, 4, {vr(t3)}")
    e(f"v_add_u32 {vr(t3)}, {L_YT}, {vr(t3)}")
    lxw = A.newlabel("XW"); lxd = A.newlabel("XWD")
    e(f"v_mov_b32 {vr(t4)}, {L_FLAG+112}")
    e(f"s_mov_b32 {sr(S_T3)}, 0x200000")
    A.label(lxw)
    e(f"ds_read_b128 {vr(72,4)}, {vr(t4)}")
    e("s_waitcnt lgkmcnt(0)")
    e(f"v_and_b32 {vr(72)}, {vr(72)}, {vr(73)}")
    e(f"v_and_b32 {vr(74)}, {vr(74)}, {vr(75)}")
    e(f"v_and_b32 {vr(72)}, {vr(72)}, {vr(74)}")
    e("s_nop 0")
    e(f"v_readfirstlane_b32 {sr(S_T2)}, {vr(72)}")
    e("s_nop 3")
    e(f"s_cmp_eq_u32 {sr(S_T2)}, 1")
    e(f"s_cbranch_scc1 {lxd}")
    e(f"s_sub_u32 {sr(S_T3)}, {sr(S_T3)}, 1")
    e(f"s_cmp_eq_u32 {sr(S_T3)}, 0")
    e(f"s_cbranch_scc0 {lxw}")
    A.label(lxd)
    e("s_waitcnt vmcnt(1)")
    e(f"ds_write_b128 {vr(t3)}, {vr(64,4)}")
    e("s_waitcnt vmcnt(0)")
    e(f"ds_write_b128 {vr(t3)}, {vr(68,4)} offset:{8*YTROW}")
    srd(SRD_OUT, 10, 2 << 20)

    A.label("L_FINAL")
    e("s_setprio 0")
    FT, FD, FO = 28, 29, 30
    e(f"v_lshrrev_b32 {vr(t0)}, 5, {L}")
    e(f"v_and_b32 {vr(t1)}, 3, {L}")
    e(f"v_lshl_add_u32 {vr(FT)}, {vr(t0)}, 2, {vr(t1)}")
    e(f"s_lshl_b32 {sr(S_T0)}, {sr(S_WAVE)}, 3")
    e(f"v_add_u32 {vr(FT)}, {sr(S_T0)}, {vr(FT)}")
    e(f"v_bfe_u32 {vr(FD)}, {L}, 2, 3")
    e(f"s_lshl_b32 {sr(S_T0)}, {sr(S_I2)}, 16")
    e(f"s_lshl_b32 {sr(S_T1)}, {sr(S_J)}, 7")
    e(f"s_add_u32 {sr(S_T0)}, {sr(S_T0)}, {sr(S_T1)}")
    e(f"v_lshlrev_b32 {vr(FO)}, 10, {vr(FT)}")
    e(f"v_lshl_add_u32 {vr(FO)}, {vr(FD)}, 4, {vr(FO)}")
    e(f"v_add_u32 {vr(FO)}, {sr(S_T0)}, {vr(FO)}")
    FX_, FS_ = 32, 36
    e(f"buffer_load_dwordx4 {vr(FX_,4)}, {vr(FO)}, {sr(SRD_Q,4)}, 0 offen")
    S_FSO = S_G5
    e(f"s_lshl_b32 {sr(S_FSO)}, {sr(S_I2)}, 9")
    e(f"s_add_u32 {sr(S_FSO)}, {sr(S_FSO)}, {WS_ST}")
    V_FSA = 31
    e(f"v_lshlrev_b32 {vr(V_FSA)}, 3, {vr(FT)}")
    e(f"buffer_load_dwordx2 {vr(FS_,2)}, {vr(V_FSA)}, {sr(SRD_WS,4)}, {sr(S_FSO)} offen sc1")
    e("s_waitcnt lgkmcnt(0)")
    e("s_barrier")
    stamp(9)
    FP = 40
    e(f"v_and_b32 {vr(t0)}, 31, {vr(FT)}")
    e(f"v_mul_u32_u24 {vr(t0)}, 272, {vr(t0)}")
    e(f"v_lshl_add_u32 {vr(t0)}, {vr(FD)}, 5, {vr(t0)}")
    e(f"s_cmp_lt_u32 {sr(S_WAVE)}, 4")
    e(f"s_cselect_b32 {sr(S_T0)}, {RA}, {RB_}")
    e(f"v_add_u32 {vr(t0)}, {sr(S_T0)}, {vr(t0)}")
    for kg in range(4):
        e(f"ds_read_b128 {vr(FP+8*kg,4)}, {vr(t0)} offset:{kg*10240}")
        e(f"ds_read_b128 {vr(FP+8*kg+4,4)}, {vr(t0)} offset:{kg*10240+16}")
    FY = 72
    e(f"v_bfe_u32 {vr(t2)}, {L}, 2, 2")
    e(f"v_and_b32 {vr(t3)}, 3, {L}")
    e(f"v_bfe_u32 {vr(t4)}, {L}, 4, 1")
    e(f"v_lshl_add_u32 {vr(t3)}, {vr(t4)}, 2, {vr(t3)}")
    e(f"v_lshl_add_u32 {vr(t2)}, {vr(t3)}, 3, {vr(t2)}")
    e(f"v_mul_u32_u24 {vr(t2)}, {YTROW}, {vr(t2)}")
    e(f"v_lshrrev_b32 {vr(t3)}, 5, {L}")
    e(f"v_lshlrev_b32 {vr(t3)}, 3, {vr(t3)}")
    e(f"s_lshl_b32 {sr(S_T0)}, {sr(S_WAVE)}, 4")
    e(f"s_add_u32 {sr(S_T0)}, {sr(S_T0)}, {L_YT}")
    e(f"v_add3_u32 {vr(t2)}, {vr(t2)}, {vr(t3)}, {sr(S_T0)}")
    e(f"ds_read_b64_tr_b16 {vr(FY,2)}, {vr(t2)}")
    e(f"ds_read_b64_tr_b16 {vr(FY+2,2)}, {vr(t2)} offset:{4*YTROW}")
    e("s_waitcnt lgkmcnt(2)")
    for kg in range(1, 4):
        for k in range(8): e(f"v_add_f32 {vr(FP+k)}, {vr(FP+k)}, {vr(FP+8*kg+k)}")
    O = FP; T = 48; XV = 56; YV = 64
    for k in range(0, 8, 2): e(f"v_cvt_pk_bf16_f32 {vr(T+k)}, {vr(O+k)}, {vr(O+k+1)}")
    for k in range(0, 8, 2):
        e(f"v_and_b32 {vr(O+k+1)}, 0xffff0000, {vr(T+k)}")
        e(f"v_lshlrev_b32 {vr(O+k)}, 16, {vr(T+k)}")
    e(f"s_mov_b32 {sr(S_T0)}, 0xbfb8aa3b")
    for k in range(8): e(f"v_mul_f32 {vr(T+k)}, {sr(S_T0)}, {vr(O+k)}")
    for k in range(8): e(f"v_exp_f32 {vr(T+k)}, {vr(T+k)}")
    for k in range(8): e(f"v_add_f32 {vr(T+k)}, 1.0, {vr(T+k)}")
    for k in range(8): e(f"v_rcp_f32 {vr(T+k)}, {vr(T+k)}")
    e("s_nop 0")
    for k in range(8): e(f"v_mul_f32 {vr(O+k)}, {vr(O+k)}, {vr(T+k)}")
    e("s_waitcnt vmcnt(0) lgkmcnt(0)")
    lf1 = A.newlabel("FS"); lf2 = A.newlabel("FS")
    e(f"s_mov_b32 {sr(S_T3)}, 0x40000")
    A.label(lf1)
    e(f"v_cmp_eq_u32 vcc, {sr(S_NONCE)}, {vr(FS_+1)}")
    e("s_nop 1")
    e("s_cmp_eq_u64 vcc, -1")
    e(f"s_cbranch_scc1 {lf2}")
    e(f"s_sub_u32 {sr(S_T3)}, {sr(S_T3)}, 1")
    e(f"s_cmp_eq_u32 {sr(S_T3)}, 0")
    e(f"s_cbranch_scc1 {lf2}")
    e(f"buffer_load_dwordx2 {vr(FS_,2)}, {vr(V_FSA)}, {sr(SRD_WS,4)}, {sr(S_FSO)} offen sc1")
    e("s_waitcnt vmcnt(0)")
    e(f"s_branch {lf1}")
    A.label(lf2)
    for k in range(4):
        e(f"v_lshlrev_b32 {vr(XV+2*k)}, 16, {vr(FX_+k)}")
        e(f"v_and_b32 {vr(XV+2*k+1)}, 0xffff0000, {vr(FX_+k)}")
        e(f"v_lshlrev_b32 {vr(YV+2*k)}, 16, {vr(FY+k)}")
        e(f"v_and_b32 {vr(YV+2*k+1)}, 0xffff0000, {vr(FY+k)}")
    e(f"v_and_b32 {vr(FS_+1)}, 0xffff0000, {vr(FS_)}")
    e(f"v_lshlrev_b32 {vr(FS_)}, 16, {vr(FS_)}")
    e(f"v_rcp_f32 {vr(FS_+1)}, {vr(FS_+1)}")
    for k in range(8): e(f"v_sub_f32 {vr(T+k)}, {vr(XV+k)}, {vr(FS_)}")
    def round8(b):
        for k in range(0, 8, 2): e(f"v_cvt_pk_bf16_f32 {vr(b+k)}, {vr(b+k)}, {vr(b+k+1)}")
        for k in range(0, 8, 2):
            e(f"v_and_b32 {vr(b+k+1)}, 0xffff0000, {vr(b+k)}")
            e(f"v_lshlrev_b32 {vr(b+k)}, 16, {vr(b+k)}")
    if not opts.get("lightfinal"): round8(T)
    for k in range(8): e(f"v_mul_f32 {vr(T+k)}, {vr(T+k)}, {vr(FS_+1)}")
    round8(T)
    for k in range(8): e(f"v_mul_f32 {vr(T+k)}, {vr(T+k)}, {vr(YV+k)}")
    if not opts.get("lightfinal"):
        round8(T); round8(O)
    for k in range(8): e(f"v_mul_f32 {vr(T+k)}, {vr(T+k)}, {vr(O+k)}")
    if not opts.get("lightfinal"): round8(T)
    for k in range(8): e(f"v_add_f32 {vr(T+k)}, {vr(T+k)}, {vr(XV+k)}")
    for k in range(4): e(f"v_cvt_pk_bf16_f32 {vr(FY+k)}, {vr(T+2*k)}, {vr(T+2*k+1)}")
    e(f"buffer_store_dwordx4 {vr(FY,4)}, {vr(FO)}, {sr(SRD_OUT,4)}, 0 offen" + (" sc0 sc1" if opts.get("outwt") else (" nt" if opts.get("outnt") else "")))
    stamp(10)
    stamp_flush()
    A.label("L_END")
    e("s_endpgm")
    A.label("L_CODE_END")

    body = A.text()
    hdr = open("cdna_kernels/" + NAME + ".s.ref").read().split("; Override launch geometry")[0]
    out = hdr + "; Override launch geometry by editing the next line.\n"
    out += f"; @launch grid=(256,1,1) block=(512,1,1) lds={LDS_TOTAL}\n"
    out += f""".amdgcn_target "amdgcn-amd-amdhsa--gfx950"
.text
.globl {NAME}_kernel
.p2align 8
.type {NAME}_kernel,@function
{NAME}_kernel:
"""
    out += body
    out += f""".section .rodata,"a"
.p2align 6
.amdhsa_kernel {NAME}_kernel
  .amdhsa_next_free_vgpr 256
  .amdhsa_next_free_sgpr 102
  .amdhsa_accum_offset 256
  .amdhsa_group_segment_fixed_size 0
  .amdhsa_kernarg_size 104
  .amdhsa_user_sgpr_count 2
  .amdhsa_user_sgpr_kernarg_segment_ptr 1
  .amdhsa_system_sgpr_workgroup_id_x 1
.end_amdhsa_kernel
"""
    return out

if __name__ == "__main__":
    opts = {}
    outp = sys.argv[1]
    for a in sys.argv[2:]:
        k, _, v = a.partition("=")
        opts[k] = (int(v) if v.lstrip("-").isdigit() else (v or True))
    open(outp, "w").write(gen(opts))
```
